```python
import torch

def _softmax(x, axis=-1):
    return torch.softmax(x, dim=axis)

def _gelu(x):
    return torch.nn.functional.gelu(x, approximate='tanh')

def _silu(x):
    return torch.nn.functional.silu(x)

def _sigmoid(x):
    return torch.sigmoid(x)

def _layernorm(x, axis=-1, eps=1e-05):
    m = x.mean(dim=axis, keepdim=True)
    v = x.var(dim=axis, keepdim=True, unbiased=False)
    return (x - m) / torch.sqrt(v + eps)

def _scatter_add(tgt, idx, src, axis=0):
    return tgt.clone().index_add_(axis, idx, src)

def _segment_sum(src, seg, n):
    out = torch.zeros((n,) + src.shape[1:], dtype=src.dtype)
    return out.index_add_(0, seg, src)

def _pad(x, pw):
    flat = tuple((v for pair in reversed(pw) for v in pair))
    return torch.nn.functional.pad(x, flat)
kernel_name = 'adaLN_cond__ssm_conv_s4d__geglu_ffn__prompt'

def setup_inputs():

    _w = lambda a: (lambda t: t.to(torch.bfloat16) if t.is_floating_point() else t)(torch.as_tensor(a))

    def _A_setup():
        Bsz, L, D, N = (1, 2048, 640, 128)
        return {'u': _w((lambda *s: torch.randn(*s, dtype=torch.bfloat16) * 0.05)(Bsz, L, D)), 'log_A_real': _w((lambda *s: torch.randn(*s, dtype=torch.bfloat16) * 3.2)(D, N) * 0.5), 'A_imag': _w((lambda *s: torch.randn(*s, dtype=torch.bfloat16) * 0.1)(D, N) * 3.14), 'C_real': _w((lambda *s: torch.randn(*s, dtype=torch.bfloat16) * 0.4)(D, N) / N ** 0.5), 'C_imag': _w((lambda *s: torch.randn(*s, dtype=torch.bfloat16) * 0.4)(D, N) / N ** 0.5), 'log_dt': _w((lambda *s: torch.randn(*s, dtype=torch.bfloat16) * 0.1)(D) * 0.5 - 4.0), 'D_skip': _w((lambda *s: torch.randn(*s, dtype=torch.bfloat16) * 0.1)(D))}
    _A_in = _A_setup()

    def _B_setup():
        B, S, D, F = (1, 2048, 640, 1728)
        return {'x': _w((lambda *s: torch.randn(*s, dtype=torch.bfloat16) * 0.05)(B, S, D)), 'w_gate': _w((lambda *s: torch.randn(*s, dtype=torch.bfloat16) * 0.05)(D, F)), 'w_up': _w((lambda *s: torch.randn(*s, dtype=torch.bfloat16) * 0.05)(D, F)), 'w_down': _w((lambda *s: torch.randn(*s, dtype=torch.bfloat16) * 0.05)(F, D))}
    _B_in = _B_setup()
    return {'A_u': _A_in['u'], 'A_log_A_real': _A_in['log_A_real'], 'A_A_imag': _A_in['A_imag'], 'A_C_real': _A_in['C_real'], 'A_C_imag': _A_in['C_imag'], 'A_log_dt': _A_in['log_dt'], 'A_D_skip': _A_in['D_skip'], 'B_x': _B_in['x'], 'B_w_gate': _B_in['w_gate'], 'B_w_up': _B_in['w_up'], 'B_w_down': _B_in['w_down'], 'c': _w((lambda *s: torch.randn(*s, dtype=torch.bfloat16) * 0.1)(1, 640) * 8.0), 'w_mod': _w((lambda *s: torch.randn(*s, dtype=torch.bfloat16) * 0.1)(640, 6 * 640) * 640 ** (-0.5) * 8.0)}

def reference(A_u, A_log_A_real, A_A_imag, A_C_real, A_C_imag, A_log_dt, A_D_skip, B_x, B_w_gate, B_w_up, B_w_down, c, w_mod):

    def _A_ref(u, log_A_real, A_imag, C_real, C_imag, log_dt, D_skip):
        L = u.shape[1]
        dt = torch.exp(log_dt)
        A = -torch.exp(log_A_real) + 1j * A_imag
        C = (C_real + 1j * C_imag) * dt[:, None]
        pos = (lambda x, dt: x.to(dt))(torch.arange(L), log_dt.dtype)
        P = torch.exp((A * dt[:, None])[:, :, None] * pos[None, None, :])
        K = 2.0 * torch.einsum('dn,dnl->dl', C, P).real
        L2 = 2 * L
        u_t = (lambda x, *d: x.permute(*d))(u, 0, 2, 1)
        Kf = (lambda x, *a, **k: torch.fft.rfft(x.float(), *a, **k))(K, L2)
        Uf = (lambda x, *a, **k: torch.fft.rfft(x.float(), *a, **k))(u_t, L2)
        y = (lambda x, *a, **k: torch.fft.irfft(x, *a, **k).to(torch.bfloat16))(Uf * Kf[None, :, :], L2)[:, :, :L]
        y = (lambda x, *d: x.permute(*d))(y, 0, 2, 1)
        return y + u * D_skip[None, None, :]

    def _B_ref(x, w_gate, w_up, w_down):
        return _gelu(x @ w_gate) * (x @ w_up) @ w_down
    x = A_u
    mod = (_silu(c) @ w_mod).reshape(c.shape[0], 6, 1, -1)
    sa, ca, ga, sb, cb, gb = (mod[:, 0].clone(), mod[:, 1].clone(), mod[:, 2].clone(), mod[:, 3].clone(), mod[:, 4].clone(), mod[:, 5].clone())
    h = _layernorm(x, axis=-1) * (1 + ca) + sa
    x = x + ga * _A_ref(h, A_log_A_real, A_A_imag, A_C_real, A_C_imag, A_log_dt, A_D_skip)
    h = _layernorm(x, axis=-1) * (1 + cb) + sb
    x = x + gb * _B_ref(h, B_w_gate, B_w_up, B_w_down)
    return x
```

```python
import re

TRANS = ('v_exp_f32', 'v_log_f32', 'v_rcp_f32', 'v_rsq_f32', 'v_sqrt_f32', 'v_sin_f32', 'v_cos_f32', 'v_rcp_iflag_f32')
REG_RE = re.compile(r'(?<![\w.])([vs])(\d+)(?![\w\[])|(?<![\w.])([vs])\[(\d+):(\d+)\]|\b(vcc|exec|m0|scc)\b')


def regs_of(tok):
    out = []
    for m in REG_RE.finditer(tok):
        if m.group(1):
            out.append((m.group(1), int(m.group(2))))
        elif m.group(3):
            out += [(m.group(3), r) for r in range(int(m.group(4)), int(m.group(5)) + 1)]
        else:
            out.append(('x', m.group(6)))
    return out


def split_ops(s):
    ops, depth, cur = [], 0, ''
    for ch in s:
        if ch in '[(':
            depth += 1
        if ch in '])':
            depth -= 1
        if ch == ',' and depth == 0:
            ops.append(cur.strip())
            cur = ''
        else:
            cur += ch
    if cur.strip():
        ops.append(cur.strip())
    return ops


class Ins:
    __slots__ = ('text', 'op', 'ops', 'dst', 'src', 'kind', 'tag', 'waits', 'mf', 'label', 'target', 'states', 'srcC', 'srcAB', 'sdata')

    def __init__(self, text, tag=None):
        self.text = text
        self.tag = tag
        self.waits = []
        self.label = None
        self.target = None
        self.mf = 0
        self.states = 1
        self.srcC = set()
        self.srcAB = set()
        self.sdata = set()
        t = text.split(';')[0].strip()
        if t.endswith(':'):
            self.label = t[:-1]
            self.kind = 'label'
            self.op = ''
            self.ops = []
            self.dst = set()
            self.src = set()
            self.states = 0
            return
        if t.startswith('.') or t == '':
            self.kind = 'dir'
            self.op = ''
            self.ops = []
            self.dst = set()
            self.src = set()
            self.states = 0
            return
        parts = t.split(None, 1)
        op = self.op = parts[0]
        rest = parts[1] if len(parts) > 1 else ''
        ops = self.ops = split_ops(rest)
        R = [regs_of(o.split(' ')[0] if i == len(ops) - 1 and not o.startswith('hwreg') else o) for i, o in enumerate(ops)]
        allr = lambda lo: set(x for r in R[lo:] for x in r)
        dst, src = set(), set()
        if op == '__wait':
            self.kind = 'pseudo'
            self.states = 0
            self.waits = ops
        elif op.startswith('v_mfma'):
            self.kind = 'mfma'
            self.mf = 8 if '32x32' in op else 4
            dst = set(R[0])
            src = allr(1)
            self.srcC = set(R[3])
            self.srcAB = set(R[1]) | set(R[2])
        elif op.startswith('v_'):
            self.kind = 'valu'
            if op.startswith('v_permlane') or op.startswith('v_swap'):
                dst = set(R[0]) | set(R[1])
                src = set(dst)
            elif '_co_' in op or op.startswith('v_div_scale') or op.startswith('v_mad_u64'):
                dst = set(R[0]) | set(R[1])
                src = allr(2)
            elif op.startswith('v_cmpx'):
                dst = set(R[0]) | {('x', 'exec')}
                src = allr(1)
            else:
                dst = set(R[0])
                src = allr(1)
                if op.startswith('v_fmac') or op.startswith('v_dot2c') or op.startswith('v_writelane') or '_dpp' in op:
                    src |= dst
        elif op.startswith('ds_'):
            self.kind = 'ds'
            if op.startswith('ds_read') or op.startswith('ds_bpermute') or op.startswith('ds_permute') or op.startswith('ds_swizzle') or '_rtn' in op:
                dst = set(R[0])
                src = allr(1)
                if 'd16' in op:
                    src |= dst
            else:
                src = allr(0)
            if 'addtid' in op:
                src.add(('x', 'm0'))
        elif op.startswith('buffer_') or op.startswith('global_'):
            self.kind = 'vmem'
            toks = t.replace(',', ' ').split()
            lds = ('lds' in toks) or '_lds_' in op
            if op in ('buffer_wbl2', 'buffer_inv'):
                pass
            elif lds:
                src = allr(0) | {('x', 'm0')}
            elif '_load_' in op:
                dst = set(R[0])
                src = allr(1)
                if 'd16' in op:
                    src |= dst
            elif '_atomic_' in op:
                if 'sc0' in toks:
                    dst = set(R[0])
                    src = allr(1) if op.startswith('global_') else allr(0)
                else:
                    src = allr(0)
            else:
                src = allr(0)
                if op.endswith('x4') or op.endswith('x3'):
                    self.sdata = set(R[0]) if op.startswith('buffer_') else set(R[1])
        elif op.startswith('s_load') or op.startswith('s_buffer_load') or op in ('s_memtime', 's_memrealtime'):
            self.kind = 'smem'
            dst = set(R[0])
            src = allr(1)
        elif op.startswith('s_'):
            self.kind = 'salu'
            if op == 's_nop':
                self.states = int(ops[0], 0) + 1
            elif op in ('s_branch',) or op.startswith('s_cbranch'):
                self.kind = 'branch'
                self.target = ops[0]
                if 'vcc' in op:
                    src = {('x', 'vcc')}
            elif op == 's_endpgm':
                self.kind = 'end'
            elif op in ('s_waitcnt', 's_barrier', 's_setprio', 's_sleep', 's_sethalt'):
                pass
            elif op.startswith('s_cmp') or op.startswith('s_bitcmp'):
                src = allr(0)
            else:
                dst = set(R[0])
                src = allr(1)
                if 'saveexec' in op:
                    dst.add(('x', 'exec'))
                if op in ('s_addk_i32', 's_mulk_i32') or op.startswith('s_cmov') or op.startswith('s_bitset'):
                    src |= set(R[0])
        else:
            raise ValueError('unknown instruction: ' + text)
        self.dst, self.src = dst, src


VM_MAX, LG_MAX = 63, 15


class Kern:
    def __init__(self):
        self.ins = []
        self.nlab = 0

    def __call__(self, text, tag=None):
        for line in text.split('\n'):
            line = line.strip()
            if not line or line.startswith(';'):
                continue
            self.ins.append(Ins(line, tag))
        return self

    def wait(self, *tags):
        self.ins.append(Ins('__wait ' + ', '.join(tags)))

    def label(self, base):
        self.nlab += 1
        return f'L_{base}_{self.nlab}'

    def blocks(self, ins):
        starts = {0}
        for i, x in enumerate(ins):
            if x.kind == 'label':
                starts.add(i)
            if x.kind in ('branch', 'end') and i + 1 < len(ins):
                starts.add(i + 1)
        st = sorted(starts)
        blks = [(a, b) for a, b in zip(st, st[1:] + [len(ins)])]
        lab = {ins[a].label: k for k, (a, b) in enumerate(blks) if ins[a].kind == 'label'}
        succ = []
        for k, (a, b) in enumerate(blks):
            last = None
            for j in range(b - 1, a - 1, -1):
                if ins[j].kind not in ('dir', 'pseudo'):
                    last = ins[j]
                    break
            s = []
            if last is not None and last.kind == 'end':
                pass
            elif last is not None and last.kind == 'branch':
                s.append(lab[last.target])
                if last.op != 's_branch' and k + 1 < len(blks):
                    s.append(k + 1)
            elif k + 1 < len(blks):
                s.append(k + 1)
            succ.append(s)
        pred = [[] for _ in blks]
        for k, s in enumerate(succ):
            for t in s:
                pred[t].append(k)
        return blks, succ, pred

    @staticmethod
    def _apply_wait(st, vm, lg):
        for key in list(st):
            cls, age = st[key]
            if cls == 'vm' and vm is not None and age >= vm:
                del st[key]
            elif cls == 'lg' and lg is not None and age >= lg:
                del st[key]
            elif cls == 'sm' and lg == 0:
                del st[key]

    def _run_block(self, ins, a, b, st, out):
        st = dict(st)
        for i in range(a, b):
            x = ins[i]
            if x.kind in ('label', 'dir'):
                if out is not None:
                    out.append(x)
                continue
            if x.op == 's_waitcnt':
                m = re.search(r'vmcnt\((\d+)\)', x.text)
                vm = int(m.group(1)) if m else None
                m = re.search(r'lgkmcnt\((\d+)\)', x.text)
                lg = int(m.group(1)) if m else None
                self._apply_wait(st, vm, lg)
                if out is not None:
                    out.append(x)
                continue
            need = [('t', t) for t in x.waits] if x.kind == 'pseudo' else list(x.src | x.dst)
            vm = lg = None
            smem_pending = any(c == 'sm' for c, _ in st.values())
            for key in need:
                if key in st:
                    cls, age = st[key]
                    if key in x.dst and key not in x.src and ((cls == 'vm' and x.kind == 'vmem') or (cls == 'lg' and x.kind == 'ds' and not smem_pending)):
                        continue
                    if cls == 'vm':
                        vm = min(age, VM_MAX) if vm is None else min(vm, age)
                    elif cls == 'lg':
                        v = 0 if smem_pending else min(age, LG_MAX)
                        lg = v if lg is None else min(lg, v)
                    else:
                        lg = 0
            if vm is not None or lg is not None:
                self._apply_wait(st, vm, lg)
                if out is not None:
                    w = 's_waitcnt' + (f' vmcnt({vm})' if vm is not None else '') + (f' lgkmcnt({lg})' if lg is not None else '')
                    out.append(Ins(w))
            if x.kind == 'pseudo':
                continue
            cls = {'vmem': 'vm', 'ds': 'lg', 'smem': 'sm'}.get(x.kind)
            if cls:
                for key in list(st):
                    c, age = st[key]
                    if c == cls and cls != 'sm':
                        st[key] = (c, age + 1)
                for r in x.dst:
                    st[r] = (cls, 0)
                if x.tag:
                    for t in (x.tag if isinstance(x.tag, (list, tuple)) else [x.tag]):
                        st[('t', t)] = (cls, 0)
                if cls == 'sm' and not x.dst:
                    st[('t', '__smem')] = (cls, 0)
            if out is not None:
                out.append(x)
        return st

    def insert_waits(self):
        ins = self.ins
        blks, succ, pred = self.blocks(ins)
        inst = [None] * len(blks)
        work = []
        for k in range(len(blks)):
            if k == 0 or not pred[k]:
                inst[k] = {}
                work.append(k)
        it = 0
        while work:
            it += 1
            assert it < 200000
            k = work.pop(0)
            o = self._run_block(ins, blks[k][0], blks[k][1], inst[k], None)
            for t in succ[k]:
                if inst[t] is None:
                    inst[t] = dict(o)
                    work.append(t)
                else:
                    ch = False
                    for key, (c, age) in o.items():
                        if key not in inst[t]:
                            inst[t][key] = (c, age)
                            ch = True
                        else:
                            c2, a2 = inst[t][key]
                            if c2 != c:
                                raise ValueError(f'register {key} pending in two counter classes at block {ins[blks[t][0]].text}')
                            if age < a2:
                                inst[t][key] = (c, age)
                                ch = True
                    if ch and t not in work:
                        work.append(t)
        out = []
        for k, (a, b) in enumerate(blks):
            self._run_block(ins, a, b, inst[k] or {}, out)
        self.ins = out

    @staticmethod
    def _req(p, c):
        V = lambda s: set(r for r in s if r[0] == 'v')
        S = lambda s: set(r for r in s if r[0] == 's' or r == ('x', 'vcc'))
        n = 0
        if p.kind == 'valu':
            pv = V(p.dst)
            ps = S(p.dst)
            if c.kind == 'mfma' and pv & c.src:
                n = max(n, 2)
            if c.kind == 'valu':
                if pv & c.src:
                    if '_dpp' in c.op or c.op.startswith('v_permlane'):
                        n = max(n, 2)
                    if c.op.startswith('v_readlane') or c.op.startswith('v_readfirstlane'):
                        n = max(n, 1)
                    if p.op.replace('_e32', '').replace('_e64', '') in TRANS:
                        n = max(n, 1)
                    if 'sdwa' in p.op:
                        n = max(n, 1)
                if p.op.startswith('v_dot') and pv & (c.src | c.dst):
                    same = c.op == p.op
                    if same and len(c.ops) >= 3:
                        ab = set(regs_of(c.ops[1])) | set(regs_of(c.ops[2]))
                        if pv & ab:
                            n = max(n, 3)
                    else:
                        n = max(n, 3)
                if ps & c.src:
                    if c.op.startswith('v_readlane') or c.op.startswith('v_writelane'):
                        n = max(n, 4)
                    else:
                        n = max(n, 2)
            elif p.op.startswith('v_dot') and pv & (c.src | c.dst):
                n = max(n, 3)
            if c.kind == 'vmem' and ps & c.src:
                n = max(n, 5)
            if c.kind in ('salu', 'branch', 'smem') and ps & c.src:
                n = max(n, 1)
            if ('x', 'exec') in p.dst:
                n = max(n, 5)
        elif p.kind == 'mfma':
            d = p.dst
            if c.kind == 'mfma':
                if d & c.srcAB:
                    n = max(n, p.mf + 4)
                if d & c.srcC:
                    if not (d == c.srcC and p.mf == c.mf):
                        n = max(n, p.mf + 2)
                elif d & c.dst:
                    n = max(n, p.mf + 2)
            elif c.kind in ('valu', 'vmem', 'ds'):
                if d & (c.src | c.dst):
                    n = max(n, p.mf + 4)
                if c.kind == 'valu' and p.srcC & c.dst:
                    n = max(n, p.mf - 1)
        elif p.kind == 'salu':
            if ('x', 'm0') in p.dst and ('x', 'm0') in c.src and c.kind in ('vmem', 'ds'):
                n = max(n, 1)
        elif p.kind == 'vmem':
            if p.sdata and p.sdata & c.dst:
                n = max(n, 2)
        return n

    def insert_nops(self):
        ins = self.ins
        blks, succ, pred = self.blocks(ins)
        body = [list(ins[a:b]) for a, b in blks]
        WIN = 14

        def scan(k, upto, dist, c, seen):
            need = 0
            lst = body[k]
            for j in range(upto - 1, -1, -1):
                p = lst[j]
                if p.states == 0:
                    continue
                r = self._req(p, c)
                if r - dist > need:
                    need = r - dist
                dist += p.states
                if dist >= WIN:
                    return need
            for q in pred[k]:
                key = (q, dist)
                if key in seen:
                    continue
                seen.add(key)
                need = max(need, scan(q, len(body[q]), dist, c, seen))
            return need

        for k in range(len(body)):
            j = 0
            while j < len(body[k]):
                c = body[k][j]
                if c.states:
                    need = scan(k, j, 0, c, set())
                    if need > 0:
                        body[k].insert(j, Ins(f's_nop {need - 1}'))
                        j += 1
                j += 1
        self.ins = [x for b in body for x in b]

    def text(self):
        self.insert_waits()
        self.insert_nops()
        out = []
        for x in self.ins:
            if x.kind == 'pseudo':
                continue
            out.append(x.text if x.kind == 'label' else '  ' + x.text)
        return '\n'.join(out) + '\n'


def vr(a, n=1):
    return f'v{a}' if n == 1 else f'v[{a}:{a + n - 1}]'


def sr(a, n=1):
    return f's{a}' if n == 1 else f's[{a}:{a + n - 1}]'


def f32(x):
    import struct
    return '0x%08x' % struct.unpack('<I', struct.pack('<f', x))[0]
```

```python
import sys, math
from asmgen import Kern, vr, sr, f32

NAME = 'adaLN_cond__ssm_conv_s4d__geglu_ffn__prompt_kernel'

SYNC1, SYNC2A, SYNC2B, SYNCW, SYNC3 = 0x0, 0x4000, 0x8000, 0xE000, 0xF000
NZLINES = 512
MOD, STATS = 0x10000, 0x14000
STAMP = 0x20000
XN, XT, X1T, X1S, WD, ACT = 0x100000, 0x400000, 0x700000, 0xA00000, 0xD00000, 0x1000000
KG, KGS = 0, 4608
XNL0, XTL = 1696, 13984
KA, KAS = 27648, 4128
SA, SAS = 40032, 8192
TR, TRR, TRA = 40032, 1344, 10752
WT = 64608
TAB, EXC = 0, 4096
STG = 81920
RING, NS = 65536, 6
G2S, RESID = 30720, 153600
LDS_BYTES = 163840
pX, pLA, pAI, pCR, pCI, pDT, pDS, pWG, pWU, pWD, pC, pWM, pOUT, pDBG, pWS = 4, 6, 8, 10, 12, 14, 16, 20, 22, 24, 26, 28, 30, 32, 34
sW, sI, sPC = 36, 37, 38
rWS, rA, rB = 40, 44, 48
sD0, sMB, sNB = 52, 53, 54
sT = 55
sCH = 70
sSPIN = 79
sST = 80
sFLAG = 82
P2 = lambda r: sr(r, 2)
P4 = lambda r: sr(r, 4)
WF = 96
SPIN_MAX = 400000

LOG2E = 1.4426950408889634


class Gen:
    def __init__(self, opt):
        self.o = dict(stop=None, stamps=False)
        self.o.update(opt)
        self.k = Kern()
        self.nst = 0

    def stamp(self, idx, vt=86):
        if self.o['stamps']:
            self.k(f's_memrealtime {sr(sST, 2)}')
            self.k('s_waitcnt lgkmcnt(0)')
            k = self.k
            k(f'''
            s_lshl_b32 s100, s2, 3
            s_add_u32 s100, s100, {sr(sW)}
            s_lshl_b32 s100, s100, 7
            s_add_u32 s100, s100, {STAMP + 4 * idx}
            v_mov_b32 v{vt}, s100
            v_mov_b32 v{vt + 1}, {sr(sST)}
            s_mov_b64 exec, 1
            global_store_dword v{vt}, v{vt + 1}, {P2(pWS)}
            s_mov_b64 exec, -1
            ''')

    def arrive(self, base, nshard, shard_sreg, vt):
        k = self.k
        k(f'''
        s_lshl_b32 s3, {shard_sreg}, 7
        s_add_u32 s3, s3, {base}
        v_mul_u32_u24 {vr(vt)}, {128 * nshard}, v0
        v_add_u32 {vr(vt)}, s3, {vr(vt)}
        v_mov_b32 {vr(vt + 1)}, 1
        s_mov_b64 exec, 0xff
        global_atomic_add {vr(vt)}, {vr(vt + 1)}, {P2(pWS)} sc1
        s_mov_b64 exec, -1
        ''')

    def poll_addr(self, base, nshard, va):
        k = self.k
        k(f'''
        s_and_b32 s3, s2, 7
        s_mul_i32 s3, s3, {128 * nshard}
        s_add_u32 s3, s3, {base}
        v_min_u32 {vr(va)}, {nshard - 1}, v0
        v_lshlrev_b32 {vr(va)}, 7, {vr(va)}
        v_add_u32 {vr(va)}, s3, {vr(va)}
        ''')

    def poll(self, va, vd, count, ptr=pWS, preissued=False):
        k = self.k
        L, D = k.label('poll'), k.label('polld')
        if preissued:
            C = k.label('pollc')
            k(f's_branch {C}')
        k(f'{L}:')
        k(f'global_load_dword {vr(vd)}, {vr(va)}, {P2(ptr)} sc1')
        if preissued:
            k(f'{C}:')
        k(f'''
        v_cmp_gt_u32 vcc, {count}, {vr(vd)}
        s_cbranch_vccz {D}
        s_add_u32 {sr(sSPIN)}, {sr(sSPIN)}, 1
        s_cmp_lt_u32 {sr(sSPIN)}, {SPIN_MAX}
        s_cbranch_scc1 {L}
        {D}:
        ''')

    def srd(self, r, ptr, size):
        self.k(f'''
        s_mov_b32 {sr(r)}, {sr(ptr)}
        s_and_b32 {sr(r + 1)}, {sr(ptr + 1)}, 0xffff
        s_mov_b32 {sr(r + 2)}, {size}
        s_mov_b32 {sr(r + 3)}, 0x20000
        ''')

    def only_wave(self, w):
        L = self.k.label('ow')
        self.k(f's_cmp_lg_u32 {sr(sW)}, {w}\ns_cbranch_scc1 {L}')
        return L

    def prologue(self):
        k = self.k
        k(f'''
        s_cmp_ge_u32 s2, 256
        s_cbranch_scc1 L_end
        s_load_dwordx16 s[4:19], s[0:1], 0
        s_load_dwordx16 s[20:35], s[0:1], 64
        s_getpc_b64 {P2(sPC)}
        L_pc:
        v_lshrrev_b32 v1, 6, v0
        v_and_b32 v0, 63, v0
        v_readfirstlane_b32 {sr(sW)}, v1
        s_mov_b32 {sr(sSPIN)}, 0
        ''')
        L = k.label('pf')
        k(f'''
        s_lshr_b32 s3, s2, 3
        s_and_b32 s3, s3, 7
        s_cmp_eq_u32 {sr(sW)}, 0
        s_cselect_b32 s56, 0, s3
        s_cmp_eq_u32 {sr(sW)}, s56
        s_cbranch_scc0 {L}
        s_lshl_b32 s3, {sr(sW)}, 13
        v_lshlrev_b32 v2, 7, v0
        v_add_u32 v2, s3, v2
        v_min_u32 v2, L_end-L_pc, v2
        global_load_dword v3, v2, {P2(sPC)}
        {L}:
        ''')
        self.stamp(0)
        k(f'''
        s_lshl_b32 s3, s2, 3
        s_add_u32 s3, s3, {sr(sW)}
        s_mul_i32 s3, s3, 1280
        v_lshl_add_u32 v2, v0, 2, s3
        ''')
        for j in range(5):
            k(f'global_load_dword v{4 + j}, v2, {P2(pX)} offset:{256 * j}')
        self.srd(rWS, pWS, 0x10000000)
        L = k.label('noinit')
        k(f'''
        s_cmp_lg_u32 s2, 0
        s_cbranch_scc1 {L}
        v_mov_b32 v12, 0
        v_mov_b32 v13, 0
        v_mov_b32 v14, 0
        v_mov_b32 v15, 0
        s_lshl_b32 s3, {sr(sW)}, 13
        v_lshl_add_u32 v10, v0, 7, s3
        global_store_dword v10, v12, {P2(pWS)} sc1
        s_lshl_b32 s3, {sr(sW)}, 10
        s_add_u32 s3, s3, {MOD}
        v_lshl_add_u32 v10, v0, 4, s3
        global_store_dwordx4 v10, v[12:15], {P2(pWS)} sc1
        v_add_u32 v11, 0x2000, v10
        global_store_dwordx4 v11, v[12:15], {P2(pWS)} sc1
        v_add_u32 v11, 0x4000, v10
        global_store_dwordx4 v11, v[12:15], {P2(pWS)} sc1
        s_waitcnt vmcnt(0)
        s_barrier
        ''')
        L2 = self.only_wave(0)
        k(f'''
        v_mov_b32 v10, 0
        v_mov_b32 v11, 1
        s_mov_b64 exec, 1
        global_store_dword v10, v11, {P2(pDBG)} sc1
        s_mov_b64 exec, -1
        {L2}:
        {L}:
        ''')
        k(f'''
        s_sub_u32 {sr(sI)}, s2, 40
        s_and_b32 {sr(sMB)}, s2, 7
        s_lshr_b32 {sr(sNB)}, {sr(sI)}, 3
        s_mul_i32 s3, {sr(sMB)}, 27
        s_add_u32 s3, s3, {sr(sNB)}
        s_mul_i32 s3, s3, 3
        s_min_u32 {sr(sD0)}, s3, 637
        ''')

    def kgen_loads(self):
        k = self.k
        L = k.label('nokl')
        k(f'''
        s_cmp_lt_u32 s2, 40
        s_cbranch_scc1 {L}
        s_min_u32 s55, {sr(sW)}, 5
        s_lshl_b32 s56, {sr(sD0)}, 1
        s_add_u32 s56, s56, s55
        s_lshl_b32 s56, s56, 7
        v_lshl_add_u32 v18, v0, 1, s56
        s_lshr_b32 s55, s55, 1
        s_add_u32 s55, s55, {sr(sD0)}
        s_lshl_b32 s55, s55, 1
        v_mov_b32 v19, s55
        global_load_ushort v20, v18, {P2(pLA)}
        global_load_ushort v21, v18, {P2(pAI)}
        global_load_ushort v22, v18, {P2(pCR)}
        global_load_ushort v23, v18, {P2(pCI)}
        global_load_ushort v24, v19, {P2(pDT)}
        v_min_u32 v19, 2, v0
        v_add_u32 v19, {sr(sD0)}, v19
        v_lshlrev_b32 v19, 1, v19
        global_load_ushort v25, v19, {P2(pDS)}
        {L}:
        ''')

    def ln1(self):
        k = self.k
        k(f'''
        s_mov_b32 s55, 0x3f803f80
        v_mov_b32 v10, 0
        v_mov_b32 v11, 0
        ''')
        for j in range(5):
            k(f'v_dot2_f32_bf16 v10, v{4 + j}, s55, v10')
            k(f'v_dot2_f32_bf16 v11, v{4 + j}, v{4 + j}, v11')
        k(f'''
        s_mul_i32 s56, {sr(sW)}, {TRR}
        s_add_u32 s56, s56, {TR}
        v_lshl_add_u32 v12, v0, 2, s56
        v_permlane32_swap_b32 v10, v11
        v_add_f32 v10, v10, v11
        ''')
        for j in range(5):
            k(f'ds_write_b32 v12, v{4 + j} offset:{TRA + 256 * j}', tag='trw')
        for n in (8, 4, 2, 1):
            k(f'v_add_f32_dpp v10, v10, v10 row_ror:{n} row_mask:0xf bank_mask:0xf')
        k(f'''
        v_add_f32_dpp v10, v10, v10 row_bcast:15 row_mask:0xa bank_mask:0xf
        v_readlane_b32 s55, v10, 31
        v_readlane_b32 s56, v10, 63
        v_mov_b32 v13, {f32(1.0 / 640)}
        v_mul_f32 v10, s55, v13
        v_mul_f32 v11, s56, v13
        v_fma_f32 v11, -v10, v10, v11
        v_max_f32 v11, 0, v11
        v_cvt_pk_bf16_f32 v10, v10, v11
        v_and_b32 v11, 0xffff0000, v10
        v_lshlrev_b32 v10, 16, v10
        v_add_f32 v11, {f32(1e-5)}, v11
        v_cvt_pk_bf16_f32 v11, v11, v11
        v_lshlrev_b32 v11, 16, v11
        v_sqrt_f32 v11, v11
        v_cvt_pk_bf16_f32 v11, v11, v11
        v_lshlrev_b32 v11, 16, v11
        v_rcp_f32 v11, v11
        v_mul_f32 v10, -v10, v11
        ''')
        for j in range(5):
            k(f'''
            v_lshlrev_b32 v13, 16, v{4 + j}
            v_and_b32 v14, 0xffff0000, v{4 + j}
            v_fma_f32 v13, v13, v11, v10
            v_fma_f32 v14, v14, v11, v10
            v_cvt_pk_bf16_f32 v{4 + j}, v13, v14
            ''')
            k(f'ds_write_b32 v12, v{4 + j} offset:{256 * j}', tag='trw')
        k(f'''
        v_bfe_u32 v13, v0, 2, 2
        v_mul_u32_u24 v13, {TRR}, v13
        v_lshrrev_b32 v14, 4, v0
        v_lshl_add_u32 v13, v14, 5, v13
        v_and_b32 v14, 3, v0
        v_lshl_add_u32 v13, v14, 3, v13
        s_mul_i32 s57, s2, 10240
        v_lshl_add_u32 v15, v0, 4, s57
        ''')
        k.wait('trw')
        k('s_barrier')
        Ls = k.label('t3')
        for i in range(3):
            if i == 2:
                k(f's_cmp_ge_u32 {sr(sW)}, 4\ns_cbranch_scc1 {Ls}')
            k(f'''
            s_add_u32 s55, {sr(sW)}, {8 * i}
            s_cmp_ge_u32 s55, 10
            s_mov_b32 s56, {TR}
            s_cmov_b32 s56, {TRA - 1280 + TR}
            s_mov_b32 s58, {XN}
            s_cmov_b32 s58, {XT - 10240}
            s_lshl_b32 s57, s55, 7
            s_add_u32 s56, s56, s57
            v_add_u32 v14, s56, v13
            ds_read_b64_tr_b16 v[{28 + 4 * i}:{29 + 4 * i}], v14
            ds_read_b64_tr_b16 v[{30 + 4 * i}:{31 + 4 * i}], v14 offset:{4 * TRR}
            s_lshl_b32 s57, s55, 10
            s_add_u32 s58, s58, s57
            ''')
            k(f'buffer_store_dwordx4 v[{28 + 4 * i}:{31 + 4 * i}], v15, {P4(rWS)}, s58 offen sc1', tag='xnst')
        k(f'{Ls}:')
        L = self.only_wave(0)
        k('v_mov_b32 v16, 0')
        self.poll(16, 17, 1, ptr=pDBG)
        k(f'{L}:')
        k.wait('xnst')
        k('s_barrier')
        L = self.only_wave(0)
        k('s_lshr_b32 s55, s2, 3\ns_and_b32 s55, s55, 15')
        self.arrive(SYNC1, 16, 's55', 16)
        k(f'{L}:')
        self.stamp(1)

    def wstage_setup(self):
        k = self.k
        self.srd(rA, pWG, 640 * 1728 * 2)
        self.srd(rB, pWU, 640 * 1728 * 2)
        k(f'''
        v_lshrrev_b32 v16, 3, v0
        v_mul_u32_u24 v17, 3456, v16
        v_bfe_u32 v16, v0, 4, 1
        v_bfe_u32 v26, v0, 1, 2
        v_xor_b32 v26, v26, v16
        v_xor_b32 v27, 2, v26
        v_and_b32 v16, 1, v0
        v_lshl_add_u32 v17, v16, 4, v17
        s_lshl_b32 s55, {sr(sNB)}, 7
        v_add_u32 v17, s55, v17
        v_lshl_add_u32 v26, v26, 5, v17
        v_lshl_add_u32 v27, v27, 5, v17
        ''')

    def wstage_issue(self, rnd):
        k = self.k
        k(f'''
        s_add_u32 s55, {sr(sW)}, {sr(sMB)}
        s_and_b32 s55, s55, 7
        s_mul_i32 s56, s55, {8 * 3456}
        s_add_u32 s56, s56, {rnd * 320 * 3456}
        s_lshl_b32 s55, s55, 11
        s_add_u32 s55, s55, {STG}
        ''')
        for i in range(5):
            k(f's_add_u32 m0, s55, {i * 16384}')
            k(f'buffer_load_dwordx4 v26, {P4(rA)}, s56 offen lds', tag='wst')
            k(f's_add_u32 m0, s55, {i * 16384 + 1024}')
            k(f'buffer_load_dwordx4 v27, {P4(rB)}, s56 offen lds', tag='wst')
            if i < 4:
                k(f's_add_u32 s56, s56, {64 * 3456}')

    def wstage_read(self, rnd, va):
        k = self.k
        k(f'''
        v_bfe_u32 {vr(va + 1)}, v0, 3, 2
        s_and_b32 s55, {sr(sW)}, 3
        v_xor_b32 {vr(va + 1)}, s55, {vr(va + 1)}
        v_lshrrev_b32 {vr(va)}, 4, v0
        v_lshlrev_b32 {vr(va)}, 10, {vr(va)}
        v_lshl_add_u32 {vr(va)}, {vr(va + 1)}, 5, {vr(va)}
        v_bfe_u32 {vr(va + 1)}, v0, 2, 2
        v_lshl_add_u32 {vr(va)}, {vr(va + 1)}, 7, {vr(va)}
        v_and_b32 {vr(va + 1)}, 3, v0
        v_lshl_add_u32 {vr(va)}, {vr(va + 1)}, 3, {vr(va)}
        v_add_u32 {vr(va)}, {STG}, {vr(va)}
        v_add_u32 {vr(va + 1)}, {10 * 4096}, {vr(va)}
        ''')
        for s in range(20):
            r = WF + 4 * (20 * rnd + s)
            a = va if s < 10 else va + 1
            off = (s % 10) * 4096
            k(f'ds_read_b64_tr_b16 {vr(r, 2)}, {vr(a)} offset:{off}', tag='wrd')
            k(f'ds_read_b64_tr_b16 {vr(r + 2, 2)}, {vr(a)} offset:{off + 512}', tag='wrd')

    def cmul(self, d, a, b):
        self.k(f'v_pk_mul_f32 {vr(d, 2)}, {vr(a, 2)}, {vr(b, 2)} op_sel:[0,0] op_sel_hi:[0,1]')
        self.k(f'v_pk_fma_f32 {vr(d, 2)}, {vr(a, 2)}, {vr(b, 2)}, {vr(d, 2)} op_sel:[1,1,0] op_sel_hi:[1,0,1] neg_lo:[1,0,0]')

    def zpow(self, d, e, a2, fr, t):
        k = self.k
        k(f'''
        v_mul_f32 {vr(t)}, {f32(e)}, {vr(a2)}
        v_mul_f32 {vr(t + 1)}, {f32(e)}, {vr(fr)}
        v_exp_f32 {vr(t)}, {vr(t)}
        v_fract_f32 {vr(t + 1)}, {vr(t + 1)}
        v_cos_f32 {vr(d)}, {vr(t + 1)}
        v_sin_f32 {vr(d + 1)}, {vr(t + 1)}
        v_mul_f32 {vr(d)}, {vr(d)}, {vr(t)}
        v_mul_f32 {vr(d + 1)}, {vr(d + 1)}, {vr(t)}
        ''')

    def kgen(self):
        k = self.k
        Lskip = k.label('nokg')
        k(f's_cmp_ge_u32 {sr(sW)}, 6\ns_cbranch_scc1 {Lskip}')
        A2, FR, T = 28, 29, 30
        Z = {e: 32 + 2 * e for e in range(1, 8)}
        Z8, Z128, QA, QB, PA, PB, PC = 48, 50, 52, 54, 56, 58, 60
        CV = 62
        QF, PF, AC = 64, 176, 192
        RA = 80
        k(f'''
        v_lshlrev_b32 v24, 16, v24
        v_lshlrev_b32 v20, 16, v20
        v_mul_f32 v24, {f32(LOG2E)}, v24
        v_mul_f32 v20, {f32(LOG2E)}, v20
        v_exp_f32 v24, v24
        v_exp_f32 v20, v20
        v_lshlrev_b32 v21, 16, v21
        v_cvt_pk_bf16_f32 v20, v20, v24
        v_and_b32 v24, 0xffff0000, v20
        v_lshlrev_b32 v20, 16, v20
        v_mul_f32 {vr(A2)}, v20, v24
        v_mul_f32 {vr(FR)}, v21, v24
        v_mul_f32 {vr(A2)}, {f32(-LOG2E)}, {vr(A2)}
        v_mul_f32 {vr(FR)}, 0.15915494, {vr(FR)}
        v_add_f32 v24, v24, v24
        v_lshlrev_b32 v22, 16, v22
        v_lshlrev_b32 v23, 16, v23
        v_mul_f32 {vr(QA)}, v22, v24
        v_mul_f32 {vr(QA + 1)}, v23, v24
        s_mul_i32 s55, {sr(sW)}, {KGS}
        s_mov_b32 m0, s55
        v_and_b32 {vr(RA)}, 15, v0
        v_mul_u32_u24 {vr(RA)}, 288, {vr(RA)}
        v_lshrrev_b32 {vr(RA + 1)}, 4, v0
        v_lshl_add_u32 {vr(RA)}, {vr(RA + 1)}, 4, {vr(RA)}
        v_add_u32 {vr(RA)}, s55, {vr(RA)}
        ''')
        self.zpow(Z8, 8.0, A2, FR, T)
        self.zpow(Z[1], 1.0, A2, FR, T)
        self.zpow(Z128, 128.0, A2, FR, T)
        flip = [0]

        def put(row, r, neg=False):
            c = CV + flip[0]
            flip[0] ^= 1
            k(f'v_cvt_pk_bf16_f32 {vr(c)}, {vr(r)}, {"-" if neg else ""}{vr(r + 1)}')
            k(f'ds_write_addtid_b32 {vr(c)} offset:{288 * row}')

        def frags(dst):
            for s in range(4):
                k(f'ds_read_b128 {vr(dst + 4 * s, 4)}, {vr(RA)} offset:{64 * s}')

        def mm(acc):
            for s in range(4):
                c = '0' if s == 0 else vr(acc, 4)
                k(f'v_mfma_f32_16x16x32_bf16 {vr(acc, 4)}, {vr(PF + 4 * s, 4)}, {vr(QF + 4 * s, 4)}, {c}')

        small = [(2, 1, 1), (3, 2, 1), (4, 2, 2), (5, 4, 1), (6, 4, 2), (7, 4, 3)]
        cur, nxt = QA, QB
        for b in range(16):
            if b < 15:
                self.cmul(nxt, cur, Z8)
            put(b, cur, neg=True)
            if b < len(small):
                e, x, y = small[b]
                self.cmul(Z[e], Z[x], Z[y])
            cur, nxt = nxt, cur
        frags(QF)
        k(f'v_mov_b32 {vr(CV)}, 0x3f80')
        k(f'ds_write_addtid_b32 {vr(CV)} offset:0')
        flip[0] = 1
        put(8, Z128)
        cur, nxt = PA, PB
        for e in range(1, 8):
            self.cmul(cur, Z[e], Z128)
            put(e, Z[e])
            put(8 + e, cur)
            cur, nxt = nxt, cur
        frags(PF)
        self.cmul(QA, Z128, Z128)
        self.cmul(QB, QA, Z128)
        mm(AC)
        put(0, QA)
        put(4, QB)
        for e in (1, 2, 3):
            self.cmul(PA, QA, Z[2 * e])
            self.cmul(PB, QB, Z[2 * e])
            put(e, PA)
            put(4 + e, PB)
        cur, nxt = QB, QA
        for a in range(4):
            self.cmul(nxt, cur, Z128)
            self.cmul(PA, nxt, Z[4])
            put(8 + 2 * a, nxt)
            put(9 + 2 * a, PA)
            cur, nxt = nxt, cur
        frags(PF)
        self.cmul(nxt, cur, Z128)
        cur, nxt = nxt, cur
        mm(AC + 4)
        for a in range(9):
            if a < 8:
                self.cmul(nxt, cur, Z128)
            put(a, cur)
            cur, nxt = nxt, cur
        frags(PF)
        k(f'''
        v_lshrrev_b32 {vr(RA + 1)}, 4, v0
        v_and_b32 {vr(RA + 2)}, 15, v0
        v_lshlrev_b32 {vr(RA + 2)}, 2, {vr(RA + 2)}
        v_lshl_add_u32 {vr(RA + 1)}, {vr(RA + 1)}, 8, {vr(RA + 2)}
        v_add_u32 {vr(RA + 1)}, s55, {vr(RA + 1)}
        ''')
        mm(AC + 8)
        for Tt in range(3):
            for i in range(4):
                k(f'ds_write_b32 {vr(RA + 1)}, {vr(AC + 4 * Tt + i)} offset:{(16 * Tt + i) * 64}', tag='kcw')
        k(f'{Lskip}:')

    def kexpand(self):
        k = self.k
        GA = 28
        k(f'''
        s_lshl_b32 s55, {sr(sW)}, 1
        s_lshr_b32 s56, 0xffa4, s55
        s_and_b32 s56, s56, 3
        s_lshl_b32 s57, s56, 3
        s_lshl_b32 s55, {sr(sW)}, 8
        v_lshl_add_u32 v32, v0, 2, s55
        ''')
        for j in range(4):
            k(f'''
            v_add_u32 v33, {j}, v32
            v_cvt_f32_u32 v33, v33
            v_cvt_pk_bf16_f32 v33, v33, v33
            v_lshlrev_b32 v33, 16, v33
            v_cvt_u32_f32 v33, v33
            v_lshrrev_b32 v34, 7, v33
            v_and_b32 v35, 7, v33
            v_lshl_add_u32 v34, v34, 3, v35
            v_lshrrev_b32 v34, s56, v34
            v_add_u32 v34, s57, v34
            v_bfe_u32 v33, v33, 3, 4
            v_lshl_add_u32 v33, v34, 4, v33
            v_lshlrev_b32 {vr(GA + j)}, 2, v33
            ''')
        k(f'''
        v_lshlrev_b32 v25, 16, v25
        v_lshlrev_b32 v80, 1, v32
        v_lshlrev_b32 v81, 2, v32
        v_cmp_eq_u32 s[60:61], 0, v32
        v_readlane_b32 s62, v25, 0
        v_readlane_b32 s63, v25, 1
        v_readlane_b32 s64, v25, 2
        ''')
        k.wait('kcw')
        k('s_barrier')
        V = lambda ch, j: 36 + 8 * ch + j
        for ch in range(3):
            for j in range(4):
                k(f'ds_read_b32 {vr(V(ch, j))}, {vr(GA + j)} offset:{KG + (2 * ch) * KGS}')
                k(f'ds_read_b32 {vr(V(ch, 4 + j))}, {vr(GA + j)} offset:{KG + (2 * ch + 1) * KGS}')
        SC = 60
        for ch in range(3):
            k(f'v_mov_b32 v33, s{62 + ch}')
            k(f'v_cndmask_b32 v33, 0, v33, s[60:61]')
            for j in range(4):
                k(f'v_add_f32 {vr(V(ch, j))}, {vr(V(ch, j))}, {vr(V(ch, 4 + j))}')
            k(f'''
            v_add_f32 {vr(V(ch, 0))}, {vr(V(ch, 0))}, v33
            v_cvt_pk_bf16_f32 {vr(V(ch, 4))}, {vr(V(ch, 0))}, {vr(V(ch, 1))}
            v_cvt_pk_bf16_f32 {vr(V(ch, 5))}, {vr(V(ch, 2))}, {vr(V(ch, 3))}
            v_add_f32 {vr(V(ch, 1))}, {vr(V(ch, 1))}, {vr(V(ch, 0))}
            ''')
            k(f'ds_write_b64 v80, {vr(V(ch, 4), 2)} offset:{KA + ch * KAS + 32}', tag='kaw')
            k(f'''
            v_add_f32 {vr(V(ch, 2))}, {vr(V(ch, 2))}, {vr(V(ch, 1))}
            v_add_f32 {vr(V(ch, 3))}, {vr(V(ch, 3))}, {vr(V(ch, 2))}
            v_mov_b32 {vr(SC + ch)}, {vr(V(ch, 3))}
            ''')
        for n in (1, 2, 4, 8):
            for ch in range(3):
                k(f'v_add_f32_dpp {vr(SC + ch)}, {vr(SC + ch)}, {vr(SC + ch)} row_shr:{n} row_mask:0xf bank_mask:0xf bound_ctrl:0')
        for ch in range(3):
            k(f'v_add_f32_dpp {vr(SC + ch)}, {vr(SC + ch)}, {vr(SC + ch)} row_bcast:15 row_mask:0xa bank_mask:0xf')
        for ch in range(3):
            k(f'v_add_f32_dpp {vr(SC + ch)}, {vr(SC + ch)}, {vr(SC + ch)} row_bcast:31 row_mask:0xc bank_mask:0xf')
        k(f'''
        s_lshl_b32 s55, {sr(sW)}, 2
        v_mov_b32 v33, s55
        s_mov_b32 exec_lo, 0
        s_brev_b32 exec_hi, 1
        ''')
        for ch in range(3):
            k(f'ds_write_b32 v33, {vr(SC + ch)} offset:{WT + 32 * ch}', tag='kaw')
        k('s_mov_b64 exec, -1')
        for ch in range(3):
            k(f'v_sub_f32 {vr(SC + ch)}, {vr(SC + ch)}, {vr(V(ch, 3))}')
        k.wait('kaw')
        k('s_barrier')
        k(f'''
        v_min_u32 v33, 23, v0
        v_lshlrev_b32 v33, 2, v33
        ds_read_b32 v34, v33 offset:{WT}
        v_mov_b32 v64, 0
        v_mov_b32 v65, 0
        v_mov_b32 v66, 0
        v_mov_b32 v67, 0
        v_lshlrev_b32 v35, 4, v0
        v_and_b32 v33, 7, v0
        v_cmp_gt_u32 vcc, {sr(sW)}, v33
        ''')
        L = self.only_wave(7)
        k(f's_mov_b32 exec_lo, -1\ns_mov_b32 exec_hi, 0x3ff')
        k(f'ds_write_b128 v35, v[64:67] offset:{XNL0 - 672}', tag='saw')
        k(f's_mov_b64 exec, 3')
        for ch in range(3):
            k(f'ds_write_b128 v35, v[64:67] offset:{KA + ch * KAS}', tag='saw')
        k(f's_mov_b64 exec, -1')
        k(f'{L}:')
        k('v_cndmask_b32 v34, 0, v34, vcc')
        for n in (1, 2, 4):
            k(f'v_add_f32_dpp v34, v34, v34 row_shr:{n} row_mask:0xf bank_mask:0xf bound_ctrl:0')
        k(f'''
        v_readlane_b32 s62, v34, 7
        v_readlane_b32 s63, v34, 15
        v_readlane_b32 s64, v34, 23
        ''')
        for ch in range(3):
            k(f'v_add_f32 {vr(SC + ch)}, s{62 + ch}, {vr(SC + ch)}')
            for j in range(4):
                k(f'v_add_f32 {vr(V(ch, j))}, {vr(V(ch, j))}, {vr(SC + ch)}')
            k(f'ds_write_b128 v81, {vr(V(ch, 0), 4)} offset:{SA + ch * SAS}', tag='saw')

    def conv_loads(self):
        k = self.k
        for i in range(3):
            k(f'''
            s_mul_i32 s55, {sr(sW)}, 3
            s_add_u32 s55, s55, {i}
            s_cmp_ge_u32 s55, 12
            s_cselect_b32 s56, 12, 0
            s_mov_b32 s{57 + i}, {XN}
            s_cmov_b32 s{57 + i}, {XT}
            s_mov_b32 s{60 + i}, {XNL0}
            s_cmov_b32 s{60 + i}, {XTL}
            s_sub_u32 s55, s55, s56
            s_lshl_b32 s56, s55, 10
            s_add_u32 s{60 + i}, s{60 + i}, s56
            s_lshl_b32 s55, s55, 6
            v_add_u32 v32, s55, v0
            v_mul_u32_u24 v33, 0x5556, v32
            v_lshrrev_b32 v33, 16, v33
            v_mul_u32_u24 v34, 3, v33
            v_sub_u32 v32, v32, v34
            v_add_u32 v32, {sr(sD0)}, v32
            v_mul_u32_u24 v33, 10240, v33
            v_lshl_add_u32 {vr(28 + i)}, v32, 4, v33
            ''')
        k(f'''
        v_min_u32 v32, 11, v0
        v_mul_u32_u24 v33, 0x5556, v32
        v_lshrrev_b32 v33, 16, v33
        v_mul_u32_u24 v34, 3, v33
        v_sub_u32 v32, v32, v34
        v_cmp_eq_u32 vcc, 3, v33
        v_addc_co_u32 v33, vcc, 0, v33, vcc
        v_mul_u32_u24 v33, 640, v33
        v_add3_u32 v32, v32, v33, {sr(sD0)}
        v_lshlrev_b32 v32, 2, v32
        v_add_u32 v31, {MOD}, v32
        ''')
        L = self.only_wave(0)
        self.poll_addr(SYNC1, 16, 32)
        self.poll(32, 33, 16)
        k(f'{L}:')
        k.wait('saw')
        k('s_barrier')
        self.stamp(3)
        for i in range(3):
            k(f's_mov_b32 m0, s{60 + i}')
            k(f'buffer_load_dwordx4 {vr(28 + i)}, {P4(rWS)}, s{57 + i} offen sc1 lds', tag='xnl')
        k(f'global_load_dword v17, v31, {P2(pWS)} sc1')

    def conv_consts(self):
        k = self.k
        self.poll(31, 17, 1, preissued=True)
        k(f'''
        v_and_b32 v17, 0xffff0000, v17
        v_add_f32 v16, 1.0, v17
        v_cvt_pk_bf16_f32 v16, v16, v16
        v_lshlrev_b32 v16, 16, v16
        v_mov_b32_dpp v18, v17 row_shr:6 row_mask:0xf bank_mask:0xf bound_ctrl:0
        v_mov_b32_dpp v19, v16 row_shr:3 row_mask:0xf bank_mask:0xf bound_ctrl:0
        v_mul_f32 v18, v18, v17
        v_mul_f32 v19, v19, v17
        ''')
        for ch in range(3):
            k(f'v_readlane_b32 {sr(sCH + 3 * ch)}, v19, {6 + ch}')
            k(f'v_readlane_b32 {sr(sCH + 3 * ch + 1)}, v18, {6 + ch}')
            k(f'v_readlane_b32 {sr(sCH + 3 * ch + 2)}, v16, {9 + ch}')

    def conv(self):
        k = self.k
        H, KF, ACC, AX = 32, 64, 176, 208
        vHB, vKB, vH, vK, vXB, vSB, vO = 1, 2, 3, 4, 5, 6, 7
        XV, SV, TT = 212, 216, 224
        sL, sG, sC, sN, sPEND = 65, 66, 67, 68, 69
        k(f'''
        v_lshrrev_b32 v8, 4, v0
        v_bfe_u32 v9, v0, 2, 2
        v_and_b32 v10, 3, v0
        v_lshlrev_b32 v11, 1, v10
        v_lshl_add_u32 v11, v8, 2, v11
        v_lshrrev_b32 v12, 1, v9
        v_add_u32 v11, v11, v12
        v_mul_u32_u24 v11, 48, v11
        v_and_b32 v12, 1, v9
        v_lshl_add_u32 v11, v12, 3, v11
        v_add_u32 {vr(vHB)}, {XNL0 - 14 * 48}, v11
        v_sub_u32 v11, v10, v9
        v_lshlrev_b32 v12, 3, v8
        v_sub_u32 v11, v11, v12
        v_lshlrev_b32 v11, 3, v11
        v_add_u32 {vr(vKB)}, {KA + 32 + 2 * (112 - 16)}, v11
        v_lshlrev_b32 v11, 3, v9
        v_lshl_add_u32 v11, v8, 1, v11
        v_lshrrev_b32 v12, 1, v10
        v_add_u32 v11, v11, v12
        v_mul_u32_u24 v11, 48, v11
        v_and_b32 v12, 1, v10
        v_lshl_add_u32 v11, v12, 3, v11
        v_add_u32 {vr(vXB)}, {XTL}, v11
        ''')
        U = lambda G, ch: 4 * ch + G + 1
        lists = [[U(3, 0)], [U(3, 1)], [U(3, 2)], [U(0, 2), U(2, 2)], [U(2, 0)], [U(2, 1)],
                 [U(0, 0), U(0, 1), U(1, 0)], [U(1, 1), U(1, 2)]]
        enc = [sum(u << (4 * i) for i, u in enumerate(l)) for l in lists]
        for w in range(8):
            k(f's_cmp_eq_u32 {sr(sW)}, {w}\ns_cmov_b32 {sr(sL)}, {enc[w]}' if w else f's_mov_b32 {sr(sL)}, {enc[0]}')
        k(f's_mov_b32 {sr(sPEND)}, 0\ns_mov_b32 {sr(sFLAG)}, 0')
        if self.o.get('prio', True):
            L = k.label('np')
            k(f's_and_b32 s55, {sr(sL)}, 3\ns_cmp_lg_u32 s55, 1\ns_cbranch_scc1 {L}\ns_setprio 2\n{L}:')
        k.wait('xnl')
        k('s_barrier')
        self.stamp(4)
        Lu, Lloop, Ltail, Ldone = k.label('unit'), k.label('cl'), k.label('ct'), k.label('cdone')
        k(f'''
        {Lu}:
        s_and_b32 s55, {sr(sL)}, 15
        s_sub_u32 s55, s55, 1
        s_and_b32 {sr(sG)}, s55, 3
        s_lshr_b32 {sr(sC)}, s55, 2
        s_lshr_b32 {sr(sL)}, {sr(sL)}, 4
        s_mul_i32 s55, {sr(sG)}, 3072
        s_lshl_b32 s56, {sr(sC)}, 4
        s_add_u32 s55, s55, s56
        v_add_u32 {vr(vH)}, s55, {vr(vHB)}
        v_add_u32 v8, s55, {vr(vXB)}
        s_mul_i32 s56, {sr(sC)}, {KAS}
        v_add_u32 {vr(vK)}, s56, {vr(vKB)}
        ''')
        hs = lambda m: H + 4 * (m % 8)
        ks = lambda q: KF + 4 * (q % 4)

        def ldh(slot_m, base, off):
            k(f'ds_read_b64_tr_b16 {vr(hs(slot_m), 2)}, {vr(base)} offset:{off}')
            k(f'ds_read_b64_tr_b16 {vr(hs(slot_m) + 2, 2)}, {vr(base)} offset:{off + 96}')

        def ldk(q, off):
            k(f'ds_read_b64_tr_b16 {vr(ks(q), 2)}, {vr(vK)} offset:{off + 32}')
            k(f'ds_read_b64_tr_b16 {vr(ks(q) + 2, 2)}, {vr(vK)} offset:{off}')

        def mf(acc, m, q, zero=False):
            c = '0' if zero else vr(acc, 4)
            k(f'v_mfma_f32_16x16x32_bf16 {vr(acc, 4)}, {vr(hs(m), 4)}, {vr(ks(q), 4)}, {c}')

        ldk(0, 0)
        for i in (7, 6, 5, 4, 3, 2, 1, 0):
            ldh(i, vH, 384 * i)
        ldk(1, 256)
        k(f'''
        v_subrev_u32 v11, 768, {vr(vH)}
        v_subrev_u32 {vr(vH)}, 3840, {vr(vH)}
        s_lshl_b32 s55, {sr(sC)}, 13
        s_lshl_b32 s56, {sr(sG)}, 11
        s_add_u32 s55, s55, s56
        s_add_u32 s55, s55, {SA}
        v_lshl_add_u32 {vr(vSB)}, v0, 2, s55
        v_mov_b32 {vr(AX)}, 0
        v_mov_b32 {vr(AX + 1)}, 0
        v_mov_b32 {vr(AX + 2)}, 0
        v_mov_b32 {vr(AX + 3)}, 0
        s_mov_b32 {sr(sN)}, {sr(sG)}
        ''')
        mf(ACC + 28, 7, 0, True)
        mf(ACC + 24, 6, 0, True)
        ldh(6, 11, 0)
        ldh(7, 11, 384)
        for i in (5, 4, 3, 2, 1, 0):
            mf(ACC + 4 * i, i, 0, True)
        k(f's_cmp_eq_u32 {sr(sN)}, 0\ns_cbranch_scc1 {Ltail}')
        k(f'{Lloop}:')
        for u in range(1, 5):
            mf(ACC + 28, 7 - 2 * u, u)
            mf(ACC + 24, 6 - 2 * u, u)
            ldh(6 - 2 * u, vH, 384 * (8 - 2 * u))
            ldh(7 - 2 * u, vH, 384 * (9 - 2 * u))
            ldk(u + 1, 256 * (u + 1))
            for i in (5, 4, 3, 2, 1, 0):
                mf(ACC + 4 * i, i - 2 * u, u)
            mf(AX, 1 - 2 * u, u - 1)
        Lnp = k.label('nopend')
        k(f'''
        v_subrev_u32 {vr(vH)}, 3072, {vr(vH)}
        v_add_u32 {vr(vK)}, 1024, {vr(vK)}
        s_cmp_eq_u32 {sr(sPEND)}, 0
        s_cbranch_scc1 {Lnp}
        s_mov_b32 {sr(sPEND)}, 0
        s_waitcnt vmcnt(0)
        s_lshl_b32 s55, {sr(sI)}, 1
        s_and_b32 s56, {sr(sW)}, 1
        s_add_u32 s55, s55, s56
        s_and_b32 s55, s55, 15
        ''')
        self.arrive(SYNC2A, 16, 's55', 9)
        self.stamp(5)
        k(f'''
        {Lnp}:
        s_sub_u32 {sr(sN)}, {sr(sN)}, 1
        s_cmp_lg_u32 {sr(sN)}, 0
        s_cbranch_scc1 {Lloop}
        {Ltail}:
        ''')
        ldk(2, 512)
        for i in (7, 6, 5, 4, 3, 2):
            mf(ACC + 4 * i, i - 2, 1)
        ldk(3, 768)
        k(f'ds_read_b64_tr_b16 {vr(XV, 2)}, v8')
        k(f'ds_read_b64_tr_b16 {vr(XV + 2, 2)}, v8 offset:1536')
        for i in range(4):
            k(f'ds_read2st64_b32 {vr(SV + 2 * i, 2)}, {vr(vSB)} offset0:{2 * i} offset1:{2 * i + 1}')
        for i in (7, 6, 5, 4):
            mf(ACC + 4 * i, i - 4, 2)
        for i in (7, 6):
            mf(ACC + 4 * i, i - 6, 3)
        Lc = k.label('hc')
        k(f's_cmp_lg_u32 {sr(sFLAG)}, 0\ns_cbranch_scc1 {Lc}')
        self.conv_consts()
        k(f'{Lc}:')
        k(f'''
        s_mov_b32 {sr(sFLAG)}, 1
        s_cmp_eq_u32 {sr(sC)}, 1
        s_cselect_b32 s55, {sr(sCH + 3)}, {sr(sCH)}
        s_cselect_b32 s56, {sr(sCH + 4)}, {sr(sCH + 1)}
        s_cselect_b32 s57, {sr(sCH + 5)}, {sr(sCH + 2)}
        s_cmp_eq_u32 {sr(sC)}, 2
        s_cselect_b32 s55, {sr(sCH + 6)}, s55
        s_cselect_b32 s56, {sr(sCH + 7)}, s56
        s_cselect_b32 s57, {sr(sCH + 8)}, s57
        s_add_u32 s58, {sr(sD0)}, {sr(sC)}
        s_lshl_b32 s58, s58, 12
        s_lshl_b32 s59, {sr(sG)}, 10
        s_add_u32 s58, s58, s59
        s_add_u32 s59, s58, {X1S}
        s_add_u32 s58, s58, {X1T}
        v_lshlrev_b32 {vr(vO)}, 4, v0
        ''')
        SH = 'wave_shr:1 row_mask:0xf bank_mask:0xf'
        RO = 'wave_ror:1 row_mask:0xf bank_mask:0xf'
        a = lambda i, e: (AX if i < 0 else ACC + 4 * i) + e
        t2 = lambda i: TT + 1 + i
        t1 = lambda i: TT + 11 + i
        k(f'v_add_f32_dpp {vr(t2(-1))}, {vr(a(-1, 3))}, {vr(a(-1, 2))} {SH} bound_ctrl:0')
        for i in range(8):
            k(f'v_add_f32_dpp {vr(t2(i))}, {vr(a(i - 1, 3))}, {vr(a(i, 2))} {RO}')
        for i in range(8):
            k(f'v_add_f32_dpp {vr(t2(i))}, {vr(a(i, 3))}, {vr(a(i, 2))} {SH}')
        k(f'v_add_f32_dpp {vr(t1(-1))}, {vr(t2(-1))}, {vr(a(-1, 1))} {SH} bound_ctrl:0')
        for i in range(8):
            k(f'v_add_f32_dpp {vr(t1(i))}, {vr(t2(i - 1))}, {vr(a(i, 1))} {RO}')
        for i in range(8):
            k(f'v_add_f32_dpp {vr(t1(i))}, {vr(t2(i))}, {vr(a(i, 1))} {SH}')
        for i in range(8):
            k(f'v_add_f32_dpp {vr(a(i, 3))}, {vr(t1(i - 1))}, {vr(a(i, 0))} {RO}')
        for i in range(8):
            k(f'v_add_f32_dpp {vr(a(i, 3))}, {vr(t1(i))}, {vr(a(i, 0))} {SH}')
        for i in range(8):
            xr = XV + i // 2
            if i % 2 == 0:
                k(f'v_lshlrev_b32 {vr(t2(i))}, 16, {vr(xr)}')
            else:
                k(f'v_and_b32 {vr(t2(i))}, 0xffff0000, {vr(xr)}')
            k(f'v_fmac_f32 {vr(t2(i))}, s56, {vr(SV + i)}')
        for i in range(8):
            k(f'v_fmac_f32 {vr(t2(i))}, s55, {vr(a(i, 3))}')
        for i in range(4):
            k(f'v_cvt_pk_bf16_f32 {vr(XV + i)}, {vr(t2(2 * i))}, {vr(t2(2 * i + 1))}')
        for i in range(8):
            k(f'v_mul_f32 {vr(t2(i))}, s57, {vr(t2(i))}')
        k(f'buffer_store_dwordx4 {vr(XV, 4)}, {vr(vO)}, {P4(rWS)}, s58 offen sc1', tag='x1st')
        for i in range(4):
            k(f'v_cvt_pk_bf16_f32 {vr(SV + i)}, {vr(t2(2 * i))}, {vr(t2(2 * i + 1))}')
        k(f'buffer_store_dwordx4 {vr(SV, 4)}, {vr(vO)}, {P4(rWS)}, s59 offen sc1', tag='x1st')
        Ln = k.label('ng0')
        k(f'''
        s_cmp_lg_u32 {sr(sG)}, 0
        s_cbranch_scc1 {Ln}
        s_mov_b32 {sr(sPEND)}, 1
        s_and_b32 s55, {sr(sL)}, 3
        s_cmp_eq_u32 s55, 1
        s_cbranch_scc1 {Ln}
        s_setprio 0
        {Ln}:
        s_and_b32 s55, {sr(sL)}, 15
        s_cmp_lg_u32 s55, 0
        s_cbranch_scc1 {Lu}
        ''')
        self.stamp(6)

    def window2(self):
        k = self.k
        k(f'''
        s_lshl_b32 s55, {sr(sW)}, 6
        v_add_u32 v8, s55, v0
        v_min_u32 v8, 319, v8
        v_lshlrev_b32 v9, 3, v8
        v_add_u32 v9, {MOD + 3 * 2560}, v9
        ''')
        Lr, Lc, Ld = k.label('tb'), k.label('tbc'), k.label('tbd')
        k(f'''
        global_load_dwordx2 v[10:11], v9, {P2(pWS)} sc1
        global_load_dwordx2 v[12:13], v9, {P2(pWS)} offset:2560 sc1
        ''')
        k.wait('wst')
        k('s_barrier')
        self.wstage_read(1, 14)
        k(f'''
        s_branch {Lc}
        {Lr}:
        global_load_dwordx2 v[10:11], v9, {P2(pWS)} sc1
        global_load_dwordx2 v[12:13], v9, {P2(pWS)} offset:2560 sc1
        {Lc}:
        v_min_u32 v16, v10, v11
        v_min3_u32 v16, v16, v12, v13
        v_cmp_eq_u32 vcc, 0, v16
        s_cbranch_vccz {Ld}
        s_add_u32 {sr(sSPIN)}, {sr(sSPIN)}, 1
        s_cmp_lt_u32 {sr(sSPIN)}, {SPIN_MAX}
        s_cbranch_scc1 {Lr}
        {Ld}:
        v_and_b32 v12, 0xffff0000, v12
        v_and_b32 v13, 0xffff0000, v13
        v_add_f32 v12, 1.0, v12
        v_add_f32 v13, 1.0, v13
        s_mov_b32 s55, 0x07060302
        v_cvt_pk_bf16_f32 v12, v12, v13
        v_perm_b32 v10, v11, v10, s55
        v_lshlrev_b32 v8, 2, v8
        ''')
        k(f'ds_write_b32 v8, v12 offset:{TAB}', tag='tabw')
        k(f'ds_write_b32 v8, v10 offset:{TAB + 1280}', tag='tabw')
        k.wait('x1st', 'tabw', 'wrd')
        k('s_barrier')
        L = self.only_wave(0)
        k(f'''
        s_mul_i32 s55, {sr(sNB)}, 0x5556
        s_lshr_b32 s55, s55, 16
        s_mul_i32 s55, s55, 3
        s_sub_u32 s55, {sr(sNB)}, s55
        s_lshl_b32 s55, s55, 3
        s_add_u32 s55, s55, {sr(sMB)}
        ''')
        self.arrive(SYNC2B, 24, 's55', 16)
        k(f'{L}:')
        self.stamp(7)

    def csbs(self):
        k = self.k
        AC, TF, CB = 32, 16, 92
        k(f'''
        v_and_b32 v8, 1, v0
        v_mul_u32_u24 v8, 1280, v8
        v_lshrrev_b32 v9, 5, v0
        v_lshl_add_u32 v8, v9, 4, v8
        ''')
        L1, L2 = k.label('cs1'), k.label('cs2')
        k(f's_cmp_ge_u32 {sr(sW)}, 4\ns_cbranch_scc1 {L1}')
        for half in range(2):
            if half:
                k(f'{L1}:')
            for s in range(4):
                k(f'ds_read_b128 {vr(TF + 4 * s, 4)}, v8 offset:{TAB + 32 * (20 * half + s)}')
            for s in range(20):
                c = '0' if s == 0 else vr(AC, 16)
                k(f'v_mfma_f32_32x32x16_bf16 {vr(AC, 16)}, {vr(TF + 4 * (s % 4), 4)}, {vr(WF + 4 * (20 * half + s), 4)}, {c}')
                if s + 4 < 20:
                    k(f'ds_read_b128 {vr(TF + 4 * (s % 4), 4)}, v8 offset:{TAB + 32 * (20 * half + s + 4)}')
            if not half:
                k(f's_branch {L2}')
        k(f'''
        {L2}:
        s_lshl_b32 s55, {sr(sW)}, 9
        v_lshl_add_u32 v8, v0, 3, s55
        s_xor_b32 s55, s55, 2048
        v_lshl_add_u32 v9, v0, 3, s55
        ''')
        k(f'ds_write_b64 v8, {vr(AC, 2)} offset:{EXC}', tag='excw')
        k.wait('excw')
        k('s_barrier')
        k(f'''
        ds_read_b64 v[10:11], v9 offset:{EXC}
        v_cmp_gt_u32 vcc, 32, v0
        v_mov_b32 {vr(CB + 2)}, 0
        v_mov_b32 {vr(CB + 3)}, 0
        v_add_f32 v10, v10, {vr(AC)}
        v_add_f32 v11, v11, {vr(AC + 1)}
        v_cvt_pk_bf16_f32 v12, v10, v11
        v_lshlrev_b32 v13, 16, v12
        v_and_b32 v14, 0xffff0000, v12
        v_sub_f32 v10, v10, v13
        v_sub_f32 v11, v11, v14
        v_cvt_pk_bf16_f32 v10, v13, v10
        v_cvt_pk_bf16_f32 v11, v14, v11
        v_cndmask_b32 {vr(CB)}, 0, v10, vcc
        v_cndmask_b32 {vr(CB + 1)}, 0, v11, vcc
        ''')

    def g1_dma(self, c):
        k = self.k
        slot = (c + 4) % NS
        t, cc = divmod(c, 5)
        for i in range(2):
            k(f's_add_u32 m0, s67, {RING + slot * 16384 + i * 1024}')
            k(f's_add_u32 s3, s66, {t * 1024 + (cc * 128 + 8 * i) * 4096}')
            k(f'buffer_load_dwordx4 v1, {P4(rWS)}, s3 offen sc1 lds', tag=f'ch{c}')

    def g2_dma(self, j):
        k = self.k
        L = k.label('g2d')
        for i in range(4):
            if i == 3:
                k(f's_cmp_ge_u32 {sr(sW)}, 6\ns_cbranch_scc1 {L}')
            k(f's_add_u32 m0, s64, {(j % 5) * G2S + i * 8192}')
            k(f's_add_u32 s3, s63, {j * G2S + i * 8192}')
            k(f'buffer_load_dwordx4 v4, {P4(rWS)}, s3 offen sc1 lds', tag=f'wd{j}')
        k(f'{L}:')

    def g2_setup(self):
        k = self.k
        k(f'''
        s_lshr_b32 s55, s2, 3
        s_and_b32 s61, s55, 7
        s_lshr_b32 s55, s55, 3
        s_lshl_b32 s55, s55, 3
        s_add_u32 s62, s55, {sr(sMB)}
        s_lshl_b32 s64, {sr(sW)}, 10
        s_mul_i32 s63, s61, {54 * 5120}
        s_add_u32 s63, s63, {WD}
        s_add_u32 s63, s63, s64
        v_lshlrev_b32 v4, 4, v0
        ''')

    def g1(self):
        k = self.k
        TF, CB = 16, 92
        ACC = [32, 48, 64]
        vRA, vRB, vST, vSTA, vPA, vPD = 2, 3, 5, 6, 7, 8
        K1, K2, S2 = 9, 10, 11
        BF = 12
        ET = 80
        OUTR = 88
        k(f'''
        v_lshrrev_b32 v8, 3, v0
        v_lshlrev_b32 v1, 12, v8
        v_bfe_u32 v8, v0, 4, 1
        v_lshlrev_b32 v8, 2, v8
        v_and_b32 v9, 7, v0
        v_xor_b32 v8, v8, v9
        v_lshl_add_u32 v1, v8, 4, v1
        s_lshl_b32 s66, {sr(sW)}, 16
        s_lshl_b32 s55, {sr(sMB)}, 7
        s_add_u32 s66, s66, s55
        s_add_u32 s66, s66, {X1S}
        s_lshl_b32 s67, {sr(sW)}, 11
        ''')
        self.g2_setup()
        L = self.only_wave(0)
        self.poll_addr(SYNC2A, 16, vPA)
        self.poll(vPA, vPD, 27)
        k(f'{L}:')
        k('s_barrier')
        self.stamp(8)
        for c in range(5):
            self.g1_dma(c)
        self.csbs()
        self.stamp(9)
        k(f'''
        v_lshrrev_b32 v8, 5, v0
        v_bfe_u32 v9, v0, 2, 2
        v_lshl_add_u32 v8, v8, 3, v9
        v_lshlrev_b32 {vr(vRA)}, 7, v8
        v_lshrrev_b32 v9, 1, v9
        s_lshr_b32 s55, {sr(sW)}, 2
        v_xor_b32 v9, s55, v9
        v_lshl_add_u32 {vr(vRA)}, v9, 6, {vr(vRA)}
        v_bfe_u32 v9, v0, 4, 1
        v_lshl_add_u32 {vr(vRA)}, v9, 5, {vr(vRA)}
        v_and_b32 v9, 3, v0
        v_lshl_add_u32 {vr(vRA)}, v9, 3, {vr(vRA)}
        v_add_u32 {vr(vRA)}, {RING}, {vr(vRA)}
        v_add_u32 {vr(vRB)}, {3 * 16384}, {vr(vRA)}
        s_lshl_b32 s56, {sr(sMB)}, 6
        s_lshl_b32 s57, s55, 5
        s_add_u32 s56, s56, s57
        v_and_b32 v9, 31, v0
        v_add_u32 v9, s56, v9
        v_lshlrev_b32 v9, 2, v9
        v_add_u32 {vr(vSTA)}, {STATS}, v9
        s_lshl_b32 s56, {sr(sMB)}, 1
        s_add_u32 s56, s56, s55
        s_mul_i32 s56, s56, 108
        s_lshl_b32 s57, {sr(sNB)}, 2
        s_add_u32 s56, s56, s57
        s_and_b32 s57, {sr(sW)}, 3
        s_add_u32 s56, s56, s57
        s_lshl_b32 s56, s56, 10
        s_add_u32 s65, s56, {ACT}
        v_mov_b32 {vr(BF + 2)}, 0
        v_mov_b32 {vr(BF + 3)}, 0
        ''')
        self.poll_addr(SYNC2B, 24, vPA)

        def rd(sig):
            c, s8 = divmod(sig, 8)
            slot = (c + 4) % NS
            base, off = (vRA, slot * 16384) if slot < 3 else (vRB, (slot - 3) * 16384)
            off += s8 * 2048
            r = TF + 4 * (sig % 4)
            k(f'ds_read_b64_tr_b16 {vr(r, 2)}, {vr(base)} offset:{off}')
            k(f'ds_read_b64_tr_b16 {vr(r + 2, 2)}, {vr(base)} offset:{off + 512}')

        C1 = -2 * LOG2E * math.sqrt(2 / math.pi) * 0.044715
        C2 = -2 * LOG2E * math.sqrt(2 / math.pi)

        def epi_ops(t):
            acc = ACC[t % 3]
            ops = []

            def head():
                Lr, Lc, Ld = k.label('sr'), k.label('sc'), k.label('sd')
                k(f'''
                s_branch {Lc}
                {Lr}:
                global_load_dword {vr(vST)}, {vr(vSTA)}, {P2(pWS)} offset:{2048 * (t & 1)} sc1
                {Lc}:
                v_cmp_gt_u32 vcc, 0x10000, {vr(vST)}
                s_cbranch_vccz {Ld}
                s_add_u32 {sr(sSPIN)}, {sr(sSPIN)}, 1
                s_cmp_lt_u32 {sr(sSPIN)}, {SPIN_MAX}
                s_cbranch_scc1 {Lr}
                {Ld}:
                s_mov_b32 s55, 0x01000100
                s_mov_b32 s56, 0x03020302
                v_perm_b32 {vr(BF)}, {vr(vST)}, {vr(vST)}, s55
                v_perm_b32 {vr(BF + 1)}, {vr(vST)}, {vr(vST)}, s56
                v_xor_b32 {vr(BF)}, 0x80008000, {vr(BF)}
                v_and_b32 {vr(S2)}, 0xffff0000, {vr(vST)}
                v_rcp_f32 {vr(K2)}, {vr(S2)}
                v_mfma_f32_32x32x16_bf16 {vr(acc, 16)}, {vr(CB, 4)}, {vr(BF, 4)}, {vr(acc, 16)}
                ''')
            ops.append(head)
            ops.append(lambda: k(f'''
                v_mul_f32 {vr(S2)}, {vr(S2)}, {vr(S2)}
                v_mul_f32 {vr(K1)}, {vr(K2)}, {vr(K2)}
                v_mul_f32 {vr(K2)}, {f32(C2)}, {vr(K2)}
                '''))
            ops.append(lambda: k(f'''
                v_mul_f32 {vr(K1)}, {f32(0.044715)}, {vr(K1)}
                v_mul_f32 {vr(K1)}, {vr(K1)}, {vr(K2)}
                '''))
            ops.append(lambda: None)
            for p in range(4):
                i0, i1 = 2 * p, 2 * p + 1
                g0, g1_, u0, u1 = acc + i0, acc + i1, acc + 8 + i0, acc + 8 + i1
                t0, t1 = ET + 2 * (p % 2), ET + 2 * (p % 2) + 1
                ops.append(lambda g0=g0, g1_=g1_, t0=t0, t1=t1: k(f'''
                    v_mul_f32 {vr(t0)}, {vr(g0)}, {vr(g0)}
                    v_mul_f32 {vr(t1)}, {vr(g1_)}, {vr(g1_)}
                    v_fma_f32 {vr(t0)}, {vr(t0)}, {vr(K1)}, {vr(K2)}
                    '''))
                ops.append(lambda g0=g0, g1_=g1_, t0=t0, t1=t1: k(f'''
                    v_fma_f32 {vr(t1)}, {vr(t1)}, {vr(K1)}, {vr(K2)}
                    v_mul_f32 {vr(t0)}, {vr(t0)}, {vr(g0)}
                    v_mul_f32 {vr(t1)}, {vr(t1)}, {vr(g1_)}
                    '''))
                ops.append(lambda g0=g0, u0=u0, t0=t0, t1=t1: k(f'''
                    v_exp_f32 {vr(t0)}, {vr(t0)}
                    v_exp_f32 {vr(t1)}, {vr(t1)}
                    '''))
                ops.append(lambda g0=g0, g1_=g1_, u0=u0, u1=u1, t0=t0, t1=t1: k(f'''
                    v_mul_f32 {vr(u0)}, {vr(u0)}, {vr(g0)}
                    v_fma_f32 {vr(t0)}, {vr(t0)}, {vr(S2)}, {vr(S2)}
                    v_fma_f32 {vr(t1)}, {vr(t1)}, {vr(S2)}, {vr(S2)}
                    '''))
                ops.append(lambda t0=t0, t1=t1: k(f'''
                    v_rcp_f32 {vr(t0)}, {vr(t0)}
                    v_rcp_f32 {vr(t1)}, {vr(t1)}
                    '''))
                ops.append(lambda g1_=g1_, u0=u0, u1=u1, t0=t0, t1=t1, p=p: k(f'''
                    v_mul_f32 {vr(u1)}, {vr(u1)}, {vr(g1_)}
                    v_mul_f32 {vr(u0)}, {vr(u0)}, {vr(t0)}
                    v_mul_f32 {vr(u1)}, {vr(u1)}, {vr(t1)}
                    v_cvt_pk_bf16_f32 {vr(OUTR + p)}, {vr(u0)}, {vr(u1)}
                    '''))

            def fin():
                k(f's_add_u32 s3, s65, {t * 16 * 108 * 1024}')
                k(f'buffer_store_dwordx4 {vr(OUTR, 4)}, v4, {P4(rWS)}, s3 offen sc1', tag=f'act{t}')
            ops.append(fin)
            return ops

        def publish(t):
            L = self.only_wave(0)
            k(f'''
            s_add_u32 s55, {sr(sMB)}, {8 * t}
            s_lshl_b32 s55, s55, 7
            s_add_u32 s55, s55, {SYNC3}
            v_mov_b32 {vr(ET + 4)}, s55
            v_mov_b32 {vr(ET + 5)}, 1
            s_mov_b64 exec, 1
            global_atomic_add {vr(ET + 4)}, {vr(ET + 5)}, {P2(pWS)} sc1
            s_mov_b64 exec, -1
            {L}:
            ''')

        epi_start = self.o.get('epi_start', [84, 120, 140, 160])
        epi_rate = self.o.get('epi_rate', [1, 2, 2, 1])
        stat_ld = {max(0, s - 6): t for t, s in enumerate(epi_start)}
        todo = {}
        for t in range(3):
            ops = epi_ops(t)
            sig = epi_start[t]
            while ops:
                for _ in range(epi_rate[t]):
                    if ops:
                        todo.setdefault(sig, []).append(ops.pop(0))
                sig += 1
            assert sig <= 160 and (t == 2 or sig <= epi_start[t + 1]), (t, sig)
            assert t + 3 >= 4 or sig <= 40 * (t + 3)
            todo.setdefault('done', {})[t] = sig
        done_at = todo.pop('done')
        pub_at = {}
        for t in range(3):
            s = done_at[t] + 12
            s = ((s - 3 + 7) // 8) * 8 + 3
            pub_at.setdefault(min(s, 163), []).append(t)
        B2 = self.o.get('b2_chunk', 2)
        k.wait('ch0')
        k('s_barrier')
        for sig in range(4):
            rd(sig)
        issued = 5
        for sig in range(160):
            t, s = divmod(sig, 40)
            c = sig // 8
            acc = ACC[t % 3]
            cop = '0' if s == 0 else vr(acc, 16)
            k(f'v_mfma_f32_32x32x16_bf16 {vr(acc, 16)}, {vr(WF + 4 * s, 4)}, {vr(TF + 4 * (sig % 4), 4)}, {cop}')
            if sig == 8 * B2 + 3 - 7:
                L = self.only_wave(0)
                k(f'global_load_dword {vr(vPD)}, {vr(vPA)}, {P2(pWS)} sc1')
                k(f'{L}:')
            if sig % 8 == 3:
                if c == B2:
                    L = self.only_wave(0)
                    self.poll(vPA, vPD, 9, preissued=True)
                    self.poll_addr(SYNCW, 4, vPA)
                    k(f'global_load_dword {vr(vPD)}, {vr(vPA)}, {P2(pWS)} sc1')
                    k(f'{L}:')
                if c == B2 + 1:
                    L = self.only_wave(0)
                    self.poll(vPA, vPD, 10, preissued=True)
                    k(f'{L}:')
                w = [f'ch{c + 1}'] if c + 1 < 20 else []
                w += [f'act{tt}' for tt in pub_at.get(sig, [])]
                if w:
                    k.wait(*w)
                k('s_barrier')
                for tt in pub_at.get(sig, []):
                    publish(tt)
                if c >= B2:
                    while issued < 20 and issued <= c - 1 + NS:
                        self.g1_dma(issued)
                        issued += 1
                if c == B2 + 3:
                    self.g2_dma(0)
                if c == B2 + 6:
                    self.g2_dma(1)
                if c == 16:
                    self.g2_dma(2)
                if c == 18:
                    self.g2_dma(3)
            if sig + 4 < 160:
                rd(sig + 4)
            if sig in stat_ld:
                tt = stat_ld[sig]
                if tt == 2:
                    k(f'v_add_u32 {vr(vSTA)}, 4096, {vr(vSTA)}')
                k(f'global_load_dword {vr(vST)}, {vr(vSTA)}, {P2(pWS)} offset:{2048 * (tt & 1)} sc1')
            for op in todo.get(sig, []):
                op()
            if sig % 40 == 39:
                self.stamp(10 + t)
        k('s_barrier')
        for op in epi_ops(3):
            op()
        self.g2_dma(4)
        self.resid_dma()
        k.wait('act3', *[f'act{tt}' for tt in pub_at.get(163, [])])
        k('s_barrier')
        for tt in pub_at.get(163, []) + [3]:
            publish(tt)
        self.stamp(14)

    def resid_dma(self):
        k = self.k
        k(f'''
        v_lshrrev_b32 v8, 3, v0
        v_lshlrev_b32 v8, 12, v8
        v_and_b32 v9, 7, v0
        v_lshl_add_u32 v8, v9, 4, v8
        s_mul_i32 s55, s61, 80
        s_lshl_b32 s56, {sr(sW)}, 3
        s_add_u32 s55, s55, s56
        s_lshl_b32 s55, s55, 12
        s_lshl_b32 s56, s62, 7
        s_add_u32 s55, s55, s56
        s_add_u32 s55, s55, {X1T}
        s_add_u32 m0, s64, {RESID}
        ''')
        k(f'buffer_load_dwordx4 v8, {P4(rWS)}, s55 offen sc1 lds', tag='resid')
        L = k.label('rs')
        k(f'''
        s_cmp_ge_u32 {sr(sW)}, 2
        s_cbranch_scc1 {L}
        s_add_u32 m0, s64, {RESID + 8192}
        s_add_u32 s55, s55, {64 * 4096}
        ''')
        k(f'buffer_load_dwordx4 v8, {P4(rWS)}, s55 offen sc1 lds', tag='resid')
        k(f'{L}:')

    def g2(self):
        k = self.k
        AF, WB, ACC, GB = 96, 16, 56, 76
        k('L_g2:')
        k(f'''
        s_and_b32 s55, {sr(sW)}, 3
        s_lshr_b32 s56, {sr(sW)}, 2
        v_lshrrev_b32 v8, 5, v0
        v_lshlrev_b32 v1, 10, v8
        v_bfe_u32 v8, v0, 4, 1
        v_lshl_add_u32 v1, v8, 9, v1
        v_and_b32 v8, 15, v0
        v_lshl_add_u32 v1, v8, 4, v1
        s_and_b32 s57, s55, 1
        s_lshl_b32 s57, s57, 8
        s_lshr_b32 s58, s55, 1
        s_lshl_b32 s59, s62, 1
        s_add_u32 s58, s58, s59
        s_mul_i32 s58, s58, {108 * 1024}
        s_add_u32 s57, s57, s58
        s_lshl_b32 s58, s56, 11
        s_add_u32 s57, s57, s58
        s_add_u32 s65, s57, {ACT}
        s_mul_i32 s57, s56, 5120
        v_add_u32 v2, s57, v4
        v_add_u32 v3, {2 * G2S}, v2
        v_add_u32 v5, {4 * G2S}, v2
        s_lshl_b32 s57, s62, 7
        s_add_u32 s57, s57, {SYNC3}
        v_mov_b32 v6, s57
        s_mul_i32 s57, s61, 320
        s_mul_i32 s58, s56, 192
        s_add_u32 s57, s57, s58
        s_add_u32 s57, s57, {MOD + 5 * 2560}
        v_lshrrev_b32 v8, 4, v0
        v_lshl_add_u32 v9, v8, 4, s57
        ''')
        for j in range(3):
            k(f'global_load_dwordx4 {vr(GB + 4 * j, 4)}, v9, {P2(pWS)} offset:{64 * j} sc1')
        L = self.only_wave(0)
        self.poll(6, 7, 27)
        k(f'{L}:')
        k('s_barrier')
        self.stamp(15, 210)
        for i in range(27):
            k(f's_add_u32 s3, s65, {i * 4096}')
            k(f'buffer_load_dwordx4 {vr(AF + 4 * i, 4)}, v1, {P4(rWS)}, s3 offen sc1')

        def rdw(i):
            j, ii = divmod(i, 3)
            slot = j % 5
            base, off = ((2, slot), (3, slot - 2), (5, 0))[slot // 2]
            off = off * G2S + ii * 10240
            for f in range(5):
                k(f'ds_read_b128 {vr(WB + 20 * (i % 2) + 4 * f, 4)}, v{base} offset:{off + 1024 * f}')

        k.wait('wd0')
        k('s_barrier')
        rdw(0)
        for i in range(27):
            j, ii = divmod(i, 3)
            if ii == 2 and j < 8:
                k.wait(f'wd{j + 1}')
                k('s_barrier')
                if 1 <= j <= 4:
                    self.g2_dma(j + 4)
            if i + 1 < 27:
                rdw(i + 1)
            for f in range(5):
                c = '0' if i == 0 else vr(ACC + 4 * f, 4)
                k(f'v_mfma_f32_16x16x32_bf16 {vr(ACC + 4 * f, 4)}, {vr(WB + 20 * (i % 2) + 4 * f, 4)}, {vr(AF + 4 * i, 4)}, {c}')
        self.stamp(16, 210)
        k(f'''
        s_mul_i32 s57, {sr(sW)}, 3072
        v_add_u32 v2, s57, v4
        s_xor_b32 s58, {sr(sW)}, 4
        s_mul_i32 s57, s58, 3072
        v_add_u32 v3, s57, v4
        v_lshrrev_b32 v8, 2, v0
        v_lshlrev_b32 v8, 7, v8
        v_and_b32 v9, 3, v0
        v_lshl_add_u32 v8, v9, 3, v8
        s_lshl_b32 s57, s55, 5
        s_mul_i32 s58, s56, 6144
        s_add_u32 s57, s57, s58
        s_add_u32 s57, s57, {RESID}
        v_add_u32 v8, s57, v8
        v_and_b32 v9, 15, v0
        s_lshl_b32 s57, s55, 4
        v_add_u32 v9, s57, v9
        v_and_b32 v10, 7, v9
        v_lshrrev_b32 v9, 3, v9
        v_lshl_add_u32 v9, v10, 6, v9
        s_lshr_b32 s57, s62, 3
        s_lshl_b32 s57, s57, 9
        s_lshl_b32 s58, {sr(sMB)}, 3
        s_add_u32 s57, s57, s58
        v_add_u32 v9, s57, v9
        v_mul_u32_u24 v9, 1280, v9
        v_lshrrev_b32 v10, 4, v0
        v_lshl_add_u32 v9, v10, 3, v9
        s_mul_i32 s57, s61, 160
        s_mul_i32 s58, s56, 96
        s_add_u32 s57, s57, s58
        v_add_u32 v9, s57, v9
        ''')
        L1, L2 = k.label('x1'), k.label('x2')
        k(f's_cmp_lg_u32 s56, 0\ns_cbranch_scc1 {L1}')
        for kh in range(2):
            send = (3, 4) if kh == 0 else (0, 1, 2)
            keep = (0, 1, 2) if kh == 0 else (3, 4)
            if kh:
                k(f'{L1}:')
            for n, f in enumerate(send):
                k(f'ds_write_b128 v2, {vr(ACC + 4 * f, 4)} offset:{1024 * n}', tag='xw')
            k.wait('xw', 'resid')
            k('s_barrier')
            for n, f in enumerate(keep):
                k(f'ds_read_b128 {vr(16 + 4 * n, 4)}, v3 offset:{1024 * n}')
                k(f'ds_read_b64_tr_b16 {vr(28 + 2 * n, 2)}, v8 offset:{2048 * n}')
            for n, f in enumerate(keep):
                for i in range(4):
                    a, g, x = ACC + 4 * f + i, GB + 4 * n + i, 36 + i
                    k(f'v_add_f32 {vr(a)}, {vr(a)}, {vr(16 + 4 * n + i)}')
                    k(f'v_and_b32 {vr(g)}, 0xffff0000, {vr(g)}')
                    if i % 2 == 0:
                        k(f'v_lshlrev_b32 {vr(x)}, 16, {vr(28 + 2 * n + i // 2)}')
                    else:
                        k(f'v_and_b32 {vr(x)}, 0xffff0000, {vr(28 + 2 * n + i // 2)}')
                    k(f'v_fmac_f32 {vr(x)}, {vr(a)}, {vr(g)}')
                k(f'v_cvt_pk_bf16_f32 {vr(40 + 2 * n)}, v36, v37')
                k(f'v_cvt_pk_bf16_f32 {vr(41 + 2 * n)}, v38, v39')
                k(f'global_store_dwordx2 v9, {vr(40 + 2 * n, 2)}, {P2(pOUT)} offset:{32 * n}')
            if not kh:
                k(f's_branch {L2}')
        k(f'{L2}:')
        self.stamp(17, 210)

    def strip_reduce(self, nval, V, RED):
        k = self.k
        n = nval
        for i in range(n // 2):
            k(f'v_permlane32_swap_b32 {vr(V + i)}, {vr(V + n // 2 + i)}')
        for i in range(n // 2):
            k(f'v_add_f32 {vr(V + i)}, {vr(V + i)}, {vr(V + n // 2 + i)}')
        n //= 2
        for i in range(n // 2):
            k(f'v_permlane16_swap_b32 {vr(V + i)}, {vr(V + n // 2 + i)}')
        for i in range(n // 2):
            k(f'v_add_f32 {vr(V + i)}, {vr(V + i)}, {vr(V + n // 2 + i)}')
        n //= 2
        for i in range(n):
            k(f'v_add_f32_dpp {vr(V + i)}, {vr(V + i)}, {vr(V + i)} row_ror:8 row_mask:0xf bank_mask:0xf')
        q = nval // 4
        k(f'''
        v_lshrrev_b32 v8, 4, v0
        v_mul_u32_u24 v8, {q}, v8
        v_and_b32 v9, 7, v8
        v_lshrrev_b32 v8, 3, v8
        v_lshl_add_u32 v9, v8, 6, v9
        v_and_b32 v8, 7, v0
        v_lshl_add_u32 v9, v8, 3, v9
        s_mul_i32 s55, {sr(sW)}, {8 * nval}
        v_add_u32 v9, s55, v9
        v_lshlrev_b32 v9, 2, v9
        s_mov_b32 exec_lo, 0x00ff00ff
        s_mov_b32 exec_hi, 0x00ff00ff
        ''')
        if q == 2:
            k(f'ds_write_b64 v9, {vr(V, 2)} offset:{RED}', tag='redw')
        else:
            k(f'ds_write_b128 v9, {vr(V, 4)} offset:{RED}', tag='redw')
        k('s_mov_b64 exec, -1')
        k.wait('redw')
        k('s_barrier')

    def mod_job(self, sblk):
        k = self.k
        LD, CV, V = 96, 140, 32
        k(f'''
        v_lshrrev_b32 v8, 3, v0
        s_mul_i32 s55, {sr(sW)}, 80
        v_add_u32 v8, s55, v8
        v_lshlrev_b32 v9, 1, v8
        v_mul_u32_u24 v8, 7680, v8
        v_and_b32 v10, 7, v0
        v_lshl_add_u32 v8, v10, 4, v8
        s_lshl_b32 s55, {sblk}, 7
        ''')
        for i in range(10):
            k(f'global_load_ushort {vr(CV + i)}, v9, {P2(pC)} offset:{16 * i}')
        for i in range(10):
            k(f'buffer_load_dwordx4 {vr(LD + 4 * i, 4)}, v8, {P4(rA)}, s55 offen')
            if i < 9:
                k(f's_add_u32 s55, s55, {8 * 7680}')
        for i in range(10):
            c = CV + i
            k(f'''
            v_lshlrev_b32 {vr(c)}, 16, {vr(c)}
            v_mul_f32 v11, {f32(-LOG2E)}, {vr(c)}
            v_exp_f32 v11, v11
            v_add_f32 v11, 1.0, v11
            v_rcp_f32 v11, v11
            v_mul_f32 {vr(c)}, {vr(c)}, v11
            v_cvt_pk_bf16_f32 {vr(c)}, {vr(c)}, {vr(c)}
            v_lshlrev_b32 {vr(c)}, 16, {vr(c)}
            ''')
        for i in range(10):
            for j in range(4):
                r = LD + 4 * i + j
                k(f'v_lshlrev_b32 v11, 16, {vr(r)}\nv_and_b32 v12, 0xffff0000, {vr(r)}')
                if i == 0:
                    k(f'v_mul_f32 {vr(V + 2 * j)}, v11, {vr(CV)}\nv_mul_f32 {vr(V + 2 * j + 1)}, v12, {vr(CV)}')
                else:
                    k(f'v_fmac_f32 {vr(V + 2 * j)}, v11, {vr(CV + i)}\nv_fmac_f32 {vr(V + 2 * j + 1)}, v12, {vr(CV + i)}')
        self.strip_reduce(8, V, 0)
        L = self.only_wave(0)
        k('v_lshlrev_b32 v8, 2, v0')
        for w in range(4):
            k(f'ds_read2st64_b32 {vr(V + 2 * w, 2)}, v8 offset0:{2 * w} offset1:{2 * w + 1}')
        for w in range(1, 8):
            k(f'v_add_f32 {vr(V)}, {vr(V)}, {vr(V + w)}')
        k(f'''
        v_cvt_pk_bf16_f32 {vr(V)}, {vr(V)}, {vr(V)}
        v_and_b32 {vr(V)}, 0xffff0000, {vr(V)}
        v_or_b32 {vr(V)}, 1, {vr(V)}
        s_lshl_b32 s55, {sblk}, 8
        s_add_u32 s55, s55, {MOD}
        buffer_store_dword {vr(V)}, v8, {P4(rWS)}, s55 offen sc1
        {L}:
        s_barrier
        ''')

    def wd_job(self, sS):
        k = self.k
        k(f'''
        s_mul_i32 s55, {sS}, 40960
        s_mul_i32 s56, {sr(sW)}, 5120
        s_add_u32 s55, s55, s56
        v_lshlrev_b32 v8, 4, v0
        ''')
        for i in range(5):
            k(f's_add_u32 m0, s56, {8192 + 1024 * i}')
            k(f'buffer_load_dwordx4 v8, {P4(rB)}, s55 offen lds', tag='wdl')
            if i < 4:
                k('s_add_u32 s55, s55, 1024')
        k(f'''
        v_lshrrev_b32 v9, 5, v0
        v_lshlrev_b32 v9, 4, v9
        v_bfe_u32 v10, v0, 2, 3
        v_add_u32 v9, v9, v10
        v_mul_u32_u24 v9, 1280, v9
        v_and_b32 v10, 3, v0
        v_lshl_add_u32 v9, v10, 3, v9
        s_mul_i32 s56, {sr(sW)}, 160
        v_add_u32 v9, s56, v9
        s_mul_i32 s55, {sr(sW)}, {54 * 5120}
        s_mul_i32 s56, {sS}, 5120
        s_add_u32 s55, s55, s56
        s_add_u32 s55, s55, {WD}
        ''')
        k.wait('wdl')
        k('s_barrier')
        for j in range(5):
            k(f'ds_read_b64_tr_b16 {vr(32 + 4 * j, 2)}, v9 offset:{8192 + 32 * j}')
            k(f'ds_read_b64_tr_b16 {vr(34 + 4 * j, 2)}, v9 offset:{8192 + 32 * j + 8 * 1280}')
        for j in range(5):
            k(f'buffer_store_dwordx4 {vr(32 + 4 * j, 4)}, v8, {P4(rWS)}, s55 offen sc1', tag='wdst')
            if j < 4:
                k('s_add_u32 s55, s55, 1024')
        k('s_barrier')

    def stats_job(self):
        k = self.k
        LD, V = 96, 32
        k(f'''
        v_lshrrev_b32 v8, 3, v0
        s_mul_i32 s55, {sr(sW)}, 80
        v_add_u32 v8, s55, v8
        v_lshlrev_b32 v8, 12, v8
        v_and_b32 v10, 7, v0
        v_lshl_add_u32 v8, v10, 4, v8
        s_lshl_b32 s55, s2, 7
        s_add_u32 s55, s55, {X1T}
        ''')
        for i in range(10):
            k(f'buffer_load_dwordx4 {vr(LD + 4 * i, 4)}, v8, {P4(rWS)}, s55 offen sc1')
            if i < 9:
                k(f's_add_u32 s55, s55, {8 * 4096}')
        for i in range(10):
            for j in range(4):
                r = LD + 4 * i + j
                if i == 0:
                    k(f'''
                    v_lshlrev_b32 {vr(V + 2 * j)}, 16, {vr(r)}
                    v_and_b32 {vr(V + 2 * j + 1)}, 0xffff0000, {vr(r)}
                    v_mul_f32 {vr(V + 8 + 2 * j)}, {vr(V + 2 * j)}, {vr(V + 2 * j)}
                    v_mul_f32 {vr(V + 9 + 2 * j)}, {vr(V + 2 * j + 1)}, {vr(V + 2 * j + 1)}
                    ''')
                else:
                    k(f'''
                    v_lshlrev_b32 v11, 16, {vr(r)}
                    v_and_b32 v12, 0xffff0000, {vr(r)}
                    v_add_f32 {vr(V + 2 * j)}, {vr(V + 2 * j)}, v11
                    v_add_f32 {vr(V + 2 * j + 1)}, {vr(V + 2 * j + 1)}, v12
                    v_fmac_f32 {vr(V + 8 + 2 * j)}, v11, v11
                    v_fmac_f32 {vr(V + 9 + 2 * j)}, v12, v12
                    ''')
        self.strip_reduce(16, V, 0)
        L = self.only_wave(0)
        k('v_lshlrev_b32 v8, 2, v0')
        for w in range(8):
            k(f'ds_read2st64_b32 {vr(V + 2 * w, 2)}, v8 offset0:{2 * w} offset1:{2 * w + 1}')
        for w in range(1, 8):
            k(f'v_add_f32 {vr(V)}, {vr(V)}, {vr(V + 2 * w)}')
            k(f'v_add_f32 {vr(V + 1)}, {vr(V + 1)}, {vr(V + 2 * w + 1)}')
        k(f'''
        v_mul_f32 v10, {f32(1.0 / 640)}, {vr(V)}
        v_mul_f32 v11, {f32(1.0 / 640)}, {vr(V + 1)}
        v_fma_f32 v11, -v10, v10, v11
        v_max_f32 v11, 0, v11
        v_cvt_pk_bf16_f32 v11, v11, v11
        v_lshlrev_b32 v11, 16, v11
        v_add_f32 v11, {f32(1e-5)}, v11
        v_cvt_pk_bf16_f32 v11, v11, v11
        v_lshlrev_b32 v11, 16, v11
        v_sqrt_f32 v11, v11
        v_cvt_pk_bf16_f32 v10, v10, v11
        s_lshl_b32 s55, s2, 8
        s_add_u32 s55, s55, {STATS}
        buffer_store_dword v10, v8, {P4(rWS)}, s55 offen sc1
        {L}:
        s_barrier
        ''')

    def helper(self):
        k = self.k
        k('L_helper:')
        self.srd(rA, pWM, 640 * 3840 * 2)
        self.srd(rB, pWD, 1728 * 640 * 2)
        Lm, Lw, Lwd = k.label('modl'), k.label('wdl'), k.label('wdd')
        k(f'''
        s_add_u32 s68, s2, 10
        s_cmp_lt_u32 s2, 30
        s_cselect_b32 s68, s2, s68
        s_cmp_lt_u32 s2, 20
        s_cselect_b32 s69, 2, 1
        {Lm}:
        ''')
        self.mod_job('s68')
        k(f'''
        s_cmp_lt_u32 s2, 10
        s_cselect_b32 s68, 30, 40
        s_add_u32 s68, s68, s2
        s_sub_u32 s69, s69, 1
        s_cmp_lg_u32 s69, 0
        s_cbranch_scc1 {Lm}
        ''')
        self.stamp(2)
        k(f'''
        s_sub_u32 s68, s2, 20
        s_add_u32 s55, s2, 40
        s_cmp_lt_u32 s2, 20
        s_cselect_b32 s68, s55, s68
        s_cselect_b32 s69, 1, 2
        s_cmp_ge_u32 s68, 54
        s_cbranch_scc1 {Lwd}
        {Lw}:
        ''')
        self.wd_job('s68')
        k(f'''
        s_add_u32 s68, s68, 20
        s_sub_u32 s69, s69, 1
        s_cmp_lg_u32 s69, 0
        s_cbranch_scc1 {Lw}
        {Lwd}:
        s_waitcnt vmcnt(0)
        s_barrier
        ''')
        L = self.only_wave(0)
        k('s_and_b32 s55, s2, 3')
        self.arrive(SYNCW, 4, 's55', 16)
        k(f'{L}:')
        self.stamp(3)
        if self.o['stop'] in ('A', 'kgen'):
            k('s_branch L_end')
            return
        Lns = k.label('nostat')
        Lb, Lp = k.label('lateb'), k.label('polled')
        L = self.only_wave(0)
        k(f's_cmp_ge_u32 s2, 8\ns_cbranch_scc1 {Lb}')
        self.poll_addr(SYNC2A, 16, 16)
        self.poll(16, 17, 27)
        k(f's_branch {Lp}\n{Lb}:')
        self.poll_addr(SYNC2B, 24, 16)
        self.poll(16, 17, 9)
        k(f'{Lp}:\n{L}:')
        k('s_barrier')
        self.stamp(8)
        k(f's_cmp_ge_u32 s2, 32\ns_cbranch_scc1 {Lns}')
        self.stats_job()
        k(f'{Lns}:')
        self.stamp(9)
        if self.o['stop'] in ('conv', 'g1'):
            k('s_branch L_end')
            return
        L = self.only_wave(0)
        self.poll_addr(SYNCW, 4, 16)
        self.poll(16, 17, 10)
        k(f'{L}:')
        k('s_barrier')
        self.g2_setup()
        for j in range(5):
            self.g2_dma(j)
        self.resid_dma()
        k('s_branch L_g2')

    def build(self):
        k = self.k
        stop = self.o['stop']
        self.prologue()
        self.kgen_loads()
        self.ln1()
        k('s_cmp_lt_u32 s2, 40\ns_cbranch_scc1 L_helper')
        while True:
            if stop == 'A':
                break
            self.wstage_setup()
            self.wstage_issue(0)
            self.kgen()
            self.kexpand()
            self.stamp(2)
            k.wait('wst')
            k('s_barrier')
            self.wstage_read(0, 32)
            if stop == 'kgen':
                self.dump_k()
                break
            k.wait('wrd')
            self.conv_loads()
            self.wstage_issue(1)
            self.conv()
            self.window2()
            if stop == 'conv':
                break
            self.g1()
            if stop == 'g1':
                break
            self.g2()
            break
        k('s_endpgm')
        self.helper()
        k('L_end:\ns_endpgm')
        body = k.text()
        hdr = open('adaLN_cond__ssm_conv_s4d__geglu_ffn__prompt.s.ref').read().split('; Override')[0]
        return hdr + f'''; @launch kernel={NAME} grid=(256,1,1) block=(512,1,1) lds={LDS_BYTES}
.amdgcn_target "amdgcn-amd-amdhsa--gfx950"
.text
.globl {NAME}
.p2align 8
.type {NAME},@function
{NAME}:
{body}.section .rodata,"a"
.p2align 6
.amdhsa_kernel {NAME}
  .amdhsa_next_free_vgpr 256
  .amdhsa_next_free_sgpr 102
  .amdhsa_accum_offset 256
  .amdhsa_group_segment_fixed_size 0
  .amdhsa_kernarg_size 128
  .amdhsa_user_sgpr_count 2
  .amdhsa_user_sgpr_kernarg_segment_ptr 1
  .amdhsa_system_sgpr_workgroup_id_x 1
.end_amdhsa_kernel
'''

    def dump_k(self):
        k = self.k
        k.wait('saw')
        k('s_barrier')
        k(f's_lshl_b32 s55, {sr(sW)}, 6\nv_add_u32 v8, s55, v0\nv_lshlrev_b32 v9, 3, v8\nv_lshlrev_b32 v10, 4, v8')
        for ch in range(3):
            k(f'''
            ds_read_b64 v[12:13], v9 offset:{KA + ch * KAS + 32}
            ds_read_b128 v[16:19], v10 offset:{SA + ch * SAS}
            s_add_u32 s55, {sr(sD0)}, {ch}
            s_lshl_b32 s56, s55, 12
            s_add_u32 s56, s56, {X1T}
            s_lshl_b32 s57, s55, 13
            s_add_u32 s57, s57, {ACT}
            buffer_store_dwordx2 v[12:13], v9, {P4(rWS)}, s56 offen
            buffer_store_dwordx4 v[16:19], v10, {P4(rWS)}, s57 offen
            s_waitcnt vmcnt(0)
            ''')


def generate(**opt):
    return Gen(opt).build()


if __name__ == '__main__':
    opt = {}
    for a in sys.argv[2:]:
        kx, v = a.split('=')
        opt[kx] = eval(v)
    open(sys.argv[1], 'w').write(generate(**opt))
```

```python
import re

TRANS = ('v_exp_f32', 'v_log_f32', 'v_rcp_f32', 'v_rsq_f32', 'v_sqrt_f32', 'v_sin_f32', 'v_cos_f32', 'v_rcp_iflag_f32')
REG_RE = re.compile(r'(?<![\w.])([vs])(\d+)(?![\w\[])|(?<![\w.])([vs])\[(\d+):(\d+)\]|\b(vcc|exec|m0|scc)(?:_lo|_hi)?\b')


def regs_of(tok):
    out = []
    for m in REG_RE.finditer(tok):
        if m.group(1):
            out.append((m.group(1), int(m.group(2))))
        elif m.group(3):
            out += [(m.group(3), r) for r in range(int(m.group(4)), int(m.group(5)) + 1)]
        else:
            out.append(('x', m.group(6)))
    return out


def split_ops(s):
    ops, depth, cur = [], 0, ''
    for ch in s:
        if ch in '[(':
            depth += 1
        if ch in '])':
            depth -= 1
        if ch == ',' and depth == 0:
            ops.append(cur.strip())
            cur = ''
        else:
            cur += ch
    if cur.strip():
        ops.append(cur.strip())
    return ops


class Ins:
    __slots__ = ('text', 'op', 'ops', 'dst', 'src', 'kind', 'tag', 'waits', 'mf', 'label', 'target', 'states', 'srcC', 'srcAB', 'sdata')

    def __init__(self, text, tag=None):
        self.text = text
        self.tag = tag
        self.waits = []
        self.label = None
        self.target = None
        self.mf = 0
        self.states = 1
        self.srcC = set()
        self.srcAB = set()
        self.sdata = set()
        t = text.split(';')[0].strip()
        if t.endswith(':'):
            self.label = t[:-1]
            self.kind = 'label'
            self.op = ''
            self.ops = []
            self.dst = set()
            self.src = set()
            self.states = 0
            return
        if t.startswith('.') or t == '':
            self.kind = 'dir'
            self.op = ''
            self.ops = []
            self.dst = set()
            self.src = set()
            self.states = 0
            return
        parts = t.split(None, 1)
        op = self.op = parts[0]
        rest = parts[1] if len(parts) > 1 else ''
        ops = self.ops = split_ops(rest)
        R = [regs_of(o.split(' ')[0] if i == len(ops) - 1 and not o.startswith('hwreg') else o) for i, o in enumerate(ops)]
        allr = lambda lo: set(x for r in R[lo:] for x in r)
        dst, src = set(), set()
        if op == '__wait':
            self.kind = 'pseudo'
            self.states = 0
            self.waits = ops
        elif op.startswith('v_mfma'):
            self.kind = 'mfma'
            self.mf = 8 if '32x32' in op else 4
            dst = set(R[0])
            src = allr(1)
            self.srcC = set(R[3])
            self.srcAB = set(R[1]) | set(R[2])
        elif op.startswith('v_'):
            self.kind = 'valu'
            if op.startswith('v_permlane') or op.startswith('v_swap'):
                dst = set(R[0]) | set(R[1])
                src = set(dst)
            elif '_co_' in op or op.startswith('v_div_scale') or op.startswith('v_mad_u64'):
                dst = set(R[0]) | set(R[1])
                src = allr(2)
            elif op.startswith('v_cmpx'):
                dst = set(R[0]) | {('x', 'exec')}
                src = allr(1)
            else:
                dst = set(R[0])
                src = allr(1)
                if op.startswith('v_fmac') or op.startswith('v_dot2c') or op.startswith('v_writelane') or '_dpp' in op:
                    src |= dst
        elif op.startswith('ds_'):
            self.kind = 'ds'
            if op.startswith('ds_read') or op.startswith('ds_bpermute') or op.startswith('ds_permute') or op.startswith('ds_swizzle') or '_rtn' in op:
                dst = set(R[0])
                src = allr(1)
                if 'd16' in op:
                    src |= dst
            else:
                src = allr(0)
            if 'addtid' in op:
                src.add(('x', 'm0'))
        elif op.startswith('buffer_') or op.startswith('global_'):
            self.kind = 'vmem'
            toks = t.replace(',', ' ').split()
            lds = ('lds' in toks) or '_lds_' in op
            if op in ('buffer_wbl2', 'buffer_inv'):
                pass
            elif lds:
                src = allr(0) | {('x', 'm0')}
            elif '_load_' in op:
                dst = set(R[0])
                src = allr(1)
                if 'd16' in op:
                    src |= dst
            elif '_atomic_' in op:
                if 'sc0' in toks:
                    dst = set(R[0])
                    src = allr(1) if op.startswith('global_') else allr(0)
                else:
                    src = allr(0)
            else:
                src = allr(0)
                if op.endswith('x4') or op.endswith('x3'):
                    self.sdata = set(R[0]) if op.startswith('buffer_') else set(R[1])
        elif op.startswith('s_load') or op.startswith('s_buffer_load') or op in ('s_memtime', 's_memrealtime'):
            self.kind = 'smem'
            dst = set(R[0])
            src = allr(1)
        elif op.startswith('s_'):
            self.kind = 'salu'
            if op == 's_nop':
                self.states = int(ops[0], 0) + 1
            elif op in ('s_branch',) or op.startswith('s_cbranch'):
                self.kind = 'branch'
                self.target = ops[0]
                if 'vcc' in op:
                    src = {('x', 'vcc')}
            elif op == 's_endpgm':
                self.kind = 'end'
            elif op in ('s_waitcnt', 's_barrier', 's_setprio', 's_sleep', 's_sethalt'):
                pass
            elif op.startswith('s_cmp') or op.startswith('s_bitcmp'):
                src = allr(0)
            else:
                dst = set(R[0])
                src = allr(1)
                if 'saveexec' in op:
                    dst.add(('x', 'exec'))
                if op in ('s_addk_i32', 's_mulk_i32') or op.startswith('s_cmov') or op.startswith('s_bitset'):
                    src |= set(R[0])
        else:
            raise ValueError('unknown instruction: ' + text)
        self.dst, self.src = dst, src


VM_MAX, LG_MAX = 63, 15


class Kern:
    def __init__(self):
        self.ins = []
        self.nlab = 0

    def __call__(self, text, tag=None):
        for line in text.split('\n'):
            line = line.strip()
            if not line or line.startswith(';'):
                continue
            self.ins.append(Ins(line, tag))
        return self

    def wait(self, *tags):
        self.ins.append(Ins('__wait ' + ', '.join(tags)))

    def label(self, base):
        self.nlab += 1
        return f'L_{base}_{self.nlab}'

    def blocks(self, ins):
        starts = {0}
        for i, x in enumerate(ins):
            if x.kind == 'label':
                starts.add(i)
            if x.kind in ('branch', 'end') and i + 1 < len(ins):
                starts.add(i + 1)
        st = sorted(starts)
        blks = [(a, b) for a, b in zip(st, st[1:] + [len(ins)])]
        lab = {ins[a].label: k for k, (a, b) in enumerate(blks) if ins[a].kind == 'label'}
        succ = []
        for k, (a, b) in enumerate(blks):
            last = None
            for j in range(b - 1, a - 1, -1):
                if ins[j].kind not in ('dir', 'pseudo'):
                    last = ins[j]
                    break
            s = []
            if last is not None and last.kind == 'end':
                pass
            elif last is not None and last.kind == 'branch':
                s.append(lab[last.target])
                if last.op != 's_branch' and k + 1 < len(blks):
                    s.append(k + 1)
            elif k + 1 < len(blks):
                s.append(k + 1)
            succ.append(s)
        pred = [[] for _ in blks]
        for k, s in enumerate(succ):
            for t in s:
                pred[t].append(k)
        return blks, succ, pred

    @staticmethod
    def _apply_wait(st, vm, lg):
        for key in list(st):
            cls, age = st[key]
            if cls == 'vm' and vm is not None and age >= vm:
                del st[key]
            elif cls == 'lg' and lg is not None and age >= lg:
                del st[key]
            elif cls == 'sm' and lg == 0:
                del st[key]

    def _run_block(self, ins, a, b, st, out):
        st = dict(st)
        for i in range(a, b):
            x = ins[i]
            if x.kind in ('label', 'dir'):
                if out is not None:
                    out.append(x)
                continue
            if x.op == 's_waitcnt':
                m = re.search(r'vmcnt\((\d+)\)', x.text)
                vm = int(m.group(1)) if m else None
                m = re.search(r'lgkmcnt\((\d+)\)', x.text)
                lg = int(m.group(1)) if m else None
                self._apply_wait(st, vm, lg)
                if out is not None:
                    out.append(x)
                continue
            need = [('t', t) for t in x.waits] if x.kind == 'pseudo' else list(x.src | x.dst)
            if x.tag == 'raw':
                for key in need:
                    st.pop(key, None)
                need = []
            vm = lg = None
            smem_pending = any(c == 'sm' for c, _ in st.values())
            for key in need:
                if key in st:
                    cls, age = st[key]
                    if key in x.dst and key not in x.src and ((cls == 'vm' and x.kind == 'vmem') or (cls == 'lg' and x.kind == 'ds' and not smem_pending)):
                        continue
                    if cls == 'vm':
                        vm = min(age, VM_MAX) if vm is None else min(vm, age)
                    elif cls == 'lg':
                        v = 0 if smem_pending else min(age, LG_MAX)
                        lg = v if lg is None else min(lg, v)
                    else:
                        lg = 0
            if vm is not None or lg is not None:
                self._apply_wait(st, vm, lg)
                if out is not None:
                    w = 's_waitcnt' + (f' vmcnt({vm})' if vm is not None else '') + (f' lgkmcnt({lg})' if lg is not None else '')
                    out.append(Ins(w))
            if x.kind == 'pseudo':
                continue
            cls = {'vmem': 'vm', 'ds': 'lg', 'smem': 'sm'}.get(x.kind)
            if cls:
                for key in list(st):
                    c, age = st[key]
                    if c == cls and cls != 'sm':
                        st[key] = (c, age + 1)
                for r in x.dst:
                    st[r] = (cls, 0)
                if x.tag:
                    for t in (x.tag if isinstance(x.tag, (list, tuple)) else [x.tag]):
                        st[('t', t)] = (cls, 0)
                if cls == 'sm' and not x.dst:
                    st[('t', '__smem')] = (cls, 0)
            if out is not None:
                out.append(x)
        return st

    def insert_waits(self):
        ins = self.ins
        blks, succ, pred = self.blocks(ins)
        inst = [None] * len(blks)
        work = []
        for k in range(len(blks)):
            if k == 0 or not pred[k]:
                inst[k] = {}
                work.append(k)
        it = 0
        while work:
            it += 1
            assert it < 200000
            k = work.pop(0)
            o = self._run_block(ins, blks[k][0], blks[k][1], inst[k], None)
            for t in succ[k]:
                if inst[t] is None:
                    inst[t] = dict(o)
                    work.append(t)
                else:
                    ch = False
                    for key, (c, age) in o.items():
                        if key not in inst[t]:
                            inst[t][key] = (c, age)
                            ch = True
                        else:
                            c2, a2 = inst[t][key]
                            if c2 != c:
                                raise ValueError(f'register {key} pending in two counter classes at block {ins[blks[t][0]].text}')
                            if age < a2:
                                inst[t][key] = (c, age)
                                ch = True
                    if ch and t not in work:
                        work.append(t)
        out = []
        for k, (a, b) in enumerate(blks):
            self._run_block(ins, a, b, inst[k] or {}, out)
        self.ins = out

    @staticmethod
    def _req(p, c):
        V = lambda s: set(r for r in s if r[0] == 'v')
        S = lambda s: set(r for r in s if r[0] == 's' or r == ('x', 'vcc'))
        n = 0
        if p.kind == 'valu':
            pv = V(p.dst)
            ps = S(p.dst)
            if c.kind == 'mfma' and pv & c.src:
                n = max(n, 2)
            if c.kind == 'valu':
                if pv & c.src:
                    if '_dpp' in c.op or c.op.startswith('v_permlane'):
                        n = max(n, 2)
                    if c.op.startswith('v_readlane') or c.op.startswith('v_readfirstlane'):
                        n = max(n, 1)
                    if p.op.replace('_e32', '').replace('_e64', '') in TRANS:
                        n = max(n, 1)
                    if 'sdwa' in p.op:
                        n = max(n, 1)
                if p.op.startswith('v_dot') and pv & (c.src | c.dst):
                    same = c.op == p.op
                    if same and len(c.ops) >= 3:
                        ab = set(regs_of(c.ops[1])) | set(regs_of(c.ops[2]))
                        if pv & ab:
                            n = max(n, 3)
                    else:
                        n = max(n, 3)
                if ps & c.src:
                    if c.op.startswith('v_readlane') or c.op.startswith('v_writelane'):
                        n = max(n, 4)
                    else:
                        n = max(n, 2)
            elif p.op.startswith('v_dot') and pv & (c.src | c.dst):
                n = max(n, 3)
            if c.kind == 'vmem' and ps & c.src:
                n = max(n, 5)
            if c.kind in ('salu', 'branch', 'smem') and ps & c.src:
                n = max(n, 1)
            if ('x', 'exec') in p.dst:
                n = max(n, 5)
        elif p.kind == 'mfma':
            d = p.dst
            if c.kind == 'mfma':
                if d & c.srcAB:
                    n = max(n, p.mf + 4)
                if d & c.srcC:
                    if not (d == c.srcC and p.mf == c.mf):
                        n = max(n, p.mf + 2)
                elif d & c.dst:
                    n = max(n, p.mf + 2)
            elif c.kind in ('valu', 'vmem', 'ds'):
                if d & (c.src | c.dst):
                    n = max(n, p.mf + 4)
                if c.kind == 'valu' and p.srcC & c.dst:
                    n = max(n, p.mf - 1)
        elif p.kind == 'salu':
            if ('x', 'm0') in p.dst and ('x', 'm0') in c.src and c.kind in ('vmem', 'ds'):
                n = max(n, 1)
        elif p.kind == 'vmem':
            if p.sdata and p.sdata & c.dst:
                n = max(n, 2)
        return n

    def insert_nops(self):
        ins = self.ins
        blks, succ, pred = self.blocks(ins)
        body = [list(ins[a:b]) for a, b in blks]
        WIN = 14

        def scan(k, upto, dist, c, seen):
            need = 0
            lst = body[k]
            for j in range(upto - 1, -1, -1):
                p = lst[j]
                if p.states == 0:
                    continue
                r = self._req(p, c)
                if r - dist > need:
                    need = r - dist
                dist += p.states
                if dist >= WIN:
                    return need
            for q in pred[k]:
                key = (q, dist)
                if key in seen:
                    continue
                seen.add(key)
                need = max(need, scan(q, len(body[q]), dist, c, seen))
            return need

        for k in range(len(body)):
            j = 0
            while j < len(body[k]):
                c = body[k][j]
                if c.states:
                    need = scan(k, j, 0, c, set())
                    if need > 0:
                        body[k].insert(j, Ins(f's_nop {need - 1}'))
                        j += 1
                j += 1
        self.ins = [x for b in body for x in b]

    def text(self):
        self.insert_waits()
        self.insert_nops()
        out = []
        for x in self.ins:
            if x.kind == 'pseudo':
                continue
            out.append(x.text if x.kind == 'label' else '  ' + x.text)
        return '\n'.join(out) + '\n'


def vr(a, n=1):
    return f'v{a}' if n == 1 else f'v[{a}:{a + n - 1}]'


def sr(a, n=1):
    return f's{a}' if n == 1 else f's[{a}:{a + n - 1}]'


def f32(x):
    import struct
    return '0x%08x' % struct.unpack('<I', struct.pack('<f', x))[0]
```

```python
import sys, math
from asmgen import Kern, vr, sr, f32

NAME = 'adaLN_cond__ssm_conv_s4d__geglu_ffn__prompt_kernel'

SYNC1 = 0x0
GEN = 0x22000
MS = 0x1A000
SYNC2A, SYNC2B, SYNCW, SYNC3 = 0x8000, 0xC000, 0x12000, 0x13000
MODP = 0x1C000
MOD, STATS = 0x16000, 0x14000
ZBEG, ZEND = 0x8000, 0x16000
STAMP = 0x30000
XN, XT, X1T, X1S, WD, ACT = 0x100000, 0x400000, 0x700000, 0xA00000, 0xD00000, 0x1000000
KG, KGS = 0, 4608
XNL0, MSL = 1696, 13984
KA, KAS = 27648, 4128
SA, SAS = 40032, 8192
TR, TRR, TRM = 40032, 1344, 10752
WT = 81408
KC, KCS = 51200, 3840
GA = 204
TAB, EXC = 64704, 10240
STG = 81920
RING, NS = 16384, 5
G2S, RESID = 30720, 0
G2SLOT = [102400, 133120, 10240, 40960, 71680]
LDS_BYTES = 163840
pX, pLA, pAI, pCR, pCI, pDT, pDS, pWG, pWU, pWD, pC, pWM, pOUT, pDBG, pWS = 4, 6, 8, 10, 12, 14, 16, 20, 22, 24, 26, 28, 30, 32, 34
sW, sI, sPC = 36, 37, 38
rWS, rA, rB = 40, 44, 48
sD0, sMB, sNB = 52, 53, 54
sT = 55
sCH = 70
sSPIN = 79
sST = 80
sFLAG = 82
sWL, sWO, sWI, sWR = 86, 87, 88, 89
sQ, sM1, sTAG = 91, 92, 93
P2 = lambda r: sr(r, 2)
P4 = lambda r: sr(r, 4)
WF = 96
SPIN_MAX = 400000

LOG2E = 1.4426950408889634


class Gen:
    def __init__(self, opt):
        self.o = dict(stop=None, stamps=False)
        self.o.update(opt)
        self.k = Kern()
        self.nst = 0

    def stamp(self, name, vt=None):
        if not self.o['stamps']:
            return
        names = self.o.setdefault('stamp_names', [])
        if name not in names:
            names.append(name)
        idx = names.index(name)
        assert idx < 32
        self.k(f'''
        s_memrealtime {sr(sST, 2)}
        s_memtime s[84:85]
        s_waitcnt lgkmcnt(0)
        v_writelane_b32 v87, {sr(sST)}, {idx}
        v_writelane_b32 v87, s84, {32 + idx}
        ''')

    def stamp_flush(self):
        if not self.o['stamps']:
            return
        self.k(f'''
        s_lshl_b32 s100, s2, 3
        s_add_u32 s100, s100, {sr(sW)}
        s_lshl_b32 s100, s100, 8
        s_add_u32 s100, s100, {STAMP}
        v_lshl_add_u32 v86, v0, 2, s100
        global_store_dword v86, v87, {P2(pWS)}
        ''')

    def arrive(self, base, nshard, shard_sreg, vt):
        k = self.k
        k(f'''
        s_lshl_b32 s3, {shard_sreg}, 7
        s_add_u32 s3, s3, {base}
        v_mul_u32_u24 {vr(vt)}, {128 * nshard}, v0
        v_add_u32 {vr(vt)}, s3, {vr(vt)}
        v_mov_b32 {vr(vt + 1)}, 1
        s_mov_b64 exec, 0xff
        global_atomic_add {vr(vt)}, {vr(vt + 1)}, {P2(pWS)} sc1
        s_mov_b64 exec, -1
        ''')

    def poll_addr(self, base, nshard, va):
        k = self.k
        k(f'''
        s_and_b32 s3, s2, 7
        s_mul_i32 s3, s3, {128 * nshard}
        s_add_u32 s3, s3, {base}
        v_min_u32 {vr(va)}, {nshard - 1}, v0
        v_lshlrev_b32 {vr(va)}, 7, {vr(va)}
        v_add_u32 {vr(va)}, s3, {vr(va)}
        ''')

    def poll(self, va, vd, count, ptr=pWS, preissued=False, off=0):
        k = self.k
        L, D = k.label('poll'), k.label('polld')
        ld = f'global_load_dword {vr(vd)}, {vr(va)}, {P2(ptr)} offset:{off} sc1'
        if not preissued:
            k(ld)
        k(f'''
        v_cmp_gt_u32 vcc, {count}, {vr(vd)}
        s_cbranch_vccz {D}
        {L}:
        {ld}
        v_cmp_gt_u32 vcc, {count}, {vr(vd)}
        s_cbranch_vccz {D}
        s_sleep {self.o.get('sleep', 2)}
        s_add_u32 {sr(sSPIN)}, {sr(sSPIN)}, 1
        s_cmp_lt_u32 {sr(sSPIN)}, {SPIN_MAX}
        s_cbranch_scc1 {L}
        {D}:
        ''')

    def srd(self, r, ptr, size):
        self.k(f'''
        s_mov_b32 {sr(r)}, {sr(ptr)}
        s_and_b32 {sr(r + 1)}, {sr(ptr + 1)}, 0xffff
        s_mov_b32 {sr(r + 2)}, {size}
        s_mov_b32 {sr(r + 3)}, 0x20000
        ''')

    def only_wave(self, w):
        L = self.k.label('ow')
        self.k(f's_cmp_lg_u32 {sr(sW)}, {w}\ns_cbranch_scc1 {L}')
        return L

    def prologue(self):
        k = self.k
        k(f'''
        s_cmp_ge_u32 s2, 256
        s_cbranch_scc1 L_end
        s_load_dwordx16 s[4:19], s[0:1], 0
        s_load_dwordx16 s[20:35], s[0:1], 64
        s_getpc_b64 {P2(sPC)}
        L_pc:
        v_lshrrev_b32 v1, 6, v0
        v_and_b32 v0, 63, v0
        v_readfirstlane_b32 {sr(sW)}, v1
        s_mov_b32 {sr(sSPIN)}, 0
        ''')
        if self.o['stamps']:
            k('v_mov_b32 v87, 0')
        L = k.label('pf')
        k(f'''
        s_lshr_b32 s3, s2, 3
        s_and_b32 s3, s3, 7
        s_cmp_eq_u32 {sr(sW)}, 0
        s_cselect_b32 s56, 0, s3
        s_cmp_eq_u32 {sr(sW)}, s56
        s_cbranch_scc0 {L}
        s_lshl_b32 s3, {sr(sW)}, 13
        v_lshlrev_b32 v2, 7, v0
        v_add_u32 v2, s3, v2
        v_min_u32 v2, L_end-L_pc, v2
        global_load_dword v83, v2, {P2(sPC)}
        {L}:
        s_lshl_b32 s3, s2, 3
        s_add_u32 s3, s3, {sr(sW)}
        s_mul_i32 s3, s3, 1280
        v_lshl_add_u32 v2, v0, 4, s3
        v_lshl_add_u32 v3, v0, 2, s3
        s_sub_u32 {sr(sI)}, s2, 40
        s_and_b32 {sr(sMB)}, s2, 7
        s_lshr_b32 {sr(sQ)}, {sr(sI)}, 3
        s_mul_i32 s3, {sr(sMB)}, 27
        s_add_u32 s3, s3, {sr(sQ)}
        s_lshr_b32 {sr(sNB)}, s3, 3
        s_and_b32 {sr(sM1)}, s3, 7
        s_mul_i32 s3, s3, 3
        s_min_u32 {sr(sD0)}, s3, 637
        s_min_u32 s55, {sr(sW)}, 5
        s_lshl_b32 s56, {sr(sD0)}, 1
        s_add_u32 s56, s56, s55
        s_lshl_b32 s56, s56, 7
        v_lshl_add_u32 v18, v0, 1, s56
        s_lshr_b32 s55, s55, 1
        s_add_u32 s55, s55, {sr(sD0)}
        s_lshl_b32 s55, s55, 1
        v_mov_b32 v19, s55
        v_min_u32 v17, 2, v0
        v_add_u32 v17, {sr(sD0)}, v17
        v_lshlrev_b32 v17, 1, v17
        ''')
        self.stamp('start')
        k(f'''
        global_load_dwordx4 v[92:95], v2, {P2(pX)}
        global_load_dword v91, v3, {P2(pX)} offset:1024
        s_load_dword {sr(sTAG)}, {P2(pWS)}, {GEN}
        ''')
        L, Lh = k.label('nokl'), k.label('hc')
        k(f'''
        v_mov_b32 v20, 0
        s_cmp_ge_u32 s2, 40
        s_cbranch_scc1 {Lh}
        v_lshrrev_b32 v20, 3, v0
        v_mul_u32_u24 v20, 10, v20
        s_mul_i32 s55, {sr(sW)}, 80
        v_add_u32 v20, s55, v20
        v_lshlrev_b32 v21, 1, v20
        global_load_dwordx4 v[160:163], v21, {P2(pC)}
        global_load_dword v164, v21, {P2(pC)} offset:16
        v_mul_u32_u24 v20, 7680, v20
        v_and_b32 v21, 7, v0
        v_lshl_add_u32 v20, v21, 4, v20
        s_add_u32 s68, s2, 10
        s_cmp_lt_u32 s2, 30
        s_cselect_b32 s68, s2, s68
        s_lshl_b32 s55, s68, 7
        v_add_u32 v21, s55, v20
        ''')
        for i in range(self.o.get('he', 3)):
            k(f'global_load_dwordx4 {vr(96 + 4 * i, 4)}, v21, {P2(pWM)}\nv_add_u32 v21, 7680, v21')
        k(f'''
        s_branch {L}
        {Lh}:
        s_cmp_ge_u32 {sr(sW)}, 6
        s_cbranch_scc1 {L}
        global_load_ushort v20, v18, {P2(pLA)}
        global_load_ushort v24, v19, {P2(pDT)}
        global_load_ushort v21, v18, {P2(pAI)}
        global_load_ushort v22, v18, {P2(pCR)}
        global_load_ushort v23, v18, {P2(pCI)}
        global_load_ushort v25, v17, {P2(pDS)}
        {L}:
        ''')
        self.srd(rWS, pWS, 0x10000000)
        self.srd(rA, pWG, 640 * 1728 * 2)
        self.srd(rB, pWU, 640 * 1728 * 2)

    def early_addresses(self):
        k = self.k
        k(f'''
        v_lshrrev_b32 v16, 3, v0
        v_mul_u32_u24 v17, 3456, v16
        v_bfe_u32 v16, v0, 4, 1
        v_bfe_u32 v26, v0, 1, 2
        v_xor_b32 v26, v26, v16
        v_and_b32 v16, 1, v0
        v_lshl_add_u32 v17, v16, 4, v17
        s_lshl_b32 s55, {sr(sNB)}, 7
        v_add_u32 v17, s55, v17
        v_lshl_add_u32 v26, v26, 5, v17
        v_xor_b32 v27, 64, v26
        s_mul_i32 {sr(sWR)}, {sr(sM1)}, 5
        s_mov_b32 {sr(sWO)}, 0
        ''')
        k(f's_lshl_b32 s55, {sr(sW)}, 6\nv_add_u32 v89, s55, v0')
        k(f'''
        s_lshl_b32 s55, {sr(sW)}, 1
        s_lshr_b32 s56, 0xffa4, s55
        s_and_b32 s56, s56, 3
        s_lshl_b32 s57, s56, 3
        v_lshlrev_b32 v10, 2, v89
        ''')
        for j in range(4):
            k(f'''
            v_add_u32 v11, {j}, v10
            v_cvt_f32_u32 v11, v11
            v_cvt_pk_bf16_f32 v11, v11, v11
            v_lshlrev_b32 v11, 16, v11
            v_cvt_u32_f32 v11, v11
            v_lshrrev_b32 v12, 7, v11
            v_and_b32 v13, 7, v11
            v_lshl_add_u32 v12, v12, 3, v13
            v_lshrrev_b32 v12, s56, v12
            v_add_u32 v12, s57, v12
            v_mul_u32_u24 v12, 20, v12
            v_bfe_u32 v11, v11, 3, 4
            v_add_lshl_u32 v11, v12, v11, 2
            v_add_u32 {vr(GA + j)}, {KC}, v11
            ''')
        k(f'''
        v_lshlrev_b32 v208, 1, v10
        v_lshlrev_b32 v209, 2, v10
        ''')
        for i in range(2):
            k(f'''
            v_add_u32 v11, {512 * i}, v89
            v_mul_u32_u24 v12, 0x5556, v11
            v_lshrrev_b32 v12, 16, v12
            v_mul_u32_u24 v13, 3, v12
            v_sub_u32 v11, v11, v13
            v_add_u32 v11, {sr(sD0)}, v11
            v_mul_u32_u24 v12, 10240, v12
            v_lshl_add_u32 {vr(210 + i)}, v11, 4, v12
            ''')
        k('v_lshlrev_b32 v212, 4, v89')
        self.wread_addr(213)
        k(f'''
        v_min_u32 v11, 11, v0
        v_mul_u32_u24 v12, 0x5556, v11
        v_lshrrev_b32 v12, 16, v12
        v_mul_u32_u24 v13, 3, v12
        v_sub_u32 v11, v11, v13
        v_cmp_eq_u32 vcc, 3, v12
        v_addc_co_u32 v12, vcc, 0, v12, vcc
        v_mul_u32_u24 v12, 640, v12
        v_add3_u32 v11, v11, v12, {sr(sD0)}
        v_lshlrev_b32 v11, 2, v11
        v_add_u32 v88, {MOD}, v11
        v_min_u32 v89, 319, v89
        v_lshlrev_b32 v90, 3, v89
        ''')
        k(f'''
        v_lshrrev_b32 v8, 4, v0
        v_bfe_u32 v9, v0, 2, 2
        v_and_b32 v10, 3, v0
        v_lshlrev_b32 v11, 1, v10
        v_lshl_add_u32 v11, v8, 2, v11
        v_lshrrev_b32 v12, 1, v9
        v_add_u32 v11, v11, v12
        v_mul_u32_u24 v11, 48, v11
        v_and_b32 v12, 1, v9
        v_lshl_add_u32 v11, v12, 3, v11
        v_add_u32 v1, {XNL0 - 14 * 48}, v11
        v_sub_u32 v11, v10, v9
        v_lshlrev_b32 v12, 3, v8
        v_sub_u32 v11, v11, v12
        v_lshlrev_b32 v11, 3, v11
        v_add_u32 v2, {KA + 32 + 2 * (112 - 16)}, v11
        v_lshlrev_b32 v11, 3, v9
        v_lshl_add_u32 v11, v8, 1, v11
        v_lshrrev_b32 v12, 1, v10
        v_add_u32 v11, v11, v12
        v_mul_u32_u24 v11, 48, v11
        v_and_b32 v12, 1, v10
        v_lshl_add_u32 v11, v12, 3, v11
        v_add_u32 v5, {XNL0}, v11
        ''')
        k(f'''
        s_mul_i32 s56, {sr(sW)}, {TRR}
        s_add_u32 s56, s56, {TR}
        v_lshl_add_u32 v6, v0, 4, s56
        v_lshl_add_u32 v7, v0, 2, s56
        v_mul_u32_u24 v4, {TRR}, v9
        v_lshl_add_u32 v4, v8, 5, v4
        v_lshl_add_u32 v4, v10, 3, v4
        s_and_b32 s55, {sr(sW)}, 1
        s_mul_i32 s56, s55, 640
        s_add_u32 s56, s56, {TR}
        v_add_u32 v4, s56, v4
        s_mul_i32 s57, s2, 10240
        s_mul_i32 s56, s55, 5120
        s_add_u32 s57, s57, s56
        v_lshl_add_u32 v3, v0, 4, s57
        s_add_u32 {sr(sTAG)}, {sr(sTAG)}, 0x9e3779b9
        ''')
        k(f'''
        s_and_b32 s55, s2, 7
        s_lshl_b32 s55, s55, 12
        v_lshrrev_b32 v11, 1, v0
        v_lshlrev_b32 v11, 7, v11
        v_and_b32 v12, 1, v0
        v_lshl_add_u32 v11, v12, 5, v11
        v_add_u32 v215, s55, v11
        ''')

    def poll_sync1(self, va, vd):
        k = self.k
        L, D = k.label('p1'), k.label('p1d')
        k(f'''
        {L}:
        global_load_dwordx4 {vr(vd, 4)}, {vr(va)}, {P2(pWS)} offset:{SYNC1} sc1
        global_load_dwordx4 {vr(vd + 4, 4)}, {vr(va)}, {P2(pWS)} offset:{SYNC1 + 16} sc1
        v_min3_u32 {vr(vd + 8)}, {vr(vd)}, {vr(vd + 1)}, {vr(vd + 2)}
        v_max3_u32 {vr(vd + 9)}, {vr(vd)}, {vr(vd + 1)}, {vr(vd + 2)}
        v_min3_u32 {vr(vd + 8)}, {vr(vd + 8)}, {vr(vd + 3)}, {vr(vd + 4)}
        v_max3_u32 {vr(vd + 9)}, {vr(vd + 9)}, {vr(vd + 3)}, {vr(vd + 4)}
        v_min3_u32 {vr(vd + 8)}, {vr(vd + 8)}, {vr(vd + 5)}, {vr(vd + 6)}
        v_max3_u32 {vr(vd + 9)}, {vr(vd + 9)}, {vr(vd + 5)}, {vr(vd + 6)}
        v_min_u32 {vr(vd + 8)}, {vr(vd + 8)}, {vr(vd + 7)}
        v_max_u32 {vr(vd + 9)}, {vr(vd + 9)}, {vr(vd + 7)}
        v_xor_b32 {vr(vd + 8)}, {sr(sTAG)}, {vr(vd + 8)}
        v_xor_b32 {vr(vd + 9)}, {sr(sTAG)}, {vr(vd + 9)}
        v_or_b32 {vr(vd + 8)}, {vr(vd + 8)}, {vr(vd + 9)}
        v_cmp_ne_u32 vcc, 0, {vr(vd + 8)}
        s_cbranch_vccz {D}
        s_sleep {self.o.get('sleep', 2)}
        s_add_u32 {sr(sSPIN)}, {sr(sSPIN)}, 1
        s_cmp_lt_u32 {sr(sSPIN)}, {SPIN_MAX}
        s_cbranch_scc1 {L}
        {D}:
        ''')

    def touch(self, ptr, size, sbyte, stride=128, lanes=64):
        k = self.k
        k(f'''
        v_mul_u32_u24 v84, {stride}, v0
        v_add_u32 v84, {sbyte}, v84
        v_min_u32 v84, {size - 4}, v84
        ''')
        if lanes < 64:
            k(f's_mov_b32 exec_lo, {hex((1 << min(lanes, 32)) - 1)}\ns_mov_b32 exec_hi, {hex((1 << max(lanes - 32, 0)) - 1)}')
        k(f'global_load_dword v83, v84, {P2(ptr)}')
        if lanes < 64:
            k('s_mov_b64 exec, -1')

    def stage_a(self):
        k = self.k
        L, L5 = k.label('nsa'), k.label('sa5')
        k(f'''
        s_cmp_lt_u32 s2, 40
        s_cbranch_scc1 {L}
        s_cmp_ge_u32 {sr(sW)}, 6
        s_cbranch_scc1 {L}
        s_cmp_eq_u32 {sr(sW)}, 5
        s_cbranch_scc1 {L5}
        s_mov_b32 {sr(sWI)}, {sr(sW)}
        ''')
        self.wunits(1, 5, 1)
        k(f's_branch {L}\n{L5}:')
        if self.o.get('tm', 0):
            k(f's_mul_i32 s55, {sr(sI)}, {178 * 128}')
            for i in range(3):
                self.touch(pWM, 640 * 3840 * 2, 's55')
                if i < 2:
                    k('s_add_u32 s55, s55, 8192')
        k(f'{L}:')

    def stage_b_touch(self):
        k = self.k
        if not self.o.get('tb', 0):
            return
        L = [k.label('tb') for _ in range(5)]
        k(f's_cmp_lt_u32 {sr(sW)}, 2\ns_cbranch_scc0 {L[0]}')
        k(f's_mul_i32 s55, {sr(sI)}, {80 * 128}\ns_mul_i32 s56, {sr(sW)}, {40 * 128}\ns_add_u32 s55, s55, s56')
        self.touch(pWD, 1728 * 640 * 2, 's55', lanes=40)
        k(f's_branch {L[2]}\n{L[0]}:')
        k(f'''
        s_mul_i32 s55, {sr(sWR)}, {8 * 3456}
        s_lshl_b32 s56, {sr(sNB)}, 7
        s_add_u32 s55, s55, s56
        s_add_u32 s55, s55, {320 * 3456}
        s_cmp_eq_u32 {sr(sW)}, 2
        s_cbranch_scc0 {L[1]}
        ''')
        self.touch(pWG, 640 * 1728 * 2, 's55', stride=3456, lanes=40)
        k(f's_branch {L[2]}\n{L[1]}:\ns_cmp_eq_u32 {sr(sW)}, 3\ns_cbranch_scc0 {L[2]}')
        self.touch(pWU, 640 * 1728 * 2, 's55', stride=3456, lanes=40)
        k(f'{L[2]}:')

    def ln1(self):
        k = self.k
        X = [92, 93, 94, 95, 91]
        k('v_mov_b32 v10, v91')
        self.stamp('xld')
        if self.o.get('sa_pos', 0) == 0:
            self.stage_a()
        k(f'''
        s_mov_b32 s55, 0x3f803f80
        v_mov_b32 v10, 0
        v_mov_b32 v11, 0
        ''')
        for j in range(5):
            k(f'v_dot2_f32_bf16 v10, v{X[j]}, s55, v10')
            k(f'v_dot2_f32_bf16 v11, v{X[j]}, v{X[j]}, v11')
        k(f'''
        v_permlane32_swap_b32 v10, v11
        v_add_f32 v10, v10, v11
        ''')
        for n in (8, 4, 2, 1):
            k(f'v_add_f32_dpp v10, v10, v10 row_ror:{n} row_mask:0xf bank_mask:0xf')
        k(f'''
        v_add_f32_dpp v10, v10, v10 row_bcast:15 row_mask:0xa bank_mask:0xf
        v_mov_b32 v13, {f32(1.0 / 640)}
        v_readlane_b32 s55, v10, 31
        v_readlane_b32 s56, v10, 63
        s_lshl_b32 s57, {sr(sW)}, 2
        v_mov_b32 v14, s57
        v_mul_f32 v10, s55, v13
        v_mul_f32 v11, s56, v13
        v_fma_f32 v11, -v10, v10, v11
        v_max_f32 v11, 0, v11
        v_cvt_pk_bf16_f32 v10, v10, v11
        v_and_b32 v11, 0xffff0000, v10
        v_lshlrev_b32 v10, 16, v10
        v_add_f32 v11, {f32(1e-5)}, v11
        v_cvt_pk_bf16_f32 v11, v11, v11
        v_lshlrev_b32 v11, 16, v11
        v_sqrt_f32 v11, v11
        v_lshlrev_b32 v15, 16, v92
        v_cvt_pk_bf16_f32 v13, v10, v11
        v_and_b32 v11, 0xffff0000, v13
        v_rcp_f32 v11, v11
        ''')
        k(f'ds_write_b32 v14, v13 offset:{TR + TRM}', tag='trw')
        k('v_mul_f32 v10, -v10, v11')
        for j in range(5):
            k(f'''
            v_lshlrev_b32 v13, 16, v{X[j]}
            v_and_b32 v14, 0xffff0000, v{X[j]}
            v_fma_f32 v13, v13, v11, v10
            v_fma_f32 v14, v14, v11, v10
            v_cvt_pk_bf16_f32 v{X[j]}, v13, v14
            ''')
            if j == 3:
                k('ds_write_b128 v6, v[92:95]', tag='trw')
        k('ds_write_b32 v7, v91 offset:1024', tag='trw')
        k.wait('trw')
        k('s_barrier')
        self.stamp('trb')
        if self.o.get('sa_pos', 0) == 1:
            self.stage_a()
        Ls = k.label('nost')
        k(f'''
        s_cmp_lt_u32 {sr(sW)}, 6
        s_cbranch_scc1 {Ls}
        ''')
        for i in range(5):
            k(f'ds_read_b64_tr_b16 v[{28 + 4 * i}:{29 + 4 * i}], v4 offset:{128 * i}')
            k(f'ds_read_b64_tr_b16 v[{30 + 4 * i}:{31 + 4 * i}], v4 offset:{128 * i + 4 * TRR}')
        k(f'''
        v_lshlrev_b32 v72, 4, v0
        ds_read_b128 v[68:71], v72 offset:{TR + TRM}
        s_mov_b32 s58, {XN}
        s_mov_b32 s59, {XN + 4096}
        ''')
        for i in range(5):
            k(f'buffer_store_dwordx4 v[{28 + 4 * i}:{31 + 4 * i}], v3, {P4(rWS)}, s{58 + i // 4} offen offset:{1024 * (i % 4)} sc1', tag='xnst')
        L6, L7, L8 = k.label('w6'), k.label('w7'), k.label('w8')
        k(f'''
        s_cmp_eq_u32 {sr(sW)}, 6
        s_cbranch_scc1 {L6}
        v_mov_b32 v68, 0
        v_mov_b32 v69, 0
        v_mov_b32 v70, 0
        v_mov_b32 v71, 0
        s_cmp_ge_u32 s2, 40
        s_cbranch_scc1 {L8}
        s_add_u32 s56, s2, 10
        s_cmp_lt_u32 s2, 30
        s_cselect_b32 s56, s2, s56
        s_lshl_b32 s56, s56, 8
        s_lshl_b32 s57, s2, 8
        s_add_u32 s56, s56, {MOD}
        s_add_u32 s57, s57, {MODP}
        s_mov_b64 exec, 0xffff
        buffer_store_dwordx4 v[68:71], v72, {P4(rWS)}, s56 offen sc1
        buffer_store_dwordx4 v[68:71], v72, {P4(rWS)}, s57 offen sc1
        {L8}:
        s_mul_i32 s56, s2, 224
        s_add_u32 s56, s56, {ZBEG}
        s_mov_b64 exec, 0x3fff
        s_branch {L7}
        {L6}:
        s_lshl_b32 s56, s2, 5
        s_add_u32 s56, s56, {MS}
        s_mov_b64 exec, 3
        {L7}:
        ''')
        k(f'buffer_store_dwordx4 v[68:71], v72, {P4(rWS)}, s56 offen sc1', tag='xnst')
        k(f'''
        s_mov_b64 exec, -1
        s_lshr_b32 s56, s2, 3
        s_lshl_b32 s56, s56, 7
        s_and_b32 s57, s2, 7
        s_lshl_b32 s57, s57, 3
        s_add_u32 s56, s56, s57
        s_and_b32 s57, {sr(sW)}, 1
        s_lshl_b32 s57, s57, 2
        s_add_u32 s56, s56, s57
        v_lshl_add_u32 v16, v0, 12, s56
        v_mov_b32 v17, {sr(sTAG)}
        s_mov_b64 exec, 0xff
        ''')
        k.wait('xnst')
        k(f'''
        global_store_dword v16, v17, {P2(pWS)} offset:{SYNC1} sc1
        s_mov_b64 exec, -1
        ''')
        self.stamp('A')
        k(f'''
        s_cmp_lt_u32 s2, 40
        s_cbranch_scc1 {Ls}
        s_sub_u32 {sr(sWI)}, {sr(sW)}, 1
        ''')
        nb_ = self.o.get('wb', 10)
        self.wunits(nb_, 5 + 2 * nb_, 2)
        pass
        k(f'{Ls}:')

    def wunits(self, n, end, step):
        k = self.k
        L = k.label('wsd')
        for i in range(n):
            k(f'''
            s_cmp_ge_u32 {sr(sWI)}, {end}
            s_cbranch_scc1 {L}
            s_add_u32 s55, {sr(sWI)}, {sr(sWR)}
            s_sub_u32 s56, s55, 40
            s_cselect_b32 s55, s55, s56
            s_lshl_b32 s56, s55, 11
            s_add_u32 m0, s56, {STG}
            s_mul_i32 s55, s55, {8 * 3456}
            s_add_u32 s55, s55, {sr(sWO)}
            s_add_u32 {sr(sWI)}, {sr(sWI)}, {step}
            ''')
            k(f'buffer_load_dwordx4 v26, {P4(rA)}, s55 offen lds', tag='wst')
            k(f's_add_u32 m0, s56, {STG + 1024}')
            k(f'buffer_load_dwordx4 v27, {P4(rB)}, s55 offen lds', tag='wst')
        k(f'{L}:')

    def wread_addr(self, va):
        self.k(f'''
        v_bfe_u32 {vr(va + 1)}, v0, 3, 2
        s_and_b32 s55, {sr(sW)}, 3
        v_xor_b32 {vr(va + 1)}, s55, {vr(va + 1)}
        v_lshrrev_b32 {vr(va)}, 4, v0
        v_lshlrev_b32 {vr(va)}, 10, {vr(va)}
        v_lshl_add_u32 {vr(va)}, {vr(va + 1)}, 5, {vr(va)}
        v_bfe_u32 {vr(va + 1)}, v0, 2, 2
        v_lshl_add_u32 {vr(va)}, {vr(va + 1)}, 7, {vr(va)}
        v_and_b32 {vr(va + 1)}, 3, v0
        v_lshl_add_u32 {vr(va)}, {vr(va + 1)}, 3, {vr(va)}
        v_add_u32 {vr(va)}, {STG}, {vr(va)}
        v_add_u32 {vr(va + 1)}, {10 * 4096}, {vr(va)}
        ''')

    def wstage_read(self, rnd, va):
        k = self.k
        for s in range(20):
            r = WF + 4 * (20 * rnd + s)
            a = va if s < 10 else va + 1
            off = (s % 10) * 4096
            k(f'ds_read_b64_tr_b16 {vr(r, 2)}, {vr(a)} offset:{off}', tag='wrd')
            k(f'ds_read_b64_tr_b16 {vr(r + 2, 2)}, {vr(a)} offset:{off + 512}', tag='wrd')

    def cmul(self, d, a, b):
        self.k(f'v_pk_mul_f32 {vr(d, 2)}, {vr(a, 2)}, {vr(b, 2)} op_sel:[0,0] op_sel_hi:[0,1]')
        self.k(f'v_pk_fma_f32 {vr(d, 2)}, {vr(a, 2)}, {vr(b, 2)}, {vr(d, 2)} op_sel:[1,1,0] op_sel_hi:[1,0,1] neg_lo:[1,0,0]')

    def zpow(self, d, e, a2, fr, t):
        k = self.k
        k(f'''
        v_mul_f32 {vr(t)}, {f32(e)}, {vr(a2)}
        v_mul_f32 {vr(t + 1)}, {f32(e)}, {vr(fr)}
        v_exp_f32 {vr(t)}, {vr(t)}
        v_fract_f32 {vr(t + 1)}, {vr(t + 1)}
        v_cos_f32 {vr(d)}, {vr(t + 1)}
        v_sin_f32 {vr(d + 1)}, {vr(t + 1)}
        v_mul_f32 {vr(d)}, {vr(d)}, {vr(t)}
        v_mul_f32 {vr(d + 1)}, {vr(d + 1)}, {vr(t)}
        ''')

    def kgen(self):
        k = self.k
        Lskip = k.label('nokg')
        k(f's_cmp_ge_u32 {sr(sW)}, 6\ns_cbranch_scc1 {Lskip}')
        A2, FR, T = 28, 29, 30
        Z = {e: 32 + 2 * e for e in range(1, 8)}
        Z8, Z128, QA, QB, PA, PB, PC = 48, 50, 52, 54, 56, 58, 60
        CV = 62
        QF, PF, AC = 64, 176, 192
        RA = 80
        k(f'''
        v_lshlrev_b32 v24, 16, v24
        v_lshlrev_b32 v20, 16, v20
        v_mul_f32 v24, {f32(LOG2E)}, v24
        v_mul_f32 v20, {f32(LOG2E)}, v20
        v_exp_f32 v24, v24
        v_exp_f32 v20, v20
        v_lshlrev_b32 v21, 16, v21
        v_cvt_pk_bf16_f32 v20, v20, v24
        v_and_b32 v24, 0xffff0000, v20
        v_lshlrev_b32 v20, 16, v20
        v_mul_f32 {vr(A2)}, v20, v24
        v_mul_f32 {vr(FR)}, v21, v24
        v_mul_f32 {vr(A2)}, {f32(-LOG2E)}, {vr(A2)}
        v_mul_f32 {vr(FR)}, 0.15915494, {vr(FR)}
        v_add_f32 v24, v24, v24
        v_lshlrev_b32 v22, 16, v22
        v_lshlrev_b32 v23, 16, v23
        v_mul_f32 {vr(QA)}, v22, v24
        v_mul_f32 {vr(QA + 1)}, v23, v24
        s_mul_i32 s60, {sr(sW)}, {KGS}
        s_mov_b32 m0, s60
        v_and_b32 {vr(RA)}, 15, v0
        v_mul_u32_u24 {vr(RA)}, 288, {vr(RA)}
        v_lshrrev_b32 {vr(RA + 1)}, 4, v0
        v_lshl_add_u32 {vr(RA)}, {vr(RA + 1)}, 4, {vr(RA)}
        v_add_u32 {vr(RA)}, s60, {vr(RA)}
        ''')
        self.zpow(Z8, 8.0, A2, FR, T)
        self.zpow(Z[1], 1.0, A2, FR, T)
        self.zpow(Z128, 128.0, A2, FR, T)
        flip = [0]

        def put(row, r, neg=False):
            c = CV + flip[0]
            flip[0] ^= 1
            k(f'v_cvt_pk_bf16_f32 {vr(c)}, {vr(r)}, {"-" if neg else ""}{vr(r + 1)}')
            k(f'ds_write_addtid_b32 {vr(c)} offset:{288 * row}')

        def frags(dst):
            for s in range(4):
                k(f'ds_read_b128 {vr(dst + 4 * s, 4)}, {vr(RA)} offset:{64 * s}')

        def mm(acc):
            for s in range(4):
                c = '0' if s == 0 else vr(acc, 4)
                k(f'v_mfma_f32_16x16x32_bf16 {vr(acc, 4)}, {vr(PF + 4 * s, 4)}, {vr(QF + 4 * s, 4)}, {c}')

        small = [(2, 1, 1), (3, 2, 1), (4, 2, 2), (5, 4, 1), (6, 4, 2), (7, 4, 3)]
        cur, nxt = QA, QB
        for b in range(16):
            if b < 15:
                self.cmul(nxt, cur, Z8)
            put(b, cur, neg=True)
            if b < len(small):
                e, x, y = small[b]
                self.cmul(Z[e], Z[x], Z[y])
            cur, nxt = nxt, cur
        frags(QF)
        self.stage_b_touch()
        k(f'v_mov_b32 {vr(CV)}, 0x3f80')
        k(f'ds_write_addtid_b32 {vr(CV)} offset:0')
        flip[0] = 1
        put(8, Z128)
        cur, nxt = PA, PB
        for e in range(1, 8):
            self.cmul(cur, Z[e], Z128)
            put(e, Z[e])
            put(8 + e, cur)
            cur, nxt = nxt, cur
        frags(PF)
        self.cmul(QA, Z128, Z128)
        self.cmul(QB, QA, Z128)
        mm(AC)
        put(0, QA)
        put(4, QB)
        for e in (1, 2, 3):
            self.cmul(PA, QA, Z[2 * e])
            self.cmul(PB, QB, Z[2 * e])
            put(e, PA)
            put(4 + e, PB)
        cur, nxt = QB, QA
        for a in range(4):
            self.cmul(nxt, cur, Z128)
            self.cmul(PA, nxt, Z[4])
            put(8 + 2 * a, nxt)
            put(9 + 2 * a, PA)
            cur, nxt = nxt, cur
        frags(PF)
        self.cmul(nxt, cur, Z128)
        cur, nxt = nxt, cur
        mm(AC + 4)
        for a in range(9):
            if a < 8:
                self.cmul(nxt, cur, Z128)
            put(a, cur)
            cur, nxt = nxt, cur
        frags(PF)
        k(f'''
        v_lshrrev_b32 {vr(RA + 1)}, 4, v0
        v_mul_u32_u24 {vr(RA + 1)}, 320, {vr(RA + 1)}
        v_and_b32 {vr(RA + 2)}, 15, v0
        v_lshl_add_u32 {vr(RA + 1)}, {vr(RA + 2)}, 2, {vr(RA + 1)}
        s_mul_i32 s55, {sr(sW)}, {KCS}
        s_add_u32 s55, s55, {KC}
        v_add_u32 {vr(RA + 1)}, s55, {vr(RA + 1)}
        ''')
        for Tt in range(2):
            for i in range(4):
                k(f'ds_write_b32 {vr(RA + 1)}, {vr(AC + 4 * Tt + i)} offset:{(16 * Tt + i) * 80}', tag='kcw')
        mm(AC + 8)
        for i in range(4):
            k(f'ds_write_b32 {vr(RA + 1)}, {vr(AC + 8 + i)} offset:{(32 + i) * 80}', tag='kcw')
        k(f'{Lskip}:')

    def kexpand1(self):
        k = self.k
        V = lambda ch, j: 36 + 4 * ch + j
        PK, SC = 48, 54
        k(f'''
        v_lshlrev_b32 v25, 16, v25
        v_cmp_eq_u32 s[58:59], 0, v208
        v_readlane_b32 s62, v25, 0
        v_readlane_b32 s63, v25, 1
        v_readlane_b32 s64, v25, 2
        v_mov_b32 v64, 0
        v_mov_b32 v65, 0
        v_mov_b32 v66, 0
        v_mov_b32 v67, 0
        v_lshlrev_b32 v35, 4, v0
        ''')
        for ch in range(3):
            k(f'v_mov_b32 {vr(SC + ch)}, s{62 + ch}')
            k(f'v_cndmask_b32 {vr(SC + ch)}, 0, {vr(SC + ch)}, s[58:59]')
        k.wait('kcw')
        k('s_barrier')
        self.stamp('kcw')
        for ch in range(3):
            for j in range(4):
                k(f'ds_read2st64_b32 {vr(176 + 8 * ch + 2 * j, 2)}, {vr(GA + j)} offset0:{30 * ch} offset1:{30 * ch + 15}')
        L = self.only_wave(7)
        k(f's_mov_b32 exec_lo, -1\ns_mov_b32 exec_hi, 0x3ff')
        k(f'ds_write_b128 v35, v[64:67] offset:{XNL0 - 672}', tag='kaw')
        k(f's_mov_b64 exec, 3')
        for ch in range(3):
            k(f'ds_write_b128 v35, v[64:67] offset:{KA + ch * KAS}', tag='kaw')
        k(f's_mov_b64 exec, -1')
        k(f'{L}:')
        k(f's_add_u32 {sr(sWI)}, {sr(sW)}, {5 + 2 * self.o.get("wb", 10)}')
        self.wunits((35 - 2 * self.o.get('wb', 10) + 7) // 8, 40, 8)
        for ch in range(3):
            for j in range(4):
                k(f'v_add_f32 {vr(V(ch, j))}, {vr(176 + 8 * ch + 2 * j)}, {vr(177 + 8 * ch + 2 * j)}')
            k(f'v_add_f32 {vr(V(ch, 0))}, {vr(V(ch, 0))}, {vr(SC + ch)}')
        for ch in range(3):
            k(f'v_cvt_pk_bf16_f32 {vr(PK + 2 * ch)}, {vr(V(ch, 0))}, {vr(V(ch, 1))}')
            k(f'v_cvt_pk_bf16_f32 {vr(PK + 2 * ch + 1)}, {vr(V(ch, 2))}, {vr(V(ch, 3))}')
            k(f'ds_write_b64 v208, {vr(PK + 2 * ch, 2)} offset:{KA + ch * KAS + 32}', tag='kaw')
        for j in range(1, 4):
            for ch in range(3):
                k(f'v_add_f32 {vr(V(ch, j))}, {vr(V(ch, j))}, {vr(V(ch, j - 1))}')
        for n in (1, 2, 4, 8):
            for ch in range(3):
                src = V(ch, 3) if n == 1 else SC + ch
                k(f'v_add_f32_dpp {vr(SC + ch)}, {vr(src)}, {vr(src)} row_shr:{n} row_mask:0xf bank_mask:0xf bound_ctrl:0')
        for ch in range(3):
            k(f'v_add_f32_dpp {vr(SC + ch)}, {vr(SC + ch)}, {vr(SC + ch)} row_bcast:15 row_mask:0xa bank_mask:0xf')
        for ch in range(3):
            k(f'v_add_f32_dpp {vr(SC + ch)}, {vr(SC + ch)}, {vr(SC + ch)} row_bcast:31 row_mask:0xc bank_mask:0xf')
        k(f'''
        s_lshl_b32 s55, {sr(sW)}, 2
        s_add_u32 s55, s55, {WT}
        v_mov_b32 v33, s55
        s_mov_b32 exec_lo, 0
        s_brev_b32 exec_hi, 1
        ''')
        for ch in range(3):
            k(f'ds_write_b32 v33, {vr(SC + ch)} offset:{32 * ch}', tag='kaw')
        k('s_mov_b64 exec, -1')

    def kexpand2(self):
        k = self.k
        V = lambda ch, j: 36 + 4 * ch + j
        SC = 54
        k(f'''
        v_min_u32 v33, 23, v0
        v_lshlrev_b32 v33, 2, v33
        v_add_u32 v33, {WT}, v33
        ds_read_b32 v34, v33
        v_and_b32 v33, 7, v0
        v_cmp_gt_u32 vcc, {sr(sW)}, v33
        ''')
        for ch in range(3):
            k(f'v_sub_f32 {vr(SC + ch)}, {vr(SC + ch)}, {vr(V(ch, 3))}')
        k('v_cndmask_b32 v34, 0, v34, vcc')
        for n in (1, 2, 4):
            k(f'v_add_f32_dpp v34, v34, v34 row_shr:{n} row_mask:0xf bank_mask:0xf bound_ctrl:0')
        k(f'''
        v_readlane_b32 s62, v34, 7
        v_readlane_b32 s63, v34, 15
        v_readlane_b32 s64, v34, 23
        ''')
        for ch in range(3):
            k(f'v_add_f32 {vr(SC + ch)}, s{62 + ch}, {vr(SC + ch)}')
            for j in range(4):
                k(f'v_add_f32 {vr(V(ch, j))}, {vr(V(ch, j))}, {vr(SC + ch)}')
            k(f'ds_write_b128 v209, {vr(V(ch, 0), 4)} offset:{SA + ch * SAS}', tag='saw')

    def conv_loads(self):
        k = self.k
        k(f'''
        s_lshl_b32 s60, {sr(sW)}, 10
        s_mov_b32 s57, {XN}
        s_mov_b32 s58, {MS}
        ''')
        L = self.only_wave(0)
        self.poll_sync1(215, 58)
        k(f'{L}:')
        k.wait('kaw', 'wst')
        k('s_barrier')
        self.stamp('sync1')
        k(f's_add_u32 m0, s60, {XNL0}')
        k(f'buffer_load_dwordx4 v210, {P4(rWS)}, s57 offen sc1 lds', tag='xnl')
        L = k.label('x2')
        k(f's_cmp_ge_u32 {sr(sW)}, 4\ns_cbranch_scc1 {L}\ns_add_u32 m0, s60, {XNL0 + 8192}')
        k(f'buffer_load_dwordx4 v211, {P4(rWS)}, s57 offen sc1 lds', tag='xnl')
        k(f'{L}:\ns_add_u32 m0, s60, {MSL}')
        k(f'buffer_load_dwordx4 v212, {P4(rWS)}, s58 offen sc1 lds', tag='xnl')

    def conv_consts(self):
        k = self.k
        self.poll(88, 17, 1, preissued=True)
        k(f'''
        v_and_b32 v17, 0xffff0000, v17
        v_add_f32 v16, 1.0, v17
        v_cvt_pk_bf16_f32 v16, v16, v16
        v_lshlrev_b32 v16, 16, v16
        v_mov_b32_dpp v18, v17 row_shr:6 row_mask:0xf bank_mask:0xf bound_ctrl:0
        v_mov_b32_dpp v19, v16 row_shr:3 row_mask:0xf bank_mask:0xf bound_ctrl:0
        v_mul_f32 v18, v18, v17
        v_mul_f32 v19, v19, v17
        ''')
        for ch in range(3):
            k(f'v_readlane_b32 {sr(sCH + 3 * ch)}, v19, {6 + ch}')
            k(f'v_readlane_b32 {sr(sCH + 3 * ch + 1)}, v18, {6 + ch}')
            k(f'v_readlane_b32 {sr(sCH + 3 * ch + 2)}, v16, {9 + ch}')

    def conv(self):
        k = self.k
        H, KF, ACC, AX = 32, 64, 176, 208
        vHB, vKB, vH, vK, vXB, vSB, vO = 1, 2, 3, 4, 5, 6, 7
        XV, SV, TT, MV = 212, 216, 224, 244
        sL, sG, sC, sN, sPEND = 65, 66, 67, 68, 69
        k(f'''
        s_lshl_b32 s55, {sr(sW)}, 2
        s_lshr_b32 s55, 0x56437210, s55
        s_and_b32 {sr(sWI)}, s55, 15
        s_cmp_ge_u32 {sr(sWI)}, 6
        s_cselect_b32 {sr(sWI)}, 40, {sr(sWI)}
        s_mov_b32 {sr(sWO)}, {320 * 3456}
        s_add_u32 s94, s{pWS}, {MOD + 4 * 2560}
        s_addc_u32 s95, s{pWS + 1}, 0
        s_add_u32 s96, s{pWS}, {MODP}
        s_addc_u32 s97, s{pWS + 1}, 0
        s_add_u32 s98, s{pWS}, {MODP + 5120}
        s_addc_u32 s99, s{pWS + 1}, 0
        ''')
        U = lambda G, ch: 4 * ch + G + 1
        lists = [[U(3, 0)], [U(3, 1)], [U(3, 2)], [U(0, 2), U(2, 2)], [U(2, 0)], [U(2, 1)],
                 [U(0, 0), U(0, 1), U(1, 0)], [U(1, 1), U(1, 2)]]
        enc = [sum(u << (4 * i) for i, u in enumerate(l)) for l in lists]
        for w in range(8):
            k(f's_cmp_eq_u32 {sr(sW)}, {w}\ns_cmov_b32 {sr(sL)}, {enc[w]}' if w else f's_mov_b32 {sr(sL)}, {enc[0]}')
        k(f's_mov_b32 {sr(sPEND)}, 0\ns_mov_b32 {sr(sFLAG)}, 0')
        if self.o.get('prio', True):
            L = k.label('np')
            k(f's_and_b32 s55, {sr(sL)}, 3\ns_cmp_lg_u32 s55, 1\ns_cbranch_scc1 {L}\ns_setprio 2\n{L}:')
        k.wait('xnl', 'saw', 'wrd')
        k('s_barrier')
        self.stamp('xnl')
        Lu, Lloop, Ltail, Ldone = k.label('unit'), k.label('cl'), k.label('ct'), k.label('cdone')
        k(f'''
        {Lu}:
        s_and_b32 s55, {sr(sL)}, 15
        s_sub_u32 s55, s55, 1
        s_and_b32 {sr(sG)}, s55, 3
        s_lshr_b32 {sr(sC)}, s55, 2
        s_lshr_b32 {sr(sL)}, {sr(sL)}, 4
        s_mul_i32 s55, {sr(sG)}, 3072
        s_lshl_b32 s56, {sr(sC)}, 4
        s_add_u32 s55, s55, s56
        v_add_u32 {vr(vH)}, s55, {vr(vHB)}
        v_add_u32 v8, s55, {vr(vXB)}
        s_mul_i32 s56, {sr(sC)}, {KAS}
        v_add_u32 {vr(vK)}, s56, {vr(vKB)}
        ''')
        hs = lambda m: H + 4 * (m % 8)
        ks = lambda q: KF + 4 * (q % 4)

        def ldh(slot_m, base, off):
            k(f'ds_read_b64_tr_b16 {vr(hs(slot_m), 2)}, {vr(base)} offset:{off}')
            k(f'ds_read_b64_tr_b16 {vr(hs(slot_m) + 2, 2)}, {vr(base)} offset:{off + 96}')

        def ldk(q, off):
            k(f'ds_read_b64_tr_b16 {vr(ks(q), 2)}, {vr(vK)} offset:{off + 32}')
            k(f'ds_read_b64_tr_b16 {vr(ks(q) + 2, 2)}, {vr(vK)} offset:{off}')

        def mf(acc, m, q, zero=False):
            c = '0' if zero else vr(acc, 4)
            k(f'v_mfma_f32_16x16x32_bf16 {vr(acc, 4)}, {vr(hs(m), 4)}, {vr(ks(q), 4)}, {c}')

        ldk(0, 0)
        for i in (7, 6, 5, 4, 3, 2, 1, 0):
            ldh(i, vH, 384 * i)
        ldk(1, 256)
        k(f'''
        v_subrev_u32 v11, 768, {vr(vH)}
        v_subrev_u32 {vr(vH)}, 3840, {vr(vH)}
        s_lshl_b32 s55, {sr(sC)}, 13
        s_lshl_b32 s56, {sr(sG)}, 11
        s_add_u32 s55, s55, s56
        s_add_u32 s55, s55, {SA}
        v_lshl_add_u32 {vr(vSB)}, v0, 2, s55
        s_add_u32 s56, s56, {MSL}
        v_lshl_add_u32 v22, v0, 2, s56
        v_mov_b32 {vr(AX)}, 0
        v_mov_b32 {vr(AX + 1)}, 0
        v_mov_b32 {vr(AX + 2)}, 0
        v_mov_b32 {vr(AX + 3)}, 0
        s_mov_b32 {sr(sN)}, {sr(sG)}
        ''')
        mf(ACC + 28, 7, 0, True)
        mf(ACC + 24, 6, 0, True)
        ldh(6, 11, 0)
        ldh(7, 11, 384)
        for i in (5, 4, 3, 2, 1, 0):
            mf(ACC + 4 * i, i, 0, True)
        self.wunits(3, 40, 6)
        k(f's_cmp_eq_u32 {sr(sN)}, 0\ns_cbranch_scc1 {Ltail}')
        k(f'{Lloop}:')
        for u in range(1, 5):
            mf(ACC + 28, 7 - 2 * u, u)
            mf(ACC + 24, 6 - 2 * u, u)
            ldh(6 - 2 * u, vH, 384 * (8 - 2 * u))
            ldh(7 - 2 * u, vH, 384 * (9 - 2 * u))
            ldk(u + 1, 256 * (u + 1))
            for i in (5, 4, 3, 2, 1, 0):
                mf(ACC + 4 * i, i - 2 * u, u)
            mf(AX, 1 - 2 * u, u - 1)
        Lnp = k.label('nopend')
        self.wunits(2, 40, 6)
        k(f'''
        v_subrev_u32 {vr(vH)}, 3072, {vr(vH)}
        v_add_u32 {vr(vK)}, 1024, {vr(vK)}
        s_cmp_eq_u32 {sr(sPEND)}, 0
        s_cbranch_scc1 {Lnp}
        s_mov_b32 {sr(sPEND)}, 0
        s_waitcnt vmcnt(0)
        s_lshl_b32 s55, {sr(sI)}, 1
        s_and_b32 s56, {sr(sW)}, 1
        s_add_u32 s55, s55, s56
        s_and_b32 s55, s55, 15
        ''')
        self.arrive(SYNC2A, 16, 's55', 9)
        self.stamp('pub0')
        k(f'''
        {Lnp}:
        s_sub_u32 {sr(sN)}, {sr(sN)}, 1
        s_cmp_lg_u32 {sr(sN)}, 0
        s_cbranch_scc1 {Lloop}
        {Ltail}:
        global_load_dword v17, v88, {P2(pWS)} sc1
        global_load_dwordx2 v[14:15], v90, s[94:95] sc1
        global_load_dwordx2 v[12:13], v90, s[96:97] sc1
        global_load_dwordx2 v[24:25], v90, s[96:97] offset:2560 sc1
        global_load_dwordx2 v[28:29], v90, s[98:99] sc1
        global_load_dwordx2 v[30:31], v90, s[98:99] offset:2560 sc1
        ''')
        ldk(2, 512)
        for i in (7, 6, 5, 4, 3, 2):
            mf(ACC + 4 * i, i - 2, 1)
        ldk(3, 768)
        k(f'ds_read_b64_tr_b16 {vr(XV, 2)}, v8')
        k(f'ds_read_b64_tr_b16 {vr(XV + 2, 2)}, v8 offset:1536')
        for i in range(4):
            k(f'ds_read2st64_b32 {vr(SV + 2 * i, 2)}, {vr(vSB)} offset0:{2 * i} offset1:{2 * i + 1}')
        for i in range(4):
            k(f'ds_read2st64_b32 {vr(MV + 2 * i, 2)}, v22 offset0:{2 * i} offset1:{2 * i + 1}')
        for i in (7, 6, 5, 4):
            mf(ACC + 4 * i, i - 4, 2)
        for i in (7, 6):
            mf(ACC + 4 * i, i - 6, 3)
        self.stamp('c_mm')
        Lc = k.label('hc')
        k(f's_cmp_lg_u32 {sr(sFLAG)}, 0\ns_cbranch_scc1 {Lc}')
        self.conv_consts()
        k(f'{Lc}:')
        self.stamp('c_cs')
        k(f'''
        s_mov_b32 {sr(sFLAG)}, 1
        s_cmp_eq_u32 {sr(sC)}, 1
        s_cselect_b32 s55, {sr(sCH + 3)}, {sr(sCH)}
        s_cselect_b32 s56, {sr(sCH + 4)}, {sr(sCH + 1)}
        s_cselect_b32 s57, {sr(sCH + 5)}, {sr(sCH + 2)}
        s_cmp_eq_u32 {sr(sC)}, 2
        s_cselect_b32 s55, {sr(sCH + 6)}, s55
        s_cselect_b32 s56, {sr(sCH + 7)}, s56
        s_cselect_b32 s57, {sr(sCH + 8)}, s57
        s_add_u32 s58, {sr(sD0)}, {sr(sC)}
        s_lshl_b32 s58, s58, 12
        s_lshl_b32 s59, {sr(sG)}, 10
        s_add_u32 s58, s58, s59
        s_add_u32 s59, s58, {X1S}
        s_add_u32 s58, s58, {X1T}
        v_lshlrev_b32 {vr(vO)}, 4, v0
        ''')
        SH = 'wave_shr:1 row_mask:0xf bank_mask:0xf'
        RO = 'wave_ror:1 row_mask:0xf bank_mask:0xf'
        a = lambda i, e: (AX if i < 0 else ACC + 4 * i) + e
        t2 = lambda i: TT + 1 + i
        t1 = lambda i: TT + 11 + i
        k(f'v_add_f32_dpp {vr(t2(-1))}, {vr(a(-1, 3))}, {vr(a(-1, 2))} {SH} bound_ctrl:0')
        for i in range(8):
            k(f'v_add_f32_dpp {vr(t2(i))}, {vr(a(i - 1, 3))}, {vr(a(i, 2))} {RO}')
        for i in range(8):
            k(f'v_add_f32_dpp {vr(t2(i))}, {vr(a(i, 3))}, {vr(a(i, 2))} {SH}')
        k(f'v_add_f32_dpp {vr(t1(-1))}, {vr(t2(-1))}, {vr(a(-1, 1))} {SH} bound_ctrl:0')
        for i in range(8):
            k(f'v_add_f32_dpp {vr(t1(i))}, {vr(t2(i - 1))}, {vr(a(i, 1))} {RO}')
        for i in range(8):
            k(f'v_add_f32_dpp {vr(t1(i))}, {vr(t2(i))}, {vr(a(i, 1))} {SH}')
        for i in range(8):
            k(f'v_add_f32_dpp {vr(a(i, 3))}, {vr(t1(i - 1))}, {vr(a(i, 0))} {RO}')
        for i in range(8):
            k(f'v_add_f32_dpp {vr(a(i, 3))}, {vr(t1(i))}, {vr(a(i, 0))} {SH}')
        for i in range(8):
            xr = XV + i // 2
            if i % 2 == 0:
                k(f'v_lshlrev_b32 {vr(t1(i))}, 16, {vr(xr)}')
            else:
                k(f'v_and_b32 {vr(t1(i))}, 0xffff0000, {vr(xr)}')
            k(f'v_lshlrev_b32 {vr(t2(i))}, 16, {vr(MV + i)}')
            k(f'v_and_b32 {vr(MV + i)}, 0xffff0000, {vr(MV + i)}')
            k(f'v_fmac_f32 {vr(t2(i))}, s56, {vr(SV + i)}')
            k(f'v_fmac_f32 {vr(t2(i))}, {vr(t1(i))}, {vr(MV + i)}')
        for i in range(8):
            k(f'v_fmac_f32 {vr(t2(i))}, s55, {vr(a(i, 3))}')
        for i in range(4):
            k(f'v_cvt_pk_bf16_f32 {vr(XV + i)}, {vr(t2(2 * i))}, {vr(t2(2 * i + 1))}')
        for i in range(8):
            k(f'v_mul_f32 {vr(t2(i))}, s57, {vr(t2(i))}')
        k(f'buffer_store_dwordx4 {vr(XV, 4)}, {vr(vO)}, {P4(rWS)}, s58 offen sc1', tag='x1st')
        for i in range(4):
            k(f'v_cvt_pk_bf16_f32 {vr(SV + i)}, {vr(t2(2 * i))}, {vr(t2(2 * i + 1))}')
        k(f'buffer_store_dwordx4 {vr(SV, 4)}, {vr(vO)}, {P4(rWS)}, s59 offen sc1', tag='x1st')
        Ln = k.label('ng0')
        k(f'''
        s_cmp_lg_u32 {sr(sG)}, 0
        s_cbranch_scc1 {Ln}
        s_mov_b32 {sr(sPEND)}, 1
        s_and_b32 s55, {sr(sL)}, 3
        s_cmp_eq_u32 s55, 1
        s_cbranch_scc1 {Ln}
        s_setprio 0
        {Ln}:
        s_and_b32 s55, {sr(sL)}, 15
        s_cmp_lg_u32 s55, 0
        s_cbranch_scc1 {Lu}
        ''')
        self.stamp('conv')

    def window2(self):
        k = self.k
        AC, TF, CB = 32, 16, 92
        Lr, Ld = k.label('tb'), k.label('tbd')
        chk = f'''
        v_min_u32 v16, v12, v13
        v_min3_u32 v16, v16, v14, v15
        v_min3_u32 v16, v16, v24, v25
        v_min3_u32 v16, v16, v28, v29
        v_min3_u32 v16, v16, v30, v31
        v_cmp_eq_u32 vcc, 0, v16
        s_cbranch_vccz {Ld}
        '''
        k(chk)
        k(f'''
        {Lr}:
        global_load_dwordx2 v[14:15], v90, s[94:95] sc1
        global_load_dwordx2 v[12:13], v90, s[96:97] sc1
        global_load_dwordx2 v[24:25], v90, s[96:97] offset:2560 sc1
        global_load_dwordx2 v[28:29], v90, s[98:99] sc1
        global_load_dwordx2 v[30:31], v90, s[98:99] offset:2560 sc1
        ''')
        k(chk)
        k(f'''
        s_sleep {self.o.get('sleep', 2)}
        s_add_u32 {sr(sSPIN)}, {sr(sSPIN)}, 1
        s_cmp_lt_u32 {sr(sSPIN)}, {SPIN_MAX}
        s_cbranch_scc1 {Lr}
        {Ld}:
        v_and_b32 v14, 0xffff0000, v14
        v_and_b32 v15, 0xffff0000, v15
        v_add_f32 v14, 1.0, v14
        v_add_f32 v15, 1.0, v15
        v_add_f32 v12, v12, v24
        v_add_f32 v13, v13, v25
        v_add_f32 v28, v28, v30
        v_add_f32 v29, v29, v31
        v_add_f32 v12, v12, v28
        v_add_f32 v13, v13, v29
        v_cvt_pk_bf16_f32 v14, v14, v15
        v_cvt_pk_bf16_f32 v12, v12, v13
        v_lshlrev_b32 v20, 2, v89
        v_add_u32 v20, {TAB}, v20
        ''')
        k(f'ds_write_b32 v20, v14', tag='tabw')
        k(f'ds_write_b32 v20, v12 offset:1280', tag='tabw')
        k(f'''
        v_and_b32 v8, 1, v0
        v_mul_u32_u24 v8, 1280, v8
        v_lshrrev_b32 v9, 5, v0
        v_lshl_add_u32 v8, v9, 4, v8
        v_add_u32 v8, {TAB}, v8
        ''')
        self.poll_addr(SYNC2A, 16, 7)
        k.wait('wst', 'tabw')
        k('s_barrier')
        self.stamp('barX')

        def half(h):
            for s in range(4):
                k(f'ds_read_b128 {vr(TF + 4 * s, 4)}, v8 offset:{32 * (20 * h + s)}')
            for s in range(20):
                c = '0' if s == 0 else vr(AC, 16)
                k(f'v_mfma_f32_32x32x16_bf16 {vr(AC, 16)}, {vr(TF + 4 * (s % 4), 4)}, {vr(WF + 4 * (20 * h + s), 4)}, {c}')
                if s + 4 < 20:
                    k(f'ds_read_b128 {vr(TF + 4 * (s % 4), 4)}, v8 offset:{32 * (20 * h + s + 4)}')
        L1, L2 = k.label('cs1'), k.label('cs2')
        k(f's_cmp_ge_u32 {sr(sW)}, 4\ns_cbranch_scc1 {L1}')
        half(0)
        L = self.only_wave(0)
        k(f'global_load_dword v6, v7, {P2(pWS)} sc1')
        k(f'{L}:')
        self.wread_addr(10)
        self.wstage_read(1, 10)
        k(f's_branch {L2}\n{L1}:')
        self.wread_addr(10)
        self.wstage_read(1, 10)
        half(1)
        k(f'''
        {L2}:
        s_lshl_b32 s55, {sr(sW)}, 9
        v_lshl_add_u32 v8, v0, 3, s55
        s_xor_b32 s55, s55, 2048
        v_lshl_add_u32 v9, v0, 3, s55
        ''')
        k(f'ds_write_b64 v8, {vr(AC, 2)} offset:{EXC}', tag='excw')
        self.g1_setup()
        k.wait('x1st')
        L = self.only_wave(0)
        self.poll(7, 6, 27, preissued=True)
        k(f'{L}:')
        k.wait('excw', 'wrd')
        k('s_barrier')
        self.stamp('barY')
        if self.o['stop'] != 'conv':
            for c in range(2):
                for i in range(2):
                    self.g1_dma(c, i)
        L = self.only_wave(0)
        k(f'''
        s_mul_i32 s55, {sr(sQ)}, 0x5556
        s_lshr_b32 s55, s55, 16
        s_mul_i32 s55, s55, 3
        s_sub_u32 s55, {sr(sQ)}, s55
        s_lshl_b32 s55, s55, 3
        s_add_u32 s55, s55, {sr(sMB)}
        ''')
        self.arrive(SYNC2B, 24, 's55', 16)
        k(f'{L}:')
        k(f'''
        ds_read_b64 v[10:11], v9 offset:{EXC}
        v_cmp_gt_u32 vcc, 32, v0
        v_mov_b32 {vr(CB + 2)}, 0
        v_mov_b32 {vr(CB + 3)}, 0
        v_add_f32 v10, v10, {vr(AC)}
        v_add_f32 v11, v11, {vr(AC + 1)}
        v_cvt_pk_bf16_f32 v12, v10, v11
        v_lshlrev_b32 v13, 16, v12
        v_and_b32 v14, 0xffff0000, v12
        v_sub_f32 v10, v10, v13
        v_sub_f32 v11, v11, v14
        v_cvt_pk_bf16_f32 v10, v13, v10
        v_cvt_pk_bf16_f32 v11, v14, v11
        v_cndmask_b32 {vr(CB)}, 0, v10, vcc
        v_cndmask_b32 {vr(CB + 1)}, 0, v11, vcc
        ''')

    def g1_setup(self):
        self.k(f'''
        v_lshrrev_b32 v12, 3, v0
        v_lshlrev_b32 v1, 12, v12
        v_bfe_u32 v12, v0, 4, 1
        v_lshlrev_b32 v12, 2, v12
        v_and_b32 v13, 7, v0
        v_xor_b32 v12, v12, v13
        v_lshl_add_u32 v1, v12, 4, v1
        s_lshl_b32 s66, {sr(sW)}, 16
        s_lshl_b32 s55, {sr(sM1)}, 7
        s_add_u32 s66, s66, s55
        s_add_u32 s66, s66, {X1S}
        s_lshl_b32 s67, {sr(sW)}, 11
        ''')
        self.g2_setup()

    def g1_dma(self, c, i):
        k = self.k
        slot = c % NS
        t, cc = divmod(c, 5)
        if self.o.get('x_nodma') and c >= 5:
            return
        k(f's_add_u32 m0, s67, {RING + slot * 16384 + i * 1024}')
        k(f's_add_u32 s3, s66, {t * 1024 + (cc * 128 + 8 * i) * 4096}')
        k(f'buffer_load_dwordx4 v1, {P4(rWS)}, s3 offen sc1 lds', tag=f'ch{c}')

    def g2_dma(self, j, i):
        k = self.k
        L = None
        if i == 3:
            L = k.label('g2d')
            k(f's_cmp_ge_u32 {sr(sW)}, 6\ns_cbranch_scc1 {L}')
        k(f'''
        s_add_u32 s3, s60, {j * G2S}
        s_sub_u32 s59, s3, {9 * G2S}
        s_cselect_b32 s3, s3, s59
        s_add_u32 s3, s3, s63
        s_add_u32 m0, s64, {G2SLOT[j % 5] + i * 8192}
        s_add_u32 s3, s3, {i * 8192}
        ''')
        k(f'buffer_load_dwordx4 v4, {P4(rWS)}, s3 offen sc1 lds', tag=f'wd{j}')
        if L:
            k(f'{L}:')

    def g2_setup(self):
        k = self.k
        k(f'''
        s_lshr_b32 s55, s2, 3
        s_and_b32 s61, s55, 7
        s_lshr_b32 s55, s55, 3
        s_lshl_b32 s55, s55, 3
        s_add_u32 s62, s55, {sr(sMB)}
        s_lshl_b32 s64, {sr(sW)}, 10
        s_mul_i32 s63, s61, {54 * 5120}
        s_add_u32 s63, s63, {WD}
        s_add_u32 s63, s63, s64
        v_lshlrev_b32 v4, 4, v0
        s_lshr_b32 s55, s55, 2
        s_add_u32 s55, s55, s61
        s_sub_u32 s56, s55, 9
        s_cselect_b32 s55, s55, s56
        s_mul_i32 s55, s55, {self.o.get('rot', 1)}
        s_mul_i32 s60, s55, {G2S}
        s_mul_i32 s90, s55, 12288
        ''')

    def g1(self):
        k = self.k
        TF, CB = 16, 92
        ACC = [32, 48, 64]
        vRA, vRB, vST, vSTA, vPA, vPD = 2, 3, 5, 6, 7, 8
        K1, K2, S2 = 9, 10, 11
        BF = 12
        ET = 80
        OUTR = 88
        k(f'''
        v_lshrrev_b32 v8, 5, v0
        v_bfe_u32 v9, v0, 2, 2
        v_lshl_add_u32 v8, v8, 3, v9
        v_lshlrev_b32 {vr(vRA)}, 7, v8
        v_lshrrev_b32 v9, 1, v9
        s_lshr_b32 s55, {sr(sW)}, 2
        v_xor_b32 v9, s55, v9
        v_lshl_add_u32 {vr(vRA)}, v9, 6, {vr(vRA)}
        v_bfe_u32 v9, v0, 4, 1
        v_lshl_add_u32 {vr(vRA)}, v9, 5, {vr(vRA)}
        v_and_b32 v9, 3, v0
        v_lshl_add_u32 {vr(vRA)}, v9, 3, {vr(vRA)}
        v_add_u32 {vr(vRA)}, {RING}, {vr(vRA)}
        v_add_u32 {vr(vRB)}, {3 * 16384}, {vr(vRA)}
        s_lshl_b32 s56, {sr(sM1)}, 6
        s_lshl_b32 s57, s55, 5
        s_add_u32 s56, s56, s57
        v_and_b32 v9, 31, v0
        v_add_u32 v9, s56, v9
        v_lshlrev_b32 v9, 2, v9
        v_add_u32 {vr(vSTA)}, {STATS}, v9
        s_lshl_b32 s56, {sr(sM1)}, 1
        s_add_u32 s56, s56, s55
        s_mul_i32 s56, s56, 108
        s_lshl_b32 s57, {sr(sNB)}, 2
        s_add_u32 s56, s56, s57
        s_and_b32 s57, {sr(sW)}, 3
        s_add_u32 s56, s56, s57
        s_lshl_b32 s56, s56, 10
        s_add_u32 s65, s56, {ACT}
        v_mov_b32 {vr(BF + 2)}, 0
        v_mov_b32 {vr(BF + 3)}, 0
        ''')
        self.poll_addr(SYNC2B, 24, vPA)

        def rd(sig):
            c, s8 = divmod(sig, 8)
            slot = c % NS
            base, off = (vRA, slot * 16384) if slot < 3 else (vRB, (slot - 3) * 16384)
            off += s8 * 2048
            r = TF + 4 * (sig % 4)
            if self.o.get('x_nord') and sig >= 4:
                return
            if self.o.get('x_b128'):
                k(f'ds_read_b128 {vr(r, 4)}, v4 offset:{off % 32768}')
                return
            k(f'ds_read_b64_tr_b16 {vr(r, 2)}, {vr(base)} offset:{off}')
            k(f'ds_read_b64_tr_b16 {vr(r + 2, 2)}, {vr(base)} offset:{off + 512}')

        C1 = -2 * LOG2E * math.sqrt(2 / math.pi) * 0.044715
        C2 = -2 * LOG2E * math.sqrt(2 / math.pi)

        def epi_ops(t):
            acc = ACC[t % 3]
            ops = []

            def head():
                self.poll(vSTA, vST, '0x10000', preissued=True, off=2048 * (t & 1))
                k(f'''
                s_mov_b32 s55, 0x01000100
                s_mov_b32 s56, 0x03020302
                v_perm_b32 {vr(BF)}, {vr(vST)}, {vr(vST)}, s55
                v_perm_b32 {vr(BF + 1)}, {vr(vST)}, {vr(vST)}, s56
                v_xor_b32 {vr(BF)}, 0x80008000, {vr(BF)}
                v_and_b32 {vr(S2)}, 0xffff0000, {vr(vST)}
                v_rcp_f32 {vr(K2)}, {vr(S2)}
                v_mfma_f32_32x32x16_bf16 {vr(acc, 16)}, {vr(CB, 4)}, {vr(BF, 4)}, {vr(acc, 16)}
                ''')
            ops.append(head)
            ops.append(lambda: k(f'''
                v_mul_f32 {vr(S2)}, {vr(S2)}, {vr(S2)}
                v_mul_f32 {vr(K1)}, {vr(K2)}, {vr(K2)}
                v_mul_f32 {vr(K2)}, {f32(C2)}, {vr(K2)}
                '''))
            ops.append(lambda: k(f'''
                v_mul_f32 {vr(K1)}, {f32(0.044715)}, {vr(K1)}
                v_mul_f32 {vr(K1)}, {vr(K1)}, {vr(K2)}
                '''))
            ops.append(lambda: None)
            for p in range(4):
                i0, i1 = 2 * p, 2 * p + 1
                g0, g1_, u0, u1 = acc + i0, acc + i1, acc + 8 + i0, acc + 8 + i1
                t0, t1 = ET + 2 * (p % 2), ET + 2 * (p % 2) + 1
                ops.append(lambda g0=g0, g1_=g1_, t0=t0, t1=t1: k(f'''
                    v_mul_f32 {vr(t0)}, {vr(g0)}, {vr(g0)}
                    v_mul_f32 {vr(t1)}, {vr(g1_)}, {vr(g1_)}
                    v_fma_f32 {vr(t0)}, {vr(t0)}, {vr(K1)}, {vr(K2)}
                    '''))
                ops.append(lambda g0=g0, g1_=g1_, t0=t0, t1=t1: k(f'''
                    v_fma_f32 {vr(t1)}, {vr(t1)}, {vr(K1)}, {vr(K2)}
                    v_mul_f32 {vr(t0)}, {vr(t0)}, {vr(g0)}
                    v_mul_f32 {vr(t1)}, {vr(t1)}, {vr(g1_)}
                    '''))
                ops.append(lambda g0=g0, u0=u0, t0=t0, t1=t1: k(f'''
                    v_exp_f32 {vr(t0)}, {vr(t0)}
                    v_exp_f32 {vr(t1)}, {vr(t1)}
                    '''))
                ops.append(lambda g0=g0, g1_=g1_, u0=u0, u1=u1, t0=t0, t1=t1: k(f'''
                    v_mul_f32 {vr(u0)}, {vr(u0)}, {vr(g0)}
                    v_fma_f32 {vr(t0)}, {vr(t0)}, {vr(S2)}, {vr(S2)}
                    v_fma_f32 {vr(t1)}, {vr(t1)}, {vr(S2)}, {vr(S2)}
                    '''))
                ops.append(lambda t0=t0, t1=t1: k(f'''
                    v_rcp_f32 {vr(t0)}, {vr(t0)}
                    v_rcp_f32 {vr(t1)}, {vr(t1)}
                    '''))
                ops.append(lambda g1_=g1_, u0=u0, u1=u1, t0=t0, t1=t1, p=p: k(f'''
                    v_mul_f32 {vr(u1)}, {vr(u1)}, {vr(g1_)}
                    v_mul_f32 {vr(u0)}, {vr(u0)}, {vr(t0)}
                    v_mul_f32 {vr(u1)}, {vr(u1)}, {vr(t1)}
                    v_cvt_pk_bf16_f32 {vr(OUTR + p)}, {vr(u0)}, {vr(u1)}
                    '''))

            def fin():
                k(f's_add_u32 s3, s65, {t * 16 * 108 * 1024}')
                k(f'buffer_store_dwordx4 {vr(OUTR, 4)}, v4, {P4(rWS)}, s3 offen sc1', tag=f'act{t}')
            ops.append(fin)
            return ops

        def publish(t):
            L = self.only_wave(0)
            k(f'''
            s_add_u32 s55, {sr(sM1)}, {8 * t}
            s_lshl_b32 s55, s55, 7
            s_add_u32 s55, s55, {SYNC3}
            v_mov_b32 {vr(ET + 4)}, s55
            v_mov_b32 {vr(ET + 5)}, 1
            s_mov_b64 exec, 1
            global_atomic_add {vr(ET + 4)}, {vr(ET + 5)}, {P2(pWS)} sc1
            s_mov_b64 exec, -1
            {L}:
            ''')

        epi_start = self.o.get('epi_start', [44, 84, 124, 160])
        epi_rate = self.o.get('epi_rate', [1, 1, 1, 1])
        stat_ld = {max(0, s - self.o.get('stat_pre', 22)): t for t, s in enumerate(epi_start)}
        todo = {}
        for t in range(3):
            ops = epi_ops(t)
            sig = epi_start[t]
            while ops:
                for _ in range(epi_rate[t]):
                    if ops:
                        todo.setdefault(sig, []).append(ops.pop(0))
                sig += 1
            assert sig <= 160 and (t == 2 or sig <= epi_start[t + 1]), (t, sig)
            assert t + 3 >= 4 or sig <= 40 * (t + 3)
            todo.setdefault('done', {})[t] = sig
        done_at = todo.pop('done')
        pub_at = {}
        for t in range(3):
            s = done_at[t] + self.o.get('pub_lag', 24)
            s = ((s - 3 + 7) // 8) * 8 + 3
            pub_at.setdefault(min(s, 163), []).append(t)
        B2 = self.o.get('b2_chunk', 2)
        k.wait('ch0')
        k('s_barrier')
        self.stamp('g1go')
        for sig in range(4):
            rd(sig)
        issued = 5
        dq = [lambda c=c, i=i: self.g1_dma(c, i) for c in (2, 3, 4) for i in range(2)]
        g2at = {17: [(2, i) for i in range(4)], 19: [(3, i) for i in range(4)]}
        for n in range(8):
            g2at[B2 + 3 + n] = [(n // 4, n % 4)]
        for sig in range(160):
            t, s = divmod(sig, 40)
            c = sig // 8
            acc = ACC[t % 3]
            cop = '0' if s == 0 else vr(acc, 16)
            k(f'v_mfma_f32_32x32x16_bf16 {vr(acc, 16)}, {vr(WF + 4 * s, 4)}, {vr(TF + 4 * (sig % 4), 4)}, {cop}')
            if sig == 8 * B2 + 3 - self.o.get('b2_pre', 8):
                L = self.only_wave(0)
                k(f'global_load_dword {vr(vPD)}, {vr(vPA)}, {P2(pWS)} sc1')
                k(f'{L}:')
            if sig % 8 == 3:
                if c == B2:
                    L = self.only_wave(0)
                    self.poll(vPA, vPD, 9, preissued=True)
                    self.poll_addr(SYNCW, 4, vPA)
                    k(f'global_load_dword {vr(vPD)}, {vr(vPA)}, {P2(pWS)} sc1')
                    k(f'{L}:')
                if c == B2 + 2:
                    L = self.only_wave(0)
                    self.poll(vPA, vPD, 10, preissued=True)
                    k(f'{L}:')
                w = [f'ch{c + 1}'] if c + 1 < 20 else []
                w += [f'act{tt}' for tt in pub_at.get(sig, [])]
                if w and not self.o.get('x_nowait'):
                    k.wait(*w)
                if not self.o.get('x_nobar') or c in (B2, B2 + 2):
                    k('s_barrier')
                for tt in pub_at.get(sig, []):
                    publish(tt)
                if c >= B2:
                    while issued < 20 and issued <= c - 1 + NS:
                        dq += [lambda c=issued, i=i: self.g1_dma(c, i) for i in range(2)]
                        issued += 1
                if c in g2at and not self.o.get('x_nog2d'):
                    dq += [lambda j=j, i=i: self.g2_dma(j, i) for j, i in g2at[c]]
            elif dq:
                dq.pop(0)()
            if sig + 4 < 160:
                rd(sig + 4)
            if sig in stat_ld:
                tt = stat_ld[sig]
                if tt == 2:
                    k(f'v_add_u32 {vr(vSTA)}, 4096, {vr(vSTA)}')
                k(f'global_load_dword {vr(vST)}, {vr(vSTA)}, {P2(pWS)} offset:{2048 * (tt & 1)} sc1')
            for op in todo.get(sig, []):
                if not self.o.get('x_noepi'):
                    op()
            if sig % 40 == 39:
                self.stamp(f't{t}')
        assert not dq
        k('s_barrier')
        for op in epi_ops(3):
            op()
        for i in range(4):
            self.g2_dma(4, i)
        self.resid_dma()
        k.wait('act3', *[f'act{tt}' for tt in pub_at.get(163, [])])
        k('s_barrier')
        for tt in pub_at.get(163, []) + [3]:
            publish(tt)
        self.stamp('g1end')

    def resid_dma(self):
        k = self.k
        k(f'''
        v_lshrrev_b32 v8, 3, v0
        v_lshlrev_b32 v8, 12, v8
        v_and_b32 v9, 7, v0
        v_lshl_add_u32 v8, v9, 4, v8
        s_mul_i32 s55, s61, 80
        s_lshl_b32 s56, {sr(sW)}, 3
        s_add_u32 s55, s55, s56
        s_lshl_b32 s55, s55, 12
        s_lshl_b32 s56, s62, 7
        s_add_u32 s55, s55, s56
        s_add_u32 s55, s55, {X1T}
        s_add_u32 m0, s64, {RESID}
        ''')
        k(f'buffer_load_dwordx4 v8, {P4(rWS)}, s55 offen sc1 lds', tag='resid')
        L = k.label('rs')
        k(f'''
        s_cmp_ge_u32 {sr(sW)}, 2
        s_cbranch_scc1 {L}
        s_add_u32 m0, s64, {RESID + 8192}
        s_add_u32 s55, s55, {64 * 4096}
        ''')
        k(f'buffer_load_dwordx4 v8, {P4(rWS)}, s55 offen sc1 lds', tag='resid')
        k(f'{L}:')

    def g2(self):
        k = self.k
        AF, WB, ACC, GB = 96, 16, 56, 204
        k('L_g2:')
        k(f'''
        s_and_b32 s55, {sr(sW)}, 3
        s_lshr_b32 s56, {sr(sW)}, 2
        v_lshrrev_b32 v8, 5, v0
        v_lshlrev_b32 v1, 10, v8
        v_bfe_u32 v8, v0, 4, 1
        v_lshl_add_u32 v1, v8, 9, v1
        v_and_b32 v8, 15, v0
        v_lshl_add_u32 v1, v8, 4, v1
        s_and_b32 s57, s55, 1
        s_lshl_b32 s57, s57, 8
        s_lshr_b32 s58, s55, 1
        s_lshl_b32 s59, s62, 1
        s_add_u32 s58, s58, s59
        s_mul_i32 s58, s58, {108 * 1024}
        s_add_u32 s57, s57, s58
        s_lshl_b32 s58, s56, 11
        s_add_u32 s57, s57, s58
        s_add_u32 s65, s57, {ACT}
        s_mul_i32 s57, s56, 5120
        v_add_u32 v2, s57, v4
        v_add_u32 v3, {G2SLOT[4]}, v2
        v_add_u32 v5, {G2SLOT[1]}, v2
        v_add_u32 v2, {G2SLOT[2]}, v2
        s_lshl_b32 s57, s62, 7
        s_add_u32 s57, s57, {SYNC3}
        v_mov_b32 v6, s57
        s_mul_i32 s57, s61, 320
        s_mul_i32 s58, s56, 192
        s_add_u32 s57, s57, s58
        s_add_u32 s57, s57, {MODP + 10240}
        v_lshrrev_b32 v8, 4, v0
        v_lshl_add_u32 v9, v8, 4, s57
        ''')
        k('v_add_u32 v10, 5120, v9')
        for q in range(4):
            for j in range(3):
                k(f'global_load_dwordx4 {vr(GB + 12 * q + 4 * j, 4)}, v{9 + q // 2}, {P2(pWS)} offset:{64 * j + 2560 * (q % 2)} sc1')
        L = self.only_wave(0)
        self.poll(6, 7, 27)
        k(f'{L}:')
        k.wait('wd0')
        k('s_barrier')
        self.stamp('s3')
        LA = self.o.get('la', 4)

        def lda(i):
            k(f'''
            s_add_u32 s3, s90, {i * 4096}
            s_sub_u32 s59, s3, {27 * 4096}
            s_cselect_b32 s3, s3, s59
            s_add_u32 s3, s3, s65
            buffer_load_dwordx4 {vr(AF + 4 * i, 4)}, v1, {P4(rWS)}, s3 offen sc1
            ''')

        def rdw(i):
            j, ii = divmod(i, 3)
            base, off = {0: (3, G2S), 1: (5, 0), 2: (2, 0), 3: (2, G2S), 4: (3, 0)}[j % 5]
            off += ii * 10240
            for f in range(5):
                k(f'ds_read_b128 {vr(WB + 20 * (i % 2) + 4 * f, 4)}, v{base} offset:{off + 1024 * f}')

        for i in range(LA):
            lda(i)
        rdw(0)
        dq = []
        for i in range(27):
            j, ii = divmod(i, 3)
            if ii == 2 and j < 8:
                k.wait(f'wd{j + 1}')
                k('s_barrier')
                if 1 <= j <= 4:
                    dq += [lambda j=j, q=q: self.g2_dma(j + 4, q) for q in range(4)]
            if i + 1 < 27:
                rdw(i + 1)
            for f in range(5):
                c = '0' if i == 0 else vr(ACC + 4 * f, 4)
                k(f'v_mfma_f32_16x16x32_bf16 {vr(ACC + 4 * f, 4)}, {vr(WB + 20 * (i % 2) + 4 * f, 4)}, {vr(AF + 4 * i, 4)}, {c}')
                if f == 0 and i + LA < 27:
                    lda(i + LA)
                if f in (2, 4) and dq:
                    dq.pop(0)()
        self.stamp('g2m')
        for i in range(12):
            k(f'v_add_f32 {vr(GB + i)}, {vr(GB + i)}, {vr(GB + 12 + i)}')
            k(f'v_add_f32 {vr(GB + 24 + i)}, {vr(GB + 24 + i)}, {vr(GB + 36 + i)}')
        for i in range(12):
            k(f'v_add_f32 {vr(GB + i)}, {vr(GB + i)}, {vr(GB + 24 + i)}')
        for i in range(12):
            k(f'v_cvt_pk_bf16_f32 {vr(GB + i)}, {vr(GB + i)}, {vr(GB + i)}')
        k(f'''
        s_mul_i32 s57, {sr(sW)}, 3072
        s_add_u32 s57, s57, {G2SLOT[0]}
        v_add_u32 v2, s57, v4
        s_xor_b32 s58, {sr(sW)}, 4
        s_mul_i32 s57, s58, 3072
        s_add_u32 s57, s57, {G2SLOT[0]}
        v_add_u32 v3, s57, v4
        v_lshrrev_b32 v8, 2, v0
        v_lshlrev_b32 v8, 7, v8
        v_and_b32 v9, 3, v0
        v_lshl_add_u32 v8, v9, 3, v8
        s_lshl_b32 s57, s55, 5
        s_mul_i32 s58, s56, 6144
        s_add_u32 s57, s57, s58
        s_add_u32 s57, s57, {RESID}
        v_add_u32 v8, s57, v8
        v_and_b32 v9, 15, v0
        s_lshl_b32 s57, s55, 4
        v_add_u32 v9, s57, v9
        v_and_b32 v10, 7, v9
        v_lshrrev_b32 v9, 3, v9
        v_lshl_add_u32 v9, v10, 6, v9
        s_lshr_b32 s57, s62, 3
        s_lshl_b32 s57, s57, 9
        s_lshl_b32 s58, {sr(sMB)}, 3
        s_add_u32 s57, s57, s58
        v_add_u32 v9, s57, v9
        v_mul_u32_u24 v9, 1280, v9
        v_lshrrev_b32 v10, 4, v0
        v_lshl_add_u32 v9, v10, 3, v9
        s_mul_i32 s57, s61, 160
        s_mul_i32 s58, s56, 96
        s_add_u32 s57, s57, s58
        v_add_u32 v9, s57, v9
        ''')
        L1, L2 = k.label('x1'), k.label('x2')
        k(f's_cmp_lg_u32 s56, 0\ns_cbranch_scc1 {L1}')
        for kh in range(2):
            send = (3, 4) if kh == 0 else (0, 1, 2)
            keep = (0, 1, 2) if kh == 0 else (3, 4)
            if kh:
                k(f'{L1}:')
            for n, f in enumerate(send):
                k(f'ds_write_b128 v2, {vr(ACC + 4 * f, 4)} offset:{1024 * n}', tag='xw')
            k.wait('xw', 'resid')
            k('s_barrier')
            for n, f in enumerate(keep):
                k(f'ds_read_b128 {vr(16 + 4 * n, 4)}, v3 offset:{1024 * n}')
                k(f'ds_read_b64_tr_b16 {vr(28 + 2 * n, 2)}, v8 offset:{2048 * n}')
            for n, f in enumerate(keep):
                for i in range(4):
                    a, g, x = ACC + 4 * f + i, GB + 4 * n + i, 36 + i
                    k(f'v_add_f32 {vr(a)}, {vr(a)}, {vr(16 + 4 * n + i)}')
                    k(f'v_and_b32 {vr(g)}, 0xffff0000, {vr(g)}')
                    if i % 2 == 0:
                        k(f'v_lshlrev_b32 {vr(x)}, 16, {vr(28 + 2 * n + i // 2)}')
                    else:
                        k(f'v_and_b32 {vr(x)}, 0xffff0000, {vr(28 + 2 * n + i // 2)}')
                    k(f'v_fmac_f32 {vr(x)}, {vr(a)}, {vr(g)}')
                k(f'v_cvt_pk_bf16_f32 {vr(40 + 2 * n)}, v36, v37')
                k(f'v_cvt_pk_bf16_f32 {vr(41 + 2 * n)}, v38, v39')
                k(f'global_store_dwordx2 v9, {vr(40 + 2 * n, 2)}, {P2(pOUT)} offset:{32 * n}')
            if not kh:
                k(f's_branch {L2}')
        k(f'{L2}:')
        self.stamp('end')

    def strip_reduce(self, nval, V, RED):
        k = self.k
        n = nval
        for i in range(n // 2):
            k(f'v_permlane32_swap_b32 {vr(V + i)}, {vr(V + n // 2 + i)}')
        for i in range(n // 2):
            k(f'v_add_f32 {vr(V + i)}, {vr(V + i)}, {vr(V + n // 2 + i)}')
        n //= 2
        for i in range(n // 2):
            k(f'v_permlane16_swap_b32 {vr(V + i)}, {vr(V + n // 2 + i)}')
        for i in range(n // 2):
            k(f'v_add_f32 {vr(V + i)}, {vr(V + i)}, {vr(V + n // 2 + i)}')
        n //= 2
        for i in range(n):
            k(f'v_add_f32_dpp {vr(V + i)}, {vr(V + i)}, {vr(V + i)} row_ror:8 row_mask:0xf bank_mask:0xf')
        q = nval // 4
        k(f'''
        v_lshrrev_b32 v8, 4, v0
        v_mul_u32_u24 v8, {q}, v8
        v_and_b32 v9, 7, v8
        v_lshrrev_b32 v8, 3, v8
        v_lshl_add_u32 v9, v8, 6, v9
        v_and_b32 v8, 7, v0
        v_lshl_add_u32 v9, v8, 3, v9
        s_mul_i32 s55, {sr(sW)}, {8 * nval}
        v_add_u32 v9, s55, v9
        v_lshlrev_b32 v9, 2, v9
        s_mov_b32 exec_lo, 0x00ff00ff
        s_mov_b32 exec_hi, 0x00ff00ff
        ''')
        if q == 2:
            k(f'ds_write_b64 v9, {vr(V, 2)} offset:{RED}', tag='redw')
        else:
            k(f'ds_write_b128 v9, {vr(V, 4)} offset:{RED}', tag='redw')
        k('s_mov_b64 exec, -1')
        k.wait('redw')
        k('s_barrier')

    def mod_pre(self):
        k = self.k
        CV = 140
        k(f'''
        s_mul_i32 s73, s2, 0x199a
        s_lshr_b32 s73, s73, 16
        s_mul_i32 s74, s73, 10
        s_sub_u32 s74, s2, s74
        s_add_u32 s75, s2, 40
        s_cmp_lt_u32 s2, 14
        s_cselect_b32 s76, 2, 1
        s_mov_b32 s75, s2
        s_mul_i32 s72, {sr(sW)}, 5120
        s_mul_i32 s71, s75, 40960
        s_add_u32 s71, s71, s72
        s_add_u32 s72, s72, 8192
        v_lshlrev_b32 v21, 4, v0
        ''')
        for i in range(10):
            k(f'v_lshlrev_b32 {vr(CV + i)}, 16, {vr(160 + i // 2)}' if i % 2 == 0 else f'v_and_b32 {vr(CV + i)}, 0xffff0000, {vr(160 + i // 2)}')
            k(f'v_mul_f32 {vr(150 + i)}, {f32(-LOG2E)}, {vr(CV + i)}')
        for op in ('v_exp_f32 {t}, {t}', 'v_add_f32 {t}, 1.0, {t}', 'v_rcp_f32 {t}, {t}', 'v_mul_f32 {c}, {c}, {t}',
                   'v_cvt_pk_bf16_f32 {c}, {c}, {c}', 'v_lshlrev_b32 {c}, 16, {c}'):
            for i in range(10):
                k(op.format(t=vr(150 + i), c=vr(CV + i)))

    def mod_and_wd(self):
        k = self.k
        LD, CV, V = 96, 140, 32
        he = self.o.get('he', 3)
        k(f's_lshl_b32 s55, s68, 7\ns_add_u32 s55, s55, {7680 * he}')
        for i in range(he, 10):
            k(f'buffer_load_dwordx4 {vr(LD + 4 * i, 4)}, v20, {P4(rA)}, s55 offen')
            if i < 9:
                k(f's_add_u32 s55, s55, 7680')

        def accumulate(n, ld, cv, V):
            for i in range(n):
                for j in range(4):
                    r = ld + 4 * i + j
                    a, b = 11 + 2 * (j % 2), 12 + 2 * (j % 2)
                    k(f'v_lshlrev_b32 v{a}, 16, {vr(r)}\nv_and_b32 v{b}, 0xffff0000, {vr(r)}')
                    if i == 0:
                        k(f'v_mul_f32 {vr(V + 2 * j)}, v{a}, {vr(cv)}\nv_mul_f32 {vr(V + 2 * j + 1)}, v{b}, {vr(cv)}')
                    else:
                        k(f'v_fmac_f32 {vr(V + 2 * j)}, v{a}, {vr(cv + i)}\nv_fmac_f32 {vr(V + 2 * j + 1)}, v{b}, {vr(cv + i)}')

        pass
        accumulate(10, LD, CV, V)
        self.stamp('h_acc')
        self.strip_reduce(8, V, 0)
        pass
        L = self.only_wave(0)
        k('v_lshlrev_b32 v8, 2, v0')
        for w in range(4):
            k(f'ds_read2st64_b32 {vr(V + 2 * w, 2)}, v8 offset0:{2 * w} offset1:{2 * w + 1}')
        for w in range(1, 8):
            k(f'v_add_f32 {vr(V)}, {vr(V)}, {vr(V + w)}')
        k(f'''
        v_cvt_pk_bf16_f32 {vr(V)}, {vr(V)}, {vr(V)}
        v_and_b32 {vr(V)}, 0xffff0000, {vr(V)}
        v_or_b32 {vr(V)}, 1, {vr(V)}
        s_lshl_b32 s55, s68, 8
        s_add_u32 s55, s55, {MOD}
        buffer_store_dword {vr(V)}, v8, {P4(rWS)}, s55 offen sc1
        ''')
        self.stamp('h_modA')
        k(f'{L}:')
        k('s_barrier')
        Lz = k.label('mz')
        k(f'''
        s_lshr_b32 s55, {sr(sW)}, 1
        s_sub_u32 s55, s55, s73
        s_and_b32 s55, s55, 3
        s_cmp_ge_u32 s55, 2
        s_cbranch_scc1 {Lz}
        s_mul_i32 s55, s55, 2560
        s_lshl_b32 s56, s74, 7
        s_add_u32 s55, s55, s56
        s_add_u32 s55, s55, {30 * 128}
        ''')
        for i in range(10):
            k(f'buffer_load_dwordx4 {vr(LD + 4 * i, 4)}, v20, {P4(rA)}, s55 offen')
            if i < 9:
                k(f's_add_u32 s55, s55, 7680')
        accumulate(10, LD, CV, V)
        k(f'{Lz}:')
        self.strip_reduce(8, V, 4096)
        L = self.only_wave(0)
        k(f'''
        s_lshl_b32 s55, s73, 9
        v_lshl_add_u32 v9, v0, 2, s55
        s_add_u32 s56, s73, 1
        s_and_b32 s56, s56, 3
        s_lshl_b32 s55, s56, 9
        v_lshl_add_u32 v10, v0, 2, s55
        ds_read2st64_b32 {vr(V, 2)}, v9 offset0:16 offset1:17
        ds_read2st64_b32 {vr(V + 2, 2)}, v10 offset0:16 offset1:17
        v_lshlrev_b32 v8, 2, v0
        s_lshl_b32 s55, s2, 8
        s_add_u32 s55, s55, {MODP}
        s_mul_i32 s56, s56, 2560
        s_lshl_b32 s57, s74, 8
        s_add_u32 s56, s56, s57
        s_add_u32 s56, s56, {MODP + 10240}
        v_add_f32 {vr(V)}, {vr(V)}, {vr(V + 1)}
        v_add_f32 {vr(V + 2)}, {vr(V + 2)}, {vr(V + 3)}
        v_or_b32 {vr(V)}, 1, {vr(V)}
        buffer_store_dword {vr(V)}, v8, {P4(rWS)}, s55 offen sc1
        buffer_store_dword {vr(V + 2)}, v8, {P4(rWS)}, s56 offen sc1
        ''')
        self.stamp('h_mod')
        k(f'{L}:')
        for i in range(10):
            k(f'''
            s_cmp_ge_u32 s76, {1 + i // 5}
            s_cselect_b64 exec, -1, 0
            s_mov_b32 m0, s72
            s_add_u32 s72, s72, {1024 if i != 4 else 40960 - 4096}
            ''')
            k(f'buffer_load_dwordx4 v21, {P4(rB)}, s71 offen lds', tag='wdl')
            k(f's_mov_b64 exec, -1\ns_add_u32 s71, s71, {1024 if i != 4 else 40 * 40960 - 4096}')
        Lw, Lwd = k.label('wdl'), k.label('wdd')
        k(f'''
        v_lshrrev_b32 v9, 5, v0
        v_lshlrev_b32 v9, 4, v9
        v_bfe_u32 v10, v0, 2, 3
        v_add_u32 v9, v9, v10
        v_mul_u32_u24 v9, 1280, v9
        v_and_b32 v10, 3, v0
        v_lshl_add_u32 v9, v10, 3, v9
        s_mul_i32 s56, {sr(sW)}, 160
        v_add_u32 v9, s56, v9
        s_mul_i32 s55, {sr(sW)}, {54 * 5120}
        s_mul_i32 s56, s75, 5120
        s_add_u32 s55, s55, s56
        s_add_u32 s55, s55, {WD}
        s_waitcnt vmcnt(0)
        s_barrier
        s_cmp_eq_u32 s76, 0
        s_cbranch_scc1 {Lwd}
        {Lw}:
        ''')
        for j in range(5):
            k(f'ds_read_b64_tr_b16 {vr(32 + 4 * j, 2)}, v9 offset:{8192 + 32 * j}')
            k(f'ds_read_b64_tr_b16 {vr(34 + 4 * j, 2)}, v9 offset:{8192 + 32 * j + 8 * 1280}')
        k('s_add_u32 s56, s55, 4096')
        for j in range(5):
            k(f'buffer_store_dwordx4 {vr(32 + 4 * j, 4)}, v21, {P4(rWS)}, s{55 + j // 4} offen offset:{1024 * (j % 4)} sc1')
        k(f'''
        s_add_u32 s55, s55, {40 * 5120}
        v_add_u32 v9, 40960, v9
        s_sub_u32 s76, s76, 1
        s_cmp_lg_u32 s76, 0
        s_cbranch_scc1 {Lw}
        {Lwd}:
        s_waitcnt vmcnt(0)
        s_barrier
        ''')

    def stats_job(self):
        k = self.k
        LD, V = 96, 32
        k(f'''
        v_lshrrev_b32 v8, 3, v0
        s_mul_i32 s55, {sr(sW)}, 80
        v_add_u32 v8, s55, v8
        v_lshlrev_b32 v8, 12, v8
        v_and_b32 v10, 7, v0
        v_lshl_add_u32 v8, v10, 4, v8
        s_lshl_b32 s55, s2, 7
        s_add_u32 s55, s55, {X1T}
        ''')
        for i in range(10):
            k(f'buffer_load_dwordx4 {vr(LD + 4 * i, 4)}, v8, {P4(rWS)}, s55 offen sc1')
            if i < 9:
                k(f's_add_u32 s55, s55, {8 * 4096}')
        for i in range(10):
            for j in range(4):
                r = LD + 4 * i + j
                if i == 0:
                    k(f'''
                    v_lshlrev_b32 {vr(V + 2 * j)}, 16, {vr(r)}
                    v_and_b32 {vr(V + 2 * j + 1)}, 0xffff0000, {vr(r)}
                    v_mul_f32 {vr(V + 8 + 2 * j)}, {vr(V + 2 * j)}, {vr(V + 2 * j)}
                    v_mul_f32 {vr(V + 9 + 2 * j)}, {vr(V + 2 * j + 1)}, {vr(V + 2 * j + 1)}
                    ''')
                else:
                    k(f'''
                    v_lshlrev_b32 v11, 16, {vr(r)}
                    v_and_b32 v12, 0xffff0000, {vr(r)}
                    v_add_f32 {vr(V + 2 * j)}, {vr(V + 2 * j)}, v11
                    v_add_f32 {vr(V + 2 * j + 1)}, {vr(V + 2 * j + 1)}, v12
                    v_fmac_f32 {vr(V + 8 + 2 * j)}, v11, v11
                    v_fmac_f32 {vr(V + 9 + 2 * j)}, v12, v12
                    ''')
        self.strip_reduce(16, V, 0)
        L = self.only_wave(0)
        k('v_lshlrev_b32 v8, 2, v0')
        for w in range(8):
            k(f'ds_read2st64_b32 {vr(V + 2 * w, 2)}, v8 offset0:{2 * w} offset1:{2 * w + 1}')
        for w in range(1, 8):
            k(f'v_add_f32 {vr(V)}, {vr(V)}, {vr(V + 2 * w)}')
            k(f'v_add_f32 {vr(V + 1)}, {vr(V + 1)}, {vr(V + 2 * w + 1)}')
        k(f'''
        v_mul_f32 v10, {f32(1.0 / 640)}, {vr(V)}
        v_mul_f32 v11, {f32(1.0 / 640)}, {vr(V + 1)}
        v_fma_f32 v11, -v10, v10, v11
        v_max_f32 v11, 0, v11
        v_cvt_pk_bf16_f32 v11, v11, v11
        v_lshlrev_b32 v11, 16, v11
        v_add_f32 v11, {f32(1e-5)}, v11
        v_cvt_pk_bf16_f32 v11, v11, v11
        v_lshlrev_b32 v11, 16, v11
        v_sqrt_f32 v11, v11
        v_cvt_pk_bf16_f32 v10, v10, v11
        s_lshl_b32 s55, s2, 8
        s_add_u32 s55, s55, {STATS}
        buffer_store_dword v10, v8, {P4(rWS)}, s55 offen sc1
        {L}:
        s_barrier
        ''')

    def helper(self):
        k = self.k
        k('L_helper:')
        self.srd(rA, pWM, 640 * 3840 * 2)
        self.srd(rB, pWD, 1728 * 640 * 2)
        self.mod_pre()
        if self.o.get('hbar', 1):
            k('s_barrier')
        self.mod_and_wd()
        L = self.only_wave(0)
        self.poll_sync1(215, 58)
        k('s_and_b32 s55, s2, 3')
        self.arrive(SYNCW, 4, 's55', 16)
        k(f'{L}:')
        self.stamp('h_wd')
        if self.o['stop'] in ('A', 'kgen'):
            k('s_branch L_fin')
            return
        Lns = k.label('nostat')
        Lb, Lp = k.label('lateb'), k.label('polled')
        L = self.only_wave(0)
        k(f's_cmp_ge_u32 s2, 8\ns_cbranch_scc1 {Lb}')
        self.poll_addr(SYNC2A, 16, 16)
        self.poll(16, 17, 27)
        k(f's_branch {Lp}\n{Lb}:')
        self.poll_addr(SYNC2B, 24, 16)
        self.poll(16, 17, 9)
        k(f'{Lp}:\n{L}:')
        k('s_barrier')
        self.stamp('s2a')
        k(f's_cmp_ge_u32 s2, 32\ns_cbranch_scc1 {Lns}')
        self.stats_job()
        k(f'{Lns}:')
        self.stamp('h_stat')
        if self.o['stop'] in ('conv', 'g1'):
            k('s_branch L_fin')
            return
        L = self.only_wave(0)
        self.poll_addr(SYNCW, 4, 16)
        self.poll(16, 17, 10)
        k(f'{L}:')
        k('s_barrier')
        self.g2_setup()
        for j in range(5):
            for i in range(4):
                self.g2_dma(j, i)
        self.resid_dma()
        k('s_branch L_g2')

    def build(self):
        k = self.k
        stop = self.o['stop']
        self.prologue()
        self.early_addresses()
        self.ln1()
        k('s_cmp_lt_u32 s2, 40\ns_cbranch_scc1 L_helper')
        while True:
            if stop == 'A':
                break
            self.kgen()
            self.stamp('kgen')
            self.kexpand1()
            self.stamp('kexp')
            self.conv_loads()
            self.kexpand2()
            self.wstage_read(0, 213)
            if stop == 'kgen':
                self.dump_k()
                break
            self.conv()
            self.window2()
            if stop == 'conv':
                break
            self.g1()
            if stop == 'g1':
                break
            self.g2()
            break
        k('L_fin:')
        k(f'''
        s_or_b32 s3, s2, {sr(sW)}
        s_cmp_lg_u32 s3, 0
        s_cbranch_scc1 L_nogen
        v_mov_b32 v8, {GEN}
        v_mov_b32 v9, {sr(sTAG)}
        s_mov_b64 exec, 1
        global_store_dword v8, v9, {P2(pWS)} sc1
        s_mov_b64 exec, -1
        L_nogen:
        ''')
        self.stamp_flush()
        k('s_endpgm')
        self.helper()
        k('L_end:\ns_endpgm')
        body = k.text()
        hdr = open('adaLN_cond__ssm_conv_s4d__geglu_ffn__prompt.s.ref').read().split('; Override')[0]
        return hdr + f'''; @launch kernel={NAME} grid=(256,1,1) block=(512,1,1) lds={LDS_BYTES}
.amdgcn_target "amdgcn-amd-amdhsa--gfx950"
.text
.globl {NAME}
.p2align 8
.type {NAME},@function
{NAME}:
{body}.section .rodata,"a"
.p2align 6
.amdhsa_kernel {NAME}
  .amdhsa_next_free_vgpr 256
  .amdhsa_next_free_sgpr 102
  .amdhsa_accum_offset 256
  .amdhsa_group_segment_fixed_size 0
  .amdhsa_kernarg_size 128
  .amdhsa_user_sgpr_count 2
  .amdhsa_user_sgpr_kernarg_segment_ptr 1
  .amdhsa_system_sgpr_workgroup_id_x 1
.end_amdhsa_kernel
'''

    def dump_k(self):
        k = self.k
        k.wait('saw')
        k('s_barrier')
        k(f's_lshl_b32 s55, {sr(sW)}, 6\nv_add_u32 v8, s55, v0\nv_lshlrev_b32 v9, 3, v8\nv_lshlrev_b32 v10, 4, v8')
        for ch in range(3):
            k(f'''
            ds_read_b64 v[12:13], v9 offset:{KA + ch * KAS + 32}
            ds_read_b128 v[16:19], v10 offset:{SA + ch * SAS}
            s_add_u32 s55, {sr(sD0)}, {ch}
            s_lshl_b32 s56, s55, 12
            s_add_u32 s56, s56, {X1T}
            s_lshl_b32 s57, s55, 13
            s_add_u32 s57, s57, {ACT}
            buffer_store_dwordx2 v[12:13], v9, {P4(rWS)}, s56 offen
            buffer_store_dwordx4 v[16:19], v10, {P4(rWS)}, s57 offen
            s_waitcnt vmcnt(0)
            ''')


LAST = None
def generate(**opt):
    global LAST
    LAST = Gen(opt)
    return LAST.build()


if __name__ == '__main__':
    opt = {}
    for a in sys.argv[2:]:
        kx, v = a.split('=')
        opt[kx] = eval(v)
    open(sys.argv[1], 'w').write(generate(**opt))
```

```python
import sys, math
from asmgen import Kern, vr, sr, f32

NAME = 'adaLN_cond__ssm_conv_s4d__geglu_ffn__prompt_kernel'

SYNC1 = 0x0
GEN = 0x22000
MS = 0x1A000
SYNC2A, SYNC2B, SYNCW, SYNC3 = 0x8000, 0xC000, 0x12000, 0x13000
MODP = 0x1C000
MOD, STATS = 0x16000, 0x14000
ZBEG, ZEND = 0x8000, 0x16000
STAMP = 0x30000
XN, XT, X1T, X1S, WD, ACT = 0x100000, 0x400000, 0x700000, 0xA00000, 0xD00000, 0x1000000
KG, KGS = 0, 4608
XNL0, MSL = 1696, 13984
KA, KAS = 27648, 4128
SA, SAS = 40032, 8192
TR, TRR, TRM = 40032, 1344, 10752
WT = 81408
KC, KCS = 51200, 3840
GA = 204
TAB, EXC = 64704, 10240
STG = 81920
RING, NS = 16384, 5
G2S, RESID = 30720, 0
G2SLOT = [102400, 133120, 10240, 40960, 71680]
LDS_BYTES = 163840
pX, pLA, pAI, pCR, pCI, pDT, pDS, pWG, pWU, pWD, pC, pWM, pOUT, pDBG, pWS = 4, 6, 8, 10, 12, 14, 16, 20, 22, 24, 26, 28, 30, 32, 34
sW, sI, sPC = 36, 37, 38
rWS, rA, rB = 40, 44, 48
sD0, sMB, sNB = 52, 53, 54
sT = 55
sCH = 70
sSPIN = 79
sST = 80
sFLAG = 82
sWL, sWO, sWI, sWR = 86, 87, 88, 89
sQ, sM1, sTAG = 91, 92, 93
P2 = lambda r: sr(r, 2)
P4 = lambda r: sr(r, 4)
WF = 96
SPIN_MAX = 400000

LOG2E = 1.4426950408889634


class Gen:
    def __init__(self, opt):
        self.o = dict(stop=None, stamps=False)
        self.o.update(opt)
        self.k = Kern()
        self.nst = 0

    def stamp(self, name, vt=None):
        if not self.o['stamps']:
            return
        names = self.o.setdefault('stamp_names', [])
        if name not in names:
            names.append(name)
        idx = names.index(name)
        assert idx < 32
        self.k(f'''
        s_memrealtime {sr(sST, 2)}
        s_memtime s[84:85]
        s_waitcnt lgkmcnt(0)
        v_writelane_b32 v87, {sr(sST)}, {idx}
        v_writelane_b32 v87, s84, {32 + idx}
        ''')

    def stamp_flush(self):
        if not self.o['stamps']:
            return
        self.k(f'''
        s_lshl_b32 s100, s2, 3
        s_add_u32 s100, s100, {sr(sW)}
        s_lshl_b32 s100, s100, 8
        s_add_u32 s100, s100, {STAMP}
        v_lshl_add_u32 v86, v0, 2, s100
        global_store_dword v86, v87, {P2(pWS)}
        ''')

    def arrive(self, base, nshard, shard_sreg, vt):
        k = self.k
        k(f'''
        s_lshl_b32 s3, {shard_sreg}, 7
        s_add_u32 s3, s3, {base}
        v_mul_u32_u24 {vr(vt)}, {128 * nshard}, v0
        v_add_u32 {vr(vt)}, s3, {vr(vt)}
        v_mov_b32 {vr(vt + 1)}, 1
        s_mov_b64 exec, 0xff
        global_atomic_add {vr(vt)}, {vr(vt + 1)}, {P2(pWS)} sc1
        s_mov_b64 exec, -1
        ''')

    def poll_addr(self, base, nshard, va):
        k = self.k
        k(f'''
        s_and_b32 s3, s2, 7
        s_mul_i32 s3, s3, {128 * nshard}
        s_add_u32 s3, s3, {base}
        v_min_u32 {vr(va)}, {nshard - 1}, v0
        v_lshlrev_b32 {vr(va)}, 7, {vr(va)}
        v_add_u32 {vr(va)}, s3, {vr(va)}
        ''')

    def poll(self, va, vd, count, ptr=pWS, preissued=False, off=0):
        k = self.k
        L, D = k.label('poll'), k.label('polld')
        ld = f'global_load_dword {vr(vd)}, {vr(va)}, {P2(ptr)} offset:{off} sc1'
        if not preissued:
            k(ld)
        k(f'''
        v_cmp_gt_u32 vcc, {count}, {vr(vd)}
        s_cbranch_vccz {D}
        {L}:
        {ld}
        v_cmp_gt_u32 vcc, {count}, {vr(vd)}
        s_cbranch_vccz {D}
        s_sleep {self.o.get('sleep', 2)}
        s_add_u32 {sr(sSPIN)}, {sr(sSPIN)}, 1
        s_cmp_lt_u32 {sr(sSPIN)}, {SPIN_MAX}
        s_cbranch_scc1 {L}
        {D}:
        ''')

    def srd(self, r, ptr, size):
        self.k(f'''
        s_mov_b32 {sr(r)}, {sr(ptr)}
        s_and_b32 {sr(r + 1)}, {sr(ptr + 1)}, 0xffff
        s_mov_b32 {sr(r + 2)}, {size}
        s_mov_b32 {sr(r + 3)}, 0x20000
        ''')

    def only_wave(self, w):
        L = self.k.label('ow')
        self.k(f's_cmp_lg_u32 {sr(sW)}, {w}\ns_cbranch_scc1 {L}')
        return L

    def prologue(self):
        k = self.k
        k(f'''
        s_cmp_ge_u32 s2, 256
        s_cbranch_scc1 L_end
        s_load_dwordx16 s[4:19], s[0:1], 0
        s_load_dwordx16 s[20:35], s[0:1], 64
        s_getpc_b64 {P2(sPC)}
        L_pc:
        v_lshrrev_b32 v1, 6, v0
        v_and_b32 v0, 63, v0
        v_readfirstlane_b32 {sr(sW)}, v1
        s_mov_b32 {sr(sSPIN)}, 0
        ''')
        if self.o['stamps']:
            k('v_mov_b32 v87, 0')
        L = k.label('pf')
        k(f'''
        s_lshr_b32 s3, s2, 3
        s_and_b32 s3, s3, 7
        s_cmp_eq_u32 {sr(sW)}, 0
        s_cselect_b32 s56, 0, s3
        s_cmp_eq_u32 {sr(sW)}, s56
        s_cbranch_scc0 {L}
        s_lshl_b32 s3, {sr(sW)}, 13
        v_lshlrev_b32 v2, 7, v0
        v_add_u32 v2, s3, v2
        v_min_u32 v2, L_end-L_pc, v2
        global_load_dword v83, v2, {P2(sPC)}
        {L}:
        s_lshl_b32 s3, s2, 3
        s_add_u32 s3, s3, {sr(sW)}
        s_mul_i32 s3, s3, 1280
        v_lshl_add_u32 v2, v0, 4, s3
        v_lshl_add_u32 v3, v0, 2, s3
        s_sub_u32 {sr(sI)}, s2, 40
        s_and_b32 {sr(sMB)}, s2, 7
        s_lshr_b32 {sr(sQ)}, {sr(sI)}, 3
        s_mul_i32 s3, {sr(sMB)}, 27
        s_add_u32 s3, s3, {sr(sQ)}
        s_lshr_b32 {sr(sNB)}, s3, 3
        s_and_b32 {sr(sM1)}, s3, 7
        s_mul_i32 s3, s3, 3
        s_min_u32 {sr(sD0)}, s3, 637
        s_min_u32 s55, {sr(sW)}, 5
        s_lshl_b32 s56, {sr(sD0)}, 1
        s_add_u32 s56, s56, s55
        s_lshl_b32 s56, s56, 7
        v_lshl_add_u32 v18, v0, 1, s56
        s_lshr_b32 s55, s55, 1
        s_add_u32 s55, s55, {sr(sD0)}
        s_lshl_b32 s55, s55, 1
        v_mov_b32 v19, s55
        v_min_u32 v17, 2, v0
        v_add_u32 v17, {sr(sD0)}, v17
        v_lshlrev_b32 v17, 1, v17
        ''')
        self.stamp('start')
        if self.o.get('chase'):
            ptr, stride = self.o.get('chase_ptr', 18), self.o.get('chase_stride', 256 * 512)
            k(f's_lshl_b32 s55, s2, 9\nv_mov_b32 v10, s55')
            for i in range(self.o['chase']):
                k(f'''
                global_load_dword v11, v10, {P2(ptr)}
                v_and_b32 v11, 0, v11
                v_add_u32 v10, {stride}, v10
                v_add_u32 v10, v11, v10
                ''')
            self.stamp('chase')
        k(f'''
        global_load_dwordx4 v[92:95], v2, {P2(pX)}
        global_load_dword v91, v3, {P2(pX)} offset:1024
        s_load_dword {sr(sTAG)}, {P2(pWS)}, {GEN}
        ''')
        L, Lh = k.label('nokl'), k.label('hc')
        k(f'''
        v_mov_b32 v20, 0
        s_cmp_ge_u32 s2, 40
        s_cbranch_scc1 {Lh}
        v_lshrrev_b32 v20, 3, v0
        v_mul_u32_u24 v20, 10, v20
        s_mul_i32 s55, {sr(sW)}, 80
        v_add_u32 v20, s55, v20
        v_lshlrev_b32 v21, 1, v20
        global_load_dwordx4 v[160:163], v21, {P2(pC)}
        global_load_dword v164, v21, {P2(pC)} offset:16
        v_mul_u32_u24 v20, 7680, v20
        v_and_b32 v21, 7, v0
        v_lshl_add_u32 v20, v21, 4, v20
        s_add_u32 s68, s2, 10
        s_cmp_lt_u32 s2, 30
        s_cselect_b32 s68, s2, s68
        s_lshl_b32 s55, s68, 7
        v_add_u32 v21, s55, v20
        ''')
        for i in range(self.o.get('he', 3)):
            k(f'global_load_dwordx4 {vr(96 + 4 * i, 4)}, v21, {P2(pWM)}\nv_add_u32 v21, 7680, v21')
        k(f'''
        s_branch {L}
        {Lh}:
        s_cmp_ge_u32 {sr(sW)}, 6
        s_cbranch_scc1 {L}
        global_load_ushort v20, v18, {P2(pLA)}
        global_load_ushort v24, v19, {P2(pDT)}
        global_load_ushort v21, v18, {P2(pAI)}
        global_load_ushort v22, v18, {P2(pCR)}
        global_load_ushort v23, v18, {P2(pCI)}
        global_load_ushort v25, v17, {P2(pDS)}
        {L}:
        ''')
        self.srd(rWS, pWS, 0x10000000)
        self.srd(rA, pWG, 640 * 1728 * 2)
        self.srd(rB, pWU, 640 * 1728 * 2)

    def early_addresses(self):
        k = self.k
        k(f'''
        v_lshrrev_b32 v16, 3, v0
        v_mul_u32_u24 v17, 3456, v16
        v_bfe_u32 v16, v0, 4, 1
        v_bfe_u32 v26, v0, 1, 2
        v_xor_b32 v26, v26, v16
        v_and_b32 v16, 1, v0
        v_lshl_add_u32 v17, v16, 4, v17
        s_lshl_b32 s55, {sr(sNB)}, 7
        v_add_u32 v17, s55, v17
        v_lshl_add_u32 v26, v26, 5, v17
        v_xor_b32 v27, 64, v26
        s_mul_i32 {sr(sWR)}, {sr(sM1)}, 5
        s_mov_b32 {sr(sWO)}, 0
        ''')
        k(f's_lshl_b32 s55, {sr(sW)}, 6\nv_add_u32 v89, s55, v0')
        k(f'''
        s_lshl_b32 s55, {sr(sW)}, 1
        s_lshr_b32 s56, 0xffa4, s55
        s_and_b32 s56, s56, 3
        s_lshl_b32 s57, s56, 3
        v_lshlrev_b32 v10, 2, v89
        ''')
        for j in range(4):
            k(f'''
            v_add_u32 v11, {j}, v10
            v_cvt_f32_u32 v11, v11
            v_cvt_pk_bf16_f32 v11, v11, v11
            v_lshlrev_b32 v11, 16, v11
            v_cvt_u32_f32 v11, v11
            v_lshrrev_b32 v12, 7, v11
            v_and_b32 v13, 7, v11
            v_lshl_add_u32 v12, v12, 3, v13
            v_lshrrev_b32 v12, s56, v12
            v_add_u32 v12, s57, v12
            v_mul_u32_u24 v12, 20, v12
            v_bfe_u32 v11, v11, 3, 4
            v_add_lshl_u32 v11, v12, v11, 2
            v_add_u32 {vr(GA + j)}, {KC}, v11
            ''')
        k(f'''
        v_lshlrev_b32 v208, 1, v10
        v_lshlrev_b32 v209, 2, v10
        ''')
        for i in range(2):
            k(f'''
            v_add_u32 v11, {512 * i}, v89
            v_mul_u32_u24 v12, 0x5556, v11
            v_lshrrev_b32 v12, 16, v12
            v_mul_u32_u24 v13, 3, v12
            v_sub_u32 v11, v11, v13
            v_add_u32 v11, {sr(sD0)}, v11
            v_mul_u32_u24 v12, 10240, v12
            v_lshl_add_u32 {vr(210 + i)}, v11, 4, v12
            ''')
        k('v_lshlrev_b32 v212, 4, v89')
        self.wread_addr(213)
        k(f'''
        v_min_u32 v11, 11, v0
        v_mul_u32_u24 v12, 0x5556, v11
        v_lshrrev_b32 v12, 16, v12
        v_mul_u32_u24 v13, 3, v12
        v_sub_u32 v11, v11, v13
        v_cmp_eq_u32 vcc, 3, v12
        v_addc_co_u32 v12, vcc, 0, v12, vcc
        v_mul_u32_u24 v12, 640, v12
        v_add3_u32 v11, v11, v12, {sr(sD0)}
        v_lshlrev_b32 v11, 2, v11
        v_add_u32 v88, {MOD}, v11
        v_min_u32 v89, 319, v89
        v_lshlrev_b32 v90, 3, v89
        ''')
        k(f'''
        v_lshrrev_b32 v8, 4, v0
        v_bfe_u32 v9, v0, 2, 2
        v_and_b32 v10, 3, v0
        v_lshlrev_b32 v11, 1, v10
        v_lshl_add_u32 v11, v8, 2, v11
        v_lshrrev_b32 v12, 1, v9
        v_add_u32 v11, v11, v12
        v_mul_u32_u24 v11, 48, v11
        v_and_b32 v12, 1, v9
        v_lshl_add_u32 v11, v12, 3, v11
        v_add_u32 v1, {XNL0 - 14 * 48}, v11
        v_sub_u32 v11, v10, v9
        v_lshlrev_b32 v12, 3, v8
        v_sub_u32 v11, v11, v12
        v_lshlrev_b32 v11, 3, v11
        v_add_u32 v2, {KA + 32 + 2 * (112 - 16)}, v11
        v_lshlrev_b32 v11, 3, v9
        v_lshl_add_u32 v11, v8, 1, v11
        v_lshrrev_b32 v12, 1, v10
        v_add_u32 v11, v11, v12
        v_mul_u32_u24 v11, 48, v11
        v_and_b32 v12, 1, v10
        v_lshl_add_u32 v11, v12, 3, v11
        v_add_u32 v5, {XNL0}, v11
        ''')
        k(f'''
        s_mul_i32 s56, {sr(sW)}, {TRR}
        s_add_u32 s56, s56, {TR}
        v_lshl_add_u32 v6, v0, 4, s56
        v_lshl_add_u32 v7, v0, 2, s56
        v_mul_u32_u24 v4, {TRR}, v9
        v_lshl_add_u32 v4, v8, 5, v4
        v_lshl_add_u32 v4, v10, 3, v4
        s_and_b32 s55, {sr(sW)}, 1
        s_mul_i32 s56, s55, 640
        s_add_u32 s56, s56, {TR}
        v_add_u32 v4, s56, v4
        s_mul_i32 s57, s2, 10240
        s_mul_i32 s56, s55, 5120
        s_add_u32 s57, s57, s56
        v_lshl_add_u32 v3, v0, 4, s57
        s_add_u32 {sr(sTAG)}, {sr(sTAG)}, 0x9e3779b9
        ''')
        k(f'''
        s_and_b32 s55, s2, 7
        s_lshl_b32 s55, s55, 12
        v_lshrrev_b32 v11, 1, v0
        v_lshlrev_b32 v11, 7, v11
        v_and_b32 v12, 1, v0
        v_lshl_add_u32 v11, v12, 5, v11
        v_add_u32 v215, s55, v11
        ''')

    def poll_sync1(self, va, vd):
        k = self.k
        L, D = k.label('p1'), k.label('p1d')
        k(f'''
        {L}:
        global_load_dwordx4 {vr(vd, 4)}, {vr(va)}, {P2(pWS)} offset:{SYNC1} sc1
        global_load_dwordx4 {vr(vd + 4, 4)}, {vr(va)}, {P2(pWS)} offset:{SYNC1 + 16} sc1
        v_min3_u32 {vr(vd + 8)}, {vr(vd)}, {vr(vd + 1)}, {vr(vd + 2)}
        v_max3_u32 {vr(vd + 9)}, {vr(vd)}, {vr(vd + 1)}, {vr(vd + 2)}
        v_min3_u32 {vr(vd + 8)}, {vr(vd + 8)}, {vr(vd + 3)}, {vr(vd + 4)}
        v_max3_u32 {vr(vd + 9)}, {vr(vd + 9)}, {vr(vd + 3)}, {vr(vd + 4)}
        v_min3_u32 {vr(vd + 8)}, {vr(vd + 8)}, {vr(vd + 5)}, {vr(vd + 6)}
        v_max3_u32 {vr(vd + 9)}, {vr(vd + 9)}, {vr(vd + 5)}, {vr(vd + 6)}
        v_min_u32 {vr(vd + 8)}, {vr(vd + 8)}, {vr(vd + 7)}
        v_max_u32 {vr(vd + 9)}, {vr(vd + 9)}, {vr(vd + 7)}
        v_xor_b32 {vr(vd + 8)}, {sr(sTAG)}, {vr(vd + 8)}
        v_xor_b32 {vr(vd + 9)}, {sr(sTAG)}, {vr(vd + 9)}
        v_or_b32 {vr(vd + 8)}, {vr(vd + 8)}, {vr(vd + 9)}
        v_cmp_ne_u32 vcc, 0, {vr(vd + 8)}
        s_cbranch_vccz {D}
        s_sleep {self.o.get('sleep', 2)}
        s_add_u32 {sr(sSPIN)}, {sr(sSPIN)}, 1
        s_cmp_lt_u32 {sr(sSPIN)}, {SPIN_MAX}
        s_cbranch_scc1 {L}
        {D}:
        ''')

    def touch(self, ptr, size, sbyte, stride=128, lanes=64):
        k = self.k
        k(f'''
        v_mul_u32_u24 v84, {stride}, v0
        v_add_u32 v84, {sbyte}, v84
        v_min_u32 v84, {size - 4}, v84
        ''')
        if lanes < 64:
            k(f's_mov_b32 exec_lo, {hex((1 << min(lanes, 32)) - 1)}\ns_mov_b32 exec_hi, {hex((1 << max(lanes - 32, 0)) - 1)}')
        k(f'global_load_dword v83, v84, {P2(ptr)}')
        if lanes < 64:
            k('s_mov_b64 exec, -1')

    def stage_a(self):
        k = self.k
        L, L5 = k.label('nsa'), k.label('sa5')
        k(f'''
        s_cmp_lt_u32 s2, 40
        s_cbranch_scc1 {L}
        s_cmp_ge_u32 {sr(sW)}, 6
        s_cbranch_scc1 {L}
        s_cmp_eq_u32 {sr(sW)}, 5
        s_cbranch_scc1 {L5}
        s_mov_b32 {sr(sWI)}, {sr(sW)}
        ''')
        self.wunits(1, 5, 1)
        k(f's_branch {L}\n{L5}:')
        if self.o.get('tm', 0):
            k(f's_mul_i32 s55, {sr(sI)}, {178 * 128}')
            for i in range(3):
                self.touch(pWM, 640 * 3840 * 2, 's55')
                if i < 2:
                    k('s_add_u32 s55, s55, 8192')
        k(f'{L}:')

    def stage_b_touch(self):
        k = self.k
        if not self.o.get('tb', 0):
            return
        L = [k.label('tb') for _ in range(5)]
        k(f's_cmp_lt_u32 {sr(sW)}, 2\ns_cbranch_scc0 {L[0]}')
        k(f's_mul_i32 s55, {sr(sI)}, {80 * 128}\ns_mul_i32 s56, {sr(sW)}, {40 * 128}\ns_add_u32 s55, s55, s56')
        self.touch(pWD, 1728 * 640 * 2, 's55', lanes=40)
        k(f's_branch {L[2]}\n{L[0]}:')
        k(f'''
        s_mul_i32 s55, {sr(sWR)}, {8 * 3456}
        s_lshl_b32 s56, {sr(sNB)}, 7
        s_add_u32 s55, s55, s56
        s_add_u32 s55, s55, {320 * 3456}
        s_cmp_eq_u32 {sr(sW)}, 2
        s_cbranch_scc0 {L[1]}
        ''')
        self.touch(pWG, 640 * 1728 * 2, 's55', stride=3456, lanes=40)
        k(f's_branch {L[2]}\n{L[1]}:\ns_cmp_eq_u32 {sr(sW)}, 3\ns_cbranch_scc0 {L[2]}')
        self.touch(pWU, 640 * 1728 * 2, 's55', stride=3456, lanes=40)
        k(f'{L[2]}:')

    def ln1(self):
        k = self.k
        X = [92, 93, 94, 95, 91]
        k('v_mov_b32 v10, v91')
        self.stamp('xld')
        if self.o.get('sa_pos', 0) == 0:
            self.stage_a()
        k(f'''
        s_mov_b32 s55, 0x3f803f80
        v_mov_b32 v10, 0
        v_mov_b32 v11, 0
        ''')
        for j in range(5):
            k(f'v_dot2_f32_bf16 v10, v{X[j]}, s55, v10')
            k(f'v_dot2_f32_bf16 v11, v{X[j]}, v{X[j]}, v11')
        k(f'''
        v_permlane32_swap_b32 v10, v11
        v_add_f32 v10, v10, v11
        ''')
        for n in (8, 4, 2, 1):
            k(f'v_add_f32_dpp v10, v10, v10 row_ror:{n} row_mask:0xf bank_mask:0xf')
        k(f'''
        v_add_f32_dpp v10, v10, v10 row_bcast:15 row_mask:0xa bank_mask:0xf
        v_mov_b32 v13, {f32(1.0 / 640)}
        v_readlane_b32 s55, v10, 31
        v_readlane_b32 s56, v10, 63
        s_lshl_b32 s57, {sr(sW)}, 2
        v_mov_b32 v14, s57
        v_mul_f32 v10, s55, v13
        v_mul_f32 v11, s56, v13
        v_fma_f32 v11, -v10, v10, v11
        v_max_f32 v11, 0, v11
        v_cvt_pk_bf16_f32 v10, v10, v11
        v_and_b32 v11, 0xffff0000, v10
        v_lshlrev_b32 v10, 16, v10
        v_add_f32 v11, {f32(1e-5)}, v11
        v_cvt_pk_bf16_f32 v11, v11, v11
        v_lshlrev_b32 v11, 16, v11
        v_sqrt_f32 v11, v11
        v_lshlrev_b32 v15, 16, v92
        v_cvt_pk_bf16_f32 v13, v10, v11
        v_and_b32 v11, 0xffff0000, v13
        v_rcp_f32 v11, v11
        ''')
        k(f'ds_write_b32 v14, v13 offset:{TR + TRM}', tag='trw')
        k('v_mul_f32 v10, -v10, v11')
        for j in range(5):
            k(f'''
            v_lshlrev_b32 v13, 16, v{X[j]}
            v_and_b32 v14, 0xffff0000, v{X[j]}
            v_fma_f32 v13, v13, v11, v10
            v_fma_f32 v14, v14, v11, v10
            v_cvt_pk_bf16_f32 v{X[j]}, v13, v14
            ''')
            if j == 3:
                k('ds_write_b128 v6, v[92:95]', tag='trw')
        k('ds_write_b32 v7, v91 offset:1024', tag='trw')
        k.wait('trw')
        k('s_barrier')
        self.stamp('trb')
        if self.o.get('sa_pos', 0) == 1:
            self.stage_a()
        Ls = k.label('nost')
        k(f'''
        s_cmp_lt_u32 {sr(sW)}, 6
        s_cbranch_scc1 {Ls}
        ''')
        for i in range(5):
            k(f'ds_read_b64_tr_b16 v[{28 + 4 * i}:{29 + 4 * i}], v4 offset:{128 * i}')
            k(f'ds_read_b64_tr_b16 v[{30 + 4 * i}:{31 + 4 * i}], v4 offset:{128 * i + 4 * TRR}')
        k(f'''
        v_lshlrev_b32 v72, 4, v0
        ds_read_b128 v[68:71], v72 offset:{TR + TRM}
        s_mov_b32 s58, {XN}
        s_mov_b32 s59, {XN + 4096}
        ''')
        for i in range(5):
            k(f'buffer_store_dwordx4 v[{28 + 4 * i}:{31 + 4 * i}], v3, {P4(rWS)}, s{58 + i // 4} offen offset:{1024 * (i % 4)} sc1', tag='xnst')
        L6, L7, L8 = k.label('w6'), k.label('w7'), k.label('w8')
        k(f'''
        s_cmp_eq_u32 {sr(sW)}, 6
        s_cbranch_scc1 {L6}
        v_mov_b32 v68, 0
        v_mov_b32 v69, 0
        v_mov_b32 v70, 0
        v_mov_b32 v71, 0
        s_cmp_ge_u32 s2, 40
        s_cbranch_scc1 {L8}
        s_add_u32 s56, s2, 10
        s_cmp_lt_u32 s2, 30
        s_cselect_b32 s56, s2, s56
        s_lshl_b32 s56, s56, 8
        s_lshl_b32 s57, s2, 8
        s_add_u32 s56, s56, {MOD}
        s_add_u32 s57, s57, {MODP}
        s_mov_b64 exec, 0xffff
        buffer_store_dwordx4 v[68:71], v72, {P4(rWS)}, s56 offen sc1
        buffer_store_dwordx4 v[68:71], v72, {P4(rWS)}, s57 offen sc1
        {L8}:
        s_mul_i32 s56, s2, 224
        s_add_u32 s56, s56, {ZBEG}
        s_mov_b64 exec, 0x3fff
        s_branch {L7}
        {L6}:
        s_lshl_b32 s56, s2, 5
        s_add_u32 s56, s56, {MS}
        s_mov_b64 exec, 3
        {L7}:
        ''')
        k(f'buffer_store_dwordx4 v[68:71], v72, {P4(rWS)}, s56 offen sc1', tag='xnst')
        k(f'''
        s_mov_b64 exec, -1
        s_lshr_b32 s56, s2, 3
        s_lshl_b32 s56, s56, 7
        s_and_b32 s57, s2, 7
        s_lshl_b32 s57, s57, 3
        s_add_u32 s56, s56, s57
        s_and_b32 s57, {sr(sW)}, 1
        s_lshl_b32 s57, s57, 2
        s_add_u32 s56, s56, s57
        v_lshl_add_u32 v16, v0, 12, s56
        v_mov_b32 v17, {sr(sTAG)}
        s_mov_b64 exec, 0xff
        ''')
        k.wait('xnst')
        k(f'''
        global_store_dword v16, v17, {P2(pWS)} offset:{SYNC1} sc1
        s_mov_b64 exec, -1
        ''')
        self.stamp('A')
        k(f'''
        s_cmp_lt_u32 s2, 40
        s_cbranch_scc1 {Ls}
        s_sub_u32 {sr(sWI)}, {sr(sW)}, 1
        ''')
        nb_ = self.o.get('wb', 10)
        self.wunits(nb_, 5 + 2 * nb_, 2)
        pass
        k(f'{Ls}:')

    def wunits(self, n, end, step):
        k = self.k
        L = k.label('wsd')
        for i in range(n):
            k(f'''
            s_cmp_ge_u32 {sr(sWI)}, {end}
            s_cbranch_scc1 {L}
            s_add_u32 s55, {sr(sWI)}, {sr(sWR)}
            s_sub_u32 s56, s55, 40
            s_cselect_b32 s55, s55, s56
            s_lshl_b32 s56, s55, 11
            s_add_u32 m0, s56, {STG}
            s_mul_i32 s55, s55, {8 * 3456}
            s_add_u32 s55, s55, {sr(sWO)}
            s_add_u32 {sr(sWI)}, {sr(sWI)}, {step}
            ''')
            k(f'buffer_load_dwordx4 v26, {P4(rA)}, s55 offen lds', tag='wst')
            k(f's_add_u32 m0, s56, {STG + 1024}')
            k(f'buffer_load_dwordx4 v27, {P4(rB)}, s55 offen lds', tag='wst')
        k(f'{L}:')

    def wread_addr(self, va):
        self.k(f'''
        v_bfe_u32 {vr(va + 1)}, v0, 3, 2
        s_and_b32 s55, {sr(sW)}, 3
        v_xor_b32 {vr(va + 1)}, s55, {vr(va + 1)}
        v_lshrrev_b32 {vr(va)}, 4, v0
        v_lshlrev_b32 {vr(va)}, 10, {vr(va)}
        v_lshl_add_u32 {vr(va)}, {vr(va + 1)}, 5, {vr(va)}
        v_bfe_u32 {vr(va + 1)}, v0, 2, 2
        v_lshl_add_u32 {vr(va)}, {vr(va + 1)}, 7, {vr(va)}
        v_and_b32 {vr(va + 1)}, 3, v0
        v_lshl_add_u32 {vr(va)}, {vr(va + 1)}, 3, {vr(va)}
        v_add_u32 {vr(va)}, {STG}, {vr(va)}
        v_add_u32 {vr(va + 1)}, {10 * 4096}, {vr(va)}
        ''')

    def wstage_read(self, rnd, va):
        k = self.k
        for s in range(20):
            r = WF + 4 * (20 * rnd + s)
            a = va if s < 10 else va + 1
            off = (s % 10) * 4096
            k(f'ds_read_b64_tr_b16 {vr(r, 2)}, {vr(a)} offset:{off}', tag='wrd')
            k(f'ds_read_b64_tr_b16 {vr(r + 2, 2)}, {vr(a)} offset:{off + 512}', tag='wrd')

    def cmul(self, d, a, b):
        self.k(f'v_pk_mul_f32 {vr(d, 2)}, {vr(a, 2)}, {vr(b, 2)} op_sel:[0,0] op_sel_hi:[0,1]')
        self.k(f'v_pk_fma_f32 {vr(d, 2)}, {vr(a, 2)}, {vr(b, 2)}, {vr(d, 2)} op_sel:[1,1,0] op_sel_hi:[1,0,1] neg_lo:[1,0,0]')

    def zpow(self, d, e, a2, fr, t):
        k = self.k
        k(f'''
        v_mul_f32 {vr(t)}, {f32(e)}, {vr(a2)}
        v_mul_f32 {vr(t + 1)}, {f32(e)}, {vr(fr)}
        v_exp_f32 {vr(t)}, {vr(t)}
        v_fract_f32 {vr(t + 1)}, {vr(t + 1)}
        v_cos_f32 {vr(d)}, {vr(t + 1)}
        v_sin_f32 {vr(d + 1)}, {vr(t + 1)}
        v_mul_f32 {vr(d)}, {vr(d)}, {vr(t)}
        v_mul_f32 {vr(d + 1)}, {vr(d + 1)}, {vr(t)}
        ''')

    def kgen(self):
        k = self.k
        Lskip = k.label('nokg')
        k(f's_cmp_ge_u32 {sr(sW)}, 6\ns_cbranch_scc1 {Lskip}')
        A2, FR, T = 28, 29, 30
        Z = {e: 32 + 2 * e for e in range(1, 8)}
        Z8, Z128, QA, QB, PA, PB, PC = 48, 50, 52, 54, 56, 58, 60
        CV = 62
        QF, PF, AC = 64, 176, 192
        RA = 80
        k(f'''
        v_lshlrev_b32 v24, 16, v24
        v_lshlrev_b32 v20, 16, v20
        v_mul_f32 v24, {f32(LOG2E)}, v24
        v_mul_f32 v20, {f32(LOG2E)}, v20
        v_exp_f32 v24, v24
        v_exp_f32 v20, v20
        v_lshlrev_b32 v21, 16, v21
        v_cvt_pk_bf16_f32 v20, v20, v24
        v_and_b32 v24, 0xffff0000, v20
        v_lshlrev_b32 v20, 16, v20
        v_mul_f32 {vr(A2)}, v20, v24
        v_mul_f32 {vr(FR)}, v21, v24
        v_mul_f32 {vr(A2)}, {f32(-LOG2E)}, {vr(A2)}
        v_mul_f32 {vr(FR)}, 0.15915494, {vr(FR)}
        v_add_f32 v24, v24, v24
        v_lshlrev_b32 v22, 16, v22
        v_lshlrev_b32 v23, 16, v23
        v_mul_f32 {vr(QA)}, v22, v24
        v_mul_f32 {vr(QA + 1)}, v23, v24
        s_mul_i32 s60, {sr(sW)}, {KGS}
        s_mov_b32 m0, s60
        v_and_b32 {vr(RA)}, 15, v0
        v_mul_u32_u24 {vr(RA)}, 288, {vr(RA)}
        v_lshrrev_b32 {vr(RA + 1)}, 4, v0
        v_lshl_add_u32 {vr(RA)}, {vr(RA + 1)}, 4, {vr(RA)}
        v_add_u32 {vr(RA)}, s60, {vr(RA)}
        ''')
        self.zpow(Z8, 8.0, A2, FR, T)
        self.zpow(Z[1], 1.0, A2, FR, T)
        self.zpow(Z128, 128.0, A2, FR, T)
        flip = [0]

        def put(row, r, neg=False):
            c = CV + flip[0]
            flip[0] ^= 1
            k(f'v_cvt_pk_bf16_f32 {vr(c)}, {vr(r)}, {"-" if neg else ""}{vr(r + 1)}')
            k(f'ds_write_addtid_b32 {vr(c)} offset:{288 * row}')

        def frags(dst):
            for s in range(4):
                k(f'ds_read_b128 {vr(dst + 4 * s, 4)}, {vr(RA)} offset:{64 * s}')

        def mm(acc):
            for s in range(4):
                c = '0' if s == 0 else vr(acc, 4)
                k(f'v_mfma_f32_16x16x32_bf16 {vr(acc, 4)}, {vr(PF + 4 * s, 4)}, {vr(QF + 4 * s, 4)}, {c}')

        small = [(2, 1, 1), (3, 2, 1), (4, 2, 2), (5, 4, 1), (6, 4, 2), (7, 4, 3)]
        cur, nxt = QA, QB
        for b in range(16):
            if b < 15:
                self.cmul(nxt, cur, Z8)
            put(b, cur, neg=True)
            if b < len(small):
                e, x, y = small[b]
                self.cmul(Z[e], Z[x], Z[y])
            cur, nxt = nxt, cur
        frags(QF)
        self.stage_b_touch()
        k(f'v_mov_b32 {vr(CV)}, 0x3f80')
        k(f'ds_write_addtid_b32 {vr(CV)} offset:0')
        flip[0] = 1
        put(8, Z128)
        cur, nxt = PA, PB
        for e in range(1, 8):
            self.cmul(cur, Z[e], Z128)
            put(e, Z[e])
            put(8 + e, cur)
            cur, nxt = nxt, cur
        frags(PF)
        self.cmul(QA, Z128, Z128)
        self.cmul(QB, QA, Z128)
        mm(AC)
        put(0, QA)
        put(4, QB)
        for e in (1, 2, 3):
            self.cmul(PA, QA, Z[2 * e])
            self.cmul(PB, QB, Z[2 * e])
            put(e, PA)
            put(4 + e, PB)
        cur, nxt = QB, QA
        for a in range(4):
            self.cmul(nxt, cur, Z128)
            self.cmul(PA, nxt, Z[4])
            put(8 + 2 * a, nxt)
            put(9 + 2 * a, PA)
            cur, nxt = nxt, cur
        frags(PF)
        self.cmul(nxt, cur, Z128)
        cur, nxt = nxt, cur
        mm(AC + 4)
        for a in range(9):
            if a < 8:
                self.cmul(nxt, cur, Z128)
            put(a, cur)
            cur, nxt = nxt, cur
        frags(PF)
        k(f'''
        v_lshrrev_b32 {vr(RA + 1)}, 4, v0
        v_mul_u32_u24 {vr(RA + 1)}, 320, {vr(RA + 1)}
        v_and_b32 {vr(RA + 2)}, 15, v0
        v_lshl_add_u32 {vr(RA + 1)}, {vr(RA + 2)}, 2, {vr(RA + 1)}
        s_mul_i32 s55, {sr(sW)}, {KCS}
        s_add_u32 s55, s55, {KC}
        v_add_u32 {vr(RA + 1)}, s55, {vr(RA + 1)}
        ''')
        for Tt in range(2):
            for i in range(4):
                k(f'ds_write_b32 {vr(RA + 1)}, {vr(AC + 4 * Tt + i)} offset:{(16 * Tt + i) * 80}', tag='kcw')
        mm(AC + 8)
        for i in range(4):
            k(f'ds_write_b32 {vr(RA + 1)}, {vr(AC + 8 + i)} offset:{(32 + i) * 80}', tag='kcw')
        k(f'{Lskip}:')

    def kexpand1(self):
        k = self.k
        V = lambda ch, j: 36 + 4 * ch + j
        PK, SC = 48, 54
        k(f'''
        v_lshlrev_b32 v25, 16, v25
        v_cmp_eq_u32 s[58:59], 0, v208
        v_readlane_b32 s62, v25, 0
        v_readlane_b32 s63, v25, 1
        v_readlane_b32 s64, v25, 2
        v_mov_b32 v64, 0
        v_mov_b32 v65, 0
        v_mov_b32 v66, 0
        v_mov_b32 v67, 0
        v_lshlrev_b32 v35, 4, v0
        ''')
        for ch in range(3):
            k(f'v_mov_b32 {vr(SC + ch)}, s{62 + ch}')
            k(f'v_cndmask_b32 {vr(SC + ch)}, 0, {vr(SC + ch)}, s[58:59]')
        k.wait('kcw')
        k('s_barrier')
        self.stamp('kcw')
        for ch in range(3):
            for j in range(4):
                k(f'ds_read2st64_b32 {vr(176 + 8 * ch + 2 * j, 2)}, {vr(GA + j)} offset0:{30 * ch} offset1:{30 * ch + 15}')
        L = self.only_wave(7)
        k(f's_mov_b32 exec_lo, -1\ns_mov_b32 exec_hi, 0x3ff')
        k(f'ds_write_b128 v35, v[64:67] offset:{XNL0 - 672}', tag='kaw')
        k(f's_mov_b64 exec, 3')
        for ch in range(3):
            k(f'ds_write_b128 v35, v[64:67] offset:{KA + ch * KAS}', tag='kaw')
        k(f's_mov_b64 exec, -1')
        k(f'{L}:')
        k(f's_add_u32 {sr(sWI)}, {sr(sW)}, {5 + 2 * self.o.get("wb", 10)}')
        self.wunits((35 - 2 * self.o.get('wb', 10) + 7) // 8, 40, 8)
        for ch in range(3):
            for j in range(4):
                k(f'v_add_f32 {vr(V(ch, j))}, {vr(176 + 8 * ch + 2 * j)}, {vr(177 + 8 * ch + 2 * j)}')
            k(f'v_add_f32 {vr(V(ch, 0))}, {vr(V(ch, 0))}, {vr(SC + ch)}')
        for ch in range(3):
            k(f'v_cvt_pk_bf16_f32 {vr(PK + 2 * ch)}, {vr(V(ch, 0))}, {vr(V(ch, 1))}')
            k(f'v_cvt_pk_bf16_f32 {vr(PK + 2 * ch + 1)}, {vr(V(ch, 2))}, {vr(V(ch, 3))}')
            k(f'ds_write_b64 v208, {vr(PK + 2 * ch, 2)} offset:{KA + ch * KAS + 32}', tag='kaw')
        for j in range(1, 4):
            for ch in range(3):
                k(f'v_add_f32 {vr(V(ch, j))}, {vr(V(ch, j))}, {vr(V(ch, j - 1))}')
        for n in (1, 2, 4, 8):
            for ch in range(3):
                src = V(ch, 3) if n == 1 else SC + ch
                k(f'v_add_f32_dpp {vr(SC + ch)}, {vr(src)}, {vr(src)} row_shr:{n} row_mask:0xf bank_mask:0xf bound_ctrl:0')
        for ch in range(3):
            k(f'v_add_f32_dpp {vr(SC + ch)}, {vr(SC + ch)}, {vr(SC + ch)} row_bcast:15 row_mask:0xa bank_mask:0xf')
        for ch in range(3):
            k(f'v_add_f32_dpp {vr(SC + ch)}, {vr(SC + ch)}, {vr(SC + ch)} row_bcast:31 row_mask:0xc bank_mask:0xf')
        k(f'''
        s_lshl_b32 s55, {sr(sW)}, 2
        s_add_u32 s55, s55, {WT}
        v_mov_b32 v33, s55
        s_mov_b32 exec_lo, 0
        s_brev_b32 exec_hi, 1
        ''')
        for ch in range(3):
            k(f'ds_write_b32 v33, {vr(SC + ch)} offset:{32 * ch}', tag='kaw')
        k('s_mov_b64 exec, -1')

    def kexpand2(self):
        k = self.k
        V = lambda ch, j: 36 + 4 * ch + j
        SC = 54
        k(f'''
        v_min_u32 v33, 23, v0
        v_lshlrev_b32 v33, 2, v33
        v_add_u32 v33, {WT}, v33
        ds_read_b32 v34, v33
        v_and_b32 v33, 7, v0
        v_cmp_gt_u32 vcc, {sr(sW)}, v33
        ''')
        for ch in range(3):
            k(f'v_sub_f32 {vr(SC + ch)}, {vr(SC + ch)}, {vr(V(ch, 3))}')
        k('v_cndmask_b32 v34, 0, v34, vcc')
        for n in (1, 2, 4):
            k(f'v_add_f32_dpp v34, v34, v34 row_shr:{n} row_mask:0xf bank_mask:0xf bound_ctrl:0')
        k(f'''
        v_readlane_b32 s62, v34, 7
        v_readlane_b32 s63, v34, 15
        v_readlane_b32 s64, v34, 23
        ''')
        for ch in range(3):
            k(f'v_add_f32 {vr(SC + ch)}, s{62 + ch}, {vr(SC + ch)}')
            for j in range(4):
                k(f'v_add_f32 {vr(V(ch, j))}, {vr(V(ch, j))}, {vr(SC + ch)}')
            k(f'ds_write_b128 v209, {vr(V(ch, 0), 4)} offset:{SA + ch * SAS}', tag='saw')

    def conv_loads(self):
        k = self.k
        k(f'''
        s_lshl_b32 s60, {sr(sW)}, 10
        s_mov_b32 s57, {XN}
        s_mov_b32 s58, {MS}
        ''')
        L = self.only_wave(0)
        self.poll_sync1(215, 58)
        k(f'{L}:')
        k.wait('kaw', 'wst')
        k('s_barrier')
        self.stamp('sync1')
        k(f's_add_u32 m0, s60, {XNL0}')
        k(f'buffer_load_dwordx4 v210, {P4(rWS)}, s57 offen sc1 lds', tag='xnl')
        L = k.label('x2')
        k(f's_cmp_ge_u32 {sr(sW)}, 4\ns_cbranch_scc1 {L}\ns_add_u32 m0, s60, {XNL0 + 8192}')
        k(f'buffer_load_dwordx4 v211, {P4(rWS)}, s57 offen sc1 lds', tag='xnl')
        k(f'{L}:\ns_add_u32 m0, s60, {MSL}')
        k(f'buffer_load_dwordx4 v212, {P4(rWS)}, s58 offen sc1 lds', tag='xnl')

    def conv_consts(self):
        k = self.k
        self.poll(88, 17, 1, preissued=True)
        k(f'''
        v_and_b32 v17, 0xffff0000, v17
        v_add_f32 v16, 1.0, v17
        v_cvt_pk_bf16_f32 v16, v16, v16
        v_lshlrev_b32 v16, 16, v16
        v_mov_b32_dpp v18, v17 row_shr:6 row_mask:0xf bank_mask:0xf bound_ctrl:0
        v_mov_b32_dpp v19, v16 row_shr:3 row_mask:0xf bank_mask:0xf bound_ctrl:0
        v_mul_f32 v18, v18, v17
        v_mul_f32 v19, v19, v17
        ''')
        for ch in range(3):
            k(f'v_readlane_b32 {sr(sCH + 3 * ch)}, v19, {6 + ch}')
            k(f'v_readlane_b32 {sr(sCH + 3 * ch + 1)}, v18, {6 + ch}')
            k(f'v_readlane_b32 {sr(sCH + 3 * ch + 2)}, v16, {9 + ch}')

    def conv(self):
        k = self.k
        H, KF, ACC, AX = 32, 64, 176, 208
        vHB, vKB, vH, vK, vXB, vSB, vO = 1, 2, 3, 4, 5, 6, 7
        XV, SV, TT, MV = 212, 216, 224, 244
        sL, sG, sC, sN, sPEND = 65, 66, 67, 68, 69
        k(f'''
        s_lshl_b32 s55, {sr(sW)}, 2
        s_lshr_b32 s55, 0x56437210, s55
        s_and_b32 {sr(sWI)}, s55, 15
        s_cmp_ge_u32 {sr(sWI)}, 6
        s_cselect_b32 {sr(sWI)}, 40, {sr(sWI)}
        s_mov_b32 {sr(sWO)}, {320 * 3456}
        s_add_u32 s94, s{pWS}, {MOD + 4 * 2560}
        s_addc_u32 s95, s{pWS + 1}, 0
        s_add_u32 s96, s{pWS}, {MODP}
        s_addc_u32 s97, s{pWS + 1}, 0
        s_add_u32 s98, s{pWS}, {MODP + 5120}
        s_addc_u32 s99, s{pWS + 1}, 0
        ''')
        U = lambda G, ch: 4 * ch + G + 1
        lists = [[U(3, 0)], [U(3, 1)], [U(3, 2)], [U(0, 2), U(2, 2)], [U(2, 0)], [U(2, 1)],
                 [U(0, 0), U(0, 1), U(1, 0)], [U(1, 1), U(1, 2)]]
        enc = [sum(u << (4 * i) for i, u in enumerate(l)) for l in lists]
        for w in range(8):
            k(f's_cmp_eq_u32 {sr(sW)}, {w}\ns_cmov_b32 {sr(sL)}, {enc[w]}' if w else f's_mov_b32 {sr(sL)}, {enc[0]}')
        k(f's_mov_b32 {sr(sPEND)}, 0\ns_mov_b32 {sr(sFLAG)}, 0')
        if self.o.get('prio', True):
            L = k.label('np')
            k(f's_and_b32 s55, {sr(sL)}, 3\ns_cmp_lg_u32 s55, 1\ns_cbranch_scc1 {L}\ns_setprio 2\n{L}:')
        k.wait('xnl', 'saw', 'wrd')
        k('s_barrier')
        self.stamp('xnl')
        Lu, Lloop, Ltail, Ldone = k.label('unit'), k.label('cl'), k.label('ct'), k.label('cdone')
        k(f'''
        {Lu}:
        s_and_b32 s55, {sr(sL)}, 15
        s_sub_u32 s55, s55, 1
        s_and_b32 {sr(sG)}, s55, 3
        s_lshr_b32 {sr(sC)}, s55, 2
        s_lshr_b32 {sr(sL)}, {sr(sL)}, 4
        s_mul_i32 s55, {sr(sG)}, 3072
        s_lshl_b32 s56, {sr(sC)}, 4
        s_add_u32 s55, s55, s56
        v_add_u32 {vr(vH)}, s55, {vr(vHB)}
        v_add_u32 v8, s55, {vr(vXB)}
        s_mul_i32 s56, {sr(sC)}, {KAS}
        v_add_u32 {vr(vK)}, s56, {vr(vKB)}
        ''')
        hs = lambda m: H + 4 * (m % 8)
        ks = lambda q: KF + 4 * (q % 4)

        def ldh(slot_m, base, off):
            k(f'ds_read_b64_tr_b16 {vr(hs(slot_m), 2)}, {vr(base)} offset:{off}')
            k(f'ds_read_b64_tr_b16 {vr(hs(slot_m) + 2, 2)}, {vr(base)} offset:{off + 96}')

        def ldk(q, off):
            k(f'ds_read_b64_tr_b16 {vr(ks(q), 2)}, {vr(vK)} offset:{off + 32}')
            k(f'ds_read_b64_tr_b16 {vr(ks(q) + 2, 2)}, {vr(vK)} offset:{off}')

        def mf(acc, m, q, zero=False):
            c = '0' if zero else vr(acc, 4)
            k(f'v_mfma_f32_16x16x32_bf16 {vr(acc, 4)}, {vr(hs(m), 4)}, {vr(ks(q), 4)}, {c}')

        ldk(0, 0)
        for i in (7, 6, 5, 4, 3, 2, 1, 0):
            ldh(i, vH, 384 * i)
        ldk(1, 256)
        k(f'''
        v_subrev_u32 v11, 768, {vr(vH)}
        v_subrev_u32 {vr(vH)}, 3840, {vr(vH)}
        s_lshl_b32 s55, {sr(sC)}, 13
        s_lshl_b32 s56, {sr(sG)}, 11
        s_add_u32 s55, s55, s56
        s_add_u32 s55, s55, {SA}
        v_lshl_add_u32 {vr(vSB)}, v0, 2, s55
        s_add_u32 s56, s56, {MSL}
        v_lshl_add_u32 v22, v0, 2, s56
        v_mov_b32 {vr(AX)}, 0
        v_mov_b32 {vr(AX + 1)}, 0
        v_mov_b32 {vr(AX + 2)}, 0
        v_mov_b32 {vr(AX + 3)}, 0
        s_mov_b32 {sr(sN)}, {sr(sG)}
        ''')
        mf(ACC + 28, 7, 0, True)
        mf(ACC + 24, 6, 0, True)
        ldh(6, 11, 0)
        ldh(7, 11, 384)
        for i in (5, 4, 3, 2, 1, 0):
            mf(ACC + 4 * i, i, 0, True)
        self.wunits(3, 40, 6)
        k(f's_cmp_eq_u32 {sr(sN)}, 0\ns_cbranch_scc1 {Ltail}')
        k(f'{Lloop}:')
        for u in range(1, 5):
            mf(ACC + 28, 7 - 2 * u, u)
            mf(ACC + 24, 6 - 2 * u, u)
            ldh(6 - 2 * u, vH, 384 * (8 - 2 * u))
            ldh(7 - 2 * u, vH, 384 * (9 - 2 * u))
            ldk(u + 1, 256 * (u + 1))
            for i in (5, 4, 3, 2, 1, 0):
                mf(ACC + 4 * i, i - 2 * u, u)
            mf(AX, 1 - 2 * u, u - 1)
        Lnp = k.label('nopend')
        self.wunits(2, 40, 6)
        k(f'''
        v_subrev_u32 {vr(vH)}, 3072, {vr(vH)}
        v_add_u32 {vr(vK)}, 1024, {vr(vK)}
        s_cmp_eq_u32 {sr(sPEND)}, 0
        s_cbranch_scc1 {Lnp}
        s_mov_b32 {sr(sPEND)}, 0
        s_waitcnt vmcnt(0)
        s_lshl_b32 s55, {sr(sI)}, 1
        s_and_b32 s56, {sr(sW)}, 1
        s_add_u32 s55, s55, s56
        s_and_b32 s55, s55, 15
        ''')
        self.arrive(SYNC2A, 16, 's55', 9)
        self.stamp('pub0')
        k(f'''
        {Lnp}:
        s_sub_u32 {sr(sN)}, {sr(sN)}, 1
        s_cmp_lg_u32 {sr(sN)}, 0
        s_cbranch_scc1 {Lloop}
        {Ltail}:
        global_load_dword v17, v88, {P2(pWS)} sc1
        global_load_dwordx2 v[14:15], v90, s[94:95] sc1
        global_load_dwordx2 v[12:13], v90, s[96:97] sc1
        global_load_dwordx2 v[24:25], v90, s[96:97] offset:2560 sc1
        global_load_dwordx2 v[28:29], v90, s[98:99] sc1
        global_load_dwordx2 v[30:31], v90, s[98:99] offset:2560 sc1
        ''')
        ldk(2, 512)
        for i in (7, 6, 5, 4, 3, 2):
            mf(ACC + 4 * i, i - 2, 1)
        ldk(3, 768)
        k(f'ds_read_b64_tr_b16 {vr(XV, 2)}, v8')
        k(f'ds_read_b64_tr_b16 {vr(XV + 2, 2)}, v8 offset:1536')
        for i in range(4):
            k(f'ds_read2st64_b32 {vr(SV + 2 * i, 2)}, {vr(vSB)} offset0:{2 * i} offset1:{2 * i + 1}')
        for i in range(4):
            k(f'ds_read2st64_b32 {vr(MV + 2 * i, 2)}, v22 offset0:{2 * i} offset1:{2 * i + 1}')
        for i in (7, 6, 5, 4):
            mf(ACC + 4 * i, i - 4, 2)
        for i in (7, 6):
            mf(ACC + 4 * i, i - 6, 3)
        self.stamp('c_mm')
        Lc = k.label('hc')
        k(f's_cmp_lg_u32 {sr(sFLAG)}, 0\ns_cbranch_scc1 {Lc}')
        self.conv_consts()
        k(f'{Lc}:')
        self.stamp('c_cs')
        k(f'''
        s_mov_b32 {sr(sFLAG)}, 1
        s_cmp_eq_u32 {sr(sC)}, 1
        s_cselect_b32 s55, {sr(sCH + 3)}, {sr(sCH)}
        s_cselect_b32 s56, {sr(sCH + 4)}, {sr(sCH + 1)}
        s_cselect_b32 s57, {sr(sCH + 5)}, {sr(sCH + 2)}
        s_cmp_eq_u32 {sr(sC)}, 2
        s_cselect_b32 s55, {sr(sCH + 6)}, s55
        s_cselect_b32 s56, {sr(sCH + 7)}, s56
        s_cselect_b32 s57, {sr(sCH + 8)}, s57
        s_add_u32 s58, {sr(sD0)}, {sr(sC)}
        s_lshl_b32 s58, s58, 12
        s_lshl_b32 s59, {sr(sG)}, 10
        s_add_u32 s58, s58, s59
        s_add_u32 s59, s58, {X1S}
        s_add_u32 s58, s58, {X1T}
        v_lshlrev_b32 {vr(vO)}, 4, v0
        ''')
        SH = 'wave_shr:1 row_mask:0xf bank_mask:0xf'
        RO = 'wave_ror:1 row_mask:0xf bank_mask:0xf'
        a = lambda i, e: (AX if i < 0 else ACC + 4 * i) + e
        t2 = lambda i: TT + 1 + i
        t1 = lambda i: TT + 11 + i
        k(f'v_add_f32_dpp {vr(t2(-1))}, {vr(a(-1, 3))}, {vr(a(-1, 2))} {SH} bound_ctrl:0')
        for i in range(8):
            k(f'v_add_f32_dpp {vr(t2(i))}, {vr(a(i - 1, 3))}, {vr(a(i, 2))} {RO}')
        for i in range(8):
            k(f'v_add_f32_dpp {vr(t2(i))}, {vr(a(i, 3))}, {vr(a(i, 2))} {SH}')
        k(f'v_add_f32_dpp {vr(t1(-1))}, {vr(t2(-1))}, {vr(a(-1, 1))} {SH} bound_ctrl:0')
        for i in range(8):
            k(f'v_add_f32_dpp {vr(t1(i))}, {vr(t2(i - 1))}, {vr(a(i, 1))} {RO}')
        for i in range(8):
            k(f'v_add_f32_dpp {vr(t1(i))}, {vr(t2(i))}, {vr(a(i, 1))} {SH}')
        for i in range(8):
            k(f'v_add_f32_dpp {vr(a(i, 3))}, {vr(t1(i - 1))}, {vr(a(i, 0))} {RO}')
        for i in range(8):
            k(f'v_add_f32_dpp {vr(a(i, 3))}, {vr(t1(i))}, {vr(a(i, 0))} {SH}')
        for i in range(8):
            xr = XV + i // 2
            if i % 2 == 0:
                k(f'v_lshlrev_b32 {vr(t1(i))}, 16, {vr(xr)}')
            else:
                k(f'v_and_b32 {vr(t1(i))}, 0xffff0000, {vr(xr)}')
            k(f'v_lshlrev_b32 {vr(t2(i))}, 16, {vr(MV + i)}')
            k(f'v_and_b32 {vr(MV + i)}, 0xffff0000, {vr(MV + i)}')
            k(f'v_fmac_f32 {vr(t2(i))}, s56, {vr(SV + i)}')
            k(f'v_fmac_f32 {vr(t2(i))}, {vr(t1(i))}, {vr(MV + i)}')
        for i in range(8):
            k(f'v_fmac_f32 {vr(t2(i))}, s55, {vr(a(i, 3))}')
        for i in range(4):
            k(f'v_cvt_pk_bf16_f32 {vr(XV + i)}, {vr(t2(2 * i))}, {vr(t2(2 * i + 1))}')
        for i in range(8):
            k(f'v_mul_f32 {vr(t2(i))}, s57, {vr(t2(i))}')
        k(f'buffer_store_dwordx4 {vr(XV, 4)}, {vr(vO)}, {P4(rWS)}, s58 offen sc1', tag='x1st')
        for i in range(4):
            k(f'v_cvt_pk_bf16_f32 {vr(SV + i)}, {vr(t2(2 * i))}, {vr(t2(2 * i + 1))}')
        k(f'buffer_store_dwordx4 {vr(SV, 4)}, {vr(vO)}, {P4(rWS)}, s59 offen sc1', tag='x1st')
        Ln = k.label('ng0')
        k(f'''
        s_cmp_lg_u32 {sr(sG)}, 0
        s_cbranch_scc1 {Ln}
        s_mov_b32 {sr(sPEND)}, 1
        s_and_b32 s55, {sr(sL)}, 3
        s_cmp_eq_u32 s55, 1
        s_cbranch_scc1 {Ln}
        s_setprio 0
        {Ln}:
        s_and_b32 s55, {sr(sL)}, 15
        s_cmp_lg_u32 s55, 0
        s_cbranch_scc1 {Lu}
        ''')
        self.stamp('conv')

    def window2(self):
        k = self.k
        AC, TF, CB = 32, 16, 92
        Lr, Ld = k.label('tb'), k.label('tbd')
        chk = f'''
        v_min_u32 v16, v12, v13
        v_min3_u32 v16, v16, v14, v15
        v_min3_u32 v16, v16, v24, v25
        v_min3_u32 v16, v16, v28, v29
        v_min3_u32 v16, v16, v30, v31
        v_cmp_eq_u32 vcc, 0, v16
        s_cbranch_vccz {Ld}
        '''
        k(chk)
        k(f'''
        {Lr}:
        global_load_dwordx2 v[14:15], v90, s[94:95] sc1
        global_load_dwordx2 v[12:13], v90, s[96:97] sc1
        global_load_dwordx2 v[24:25], v90, s[96:97] offset:2560 sc1
        global_load_dwordx2 v[28:29], v90, s[98:99] sc1
        global_load_dwordx2 v[30:31], v90, s[98:99] offset:2560 sc1
        ''')
        k(chk)
        k(f'''
        s_sleep {self.o.get('sleep', 2)}
        s_add_u32 {sr(sSPIN)}, {sr(sSPIN)}, 1
        s_cmp_lt_u32 {sr(sSPIN)}, {SPIN_MAX}
        s_cbranch_scc1 {Lr}
        {Ld}:
        v_and_b32 v14, 0xffff0000, v14
        v_and_b32 v15, 0xffff0000, v15
        v_add_f32 v14, 1.0, v14
        v_add_f32 v15, 1.0, v15
        v_add_f32 v12, v12, v24
        v_add_f32 v13, v13, v25
        v_add_f32 v28, v28, v30
        v_add_f32 v29, v29, v31
        v_add_f32 v12, v12, v28
        v_add_f32 v13, v13, v29
        v_cvt_pk_bf16_f32 v14, v14, v15
        v_cvt_pk_bf16_f32 v12, v12, v13
        v_lshlrev_b32 v20, 2, v89
        v_add_u32 v20, {TAB}, v20
        ''')
        k(f'ds_write_b32 v20, v14', tag='tabw')
        k(f'ds_write_b32 v20, v12 offset:1280', tag='tabw')
        k(f'''
        v_and_b32 v8, 1, v0
        v_mul_u32_u24 v8, 1280, v8
        v_lshrrev_b32 v9, 5, v0
        v_lshl_add_u32 v8, v9, 4, v8
        v_add_u32 v8, {TAB}, v8
        ''')
        self.poll_addr(SYNC2A, 16, 7)
        k.wait('wst', 'tabw')
        k('s_barrier')
        self.stamp('barX')

        def half(h):
            for s in range(4):
                k(f'ds_read_b128 {vr(TF + 4 * s, 4)}, v8 offset:{32 * (20 * h + s)}')
            for s in range(20):
                c = '0' if s == 0 else vr(AC, 16)
                k(f'v_mfma_f32_32x32x16_bf16 {vr(AC, 16)}, {vr(TF + 4 * (s % 4), 4)}, {vr(WF + 4 * (20 * h + s), 4)}, {c}')
                if s + 4 < 20:
                    k(f'ds_read_b128 {vr(TF + 4 * (s % 4), 4)}, v8 offset:{32 * (20 * h + s + 4)}')
        L1, L2 = k.label('cs1'), k.label('cs2')
        k(f's_cmp_ge_u32 {sr(sW)}, 4\ns_cbranch_scc1 {L1}')
        half(0)
        L = self.only_wave(0)
        k(f'global_load_dword v6, v7, {P2(pWS)} sc1')
        k(f'{L}:')
        self.wread_addr(10)
        self.wstage_read(1, 10)
        k(f's_branch {L2}\n{L1}:')
        self.wread_addr(10)
        self.wstage_read(1, 10)
        half(1)
        k(f'''
        {L2}:
        s_lshl_b32 s55, {sr(sW)}, 9
        v_lshl_add_u32 v8, v0, 3, s55
        s_xor_b32 s55, s55, 2048
        v_lshl_add_u32 v9, v0, 3, s55
        ''')
        k(f'ds_write_b64 v8, {vr(AC, 2)} offset:{EXC}', tag='excw')
        self.g1_setup()
        k.wait('x1st')
        L = self.only_wave(0)
        self.poll(7, 6, 27, preissued=True)
        k(f'{L}:')
        k.wait('excw', 'wrd')
        k('s_barrier')
        self.stamp('barY')
        if self.o['stop'] != 'conv':
            for c in range(2):
                for i in range(2):
                    self.g1_dma(c, i)
        L = self.only_wave(0)
        k(f'''
        s_mul_i32 s55, {sr(sQ)}, 0x5556
        s_lshr_b32 s55, s55, 16
        s_mul_i32 s55, s55, 3
        s_sub_u32 s55, {sr(sQ)}, s55
        s_lshl_b32 s55, s55, 3
        s_add_u32 s55, s55, {sr(sMB)}
        ''')
        self.arrive(SYNC2B, 24, 's55', 16)
        k(f'{L}:')
        k(f'''
        ds_read_b64 v[10:11], v9 offset:{EXC}
        v_cmp_gt_u32 vcc, 32, v0
        v_mov_b32 {vr(CB + 2)}, 0
        v_mov_b32 {vr(CB + 3)}, 0
        v_add_f32 v10, v10, {vr(AC)}
        v_add_f32 v11, v11, {vr(AC + 1)}
        v_cvt_pk_bf16_f32 v12, v10, v11
        v_lshlrev_b32 v13, 16, v12
        v_and_b32 v14, 0xffff0000, v12
        v_sub_f32 v10, v10, v13
        v_sub_f32 v11, v11, v14
        v_cvt_pk_bf16_f32 v10, v13, v10
        v_cvt_pk_bf16_f32 v11, v14, v11
        v_cndmask_b32 {vr(CB)}, 0, v10, vcc
        v_cndmask_b32 {vr(CB + 1)}, 0, v11, vcc
        ''')

    def g1_setup(self):
        self.k(f'''
        v_lshrrev_b32 v12, 3, v0
        v_lshlrev_b32 v1, 12, v12
        v_bfe_u32 v12, v0, 4, 1
        v_lshlrev_b32 v12, 2, v12
        v_and_b32 v13, 7, v0
        v_xor_b32 v12, v12, v13
        v_lshl_add_u32 v1, v12, 4, v1
        s_lshl_b32 s66, {sr(sW)}, 16
        s_lshl_b32 s55, {sr(sM1)}, 7
        s_add_u32 s66, s66, s55
        s_add_u32 s66, s66, {X1S}
        s_lshl_b32 s67, {sr(sW)}, 11
        ''')
        self.g2_setup()

    def g1_dma(self, c, i):
        k = self.k
        slot = c % NS
        t, cc = divmod(c, 5)
        if self.o.get('x_nodma') and c >= 5:
            return
        k(f's_add_u32 m0, s67, {RING + slot * 16384 + i * 1024}')
        k(f's_add_u32 s3, s66, {t * 1024 + (cc * 128 + 8 * i) * 4096}')
        k(f'buffer_load_dwordx4 v1, {P4(rWS)}, s3 offen sc1 lds', tag=f'ch{c}')

    def g2_dma(self, j, i):
        k = self.k
        L = None
        if i == 3:
            L = k.label('g2d')
            k(f's_cmp_ge_u32 {sr(sW)}, 6\ns_cbranch_scc1 {L}')
        k(f'''
        s_add_u32 s3, s60, {j * G2S}
        s_sub_u32 s59, s3, {9 * G2S}
        s_cselect_b32 s3, s3, s59
        s_add_u32 s3, s3, s63
        s_add_u32 m0, s64, {G2SLOT[j % 5] + i * 8192}
        s_add_u32 s3, s3, {i * 8192}
        ''')
        k(f'buffer_load_dwordx4 v4, {P4(rWS)}, s3 offen sc1 lds', tag=f'wd{j}')
        if L:
            k(f'{L}:')

    def g2_setup(self):
        k = self.k
        k(f'''
        s_lshr_b32 s55, s2, 3
        s_and_b32 s61, s55, 7
        s_lshr_b32 s55, s55, 3
        s_lshl_b32 s55, s55, 3
        s_add_u32 s62, s55, {sr(sMB)}
        s_lshl_b32 s64, {sr(sW)}, 10
        s_mul_i32 s63, s61, {54 * 5120}
        s_add_u32 s63, s63, {WD}
        s_add_u32 s63, s63, s64
        v_lshlrev_b32 v4, 4, v0
        s_lshr_b32 s55, s55, 2
        s_add_u32 s55, s55, s61
        s_sub_u32 s56, s55, 9
        s_cselect_b32 s55, s55, s56
        s_mul_i32 s55, s55, {self.o.get('rot', 1)}
        s_mul_i32 s60, s55, {G2S}
        s_mul_i32 s90, s55, 12288
        ''')

    def g1(self):
        k = self.k
        TF, CB = 16, 92
        ACC = [32, 48, 64]
        vRA, vRB, vST, vSTA, vPA, vPD = 2, 3, 5, 6, 7, 8
        K1, K2, S2 = 9, 10, 11
        BF = 12
        ET = 80
        OUTR = 88
        k(f'''
        v_lshrrev_b32 v8, 5, v0
        v_bfe_u32 v9, v0, 2, 2
        v_lshl_add_u32 v8, v8, 3, v9
        v_lshlrev_b32 {vr(vRA)}, 7, v8
        v_lshrrev_b32 v9, 1, v9
        s_lshr_b32 s55, {sr(sW)}, 2
        v_xor_b32 v9, s55, v9
        v_lshl_add_u32 {vr(vRA)}, v9, 6, {vr(vRA)}
        v_bfe_u32 v9, v0, 4, 1
        v_lshl_add_u32 {vr(vRA)}, v9, 5, {vr(vRA)}
        v_and_b32 v9, 3, v0
        v_lshl_add_u32 {vr(vRA)}, v9, 3, {vr(vRA)}
        v_add_u32 {vr(vRA)}, {RING}, {vr(vRA)}
        v_add_u32 {vr(vRB)}, {3 * 16384}, {vr(vRA)}
        s_lshl_b32 s56, {sr(sM1)}, 6
        s_lshl_b32 s57, s55, 5
        s_add_u32 s56, s56, s57
        v_and_b32 v9, 31, v0
        v_add_u32 v9, s56, v9
        v_lshlrev_b32 v9, 2, v9
        v_add_u32 {vr(vSTA)}, {STATS}, v9
        s_lshl_b32 s56, {sr(sM1)}, 1
        s_add_u32 s56, s56, s55
        s_mul_i32 s56, s56, 108
        s_lshl_b32 s57, {sr(sNB)}, 2
        s_add_u32 s56, s56, s57
        s_and_b32 s57, {sr(sW)}, 3
        s_add_u32 s56, s56, s57
        s_lshl_b32 s56, s56, 10
        s_add_u32 s65, s56, {ACT}
        v_mov_b32 {vr(BF + 2)}, 0
        v_mov_b32 {vr(BF + 3)}, 0
        ''')
        self.poll_addr(SYNC2B, 24, vPA)

        def rd(sig):
            c, s8 = divmod(sig, 8)
            slot = c % NS
            base, off = (vRA, slot * 16384) if slot < 3 else (vRB, (slot - 3) * 16384)
            off += s8 * 2048
            r = TF + 4 * (sig % 4)
            if self.o.get('x_nord') and sig >= 4:
                return
            if self.o.get('x_b128'):
                k(f'ds_read_b128 {vr(r, 4)}, v4 offset:{off % 32768}')
                return
            k(f'ds_read_b64_tr_b16 {vr(r, 2)}, {vr(base)} offset:{off}')
            k(f'ds_read_b64_tr_b16 {vr(r + 2, 2)}, {vr(base)} offset:{off + 512}')

        C1 = -2 * LOG2E * math.sqrt(2 / math.pi) * 0.044715
        C2 = -2 * LOG2E * math.sqrt(2 / math.pi)

        def epi_ops(t):
            acc = ACC[t % 3]
            ops = []

            def head():
                self.poll(vSTA, vST, '0x10000', preissued=True, off=2048 * (t & 1))
                k(f'''
                s_mov_b32 s55, 0x01000100
                s_mov_b32 s56, 0x03020302
                v_perm_b32 {vr(BF)}, {vr(vST)}, {vr(vST)}, s55
                v_perm_b32 {vr(BF + 1)}, {vr(vST)}, {vr(vST)}, s56
                v_xor_b32 {vr(BF)}, 0x80008000, {vr(BF)}
                v_and_b32 {vr(S2)}, 0xffff0000, {vr(vST)}
                v_rcp_f32 {vr(K2)}, {vr(S2)}
                v_mfma_f32_32x32x16_bf16 {vr(acc, 16)}, {vr(CB, 4)}, {vr(BF, 4)}, {vr(acc, 16)}
                ''')
            ops.append(head)
            ops.append(lambda: k(f'''
                v_mul_f32 {vr(S2)}, {vr(S2)}, {vr(S2)}
                v_mul_f32 {vr(K1)}, {vr(K2)}, {vr(K2)}
                v_mul_f32 {vr(K2)}, {f32(C2)}, {vr(K2)}
                '''))
            ops.append(lambda: k(f'''
                v_mul_f32 {vr(K1)}, {f32(0.044715)}, {vr(K1)}
                v_mul_f32 {vr(K1)}, {vr(K1)}, {vr(K2)}
                '''))
            ops.append(lambda: None)
            for p in range(4):
                i0, i1 = 2 * p, 2 * p + 1
                g0, g1_, u0, u1 = acc + i0, acc + i1, acc + 8 + i0, acc + 8 + i1
                t0, t1 = ET + 2 * (p % 2), ET + 2 * (p % 2) + 1
                ops.append(lambda g0=g0, g1_=g1_, t0=t0, t1=t1: k(f'''
                    v_mul_f32 {vr(t0)}, {vr(g0)}, {vr(g0)}
                    v_mul_f32 {vr(t1)}, {vr(g1_)}, {vr(g1_)}
                    v_fma_f32 {vr(t0)}, {vr(t0)}, {vr(K1)}, {vr(K2)}
                    '''))
                ops.append(lambda g0=g0, g1_=g1_, t0=t0, t1=t1: k(f'''
                    v_fma_f32 {vr(t1)}, {vr(t1)}, {vr(K1)}, {vr(K2)}
                    v_mul_f32 {vr(t0)}, {vr(t0)}, {vr(g0)}
                    v_mul_f32 {vr(t1)}, {vr(t1)}, {vr(g1_)}
                    '''))
                ops.append(lambda g0=g0, u0=u0, t0=t0, t1=t1: k(f'''
                    v_exp_f32 {vr(t0)}, {vr(t0)}
                    v_exp_f32 {vr(t1)}, {vr(t1)}
                    '''))
                ops.append(lambda g0=g0, g1_=g1_, u0=u0, u1=u1, t0=t0, t1=t1: k(f'''
                    v_mul_f32 {vr(u0)}, {vr(u0)}, {vr(g0)}
                    v_fma_f32 {vr(t0)}, {vr(t0)}, {vr(S2)}, {vr(S2)}
                    v_fma_f32 {vr(t1)}, {vr(t1)}, {vr(S2)}, {vr(S2)}
                    '''))
                ops.append(lambda t0=t0, t1=t1: k(f'''
                    v_rcp_f32 {vr(t0)}, {vr(t0)}
                    v_rcp_f32 {vr(t1)}, {vr(t1)}
                    '''))
                ops.append(lambda g1_=g1_, u0=u0, u1=u1, t0=t0, t1=t1, p=p: k(f'''
                    v_mul_f32 {vr(u1)}, {vr(u1)}, {vr(g1_)}
                    v_mul_f32 {vr(u0)}, {vr(u0)}, {vr(t0)}
                    v_mul_f32 {vr(u1)}, {vr(u1)}, {vr(t1)}
                    v_cvt_pk_bf16_f32 {vr(OUTR + p)}, {vr(u0)}, {vr(u1)}
                    '''))

            def fin():
                k(f's_add_u32 s3, s65, {t * 16 * 108 * 1024}')
                k(f'buffer_store_dwordx4 {vr(OUTR, 4)}, v4, {P4(rWS)}, s3 offen sc1', tag=f'act{t}')
            ops.append(fin)
            return ops

        def publish(t):
            L = self.only_wave(0)
            k(f'''
            s_add_u32 s55, {sr(sM1)}, {8 * t}
            s_lshl_b32 s55, s55, 7
            s_add_u32 s55, s55, {SYNC3}
            v_mov_b32 {vr(ET + 4)}, s55
            v_mov_b32 {vr(ET + 5)}, 1
            s_mov_b64 exec, 1
            global_atomic_add {vr(ET + 4)}, {vr(ET + 5)}, {P2(pWS)} sc1
            s_mov_b64 exec, -1
            {L}:
            ''')

        epi_start = self.o.get('epi_start', [44, 84, 124, 160])
        epi_rate = self.o.get('epi_rate', [1, 1, 1, 1])
        stat_ld = {max(0, s - self.o.get('stat_pre', 22)): t for t, s in enumerate(epi_start)}
        todo = {}
        for t in range(3):
            ops = epi_ops(t)
            sig = epi_start[t]
            while ops:
                for _ in range(epi_rate[t]):
                    if ops:
                        todo.setdefault(sig, []).append(ops.pop(0))
                sig += 1
            assert sig <= 160 and (t == 2 or sig <= epi_start[t + 1]), (t, sig)
            assert t + 3 >= 4 or sig <= 40 * (t + 3)
            todo.setdefault('done', {})[t] = sig
        done_at = todo.pop('done')
        pub_at = {}
        for t in range(3):
            s = done_at[t] + self.o.get('pub_lag', 24)
            s = ((s - 3 + 7) // 8) * 8 + 3
            pub_at.setdefault(min(s, 163), []).append(t)
        B2 = self.o.get('b2_chunk', 2)
        k.wait('ch0')
        k('s_barrier')
        self.stamp('g1go')
        for sig in range(4):
            rd(sig)
        issued = 5
        dq = [lambda c=c, i=i: self.g1_dma(c, i) for c in (2, 3, 4) for i in range(2)]
        g2at = {17: [(2, i) for i in range(4)], 19: [(3, i) for i in range(4)]}
        for n in range(8):
            g2at[B2 + 3 + n] = [(n // 4, n % 4)]
        for sig in range(160):
            t, s = divmod(sig, 40)
            c = sig // 8
            acc = ACC[t % 3]
            cop = '0' if s == 0 else vr(acc, 16)
            k(f'v_mfma_f32_32x32x16_bf16 {vr(acc, 16)}, {vr(WF + 4 * s, 4)}, {vr(TF + 4 * (sig % 4), 4)}, {cop}')
            if sig == 8 * B2 + 3 - self.o.get('b2_pre', 8):
                L = self.only_wave(0)
                k(f'global_load_dword {vr(vPD)}, {vr(vPA)}, {P2(pWS)} sc1')
                k(f'{L}:')
            if sig % 8 == 3:
                if c == B2:
                    L = self.only_wave(0)
                    self.poll(vPA, vPD, 9, preissued=True)
                    self.poll_addr(SYNCW, 4, vPA)
                    k(f'global_load_dword {vr(vPD)}, {vr(vPA)}, {P2(pWS)} sc1')
                    k(f'{L}:')
                if c == B2 + 2:
                    L = self.only_wave(0)
                    self.poll(vPA, vPD, 10, preissued=True)
                    k(f'{L}:')
                w = [f'ch{c + 1}'] if c + 1 < 20 else []
                w += [f'act{tt}' for tt in pub_at.get(sig, [])]
                if w and not self.o.get('x_nowait'):
                    k.wait(*w)
                if not self.o.get('x_nobar') or c in (B2, B2 + 2):
                    k('s_barrier')
                for tt in pub_at.get(sig, []):
                    publish(tt)
                if c >= B2:
                    while issued < 20 and issued <= c - 1 + NS:
                        dq += [lambda c=issued, i=i: self.g1_dma(c, i) for i in range(2)]
                        issued += 1
                if c in g2at and not self.o.get('x_nog2d'):
                    dq += [lambda j=j, i=i: self.g2_dma(j, i) for j, i in g2at[c]]
            elif dq:
                dq.pop(0)()
            if sig + 4 < 160:
                rd(sig + 4)
            if sig in stat_ld:
                tt = stat_ld[sig]
                if tt == 2:
                    k(f'v_add_u32 {vr(vSTA)}, 4096, {vr(vSTA)}')
                k(f'global_load_dword {vr(vST)}, {vr(vSTA)}, {P2(pWS)} offset:{2048 * (tt & 1)} sc1')
            for op in todo.get(sig, []):
                if not self.o.get('x_noepi'):
                    op()
            if sig % 40 == 39:
                self.stamp(f't{t}')
        assert not dq
        k('s_barrier')
        for op in epi_ops(3):
            op()
        for i in range(4):
            self.g2_dma(4, i)
        self.resid_dma()
        k.wait('act3', *[f'act{tt}' for tt in pub_at.get(163, [])])
        k('s_barrier')
        for tt in pub_at.get(163, []) + [3]:
            publish(tt)
        self.stamp('g1end')

    def resid_dma(self):
        k = self.k
        k(f'''
        v_lshrrev_b32 v8, 3, v0
        v_lshlrev_b32 v8, 12, v8
        v_and_b32 v9, 7, v0
        v_lshl_add_u32 v8, v9, 4, v8
        s_mul_i32 s55, s61, 80
        s_lshl_b32 s56, {sr(sW)}, 3
        s_add_u32 s55, s55, s56
        s_lshl_b32 s55, s55, 12
        s_lshl_b32 s56, s62, 7
        s_add_u32 s55, s55, s56
        s_add_u32 s55, s55, {X1T}
        s_add_u32 m0, s64, {RESID}
        ''')
        k(f'buffer_load_dwordx4 v8, {P4(rWS)}, s55 offen sc1 lds', tag='resid')
        L = k.label('rs')
        k(f'''
        s_cmp_ge_u32 {sr(sW)}, 2
        s_cbranch_scc1 {L}
        s_add_u32 m0, s64, {RESID + 8192}
        s_add_u32 s55, s55, {64 * 4096}
        ''')
        k(f'buffer_load_dwordx4 v8, {P4(rWS)}, s55 offen sc1 lds', tag='resid')
        k(f'{L}:')

    def g2(self):
        k = self.k
        AF, WB, ACC, GB = 96, 16, 56, 204
        k('L_g2:')
        k(f'''
        s_and_b32 s55, {sr(sW)}, 3
        s_lshr_b32 s56, {sr(sW)}, 2
        v_lshrrev_b32 v8, 5, v0
        v_lshlrev_b32 v1, 10, v8
        v_bfe_u32 v8, v0, 4, 1
        v_lshl_add_u32 v1, v8, 9, v1
        v_and_b32 v8, 15, v0
        v_lshl_add_u32 v1, v8, 4, v1
        s_and_b32 s57, s55, 1
        s_lshl_b32 s57, s57, 8
        s_lshr_b32 s58, s55, 1
        s_lshl_b32 s59, s62, 1
        s_add_u32 s58, s58, s59
        s_mul_i32 s58, s58, {108 * 1024}
        s_add_u32 s57, s57, s58
        s_lshl_b32 s58, s56, 11
        s_add_u32 s57, s57, s58
        s_add_u32 s65, s57, {ACT}
        s_mul_i32 s57, s56, 5120
        v_add_u32 v2, s57, v4
        v_add_u32 v3, {G2SLOT[4]}, v2
        v_add_u32 v5, {G2SLOT[1]}, v2
        v_add_u32 v2, {G2SLOT[2]}, v2
        s_lshl_b32 s57, s62, 7
        s_add_u32 s57, s57, {SYNC3}
        v_mov_b32 v6, s57
        s_mul_i32 s57, s61, 320
        s_mul_i32 s58, s56, 192
        s_add_u32 s57, s57, s58
        s_add_u32 s57, s57, {MODP + 10240}
        v_lshrrev_b32 v8, 4, v0
        v_lshl_add_u32 v9, v8, 4, s57
        ''')
        k('v_add_u32 v10, 5120, v9')
        for q in range(4):
            for j in range(3):
                k(f'global_load_dwordx4 {vr(GB + 12 * q + 4 * j, 4)}, v{9 + q // 2}, {P2(pWS)} offset:{64 * j + 2560 * (q % 2)} sc1')
        L = self.only_wave(0)
        self.poll(6, 7, 27)
        k(f'{L}:')
        k.wait('wd0')
        k('s_barrier')
        self.stamp('s3')
        LA = self.o.get('la', 4)

        def lda(i):
            k(f'''
            s_add_u32 s3, s90, {i * 4096}
            s_sub_u32 s59, s3, {27 * 4096}
            s_cselect_b32 s3, s3, s59
            s_add_u32 s3, s3, s65
            buffer_load_dwordx4 {vr(AF + 4 * i, 4)}, v1, {P4(rWS)}, s3 offen sc1
            ''')

        def rdw(i):
            j, ii = divmod(i, 3)
            base, off = {0: (3, G2S), 1: (5, 0), 2: (2, 0), 3: (2, G2S), 4: (3, 0)}[j % 5]
            off += ii * 10240
            for f in range(5):
                k(f'ds_read_b128 {vr(WB + 20 * (i % 2) + 4 * f, 4)}, v{base} offset:{off + 1024 * f}')

        for i in range(LA):
            lda(i)
        rdw(0)
        dq = []
        for i in range(27):
            j, ii = divmod(i, 3)
            if ii == 2 and j < 8:
                k.wait(f'wd{j + 1}')
                k('s_barrier')
                if 1 <= j <= 4:
                    dq += [lambda j=j, q=q: self.g2_dma(j + 4, q) for q in range(4)]
            if i + 1 < 27:
                rdw(i + 1)
            for f in range(5):
                c = '0' if i == 0 else vr(ACC + 4 * f, 4)
                k(f'v_mfma_f32_16x16x32_bf16 {vr(ACC + 4 * f, 4)}, {vr(WB + 20 * (i % 2) + 4 * f, 4)}, {vr(AF + 4 * i, 4)}, {c}')
                if f == 0 and i + LA < 27:
                    lda(i + LA)
                if f in (2, 4) and dq:
                    dq.pop(0)()
        self.stamp('g2m')
        for i in range(12):
            k(f'v_add_f32 {vr(GB + i)}, {vr(GB + i)}, {vr(GB + 12 + i)}')
            k(f'v_add_f32 {vr(GB + 24 + i)}, {vr(GB + 24 + i)}, {vr(GB + 36 + i)}')
        for i in range(12):
            k(f'v_add_f32 {vr(GB + i)}, {vr(GB + i)}, {vr(GB + 24 + i)}')
        for i in range(12):
            k(f'v_cvt_pk_bf16_f32 {vr(GB + i)}, {vr(GB + i)}, {vr(GB + i)}')
        k(f'''
        s_mul_i32 s57, {sr(sW)}, 3072
        s_add_u32 s57, s57, {G2SLOT[0]}
        v_add_u32 v2, s57, v4
        s_xor_b32 s58, {sr(sW)}, 4
        s_mul_i32 s57, s58, 3072
        s_add_u32 s57, s57, {G2SLOT[0]}
        v_add_u32 v3, s57, v4
        v_lshrrev_b32 v8, 2, v0
        v_lshlrev_b32 v8, 7, v8
        v_and_b32 v9, 3, v0
        v_lshl_add_u32 v8, v9, 3, v8
        s_lshl_b32 s57, s55, 5
        s_mul_i32 s58, s56, 6144
        s_add_u32 s57, s57, s58
        s_add_u32 s57, s57, {RESID}
        v_add_u32 v8, s57, v8
        v_and_b32 v9, 15, v0
        s_lshl_b32 s57, s55, 4
        v_add_u32 v9, s57, v9
        v_and_b32 v10, 7, v9
        v_lshrrev_b32 v9, 3, v9
        v_lshl_add_u32 v9, v10, 6, v9
        s_lshr_b32 s57, s62, 3
        s_lshl_b32 s57, s57, 9
        s_lshl_b32 s58, {sr(sMB)}, 3
        s_add_u32 s57, s57, s58
        v_add_u32 v9, s57, v9
        v_mul_u32_u24 v9, 1280, v9
        v_lshrrev_b32 v10, 4, v0
        v_lshl_add_u32 v9, v10, 3, v9
        s_mul_i32 s57, s61, 160
        s_mul_i32 s58, s56, 96
        s_add_u32 s57, s57, s58
        v_add_u32 v9, s57, v9
        ''')
        L1, L2 = k.label('x1'), k.label('x2')
        k(f's_cmp_lg_u32 s56, 0\ns_cbranch_scc1 {L1}')
        for kh in range(2):
            send = (3, 4) if kh == 0 else (0, 1, 2)
            keep = (0, 1, 2) if kh == 0 else (3, 4)
            if kh:
                k(f'{L1}:')
            for n, f in enumerate(send):
                k(f'ds_write_b128 v2, {vr(ACC + 4 * f, 4)} offset:{1024 * n}', tag='xw')
            k.wait('xw', 'resid')
            k('s_barrier')
            for n, f in enumerate(keep):
                k(f'ds_read_b128 {vr(16 + 4 * n, 4)}, v3 offset:{1024 * n}')
                k(f'ds_read_b64_tr_b16 {vr(28 + 2 * n, 2)}, v8 offset:{2048 * n}')
            for n, f in enumerate(keep):
                for i in range(4):
                    a, g, x = ACC + 4 * f + i, GB + 4 * n + i, 36 + i
                    k(f'v_add_f32 {vr(a)}, {vr(a)}, {vr(16 + 4 * n + i)}')
                    k(f'v_and_b32 {vr(g)}, 0xffff0000, {vr(g)}')
                    if i % 2 == 0:
                        k(f'v_lshlrev_b32 {vr(x)}, 16, {vr(28 + 2 * n + i // 2)}')
                    else:
                        k(f'v_and_b32 {vr(x)}, 0xffff0000, {vr(28 + 2 * n + i // 2)}')
                    k(f'v_fmac_f32 {vr(x)}, {vr(a)}, {vr(g)}')
                k(f'v_cvt_pk_bf16_f32 {vr(40 + 2 * n)}, v36, v37')
                k(f'v_cvt_pk_bf16_f32 {vr(41 + 2 * n)}, v38, v39')
                k(f'global_store_dwordx2 v9, {vr(40 + 2 * n, 2)}, {P2(pOUT)} offset:{32 * n}')
            if not kh:
                k(f's_branch {L2}')
        k(f'{L2}:')
        self.stamp('end')

    def strip_reduce(self, nval, V, RED):
        k = self.k
        n = nval
        for i in range(n // 2):
            k(f'v_permlane32_swap_b32 {vr(V + i)}, {vr(V + n // 2 + i)}')
        for i in range(n // 2):
            k(f'v_add_f32 {vr(V + i)}, {vr(V + i)}, {vr(V + n // 2 + i)}')
        n //= 2
        for i in range(n // 2):
            k(f'v_permlane16_swap_b32 {vr(V + i)}, {vr(V + n // 2 + i)}')
        for i in range(n // 2):
            k(f'v_add_f32 {vr(V + i)}, {vr(V + i)}, {vr(V + n // 2 + i)}')
        n //= 2
        for i in range(n):
            k(f'v_add_f32_dpp {vr(V + i)}, {vr(V + i)}, {vr(V + i)} row_ror:8 row_mask:0xf bank_mask:0xf')
        q = nval // 4
        k(f'''
        v_lshrrev_b32 v8, 4, v0
        v_mul_u32_u24 v8, {q}, v8
        v_and_b32 v9, 7, v8
        v_lshrrev_b32 v8, 3, v8
        v_lshl_add_u32 v9, v8, 6, v9
        v_and_b32 v8, 7, v0
        v_lshl_add_u32 v9, v8, 3, v9
        s_mul_i32 s55, {sr(sW)}, {8 * nval}
        v_add_u32 v9, s55, v9
        v_lshlrev_b32 v9, 2, v9
        s_mov_b32 exec_lo, 0x00ff00ff
        s_mov_b32 exec_hi, 0x00ff00ff
        ''')
        if q == 2:
            k(f'ds_write_b64 v9, {vr(V, 2)} offset:{RED}', tag='redw')
        else:
            k(f'ds_write_b128 v9, {vr(V, 4)} offset:{RED}', tag='redw')
        k('s_mov_b64 exec, -1')
        k.wait('redw')
        k('s_barrier')

    def mod_pre(self):
        k = self.k
        CV = 140
        k(f'''
        s_mul_i32 s73, s2, 0x199a
        s_lshr_b32 s73, s73, 16
        s_mul_i32 s74, s73, 10
        s_sub_u32 s74, s2, s74
        s_add_u32 s75, s2, 40
        s_cmp_lt_u32 s2, 14
        s_cselect_b32 s76, 2, 1
        s_mov_b32 s75, s2
        s_mul_i32 s72, {sr(sW)}, 5120
        s_mul_i32 s71, s75, 40960
        s_add_u32 s71, s71, s72
        s_add_u32 s72, s72, 8192
        v_lshlrev_b32 v21, 4, v0
        ''')
        for i in range(10):
            k(f'v_lshlrev_b32 {vr(CV + i)}, 16, {vr(160 + i // 2)}' if i % 2 == 0 else f'v_and_b32 {vr(CV + i)}, 0xffff0000, {vr(160 + i // 2)}')
            k(f'v_mul_f32 {vr(150 + i)}, {f32(-LOG2E)}, {vr(CV + i)}')
        for op in ('v_exp_f32 {t}, {t}', 'v_add_f32 {t}, 1.0, {t}', 'v_rcp_f32 {t}, {t}', 'v_mul_f32 {c}, {c}, {t}',
                   'v_cvt_pk_bf16_f32 {c}, {c}, {c}', 'v_lshlrev_b32 {c}, 16, {c}'):
            for i in range(10):
                k(op.format(t=vr(150 + i), c=vr(CV + i)))

    def mod_and_wd(self):
        k = self.k
        LD, CV, V = 96, 140, 32
        he = self.o.get('he', 3)
        k(f's_lshl_b32 s55, s68, 7\ns_add_u32 s55, s55, {7680 * he}')
        for i in range(he, 10):
            k(f'buffer_load_dwordx4 {vr(LD + 4 * i, 4)}, v20, {P4(rA)}, s55 offen')
            if i < 9:
                k(f's_add_u32 s55, s55, 7680')

        def accumulate(n, ld, cv, V):
            for i in range(n):
                for j in range(4):
                    r = ld + 4 * i + j
                    a, b = 11 + 2 * (j % 2), 12 + 2 * (j % 2)
                    k(f'v_lshlrev_b32 v{a}, 16, {vr(r)}\nv_and_b32 v{b}, 0xffff0000, {vr(r)}')
                    if i == 0:
                        k(f'v_mul_f32 {vr(V + 2 * j)}, v{a}, {vr(cv)}\nv_mul_f32 {vr(V + 2 * j + 1)}, v{b}, {vr(cv)}')
                    else:
                        k(f'v_fmac_f32 {vr(V + 2 * j)}, v{a}, {vr(cv + i)}\nv_fmac_f32 {vr(V + 2 * j + 1)}, v{b}, {vr(cv + i)}')

        pass
        accumulate(10, LD, CV, V)
        self.stamp('h_acc')
        self.strip_reduce(8, V, 0)
        pass
        L = self.only_wave(0)
        k('v_lshlrev_b32 v8, 2, v0')
        for w in range(4):
            k(f'ds_read2st64_b32 {vr(V + 2 * w, 2)}, v8 offset0:{2 * w} offset1:{2 * w + 1}')
        for w in range(1, 8):
            k(f'v_add_f32 {vr(V)}, {vr(V)}, {vr(V + w)}')
        k(f'''
        v_cvt_pk_bf16_f32 {vr(V)}, {vr(V)}, {vr(V)}
        v_and_b32 {vr(V)}, 0xffff0000, {vr(V)}
        v_or_b32 {vr(V)}, 1, {vr(V)}
        s_lshl_b32 s55, s68, 8
        s_add_u32 s55, s55, {MOD}
        buffer_store_dword {vr(V)}, v8, {P4(rWS)}, s55 offen sc1
        ''')
        self.stamp('h_modA')
        k(f'{L}:')
        k('s_barrier')
        Lz = k.label('mz')
        k(f'''
        s_lshr_b32 s55, {sr(sW)}, 1
        s_sub_u32 s55, s55, s73
        s_and_b32 s55, s55, 3
        s_cmp_ge_u32 s55, 2
        s_cbranch_scc1 {Lz}
        s_mul_i32 s55, s55, 2560
        s_lshl_b32 s56, s74, 7
        s_add_u32 s55, s55, s56
        s_add_u32 s55, s55, {30 * 128}
        ''')
        for i in range(10):
            k(f'buffer_load_dwordx4 {vr(LD + 4 * i, 4)}, v20, {P4(rA)}, s55 offen')
            if i < 9:
                k(f's_add_u32 s55, s55, 7680')
        accumulate(10, LD, CV, V)
        k(f'{Lz}:')
        self.strip_reduce(8, V, 4096)
        L = self.only_wave(0)
        k(f'''
        s_lshl_b32 s55, s73, 9
        v_lshl_add_u32 v9, v0, 2, s55
        s_add_u32 s56, s73, 1
        s_and_b32 s56, s56, 3
        s_lshl_b32 s55, s56, 9
        v_lshl_add_u32 v10, v0, 2, s55
        ds_read2st64_b32 {vr(V, 2)}, v9 offset0:16 offset1:17
        ds_read2st64_b32 {vr(V + 2, 2)}, v10 offset0:16 offset1:17
        v_lshlrev_b32 v8, 2, v0
        s_lshl_b32 s55, s2, 8
        s_add_u32 s55, s55, {MODP}
        s_mul_i32 s56, s56, 2560
        s_lshl_b32 s57, s74, 8
        s_add_u32 s56, s56, s57
        s_add_u32 s56, s56, {MODP + 10240}
        v_add_f32 {vr(V)}, {vr(V)}, {vr(V + 1)}
        v_add_f32 {vr(V + 2)}, {vr(V + 2)}, {vr(V + 3)}
        v_or_b32 {vr(V)}, 1, {vr(V)}
        buffer_store_dword {vr(V)}, v8, {P4(rWS)}, s55 offen sc1
        buffer_store_dword {vr(V + 2)}, v8, {P4(rWS)}, s56 offen sc1
        ''')
        self.stamp('h_mod')
        k(f'{L}:')
        for i in range(10):
            k(f'''
            s_cmp_ge_u32 s76, {1 + i // 5}
            s_cselect_b64 exec, -1, 0
            s_mov_b32 m0, s72
            s_add_u32 s72, s72, {1024 if i != 4 else 40960 - 4096}
            ''')
            k(f'buffer_load_dwordx4 v21, {P4(rB)}, s71 offen lds', tag='wdl')
            k(f's_mov_b64 exec, -1\ns_add_u32 s71, s71, {1024 if i != 4 else 40 * 40960 - 4096}')
        Lw, Lwd = k.label('wdl'), k.label('wdd')
        k(f'''
        v_lshrrev_b32 v9, 5, v0
        v_lshlrev_b32 v9, 4, v9
        v_bfe_u32 v10, v0, 2, 3
        v_add_u32 v9, v9, v10
        v_mul_u32_u24 v9, 1280, v9
        v_and_b32 v10, 3, v0
        v_lshl_add_u32 v9, v10, 3, v9
        s_mul_i32 s56, {sr(sW)}, 160
        v_add_u32 v9, s56, v9
        s_mul_i32 s55, {sr(sW)}, {54 * 5120}
        s_mul_i32 s56, s75, 5120
        s_add_u32 s55, s55, s56
        s_add_u32 s55, s55, {WD}
        s_waitcnt vmcnt(0)
        s_barrier
        s_cmp_eq_u32 s76, 0
        s_cbranch_scc1 {Lwd}
        {Lw}:
        ''')
        for j in range(5):
            k(f'ds_read_b64_tr_b16 {vr(32 + 4 * j, 2)}, v9 offset:{8192 + 32 * j}')
            k(f'ds_read_b64_tr_b16 {vr(34 + 4 * j, 2)}, v9 offset:{8192 + 32 * j + 8 * 1280}')
        k('s_add_u32 s56, s55, 4096')
        for j in range(5):
            k(f'buffer_store_dwordx4 {vr(32 + 4 * j, 4)}, v21, {P4(rWS)}, s{55 + j // 4} offen offset:{1024 * (j % 4)} sc1')
        k(f'''
        s_add_u32 s55, s55, {40 * 5120}
        v_add_u32 v9, 40960, v9
        s_sub_u32 s76, s76, 1
        s_cmp_lg_u32 s76, 0
        s_cbranch_scc1 {Lw}
        {Lwd}:
        s_waitcnt vmcnt(0)
        s_barrier
        ''')

    def stats_job(self):
        k = self.k
        LD, V = 96, 32
        k(f'''
        v_lshrrev_b32 v8, 3, v0
        s_mul_i32 s55, {sr(sW)}, 80
        v_add_u32 v8, s55, v8
        v_lshlrev_b32 v8, 12, v8
        v_and_b32 v10, 7, v0
        v_lshl_add_u32 v8, v10, 4, v8
        s_lshl_b32 s55, s2, 7
        s_add_u32 s55, s55, {X1T}
        ''')
        for i in range(10):
            k(f'buffer_load_dwordx4 {vr(LD + 4 * i, 4)}, v8, {P4(rWS)}, s55 offen sc1')
            if i < 9:
                k(f's_add_u32 s55, s55, {8 * 4096}')
        for i in range(10):
            for j in range(4):
                r = LD + 4 * i + j
                if i == 0:
                    k(f'''
                    v_lshlrev_b32 {vr(V + 2 * j)}, 16, {vr(r)}
                    v_and_b32 {vr(V + 2 * j + 1)}, 0xffff0000, {vr(r)}
                    v_mul_f32 {vr(V + 8 + 2 * j)}, {vr(V + 2 * j)}, {vr(V + 2 * j)}
                    v_mul_f32 {vr(V + 9 + 2 * j)}, {vr(V + 2 * j + 1)}, {vr(V + 2 * j + 1)}
                    ''')
                else:
                    k(f'''
                    v_lshlrev_b32 v11, 16, {vr(r)}
                    v_and_b32 v12, 0xffff0000, {vr(r)}
                    v_add_f32 {vr(V + 2 * j)}, {vr(V + 2 * j)}, v11
                    v_add_f32 {vr(V + 2 * j + 1)}, {vr(V + 2 * j + 1)}, v12
                    v_fmac_f32 {vr(V + 8 + 2 * j)}, v11, v11
                    v_fmac_f32 {vr(V + 9 + 2 * j)}, v12, v12
                    ''')
        self.strip_reduce(16, V, 0)
        L = self.only_wave(0)
        k('v_lshlrev_b32 v8, 2, v0')
        for w in range(8):
            k(f'ds_read2st64_b32 {vr(V + 2 * w, 2)}, v8 offset0:{2 * w} offset1:{2 * w + 1}')
        for w in range(1, 8):
            k(f'v_add_f32 {vr(V)}, {vr(V)}, {vr(V + 2 * w)}')
            k(f'v_add_f32 {vr(V + 1)}, {vr(V + 1)}, {vr(V + 2 * w + 1)}')
        k(f'''
        v_mul_f32 v10, {f32(1.0 / 640)}, {vr(V)}
        v_mul_f32 v11, {f32(1.0 / 640)}, {vr(V + 1)}
        v_fma_f32 v11, -v10, v10, v11
        v_max_f32 v11, 0, v11
        v_cvt_pk_bf16_f32 v11, v11, v11
        v_lshlrev_b32 v11, 16, v11
        v_add_f32 v11, {f32(1e-5)}, v11
        v_cvt_pk_bf16_f32 v11, v11, v11
        v_lshlrev_b32 v11, 16, v11
        v_sqrt_f32 v11, v11
        v_cvt_pk_bf16_f32 v10, v10, v11
        s_lshl_b32 s55, s2, 8
        s_add_u32 s55, s55, {STATS}
        buffer_store_dword v10, v8, {P4(rWS)}, s55 offen sc1
        {L}:
        s_barrier
        ''')

    def helper(self):
        k = self.k
        k('L_helper:')
        self.srd(rA, pWM, 640 * 3840 * 2)
        self.srd(rB, pWD, 1728 * 640 * 2)
        self.mod_pre()
        if self.o.get('hbar', 1):
            k('s_barrier')
        self.mod_and_wd()
        L = self.only_wave(0)
        self.poll_sync1(215, 58)
        k('s_and_b32 s55, s2, 3')
        self.arrive(SYNCW, 4, 's55', 16)
        k(f'{L}:')
        self.stamp('h_wd')
        if self.o['stop'] in ('A', 'kgen'):
            k('s_branch L_fin')
            return
        Lns = k.label('nostat')
        Lb, Lp = k.label('lateb'), k.label('polled')
        L = self.only_wave(0)
        k(f's_cmp_ge_u32 s2, 8\ns_cbranch_scc1 {Lb}')
        self.poll_addr(SYNC2A, 16, 16)
        self.poll(16, 17, 27)
        k(f's_branch {Lp}\n{Lb}:')
        self.poll_addr(SYNC2B, 24, 16)
        self.poll(16, 17, 9)
        k(f'{Lp}:\n{L}:')
        k('s_barrier')
        self.stamp('s2a')
        k(f's_cmp_ge_u32 s2, 32\ns_cbranch_scc1 {Lns}')
        self.stats_job()
        k(f'{Lns}:')
        self.stamp('h_stat')
        if self.o['stop'] in ('conv', 'g1'):
            k('s_branch L_fin')
            return
        L = self.only_wave(0)
        self.poll_addr(SYNCW, 4, 16)
        self.poll(16, 17, 10)
        k(f'{L}:')
        k('s_barrier')
        self.g2_setup()
        for j in range(5):
            for i in range(4):
                self.g2_dma(j, i)
        self.resid_dma()
        k('s_branch L_g2')

    def build(self):
        k = self.k
        stop = self.o['stop']
        self.prologue()
        self.early_addresses()
        self.ln1()
        k('s_cmp_lt_u32 s2, 40\ns_cbranch_scc1 L_helper')
        while True:
            if stop == 'A':
                break
            self.kgen()
            self.stamp('kgen')
            self.kexpand1()
            self.stamp('kexp')
            self.conv_loads()
            self.kexpand2()
            self.wstage_read(0, 213)
            if stop == 'kgen':
                self.dump_k()
                break
            self.conv()
            self.window2()
            if stop == 'conv':
                break
            self.g1()
            if stop == 'g1':
                break
            self.g2()
            break
        k('L_fin:')
        k(f'''
        s_or_b32 s3, s2, {sr(sW)}
        s_cmp_lg_u32 s3, 0
        s_cbranch_scc1 L_nogen
        v_mov_b32 v8, {GEN}
        v_mov_b32 v9, {sr(sTAG)}
        s_mov_b64 exec, 1
        global_store_dword v8, v9, {P2(pWS)} sc1
        s_mov_b64 exec, -1
        L_nogen:
        ''')
        self.stamp_flush()
        k('s_endpgm')
        self.helper()
        k('L_end:\ns_endpgm')
        body = k.text()
        hdr = open('adaLN_cond__ssm_conv_s4d__geglu_ffn__prompt.s.ref').read().split('; Override')[0]
        return hdr + f'''; @launch kernel={NAME} grid=(256,1,1) block=(512,1,1) lds={LDS_BYTES}
.amdgcn_target "amdgcn-amd-amdhsa--gfx950"
.text
.globl {NAME}
.p2align 8
.type {NAME},@function
{NAME}:
{body}.section .rodata,"a"
.p2align 6
.amdhsa_kernel {NAME}
  .amdhsa_next_free_vgpr 256
  .amdhsa_next_free_sgpr 102
  .amdhsa_accum_offset 256
  .amdhsa_group_segment_fixed_size 0
  .amdhsa_kernarg_size 128
  .amdhsa_user_sgpr_count 2
  .amdhsa_user_sgpr_kernarg_segment_ptr 1
  .amdhsa_system_sgpr_workgroup_id_x 1
.end_amdhsa_kernel
'''

    def dump_k(self):
        k = self.k
        k.wait('saw')
        k('s_barrier')
        k(f's_lshl_b32 s55, {sr(sW)}, 6\nv_add_u32 v8, s55, v0\nv_lshlrev_b32 v9, 3, v8\nv_lshlrev_b32 v10, 4, v8')
        for ch in range(3):
            k(f'''
            ds_read_b64 v[12:13], v9 offset:{KA + ch * KAS + 32}
            ds_read_b128 v[16:19], v10 offset:{SA + ch * SAS}
            s_add_u32 s55, {sr(sD0)}, {ch}
            s_lshl_b32 s56, s55, 12
            s_add_u32 s56, s56, {X1T}
            s_lshl_b32 s57, s55, 13
            s_add_u32 s57, s57, {ACT}
            buffer_store_dwordx2 v[12:13], v9, {P4(rWS)}, s56 offen
            buffer_store_dwordx4 v[16:19], v10, {P4(rWS)}, s57 offen
            s_waitcnt vmcnt(0)
            ''')


LAST = None
def generate(**opt):
    global LAST
    LAST = Gen(opt)
    return LAST.build()


if __name__ == '__main__':
    opt = {}
    for a in sys.argv[2:]:
        kx, v = a.split('=')
        opt[kx] = eval(v)
    open(sys.argv[1], 'w').write(generate(**opt))
```

```python
import sys, math
from asmgen import Kern, vr, sr, f32

NAME = 'adaLN_cond__ssm_conv_s4d__geglu_ffn__prompt_kernel'

SYNC1 = 0x0
GEN = 0x22000
MS = 0x1A000
SYNC2A, SYNC2B, SYNCW, SYNC3 = 0x8000, 0xC000, 0x12000, 0x13000
MODP = 0xC0000
MOD, STATS = 0x16000, 0x14000
ZBEG, ZEND = 0x8000, 0x16000
STAMP = 0x30000
XN, XT, X1T, X1S, WD, ACT = 0x100000, 0x400000, 0x700000, 0xA00000, 0xD00000, 0x1000000
KG, KGS = 0, 4608
XNL0, MSL = 1696, 13984
KA, KAS = 27648, 4128
SA, SAS = 40032, 8192
TR, TRR, TRM = 40032, 1344, 10752
WT = 81408
KC, KCS = 51200, 3840
GA = 204
TAB, EXC = 64704, 10240
STG = 81920
RING, NS = 16384, 5
G2S, RESID = 30720, 0
G2SLOT = [102400, 133120, 10240, 40960, 71680]
LDS_BYTES = 163840
pX, pLA, pAI, pCR, pCI, pDT, pDS, pWG, pWU, pWD, pC, pWM, pOUT, pDBG, pWS = 4, 6, 8, 10, 12, 14, 16, 20, 22, 24, 26, 28, 30, 32, 34
sW, sI, sPC = 36, 37, 38
rWS, rA, rB = 40, 44, 48
sD0, sMB, sNB = 52, 53, 54
sT = 55
sCH = 70
sSPIN = 79
sST = 80
sFLAG = 82
sWL, sWO, sWI, sWR = 86, 87, 88, 89
sQ, sM1, sTAG = 91, 92, 93
P2 = lambda r: sr(r, 2)
P4 = lambda r: sr(r, 4)
WF = 96
SPIN_MAX = 400000

LOG2E = 1.4426950408889634


class Gen:
    def __init__(self, opt):
        self.o = dict(stop=None, stamps=False, nt='nt')
        self.o.update(opt)
        self.k = Kern()
        self.nst = 0

    def stamp(self, name, vt=None):
        if not self.o['stamps']:
            return
        names = self.o.setdefault('stamp_names', [])
        if name not in names:
            names.append(name)
        idx = names.index(name)
        assert idx < 32
        self.k(f'''
        s_memrealtime {sr(sST, 2)}
        s_memtime s[84:85]
        s_waitcnt lgkmcnt(0)
        v_writelane_b32 v87, {sr(sST)}, {idx}
        v_writelane_b32 v87, s84, {32 + idx}
        ''')

    def stamp_flush(self):
        if not self.o['stamps']:
            return
        self.k(f'''
        s_lshl_b32 s100, s2, 3
        s_add_u32 s100, s100, {sr(sW)}
        s_lshl_b32 s100, s100, 8
        s_add_u32 s100, s100, {STAMP}
        v_lshl_add_u32 v86, v0, 2, s100
        global_store_dword v86, v87, {P2(pWS)}
        ''')

    def arrive(self, base, nshard, shard_sreg, vt):
        k = self.k
        k(f'''
        s_lshl_b32 s3, {shard_sreg}, 7
        s_add_u32 s3, s3, {base}
        v_mul_u32_u24 {vr(vt)}, {128 * nshard}, v0
        v_add_u32 {vr(vt)}, s3, {vr(vt)}
        v_mov_b32 {vr(vt + 1)}, 1
        s_mov_b64 exec, 0xff
        global_atomic_add {vr(vt)}, {vr(vt + 1)}, {P2(pWS)} sc1
        s_mov_b64 exec, -1
        ''')

    def poll_addr(self, base, nshard, va):
        k = self.k
        k(f'''
        s_and_b32 s3, s2, 7
        s_mul_i32 s3, s3, {128 * nshard}
        s_add_u32 s3, s3, {base}
        v_min_u32 {vr(va)}, {nshard - 1}, v0
        v_lshlrev_b32 {vr(va)}, 7, {vr(va)}
        v_add_u32 {vr(va)}, s3, {vr(va)}
        ''')

    def poll_issue(self, va, vd, nl, off=0):
        k = self.k
        if nl and self.o.get('apoll', 1):
            k(f'''
            v_mov_b32 {vr(vd)}, 0
            s_mov_b64 exec, {hex((1 << nl) - 1)}
            global_atomic_add {vr(vd)}, {vr(va)}, {vr(vd)}, {P2(pWS)} offset:{off} sc0 sc1
            s_mov_b64 exec, -1
            ''')
        else:
            k(f'global_load_dword {vr(vd)}, {vr(va)}, {P2(pWS)} offset:{off} sc1')

    def poll(self, va, vd, count, preissued=False, off=0, nl=0, sleep=None):
        k = self.k
        L, D = k.label('poll'), k.label('polld')
        ap = nl and self.o.get('apoll', 1)

        def check():
            k(f'v_cmp_gt_u32 vcc, {count}, {vr(vd)}')
            if ap:
                k(f's_and_b32 vcc_lo, vcc_lo, {hex((1 << nl) - 1)}\ns_cbranch_scc0 {D}')
            else:
                k(f's_cbranch_vccz {D}')
        if not preissued:
            self.poll_issue(va, vd, nl, off)
        check()
        k(f'{L}:')
        k(f's_sleep {self.o.get("sleep", 2) if sleep is None else sleep}')
        self.poll_issue(va, vd, nl, off)
        check()
        k(f'''
        s_add_u32 {sr(sSPIN)}, {sr(sSPIN)}, 1
        s_cmp_lt_u32 {sr(sSPIN)}, {SPIN_MAX}
        s_cbranch_scc1 {L}
        {D}:
        ''')

    def srd(self, r, ptr, size):
        self.k(f'''
        s_mov_b32 {sr(r)}, {sr(ptr)}
        s_and_b32 {sr(r + 1)}, {sr(ptr + 1)}, 0xffff
        s_mov_b32 {sr(r + 2)}, {size}
        s_mov_b32 {sr(r + 3)}, 0x20000
        ''')

    def only_wave(self, w):
        L = self.k.label('ow')
        self.k(f's_cmp_lg_u32 {sr(sW)}, {w}\ns_cbranch_scc1 {L}')
        return L

    def prologue(self):
        k = self.k
        k(f'''
        s_cmp_ge_u32 s2, 256
        s_cbranch_scc1 L_end
        s_load_dwordx16 s[4:19], s[0:1], 0
        s_load_dwordx16 s[20:35], s[0:1], 64
        s_getpc_b64 {P2(sPC)}
        L_pc:
        v_lshrrev_b32 v1, 6, v0
        v_and_b32 v0, 63, v0
        v_readfirstlane_b32 {sr(sW)}, v1
        s_mov_b32 {sr(sSPIN)}, 0
        ''')
        if self.o['stamps']:
            k('v_mov_b32 v87, 0')
        L = k.label('pf')
        k(f'''
        s_lshr_b32 s3, s2, 3
        s_and_b32 s3, s3, 7
        s_cmp_eq_u32 {sr(sW)}, 0
        s_cselect_b32 s56, 0, s3
        s_cmp_eq_u32 {sr(sW)}, s56
        s_cbranch_scc0 {L}
        s_lshl_b32 s3, {sr(sW)}, 13
        v_lshlrev_b32 v2, 7, v0
        v_add_u32 v2, s3, v2
        v_min_u32 v2, L_end-L_pc, v2
        global_load_dword v83, v2, {P2(sPC)}
        {L}:
        s_lshl_b32 s3, s2, 3
        s_add_u32 s3, s3, {sr(sW)}
        s_mul_i32 s3, s3, 1280
        v_lshl_add_u32 v2, v0, 4, s3
        v_lshl_add_u32 v3, v0, 2, s3
        s_sub_u32 {sr(sI)}, s2, 40
        s_and_b32 {sr(sMB)}, s2, 7
        s_lshr_b32 {sr(sQ)}, {sr(sI)}, 3
        s_mul_i32 s3, {sr(sMB)}, 27
        s_add_u32 s3, s3, {sr(sQ)}
        s_lshr_b32 {sr(sNB)}, s3, 3
        s_and_b32 {sr(sM1)}, s3, 7
        s_mul_i32 s3, s3, 3
        s_min_u32 {sr(sD0)}, s3, 637
        s_min_u32 s55, {sr(sW)}, 5
        s_lshl_b32 s56, {sr(sD0)}, 1
        s_add_u32 s56, s56, s55
        s_lshl_b32 s56, s56, 7
        v_lshl_add_u32 v18, v0, 1, s56
        s_lshr_b32 s55, s55, 1
        s_add_u32 s55, s55, {sr(sD0)}
        s_lshl_b32 s55, s55, 1
        v_mov_b32 v19, s55
        v_min_u32 v17, 2, v0
        v_add_u32 v17, {sr(sD0)}, v17
        v_lshlrev_b32 v17, 1, v17
        ''')
        self.stamp('start')
        if self.o.get('chase'):
            ptr, stride = self.o.get('chase_ptr', 18), self.o.get('chase_stride', 256 * 512)
            k(f's_lshl_b32 s55, s2, 9\nv_mov_b32 v10, s55')
            for i in range(self.o['chase']):
                k(f'''
                global_load_dword v11, v10, {P2(ptr)}
                v_and_b32 v11, 0, v11
                v_add_u32 v10, {stride}, v10
                v_add_u32 v10, v11, v10
                ''')
            self.stamp('chase')
        k(f'''
        global_load_dwordx4 v[92:95], v2, {P2(pX)} {self.o['nt']}
        global_load_dword v91, v3, {P2(pX)} offset:1024 {self.o['nt']}
        s_load_dword {sr(sTAG)}, {P2(pWS)}, {GEN}
        ''')
        L, Lh = k.label('nokl'), k.label('hc')
        k(f'''
        s_lshl_b32 s68, s2, 1
        s_and_b32 s55, {sr(sW)}, 1
        s_add_u32 s68, s68, s55
        s_min_u32 s68, s68, 479
        s_and_b32 s55, s68, 7
        s_mul_i32 s55, s55, 80
        v_lshrrev_b32 v20, 3, v0
        v_mul_u32_u24 v20, 10, v20
        v_add_u32 v20, s55, v20
        s_cmp_lt_u32 {sr(sW)}, 6
        s_cbranch_scc1 {Lh}
        v_lshlrev_b32 v21, 1, v20
        global_load_dwordx4 v[160:163], v21, {P2(pC)}
        global_load_dword v164, v21, {P2(pC)} offset:16
        v_mul_u32_u24 v20, 7680, v20
        v_and_b32 v21, 7, v0
        v_lshl_add_u32 v20, v21, 4, v20
        s_lshr_b32 s55, s68, 3
        s_lshl_b32 s55, s55, 7
        v_add_u32 v20, s55, v20
        s_branch {L}
        {Lh}:
        s_cmp_lt_u32 s2, 40
        s_cbranch_scc1 {L}
        global_load_ushort v20, v18, {P2(pLA)} {self.o['nt']}
        global_load_ushort v24, v19, {P2(pDT)}
        global_load_ushort v21, v18, {P2(pAI)} {self.o['nt']}
        global_load_ushort v22, v18, {P2(pCR)} {self.o['nt']}
        global_load_ushort v23, v18, {P2(pCI)} {self.o['nt']}
        global_load_ushort v25, v17, {P2(pDS)}
        {L}:
        ''')
        self.srd(rWS, pWS, 0x10000000)
        self.srd(rA, pWG, 640 * 1728 * 2)
        self.srd(rB, pWU, 640 * 1728 * 2)

    def early_addresses(self):
        k = self.k
        k(f'''
        v_lshrrev_b32 v16, 3, v0
        v_mul_u32_u24 v17, 3456, v16
        v_bfe_u32 v16, v0, 4, 1
        v_bfe_u32 v26, v0, 1, 2
        v_xor_b32 v26, v26, v16
        v_and_b32 v16, 1, v0
        v_lshl_add_u32 v17, v16, 4, v17
        s_lshl_b32 s55, {sr(sNB)}, 7
        v_add_u32 v17, s55, v17
        v_lshl_add_u32 v26, v26, 5, v17
        v_xor_b32 v27, 64, v26
        s_mul_i32 {sr(sWR)}, {sr(sM1)}, 5
        s_mov_b32 {sr(sWO)}, 0
        ''')
        k(f's_lshl_b32 s55, {sr(sW)}, 6\nv_add_u32 v89, s55, v0')
        k(f'''
        s_lshl_b32 s55, {sr(sW)}, 1
        s_lshr_b32 s56, 0xffa4, s55
        s_and_b32 s56, s56, 3
        s_lshl_b32 s57, s56, 3
        v_lshlrev_b32 v10, 2, v89
        ''')
        for j in range(4):
            k(f'''
            v_add_u32 v11, {j}, v10
            v_cvt_f32_u32 v11, v11
            v_cvt_pk_bf16_f32 v11, v11, v11
            v_lshlrev_b32 v11, 16, v11
            v_cvt_u32_f32 v11, v11
            v_lshrrev_b32 v12, 7, v11
            v_and_b32 v13, 7, v11
            v_lshl_add_u32 v12, v12, 3, v13
            v_lshrrev_b32 v12, s56, v12
            v_add_u32 v12, s57, v12
            v_mul_u32_u24 v12, 20, v12
            v_bfe_u32 v11, v11, 3, 4
            v_add_lshl_u32 v11, v12, v11, 2
            v_add_u32 {vr(GA + j)}, {KC}, v11
            ''')
        k(f'''
        v_lshlrev_b32 v208, 1, v10
        v_lshlrev_b32 v209, 2, v10
        ''')
        for i in range(2):
            k(f'''
            v_add_u32 v11, {512 * i}, v89
            v_mul_u32_u24 v12, 0x5556, v11
            v_lshrrev_b32 v12, 16, v12
            v_mul_u32_u24 v13, 3, v12
            v_sub_u32 v11, v11, v13
            v_add_u32 v11, {sr(sD0)}, v11
            v_mul_u32_u24 v12, 10240, v12
            v_lshl_add_u32 {vr(210 + i)}, v11, 4, v12
            ''')
        k('v_lshlrev_b32 v212, 4, v89')
        self.wread_addr(213)
        k(f'''
        v_lshrrev_b32 v11, 2, v0
        v_min_u32 v11, 11, v11
        v_mul_u32_u24 v12, 0x5556, v11
        v_lshrrev_b32 v12, 16, v12
        v_mul_u32_u24 v13, 3, v12
        v_sub_u32 v11, v11, v13
        v_cmp_eq_u32 vcc, 3, v12
        v_addc_co_u32 v12, vcc, 0, v12, vcc
        v_mul_u32_u24 v12, 640, v12
        v_add3_u32 v11, v11, v12, {sr(sD0)}
        v_lshrrev_b32 v12, 6, v11
        v_and_b32 v11, 63, v11
        v_lshlrev_b32 v11, 2, v11
        v_lshl_add_u32 v11, v12, 11, v11
        v_and_b32 v12, 3, v0
        v_lshl_add_u32 v11, v12, 8, v11
        v_add_u32 v88, {MODP}, v11
        v_min_u32 v89, 319, v89
        v_lshlrev_b32 v90, 3, v89
        v_add_u32 v90, {MOD + 3 * 2560}, v90
        ''')
        k(f'''
        v_lshrrev_b32 v8, 4, v0
        v_bfe_u32 v9, v0, 2, 2
        v_and_b32 v10, 3, v0
        v_lshlrev_b32 v11, 1, v10
        v_lshl_add_u32 v11, v8, 2, v11
        v_lshrrev_b32 v12, 1, v9
        v_add_u32 v11, v11, v12
        v_mul_u32_u24 v11, 48, v11
        v_and_b32 v12, 1, v9
        v_lshl_add_u32 v11, v12, 3, v11
        v_add_u32 v1, {XNL0 - 14 * 48}, v11
        v_sub_u32 v11, v10, v9
        v_lshlrev_b32 v12, 3, v8
        v_sub_u32 v11, v11, v12
        v_lshlrev_b32 v11, 3, v11
        v_add_u32 v2, {KA + 32 + 2 * (112 - 16)}, v11
        v_lshlrev_b32 v11, 3, v9
        v_lshl_add_u32 v11, v8, 1, v11
        v_lshrrev_b32 v12, 1, v10
        v_add_u32 v11, v11, v12
        v_mul_u32_u24 v11, 48, v11
        v_and_b32 v12, 1, v10
        v_lshl_add_u32 v11, v12, 3, v11
        v_add_u32 v5, {XNL0}, v11
        ''')
        k(f'''
        s_mul_i32 s56, {sr(sW)}, {TRR}
        s_add_u32 s56, s56, {TR}
        v_lshl_add_u32 v6, v0, 4, s56
        v_lshl_add_u32 v7, v0, 2, s56
        v_mul_u32_u24 v4, {TRR}, v9
        v_lshl_add_u32 v4, v8, 5, v4
        v_lshl_add_u32 v4, v10, 3, v4
        s_and_b32 s55, {sr(sW)}, 1
        s_mul_i32 s56, s55, 640
        s_add_u32 s56, s56, {TR}
        v_add_u32 v4, s56, v4
        s_mul_i32 s57, s2, 10240
        s_mul_i32 s56, s55, 5120
        s_add_u32 s57, s57, s56
        v_lshl_add_u32 v3, v0, 4, s57
        s_add_u32 {sr(sTAG)}, {sr(sTAG)}, 0x9e3779b9
        ''')
        k(f'''
        s_and_b32 s55, s2, 7
        s_lshl_b32 s55, s55, 12
        v_lshrrev_b32 v11, 1, v0
        v_lshlrev_b32 v11, 7, v11
        v_and_b32 v12, 1, v0
        v_lshl_add_u32 v11, v12, 5, v11
        v_add_u32 v215, s55, v11
        ''')

    def poll_sync1(self, va, vd):
        k = self.k
        L, D = k.label('p1'), k.label('p1d')
        k(f'''
        {L}:
        global_load_dwordx4 {vr(vd, 4)}, {vr(va)}, {P2(pWS)} offset:{SYNC1} sc1
        global_load_dwordx4 {vr(vd + 4, 4)}, {vr(va)}, {P2(pWS)} offset:{SYNC1 + 16} sc1
        v_min3_u32 {vr(vd + 8)}, {vr(vd)}, {vr(vd + 1)}, {vr(vd + 2)}
        v_max3_u32 {vr(vd + 9)}, {vr(vd)}, {vr(vd + 1)}, {vr(vd + 2)}
        v_min3_u32 {vr(vd + 8)}, {vr(vd + 8)}, {vr(vd + 3)}, {vr(vd + 4)}
        v_max3_u32 {vr(vd + 9)}, {vr(vd + 9)}, {vr(vd + 3)}, {vr(vd + 4)}
        v_min3_u32 {vr(vd + 8)}, {vr(vd + 8)}, {vr(vd + 5)}, {vr(vd + 6)}
        v_max3_u32 {vr(vd + 9)}, {vr(vd + 9)}, {vr(vd + 5)}, {vr(vd + 6)}
        v_min_u32 {vr(vd + 8)}, {vr(vd + 8)}, {vr(vd + 7)}
        v_max_u32 {vr(vd + 9)}, {vr(vd + 9)}, {vr(vd + 7)}
        v_xor_b32 {vr(vd + 8)}, {sr(sTAG)}, {vr(vd + 8)}
        v_xor_b32 {vr(vd + 9)}, {sr(sTAG)}, {vr(vd + 9)}
        v_or_b32 {vr(vd + 8)}, {vr(vd + 8)}, {vr(vd + 9)}
        v_cmp_ne_u32 vcc, 0, {vr(vd + 8)}
        s_cbranch_vccz {D}
        s_sleep {self.o.get('sleep', 2)}
        s_add_u32 {sr(sSPIN)}, {sr(sSPIN)}, 1
        s_cmp_lt_u32 {sr(sSPIN)}, {SPIN_MAX}
        s_cbranch_scc1 {L}
        {D}:
        ''')

    def touch(self, ptr, size, sbyte, stride=128, lanes=64):
        k = self.k
        k(f'''
        v_mul_u32_u24 v84, {stride}, v0
        v_add_u32 v84, {sbyte}, v84
        v_min_u32 v84, {size - 4}, v84
        ''')
        if lanes < 64:
            k(f's_mov_b32 exec_lo, {hex((1 << min(lanes, 32)) - 1)}\ns_mov_b32 exec_hi, {hex((1 << max(lanes - 32, 0)) - 1)}')
        k(f'global_load_dword v83, v84, {P2(ptr)}')
        if lanes < 64:
            k('s_mov_b64 exec, -1')

    def stage_a(self):
        k = self.k
        L, L5 = k.label('nsa'), k.label('sa5')
        k(f'''
        s_cmp_lt_u32 s2, 40
        s_cbranch_scc1 {L}
        s_cmp_ge_u32 {sr(sW)}, 6
        s_cbranch_scc1 {L}
        s_cmp_eq_u32 {sr(sW)}, 5
        s_cbranch_scc1 {L5}
        s_mov_b32 {sr(sWI)}, {sr(sW)}
        ''')
        self.wunits(1, 5, 1)
        k(f's_branch {L}\n{L5}:')
        if self.o.get('tm', 0):
            k(f's_mul_i32 s55, {sr(sI)}, {178 * 128}')
            for i in range(3):
                self.touch(pWM, 640 * 3840 * 2, 's55')
                if i < 2:
                    k('s_add_u32 s55, s55, 8192')
        k(f'{L}:')

    def stage_b_touch(self):
        k = self.k
        if not self.o.get('tb', 0):
            return
        L = [k.label('tb') for _ in range(5)]
        k(f's_cmp_lt_u32 {sr(sW)}, 2\ns_cbranch_scc0 {L[0]}')
        k(f's_mul_i32 s55, {sr(sI)}, {80 * 128}\ns_mul_i32 s56, {sr(sW)}, {40 * 128}\ns_add_u32 s55, s55, s56')
        self.touch(pWD, 1728 * 640 * 2, 's55', lanes=40)
        k(f's_branch {L[2]}\n{L[0]}:')
        k(f'''
        s_mul_i32 s55, {sr(sWR)}, {8 * 3456}
        s_lshl_b32 s56, {sr(sNB)}, 7
        s_add_u32 s55, s55, s56
        s_add_u32 s55, s55, {320 * 3456}
        s_cmp_eq_u32 {sr(sW)}, 2
        s_cbranch_scc0 {L[1]}
        ''')
        self.touch(pWG, 640 * 1728 * 2, 's55', stride=3456, lanes=40)
        k(f's_branch {L[2]}\n{L[1]}:\ns_cmp_eq_u32 {sr(sW)}, 3\ns_cbranch_scc0 {L[2]}')
        self.touch(pWU, 640 * 1728 * 2, 's55', stride=3456, lanes=40)
        k(f'{L[2]}:')

    def ln1(self):
        k = self.k
        X = [92, 93, 94, 95, 91]
        k('v_mov_b32 v10, v91')
        self.stamp('xld')
        if self.o.get('sa_pos', 0) == 0:
            self.stage_a()
        k(f'''
        s_mov_b32 s55, 0x3f803f80
        v_mov_b32 v10, 0
        v_mov_b32 v11, 0
        ''')
        for j in range(5):
            k(f'v_dot2_f32_bf16 v10, v{X[j]}, s55, v10')
            k(f'v_dot2_f32_bf16 v11, v{X[j]}, v{X[j]}, v11')
        k(f'''
        v_permlane32_swap_b32 v10, v11
        v_add_f32 v10, v10, v11
        ''')
        for n in (8, 4, 2, 1):
            k(f'v_add_f32_dpp v10, v10, v10 row_ror:{n} row_mask:0xf bank_mask:0xf')
        k(f'''
        v_add_f32_dpp v10, v10, v10 row_bcast:15 row_mask:0xa bank_mask:0xf
        v_mov_b32 v13, {f32(1.0 / 640)}
        v_readlane_b32 s55, v10, 31
        v_readlane_b32 s56, v10, 63
        s_lshl_b32 s57, {sr(sW)}, 2
        v_mov_b32 v14, s57
        v_mul_f32 v10, s55, v13
        v_mul_f32 v11, s56, v13
        v_fma_f32 v11, -v10, v10, v11
        v_max_f32 v11, 0, v11
        v_cvt_pk_bf16_f32 v10, v10, v11
        v_and_b32 v11, 0xffff0000, v10
        v_lshlrev_b32 v10, 16, v10
        v_add_f32 v11, {f32(1e-5)}, v11
        v_cvt_pk_bf16_f32 v11, v11, v11
        v_lshlrev_b32 v11, 16, v11
        v_sqrt_f32 v11, v11
        v_lshlrev_b32 v15, 16, v92
        v_cvt_pk_bf16_f32 v13, v10, v11
        v_and_b32 v11, 0xffff0000, v13
        v_rcp_f32 v11, v11
        ''')
        k(f'ds_write_b32 v14, v13 offset:{TR + TRM}', tag='trw')
        k('v_mul_f32 v10, -v10, v11')
        for j in range(5):
            k(f'''
            v_lshlrev_b32 v13, 16, v{X[j]}
            v_and_b32 v14, 0xffff0000, v{X[j]}
            v_fma_f32 v13, v13, v11, v10
            v_fma_f32 v14, v14, v11, v10
            v_cvt_pk_bf16_f32 v{X[j]}, v13, v14
            ''')
            if j == 3:
                k('ds_write_b128 v6, v[92:95]', tag='trw')
        k('ds_write_b32 v7, v91 offset:1024', tag='trw')
        k.wait('trw')
        k('s_barrier')
        if self.o.get('sa_pos', 0) == 1:
            self.stage_a()
        Ls = k.label('nost')
        k(f'''
        s_cmp_lt_u32 {sr(sW)}, 6
        s_cbranch_scc1 {Ls}
        ''')
        for i in range(5):
            k(f'ds_read_b64_tr_b16 v[{28 + 4 * i}:{29 + 4 * i}], v4 offset:{128 * i}')
            k(f'ds_read_b64_tr_b16 v[{30 + 4 * i}:{31 + 4 * i}], v4 offset:{128 * i + 4 * TRR}')
        k(f'''
        v_lshlrev_b32 v72, 4, v0
        ds_read_b128 v[68:71], v72 offset:{TR + TRM}
        s_mov_b32 s58, {XN}
        s_mov_b32 s59, {XN + 4096}
        ''')
        for i in range(5):
            k(f'buffer_store_dwordx4 v[{28 + 4 * i}:{31 + 4 * i}], v3, {P4(rWS)}, s{58 + i // 4} offen offset:{1024 * (i % 4)} sc1', tag='xnst')
        L6, L7, L8 = k.label('w6'), k.label('w7'), k.label('w8')
        k(f'''
        s_cmp_eq_u32 {sr(sW)}, 6
        s_cbranch_scc1 {L6}
        v_mov_b32 v68, 0
        v_mov_b32 v69, 0
        v_mov_b32 v70, 0
        v_mov_b32 v71, 0
        s_cmp_ge_u32 s2, 30
        s_cbranch_scc1 {L8}
        s_add_u32 s56, s2, 30
        s_lshl_b32 s56, s56, 8
        s_add_u32 s56, s56, {MOD}
        s_mov_b64 exec, 0xffff
        buffer_store_dwordx4 v[68:71], v72, {P4(rWS)}, s56 offen sc1
        {L8}:
        s_mul_i32 s56, s2, 224
        s_add_u32 s56, s56, {ZBEG}
        s_mov_b64 exec, 0x3fff
        s_branch {L7}
        {L6}:
        s_lshl_b32 s56, s2, 5
        s_add_u32 s56, s56, {MS}
        s_mov_b64 exec, 3
        {L7}:
        ''')
        k(f'buffer_store_dwordx4 v[68:71], v72, {P4(rWS)}, s56 offen sc1', tag='xnst')
        k(f'''
        s_mov_b64 exec, 0xffff
        v_mov_b32 v74, 0
        v_mov_b32 v75, 0
        v_mov_b32 v76, 0
        v_mov_b32 v77, 0
        s_lshl_b32 s56, s68, 8
        s_add_u32 s69, s56, {MODP}
        ''')
        k(f'buffer_store_dwordx4 v[74:77], v72, {P4(rWS)}, s69 offen sc1', tag='xnst')
        k('s_mov_b64 exec, -1')
        self.silu10()
        k(f'''
        s_mov_b64 exec, -1
        s_lshr_b32 s56, s2, 3
        s_lshl_b32 s56, s56, 7
        s_and_b32 s57, s2, 7
        s_lshl_b32 s57, s57, 3
        s_add_u32 s56, s56, s57
        s_and_b32 s57, {sr(sW)}, 1
        s_lshl_b32 s57, s57, 2
        s_add_u32 s56, s56, s57
        v_lshl_add_u32 v16, v0, 12, s56
        v_mov_b32 v17, {sr(sTAG)}
        s_mov_b64 exec, 0xff
        ''')
        k.wait('xnst')
        k(f'''
        global_store_dword v16, v17, {P2(pWS)} offset:{SYNC1} sc1
        s_mov_b64 exec, -1
        ''')
        self.stamp('A')
        Lm = k.label('nwb')
        nb_ = self.o.get('wb', 10)
        if nb_:
            k(f'''
            s_cmp_lt_u32 s2, 40
            s_cbranch_scc1 {Lm}
            s_sub_u32 {sr(sWI)}, {sr(sW)}, 1
            ''')
            self.wunits(nb_, 5 + 2 * nb_, 2)
            k(f'{Lm}:')
        for i in range(10):
            k(f'global_load_dwordx4 {vr(216 + 4 * i, 4)}, v20, {P2(pWM)} {self.o["nt"]}')
            if i < 9:
                k('v_add_u32 v20, 7680, v20')
        k(f'{Ls}:')

    def silu10(self):
        k = self.k
        CV = 140
        for i in range(10):
            k(f'v_lshlrev_b32 {vr(CV + i)}, 16, {vr(160 + i // 2)}' if i % 2 == 0 else f'v_and_b32 {vr(CV + i)}, 0xffff0000, {vr(160 + i // 2)}')
            k(f'v_mul_f32 {vr(150 + i)}, {f32(-LOG2E)}, {vr(CV + i)}')
        for op in ('v_exp_f32 {t}, {t}', 'v_add_f32 {t}, 1.0, {t}', 'v_rcp_f32 {t}, {t}', 'v_mul_f32 {c}, {c}, {t}',
                   'v_cvt_pk_bf16_f32 {c}, {c}, {c}', 'v_lshlrev_b32 {c}, 16, {c}'):
            for i in range(10):
                k(op.format(t=vr(150 + i), c=vr(CV + i)))

    def mod_partial(self):
        k = self.k
        LD, CV, V = 216, 140, 68
        L = k.label('nomp')
        k(f's_cmp_lt_u32 {sr(sW)}, 6\ns_cbranch_scc1 {L}')
        for i in range(10):
            for j in range(4):
                r = LD + 4 * i + j
                a, b = 76 + 2 * (j % 2), 77 + 2 * (j % 2)
                k(f'v_lshlrev_b32 v{a}, 16, {vr(r)}\nv_and_b32 v{b}, 0xffff0000, {vr(r)}')
                if i == 0:
                    k(f'v_mul_f32 {vr(V + 2 * j)}, v{a}, {vr(CV)}\nv_mul_f32 {vr(V + 2 * j + 1)}, v{b}, {vr(CV)}')
                else:
                    k(f'v_fmac_f32 {vr(V + 2 * j)}, v{a}, {vr(CV + i)}\nv_fmac_f32 {vr(V + 2 * j + 1)}, v{b}, {vr(CV + i)}')
        for i in range(4):
            k(f'v_permlane32_swap_b32 {vr(V + i)}, {vr(V + 4 + i)}')
        for i in range(4):
            k(f'v_add_f32 {vr(V + i)}, {vr(V + i)}, {vr(V + 4 + i)}')
        for i in range(2):
            k(f'v_permlane16_swap_b32 {vr(V + i)}, {vr(V + 2 + i)}')
        for i in range(2):
            k(f'v_add_f32 {vr(V + i)}, {vr(V + i)}, {vr(V + 2 + i)}')
        k(f'''
        v_lshrrev_b32 v76, 4, v0
        v_and_b32 v77, 7, v0
        v_lshlrev_b32 v76, 3, v76
        v_lshl_add_u32 v76, v77, 5, v76
        ''')
        for i in range(2):
            k(f'v_add_f32_dpp {vr(V + i)}, {vr(V + i)}, {vr(V + i)} row_ror:8 row_mask:0xf bank_mask:0xf')
        k(f'''
        v_or_b32 {vr(V)}, 1, {vr(V)}
        v_or_b32 {vr(V + 1)}, 1, {vr(V + 1)}
        s_mov_b32 exec_lo, 0x00ff00ff
        s_mov_b32 exec_hi, 0x00ff00ff
        buffer_store_dwordx2 {vr(V, 2)}, v76, {P4(rWS)}, s69 offen sc1
        s_mov_b64 exec, -1
        ''')
        self.stamp('modp')
        k(f'{L}:')

    def wunits(self, n, end, step):
        k = self.k
        L = k.label('wsd')
        for i in range(n):
            k(f'''
            s_cmp_ge_u32 {sr(sWI)}, {end}
            s_cbranch_scc1 {L}
            s_add_u32 s55, {sr(sWI)}, {sr(sWR)}
            s_sub_u32 s56, s55, 40
            s_cselect_b32 s55, s55, s56
            s_lshl_b32 s56, s55, 11
            s_add_u32 m0, s56, {STG}
            s_mul_i32 s55, s55, {8 * 3456}
            s_add_u32 s55, s55, {sr(sWO)}
            s_add_u32 {sr(sWI)}, {sr(sWI)}, {step}
            ''')
            k(f'buffer_load_dwordx4 v26, {P4(rA)}, s55 offen lds', tag='wst')
            k(f's_add_u32 m0, s56, {STG + 1024}')
            k(f'buffer_load_dwordx4 v27, {P4(rB)}, s55 offen lds', tag='wst')
        k(f'{L}:')

    def wread_addr(self, va):
        self.k(f'''
        v_bfe_u32 {vr(va + 1)}, v0, 3, 2
        s_and_b32 s55, {sr(sW)}, 3
        v_xor_b32 {vr(va + 1)}, s55, {vr(va + 1)}
        v_lshrrev_b32 {vr(va)}, 4, v0
        v_lshlrev_b32 {vr(va)}, 10, {vr(va)}
        v_lshl_add_u32 {vr(va)}, {vr(va + 1)}, 5, {vr(va)}
        v_bfe_u32 {vr(va + 1)}, v0, 2, 2
        v_lshl_add_u32 {vr(va)}, {vr(va + 1)}, 7, {vr(va)}
        v_and_b32 {vr(va + 1)}, 3, v0
        v_lshl_add_u32 {vr(va)}, {vr(va + 1)}, 3, {vr(va)}
        v_add_u32 {vr(va)}, {STG}, {vr(va)}
        v_add_u32 {vr(va + 1)}, {10 * 4096}, {vr(va)}
        ''')

    def wstage_read(self, rnd, va):
        k = self.k
        for s in range(20):
            r = WF + 4 * (20 * rnd + s)
            a = va if s < 10 else va + 1
            off = (s % 10) * 4096
            k(f'ds_read_b64_tr_b16 {vr(r, 2)}, {vr(a)} offset:{off}', tag='wrd')
            k(f'ds_read_b64_tr_b16 {vr(r + 2, 2)}, {vr(a)} offset:{off + 512}', tag='wrd')

    def cmul(self, d, a, b):
        self.k(f'v_pk_mul_f32 {vr(d, 2)}, {vr(a, 2)}, {vr(b, 2)} op_sel:[0,0] op_sel_hi:[0,1]')
        self.k(f'v_pk_fma_f32 {vr(d, 2)}, {vr(a, 2)}, {vr(b, 2)}, {vr(d, 2)} op_sel:[1,1,0] op_sel_hi:[1,0,1] neg_lo:[1,0,0]')

    def zpow(self, d, e, a2, fr, t):
        k = self.k
        k(f'''
        v_mul_f32 {vr(t)}, {f32(e)}, {vr(a2)}
        v_mul_f32 {vr(t + 1)}, {f32(e)}, {vr(fr)}
        v_exp_f32 {vr(t)}, {vr(t)}
        v_fract_f32 {vr(t + 1)}, {vr(t + 1)}
        v_cos_f32 {vr(d)}, {vr(t + 1)}
        v_sin_f32 {vr(d + 1)}, {vr(t + 1)}
        v_mul_f32 {vr(d)}, {vr(d)}, {vr(t)}
        v_mul_f32 {vr(d + 1)}, {vr(d + 1)}, {vr(t)}
        ''')

    def kgen(self):
        k = self.k
        Lskip = k.label('nokg')
        k(f's_cmp_ge_u32 {sr(sW)}, 6\ns_cbranch_scc1 {Lskip}')
        A2, FR, T = 28, 29, 30
        Z = {e: 32 + 2 * e for e in range(1, 8)}
        Z8, Z128, QA, QB, PA, PB, PC = 48, 50, 52, 54, 56, 58, 60
        CV = 62
        QF, PF, AC = 64, 176, 192
        RA = 80
        k(f'''
        v_lshlrev_b32 v24, 16, v24
        v_lshlrev_b32 v20, 16, v20
        v_mul_f32 v24, {f32(LOG2E)}, v24
        v_mul_f32 v20, {f32(LOG2E)}, v20
        v_exp_f32 v24, v24
        v_exp_f32 v20, v20
        v_lshlrev_b32 v21, 16, v21
        v_cvt_pk_bf16_f32 v20, v20, v24
        v_and_b32 v24, 0xffff0000, v20
        v_lshlrev_b32 v20, 16, v20
        v_mul_f32 {vr(A2)}, v20, v24
        v_mul_f32 {vr(FR)}, v21, v24
        v_mul_f32 {vr(A2)}, {f32(-LOG2E)}, {vr(A2)}
        v_mul_f32 {vr(FR)}, 0.15915494, {vr(FR)}
        v_add_f32 v24, v24, v24
        v_lshlrev_b32 v22, 16, v22
        v_lshlrev_b32 v23, 16, v23
        v_mul_f32 {vr(QA)}, v22, v24
        v_mul_f32 {vr(QA + 1)}, v23, v24
        s_mul_i32 s60, {sr(sW)}, {KGS}
        s_mov_b32 m0, s60
        v_and_b32 {vr(RA)}, 15, v0
        v_mul_u32_u24 {vr(RA)}, 288, {vr(RA)}
        v_lshrrev_b32 {vr(RA + 1)}, 4, v0
        v_lshl_add_u32 {vr(RA)}, {vr(RA + 1)}, 4, {vr(RA)}
        v_add_u32 {vr(RA)}, s60, {vr(RA)}
        ''')
        self.zpow(Z8, 8.0, A2, FR, T)
        self.zpow(Z[1], 1.0, A2, FR, T)
        self.zpow(Z128, 128.0, A2, FR, T)
        flip = [0]

        def put(row, r, neg=False):
            c = CV + flip[0]
            flip[0] ^= 1
            k(f'v_cvt_pk_bf16_f32 {vr(c)}, {vr(r)}, {"-" if neg else ""}{vr(r + 1)}')
            k(f'ds_write_addtid_b32 {vr(c)} offset:{288 * row}')

        def frags(dst):
            for s in range(4):
                k(f'ds_read_b128 {vr(dst + 4 * s, 4)}, {vr(RA)} offset:{64 * s}')

        def mm(acc):
            for s in range(4):
                c = '0' if s == 0 else vr(acc, 4)
                k(f'v_mfma_f32_16x16x32_bf16 {vr(acc, 4)}, {vr(PF + 4 * s, 4)}, {vr(QF + 4 * s, 4)}, {c}')

        small = [(2, 1, 1), (3, 2, 1), (4, 2, 2), (5, 4, 1), (6, 4, 2), (7, 4, 3)]
        cur, nxt = QA, QB
        for b in range(16):
            if b < 15:
                self.cmul(nxt, cur, Z8)
            put(b, cur, neg=True)
            if b < len(small):
                e, x, y = small[b]
                self.cmul(Z[e], Z[x], Z[y])
            cur, nxt = nxt, cur
        frags(QF)
        self.stage_b_touch()
        k(f'v_mov_b32 {vr(CV)}, 0x3f80')
        k(f'ds_write_addtid_b32 {vr(CV)} offset:0')
        flip[0] = 1
        put(8, Z128)
        cur, nxt = PA, PB
        for e in range(1, 8):
            self.cmul(cur, Z[e], Z128)
            put(e, Z[e])
            put(8 + e, cur)
            cur, nxt = nxt, cur
        frags(PF)
        self.cmul(QA, Z128, Z128)
        self.cmul(QB, QA, Z128)
        mm(AC)
        put(0, QA)
        put(4, QB)
        for e in (1, 2, 3):
            self.cmul(PA, QA, Z[2 * e])
            self.cmul(PB, QB, Z[2 * e])
            put(e, PA)
            put(4 + e, PB)
        cur, nxt = QB, QA
        for a in range(4):
            self.cmul(nxt, cur, Z128)
            self.cmul(PA, nxt, Z[4])
            put(8 + 2 * a, nxt)
            put(9 + 2 * a, PA)
            cur, nxt = nxt, cur
        frags(PF)
        self.cmul(nxt, cur, Z128)
        cur, nxt = nxt, cur
        mm(AC + 4)
        for a in range(9):
            if a < 8:
                self.cmul(nxt, cur, Z128)
            put(a, cur)
            cur, nxt = nxt, cur
        frags(PF)
        k(f'''
        v_lshrrev_b32 {vr(RA + 1)}, 4, v0
        v_mul_u32_u24 {vr(RA + 1)}, 320, {vr(RA + 1)}
        v_and_b32 {vr(RA + 2)}, 15, v0
        v_lshl_add_u32 {vr(RA + 1)}, {vr(RA + 2)}, 2, {vr(RA + 1)}
        s_mul_i32 s55, {sr(sW)}, {KCS}
        s_add_u32 s55, s55, {KC}
        v_add_u32 {vr(RA + 1)}, s55, {vr(RA + 1)}
        ''')
        for Tt in range(2):
            for i in range(4):
                k(f'ds_write_b32 {vr(RA + 1)}, {vr(AC + 4 * Tt + i)} offset:{(16 * Tt + i) * 80}', tag='kcw')
        mm(AC + 8)
        for i in range(4):
            k(f'ds_write_b32 {vr(RA + 1)}, {vr(AC + 8 + i)} offset:{(32 + i) * 80}', tag='kcw')
        k(f'{Lskip}:')

    def kexpand1(self):
        k = self.k
        V = lambda ch, j: 36 + 4 * ch + j
        PK, SC = 48, 54
        k(f'''
        v_lshlrev_b32 v25, 16, v25
        v_cmp_eq_u32 s[58:59], 0, v208
        v_readlane_b32 s62, v25, 0
        v_readlane_b32 s63, v25, 1
        v_readlane_b32 s64, v25, 2
        v_mov_b32 v64, 0
        v_mov_b32 v65, 0
        v_mov_b32 v66, 0
        v_mov_b32 v67, 0
        v_lshlrev_b32 v35, 4, v0
        ''')
        for ch in range(3):
            k(f'v_mov_b32 {vr(SC + ch)}, s{62 + ch}')
            k(f'v_cndmask_b32 {vr(SC + ch)}, 0, {vr(SC + ch)}, s[58:59]')
        k.wait('kcw')
        k('s_barrier')
        self.stamp('kcw')
        for ch in range(3):
            for j in range(4):
                k(f'ds_read2st64_b32 {vr(176 + 8 * ch + 2 * j, 2)}, {vr(GA + j)} offset0:{30 * ch} offset1:{30 * ch + 15}')
        L = self.only_wave(7)
        k(f's_mov_b32 exec_lo, -1\ns_mov_b32 exec_hi, 0x3ff')
        k(f'ds_write_b128 v35, v[64:67] offset:{XNL0 - 672}', tag='kaw')
        k(f's_mov_b64 exec, 3')
        for ch in range(3):
            k(f'ds_write_b128 v35, v[64:67] offset:{KA + ch * KAS}', tag='kaw')
        k(f's_mov_b64 exec, -1')
        k(f'{L}:')
        k(f's_add_u32 {sr(sWI)}, {sr(sW)}, {5 + 2 * self.o.get("wb", 10)}')
        self.wunits(max(0, (35 - 2 * self.o.get('wb', 10) + 7) // 8), 40, 8)
        for ch in range(3):
            for j in range(4):
                k(f'v_add_f32 {vr(V(ch, j))}, {vr(176 + 8 * ch + 2 * j)}, {vr(177 + 8 * ch + 2 * j)}')
            k(f'v_add_f32 {vr(V(ch, 0))}, {vr(V(ch, 0))}, {vr(SC + ch)}')
        for ch in range(3):
            k(f'v_cvt_pk_bf16_f32 {vr(PK + 2 * ch)}, {vr(V(ch, 0))}, {vr(V(ch, 1))}')
            k(f'v_cvt_pk_bf16_f32 {vr(PK + 2 * ch + 1)}, {vr(V(ch, 2))}, {vr(V(ch, 3))}')
            k(f'ds_write_b64 v208, {vr(PK + 2 * ch, 2)} offset:{KA + ch * KAS + 32}', tag='kaw')
        for j in range(1, 4):
            for ch in range(3):
                k(f'v_add_f32 {vr(V(ch, j))}, {vr(V(ch, j))}, {vr(V(ch, j - 1))}')
        for n in (1, 2, 4, 8):
            for ch in range(3):
                src = V(ch, 3) if n == 1 else SC + ch
                k(f'v_add_f32_dpp {vr(SC + ch)}, {vr(src)}, {vr(src)} row_shr:{n} row_mask:0xf bank_mask:0xf bound_ctrl:0')
        for ch in range(3):
            k(f'v_add_f32_dpp {vr(SC + ch)}, {vr(SC + ch)}, {vr(SC + ch)} row_bcast:15 row_mask:0xa bank_mask:0xf')
        for ch in range(3):
            k(f'v_add_f32_dpp {vr(SC + ch)}, {vr(SC + ch)}, {vr(SC + ch)} row_bcast:31 row_mask:0xc bank_mask:0xf')
        k(f'''
        s_lshl_b32 s55, {sr(sW)}, 2
        s_add_u32 s55, s55, {WT}
        v_mov_b32 v33, s55
        s_mov_b32 exec_lo, 0
        s_brev_b32 exec_hi, 1
        ''')
        for ch in range(3):
            k(f'ds_write_b32 v33, {vr(SC + ch)} offset:{32 * ch}', tag='kaw')
        k('s_mov_b64 exec, -1')

    def kexpand2(self):
        k = self.k
        V = lambda ch, j: 36 + 4 * ch + j
        SC = 54
        k(f'''
        v_min_u32 v33, 23, v0
        v_lshlrev_b32 v33, 2, v33
        v_add_u32 v33, {WT}, v33
        ds_read_b32 v34, v33
        v_and_b32 v33, 7, v0
        v_cmp_gt_u32 vcc, {sr(sW)}, v33
        ''')
        for ch in range(3):
            k(f'v_sub_f32 {vr(SC + ch)}, {vr(SC + ch)}, {vr(V(ch, 3))}')
        k('v_cndmask_b32 v34, 0, v34, vcc')
        for n in (1, 2, 4):
            k(f'v_add_f32_dpp v34, v34, v34 row_shr:{n} row_mask:0xf bank_mask:0xf bound_ctrl:0')
        k(f'''
        v_readlane_b32 s62, v34, 7
        v_readlane_b32 s63, v34, 15
        v_readlane_b32 s64, v34, 23
        ''')
        for ch in range(3):
            k(f'v_add_f32 {vr(SC + ch)}, s{62 + ch}, {vr(SC + ch)}')
            for j in range(4):
                k(f'v_add_f32 {vr(V(ch, j))}, {vr(V(ch, j))}, {vr(SC + ch)}')
            k(f'ds_write_b128 v209, {vr(V(ch, 0), 4)} offset:{SA + ch * SAS}', tag='saw')

    def conv_loads(self):
        k = self.k
        k(f'''
        s_lshl_b32 s60, {sr(sW)}, 10
        s_mov_b32 s57, {XN}
        s_mov_b32 s58, {MS}
        ''')
        L = self.only_wave(0)
        self.poll_sync1(215, 58)
        k(f'{L}:')
        k.wait('kaw', 'wst')
        k('s_barrier')
        self.stamp('sync1')
        k(f's_add_u32 m0, s60, {XNL0}')
        k(f'buffer_load_dwordx4 v210, {P4(rWS)}, s57 offen sc1 lds', tag='xnl')
        L = k.label('x2')
        k(f's_cmp_ge_u32 {sr(sW)}, 4\ns_cbranch_scc1 {L}\ns_add_u32 m0, s60, {XNL0 + 8192}')
        k(f'buffer_load_dwordx4 v211, {P4(rWS)}, s57 offen sc1 lds', tag='xnl')
        k(f'{L}:\ns_add_u32 m0, s60, {MSL}')
        k(f'buffer_load_dwordx4 v212, {P4(rWS)}, s58 offen sc1 lds', tag='xnl')

    def conv_consts(self):
        k = self.k
        Lr, Ld = k.label('mr'), k.label('md')
        chk = f'''
        v_min_u32 v16, v17, v23
        v_cmp_eq_u32 vcc, 0, v16
        s_cbranch_vccz {Ld}
        '''
        k(chk)
        k(f'''
        {Lr}:
        global_load_dword v17, v88, {P2(pWS)} sc1
        global_load_dword v23, v88, {P2(pWS)} offset:1024 sc1
        ''')
        k(chk)
        k(f'''
        s_sleep {self.o.get('sleep', 2)}
        s_add_u32 {sr(sSPIN)}, {sr(sSPIN)}, 1
        s_cmp_lt_u32 {sr(sSPIN)}, {SPIN_MAX}
        s_cbranch_scc1 {Lr}
        {Ld}:
        v_add_f32 v17, v17, v23
        v_add_f32_dpp v17, v17, v17 quad_perm:[1,0,3,2] row_mask:0xf bank_mask:0xf
        v_add_f32_dpp v17, v17, v17 quad_perm:[2,3,0,1] row_mask:0xf bank_mask:0xf
        v_cvt_pk_bf16_f32 v17, v17, v17
        v_lshlrev_b32 v17, 16, v17
        v_add_f32 v16, 1.0, v17
        v_cvt_pk_bf16_f32 v16, v16, v16
        v_lshlrev_b32 v16, 16, v16
        ''')
        for ch in range(3):
            k(f'v_readlane_b32 s55, v17, {4 * (6 + ch)}')
            k(f'v_readlane_b32 {sr(sCH + 3 * ch + 2)}, v16, {4 * (9 + ch)}')
            k(f'v_mul_f32 v18, s55, v16\nv_mul_f32 v19, s55, v17')
            k(f'v_readlane_b32 {sr(sCH + 3 * ch)}, v18, {4 * (3 + ch)}')
            k(f'v_readlane_b32 {sr(sCH + 3 * ch + 1)}, v19, {4 * ch}')

    def conv(self):
        k = self.k
        H, KF, ACC, AX = 32, 64, 176, 208
        vHB, vKB, vH, vK, vXB, vSB, vO = 1, 2, 3, 4, 5, 6, 7
        XV, SV, TT, MV = 212, 216, 224, 244
        sL, sG, sC, sN, sPEND = 65, 66, 67, 68, 69
        k(f'''
        s_lshl_b32 s55, {sr(sW)}, 2
        s_lshr_b32 s55, 0x56437210, s55
        s_and_b32 {sr(sWI)}, s55, 15
        s_cmp_ge_u32 {sr(sWI)}, 6
        s_cselect_b32 {sr(sWI)}, 40, {sr(sWI)}
        s_mov_b32 {sr(sWO)}, {320 * 3456}
        ''')
        U = lambda G, ch: 4 * ch + G + 1
        lists = [[U(3, 0)], [U(3, 1)], [U(3, 2)], [U(0, 2), U(2, 2)], [U(2, 0)], [U(2, 1)],
                 [U(0, 0), U(0, 1), U(1, 0)], [U(1, 1), U(1, 2)]]
        enc = [sum(u << (4 * i) for i, u in enumerate(l)) for l in lists]
        for w in range(8):
            k(f's_cmp_eq_u32 {sr(sW)}, {w}\ns_cmov_b32 {sr(sL)}, {enc[w]}' if w else f's_mov_b32 {sr(sL)}, {enc[0]}')
        k(f's_mov_b32 {sr(sPEND)}, 0\ns_mov_b32 {sr(sFLAG)}, 0')
        if self.o.get('prio', True):
            L = k.label('np')
            k(f's_and_b32 s55, {sr(sL)}, 3\ns_cmp_lg_u32 s55, 1\ns_cbranch_scc1 {L}\ns_setprio 2\n{L}:')
        k.wait('xnl', 'saw', 'wrd')
        k('s_barrier')
        self.stamp('xnl')
        Lu, Lloop, Ltail, Ldone = k.label('unit'), k.label('cl'), k.label('ct'), k.label('cdone')
        k(f'''
        {Lu}:
        s_and_b32 s55, {sr(sL)}, 15
        s_sub_u32 s55, s55, 1
        s_and_b32 {sr(sG)}, s55, 3
        s_lshr_b32 {sr(sC)}, s55, 2
        s_lshr_b32 {sr(sL)}, {sr(sL)}, 4
        s_mul_i32 s55, {sr(sG)}, 3072
        s_lshl_b32 s56, {sr(sC)}, 4
        s_add_u32 s55, s55, s56
        v_add_u32 {vr(vH)}, s55, {vr(vHB)}
        v_add_u32 v8, s55, {vr(vXB)}
        s_mul_i32 s56, {sr(sC)}, {KAS}
        v_add_u32 {vr(vK)}, s56, {vr(vKB)}
        ''')
        hs = lambda m: H + 4 * (m % 8)
        inloop = [False]
        ks = lambda q: KF + 4 * (q % 4)

        def ldh(slot_m, base, off):
            if self.o.get('x_cnoh') and base == vH and inloop[0]:
                return
            k(f'ds_read_b64_tr_b16 {vr(hs(slot_m), 2)}, {vr(base)} offset:{off}')
            k(f'ds_read_b64_tr_b16 {vr(hs(slot_m) + 2, 2)}, {vr(base)} offset:{off + 96}')

        def ldk(q, off):
            if self.o.get('x_cnok') and inloop[0]:
                return
            k(f'ds_read_b64_tr_b16 {vr(ks(q), 2)}, {vr(vK)} offset:{off + 32}')
            k(f'ds_read_b64_tr_b16 {vr(ks(q) + 2, 2)}, {vr(vK)} offset:{off}')

        def mf(acc, m, q, zero=False):
            c = '0' if zero else vr(acc, 4)
            k(f'v_mfma_f32_16x16x32_bf16 {vr(acc, 4)}, {vr(hs(m), 4)}, {vr(ks(q), 4)}, {c}')

        ldk(0, 0)
        for i in (7, 6, 5, 4, 3, 2, 1, 0):
            ldh(i, vH, 384 * i)
        ldk(1, 256)
        k(f'''
        v_subrev_u32 v11, 768, {vr(vH)}
        v_subrev_u32 {vr(vH)}, 3840, {vr(vH)}
        s_lshl_b32 s55, {sr(sC)}, 13
        s_lshl_b32 s56, {sr(sG)}, 11
        s_add_u32 s55, s55, s56
        s_add_u32 s55, s55, {SA}
        v_lshl_add_u32 {vr(vSB)}, v0, 2, s55
        s_add_u32 s56, s56, {MSL}
        v_lshl_add_u32 v22, v0, 2, s56
        v_mov_b32 {vr(AX)}, 0
        v_mov_b32 {vr(AX + 1)}, 0
        v_mov_b32 {vr(AX + 2)}, 0
        v_mov_b32 {vr(AX + 3)}, 0
        s_mov_b32 {sr(sN)}, {sr(sG)}
        ''')
        mf(ACC + 28, 7, 0, True)
        mf(ACC + 24, 6, 0, True)
        ldh(6, 11, 0)
        ldh(7, 11, 384)
        for i in (5, 4, 3, 2, 1, 0):
            mf(ACC + 4 * i, i, 0, True)
        if not self.o.get('x_cnow'):
            self.wunits(3, 40, 6)
        k(f's_cmp_eq_u32 {sr(sN)}, 0\ns_cbranch_scc1 {Ltail}')
        k(f'{Lloop}:')
        inloop[0] = True
        for u in range(1, 5):
            mf(ACC + 28, 7 - 2 * u, u)
            mf(ACC + 24, 6 - 2 * u, u)
            ldh(6 - 2 * u, vH, 384 * (8 - 2 * u))
            ldh(7 - 2 * u, vH, 384 * (9 - 2 * u))
            ldk(u + 1, 256 * (u + 1))
            for i in (5, 4, 3, 2, 1, 0):
                mf(ACC + 4 * i, i - 2 * u, u)
            mf(AX, 1 - 2 * u, u - 1)
        inloop[0] = False
        Lnp = k.label('nopend')
        if not self.o.get('x_cnow'):
            self.wunits(2, 40, 6)
        k(f'''
        v_subrev_u32 {vr(vH)}, 3072, {vr(vH)}
        v_add_u32 {vr(vK)}, 1024, {vr(vK)}
        s_cmp_eq_u32 {sr(sPEND)}, 0
        s_cbranch_scc1 {Lnp}
        s_mov_b32 {sr(sPEND)}, 0
        ''')
        self.stamp('p0a')
        k(f'''
        s_waitcnt vmcnt(0)
        s_lshl_b32 s55, {sr(sI)}, 1
        s_and_b32 s56, {sr(sW)}, 1
        s_add_u32 s55, s55, s56
        s_and_b32 s55, s55, 15
        ''')
        self.arrive(SYNC2A, 16, 's55', 9)
        self.stamp('pub0')
        k(f'''
        {Lnp}:
        s_sub_u32 {sr(sN)}, {sr(sN)}, 1
        s_cmp_lg_u32 {sr(sN)}, 0
        s_cbranch_scc1 {Lloop}
        {Ltail}:
        global_load_dword v17, v88, {P2(pWS)} sc1
        global_load_dword v23, v88, {P2(pWS)} offset:1024 sc1
        global_load_dwordx2 v[12:13], v90, {P2(pWS)} sc1
        global_load_dwordx2 v[14:15], v90, {P2(pWS)} offset:2560 sc1
        ''')
        ldk(2, 512)
        for i in (7, 6, 5, 4, 3, 2):
            mf(ACC + 4 * i, i - 2, 1)
        ldk(3, 768)
        k(f'ds_read_b64_tr_b16 {vr(XV, 2)}, v8')
        k(f'ds_read_b64_tr_b16 {vr(XV + 2, 2)}, v8 offset:1536')
        for i in range(4):
            k(f'ds_read2st64_b32 {vr(SV + 2 * i, 2)}, {vr(vSB)} offset0:{2 * i} offset1:{2 * i + 1}')
        for i in range(4):
            k(f'ds_read2st64_b32 {vr(MV + 2 * i, 2)}, v22 offset0:{2 * i} offset1:{2 * i + 1}')
        for i in (7, 6, 5, 4):
            mf(ACC + 4 * i, i - 4, 2)
        for i in (7, 6):
            mf(ACC + 4 * i, i - 6, 3)
        self.stamp('c_mm')
        Lc = k.label('hc')
        k(f's_cmp_lg_u32 {sr(sFLAG)}, 0\ns_cbranch_scc1 {Lc}')
        self.stamp('c1a')
        self.conv_consts()
        self.stamp('c1b')
        k(f'{Lc}:')
        k(f'''
        s_mov_b32 {sr(sFLAG)}, 1
        s_cmp_eq_u32 {sr(sC)}, 1
        s_cselect_b32 s55, {sr(sCH + 3)}, {sr(sCH)}
        s_cselect_b32 s56, {sr(sCH + 4)}, {sr(sCH + 1)}
        s_cselect_b32 s57, {sr(sCH + 5)}, {sr(sCH + 2)}
        s_cmp_eq_u32 {sr(sC)}, 2
        s_cselect_b32 s55, {sr(sCH + 6)}, s55
        s_cselect_b32 s56, {sr(sCH + 7)}, s56
        s_cselect_b32 s57, {sr(sCH + 8)}, s57
        s_add_u32 s58, {sr(sD0)}, {sr(sC)}
        s_lshl_b32 s58, s58, 12
        s_lshl_b32 s59, {sr(sG)}, 10
        s_add_u32 s58, s58, s59
        s_add_u32 s59, s58, {X1S}
        s_add_u32 s58, s58, {X1T}
        v_lshlrev_b32 {vr(vO)}, 4, v0
        ''')
        SH = 'wave_shr:1 row_mask:0xf bank_mask:0xf'
        RO = 'wave_ror:1 row_mask:0xf bank_mask:0xf'
        a = lambda i, e: (AX if i < 0 else ACC + 4 * i) + e
        t2 = lambda i: TT + 1 + i
        t1 = lambda i: TT + 11 + i
        k(f'v_add_f32_dpp {vr(t2(-1))}, {vr(a(-1, 3))}, {vr(a(-1, 2))} {SH} bound_ctrl:0')
        for i in range(8):
            k(f'v_add_f32_dpp {vr(t2(i))}, {vr(a(i - 1, 3))}, {vr(a(i, 2))} {RO}')
        for i in range(8):
            k(f'v_add_f32_dpp {vr(t2(i))}, {vr(a(i, 3))}, {vr(a(i, 2))} {SH}')
        k(f'v_add_f32_dpp {vr(t1(-1))}, {vr(t2(-1))}, {vr(a(-1, 1))} {SH} bound_ctrl:0')
        for i in range(8):
            k(f'v_add_f32_dpp {vr(t1(i))}, {vr(t2(i - 1))}, {vr(a(i, 1))} {RO}')
        for i in range(8):
            k(f'v_add_f32_dpp {vr(t1(i))}, {vr(t2(i))}, {vr(a(i, 1))} {SH}')
        for i in range(8):
            k(f'v_add_f32_dpp {vr(a(i, 3))}, {vr(t1(i - 1))}, {vr(a(i, 0))} {RO}')
        for i in range(8):
            k(f'v_add_f32_dpp {vr(a(i, 3))}, {vr(t1(i))}, {vr(a(i, 0))} {SH}')
        for i in range(8):
            xr = XV + i // 2
            if i % 2 == 0:
                k(f'v_lshlrev_b32 {vr(t1(i))}, 16, {vr(xr)}')
            else:
                k(f'v_and_b32 {vr(t1(i))}, 0xffff0000, {vr(xr)}')
            k(f'v_lshlrev_b32 {vr(t2(i))}, 16, {vr(MV + i)}')
            k(f'v_and_b32 {vr(MV + i)}, 0xffff0000, {vr(MV + i)}')
            k(f'v_fmac_f32 {vr(t2(i))}, s56, {vr(SV + i)}')
            k(f'v_fmac_f32 {vr(t2(i))}, {vr(t1(i))}, {vr(MV + i)}')
        for i in range(8):
            k(f'v_fmac_f32 {vr(t2(i))}, s55, {vr(a(i, 3))}')
        for i in range(4):
            k(f'v_cvt_pk_bf16_f32 {vr(XV + i)}, {vr(t2(2 * i))}, {vr(t2(2 * i + 1))}')
        for i in range(8):
            k(f'v_mul_f32 {vr(t2(i))}, s57, {vr(t2(i))}')
        k(f'buffer_store_dwordx4 {vr(XV, 4)}, {vr(vO)}, {P4(rWS)}, s58 offen sc1', tag='x1st')
        for i in range(4):
            k(f'v_cvt_pk_bf16_f32 {vr(SV + i)}, {vr(t2(2 * i))}, {vr(t2(2 * i + 1))}')
        k(f'buffer_store_dwordx4 {vr(SV, 4)}, {vr(vO)}, {P4(rWS)}, s59 offen sc1', tag='x1st')
        Ln = k.label('ng0')
        k(f'''
        s_cmp_lg_u32 {sr(sG)}, 0
        s_cbranch_scc1 {Ln}
        s_mov_b32 {sr(sPEND)}, 1
        s_and_b32 s55, {sr(sL)}, 3
        s_cmp_eq_u32 s55, 1
        s_cbranch_scc1 {Ln}
        s_setprio 0
        {Ln}:
        s_and_b32 s55, {sr(sL)}, 15
        s_cmp_lg_u32 s55, 0
        s_cbranch_scc1 {Lu}
        ''')
        self.stamp('conv')

    def window2(self):
        k = self.k
        AC, TF, CB = 32, 16, 92
        Lr, Ld = k.label('tb'), k.label('tbd')
        chk = f'''
        v_min_u32 v16, v12, v13
        v_min3_u32 v16, v16, v14, v15
        v_cmp_eq_u32 vcc, 0, v16
        s_cbranch_vccz {Ld}
        '''
        k(chk)
        k(f'''
        {Lr}:
        global_load_dwordx2 v[12:13], v90, {P2(pWS)} sc1
        global_load_dwordx2 v[14:15], v90, {P2(pWS)} offset:2560 sc1
        ''')
        k(chk)
        k(f'''
        s_sleep {self.o.get('sleep', 2)}
        s_add_u32 {sr(sSPIN)}, {sr(sSPIN)}, 1
        s_cmp_lt_u32 {sr(sSPIN)}, {SPIN_MAX}
        s_cbranch_scc1 {Lr}
        {Ld}:
        v_and_b32 v14, 0xffff0000, v14
        v_and_b32 v15, 0xffff0000, v15
        v_add_f32 v14, 1.0, v14
        v_add_f32 v15, 1.0, v15
        s_mov_b32 s55, 0x07060302
        v_cvt_pk_bf16_f32 v14, v14, v15
        v_perm_b32 v12, v13, v12, s55
        v_lshlrev_b32 v20, 2, v89
        v_add_u32 v20, {TAB}, v20
        ''')
        k(f'ds_write_b32 v20, v14', tag='tabw')
        k(f'ds_write_b32 v20, v12 offset:1280', tag='tabw')
        k(f'''
        v_and_b32 v8, 1, v0
        v_mul_u32_u24 v8, 1280, v8
        v_lshrrev_b32 v9, 5, v0
        v_lshl_add_u32 v8, v9, 4, v8
        v_add_u32 v8, {TAB}, v8
        ''')
        self.g1_setup()
        L = self.only_wave(0)
        self.poll_addr(SYNC2A, 16, 7)
        self.poll(7, 6, 27, nl=16)
        k(f'{L}:')
        k.wait('wst', 'tabw')
        k('s_barrier')
        self.stamp('barX')
        if self.o['stop'] != 'conv':
            for c in range(2):
                for i in range(2):
                    self.g1_dma(c, i)

        def half(h):
            for s in range(4):
                k(f'ds_read_b128 {vr(TF + 4 * s, 4)}, v8 offset:{32 * (20 * h + s)}')
            for s in range(20):
                c = '0' if s == 0 else vr(AC, 16)
                k(f'v_mfma_f32_32x32x16_bf16 {vr(AC, 16)}, {vr(TF + 4 * (s % 4), 4)}, {vr(WF + 4 * (20 * h + s), 4)}, {c}')
                if s + 4 < 20:
                    k(f'ds_read_b128 {vr(TF + 4 * (s % 4), 4)}, v8 offset:{32 * (20 * h + s + 4)}')
        L1, L2 = k.label('cs1'), k.label('cs2')
        k(f's_cmp_ge_u32 {sr(sW)}, 4\ns_cbranch_scc1 {L1}')
        half(0)
        self.wread_addr(10)
        self.wstage_read(1, 10)
        k(f's_branch {L2}\n{L1}:')
        self.wread_addr(10)
        self.wstage_read(1, 10)
        half(1)
        k(f'''
        {L2}:
        s_lshl_b32 s55, {sr(sW)}, 9
        v_lshl_add_u32 v8, v0, 3, s55
        s_xor_b32 s55, s55, 2048
        v_lshl_add_u32 v9, v0, 3, s55
        ''')
        k(f'ds_write_b64 v8, {vr(AC, 2)} offset:{EXC}', tag='excw')
        k.wait('x1st', 'excw', 'wrd', 'ch0')
        k('s_barrier')
        self.stamp('barY')
        L = self.only_wave(0)
        k(f'''
        s_mul_i32 s55, {sr(sQ)}, 0x5556
        s_lshr_b32 s55, s55, 16
        s_mul_i32 s55, s55, 3
        s_sub_u32 s55, {sr(sQ)}, s55
        s_lshl_b32 s55, s55, 3
        s_add_u32 s55, s55, {sr(sMB)}
        ''')
        self.arrive(SYNC2B, 24, 's55', 16)
        k(f'{L}:')
        k(f'''
        ds_read_b64 v[10:11], v9 offset:{EXC}
        v_cmp_gt_u32 vcc, 32, v0
        v_mov_b32 {vr(CB + 2)}, 0
        v_mov_b32 {vr(CB + 3)}, 0
        v_add_f32 v10, v10, {vr(AC)}
        v_add_f32 v11, v11, {vr(AC + 1)}
        v_cvt_pk_bf16_f32 v12, v10, v11
        v_lshlrev_b32 v13, 16, v12
        v_and_b32 v14, 0xffff0000, v12
        v_sub_f32 v10, v10, v13
        v_sub_f32 v11, v11, v14
        v_cvt_pk_bf16_f32 v10, v13, v10
        v_cvt_pk_bf16_f32 v11, v14, v11
        v_cndmask_b32 {vr(CB)}, 0, v10, vcc
        v_cndmask_b32 {vr(CB + 1)}, 0, v11, vcc
        ''')

    def g1_setup(self):
        self.k(f'''
        v_lshrrev_b32 v12, 3, v0
        v_lshlrev_b32 v1, 12, v12
        v_bfe_u32 v12, v0, 4, 1
        v_lshlrev_b32 v12, 2, v12
        v_and_b32 v13, 7, v0
        v_xor_b32 v12, v12, v13
        v_lshl_add_u32 v1, v12, 4, v1
        s_lshl_b32 s66, {sr(sW)}, 16
        s_lshl_b32 s55, {sr(sM1)}, 7
        s_add_u32 s66, s66, s55
        s_add_u32 s66, s66, {X1S}
        s_lshl_b32 s67, {sr(sW)}, 11
        ''')
        self.g2_setup()

    def g1_dma(self, c, i):
        k = self.k
        slot = c % NS
        t, cc = divmod(c, 5)
        if self.o.get('x_nodma') and c >= 5:
            return
        k(f's_add_u32 m0, s67, {RING + slot * 16384 + i * 1024}')
        k(f's_add_u32 s3, s66, {t * 1024 + (cc * 128 + 8 * i) * 4096}')
        k(f'buffer_load_dwordx4 v1, {P4(rWS)}, s3 offen sc1 lds', tag=f'ch{c}')

    def g2_dma(self, j, i):
        k = self.k
        L = None
        if i == 3:
            L = k.label('g2d')
            k(f's_cmp_ge_u32 {sr(sW)}, 6\ns_cbranch_scc1 {L}')
        k(f'''
        s_add_u32 s3, s60, {j * G2S}
        s_sub_u32 s59, s3, {9 * G2S}
        s_cselect_b32 s3, s3, s59
        s_add_u32 s3, s3, s63
        s_add_u32 m0, s64, {G2SLOT[j % 5] + i * 8192}
        s_add_u32 s3, s3, {i * 8192}
        ''')
        k(f'buffer_load_dwordx4 v4, {P4(rWS)}, s3 offen sc1 lds', tag=f'wd{j}')
        if L:
            k(f'{L}:')

    def g2_setup(self):
        k = self.k
        k(f'''
        s_lshr_b32 s55, s2, 3
        s_and_b32 s61, s55, 7
        s_lshr_b32 s55, s55, 3
        s_lshl_b32 s55, s55, 3
        s_add_u32 s62, s55, {sr(sMB)}
        s_lshl_b32 s64, {sr(sW)}, 10
        s_mul_i32 s63, s61, {54 * 5120}
        s_add_u32 s63, s63, {WD}
        s_add_u32 s63, s63, s64
        v_lshlrev_b32 v4, 4, v0
        s_lshr_b32 s55, s55, 2
        s_add_u32 s55, s55, s61
        s_sub_u32 s56, s55, 9
        s_cselect_b32 s55, s55, s56
        s_mul_i32 s55, s55, {self.o.get('rot', 1)}
        s_mul_i32 s60, s55, {G2S}
        s_mul_i32 s90, s55, 12288
        ''')

    def g1(self):
        k = self.k
        TF, CB = 16, 92
        ACC = [32, 48, 64]
        vRA, vRB, vST, vSTA, vPA, vPD = 2, 3, 5, 6, 7, 8
        K1, K2, S2 = 9, 10, 11
        BF = 12
        ET = 80
        OUTR = 88
        k(f'''
        v_lshrrev_b32 v8, 5, v0
        v_bfe_u32 v9, v0, 2, 2
        v_lshl_add_u32 v8, v8, 3, v9
        v_lshlrev_b32 {vr(vRA)}, 7, v8
        v_lshrrev_b32 v9, 1, v9
        s_lshr_b32 s55, {sr(sW)}, 2
        v_xor_b32 v9, s55, v9
        v_lshl_add_u32 {vr(vRA)}, v9, 6, {vr(vRA)}
        v_bfe_u32 v9, v0, 4, 1
        v_lshl_add_u32 {vr(vRA)}, v9, 5, {vr(vRA)}
        v_and_b32 v9, 3, v0
        v_lshl_add_u32 {vr(vRA)}, v9, 3, {vr(vRA)}
        v_add_u32 {vr(vRA)}, {RING}, {vr(vRA)}
        v_add_u32 {vr(vRB)}, {3 * 16384}, {vr(vRA)}
        s_lshl_b32 s56, {sr(sM1)}, 6
        s_lshl_b32 s57, s55, 5
        s_add_u32 s56, s56, s57
        v_and_b32 v9, 31, v0
        v_add_u32 v9, s56, v9
        v_lshlrev_b32 v9, 2, v9
        v_add_u32 {vr(vSTA)}, {STATS}, v9
        s_lshl_b32 s56, {sr(sM1)}, 1
        s_add_u32 s56, s56, s55
        s_mul_i32 s56, s56, 108
        s_lshl_b32 s57, {sr(sNB)}, 2
        s_add_u32 s56, s56, s57
        s_and_b32 s57, {sr(sW)}, 3
        s_add_u32 s56, s56, s57
        s_lshl_b32 s56, s56, 10
        s_add_u32 s65, s56, {ACT}
        v_mov_b32 {vr(BF + 2)}, 0
        v_mov_b32 {vr(BF + 3)}, 0
        ''')
        self.poll_addr(SYNC2B, 24, vPA)

        def rd(sig):
            c, s8 = divmod(sig, 8)
            slot = c % NS
            base, off = (vRA, slot * 16384) if slot < 3 else (vRB, (slot - 3) * 16384)
            off += s8 * 2048
            r = TF + 4 * (sig % 4)
            if self.o.get('x_nord') and sig >= 4:
                return
            if self.o.get('x_b128'):
                k(f'ds_read_b128 {vr(r, 4)}, v4 offset:{off % 32768}')
                return
            k(f'ds_read_b64_tr_b16 {vr(r, 2)}, {vr(base)} offset:{off}')
            k(f'ds_read_b64_tr_b16 {vr(r + 2, 2)}, {vr(base)} offset:{off + 512}')

        C1 = -2 * LOG2E * math.sqrt(2 / math.pi) * 0.044715
        C2 = -2 * LOG2E * math.sqrt(2 / math.pi)

        def epi_ops(t):
            acc = ACC[t % 3]
            ops = []

            def head():
                self.poll(vSTA, vST, '0x10000', preissued=True, off=2048 * (t & 1))
                k(f'''
                s_mov_b32 s55, 0x01000100
                s_mov_b32 s56, 0x03020302
                v_perm_b32 {vr(BF)}, {vr(vST)}, {vr(vST)}, s55
                v_perm_b32 {vr(BF + 1)}, {vr(vST)}, {vr(vST)}, s56
                v_xor_b32 {vr(BF)}, 0x80008000, {vr(BF)}
                v_and_b32 {vr(S2)}, 0xffff0000, {vr(vST)}
                v_rcp_f32 {vr(K2)}, {vr(S2)}
                v_mfma_f32_32x32x16_bf16 {vr(acc, 16)}, {vr(CB, 4)}, {vr(BF, 4)}, {vr(acc, 16)}
                ''')
            ops.append(head)
            ops.append(lambda: k(f'''
                v_mul_f32 {vr(S2)}, {vr(S2)}, {vr(S2)}
                v_mul_f32 {vr(K1)}, {vr(K2)}, {vr(K2)}
                v_mul_f32 {vr(K2)}, {f32(C2)}, {vr(K2)}
                '''))
            ops.append(lambda: k(f'''
                v_mul_f32 {vr(K1)}, {f32(0.044715)}, {vr(K1)}
                v_mul_f32 {vr(K1)}, {vr(K1)}, {vr(K2)}
                '''))
            ops.append(lambda: None)
            for p in range(4):
                i0, i1 = 2 * p, 2 * p + 1
                g0, g1_, u0, u1 = acc + i0, acc + i1, acc + 8 + i0, acc + 8 + i1
                t0, t1 = ET + 2 * (p % 2), ET + 2 * (p % 2) + 1
                ops.append(lambda g0=g0, g1_=g1_, t0=t0, t1=t1: k(f'''
                    v_mul_f32 {vr(t0)}, {vr(g0)}, {vr(g0)}
                    v_mul_f32 {vr(t1)}, {vr(g1_)}, {vr(g1_)}
                    v_fma_f32 {vr(t0)}, {vr(t0)}, {vr(K1)}, {vr(K2)}
                    '''))
                ops.append(lambda g0=g0, g1_=g1_, t0=t0, t1=t1: k(f'''
                    v_fma_f32 {vr(t1)}, {vr(t1)}, {vr(K1)}, {vr(K2)}
                    v_mul_f32 {vr(t0)}, {vr(t0)}, {vr(g0)}
                    v_mul_f32 {vr(t1)}, {vr(t1)}, {vr(g1_)}
                    '''))
                ops.append(lambda g0=g0, u0=u0, t0=t0, t1=t1: k(f'''
                    v_exp_f32 {vr(t0)}, {vr(t0)}
                    v_exp_f32 {vr(t1)}, {vr(t1)}
                    '''))
                ops.append(lambda g0=g0, g1_=g1_, u0=u0, u1=u1, t0=t0, t1=t1: k(f'''
                    v_mul_f32 {vr(u0)}, {vr(u0)}, {vr(g0)}
                    v_fma_f32 {vr(t0)}, {vr(t0)}, {vr(S2)}, {vr(S2)}
                    v_fma_f32 {vr(t1)}, {vr(t1)}, {vr(S2)}, {vr(S2)}
                    '''))
                ops.append(lambda t0=t0, t1=t1: k(f'''
                    v_rcp_f32 {vr(t0)}, {vr(t0)}
                    v_rcp_f32 {vr(t1)}, {vr(t1)}
                    '''))
                ops.append(lambda g1_=g1_, u0=u0, u1=u1, t0=t0, t1=t1, p=p: k(f'''
                    v_mul_f32 {vr(u1)}, {vr(u1)}, {vr(g1_)}
                    v_mul_f32 {vr(u0)}, {vr(u0)}, {vr(t0)}
                    v_mul_f32 {vr(u1)}, {vr(u1)}, {vr(t1)}
                    v_cvt_pk_bf16_f32 {vr(OUTR + p)}, {vr(u0)}, {vr(u1)}
                    '''))

            def fin():
                k(f's_add_u32 s3, s65, {t * 16 * 108 * 1024}')
                k(f'buffer_store_dwordx4 {vr(OUTR, 4)}, v4, {P4(rWS)}, s3 offen sc1', tag=f'act{t}')
            ops.append(fin)
            return ops

        def publish(t):
            L = self.only_wave(0)
            k(f'''
            s_add_u32 s55, {sr(sM1)}, {8 * t}
            s_lshl_b32 s55, s55, 7
            s_add_u32 s55, s55, {SYNC3}
            v_mov_b32 {vr(ET + 4)}, s55
            v_mov_b32 {vr(ET + 5)}, 1
            s_mov_b64 exec, 1
            global_atomic_add {vr(ET + 4)}, {vr(ET + 5)}, {P2(pWS)} sc1
            s_mov_b64 exec, -1
            {L}:
            ''')

        epi_start = self.o.get('epi_start', [44, 84, 124, 160])
        epi_rate = self.o.get('epi_rate', [1, 1, 1, 1])
        stat_ld = {max(0, s - self.o.get('stat_pre', 22)): t for t, s in enumerate(epi_start)}
        todo = {}
        for t in range(3):
            ops = epi_ops(t)
            sig = epi_start[t]
            while ops:
                for _ in range(epi_rate[t]):
                    if ops:
                        todo.setdefault(sig, []).append(ops.pop(0))
                sig += 1
            assert sig <= 160 and (t == 2 or sig <= epi_start[t + 1]), (t, sig)
            assert t + 3 >= 4 or sig <= 40 * (t + 3)
            todo.setdefault('done', {})[t] = sig
        done_at = todo.pop('done')
        pub_at = {}
        for t in range(3):
            s = done_at[t] + self.o.get('pub_lag', 24)
            s = ((s - 3 + 7) // 8) * 8 + 3
            pub_at.setdefault(min(s, 163), []).append(t)
        B2 = self.o.get('b2_chunk', 2)
        self.stamp('g1go')
        for sig in range(4):
            rd(sig)
        issued = 5
        dq = [lambda c=c, i=i: self.g1_dma(c, i) for c in (2, 3, 4) for i in range(2)]
        g2at = {17: [(2, i) for i in range(4)], 19: [(3, i) for i in range(4)]}
        for n in range(8):
            g2at[B2 + 3 + n] = [(n // 4, n % 4)]
        for sig in range(160):
            t, s = divmod(sig, 40)
            c = sig // 8
            acc = ACC[t % 3]
            cop = '0' if s == 0 else vr(acc, 16)
            k(f'v_mfma_f32_32x32x16_bf16 {vr(acc, 16)}, {vr(WF + 4 * s, 4)}, {vr(TF + 4 * (sig % 4), 4)}, {cop}')
            if sig == 8 * B2 + 3 - self.o.get('b2_pre', 8):
                L = self.only_wave(0)
                self.poll_issue(vPA, vPD, 24)
                k(f'{L}:')
            if sig % 8 == 3:
                if c == B2:
                    L = self.only_wave(0)
                    self.poll(vPA, vPD, 9, preissued=True, nl=24)
                    self.poll_addr(SYNCW, 4, vPA)
                    self.poll_issue(vPA, vPD, 4)
                    k(f'{L}:')
                if c == B2 + 2:
                    L = self.only_wave(0)
                    self.poll(vPA, vPD, 10, preissued=True, nl=4)
                    k(f'{L}:')
                w = [f'ch{c + 1}'] if c + 1 < 20 else []
                w += [f'act{tt}' for tt in pub_at.get(sig, [])]
                if w and not self.o.get('x_nowait'):
                    k.wait(*w)
                if not self.o.get('x_nobar') or c in (B2, B2 + 2):
                    k('s_barrier')
                for tt in pub_at.get(sig, []):
                    publish(tt)
                if c >= B2:
                    while issued < 20 and issued <= c - 1 + NS:
                        dq += [lambda c=issued, i=i: self.g1_dma(c, i) for i in range(2)]
                        issued += 1
                if c in g2at and not self.o.get('x_nog2d'):
                    dq += [lambda j=j, i=i: self.g2_dma(j, i) for j, i in g2at[c]]
            elif dq:
                dq.pop(0)()
            if sig + 4 < 160:
                rd(sig + 4)
            if sig in stat_ld:
                tt = stat_ld[sig]
                if tt == 2:
                    k(f'v_add_u32 {vr(vSTA)}, 4096, {vr(vSTA)}')
                k(f'global_load_dword {vr(vST)}, {vr(vSTA)}, {P2(pWS)} offset:{2048 * (tt & 1)} sc1')
            for op in todo.get(sig, []):
                if not self.o.get('x_noepi'):
                    op()
            if sig % 40 == 39:
                self.stamp(f't{t}')
        assert not dq
        k('s_barrier')
        for op in epi_ops(3):
            op()
        for i in range(4):
            self.g2_dma(4, i)
        self.resid_dma()
        k.wait('act3', *[f'act{tt}' for tt in pub_at.get(163, [])])
        k('s_barrier')
        for tt in pub_at.get(163, []) + [3]:
            publish(tt)
        self.stamp('g1end')

    def resid_dma(self):
        k = self.k
        k(f'''
        v_lshrrev_b32 v8, 3, v0
        v_lshlrev_b32 v8, 12, v8
        v_and_b32 v9, 7, v0
        v_lshl_add_u32 v8, v9, 4, v8
        s_mul_i32 s55, s61, 80
        s_lshl_b32 s56, {sr(sW)}, 3
        s_add_u32 s55, s55, s56
        s_lshl_b32 s55, s55, 12
        s_lshl_b32 s56, s62, 7
        s_add_u32 s55, s55, s56
        s_add_u32 s55, s55, {X1T}
        s_add_u32 m0, s64, {RESID}
        ''')
        k(f'buffer_load_dwordx4 v8, {P4(rWS)}, s55 offen sc1 lds', tag='resid')
        L = k.label('rs')
        k(f'''
        s_cmp_ge_u32 {sr(sW)}, 2
        s_cbranch_scc1 {L}
        s_add_u32 m0, s64, {RESID + 8192}
        s_add_u32 s55, s55, {64 * 4096}
        ''')
        k(f'buffer_load_dwordx4 v8, {P4(rWS)}, s55 offen sc1 lds', tag='resid')
        k(f'{L}:')

    def g2(self):
        k = self.k
        AF, WB, ACC, GB = 96, 16, 56, 204
        k('L_g2:')
        k(f'''
        s_and_b32 s55, {sr(sW)}, 3
        s_lshr_b32 s56, {sr(sW)}, 2
        v_lshrrev_b32 v8, 5, v0
        v_lshlrev_b32 v1, 10, v8
        v_bfe_u32 v8, v0, 4, 1
        v_lshl_add_u32 v1, v8, 9, v1
        v_and_b32 v8, 15, v0
        v_lshl_add_u32 v1, v8, 4, v1
        s_and_b32 s57, s55, 1
        s_lshl_b32 s57, s57, 8
        s_lshr_b32 s58, s55, 1
        s_lshl_b32 s59, s62, 1
        s_add_u32 s58, s58, s59
        s_mul_i32 s58, s58, {108 * 1024}
        s_add_u32 s57, s57, s58
        s_lshl_b32 s58, s56, 11
        s_add_u32 s57, s57, s58
        s_add_u32 s65, s57, {ACT}
        s_mul_i32 s57, s56, 5120
        v_add_u32 v2, s57, v4
        v_add_u32 v3, {G2SLOT[4]}, v2
        v_add_u32 v5, {G2SLOT[1]}, v2
        v_add_u32 v2, {G2SLOT[2]}, v2
        s_lshl_b32 s57, s62, 7
        s_add_u32 s57, s57, {SYNC3}
        v_mov_b32 v6, s57
        s_mul_i32 s57, s61, 320
        s_mul_i32 s58, s56, 192
        s_add_u32 s57, s57, s58
        s_add_u32 s57, s57, {MOD + 5 * 2560}
        v_lshrrev_b32 v8, 4, v0
        v_lshl_add_u32 v9, v8, 4, s57
        ''')
        for j in range(3):
            k(f'global_load_dwordx4 {vr(GB + 4 * j, 4)}, v9, {P2(pWS)} offset:{64 * j} sc1')
        L = self.only_wave(0)
        self.poll(6, 7, 27, nl=1)
        k(f'{L}:')
        k.wait('wd0')
        k('s_barrier')
        self.stamp('s3')
        LA = self.o.get('la', 4)

        def lda(i):
            k(f'''
            s_add_u32 s3, s90, {i * 4096}
            s_sub_u32 s59, s3, {27 * 4096}
            s_cselect_b32 s3, s3, s59
            s_add_u32 s3, s3, s65
            buffer_load_dwordx4 {vr(AF + 4 * i, 4)}, v1, {P4(rWS)}, s3 offen sc1
            ''')

        def rdw(i):
            j, ii = divmod(i, 3)
            base, off = {0: (3, G2S), 1: (5, 0), 2: (2, 0), 3: (2, G2S), 4: (3, 0)}[j % 5]
            off += ii * 10240
            for f in range(5):
                k(f'ds_read_b128 {vr(WB + 20 * (i % 2) + 4 * f, 4)}, v{base} offset:{off + 1024 * f}')

        for i in range(LA):
            lda(i)
        rdw(0)
        dq = []
        for i in range(27):
            j, ii = divmod(i, 3)
            if ii == 2 and j < 8:
                k.wait(f'wd{j + 1}')
                k('s_barrier')
                if 1 <= j <= 4:
                    dq += [lambda j=j, q=q: self.g2_dma(j + 4, q) for q in range(4)]
            if i + 1 < 27:
                rdw(i + 1)
            for f in range(5):
                c = '0' if i == 0 else vr(ACC + 4 * f, 4)
                k(f'v_mfma_f32_16x16x32_bf16 {vr(ACC + 4 * f, 4)}, {vr(WB + 20 * (i % 2) + 4 * f, 4)}, {vr(AF + 4 * i, 4)}, {c}')
                if f == 0 and i + LA < 27:
                    lda(i + LA)
                if f in (2, 4) and dq:
                    dq.pop(0)()
        self.stamp('g2m')
        k(f'''
        s_mul_i32 s57, {sr(sW)}, 3072
        s_add_u32 s57, s57, {G2SLOT[0]}
        v_add_u32 v2, s57, v4
        s_xor_b32 s58, {sr(sW)}, 4
        s_mul_i32 s57, s58, 3072
        s_add_u32 s57, s57, {G2SLOT[0]}
        v_add_u32 v3, s57, v4
        v_lshrrev_b32 v8, 2, v0
        v_lshlrev_b32 v8, 7, v8
        v_and_b32 v9, 3, v0
        v_lshl_add_u32 v8, v9, 3, v8
        s_lshl_b32 s57, s55, 5
        s_mul_i32 s58, s56, 6144
        s_add_u32 s57, s57, s58
        s_add_u32 s57, s57, {RESID}
        v_add_u32 v8, s57, v8
        v_and_b32 v9, 15, v0
        s_lshl_b32 s57, s55, 4
        v_add_u32 v9, s57, v9
        v_and_b32 v10, 7, v9
        v_lshrrev_b32 v9, 3, v9
        v_lshl_add_u32 v9, v10, 6, v9
        s_lshr_b32 s57, s62, 3
        s_lshl_b32 s57, s57, 9
        s_lshl_b32 s58, {sr(sMB)}, 3
        s_add_u32 s57, s57, s58
        v_add_u32 v9, s57, v9
        v_mul_u32_u24 v9, 1280, v9
        v_lshrrev_b32 v10, 4, v0
        v_lshl_add_u32 v9, v10, 3, v9
        s_mul_i32 s57, s61, 160
        s_mul_i32 s58, s56, 96
        s_add_u32 s57, s57, s58
        v_add_u32 v9, s57, v9
        ''')
        L1, L2 = k.label('x1'), k.label('x2')
        k(f's_cmp_lg_u32 s56, 0\ns_cbranch_scc1 {L1}')
        for kh in range(2):
            send = (3, 4) if kh == 0 else (0, 1, 2)
            keep = (0, 1, 2) if kh == 0 else (3, 4)
            if kh:
                k(f'{L1}:')
            for n, f in enumerate(send):
                k(f'ds_write_b128 v2, {vr(ACC + 4 * f, 4)} offset:{1024 * n}', tag='xw')
            k.wait('xw', 'resid')
            k('s_barrier')
            for n, f in enumerate(keep):
                k(f'ds_read_b128 {vr(16 + 4 * n, 4)}, v3 offset:{1024 * n}')
                k(f'ds_read_b64_tr_b16 {vr(28 + 2 * n, 2)}, v8 offset:{2048 * n}')
            for n, f in enumerate(keep):
                for i in range(4):
                    a, g, x = ACC + 4 * f + i, GB + 4 * n + i, 36 + i
                    k(f'v_add_f32 {vr(a)}, {vr(a)}, {vr(16 + 4 * n + i)}')
                    k(f'v_and_b32 {vr(g)}, 0xffff0000, {vr(g)}')
                    if i % 2 == 0:
                        k(f'v_lshlrev_b32 {vr(x)}, 16, {vr(28 + 2 * n + i // 2)}')
                    else:
                        k(f'v_and_b32 {vr(x)}, 0xffff0000, {vr(28 + 2 * n + i // 2)}')
                    k(f'v_fmac_f32 {vr(x)}, {vr(a)}, {vr(g)}')
                k(f'v_cvt_pk_bf16_f32 {vr(40 + 2 * n)}, v36, v37')
                k(f'v_cvt_pk_bf16_f32 {vr(41 + 2 * n)}, v38, v39')
                k(f'global_store_dwordx2 v9, {vr(40 + 2 * n, 2)}, {P2(pOUT)} offset:{32 * n}')
            if not kh:
                k(f's_branch {L2}')
        k(f'{L2}:')
        self.stamp('end')

    def strip_reduce(self, nval, V, RED):
        k = self.k
        n = nval
        for i in range(n // 2):
            k(f'v_permlane32_swap_b32 {vr(V + i)}, {vr(V + n // 2 + i)}')
        for i in range(n // 2):
            k(f'v_add_f32 {vr(V + i)}, {vr(V + i)}, {vr(V + n // 2 + i)}')
        n //= 2
        for i in range(n // 2):
            k(f'v_permlane16_swap_b32 {vr(V + i)}, {vr(V + n // 2 + i)}')
        for i in range(n // 2):
            k(f'v_add_f32 {vr(V + i)}, {vr(V + i)}, {vr(V + n // 2 + i)}')
        n //= 2
        for i in range(n):
            k(f'v_add_f32_dpp {vr(V + i)}, {vr(V + i)}, {vr(V + i)} row_ror:8 row_mask:0xf bank_mask:0xf')
        q = nval // 4
        k(f'''
        v_lshrrev_b32 v8, 4, v0
        v_mul_u32_u24 v8, {q}, v8
        v_and_b32 v9, 7, v8
        v_lshrrev_b32 v8, 3, v8
        v_lshl_add_u32 v9, v8, 6, v9
        v_and_b32 v8, 7, v0
        v_lshl_add_u32 v9, v8, 3, v9
        s_mul_i32 s55, {sr(sW)}, {8 * nval}
        v_add_u32 v9, s55, v9
        v_lshlrev_b32 v9, 2, v9
        s_mov_b32 exec_lo, 0x00ff00ff
        s_mov_b32 exec_hi, 0x00ff00ff
        ''')
        if q == 2:
            k(f'ds_write_b64 v9, {vr(V, 2)} offset:{RED}', tag='redw')
        else:
            k(f'ds_write_b128 v9, {vr(V, 4)} offset:{RED}', tag='redw')
        k('s_mov_b64 exec, -1')
        k.wait('redw')
        k('s_barrier')

    def mod_and_wd(self):
        k = self.k
        k(f'''
        s_cmp_lt_u32 s2, 14
        s_cselect_b32 s76, 2, 1
        s_mov_b32 s75, s2
        s_mul_i32 s72, {sr(sW)}, 5120
        s_mul_i32 s71, s75, 40960
        s_add_u32 s71, s71, s72
        s_add_u32 s72, s72, 8192
        v_lshlrev_b32 v21, 4, v0
        ''')
        self.mod_partial()
        k('s_barrier')
        for i in range(10):
            k(f'''
            s_cmp_ge_u32 s76, {1 + i // 5}
            s_cselect_b64 exec, -1, 0
            s_mov_b32 m0, s72
            s_add_u32 s72, s72, {1024 if i != 4 else 40960 - 4096}
            ''')
            k(f'buffer_load_dwordx4 v21, {P4(rB)}, s71 offen {self.o["nt"]} lds', tag='wdl')
            k(f's_mov_b64 exec, -1\ns_add_u32 s71, s71, {1024 if i != 4 else 40 * 40960 - 4096}')
        L = self.only_wave(0)
        self.poll_sync1(215, 58)
        Lr, Ld = k.label('fr'), k.label('fd')
        k(f'''
        s_cmp_ge_u32 s2, 30
        s_cbranch_scc1 {L}
        s_add_u32 s55, s2, 30
        s_lshl_b32 s56, s55, 11
        s_add_u32 s56, s56, {MODP}
        v_lshl_add_u32 v8, v0, 2, s56
        {Lr}:
        ''')
        for e in range(8):
            k(f'global_load_dword {vr(32 + e)}, v8, {P2(pWS)} offset:{256 * e} sc1')
        k(f'''
        v_min3_u32 v40, v32, v33, v34
        v_min3_u32 v40, v40, v35, v36
        v_min3_u32 v40, v40, v37, v38
        v_min_u32 v40, v40, v39
        v_cmp_eq_u32 vcc, 0, v40
        s_cbranch_vccz {Ld}
        s_sleep {self.o.get('sleep', 2)}
        s_add_u32 {sr(sSPIN)}, {sr(sSPIN)}, 1
        s_cmp_lt_u32 {sr(sSPIN)}, {SPIN_MAX}
        s_cbranch_scc1 {Lr}
        {Ld}:
        v_add_f32 v32, v32, v36
        v_add_f32 v33, v33, v37
        v_add_f32 v34, v34, v38
        v_add_f32 v35, v35, v39
        v_add_f32 v32, v32, v33
        v_add_f32 v34, v34, v35
        v_add_f32 v32, v32, v34
        v_cvt_pk_bf16_f32 v32, v32, v32
        v_and_b32 v32, 0xffff0000, v32
        v_or_b32 v32, 1, v32
        s_lshl_b32 s55, s55, 8
        s_add_u32 s55, s55, {MOD}
        v_lshlrev_b32 v8, 2, v0
        buffer_store_dword v32, v8, {P4(rWS)}, s55 offen sc1
        ''')
        self.stamp('h_mod')
        k(f'{L}:')
        Lw, Lwd = k.label('wdl'), k.label('wdd')
        k(f'''
        v_lshrrev_b32 v9, 5, v0
        v_lshlrev_b32 v9, 4, v9
        v_bfe_u32 v10, v0, 2, 3
        v_add_u32 v9, v9, v10
        v_mul_u32_u24 v9, 1280, v9
        v_and_b32 v10, 3, v0
        v_lshl_add_u32 v9, v10, 3, v9
        s_mul_i32 s56, {sr(sW)}, 160
        v_add_u32 v9, s56, v9
        s_mul_i32 s55, {sr(sW)}, {54 * 5120}
        s_mul_i32 s56, s75, 5120
        s_add_u32 s55, s55, s56
        s_add_u32 s55, s55, {WD}
        s_waitcnt vmcnt(0)
        s_barrier
        s_cmp_eq_u32 s76, 0
        s_cbranch_scc1 {Lwd}
        {Lw}:
        ''')
        for j in range(5):
            k(f'ds_read_b64_tr_b16 {vr(32 + 4 * j, 2)}, v9 offset:{8192 + 32 * j}')
            k(f'ds_read_b64_tr_b16 {vr(34 + 4 * j, 2)}, v9 offset:{8192 + 32 * j + 8 * 1280}')
        k('s_add_u32 s56, s55, 4096')
        for j in range(5):
            k(f'buffer_store_dwordx4 {vr(32 + 4 * j, 4)}, v21, {P4(rWS)}, s{55 + j // 4} offen offset:{1024 * (j % 4)} sc1')
        k(f'''
        s_add_u32 s55, s55, {40 * 5120}
        v_add_u32 v9, 40960, v9
        s_sub_u32 s76, s76, 1
        s_cmp_lg_u32 s76, 0
        s_cbranch_scc1 {Lw}
        {Lwd}:
        s_waitcnt vmcnt(0)
        s_barrier
        ''')

    def stats_job(self):
        k = self.k
        LD, V = 96, 32
        k(f'''
        v_lshrrev_b32 v8, 3, v0
        s_mul_i32 s55, {sr(sW)}, 80
        v_add_u32 v8, s55, v8
        v_lshlrev_b32 v8, 12, v8
        v_and_b32 v10, 7, v0
        v_lshl_add_u32 v8, v10, 4, v8
        s_lshl_b32 s55, s2, 7
        s_add_u32 s55, s55, {X1T}
        ''')
        for i in range(10):
            k(f'buffer_load_dwordx4 {vr(LD + 4 * i, 4)}, v8, {P4(rWS)}, s55 offen sc1')
            if i < 9:
                k(f's_add_u32 s55, s55, {8 * 4096}')
        for i in range(10):
            for j in range(4):
                r = LD + 4 * i + j
                if i == 0:
                    k(f'''
                    v_lshlrev_b32 {vr(V + 2 * j)}, 16, {vr(r)}
                    v_and_b32 {vr(V + 2 * j + 1)}, 0xffff0000, {vr(r)}
                    v_mul_f32 {vr(V + 8 + 2 * j)}, {vr(V + 2 * j)}, {vr(V + 2 * j)}
                    v_mul_f32 {vr(V + 9 + 2 * j)}, {vr(V + 2 * j + 1)}, {vr(V + 2 * j + 1)}
                    ''')
                else:
                    k(f'''
                    v_lshlrev_b32 v11, 16, {vr(r)}
                    v_and_b32 v12, 0xffff0000, {vr(r)}
                    v_add_f32 {vr(V + 2 * j)}, {vr(V + 2 * j)}, v11
                    v_add_f32 {vr(V + 2 * j + 1)}, {vr(V + 2 * j + 1)}, v12
                    v_fmac_f32 {vr(V + 8 + 2 * j)}, v11, v11
                    v_fmac_f32 {vr(V + 9 + 2 * j)}, v12, v12
                    ''')
        self.strip_reduce(16, V, 0)
        L = self.only_wave(0)
        k('v_lshlrev_b32 v8, 2, v0')
        for w in range(8):
            k(f'ds_read2st64_b32 {vr(V + 2 * w, 2)}, v8 offset0:{2 * w} offset1:{2 * w + 1}')
        for w in range(1, 8):
            k(f'v_add_f32 {vr(V)}, {vr(V)}, {vr(V + 2 * w)}')
            k(f'v_add_f32 {vr(V + 1)}, {vr(V + 1)}, {vr(V + 2 * w + 1)}')
        k(f'''
        v_mul_f32 v10, {f32(1.0 / 640)}, {vr(V)}
        v_mul_f32 v11, {f32(1.0 / 640)}, {vr(V + 1)}
        v_fma_f32 v11, -v10, v10, v11
        v_max_f32 v11, 0, v11
        v_cvt_pk_bf16_f32 v11, v11, v11
        v_lshlrev_b32 v11, 16, v11
        v_add_f32 v11, {f32(1e-5)}, v11
        v_cvt_pk_bf16_f32 v11, v11, v11
        v_lshlrev_b32 v11, 16, v11
        v_sqrt_f32 v11, v11
        v_cvt_pk_bf16_f32 v10, v10, v11
        s_lshl_b32 s55, s2, 8
        s_add_u32 s55, s55, {STATS}
        buffer_store_dword v10, v8, {P4(rWS)}, s55 offen sc1
        {L}:
        s_barrier
        ''')

    def helper(self):
        k = self.k
        k('L_helper:')
        self.srd(rB, pWD, 1728 * 640 * 2)
        self.mod_and_wd()
        L = self.only_wave(0)
        k('s_and_b32 s55, s2, 3')
        self.arrive(SYNCW, 4, 's55', 16)
        k(f'{L}:')
        self.stamp('h_wd')
        if self.o['stop'] in ('A', 'kgen'):
            k('s_branch L_fin')
            return
        Lns = k.label('nostat')
        Lb, Lp = k.label('lateb'), k.label('polled')
        L = self.only_wave(0)
        k(f's_cmp_ge_u32 s2, 8\ns_cbranch_scc1 {Lb}')
        self.poll_addr(SYNC2A, 16, 16)
        self.poll(16, 17, 27, nl=16, sleep=4)
        k(f's_branch {Lp}\n{Lb}:')
        self.poll_addr(SYNC2B, 24, 16)
        self.poll(16, 17, 9, nl=24, sleep=4)
        k(f'{Lp}:\n{L}:')
        k('s_barrier')
        self.stamp('s2a')
        k(f's_cmp_ge_u32 s2, 32\ns_cbranch_scc1 {Lns}')
        self.stats_job()
        k(f'{Lns}:')
        self.stamp('h_stat')
        if self.o['stop'] in ('conv', 'g1'):
            k('s_branch L_fin')
            return
        L = self.only_wave(0)
        self.poll_addr(SYNCW, 4, 16)
        self.poll(16, 17, 10, nl=4)
        k(f'{L}:')
        k('s_barrier')
        self.g2_setup()
        for j in range(5):
            for i in range(4):
                self.g2_dma(j, i)
        self.resid_dma()
        k('s_branch L_g2')

    def build(self):
        k = self.k
        stop = self.o['stop']
        self.prologue()
        self.early_addresses()
        self.ln1()
        k('s_cmp_lt_u32 s2, 40\ns_cbranch_scc1 L_helper')
        while True:
            if stop == 'A':
                break
            self.kgen()
            self.stamp('kgen')
            self.kexpand1()
            self.stamp('kexp')
            self.conv_loads()
            self.mod_partial()
            self.kexpand2()
            self.wstage_read(0, 213)
            if stop == 'kgen':
                self.dump_k()
                break
            self.conv()
            self.window2()
            if stop == 'conv':
                break
            self.g1()
            if stop == 'g1':
                break
            self.g2()
            break
        k('L_fin:')
        k(f'''
        s_or_b32 s3, s2, {sr(sW)}
        s_cmp_lg_u32 s3, 0
        s_cbranch_scc1 L_nogen
        v_mov_b32 v8, {GEN}
        v_mov_b32 v9, {sr(sTAG)}
        s_mov_b64 exec, 1
        global_store_dword v8, v9, {P2(pWS)} sc1
        s_mov_b64 exec, -1
        L_nogen:
        ''')
        self.stamp_flush()
        k('s_endpgm')
        self.helper()
        k('L_end:\ns_endpgm')
        body = k.text()
        hdr = open('adaLN_cond__ssm_conv_s4d__geglu_ffn__prompt.s.ref').read().split('; Override')[0]
        return hdr + f'''; @launch kernel={NAME} grid=(256,1,1) block=(512,1,1) lds={LDS_BYTES}
.amdgcn_target "amdgcn-amd-amdhsa--gfx950"
.text
.globl {NAME}
.p2align 8
.type {NAME},@function
{NAME}:
{body}.section .rodata,"a"
.p2align 6
.amdhsa_kernel {NAME}
  .amdhsa_next_free_vgpr 256
  .amdhsa_next_free_sgpr 102
  .amdhsa_accum_offset 256
  .amdhsa_group_segment_fixed_size 0
  .amdhsa_kernarg_size 128
  .amdhsa_user_sgpr_count 2
  .amdhsa_user_sgpr_kernarg_segment_ptr 1
  .amdhsa_system_sgpr_workgroup_id_x 1
.end_amdhsa_kernel
'''

    def dump_k(self):
        k = self.k
        k.wait('saw')
        k('s_barrier')
        k(f's_lshl_b32 s55, {sr(sW)}, 6\nv_add_u32 v8, s55, v0\nv_lshlrev_b32 v9, 3, v8\nv_lshlrev_b32 v10, 4, v8')
        for ch in range(3):
            k(f'''
            ds_read_b64 v[12:13], v9 offset:{KA + ch * KAS + 32}
            ds_read_b128 v[16:19], v10 offset:{SA + ch * SAS}
            s_add_u32 s55, {sr(sD0)}, {ch}
            s_lshl_b32 s56, s55, 12
            s_add_u32 s56, s56, {X1T}
            s_lshl_b32 s57, s55, 13
            s_add_u32 s57, s57, {ACT}
            buffer_store_dwordx2 v[12:13], v9, {P4(rWS)}, s56 offen
            buffer_store_dwordx4 v[16:19], v10, {P4(rWS)}, s57 offen
            s_waitcnt vmcnt(0)
            ''')


LAST = None
def generate(**opt):
    global LAST
    LAST = Gen(opt)
    return LAST.build()


if __name__ == '__main__':
    opt = {}
    for a in sys.argv[2:]:
        kx, v = a.split('=')
        opt[kx] = eval(v)
    open(sys.argv[1], 'w').write(generate(**opt))
```

```python
import sys, math
from asmgen import Kern, vr, sr, f32

NAME = 'adaLN_cond__ssm_conv_s4d__geglu_ffn__prompt_kernel'

SYNC1 = 0x0
GEN = 0x22000
MS = 0x1A000
SYNC2A, SYNC2B, SYNCW, SYNC3 = 0x8000, 0xC000, 0x12000, 0x13000
MODP = 0xC0000
MOD, STATS = 0x16000, 0x14000
ZBEG, ZEND = 0x8000, 0x16000
STAMP = 0x30000
XN, XT, X1T, X1S, WD, ACT = 0x100000, 0x400000, 0x700000, 0xA00000, 0xD00000, 0x1000000
KG, KGS = 0, 4608
XNL0, MSL = 1696, 13984
KA, KAS = 27648, 4128
SA, SAS = 40032, 8192
TR, TRR, TRM = 40032, 1344, 10752
WT = 81408
KC, KCS = 51200, 3840
GA = 204
TAB, EXC = 64704, 10240
STG = 81920
RING, NS = 16384, 5
G2S, RESID = 30720, 0
G2SLOT = [102400, 133120, 10240, 40960, 71680]
LDS_BYTES = 163840
pX, pLA, pAI, pCR, pCI, pDT, pDS, pWG, pWU, pWD, pC, pWM, pOUT, pDBG, pWS = 4, 6, 8, 10, 12, 14, 16, 20, 22, 24, 26, 28, 30, 32, 34
sW, sI, sPC = 36, 37, 38
rWS, rA, rB = 40, 44, 48
sD0, sMB, sNB = 52, 53, 54
sT = 55
sCH = 70
sSPIN = 79
sST = 80
sFLAG = 82
sWL, sWO, sWI, sWR = 86, 87, 88, 89
sQ, sM1, sTAG = 91, 92, 93
P2 = lambda r: sr(r, 2)
P4 = lambda r: sr(r, 4)
WF = 96
SPIN_MAX = 400000

LOG2E = 1.4426950408889634


class Gen:
    def __init__(self, opt):
        self.o = dict(stop=None, stamps=False, nt='nt')
        self.o.update(opt)
        self.k = Kern()
        self.nst = 0

    def stamp(self, name, vt=None):
        if not self.o['stamps']:
            return
        names = self.o.setdefault('stamp_names', [])
        if name not in names:
            names.append(name)
        idx = names.index(name)
        assert idx < 32
        self.k(f'''
        s_memrealtime {sr(sST, 2)}
        s_memtime s[84:85]
        s_waitcnt lgkmcnt(0)
        v_writelane_b32 v87, {sr(sST)}, {idx}
        v_writelane_b32 v87, s84, {32 + idx}
        ''')

    def stamp_flush(self):
        if not self.o['stamps']:
            return
        self.k(f'''
        s_lshl_b32 s100, s2, 3
        s_add_u32 s100, s100, {sr(sW)}
        s_lshl_b32 s100, s100, 8
        s_add_u32 s100, s100, {STAMP}
        v_lshl_add_u32 v86, v0, 2, s100
        global_store_dword v86, v87, {P2(pWS)}
        ''')

    def arrive(self, base, nshard, shard_sreg, vt):
        k = self.k
        k(f'''
        s_lshl_b32 s3, {shard_sreg}, 7
        s_add_u32 s3, s3, {base}
        v_mul_u32_u24 {vr(vt)}, {128 * nshard}, v0
        v_add_u32 {vr(vt)}, s3, {vr(vt)}
        v_mov_b32 {vr(vt + 1)}, 1
        s_mov_b64 exec, 0xff
        global_atomic_add {vr(vt)}, {vr(vt + 1)}, {P2(pWS)} sc1
        s_mov_b64 exec, -1
        ''')

    def poll_addr(self, base, nshard, va):
        k = self.k
        k(f'''
        s_and_b32 s3, s2, 7
        s_mul_i32 s3, s3, {128 * nshard}
        s_add_u32 s3, s3, {base}
        v_min_u32 {vr(va)}, {nshard - 1}, v0
        v_lshlrev_b32 {vr(va)}, 7, {vr(va)}
        v_add_u32 {vr(va)}, s3, {vr(va)}
        ''')

    def poll_issue(self, va, vd, nl, off=0):
        k = self.k
        if nl and self.o.get('apoll', 1):
            k(f'''
            v_mov_b32 {vr(vd)}, 0
            s_mov_b64 exec, {hex((1 << nl) - 1)}
            global_atomic_add {vr(vd)}, {vr(va)}, {vr(vd)}, {P2(pWS)} offset:{off} sc0 sc1
            s_mov_b64 exec, -1
            ''')
        else:
            k(f'global_load_dword {vr(vd)}, {vr(va)}, {P2(pWS)} offset:{off} sc1')

    def poll(self, va, vd, count, preissued=False, off=0, nl=0, sleep=None):
        k = self.k
        L, D = k.label('poll'), k.label('polld')
        ap = nl and self.o.get('apoll', 1)

        def check():
            k(f'v_cmp_gt_u32 vcc, {count}, {vr(vd)}')
            if ap:
                k(f's_and_b32 vcc_lo, vcc_lo, {hex((1 << nl) - 1)}\ns_cbranch_scc0 {D}')
            else:
                k(f's_cbranch_vccz {D}')
        if not preissued:
            self.poll_issue(va, vd, nl, off)
        check()
        k(f'{L}:')
        k(f's_sleep {self.o.get("sleep", 2) if sleep is None else sleep}')
        self.poll_issue(va, vd, nl, off)
        check()
        k(f'''
        s_add_u32 {sr(sSPIN)}, {sr(sSPIN)}, 1
        s_cmp_lt_u32 {sr(sSPIN)}, {SPIN_MAX}
        s_cbranch_scc1 {L}
        {D}:
        ''')

    def srd(self, r, ptr, size):
        self.k(f'''
        s_mov_b32 {sr(r)}, {sr(ptr)}
        s_and_b32 {sr(r + 1)}, {sr(ptr + 1)}, 0xffff
        s_mov_b32 {sr(r + 2)}, {size}
        s_mov_b32 {sr(r + 3)}, 0x20000
        ''')

    def only_wave(self, w):
        L = self.k.label('ow')
        self.k(f's_cmp_lg_u32 {sr(sW)}, {w}\ns_cbranch_scc1 {L}')
        return L

    def prologue(self):
        k = self.k
        k(f'''
        s_cmp_ge_u32 s2, 256
        s_cbranch_scc1 L_end
        s_load_dwordx16 s[4:19], s[0:1], 0
        s_load_dwordx16 s[20:35], s[0:1], 64
        s_getpc_b64 {P2(sPC)}
        L_pc:
        v_lshrrev_b32 v1, 6, v0
        v_and_b32 v0, 63, v0
        v_readfirstlane_b32 {sr(sW)}, v1
        s_mov_b32 {sr(sSPIN)}, 0
        ''')
        if self.o['stamps']:
            k('v_mov_b32 v87, 0')
        L = k.label('pf')
        k(f'''
        s_lshr_b32 s3, s2, 3
        s_and_b32 s3, s3, 7
        s_cmp_eq_u32 {sr(sW)}, 0
        s_cselect_b32 s56, 0, s3
        s_cmp_eq_u32 {sr(sW)}, s56
        s_cbranch_scc0 {L}
        s_lshl_b32 s3, {sr(sW)}, 13
        v_lshlrev_b32 v2, 7, v0
        v_add_u32 v2, s3, v2
        v_min_u32 v2, L_end-L_pc, v2
        global_load_dword v83, v2, {P2(sPC)}
        {L}:
        s_lshl_b32 s3, s2, 3
        s_add_u32 s3, s3, {sr(sW)}
        s_mul_i32 s3, s3, 1280
        v_lshl_add_u32 v2, v0, 4, s3
        v_lshl_add_u32 v3, v0, 2, s3
        s_sub_u32 {sr(sI)}, s2, 40
        s_and_b32 {sr(sMB)}, s2, 7
        s_lshr_b32 {sr(sQ)}, {sr(sI)}, 3
        s_mul_i32 s3, {sr(sMB)}, 27
        s_add_u32 s3, s3, {sr(sQ)}
        s_lshr_b32 {sr(sNB)}, s3, 3
        s_and_b32 {sr(sM1)}, s3, 7
        s_mul_i32 s3, s3, 3
        s_min_u32 {sr(sD0)}, s3, 637
        s_min_u32 s55, {sr(sW)}, 5
        s_lshl_b32 s56, {sr(sD0)}, 1
        s_add_u32 s56, s56, s55
        s_lshl_b32 s56, s56, 7
        v_lshl_add_u32 v18, v0, 1, s56
        s_lshr_b32 s55, s55, 1
        s_add_u32 s55, s55, {sr(sD0)}
        s_lshl_b32 s55, s55, 1
        v_mov_b32 v19, s55
        v_min_u32 v17, 2, v0
        v_add_u32 v17, {sr(sD0)}, v17
        v_lshlrev_b32 v17, 1, v17
        ''')
        if self.o.get('wsoff'):
            k(f's_add_u32 s{pWS}, s{pWS}, {self.o["wsoff"] << 20}\ns_addc_u32 s{pWS + 1}, s{pWS + 1}, 0')
        self.stamp('start')
        if self.o.get('chase'):
            ptr, stride = self.o.get('chase_ptr', 18), self.o.get('chase_stride', 256 * 512)
            k(f's_lshl_b32 s55, s2, 9\nv_mov_b32 v10, s55')
            for i in range(self.o['chase']):
                k(f'''
                global_load_dword v11, v10, {P2(ptr)}
                v_and_b32 v11, 0, v11
                v_add_u32 v10, {stride}, v10
                v_add_u32 v10, v11, v10
                ''')
            self.stamp('chase')
        k(f'''
        global_load_dwordx4 v[92:95], v2, {P2(pX)} {self.o['nt']}
        global_load_dword v91, v3, {P2(pX)} offset:1024 {self.o['nt']}
        s_load_dword {sr(sTAG)}, {P2(pWS)}, {GEN}
        ''')
        L, Lh = k.label('nokl'), k.label('hc')
        k(f'''
        s_lshl_b32 s68, s2, 1
        s_and_b32 s55, {sr(sW)}, 1
        s_add_u32 s68, s68, s55
        s_min_u32 s68, s68, 479
        s_and_b32 s55, s68, 7
        s_mul_i32 s55, s55, 80
        v_lshrrev_b32 v20, 3, v0
        v_mul_u32_u24 v20, 10, v20
        v_add_u32 v20, s55, v20
        s_cmp_lt_u32 {sr(sW)}, 6
        s_cbranch_scc1 {Lh}
        v_lshlrev_b32 v21, 1, v20
        global_load_dwordx4 v[160:163], v21, {P2(pC)}
        global_load_dword v164, v21, {P2(pC)} offset:16
        v_mul_u32_u24 v20, 7680, v20
        v_and_b32 v21, 7, v0
        v_lshl_add_u32 v20, v21, 4, v20
        s_lshr_b32 s55, s68, 3
        s_lshl_b32 s55, s55, 7
        v_add_u32 v20, s55, v20
        s_branch {L}
        {Lh}:
        s_cmp_lt_u32 s2, 40
        s_cbranch_scc1 {L}
        global_load_ushort v20, v18, {P2(pLA)} {self.o['nt']}
        global_load_ushort v24, v19, {P2(pDT)}
        global_load_ushort v21, v18, {P2(pAI)} {self.o['nt']}
        global_load_ushort v22, v18, {P2(pCR)} {self.o['nt']}
        global_load_ushort v23, v18, {P2(pCI)} {self.o['nt']}
        global_load_ushort v25, v17, {P2(pDS)}
        {L}:
        ''')
        self.srd(rWS, pWS, 0x2000000)
        self.srd(rA, pWG, 640 * 1728 * 2)
        self.srd(rB, pWU, 640 * 1728 * 2)

    def early_addresses(self):
        k = self.k
        k(f'''
        v_lshrrev_b32 v16, 3, v0
        v_mul_u32_u24 v17, 3456, v16
        v_bfe_u32 v16, v0, 4, 1
        v_bfe_u32 v26, v0, 1, 2
        v_xor_b32 v26, v26, v16
        v_and_b32 v16, 1, v0
        v_lshl_add_u32 v17, v16, 4, v17
        s_lshl_b32 s55, {sr(sNB)}, 7
        v_add_u32 v17, s55, v17
        v_lshl_add_u32 v26, v26, 5, v17
        v_xor_b32 v27, 64, v26
        s_mul_i32 {sr(sWR)}, {sr(sM1)}, 5
        s_mov_b32 {sr(sWO)}, 0
        ''')
        k(f's_lshl_b32 s55, {sr(sW)}, 6\nv_add_u32 v89, s55, v0')
        k(f'''
        s_lshl_b32 s55, {sr(sW)}, 1
        s_lshr_b32 s56, 0xffa4, s55
        s_and_b32 s56, s56, 3
        s_lshl_b32 s57, s56, 3
        v_lshlrev_b32 v10, 2, v89
        ''')
        for j in range(4):
            k(f'''
            v_add_u32 v11, {j}, v10
            v_cvt_f32_u32 v11, v11
            v_cvt_pk_bf16_f32 v11, v11, v11
            v_lshlrev_b32 v11, 16, v11
            v_cvt_u32_f32 v11, v11
            v_lshrrev_b32 v12, 7, v11
            v_and_b32 v13, 7, v11
            v_lshl_add_u32 v12, v12, 3, v13
            v_lshrrev_b32 v12, s56, v12
            v_add_u32 v12, s57, v12
            v_mul_u32_u24 v12, 20, v12
            v_bfe_u32 v11, v11, 3, 4
            v_add_lshl_u32 v11, v12, v11, 2
            v_add_u32 {vr(GA + j)}, {KC}, v11
            ''')
        k(f'''
        v_lshlrev_b32 v208, 1, v10
        v_lshlrev_b32 v209, 2, v10
        ''')
        for i in range(2):
            k(f'''
            v_add_u32 v11, {512 * i}, v89
            v_mul_u32_u24 v12, 0x5556, v11
            v_lshrrev_b32 v12, 16, v12
            v_mul_u32_u24 v13, 3, v12
            v_sub_u32 v11, v11, v13
            v_add_u32 v11, {sr(sD0)}, v11
            v_mul_u32_u24 v12, 10240, v12
            v_lshl_add_u32 {vr(210 + i)}, v11, 4, v12
            ''')
        k('v_lshlrev_b32 v212, 4, v89')
        self.wread_addr(213)
        k(f'''
        v_lshrrev_b32 v11, 2, v0
        v_min_u32 v11, 11, v11
        v_mul_u32_u24 v12, 0x5556, v11
        v_lshrrev_b32 v12, 16, v12
        v_mul_u32_u24 v13, 3, v12
        v_sub_u32 v11, v11, v13
        v_cmp_eq_u32 vcc, 3, v12
        v_addc_co_u32 v12, vcc, 0, v12, vcc
        v_mul_u32_u24 v12, 640, v12
        v_add3_u32 v11, v11, v12, {sr(sD0)}
        v_lshrrev_b32 v12, 6, v11
        v_and_b32 v11, 63, v11
        v_lshlrev_b32 v11, 2, v11
        v_lshl_add_u32 v11, v12, 11, v11
        v_and_b32 v12, 3, v0
        v_lshl_add_u32 v11, v12, 8, v11
        v_add_u32 v88, {MODP}, v11
        v_min_u32 v89, 319, v89
        v_lshlrev_b32 v90, 3, v89
        v_add_u32 v90, {MOD + 3 * 2560}, v90
        ''')
        k(f'''
        v_lshrrev_b32 v8, 4, v0
        v_bfe_u32 v9, v0, 2, 2
        v_and_b32 v10, 3, v0
        v_lshlrev_b32 v11, 1, v10
        v_lshl_add_u32 v11, v8, 2, v11
        v_lshrrev_b32 v12, 1, v9
        v_add_u32 v11, v11, v12
        v_mul_u32_u24 v11, 48, v11
        v_and_b32 v12, 1, v9
        v_lshl_add_u32 v11, v12, 3, v11
        v_add_u32 v1, {XNL0 - 14 * 48}, v11
        v_sub_u32 v11, v10, v9
        v_lshlrev_b32 v12, 3, v8
        v_sub_u32 v11, v11, v12
        v_lshlrev_b32 v11, 3, v11
        v_add_u32 v2, {KA + 32 + 2 * (112 - 16)}, v11
        v_lshlrev_b32 v11, 3, v9
        v_lshl_add_u32 v11, v8, 1, v11
        v_lshrrev_b32 v12, 1, v10
        v_add_u32 v11, v11, v12
        v_mul_u32_u24 v11, 48, v11
        v_and_b32 v12, 1, v10
        v_lshl_add_u32 v11, v12, 3, v11
        v_add_u32 v5, {XNL0}, v11
        ''')
        k(f'''
        s_mul_i32 s56, {sr(sW)}, {TRR}
        s_add_u32 s56, s56, {TR}
        v_lshl_add_u32 v6, v0, 4, s56
        v_lshl_add_u32 v7, v0, 2, s56
        v_mul_u32_u24 v4, {TRR}, v9
        v_lshl_add_u32 v4, v8, 5, v4
        v_lshl_add_u32 v4, v10, 3, v4
        s_and_b32 s55, {sr(sW)}, 1
        s_mul_i32 s56, s55, 640
        s_add_u32 s56, s56, {TR}
        v_add_u32 v4, s56, v4
        s_mul_i32 s57, s2, 10240
        s_mul_i32 s56, s55, 5120
        s_add_u32 s57, s57, s56
        v_lshl_add_u32 v3, v0, 4, s57
        s_add_u32 {sr(sTAG)}, {sr(sTAG)}, 0x9e3779b9
        ''')
        k(f'''
        s_and_b32 s55, s2, 7
        s_lshl_b32 s55, s55, 12
        v_lshrrev_b32 v11, 1, v0
        v_lshlrev_b32 v11, 7, v11
        v_and_b32 v12, 1, v0
        v_lshl_add_u32 v11, v12, 5, v11
        v_add_u32 v215, s55, v11
        ''')

    def poll_sync1(self, va, vd):
        k = self.k
        L, D = k.label('p1'), k.label('p1d')
        k(f'''
        {L}:
        global_load_dwordx4 {vr(vd, 4)}, {vr(va)}, {P2(pWS)} offset:{SYNC1} sc1
        global_load_dwordx4 {vr(vd + 4, 4)}, {vr(va)}, {P2(pWS)} offset:{SYNC1 + 16} sc1
        v_min3_u32 {vr(vd + 8)}, {vr(vd)}, {vr(vd + 1)}, {vr(vd + 2)}
        v_max3_u32 {vr(vd + 9)}, {vr(vd)}, {vr(vd + 1)}, {vr(vd + 2)}
        v_min3_u32 {vr(vd + 8)}, {vr(vd + 8)}, {vr(vd + 3)}, {vr(vd + 4)}
        v_max3_u32 {vr(vd + 9)}, {vr(vd + 9)}, {vr(vd + 3)}, {vr(vd + 4)}
        v_min3_u32 {vr(vd + 8)}, {vr(vd + 8)}, {vr(vd + 5)}, {vr(vd + 6)}
        v_max3_u32 {vr(vd + 9)}, {vr(vd + 9)}, {vr(vd + 5)}, {vr(vd + 6)}
        v_min_u32 {vr(vd + 8)}, {vr(vd + 8)}, {vr(vd + 7)}
        v_max_u32 {vr(vd + 9)}, {vr(vd + 9)}, {vr(vd + 7)}
        v_xor_b32 {vr(vd + 8)}, {sr(sTAG)}, {vr(vd + 8)}
        v_xor_b32 {vr(vd + 9)}, {sr(sTAG)}, {vr(vd + 9)}
        v_or_b32 {vr(vd + 8)}, {vr(vd + 8)}, {vr(vd + 9)}
        v_cmp_ne_u32 vcc, 0, {vr(vd + 8)}
        s_cbranch_vccz {D}
        s_sleep {self.o.get('sleep', 2)}
        s_add_u32 {sr(sSPIN)}, {sr(sSPIN)}, 1
        s_cmp_lt_u32 {sr(sSPIN)}, {SPIN_MAX}
        s_cbranch_scc1 {L}
        {D}:
        ''')

    def touch(self, ptr, size, sbyte, stride=128, lanes=64):
        k = self.k
        k(f'''
        v_mul_u32_u24 v84, {stride}, v0
        v_add_u32 v84, {sbyte}, v84
        v_min_u32 v84, {size - 4}, v84
        ''')
        if lanes < 64:
            k(f's_mov_b32 exec_lo, {hex((1 << min(lanes, 32)) - 1)}\ns_mov_b32 exec_hi, {hex((1 << max(lanes - 32, 0)) - 1)}')
        k(f'global_load_dword v83, v84, {P2(ptr)}')
        if lanes < 64:
            k('s_mov_b64 exec, -1')

    def stage_a(self):
        k = self.k
        L, L5 = k.label('nsa'), k.label('sa5')
        k(f'''
        s_cmp_lt_u32 s2, 40
        s_cbranch_scc1 {L}
        s_cmp_ge_u32 {sr(sW)}, 6
        s_cbranch_scc1 {L}
        s_cmp_eq_u32 {sr(sW)}, 5
        s_cbranch_scc1 {L5}
        s_mov_b32 {sr(sWI)}, {sr(sW)}
        ''')
        self.wunits(1, 5, 1)
        k(f's_branch {L}\n{L5}:')
        if self.o.get('tm', 0):
            k(f's_mul_i32 s55, {sr(sI)}, {178 * 128}')
            for i in range(3):
                self.touch(pWM, 640 * 3840 * 2, 's55')
                if i < 2:
                    k('s_add_u32 s55, s55, 8192')
        k(f'{L}:')

    def stage_b_touch(self):
        k = self.k
        if not self.o.get('tb', 0):
            return
        L = [k.label('tb') for _ in range(5)]
        k(f's_cmp_lt_u32 {sr(sW)}, 2\ns_cbranch_scc0 {L[0]}')
        k(f's_mul_i32 s55, {sr(sI)}, {80 * 128}\ns_mul_i32 s56, {sr(sW)}, {40 * 128}\ns_add_u32 s55, s55, s56')
        self.touch(pWD, 1728 * 640 * 2, 's55', lanes=40)
        k(f's_branch {L[2]}\n{L[0]}:')
        k(f'''
        s_mul_i32 s55, {sr(sWR)}, {8 * 3456}
        s_lshl_b32 s56, {sr(sNB)}, 7
        s_add_u32 s55, s55, s56
        s_add_u32 s55, s55, {320 * 3456}
        s_cmp_eq_u32 {sr(sW)}, 2
        s_cbranch_scc0 {L[1]}
        ''')
        self.touch(pWG, 640 * 1728 * 2, 's55', stride=3456, lanes=40)
        k(f's_branch {L[2]}\n{L[1]}:\ns_cmp_eq_u32 {sr(sW)}, 3\ns_cbranch_scc0 {L[2]}')
        self.touch(pWU, 640 * 1728 * 2, 's55', stride=3456, lanes=40)
        k(f'{L[2]}:')

    def ln1(self):
        k = self.k
        X = [92, 93, 94, 95, 91]
        k('v_mov_b32 v10, v91')
        self.stamp('xld')
        if self.o.get('sa_pos', 0) == 0:
            self.stage_a()
        k(f'''
        s_mov_b32 s55, 0x3f803f80
        v_mov_b32 v10, 0
        v_mov_b32 v11, 0
        ''')
        for j in range(5):
            k(f'v_dot2_f32_bf16 v10, v{X[j]}, s55, v10')
            k(f'v_dot2_f32_bf16 v11, v{X[j]}, v{X[j]}, v11')
        k(f'''
        v_permlane32_swap_b32 v10, v11
        v_add_f32 v10, v10, v11
        ''')
        for n in (8, 4, 2, 1):
            k(f'v_add_f32_dpp v10, v10, v10 row_ror:{n} row_mask:0xf bank_mask:0xf')
        k(f'''
        v_add_f32_dpp v10, v10, v10 row_bcast:15 row_mask:0xa bank_mask:0xf
        v_mov_b32 v13, {f32(1.0 / 640)}
        v_readlane_b32 s55, v10, 31
        v_readlane_b32 s56, v10, 63
        s_lshl_b32 s57, {sr(sW)}, 2
        v_mov_b32 v14, s57
        v_mul_f32 v10, s55, v13
        v_mul_f32 v11, s56, v13
        v_fma_f32 v11, -v10, v10, v11
        v_max_f32 v11, 0, v11
        v_cvt_pk_bf16_f32 v10, v10, v11
        v_and_b32 v11, 0xffff0000, v10
        v_lshlrev_b32 v10, 16, v10
        v_add_f32 v11, {f32(1e-5)}, v11
        v_cvt_pk_bf16_f32 v11, v11, v11
        v_lshlrev_b32 v11, 16, v11
        v_sqrt_f32 v11, v11
        v_lshlrev_b32 v15, 16, v92
        v_cvt_pk_bf16_f32 v13, v10, v11
        v_and_b32 v11, 0xffff0000, v13
        v_rcp_f32 v11, v11
        ''')
        k(f'ds_write_b32 v14, v13 offset:{TR + TRM}', tag='trw')
        k('v_mul_f32 v10, -v10, v11')
        for j in range(5):
            k(f'''
            v_lshlrev_b32 v13, 16, v{X[j]}
            v_and_b32 v14, 0xffff0000, v{X[j]}
            v_fma_f32 v13, v13, v11, v10
            v_fma_f32 v14, v14, v11, v10
            v_cvt_pk_bf16_f32 v{X[j]}, v13, v14
            ''')
            if j == 3:
                k('ds_write_b128 v6, v[92:95]', tag='trw')
        k('ds_write_b32 v7, v91 offset:1024', tag='trw')
        k.wait('trw')
        k('s_barrier')
        if self.o.get('sa_pos', 0) == 1:
            self.stage_a()
        Ls = k.label('nost')
        k(f'''
        s_cmp_lt_u32 {sr(sW)}, 6
        s_cbranch_scc1 {Ls}
        ''')
        for i in range(5):
            k(f'ds_read_b64_tr_b16 v[{28 + 4 * i}:{29 + 4 * i}], v4 offset:{128 * i}')
            k(f'ds_read_b64_tr_b16 v[{30 + 4 * i}:{31 + 4 * i}], v4 offset:{128 * i + 4 * TRR}')
        k(f'''
        v_lshlrev_b32 v72, 4, v0
        ds_read_b128 v[68:71], v72 offset:{TR + TRM}
        s_mov_b32 s58, {XN}
        s_mov_b32 s59, {XN + 4096}
        ''')
        for i in range(5):
            k(f'buffer_store_dwordx4 v[{28 + 4 * i}:{31 + 4 * i}], v3, {P4(rWS)}, s{58 + i // 4} offen offset:{1024 * (i % 4)} sc1', tag='xnst')
        L6, L7, L8 = k.label('w6'), k.label('w7'), k.label('w8')
        k(f'''
        s_cmp_eq_u32 {sr(sW)}, 6
        s_cbranch_scc1 {L6}
        v_mov_b32 v68, 0
        v_mov_b32 v69, 0
        v_mov_b32 v70, 0
        v_mov_b32 v71, 0
        s_cmp_ge_u32 s2, 30
        s_cbranch_scc1 {L8}
        s_add_u32 s56, s2, 30
        s_lshl_b32 s56, s56, 8
        s_add_u32 s56, s56, {MOD}
        s_mov_b64 exec, 0xffff
        buffer_store_dwordx4 v[68:71], v72, {P4(rWS)}, s56 offen sc1
        {L8}:
        s_mul_i32 s56, s2, 224
        s_add_u32 s56, s56, {ZBEG}
        s_mov_b64 exec, 0x3fff
        s_branch {L7}
        {L6}:
        s_lshl_b32 s56, s2, 5
        s_add_u32 s56, s56, {MS}
        s_mov_b64 exec, 3
        {L7}:
        ''')
        k(f'buffer_store_dwordx4 v[68:71], v72, {P4(rWS)}, s56 offen sc1', tag='xnst')
        k(f'''
        s_mov_b64 exec, 0xffff
        v_mov_b32 v74, 0
        v_mov_b32 v75, 0
        v_mov_b32 v76, 0
        v_mov_b32 v77, 0
        s_lshl_b32 s56, s68, 8
        s_add_u32 s69, s56, {MODP}
        ''')
        k(f'buffer_store_dwordx4 v[74:77], v72, {P4(rWS)}, s69 offen sc1', tag='xnst')
        k('s_mov_b64 exec, -1')
        self.silu10()
        k(f'''
        s_mov_b64 exec, -1
        s_lshr_b32 s56, s2, 3
        s_lshl_b32 s56, s56, 7
        s_and_b32 s57, s2, 7
        s_lshl_b32 s57, s57, 3
        s_add_u32 s56, s56, s57
        s_and_b32 s57, {sr(sW)}, 1
        s_lshl_b32 s57, s57, 2
        s_add_u32 s56, s56, s57
        v_lshl_add_u32 v16, v0, 12, s56
        v_mov_b32 v17, {sr(sTAG)}
        s_mov_b64 exec, 0xff
        ''')
        k.wait('xnst')
        k(f'''
        global_store_dword v16, v17, {P2(pWS)} offset:{SYNC1} sc1
        s_mov_b64 exec, -1
        ''')
        self.stamp('A')
        Lm = k.label('nwb')
        nb_ = self.o.get('wb', 10)
        if nb_:
            k(f'''
            s_cmp_lt_u32 s2, 40
            s_cbranch_scc1 {Lm}
            s_sub_u32 {sr(sWI)}, {sr(sW)}, 1
            ''')
            self.wunits(nb_, 5 + 2 * nb_, 2)
            k(f'{Lm}:')
        for i in range(10):
            k(f'global_load_dwordx4 {vr(216 + 4 * i, 4)}, v20, {P2(pWM)} {self.o["nt"]}')
            if i < 9:
                k('v_add_u32 v20, 7680, v20')
        k(f'{Ls}:')

    def silu10(self):
        k = self.k
        CV = 140
        for i in range(10):
            k(f'v_lshlrev_b32 {vr(CV + i)}, 16, {vr(160 + i // 2)}' if i % 2 == 0 else f'v_and_b32 {vr(CV + i)}, 0xffff0000, {vr(160 + i // 2)}')
            k(f'v_mul_f32 {vr(150 + i)}, {f32(-LOG2E)}, {vr(CV + i)}')
        for op in ('v_exp_f32 {t}, {t}', 'v_add_f32 {t}, 1.0, {t}', 'v_rcp_f32 {t}, {t}', 'v_mul_f32 {c}, {c}, {t}',
                   'v_cvt_pk_bf16_f32 {c}, {c}, {c}', 'v_lshlrev_b32 {c}, 16, {c}'):
            for i in range(10):
                k(op.format(t=vr(150 + i), c=vr(CV + i)))

    def mod_partial(self):
        k = self.k
        LD, CV, V = 216, 140, 68
        L = k.label('nomp')
        k(f's_cmp_lt_u32 {sr(sW)}, 6\ns_cbranch_scc1 {L}')
        for i in range(10):
            for j in range(4):
                r = LD + 4 * i + j
                a, b = 76 + 2 * (j % 2), 77 + 2 * (j % 2)
                k(f'v_lshlrev_b32 v{a}, 16, {vr(r)}\nv_and_b32 v{b}, 0xffff0000, {vr(r)}')
                if i == 0:
                    k(f'v_mul_f32 {vr(V + 2 * j)}, v{a}, {vr(CV)}\nv_mul_f32 {vr(V + 2 * j + 1)}, v{b}, {vr(CV)}')
                else:
                    k(f'v_fmac_f32 {vr(V + 2 * j)}, v{a}, {vr(CV + i)}\nv_fmac_f32 {vr(V + 2 * j + 1)}, v{b}, {vr(CV + i)}')
        for i in range(4):
            k(f'v_permlane32_swap_b32 {vr(V + i)}, {vr(V + 4 + i)}')
        for i in range(4):
            k(f'v_add_f32 {vr(V + i)}, {vr(V + i)}, {vr(V + 4 + i)}')
        for i in range(2):
            k(f'v_permlane16_swap_b32 {vr(V + i)}, {vr(V + 2 + i)}')
        for i in range(2):
            k(f'v_add_f32 {vr(V + i)}, {vr(V + i)}, {vr(V + 2 + i)}')
        k(f'''
        v_lshrrev_b32 v76, 4, v0
        v_and_b32 v77, 7, v0
        v_lshlrev_b32 v76, 3, v76
        v_lshl_add_u32 v76, v77, 5, v76
        ''')
        for i in range(2):
            k(f'v_add_f32_dpp {vr(V + i)}, {vr(V + i)}, {vr(V + i)} row_ror:8 row_mask:0xf bank_mask:0xf')
        k(f'''
        v_or_b32 {vr(V)}, 1, {vr(V)}
        v_or_b32 {vr(V + 1)}, 1, {vr(V + 1)}
        s_mov_b32 exec_lo, 0x00ff00ff
        s_mov_b32 exec_hi, 0x00ff00ff
        buffer_store_dwordx2 {vr(V, 2)}, v76, {P4(rWS)}, s69 offen sc1
        s_mov_b64 exec, -1
        ''')
        self.stamp('modp')
        k(f'{L}:')

    def wunits(self, n, end, step):
        k = self.k
        L = k.label('wsd')
        for i in range(n):
            k(f'''
            s_cmp_ge_u32 {sr(sWI)}, {end}
            s_cbranch_scc1 {L}
            s_add_u32 s55, {sr(sWI)}, {sr(sWR)}
            s_sub_u32 s56, s55, 40
            s_cselect_b32 s55, s55, s56
            s_lshl_b32 s56, s55, 11
            s_add_u32 m0, s56, {STG}
            s_mul_i32 s55, s55, {8 * 3456}
            s_add_u32 s55, s55, {sr(sWO)}
            s_add_u32 {sr(sWI)}, {sr(sWI)}, {step}
            ''')
            k(f'buffer_load_dwordx4 v26, {P4(rA)}, s55 offen lds', tag='wst')
            k(f's_add_u32 m0, s56, {STG + 1024}')
            k(f'buffer_load_dwordx4 v27, {P4(rB)}, s55 offen lds', tag='wst')
        k(f'{L}:')

    def wread_addr(self, va):
        self.k(f'''
        v_bfe_u32 {vr(va + 1)}, v0, 3, 2
        s_and_b32 s55, {sr(sW)}, 3
        v_xor_b32 {vr(va + 1)}, s55, {vr(va + 1)}
        v_lshrrev_b32 {vr(va)}, 4, v0
        v_lshlrev_b32 {vr(va)}, 10, {vr(va)}
        v_lshl_add_u32 {vr(va)}, {vr(va + 1)}, 5, {vr(va)}
        v_bfe_u32 {vr(va + 1)}, v0, 2, 2
        v_lshl_add_u32 {vr(va)}, {vr(va + 1)}, 7, {vr(va)}
        v_and_b32 {vr(va + 1)}, 3, v0
        v_lshl_add_u32 {vr(va)}, {vr(va + 1)}, 3, {vr(va)}
        v_add_u32 {vr(va)}, {STG}, {vr(va)}
        v_add_u32 {vr(va + 1)}, {10 * 4096}, {vr(va)}
        ''')

    def wstage_read(self, rnd, va):
        k = self.k
        for s in range(20):
            r = WF + 4 * (20 * rnd + s)
            a = va if s < 10 else va + 1
            off = (s % 10) * 4096
            k(f'ds_read_b64_tr_b16 {vr(r, 2)}, {vr(a)} offset:{off}', tag='wrd')
            k(f'ds_read_b64_tr_b16 {vr(r + 2, 2)}, {vr(a)} offset:{off + 512}', tag='wrd')

    def cmul(self, d, a, b):
        self.k(f'v_pk_mul_f32 {vr(d, 2)}, {vr(a, 2)}, {vr(b, 2)} op_sel:[0,0] op_sel_hi:[0,1]')
        self.k(f'v_pk_fma_f32 {vr(d, 2)}, {vr(a, 2)}, {vr(b, 2)}, {vr(d, 2)} op_sel:[1,1,0] op_sel_hi:[1,0,1] neg_lo:[1,0,0]')

    def zpow(self, d, e, a2, fr, t):
        k = self.k
        k(f'''
        v_mul_f32 {vr(t)}, {f32(e)}, {vr(a2)}
        v_mul_f32 {vr(t + 1)}, {f32(e)}, {vr(fr)}
        v_exp_f32 {vr(t)}, {vr(t)}
        v_fract_f32 {vr(t + 1)}, {vr(t + 1)}
        v_cos_f32 {vr(d)}, {vr(t + 1)}
        v_sin_f32 {vr(d + 1)}, {vr(t + 1)}
        v_mul_f32 {vr(d)}, {vr(d)}, {vr(t)}
        v_mul_f32 {vr(d + 1)}, {vr(d + 1)}, {vr(t)}
        ''')

    def kgen(self):
        k = self.k
        Lskip = k.label('nokg')
        k(f's_cmp_ge_u32 {sr(sW)}, 6\ns_cbranch_scc1 {Lskip}')
        A2, FR, T = 28, 29, 30
        Z = {e: 32 + 2 * e for e in range(1, 8)}
        Z8, Z128, QA, QB, PA, PB, PC = 48, 50, 52, 54, 56, 58, 60
        CV = 62
        QF, PF, AC = 64, 176, 192
        RA = 80
        k(f'''
        v_lshlrev_b32 v24, 16, v24
        v_lshlrev_b32 v20, 16, v20
        v_mul_f32 v24, {f32(LOG2E)}, v24
        v_mul_f32 v20, {f32(LOG2E)}, v20
        v_exp_f32 v24, v24
        v_exp_f32 v20, v20
        v_lshlrev_b32 v21, 16, v21
        v_cvt_pk_bf16_f32 v20, v20, v24
        v_and_b32 v24, 0xffff0000, v20
        v_lshlrev_b32 v20, 16, v20
        v_mul_f32 {vr(A2)}, v20, v24
        v_mul_f32 {vr(FR)}, v21, v24
        v_mul_f32 {vr(A2)}, {f32(-LOG2E)}, {vr(A2)}
        v_mul_f32 {vr(FR)}, 0.15915494, {vr(FR)}
        v_add_f32 v24, v24, v24
        v_lshlrev_b32 v22, 16, v22
        v_lshlrev_b32 v23, 16, v23
        v_mul_f32 {vr(QA)}, v22, v24
        v_mul_f32 {vr(QA + 1)}, v23, v24
        s_mul_i32 s60, {sr(sW)}, {KGS}
        s_mov_b32 m0, s60
        v_and_b32 {vr(RA)}, 15, v0
        v_mul_u32_u24 {vr(RA)}, 288, {vr(RA)}
        v_lshrrev_b32 {vr(RA + 1)}, 4, v0
        v_lshl_add_u32 {vr(RA)}, {vr(RA + 1)}, 4, {vr(RA)}
        v_add_u32 {vr(RA)}, s60, {vr(RA)}
        ''')
        self.zpow(Z8, 8.0, A2, FR, T)
        self.zpow(Z[1], 1.0, A2, FR, T)
        self.zpow(Z128, 128.0, A2, FR, T)
        flip = [0]

        def put(row, r, neg=False):
            c = CV + flip[0]
            flip[0] ^= 1
            k(f'v_cvt_pk_bf16_f32 {vr(c)}, {vr(r)}, {"-" if neg else ""}{vr(r + 1)}')
            k(f'ds_write_addtid_b32 {vr(c)} offset:{288 * row}')

        def frags(dst):
            for s in range(4):
                k(f'ds_read_b128 {vr(dst + 4 * s, 4)}, {vr(RA)} offset:{64 * s}')

        def mm(acc):
            for s in range(4):
                c = '0' if s == 0 else vr(acc, 4)
                k(f'v_mfma_f32_16x16x32_bf16 {vr(acc, 4)}, {vr(PF + 4 * s, 4)}, {vr(QF + 4 * s, 4)}, {c}')

        small = [(2, 1, 1), (3, 2, 1), (4, 2, 2), (5, 4, 1), (6, 4, 2), (7, 4, 3)]
        cur, nxt = QA, QB
        for b in range(16):
            if b < 15:
                self.cmul(nxt, cur, Z8)
            put(b, cur, neg=True)
            if b < len(small):
                e, x, y = small[b]
                self.cmul(Z[e], Z[x], Z[y])
            cur, nxt = nxt, cur
        frags(QF)
        self.stage_b_touch()
        k(f'v_mov_b32 {vr(CV)}, 0x3f80')
        k(f'ds_write_addtid_b32 {vr(CV)} offset:0')
        flip[0] = 1
        put(8, Z128)
        cur, nxt = PA, PB
        for e in range(1, 8):
            self.cmul(cur, Z[e], Z128)
            put(e, Z[e])
            put(8 + e, cur)
            cur, nxt = nxt, cur
        frags(PF)
        self.cmul(QA, Z128, Z128)
        self.cmul(QB, QA, Z128)
        mm(AC)
        put(0, QA)
        put(4, QB)
        for e in (1, 2, 3):
            self.cmul(PA, QA, Z[2 * e])
            self.cmul(PB, QB, Z[2 * e])
            put(e, PA)
            put(4 + e, PB)
        cur, nxt = QB, QA
        for a in range(4):
            self.cmul(nxt, cur, Z128)
            self.cmul(PA, nxt, Z[4])
            put(8 + 2 * a, nxt)
            put(9 + 2 * a, PA)
            cur, nxt = nxt, cur
        frags(PF)
        self.cmul(nxt, cur, Z128)
        cur, nxt = nxt, cur
        mm(AC + 4)
        for a in range(9):
            if a < 8:
                self.cmul(nxt, cur, Z128)
            put(a, cur)
            cur, nxt = nxt, cur
        frags(PF)
        k(f'''
        v_lshrrev_b32 {vr(RA + 1)}, 4, v0
        v_mul_u32_u24 {vr(RA + 1)}, 320, {vr(RA + 1)}
        v_and_b32 {vr(RA + 2)}, 15, v0
        v_lshl_add_u32 {vr(RA + 1)}, {vr(RA + 2)}, 2, {vr(RA + 1)}
        s_mul_i32 s55, {sr(sW)}, {KCS}
        s_add_u32 s55, s55, {KC}
        v_add_u32 {vr(RA + 1)}, s55, {vr(RA + 1)}
        ''')
        for Tt in range(2):
            for i in range(4):
                k(f'ds_write_b32 {vr(RA + 1)}, {vr(AC + 4 * Tt + i)} offset:{(16 * Tt + i) * 80}', tag='kcw')
        mm(AC + 8)
        for i in range(4):
            k(f'ds_write_b32 {vr(RA + 1)}, {vr(AC + 8 + i)} offset:{(32 + i) * 80}', tag='kcw')
        k(f'{Lskip}:')

    def kexpand1(self):
        k = self.k
        V = lambda ch, j: 36 + 4 * ch + j
        PK, SC = 48, 54
        k(f'''
        v_lshlrev_b32 v25, 16, v25
        v_cmp_eq_u32 s[58:59], 0, v208
        v_readlane_b32 s62, v25, 0
        v_readlane_b32 s63, v25, 1
        v_readlane_b32 s64, v25, 2
        v_mov_b32 v64, 0
        v_mov_b32 v65, 0
        v_mov_b32 v66, 0
        v_mov_b32 v67, 0
        v_lshlrev_b32 v35, 4, v0
        ''')
        for ch in range(3):
            k(f'v_mov_b32 {vr(SC + ch)}, s{62 + ch}')
            k(f'v_cndmask_b32 {vr(SC + ch)}, 0, {vr(SC + ch)}, s[58:59]')
        k.wait('kcw')
        k('s_barrier')
        self.stamp('kcw')
        for ch in range(3):
            for j in range(4):
                k(f'ds_read2st64_b32 {vr(176 + 8 * ch + 2 * j, 2)}, {vr(GA + j)} offset0:{30 * ch} offset1:{30 * ch + 15}')
        L = self.only_wave(7)
        k(f's_mov_b32 exec_lo, -1\ns_mov_b32 exec_hi, 0x3ff')
        k(f'ds_write_b128 v35, v[64:67] offset:{XNL0 - 672}', tag='kaw')
        k(f's_mov_b64 exec, 3')
        for ch in range(3):
            k(f'ds_write_b128 v35, v[64:67] offset:{KA + ch * KAS}', tag='kaw')
        k(f's_mov_b64 exec, -1')
        k(f'{L}:')
        k(f's_add_u32 {sr(sWI)}, {sr(sW)}, {5 + 2 * self.o.get("wb", 10)}')
        self.wunits(max(0, (35 - 2 * self.o.get('wb', 10) + 7) // 8), 40, 8)
        for ch in range(3):
            for j in range(4):
                k(f'v_add_f32 {vr(V(ch, j))}, {vr(176 + 8 * ch + 2 * j)}, {vr(177 + 8 * ch + 2 * j)}')
            k(f'v_add_f32 {vr(V(ch, 0))}, {vr(V(ch, 0))}, {vr(SC + ch)}')
        for ch in range(3):
            k(f'v_cvt_pk_bf16_f32 {vr(PK + 2 * ch)}, {vr(V(ch, 0))}, {vr(V(ch, 1))}')
            k(f'v_cvt_pk_bf16_f32 {vr(PK + 2 * ch + 1)}, {vr(V(ch, 2))}, {vr(V(ch, 3))}')
            k(f'ds_write_b64 v208, {vr(PK + 2 * ch, 2)} offset:{KA + ch * KAS + 32}', tag='kaw')
        for j in range(1, 4):
            for ch in range(3):
                k(f'v_add_f32 {vr(V(ch, j))}, {vr(V(ch, j))}, {vr(V(ch, j - 1))}')
        for n in (1, 2, 4, 8):
            for ch in range(3):
                src = V(ch, 3) if n == 1 else SC + ch
                k(f'v_add_f32_dpp {vr(SC + ch)}, {vr(src)}, {vr(src)} row_shr:{n} row_mask:0xf bank_mask:0xf bound_ctrl:0')
        for ch in range(3):
            k(f'v_add_f32_dpp {vr(SC + ch)}, {vr(SC + ch)}, {vr(SC + ch)} row_bcast:15 row_mask:0xa bank_mask:0xf')
        for ch in range(3):
            k(f'v_add_f32_dpp {vr(SC + ch)}, {vr(SC + ch)}, {vr(SC + ch)} row_bcast:31 row_mask:0xc bank_mask:0xf')
        k(f'''
        s_lshl_b32 s55, {sr(sW)}, 2
        s_add_u32 s55, s55, {WT}
        v_mov_b32 v33, s55
        s_mov_b32 exec_lo, 0
        s_brev_b32 exec_hi, 1
        ''')
        for ch in range(3):
            k(f'ds_write_b32 v33, {vr(SC + ch)} offset:{32 * ch}', tag='kaw')
        k('s_mov_b64 exec, -1')

    def kexpand2(self):
        k = self.k
        V = lambda ch, j: 36 + 4 * ch + j
        SC = 54
        k(f'''
        v_min_u32 v33, 23, v0
        v_lshlrev_b32 v33, 2, v33
        v_add_u32 v33, {WT}, v33
        ds_read_b32 v34, v33
        v_and_b32 v33, 7, v0
        v_cmp_gt_u32 vcc, {sr(sW)}, v33
        ''')
        for ch in range(3):
            k(f'v_sub_f32 {vr(SC + ch)}, {vr(SC + ch)}, {vr(V(ch, 3))}')
        k('v_cndmask_b32 v34, 0, v34, vcc')
        for n in (1, 2, 4):
            k(f'v_add_f32_dpp v34, v34, v34 row_shr:{n} row_mask:0xf bank_mask:0xf bound_ctrl:0')
        k(f'''
        v_readlane_b32 s62, v34, 7
        v_readlane_b32 s63, v34, 15
        v_readlane_b32 s64, v34, 23
        ''')
        for ch in range(3):
            k(f'v_add_f32 {vr(SC + ch)}, s{62 + ch}, {vr(SC + ch)}')
            for j in range(4):
                k(f'v_add_f32 {vr(V(ch, j))}, {vr(V(ch, j))}, {vr(SC + ch)}')
            k(f'ds_write_b128 v209, {vr(V(ch, 0), 4)} offset:{SA + ch * SAS}', tag='saw')

    def conv_loads(self):
        k = self.k
        k(f'''
        s_lshl_b32 s60, {sr(sW)}, 10
        s_mov_b32 s57, {XN}
        s_mov_b32 s58, {MS}
        ''')
        L = self.only_wave(0)
        self.poll_sync1(215, 58)
        k(f'{L}:')
        k.wait('kaw', 'wst')
        k('s_barrier')
        self.stamp('sync1')
        k(f's_add_u32 m0, s60, {XNL0}')
        k(f'buffer_load_dwordx4 v210, {P4(rWS)}, s57 offen sc1 lds', tag='xnl')
        L = k.label('x2')
        k(f's_cmp_ge_u32 {sr(sW)}, 4\ns_cbranch_scc1 {L}\ns_add_u32 m0, s60, {XNL0 + 8192}')
        k(f'buffer_load_dwordx4 v211, {P4(rWS)}, s57 offen sc1 lds', tag='xnl')
        k(f'{L}:\ns_add_u32 m0, s60, {MSL}')
        k(f'buffer_load_dwordx4 v212, {P4(rWS)}, s58 offen sc1 lds', tag='xnl')

    def conv_consts(self):
        k = self.k
        Lr, Ld = k.label('mr'), k.label('md')
        chk = f'''
        v_min_u32 v16, v17, v23
        v_cmp_eq_u32 vcc, 0, v16
        s_cbranch_vccz {Ld}
        '''
        k(chk)
        k(f'''
        {Lr}:
        global_load_dword v17, v88, {P2(pWS)} sc1
        global_load_dword v23, v88, {P2(pWS)} offset:1024 sc1
        ''')
        k(chk)
        k(f'''
        s_sleep {self.o.get('sleep', 2)}
        s_add_u32 {sr(sSPIN)}, {sr(sSPIN)}, 1
        s_cmp_lt_u32 {sr(sSPIN)}, {SPIN_MAX}
        s_cbranch_scc1 {Lr}
        {Ld}:
        v_add_f32 v17, v17, v23
        v_add_f32_dpp v17, v17, v17 quad_perm:[1,0,3,2] row_mask:0xf bank_mask:0xf
        v_add_f32_dpp v17, v17, v17 quad_perm:[2,3,0,1] row_mask:0xf bank_mask:0xf
        v_cvt_pk_bf16_f32 v17, v17, v17
        v_lshlrev_b32 v17, 16, v17
        v_add_f32 v16, 1.0, v17
        v_cvt_pk_bf16_f32 v16, v16, v16
        v_lshlrev_b32 v16, 16, v16
        ''')
        for ch in range(3):
            k(f'v_readlane_b32 s55, v17, {4 * (6 + ch)}')
            k(f'v_readlane_b32 {sr(sCH + 3 * ch + 2)}, v16, {4 * (9 + ch)}')
            k(f'v_mul_f32 v18, s55, v16\nv_mul_f32 v19, s55, v17')
            k(f'v_readlane_b32 {sr(sCH + 3 * ch)}, v18, {4 * (3 + ch)}')
            k(f'v_readlane_b32 {sr(sCH + 3 * ch + 1)}, v19, {4 * ch}')

    def conv(self):
        k = self.k
        H, KF, ACC, AX = 32, 64, 176, 208
        vHB, vKB, vH, vK, vXB, vSB, vO = 1, 2, 3, 4, 5, 6, 7
        XV, SV, TT, MV = 212, 216, 224, 244
        sL, sG, sC, sN, sPEND = 65, 66, 67, 68, 69
        k(f'''
        s_lshl_b32 s55, {sr(sW)}, 2
        s_lshr_b32 s55, 0x56437210, s55
        s_and_b32 {sr(sWI)}, s55, 15
        s_cmp_ge_u32 {sr(sWI)}, 6
        s_cselect_b32 {sr(sWI)}, 40, {sr(sWI)}
        s_mov_b32 {sr(sWO)}, {320 * 3456}
        ''')
        U = lambda G, ch: 4 * ch + G + 1
        lists = [[U(3, 0)], [U(3, 1)], [U(3, 2)], [U(0, 2), U(2, 2)], [U(2, 0)], [U(2, 1)],
                 [U(0, 0), U(0, 1), U(1, 0)], [U(1, 1), U(1, 2)]]
        enc = [sum(u << (4 * i) for i, u in enumerate(l)) for l in lists]
        for w in range(8):
            k(f's_cmp_eq_u32 {sr(sW)}, {w}\ns_cmov_b32 {sr(sL)}, {enc[w]}' if w else f's_mov_b32 {sr(sL)}, {enc[0]}')
        k(f's_mov_b32 {sr(sPEND)}, 0\ns_mov_b32 {sr(sFLAG)}, 0')
        if self.o.get('prio', True):
            L = k.label('np')
            k(f's_and_b32 s55, {sr(sL)}, 3\ns_cmp_lg_u32 s55, 1\ns_cbranch_scc1 {L}\ns_setprio 2\n{L}:')
        k.wait('xnl', 'saw', 'wrd')
        k('s_barrier')
        self.stamp('xnl')
        Lu, Lloop, Ltail, Ldone = k.label('unit'), k.label('cl'), k.label('ct'), k.label('cdone')
        k(f'''
        {Lu}:
        s_and_b32 s55, {sr(sL)}, 15
        s_sub_u32 s55, s55, 1
        s_and_b32 {sr(sG)}, s55, 3
        s_lshr_b32 {sr(sC)}, s55, 2
        s_lshr_b32 {sr(sL)}, {sr(sL)}, 4
        s_mul_i32 s55, {sr(sG)}, 3072
        s_lshl_b32 s56, {sr(sC)}, 4
        s_add_u32 s55, s55, s56
        v_add_u32 {vr(vH)}, s55, {vr(vHB)}
        v_add_u32 v8, s55, {vr(vXB)}
        s_mul_i32 s56, {sr(sC)}, {KAS}
        v_add_u32 {vr(vK)}, s56, {vr(vKB)}
        ''')
        hs = lambda m: H + 4 * (m % 8)
        inloop = [False]
        ks = lambda q: KF + 4 * (q % 4)

        def ldh(slot_m, base, off):
            if self.o.get('x_cnoh') and base == vH and inloop[0]:
                return
            k(f'ds_read_b64_tr_b16 {vr(hs(slot_m), 2)}, {vr(base)} offset:{off}')
            k(f'ds_read_b64_tr_b16 {vr(hs(slot_m) + 2, 2)}, {vr(base)} offset:{off + 96}')

        def ldk(q, off):
            if self.o.get('x_cnok') and inloop[0]:
                return
            k(f'ds_read_b64_tr_b16 {vr(ks(q), 2)}, {vr(vK)} offset:{off + 32}')
            k(f'ds_read_b64_tr_b16 {vr(ks(q) + 2, 2)}, {vr(vK)} offset:{off}')

        def mf(acc, m, q, zero=False):
            c = '0' if zero else vr(acc, 4)
            k(f'v_mfma_f32_16x16x32_bf16 {vr(acc, 4)}, {vr(hs(m), 4)}, {vr(ks(q), 4)}, {c}')

        ldk(0, 0)
        for i in (7, 6, 5, 4, 3, 2, 1, 0):
            ldh(i, vH, 384 * i)
        ldk(1, 256)
        k(f'''
        v_subrev_u32 v11, 768, {vr(vH)}
        v_subrev_u32 {vr(vH)}, 3840, {vr(vH)}
        s_lshl_b32 s55, {sr(sC)}, 13
        s_lshl_b32 s56, {sr(sG)}, 11
        s_add_u32 s55, s55, s56
        s_add_u32 s55, s55, {SA}
        v_lshl_add_u32 {vr(vSB)}, v0, 2, s55
        s_add_u32 s56, s56, {MSL}
        v_lshl_add_u32 v22, v0, 2, s56
        v_mov_b32 {vr(AX)}, 0
        v_mov_b32 {vr(AX + 1)}, 0
        v_mov_b32 {vr(AX + 2)}, 0
        v_mov_b32 {vr(AX + 3)}, 0
        s_mov_b32 {sr(sN)}, {sr(sG)}
        ''')
        mf(ACC + 28, 7, 0, True)
        mf(ACC + 24, 6, 0, True)
        ldh(6, 11, 0)
        ldh(7, 11, 384)
        for i in (5, 4, 3, 2, 1, 0):
            mf(ACC + 4 * i, i, 0, True)
        if not self.o.get('x_cnow'):
            self.wunits(3, 40, 6)
        k(f's_cmp_eq_u32 {sr(sN)}, 0\ns_cbranch_scc1 {Ltail}')
        k(f'{Lloop}:')
        inloop[0] = True
        for u in range(1, 5):
            mf(ACC + 28, 7 - 2 * u, u)
            mf(ACC + 24, 6 - 2 * u, u)
            ldh(6 - 2 * u, vH, 384 * (8 - 2 * u))
            ldh(7 - 2 * u, vH, 384 * (9 - 2 * u))
            ldk(u + 1, 256 * (u + 1))
            for i in (5, 4, 3, 2, 1, 0):
                mf(ACC + 4 * i, i - 2 * u, u)
            mf(AX, 1 - 2 * u, u - 1)
        inloop[0] = False
        Lnp = k.label('nopend')
        if not self.o.get('x_cnow'):
            self.wunits(2, 40, 6)
        k(f'''
        v_subrev_u32 {vr(vH)}, 3072, {vr(vH)}
        v_add_u32 {vr(vK)}, 1024, {vr(vK)}
        s_cmp_eq_u32 {sr(sPEND)}, 0
        s_cbranch_scc1 {Lnp}
        s_mov_b32 {sr(sPEND)}, 0
        ''')
        self.stamp('p0a')
        k(f'''
        s_waitcnt vmcnt(0)
        s_lshl_b32 s55, {sr(sI)}, 1
        s_and_b32 s56, {sr(sW)}, 1
        s_add_u32 s55, s55, s56
        s_and_b32 s55, s55, 15
        ''')
        self.arrive(SYNC2A, 16, 's55', 9)
        self.stamp('pub0')
        k(f'''
        {Lnp}:
        s_sub_u32 {sr(sN)}, {sr(sN)}, 1
        s_cmp_lg_u32 {sr(sN)}, 0
        s_cbranch_scc1 {Lloop}
        {Ltail}:
        global_load_dword v17, v88, {P2(pWS)} sc1
        global_load_dword v23, v88, {P2(pWS)} offset:1024 sc1
        global_load_dwordx2 v[12:13], v90, {P2(pWS)} sc1
        global_load_dwordx2 v[14:15], v90, {P2(pWS)} offset:2560 sc1
        ''')
        ldk(2, 512)
        for i in (7, 6, 5, 4, 3, 2):
            mf(ACC + 4 * i, i - 2, 1)
        ldk(3, 768)
        k(f'ds_read_b64_tr_b16 {vr(XV, 2)}, v8')
        k(f'ds_read_b64_tr_b16 {vr(XV + 2, 2)}, v8 offset:1536')
        for i in range(4):
            k(f'ds_read2st64_b32 {vr(SV + 2 * i, 2)}, {vr(vSB)} offset0:{2 * i} offset1:{2 * i + 1}')
        for i in range(4):
            k(f'ds_read2st64_b32 {vr(MV + 2 * i, 2)}, v22 offset0:{2 * i} offset1:{2 * i + 1}')
        for i in (7, 6, 5, 4):
            mf(ACC + 4 * i, i - 4, 2)
        for i in (7, 6):
            mf(ACC + 4 * i, i - 6, 3)
        self.stamp('c_mm')
        Lc = k.label('hc')
        k(f's_cmp_lg_u32 {sr(sFLAG)}, 0\ns_cbranch_scc1 {Lc}')
        self.stamp('c1a')
        self.conv_consts()
        self.stamp('c1b')
        k(f'{Lc}:')
        k(f'''
        s_mov_b32 {sr(sFLAG)}, 1
        s_cmp_eq_u32 {sr(sC)}, 1
        s_cselect_b32 s55, {sr(sCH + 3)}, {sr(sCH)}
        s_cselect_b32 s56, {sr(sCH + 4)}, {sr(sCH + 1)}
        s_cselect_b32 s57, {sr(sCH + 5)}, {sr(sCH + 2)}
        s_cmp_eq_u32 {sr(sC)}, 2
        s_cselect_b32 s55, {sr(sCH + 6)}, s55
        s_cselect_b32 s56, {sr(sCH + 7)}, s56
        s_cselect_b32 s57, {sr(sCH + 8)}, s57
        s_add_u32 s58, {sr(sD0)}, {sr(sC)}
        s_lshl_b32 s58, s58, 12
        s_lshl_b32 s59, {sr(sG)}, 10
        s_add_u32 s58, s58, s59
        s_add_u32 s59, s58, {X1S}
        s_add_u32 s58, s58, {X1T}
        v_lshlrev_b32 {vr(vO)}, 4, v0
        ''')
        SH = 'wave_shr:1 row_mask:0xf bank_mask:0xf'
        RO = 'wave_ror:1 row_mask:0xf bank_mask:0xf'
        a = lambda i, e: (AX if i < 0 else ACC + 4 * i) + e
        t2 = lambda i: TT + 1 + i
        t1 = lambda i: TT + 11 + i
        k(f'v_add_f32_dpp {vr(t2(-1))}, {vr(a(-1, 3))}, {vr(a(-1, 2))} {SH} bound_ctrl:0')
        for i in range(8):
            k(f'v_add_f32_dpp {vr(t2(i))}, {vr(a(i - 1, 3))}, {vr(a(i, 2))} {RO}')
        for i in range(8):
            k(f'v_add_f32_dpp {vr(t2(i))}, {vr(a(i, 3))}, {vr(a(i, 2))} {SH}')
        k(f'v_add_f32_dpp {vr(t1(-1))}, {vr(t2(-1))}, {vr(a(-1, 1))} {SH} bound_ctrl:0')
        for i in range(8):
            k(f'v_add_f32_dpp {vr(t1(i))}, {vr(t2(i - 1))}, {vr(a(i, 1))} {RO}')
        for i in range(8):
            k(f'v_add_f32_dpp {vr(t1(i))}, {vr(t2(i))}, {vr(a(i, 1))} {SH}')
        for i in range(8):
            k(f'v_add_f32_dpp {vr(a(i, 3))}, {vr(t1(i - 1))}, {vr(a(i, 0))} {RO}')
        for i in range(8):
            k(f'v_add_f32_dpp {vr(a(i, 3))}, {vr(t1(i))}, {vr(a(i, 0))} {SH}')
        for i in range(8):
            xr = XV + i // 2
            if i % 2 == 0:
                k(f'v_lshlrev_b32 {vr(t1(i))}, 16, {vr(xr)}')
            else:
                k(f'v_and_b32 {vr(t1(i))}, 0xffff0000, {vr(xr)}')
            k(f'v_lshlrev_b32 {vr(t2(i))}, 16, {vr(MV + i)}')
            k(f'v_and_b32 {vr(MV + i)}, 0xffff0000, {vr(MV + i)}')
            k(f'v_fmac_f32 {vr(t2(i))}, s56, {vr(SV + i)}')
            k(f'v_fmac_f32 {vr(t2(i))}, {vr(t1(i))}, {vr(MV + i)}')
        for i in range(8):
            k(f'v_fmac_f32 {vr(t2(i))}, s55, {vr(a(i, 3))}')
        for i in range(4):
            k(f'v_cvt_pk_bf16_f32 {vr(XV + i)}, {vr(t2(2 * i))}, {vr(t2(2 * i + 1))}')
        for i in range(8):
            k(f'v_mul_f32 {vr(t2(i))}, s57, {vr(t2(i))}')
        k(f'buffer_store_dwordx4 {vr(XV, 4)}, {vr(vO)}, {P4(rWS)}, s58 offen sc1', tag='x1st')
        for i in range(4):
            k(f'v_cvt_pk_bf16_f32 {vr(SV + i)}, {vr(t2(2 * i))}, {vr(t2(2 * i + 1))}')
        k(f'buffer_store_dwordx4 {vr(SV, 4)}, {vr(vO)}, {P4(rWS)}, s59 offen sc1', tag='x1st')
        Ln = k.label('ng0')
        k(f'''
        s_cmp_lg_u32 {sr(sG)}, 0
        s_cbranch_scc1 {Ln}
        s_mov_b32 {sr(sPEND)}, 1
        s_and_b32 s55, {sr(sL)}, 3
        s_cmp_eq_u32 s55, 1
        s_cbranch_scc1 {Ln}
        s_setprio 0
        {Ln}:
        s_and_b32 s55, {sr(sL)}, 15
        s_cmp_lg_u32 s55, 0
        s_cbranch_scc1 {Lu}
        ''')
        self.stamp('conv')

    def window2(self):
        k = self.k
        AC, TF, CB = 32, 16, 92
        Lr, Ld = k.label('tb'), k.label('tbd')
        chk = f'''
        v_min_u32 v16, v12, v13
        v_min3_u32 v16, v16, v14, v15
        v_cmp_eq_u32 vcc, 0, v16
        s_cbranch_vccz {Ld}
        '''
        k(chk)
        k(f'''
        {Lr}:
        global_load_dwordx2 v[12:13], v90, {P2(pWS)} sc1
        global_load_dwordx2 v[14:15], v90, {P2(pWS)} offset:2560 sc1
        ''')
        k(chk)
        k(f'''
        s_sleep {self.o.get('sleep', 2)}
        s_add_u32 {sr(sSPIN)}, {sr(sSPIN)}, 1
        s_cmp_lt_u32 {sr(sSPIN)}, {SPIN_MAX}
        s_cbranch_scc1 {Lr}
        {Ld}:
        v_and_b32 v14, 0xffff0000, v14
        v_and_b32 v15, 0xffff0000, v15
        v_add_f32 v14, 1.0, v14
        v_add_f32 v15, 1.0, v15
        s_mov_b32 s55, 0x07060302
        v_cvt_pk_bf16_f32 v14, v14, v15
        v_perm_b32 v12, v13, v12, s55
        v_lshlrev_b32 v20, 2, v89
        v_add_u32 v20, {TAB}, v20
        ''')
        k(f'ds_write_b32 v20, v14', tag='tabw')
        k(f'ds_write_b32 v20, v12 offset:1280', tag='tabw')
        k(f'''
        v_and_b32 v8, 1, v0
        v_mul_u32_u24 v8, 1280, v8
        v_lshrrev_b32 v9, 5, v0
        v_lshl_add_u32 v8, v9, 4, v8
        v_add_u32 v8, {TAB}, v8
        ''')
        self.g1_setup()
        L = self.only_wave(0)
        self.poll_addr(SYNC2A, 16, 7)
        self.poll(7, 6, 27, nl=16)
        k(f'{L}:')
        k.wait('wst', 'tabw')
        k('s_barrier')
        self.stamp('barX')
        if self.o['stop'] != 'conv':
            for c in range(2):
                for i in range(2):
                    self.g1_dma(c, i)

        def half(h):
            for s in range(4):
                k(f'ds_read_b128 {vr(TF + 4 * s, 4)}, v8 offset:{32 * (20 * h + s)}')
            for s in range(20):
                c = '0' if s == 0 else vr(AC, 16)
                k(f'v_mfma_f32_32x32x16_bf16 {vr(AC, 16)}, {vr(TF + 4 * (s % 4), 4)}, {vr(WF + 4 * (20 * h + s), 4)}, {c}')
                if s + 4 < 20:
                    k(f'ds_read_b128 {vr(TF + 4 * (s % 4), 4)}, v8 offset:{32 * (20 * h + s + 4)}')
        L1, L2 = k.label('cs1'), k.label('cs2')
        k(f's_cmp_ge_u32 {sr(sW)}, 4\ns_cbranch_scc1 {L1}')
        half(0)
        self.wread_addr(10)
        self.wstage_read(1, 10)
        k(f's_branch {L2}\n{L1}:')
        self.wread_addr(10)
        self.wstage_read(1, 10)
        half(1)
        k(f'''
        {L2}:
        s_lshl_b32 s55, {sr(sW)}, 9
        v_lshl_add_u32 v8, v0, 3, s55
        s_xor_b32 s55, s55, 2048
        v_lshl_add_u32 v9, v0, 3, s55
        ''')
        k(f'ds_write_b64 v8, {vr(AC, 2)} offset:{EXC}', tag='excw')
        k.wait('x1st', 'excw', 'wrd', 'ch0')
        k('s_barrier')
        self.stamp('barY')
        L = self.only_wave(0)
        k(f'''
        s_mul_i32 s55, {sr(sQ)}, 0x5556
        s_lshr_b32 s55, s55, 16
        s_mul_i32 s55, s55, 3
        s_sub_u32 s55, {sr(sQ)}, s55
        s_lshl_b32 s55, s55, 3
        s_add_u32 s55, s55, {sr(sMB)}
        ''')
        self.arrive(SYNC2B, 24, 's55', 16)
        k(f'{L}:')
        k(f'''
        ds_read_b64 v[10:11], v9 offset:{EXC}
        v_cmp_gt_u32 vcc, 32, v0
        v_mov_b32 {vr(CB + 2)}, 0
        v_mov_b32 {vr(CB + 3)}, 0
        v_add_f32 v10, v10, {vr(AC)}
        v_add_f32 v11, v11, {vr(AC + 1)}
        v_cvt_pk_bf16_f32 v12, v10, v11
        v_lshlrev_b32 v13, 16, v12
        v_and_b32 v14, 0xffff0000, v12
        v_sub_f32 v10, v10, v13
        v_sub_f32 v11, v11, v14
        v_cvt_pk_bf16_f32 v10, v13, v10
        v_cvt_pk_bf16_f32 v11, v14, v11
        v_cndmask_b32 {vr(CB)}, 0, v10, vcc
        v_cndmask_b32 {vr(CB + 1)}, 0, v11, vcc
        ''')

    def g1_setup(self):
        self.k(f'''
        v_lshrrev_b32 v12, 3, v0
        v_lshlrev_b32 v1, 12, v12
        v_bfe_u32 v12, v0, 4, 1
        v_lshlrev_b32 v12, 2, v12
        v_and_b32 v13, 7, v0
        v_xor_b32 v12, v12, v13
        v_lshl_add_u32 v1, v12, 4, v1
        s_lshl_b32 s66, {sr(sW)}, 16
        s_lshl_b32 s55, {sr(sM1)}, 7
        s_add_u32 s66, s66, s55
        s_add_u32 s66, s66, {X1S}
        s_lshl_b32 s67, {sr(sW)}, 11
        ''')
        self.g2_setup()

    def g1_dma(self, c, i):
        k = self.k
        slot = c % NS
        t, cc = divmod(c, 5)
        if self.o.get('x_nodma') and c >= 5:
            return
        k(f's_add_u32 m0, s67, {RING + slot * 16384 + i * 1024}')
        k(f's_add_u32 s3, s66, {t * 1024 + (cc * 128 + 8 * i) * 4096}')
        k(f'buffer_load_dwordx4 v1, {P4(rWS)}, s3 offen sc1 lds', tag=f'ch{c}')

    def g2_dma(self, j, i):
        k = self.k
        L = None
        if i == 3:
            L = k.label('g2d')
            k(f's_cmp_ge_u32 {sr(sW)}, 6\ns_cbranch_scc1 {L}')
        k(f'''
        s_add_u32 s3, s60, {j * G2S}
        s_sub_u32 s59, s3, {9 * G2S}
        s_cselect_b32 s3, s3, s59
        s_add_u32 s3, s3, s63
        s_add_u32 m0, s64, {G2SLOT[j % 5] + i * 8192}
        s_add_u32 s3, s3, {i * 8192}
        ''')
        k(f'buffer_load_dwordx4 v4, {P4(rWS)}, s3 offen sc1 lds', tag=f'wd{j}')
        if L:
            k(f'{L}:')

    def g2_setup(self):
        k = self.k
        k(f'''
        s_lshr_b32 s55, s2, 3
        s_and_b32 s61, s55, 7
        s_lshr_b32 s55, s55, 3
        s_lshl_b32 s55, s55, 3
        s_add_u32 s62, s55, {sr(sMB)}
        s_lshl_b32 s64, {sr(sW)}, 10
        s_mul_i32 s63, s61, {54 * 5120}
        s_add_u32 s63, s63, {WD}
        s_add_u32 s63, s63, s64
        v_lshlrev_b32 v4, 4, v0
        s_lshr_b32 s55, s55, 2
        s_add_u32 s55, s55, s61
        s_sub_u32 s56, s55, 9
        s_cselect_b32 s55, s55, s56
        s_mul_i32 s55, s55, {self.o.get('rot', 1)}
        s_mul_i32 s60, s55, {G2S}
        s_mul_i32 s90, s55, 12288
        ''')

    def g1(self):
        k = self.k
        TF, CB = 16, 92
        ACC = [32, 48, 64]
        vRA, vRB, vST, vSTA, vPA, vPD = 2, 3, 5, 6, 7, 8
        K1, K2, S2 = 9, 10, 11
        BF = 12
        ET = 80
        OUTR = 88
        k(f'''
        v_lshrrev_b32 v8, 5, v0
        v_bfe_u32 v9, v0, 2, 2
        v_lshl_add_u32 v8, v8, 3, v9
        v_lshlrev_b32 {vr(vRA)}, 7, v8
        v_lshrrev_b32 v9, 1, v9
        s_lshr_b32 s55, {sr(sW)}, 2
        v_xor_b32 v9, s55, v9
        v_lshl_add_u32 {vr(vRA)}, v9, 6, {vr(vRA)}
        v_bfe_u32 v9, v0, 4, 1
        v_lshl_add_u32 {vr(vRA)}, v9, 5, {vr(vRA)}
        v_and_b32 v9, 3, v0
        v_lshl_add_u32 {vr(vRA)}, v9, 3, {vr(vRA)}
        v_add_u32 {vr(vRA)}, {RING}, {vr(vRA)}
        v_add_u32 {vr(vRB)}, {3 * 16384}, {vr(vRA)}
        s_lshl_b32 s56, {sr(sM1)}, 6
        s_lshl_b32 s57, s55, 5
        s_add_u32 s56, s56, s57
        v_and_b32 v9, 31, v0
        v_add_u32 v9, s56, v9
        v_lshlrev_b32 v9, 2, v9
        v_add_u32 {vr(vSTA)}, {STATS}, v9
        s_lshl_b32 s56, {sr(sM1)}, 1
        s_add_u32 s56, s56, s55
        s_mul_i32 s56, s56, 108
        s_lshl_b32 s57, {sr(sNB)}, 2
        s_add_u32 s56, s56, s57
        s_and_b32 s57, {sr(sW)}, 3
        s_add_u32 s56, s56, s57
        s_lshl_b32 s56, s56, 10
        s_add_u32 s65, s56, {ACT}
        v_mov_b32 {vr(BF + 2)}, 0
        v_mov_b32 {vr(BF + 3)}, 0
        ''')
        self.poll_addr(SYNC2B, 24, vPA)

        def rd(sig):
            c, s8 = divmod(sig, 8)
            slot = c % NS
            base, off = (vRA, slot * 16384) if slot < 3 else (vRB, (slot - 3) * 16384)
            off += s8 * 2048
            r = TF + 4 * (sig % 4)
            if self.o.get('x_nord') and sig >= 4:
                return
            if self.o.get('x_b128'):
                k(f'ds_read_b128 {vr(r, 4)}, v4 offset:{off % 32768}')
                return
            k(f'ds_read_b64_tr_b16 {vr(r, 2)}, {vr(base)} offset:{off}')
            k(f'ds_read_b64_tr_b16 {vr(r + 2, 2)}, {vr(base)} offset:{off + 512}')

        C1 = -2 * LOG2E * math.sqrt(2 / math.pi) * 0.044715
        C2 = -2 * LOG2E * math.sqrt(2 / math.pi)

        def epi_ops(t):
            acc = ACC[t % 3]
            ops = []

            def head():
                self.poll(vSTA, vST, '0x10000', preissued=True, off=2048 * (t & 1))
                k(f'''
                s_mov_b32 s55, 0x01000100
                s_mov_b32 s56, 0x03020302
                v_perm_b32 {vr(BF)}, {vr(vST)}, {vr(vST)}, s55
                v_perm_b32 {vr(BF + 1)}, {vr(vST)}, {vr(vST)}, s56
                v_xor_b32 {vr(BF)}, 0x80008000, {vr(BF)}
                v_and_b32 {vr(S2)}, 0xffff0000, {vr(vST)}
                v_rcp_f32 {vr(K2)}, {vr(S2)}
                v_mfma_f32_32x32x16_bf16 {vr(acc, 16)}, {vr(CB, 4)}, {vr(BF, 4)}, {vr(acc, 16)}
                ''')
            ops.append(head)
            ops.append(lambda: k(f'''
                v_mul_f32 {vr(S2)}, {vr(S2)}, {vr(S2)}
                v_mul_f32 {vr(K1)}, {vr(K2)}, {vr(K2)}
                v_mul_f32 {vr(K2)}, {f32(C2)}, {vr(K2)}
                '''))
            ops.append(lambda: k(f'''
                v_mul_f32 {vr(K1)}, {f32(0.044715)}, {vr(K1)}
                v_mul_f32 {vr(K1)}, {vr(K1)}, {vr(K2)}
                '''))
            ops.append(lambda: None)
            for p in range(4):
                i0, i1 = 2 * p, 2 * p + 1
                g0, g1_, u0, u1 = acc + i0, acc + i1, acc + 8 + i0, acc + 8 + i1
                t0, t1 = ET + 2 * (p % 2), ET + 2 * (p % 2) + 1
                ops.append(lambda g0=g0, g1_=g1_, t0=t0, t1=t1: k(f'''
                    v_mul_f32 {vr(t0)}, {vr(g0)}, {vr(g0)}
                    v_mul_f32 {vr(t1)}, {vr(g1_)}, {vr(g1_)}
                    v_fma_f32 {vr(t0)}, {vr(t0)}, {vr(K1)}, {vr(K2)}
                    '''))
                ops.append(lambda g0=g0, g1_=g1_, t0=t0, t1=t1: k(f'''
                    v_fma_f32 {vr(t1)}, {vr(t1)}, {vr(K1)}, {vr(K2)}
                    v_mul_f32 {vr(t0)}, {vr(t0)}, {vr(g0)}
                    v_mul_f32 {vr(t1)}, {vr(t1)}, {vr(g1_)}
                    '''))
                ops.append(lambda g0=g0, u0=u0, t0=t0, t1=t1: k(f'''
                    v_exp_f32 {vr(t0)}, {vr(t0)}
                    v_exp_f32 {vr(t1)}, {vr(t1)}
                    '''))
                ops.append(lambda g0=g0, g1_=g1_, u0=u0, u1=u1, t0=t0, t1=t1: k(f'''
                    v_mul_f32 {vr(u0)}, {vr(u0)}, {vr(g0)}
                    v_fma_f32 {vr(t0)}, {vr(t0)}, {vr(S2)}, {vr(S2)}
                    v_fma_f32 {vr(t1)}, {vr(t1)}, {vr(S2)}, {vr(S2)}
                    '''))
                ops.append(lambda t0=t0, t1=t1: k(f'''
                    v_rcp_f32 {vr(t0)}, {vr(t0)}
                    v_rcp_f32 {vr(t1)}, {vr(t1)}
                    '''))
                ops.append(lambda g1_=g1_, u0=u0, u1=u1, t0=t0, t1=t1, p=p: k(f'''
                    v_mul_f32 {vr(u1)}, {vr(u1)}, {vr(g1_)}
                    v_mul_f32 {vr(u0)}, {vr(u0)}, {vr(t0)}
                    v_mul_f32 {vr(u1)}, {vr(u1)}, {vr(t1)}
                    v_cvt_pk_bf16_f32 {vr(OUTR + p)}, {vr(u0)}, {vr(u1)}
                    '''))

            def fin():
                k(f's_add_u32 s3, s65, {t * 16 * 108 * 1024}')
                k(f'buffer_store_dwordx4 {vr(OUTR, 4)}, v4, {P4(rWS)}, s3 offen sc1', tag=f'act{t}')
            ops.append(fin)
            return ops

        def publish(t):
            L = self.only_wave(0)
            k(f'''
            s_add_u32 s55, {sr(sM1)}, {8 * t}
            s_lshl_b32 s55, s55, 7
            s_add_u32 s55, s55, {SYNC3}
            v_mov_b32 {vr(ET + 4)}, s55
            v_mov_b32 {vr(ET + 5)}, 1
            s_mov_b64 exec, 1
            global_atomic_add {vr(ET + 4)}, {vr(ET + 5)}, {P2(pWS)} sc1
            s_mov_b64 exec, -1
            {L}:
            ''')

        epi_start = self.o.get('epi_start', [44, 84, 124, 160])
        epi_rate = self.o.get('epi_rate', [1, 1, 1, 1])
        stat_ld = {max(0, s - self.o.get('stat_pre', 22)): t for t, s in enumerate(epi_start)}
        todo = {}
        for t in range(3):
            ops = epi_ops(t)
            sig = epi_start[t]
            while ops:
                for _ in range(epi_rate[t]):
                    if ops:
                        todo.setdefault(sig, []).append(ops.pop(0))
                sig += 1
            assert sig <= 160 and (t == 2 or sig <= epi_start[t + 1]), (t, sig)
            assert t + 3 >= 4 or sig <= 40 * (t + 3)
            todo.setdefault('done', {})[t] = sig
        done_at = todo.pop('done')
        pub_at = {}
        for t in range(3):
            s = done_at[t] + self.o.get('pub_lag', 24)
            s = ((s - 3 + 7) // 8) * 8 + 3
            pub_at.setdefault(min(s, 163), []).append(t)
        B2 = self.o.get('b2_chunk', 2)
        self.stamp('g1go')
        for sig in range(4):
            rd(sig)
        issued = 5
        dq = [lambda c=c, i=i: self.g1_dma(c, i) for c in (2, 3, 4) for i in range(2)]
        g2at = {17: [(2, i) for i in range(4)], 19: [(3, i) for i in range(4)]}
        for n in range(8):
            g2at[B2 + 3 + n] = [(n // 4, n % 4)]
        for sig in range(160):
            t, s = divmod(sig, 40)
            c = sig // 8
            acc = ACC[t % 3]
            cop = '0' if s == 0 else vr(acc, 16)
            k(f'v_mfma_f32_32x32x16_bf16 {vr(acc, 16)}, {vr(WF + 4 * s, 4)}, {vr(TF + 4 * (sig % 4), 4)}, {cop}')
            if sig == 8 * B2 + 3 - self.o.get('b2_pre', 8):
                L = self.only_wave(0)
                self.poll_issue(vPA, vPD, 24)
                k(f'{L}:')
            if sig % 8 == 3:
                if c == B2:
                    L = self.only_wave(0)
                    self.poll(vPA, vPD, 9, preissued=True, nl=24)
                    self.poll_addr(SYNCW, 4, vPA)
                    self.poll_issue(vPA, vPD, 4)
                    k(f'{L}:')
                if c == B2 + 2:
                    L = self.only_wave(0)
                    self.poll(vPA, vPD, 10, preissued=True, nl=4)
                    k(f'{L}:')
                w = [f'ch{c + 1}'] if c + 1 < 20 else []
                w += [f'act{tt}' for tt in pub_at.get(sig, [])]
                if w and not self.o.get('x_nowait'):
                    k.wait(*w)
                if not self.o.get('x_nobar') or c in (B2, B2 + 2):
                    k('s_barrier')
                for tt in pub_at.get(sig, []):
                    publish(tt)
                if c >= B2:
                    while issued < 20 and issued <= c - 1 + NS:
                        dq += [lambda c=issued, i=i: self.g1_dma(c, i) for i in range(2)]
                        issued += 1
                if c in g2at and not self.o.get('x_nog2d'):
                    dq += [lambda j=j, i=i: self.g2_dma(j, i) for j, i in g2at[c]]
            elif dq:
                dq.pop(0)()
            if sig + 4 < 160:
                rd(sig + 4)
            if sig in stat_ld:
                tt = stat_ld[sig]
                if tt == 2:
                    k(f'v_add_u32 {vr(vSTA)}, 4096, {vr(vSTA)}')
                k(f'global_load_dword {vr(vST)}, {vr(vSTA)}, {P2(pWS)} offset:{2048 * (tt & 1)} sc1')
            for op in todo.get(sig, []):
                if not self.o.get('x_noepi'):
                    op()
            if sig % 40 == 39:
                self.stamp(f't{t}')
        assert not dq
        k('s_barrier')
        for op in epi_ops(3):
            op()
        for i in range(4):
            self.g2_dma(4, i)
        self.resid_dma()
        k.wait('act3', *[f'act{tt}' for tt in pub_at.get(163, [])])
        k('s_barrier')
        for tt in pub_at.get(163, []) + [3]:
            publish(tt)
        self.stamp('g1end')

    def resid_dma(self):
        k = self.k
        k(f'''
        v_lshrrev_b32 v8, 3, v0
        v_lshlrev_b32 v8, 12, v8
        v_and_b32 v9, 7, v0
        v_lshl_add_u32 v8, v9, 4, v8
        s_mul_i32 s55, s61, 80
        s_lshl_b32 s56, {sr(sW)}, 3
        s_add_u32 s55, s55, s56
        s_lshl_b32 s55, s55, 12
        s_lshl_b32 s56, s62, 7
        s_add_u32 s55, s55, s56
        s_add_u32 s55, s55, {X1T}
        s_add_u32 m0, s64, {RESID}
        ''')
        k(f'buffer_load_dwordx4 v8, {P4(rWS)}, s55 offen sc1 lds', tag='resid')
        L = k.label('rs')
        k(f'''
        s_cmp_ge_u32 {sr(sW)}, 2
        s_cbranch_scc1 {L}
        s_add_u32 m0, s64, {RESID + 8192}
        s_add_u32 s55, s55, {64 * 4096}
        ''')
        k(f'buffer_load_dwordx4 v8, {P4(rWS)}, s55 offen sc1 lds', tag='resid')
        k(f'{L}:')

    def g2(self):
        k = self.k
        AF, WB, ACC, GB = 96, 16, 56, 204
        k('L_g2:')
        k(f'''
        s_and_b32 s55, {sr(sW)}, 3
        s_lshr_b32 s56, {sr(sW)}, 2
        v_lshrrev_b32 v8, 5, v0
        v_lshlrev_b32 v1, 10, v8
        v_bfe_u32 v8, v0, 4, 1
        v_lshl_add_u32 v1, v8, 9, v1
        v_and_b32 v8, 15, v0
        v_lshl_add_u32 v1, v8, 4, v1
        s_and_b32 s57, s55, 1
        s_lshl_b32 s57, s57, 8
        s_lshr_b32 s58, s55, 1
        s_lshl_b32 s59, s62, 1
        s_add_u32 s58, s58, s59
        s_mul_i32 s58, s58, {108 * 1024}
        s_add_u32 s57, s57, s58
        s_lshl_b32 s58, s56, 11
        s_add_u32 s57, s57, s58
        s_add_u32 s65, s57, {ACT}
        s_mul_i32 s57, s56, 5120
        v_add_u32 v2, s57, v4
        v_add_u32 v3, {G2SLOT[4]}, v2
        v_add_u32 v5, {G2SLOT[1]}, v2
        v_add_u32 v2, {G2SLOT[2]}, v2
        s_lshl_b32 s57, s62, 7
        s_add_u32 s57, s57, {SYNC3}
        v_mov_b32 v6, s57
        s_mul_i32 s57, s61, 320
        s_mul_i32 s58, s56, 192
        s_add_u32 s57, s57, s58
        s_add_u32 s57, s57, {MOD + 5 * 2560}
        v_lshrrev_b32 v8, 4, v0
        v_lshl_add_u32 v9, v8, 4, s57
        ''')
        for j in range(3):
            k(f'global_load_dwordx4 {vr(GB + 4 * j, 4)}, v9, {P2(pWS)} offset:{64 * j} sc1')
        L = self.only_wave(0)
        self.poll(6, 7, 27, nl=1)
        k(f'{L}:')
        k.wait('wd0')
        k('s_barrier')
        self.stamp('s3')
        LA = self.o.get('la', 4)

        def lda(i):
            k(f'''
            s_add_u32 s3, s90, {i * 4096}
            s_sub_u32 s59, s3, {27 * 4096}
            s_cselect_b32 s3, s3, s59
            s_add_u32 s3, s3, s65
            buffer_load_dwordx4 {vr(AF + 4 * i, 4)}, v1, {P4(rWS)}, s3 offen sc1
            ''')

        def rdw(i):
            j, ii = divmod(i, 3)
            base, off = {0: (3, G2S), 1: (5, 0), 2: (2, 0), 3: (2, G2S), 4: (3, 0)}[j % 5]
            off += ii * 10240
            for f in range(5):
                k(f'ds_read_b128 {vr(WB + 20 * (i % 2) + 4 * f, 4)}, v{base} offset:{off + 1024 * f}')

        for i in range(LA):
            lda(i)
        rdw(0)
        dq = []
        for i in range(27):
            j, ii = divmod(i, 3)
            if ii == 2 and j < 8:
                k.wait(f'wd{j + 1}')
                k('s_barrier')
                if 1 <= j <= 4:
                    dq += [lambda j=j, q=q: self.g2_dma(j + 4, q) for q in range(4)]
            if i + 1 < 27:
                rdw(i + 1)
            for f in range(5):
                c = '0' if i == 0 else vr(ACC + 4 * f, 4)
                k(f'v_mfma_f32_16x16x32_bf16 {vr(ACC + 4 * f, 4)}, {vr(WB + 20 * (i % 2) + 4 * f, 4)}, {vr(AF + 4 * i, 4)}, {c}')
                if f == 0 and i + LA < 27:
                    lda(i + LA)
                if f in (2, 4) and dq:
                    dq.pop(0)()
        self.stamp('g2m')
        k(f'''
        s_mul_i32 s57, {sr(sW)}, 3072
        s_add_u32 s57, s57, {G2SLOT[0]}
        v_add_u32 v2, s57, v4
        s_xor_b32 s58, {sr(sW)}, 4
        s_mul_i32 s57, s58, 3072
        s_add_u32 s57, s57, {G2SLOT[0]}
        v_add_u32 v3, s57, v4
        v_lshrrev_b32 v8, 2, v0
        v_lshlrev_b32 v8, 7, v8
        v_and_b32 v9, 3, v0
        v_lshl_add_u32 v8, v9, 3, v8
        s_lshl_b32 s57, s55, 5
        s_mul_i32 s58, s56, 6144
        s_add_u32 s57, s57, s58
        s_add_u32 s57, s57, {RESID}
        v_add_u32 v8, s57, v8
        v_and_b32 v9, 15, v0
        s_lshl_b32 s57, s55, 4
        v_add_u32 v9, s57, v9
        v_and_b32 v10, 7, v9
        v_lshrrev_b32 v9, 3, v9
        v_lshl_add_u32 v9, v10, 6, v9
        s_lshr_b32 s57, s62, 3
        s_lshl_b32 s57, s57, 9
        s_lshl_b32 s58, {sr(sMB)}, 3
        s_add_u32 s57, s57, s58
        v_add_u32 v9, s57, v9
        v_mul_u32_u24 v9, 1280, v9
        v_lshrrev_b32 v10, 4, v0
        v_lshl_add_u32 v9, v10, 3, v9
        s_mul_i32 s57, s61, 160
        s_mul_i32 s58, s56, 96
        s_add_u32 s57, s57, s58
        v_add_u32 v9, s57, v9
        ''')
        L1, L2 = k.label('x1'), k.label('x2')
        k(f's_cmp_lg_u32 s56, 0\ns_cbranch_scc1 {L1}')
        for kh in range(2):
            send = (3, 4) if kh == 0 else (0, 1, 2)
            keep = (0, 1, 2) if kh == 0 else (3, 4)
            if kh:
                k(f'{L1}:')
            for n, f in enumerate(send):
                k(f'ds_write_b128 v2, {vr(ACC + 4 * f, 4)} offset:{1024 * n}', tag='xw')
            k.wait('xw', 'resid')
            k('s_barrier')
            for n, f in enumerate(keep):
                k(f'ds_read_b128 {vr(16 + 4 * n, 4)}, v3 offset:{1024 * n}')
                k(f'ds_read_b64_tr_b16 {vr(28 + 2 * n, 2)}, v8 offset:{2048 * n}')
            for n, f in enumerate(keep):
                for i in range(4):
                    a, g, x = ACC + 4 * f + i, GB + 4 * n + i, 36 + i
                    k(f'v_add_f32 {vr(a)}, {vr(a)}, {vr(16 + 4 * n + i)}')
                    k(f'v_and_b32 {vr(g)}, 0xffff0000, {vr(g)}')
                    if i % 2 == 0:
                        k(f'v_lshlrev_b32 {vr(x)}, 16, {vr(28 + 2 * n + i // 2)}')
                    else:
                        k(f'v_and_b32 {vr(x)}, 0xffff0000, {vr(28 + 2 * n + i // 2)}')
                    k(f'v_fmac_f32 {vr(x)}, {vr(a)}, {vr(g)}')
                k(f'v_cvt_pk_bf16_f32 {vr(40 + 2 * n)}, v36, v37')
                k(f'v_cvt_pk_bf16_f32 {vr(41 + 2 * n)}, v38, v39')
                k(f'global_store_dwordx2 v9, {vr(40 + 2 * n, 2)}, {P2(pOUT)} offset:{32 * n} {self.o.get("outpol", "")}')
            if not kh:
                k(f's_branch {L2}')
        k(f'{L2}:')
        self.stamp('end')

    def strip_reduce(self, nval, V, RED):
        k = self.k
        n = nval
        for i in range(n // 2):
            k(f'v_permlane32_swap_b32 {vr(V + i)}, {vr(V + n // 2 + i)}')
        for i in range(n // 2):
            k(f'v_add_f32 {vr(V + i)}, {vr(V + i)}, {vr(V + n // 2 + i)}')
        n //= 2
        for i in range(n // 2):
            k(f'v_permlane16_swap_b32 {vr(V + i)}, {vr(V + n // 2 + i)}')
        for i in range(n // 2):
            k(f'v_add_f32 {vr(V + i)}, {vr(V + i)}, {vr(V + n // 2 + i)}')
        n //= 2
        for i in range(n):
            k(f'v_add_f32_dpp {vr(V + i)}, {vr(V + i)}, {vr(V + i)} row_ror:8 row_mask:0xf bank_mask:0xf')
        q = nval // 4
        k(f'''
        v_lshrrev_b32 v8, 4, v0
        v_mul_u32_u24 v8, {q}, v8
        v_and_b32 v9, 7, v8
        v_lshrrev_b32 v8, 3, v8
        v_lshl_add_u32 v9, v8, 6, v9
        v_and_b32 v8, 7, v0
        v_lshl_add_u32 v9, v8, 3, v9
        s_mul_i32 s55, {sr(sW)}, {8 * nval}
        v_add_u32 v9, s55, v9
        v_lshlrev_b32 v9, 2, v9
        s_mov_b32 exec_lo, 0x00ff00ff
        s_mov_b32 exec_hi, 0x00ff00ff
        ''')
        if q == 2:
            k(f'ds_write_b64 v9, {vr(V, 2)} offset:{RED}', tag='redw')
        else:
            k(f'ds_write_b128 v9, {vr(V, 4)} offset:{RED}', tag='redw')
        k('s_mov_b64 exec, -1')
        k.wait('redw')
        k('s_barrier')

    def mod_and_wd(self):
        k = self.k
        k(f'''
        s_cmp_lt_u32 s2, 14
        s_cselect_b32 s76, 2, 1
        s_mov_b32 s75, s2
        s_mul_i32 s72, {sr(sW)}, 5120
        s_mul_i32 s71, s75, 40960
        s_add_u32 s71, s71, s72
        s_add_u32 s72, s72, 8192
        v_lshlrev_b32 v21, 4, v0
        ''')
        self.mod_partial()
        k('s_barrier')
        for i in range(10):
            k(f'''
            s_cmp_ge_u32 s76, {1 + i // 5}
            s_cselect_b64 exec, -1, 0
            s_mov_b32 m0, s72
            s_add_u32 s72, s72, {1024 if i != 4 else 40960 - 4096}
            ''')
            k(f'buffer_load_dwordx4 v21, {P4(rB)}, s71 offen {self.o["nt"]} lds', tag='wdl')
            k(f's_mov_b64 exec, -1\ns_add_u32 s71, s71, {1024 if i != 4 else 40 * 40960 - 4096}')
        L = self.only_wave(0)
        self.poll_sync1(215, 58)
        Lr, Ld = k.label('fr'), k.label('fd')
        k(f'''
        s_cmp_ge_u32 s2, 30
        s_cbranch_scc1 {L}
        s_add_u32 s55, s2, 30
        s_lshl_b32 s56, s55, 11
        s_add_u32 s56, s56, {MODP}
        v_lshl_add_u32 v8, v0, 2, s56
        {Lr}:
        ''')
        for e in range(8):
            k(f'global_load_dword {vr(32 + e)}, v8, {P2(pWS)} offset:{256 * e} sc1')
        k(f'''
        v_min3_u32 v40, v32, v33, v34
        v_min3_u32 v40, v40, v35, v36
        v_min3_u32 v40, v40, v37, v38
        v_min_u32 v40, v40, v39
        v_cmp_eq_u32 vcc, 0, v40
        s_cbranch_vccz {Ld}
        s_sleep {self.o.get('sleep', 2)}
        s_add_u32 {sr(sSPIN)}, {sr(sSPIN)}, 1
        s_cmp_lt_u32 {sr(sSPIN)}, {SPIN_MAX}
        s_cbranch_scc1 {Lr}
        {Ld}:
        v_add_f32 v32, v32, v36
        v_add_f32 v33, v33, v37
        v_add_f32 v34, v34, v38
        v_add_f32 v35, v35, v39
        v_add_f32 v32, v32, v33
        v_add_f32 v34, v34, v35
        v_add_f32 v32, v32, v34
        v_cvt_pk_bf16_f32 v32, v32, v32
        v_and_b32 v32, 0xffff0000, v32
        v_or_b32 v32, 1, v32
        s_lshl_b32 s55, s55, 8
        s_add_u32 s55, s55, {MOD}
        v_lshlrev_b32 v8, 2, v0
        buffer_store_dword v32, v8, {P4(rWS)}, s55 offen sc1
        ''')
        self.stamp('h_mod')
        k(f'{L}:')
        Lw, Lwd = k.label('wdl'), k.label('wdd')
        k(f'''
        v_lshrrev_b32 v9, 5, v0
        v_lshlrev_b32 v9, 4, v9
        v_bfe_u32 v10, v0, 2, 3
        v_add_u32 v9, v9, v10
        v_mul_u32_u24 v9, 1280, v9
        v_and_b32 v10, 3, v0
        v_lshl_add_u32 v9, v10, 3, v9
        s_mul_i32 s56, {sr(sW)}, 160
        v_add_u32 v9, s56, v9
        s_mul_i32 s55, {sr(sW)}, {54 * 5120}
        s_mul_i32 s56, s75, 5120
        s_add_u32 s55, s55, s56
        s_add_u32 s55, s55, {WD}
        s_waitcnt vmcnt(0)
        s_barrier
        s_cmp_eq_u32 s76, 0
        s_cbranch_scc1 {Lwd}
        {Lw}:
        ''')
        for j in range(5):
            k(f'ds_read_b64_tr_b16 {vr(32 + 4 * j, 2)}, v9 offset:{8192 + 32 * j}')
            k(f'ds_read_b64_tr_b16 {vr(34 + 4 * j, 2)}, v9 offset:{8192 + 32 * j + 8 * 1280}')
        k('s_add_u32 s56, s55, 4096')
        for j in range(5):
            k(f'buffer_store_dwordx4 {vr(32 + 4 * j, 4)}, v21, {P4(rWS)}, s{55 + j // 4} offen offset:{1024 * (j % 4)} sc1')
        k(f'''
        s_add_u32 s55, s55, {40 * 5120}
        v_add_u32 v9, 40960, v9
        s_sub_u32 s76, s76, 1
        s_cmp_lg_u32 s76, 0
        s_cbranch_scc1 {Lw}
        {Lwd}:
        s_waitcnt vmcnt(0)
        s_barrier
        ''')

    def stats_job(self):
        k = self.k
        LD, V = 96, 32
        k(f'''
        v_lshrrev_b32 v8, 3, v0
        s_mul_i32 s55, {sr(sW)}, 80
        v_add_u32 v8, s55, v8
        v_lshlrev_b32 v8, 12, v8
        v_and_b32 v10, 7, v0
        v_lshl_add_u32 v8, v10, 4, v8
        s_lshl_b32 s55, s2, 7
        s_add_u32 s55, s55, {X1T}
        ''')
        for i in range(10):
            k(f'buffer_load_dwordx4 {vr(LD + 4 * i, 4)}, v8, {P4(rWS)}, s55 offen sc1')
            if i < 9:
                k(f's_add_u32 s55, s55, {8 * 4096}')
        for i in range(10):
            for j in range(4):
                r = LD + 4 * i + j
                if i == 0:
                    k(f'''
                    v_lshlrev_b32 {vr(V + 2 * j)}, 16, {vr(r)}
                    v_and_b32 {vr(V + 2 * j + 1)}, 0xffff0000, {vr(r)}
                    v_mul_f32 {vr(V + 8 + 2 * j)}, {vr(V + 2 * j)}, {vr(V + 2 * j)}
                    v_mul_f32 {vr(V + 9 + 2 * j)}, {vr(V + 2 * j + 1)}, {vr(V + 2 * j + 1)}
                    ''')
                else:
                    k(f'''
                    v_lshlrev_b32 v11, 16, {vr(r)}
                    v_and_b32 v12, 0xffff0000, {vr(r)}
                    v_add_f32 {vr(V + 2 * j)}, {vr(V + 2 * j)}, v11
                    v_add_f32 {vr(V + 2 * j + 1)}, {vr(V + 2 * j + 1)}, v12
                    v_fmac_f32 {vr(V + 8 + 2 * j)}, v11, v11
                    v_fmac_f32 {vr(V + 9 + 2 * j)}, v12, v12
                    ''')
        self.strip_reduce(16, V, 0)
        L = self.only_wave(0)
        k('v_lshlrev_b32 v8, 2, v0')
        for w in range(8):
            k(f'ds_read2st64_b32 {vr(V + 2 * w, 2)}, v8 offset0:{2 * w} offset1:{2 * w + 1}')
        for w in range(1, 8):
            k(f'v_add_f32 {vr(V)}, {vr(V)}, {vr(V + 2 * w)}')
            k(f'v_add_f32 {vr(V + 1)}, {vr(V + 1)}, {vr(V + 2 * w + 1)}')
        k(f'''
        v_mul_f32 v10, {f32(1.0 / 640)}, {vr(V)}
        v_mul_f32 v11, {f32(1.0 / 640)}, {vr(V + 1)}
        v_fma_f32 v11, -v10, v10, v11
        v_max_f32 v11, 0, v11
        v_cvt_pk_bf16_f32 v11, v11, v11
        v_lshlrev_b32 v11, 16, v11
        v_add_f32 v11, {f32(1e-5)}, v11
        v_cvt_pk_bf16_f32 v11, v11, v11
        v_lshlrev_b32 v11, 16, v11
        v_sqrt_f32 v11, v11
        v_cvt_pk_bf16_f32 v10, v10, v11
        s_lshl_b32 s55, s2, 8
        s_add_u32 s55, s55, {STATS}
        buffer_store_dword v10, v8, {P4(rWS)}, s55 offen sc1
        {L}:
        s_barrier
        ''')

    def helper(self):
        k = self.k
        k('L_helper:')
        self.srd(rB, pWD, 1728 * 640 * 2)
        self.mod_and_wd()
        L = self.only_wave(0)
        k('s_and_b32 s55, s2, 3')
        self.arrive(SYNCW, 4, 's55', 16)
        k(f'{L}:')
        self.stamp('h_wd')
        if self.o['stop'] in ('A', 'kgen'):
            k('s_branch L_fin')
            return
        Lns = k.label('nostat')
        Lb, Lp = k.label('lateb'), k.label('polled')
        L = self.only_wave(0)
        k(f's_cmp_ge_u32 s2, 8\ns_cbranch_scc1 {Lb}')
        self.poll_addr(SYNC2A, 16, 16)
        self.poll(16, 17, 27, nl=16, sleep=4)
        k(f's_branch {Lp}\n{Lb}:')
        self.poll_addr(SYNC2B, 24, 16)
        self.poll(16, 17, 9, nl=24, sleep=4)
        k(f'{Lp}:\n{L}:')
        k('s_barrier')
        self.stamp('s2a')
        k(f's_cmp_ge_u32 s2, 32\ns_cbranch_scc1 {Lns}')
        self.stats_job()
        k(f'{Lns}:')
        self.stamp('h_stat')
        if self.o['stop'] in ('conv', 'g1'):
            k('s_branch L_fin')
            return
        L = self.only_wave(0)
        self.poll_addr(SYNCW, 4, 16)
        self.poll(16, 17, 10, nl=4)
        k(f'{L}:')
        k('s_barrier')
        self.g2_setup()
        for j in range(5):
            for i in range(4):
                self.g2_dma(j, i)
        self.resid_dma()
        k('s_branch L_g2')

    def build(self):
        k = self.k
        stop = self.o['stop']
        self.prologue()
        self.early_addresses()
        self.ln1()
        k('s_cmp_lt_u32 s2, 40\ns_cbranch_scc1 L_helper')
        while True:
            if stop == 'A':
                break
            self.kgen()
            self.stamp('kgen')
            self.kexpand1()
            self.stamp('kexp')
            self.conv_loads()
            self.mod_partial()
            self.kexpand2()
            self.wstage_read(0, 213)
            if stop == 'kgen':
                self.dump_k()
                break
            self.conv()
            self.window2()
            if stop == 'conv':
                break
            self.g1()
            if stop == 'g1':
                break
            self.g2()
            break
        k('L_fin:')
        k(f'''
        s_or_b32 s3, s2, {sr(sW)}
        s_cmp_lg_u32 s3, 0
        s_cbranch_scc1 L_nogen
        v_mov_b32 v8, {GEN}
        v_mov_b32 v9, {sr(sTAG)}
        s_mov_b64 exec, 1
        global_store_dword v8, v9, {P2(pWS)} sc1
        s_mov_b64 exec, -1
        L_nogen:
        ''')
        self.stamp_flush()
        k('s_endpgm')
        self.helper()
        k('L_end:\ns_endpgm')
        body = k.text()
        hdr = open('adaLN_cond__ssm_conv_s4d__geglu_ffn__prompt.s.ref').read().split('; Override')[0]
        return hdr + f'''; @launch kernel={NAME} grid=(256,1,1) block=(512,1,1) lds={LDS_BYTES}
.amdgcn_target "amdgcn-amd-amdhsa--gfx950"
.text
.globl {NAME}
.p2align 8
.type {NAME},@function
{NAME}:
{body}.section .rodata,"a"
.p2align 6
.amdhsa_kernel {NAME}
  .amdhsa_next_free_vgpr 256
  .amdhsa_next_free_sgpr 102
  .amdhsa_accum_offset 256
  .amdhsa_group_segment_fixed_size 0
  .amdhsa_kernarg_size 128
  .amdhsa_user_sgpr_count 2
  .amdhsa_user_sgpr_kernarg_segment_ptr 1
  .amdhsa_system_sgpr_workgroup_id_x 1
.end_amdhsa_kernel
'''

    def dump_k(self):
        k = self.k
        k.wait('saw')
        k('s_barrier')
        k(f's_lshl_b32 s55, {sr(sW)}, 6\nv_add_u32 v8, s55, v0\nv_lshlrev_b32 v9, 3, v8\nv_lshlrev_b32 v10, 4, v8')
        for ch in range(3):
            k(f'''
            ds_read_b64 v[12:13], v9 offset:{KA + ch * KAS + 32}
            ds_read_b128 v[16:19], v10 offset:{SA + ch * SAS}
            s_add_u32 s55, {sr(sD0)}, {ch}
            s_lshl_b32 s56, s55, 12
            s_add_u32 s56, s56, {X1T}
            s_lshl_b32 s57, s55, 13
            s_add_u32 s57, s57, {ACT}
            buffer_store_dwordx2 v[12:13], v9, {P4(rWS)}, s56 offen
            buffer_store_dwordx4 v[16:19], v10, {P4(rWS)}, s57 offen
            s_waitcnt vmcnt(0)
            ''')


LAST = None
def generate(**opt):
    global LAST
    LAST = Gen(opt)
    return LAST.build()


if __name__ == '__main__':
    opt = {}
    for a in sys.argv[2:]:
        kx, v = a.split('=')
        opt[kx] = eval(v)
    open(sys.argv[1], 'w').write(generate(**opt))
```

```python
import sys, math
from asmgen import Kern, vr, sr, f32

NAME = 'adaLN_cond__ssm_conv_s4d__geglu_ffn__prompt_kernel'

SYNC1 = 0x0
GEN = 0x22000
MS = 0x1E000
SYNC2A, SYNC2B, SYNCW, SYNC3, SYNC2C = 0x8000, 0xE000, 0x14000, 0x15000, 0x18000
MODP = 0xC0000
MOD, STATS = 0x24000, 0x16000
ZBEG, ZEND = 0x8000, 0x1E000
STAMP = 0x30000
CSP = 0x3C0000
XN, XT, X1T, X1S, WD, ACT = 0x100000, 0x400000, 0x700000, 0xA00000, 0xD00000, 0x1000000
KG, KGS = 0, 4608
XNL0, MSL = 1696, 13984
KA, KAS = 27648, 4128
SA, SAS = 40032, 8192
TR, TRR, TRM = 40032, 1344, 10752
WT = 81408
KC, KCS = 51200, 3840
GA = 204
TAB, EXC = 64704, 10240
STG = 81920
RING, NS = 16384, 5
PARK0, PARK6A, PARK6B = 122880, 98304, 0
RESID, PART = 16384, 0
W2 = {1: 96, 2: 116, 3: 136, 4: 156, 5: 176, 0: 196, 6: 216}
LDS_BYTES = 163840
pX, pLA, pAI, pCR, pCI, pDT, pDS, pWG, pWU, pWD, pC, pWM, pOUT, pDBG, pWS = 4, 6, 8, 10, 12, 14, 16, 20, 22, 24, 26, 28, 30, 32, 34
sW, sI, sPC = 36, 37, 38
rWS, rA, rB = 40, 44, 48
sD0, sMB, sNB = 52, 53, 54
sT = 55
sCH = 70
sSPIN = 79
sST = 80
sFLAG = 82
sWL, sWO, sWI, sWR = 86, 87, 88, 89
sQ, sM1, sTAG = 91, 92, 93
P2 = lambda r: sr(r, 2)
P4 = lambda r: sr(r, 4)
WF = 96
SPIN_MAX = 400000

LOG2E = 1.4426950408889634


class Gen:
    def __init__(self, opt):
        self.o = dict(stop=None, stamps=False, nt='nt')
        self.o.update(opt)
        self.k = Kern()
        self.nst = 0

    def stamp(self, name, vt=None):
        if not self.o['stamps']:
            return
        if isinstance(self.o['stamps'], (list, tuple)) and name not in self.o['stamps']:
            return
        names = self.o.setdefault('stamp_names', [])
        if name not in names:
            names.append(name)
        idx = names.index(name)
        assert idx < 32, names
        self.k(f'''
        s_memrealtime {sr(sST, 2)}
        s_memtime s[84:85]
        s_waitcnt lgkmcnt(0)
        v_writelane_b32 v87, {sr(sST)}, {idx}
        v_writelane_b32 v87, s84, {32 + idx}
        ''')

    def stamp_flush(self):
        if not self.o['stamps']:
            return
        self.k(f'''
        s_lshl_b32 s3, s2, 3
        s_add_u32 s3, s3, {sr(sW)}
        s_lshl_b32 s3, s3, 8
        s_add_u32 s3, s3, {STAMP}
        v_lshl_add_u32 v86, v0, 2, s3
        global_store_dword v86, v87, {P2(pWS)}
        ''')

    def arrive(self, base, nshard, shard_sreg, vt):
        k = self.k
        k(f'''
        s_lshl_b32 s3, {shard_sreg}, 7
        s_add_u32 s3, s3, {base}
        v_mul_u32_u24 {vr(vt)}, {128 * nshard}, v0
        v_add_u32 {vr(vt)}, s3, {vr(vt)}
        v_mov_b32 {vr(vt + 1)}, 1
        s_mov_b64 exec, 0xff
        global_atomic_add {vr(vt)}, {vr(vt + 1)}, {P2(pWS)} sc1
        s_mov_b64 exec, -1
        ''')

    def poll_addr(self, base, nshard, va):
        k = self.k
        k(f'''
        s_and_b32 s3, s2, 7
        s_mul_i32 s3, s3, {128 * nshard}
        s_add_u32 s3, s3, {base}
        v_min_u32 {vr(va)}, {nshard - 1}, v0
        v_lshlrev_b32 {vr(va)}, 7, {vr(va)}
        v_add_u32 {vr(va)}, s3, {vr(va)}
        ''')

    def poll_issue(self, va, vd, nl, off=0):
        k = self.k
        if nl and self.o.get('apoll', 1):
            k(f'''
            v_mov_b32 {vr(vd)}, 0
            s_mov_b64 exec, {hex((1 << nl) - 1)}
            global_atomic_add {vr(vd)}, {vr(va)}, {vr(vd)}, {P2(pWS)} offset:{off} sc0 sc1
            s_mov_b64 exec, -1
            ''')
        else:
            k(f'global_load_dword {vr(vd)}, {vr(va)}, {P2(pWS)} offset:{off} sc1')

    def poll(self, va, vd, count, preissued=False, off=0, nl=0, sleep=None):
        k = self.k
        L, D = k.label('poll'), k.label('polld')
        ap = nl and self.o.get('apoll', 1)

        def check():
            k(f'v_cmp_gt_u32 vcc, {count}, {vr(vd)}')
            if ap:
                k(f's_and_b32 vcc_lo, vcc_lo, {hex((1 << nl) - 1)}\ns_cbranch_scc0 {D}')
            else:
                k(f's_cbranch_vccz {D}')
        if not preissued:
            self.poll_issue(va, vd, nl, off)
        check()
        k(f'{L}:')
        k(f's_sleep {self.o.get("sleep", 2) if sleep is None else sleep}')
        self.poll_issue(va, vd, nl, off)
        check()
        k(f'''
        s_add_u32 {sr(sSPIN)}, {sr(sSPIN)}, 1
        s_cmp_lt_u32 {sr(sSPIN)}, {SPIN_MAX}
        s_cbranch_scc1 {L}
        {D}:
        ''')

    def srd(self, r, ptr, size):
        self.k(f'''
        s_mov_b32 {sr(r)}, {sr(ptr)}
        s_and_b32 {sr(r + 1)}, {sr(ptr + 1)}, 0xffff
        s_mov_b32 {sr(r + 2)}, {size}
        s_mov_b32 {sr(r + 3)}, 0x20000
        ''')

    def only_wave(self, w):
        L = self.k.label('ow')
        self.k(f's_cmp_lg_u32 {sr(sW)}, {w}\ns_cbranch_scc1 {L}')
        return L

    def prologue(self):
        k = self.k
        k(f'''
        s_cmp_ge_u32 s2, 256
        s_cbranch_scc1 L_end
        s_load_dwordx16 s[4:19], s[0:1], 0
        s_load_dwordx16 s[20:35], s[0:1], 64
        s_getpc_b64 {P2(sPC)}
        L_pc:
        v_lshrrev_b32 v1, 6, v0
        v_and_b32 v0, 63, v0
        v_readfirstlane_b32 {sr(sW)}, v1
        s_mov_b32 {sr(sSPIN)}, 0
        ''')
        if self.o.get('diag_T'):
            k('s_memrealtime s[94:95]')
        if self.o.get('diag_alu'):
            k(f's_mov_b32 s3, {self.o["diag_alu"]}\nL_da:')
            for _ in range(100):
                k('v_add_u32 v1, v1, v1')
            k('s_sub_u32 s3, s3, 1\ns_cmp_lg_u32 s3, 0\ns_cbranch_scc1 L_da')
        if self.o['stamps']:
            k('v_mov_b32 v87, 0')
        L = k.label('pf')
        k(f'''
        s_lshr_b32 s3, s2, 3
        s_and_b32 s3, s3, 7
        s_cmp_eq_u32 {sr(sW)}, 0
        s_cselect_b32 s56, 0, s3
        s_cmp_eq_u32 {sr(sW)}, s56
        s_cbranch_scc0 {L}
        s_lshl_b32 s3, {sr(sW)}, 13
        v_lshlrev_b32 v2, 7, v0
        v_add_u32 v2, s3, v2
        v_min_u32 v2, L_end-L_pc, v2
        global_load_dword v83, v2, {P2(sPC)}
        {L}:
        s_lshl_b32 s3, s2, 3
        s_add_u32 s3, s3, {sr(sW)}
        s_mul_i32 s3, s3, 1280
        v_lshl_add_u32 v2, v0, 4, s3
        v_lshl_add_u32 v3, v0, 2, s3
        s_sub_u32 {sr(sI)}, s2, 40
        s_and_b32 {sr(sMB)}, s2, 7
        s_lshr_b32 {sr(sQ)}, {sr(sI)}, 3
        s_mul_i32 s3, {sr(sMB)}, 27
        s_add_u32 s3, s3, {sr(sQ)}
        s_lshr_b32 {sr(sNB)}, s3, 3
        s_and_b32 {sr(sM1)}, s3, 7
        s_mul_i32 s3, s3, 3
        s_min_u32 {sr(sD0)}, s3, 637
        s_min_u32 s55, {sr(sW)}, 5
        s_lshl_b32 s56, {sr(sD0)}, 1
        s_add_u32 s56, s56, s55
        s_lshl_b32 s56, s56, 7
        v_lshl_add_u32 v18, v0, 1, s56
        s_lshr_b32 s55, s55, 1
        s_add_u32 s55, s55, {sr(sD0)}
        s_lshl_b32 s55, s55, 1
        v_mov_b32 v19, s55
        v_min_u32 v17, 2, v0
        v_add_u32 v17, {sr(sD0)}, v17
        v_lshlrev_b32 v17, 1, v17
        ''')
        if self.o.get('wsoff'):
            k(f's_add_u32 s{pWS}, s{pWS}, {self.o["wsoff"] << 20}\ns_addc_u32 s{pWS + 1}, s{pWS + 1}, 0')
        self.stamp('start')
        if self.o.get('chase'):
            ptr, stride = self.o.get('chase_ptr', 18), self.o.get('chase_stride', 256 * 512)
            k(f's_lshl_b32 s55, s2, 9\nv_mov_b32 v10, s55')
            for i in range(self.o['chase']):
                k(f'''
                global_load_dword v11, v10, {P2(ptr)}
                v_and_b32 v11, 0, v11
                v_add_u32 v10, {stride}, v10
                v_add_u32 v10, v11, v10
                ''')
            self.stamp('chase')
        k(f'''
        global_load_dwordx4 v[92:95], v2, {P2(pX)} {self.o['nt']}
        global_load_dword v91, v3, {P2(pX)} offset:1024 {self.o['nt']}
        s_load_dword {sr(sTAG)}, {P2(pWS)}, {GEN}
        ''')
        L, Lh = k.label('nokl'), k.label('hc')
        k(f'''
        s_lshl_b32 s68, s2, 1
        s_and_b32 s55, {sr(sW)}, 1
        s_add_u32 s68, s68, s55
        s_min_u32 s68, s68, 479
        s_and_b32 s55, s68, 7
        s_mul_i32 s55, s55, 80
        v_lshrrev_b32 v20, 3, v0
        v_mul_u32_u24 v20, 10, v20
        v_add_u32 v20, s55, v20
        s_cmp_lt_u32 {sr(sW)}, 6
        s_cbranch_scc1 {Lh}
        v_lshlrev_b32 v21, 1, v20
        global_load_dwordx4 v[160:163], v21, {P2(pC)}
        global_load_dword v164, v21, {P2(pC)} offset:16
        v_mul_u32_u24 v20, 7680, v20
        v_and_b32 v21, 7, v0
        v_lshl_add_u32 v20, v21, 4, v20
        s_lshr_b32 s55, s68, 3
        s_lshl_b32 s55, s55, 7
        v_add_u32 v20, s55, v20
        s_branch {L}
        {Lh}:
        s_cmp_lt_u32 s2, 40
        s_cbranch_scc1 {L}
        global_load_ushort v20, v18, {P2(pLA)} {self.o['nt']}
        global_load_ushort v24, v19, {P2(pDT)}
        global_load_ushort v21, v18, {P2(pAI)} {self.o['nt']}
        global_load_ushort v22, v18, {P2(pCR)} {self.o['nt']}
        global_load_ushort v23, v18, {P2(pCI)} {self.o['nt']}
        global_load_ushort v25, v17, {P2(pDS)}
        {L}:
        ''')
        self.srd(rWS, pWS, 0x2000000)
        self.srd(rA, pWG, 640 * 1728 * 2)
        self.srd(rB, pWU, 640 * 1728 * 2)

    def early_addresses(self):
        k = self.k
        k(f'''
        v_lshrrev_b32 v16, 3, v0
        v_mul_u32_u24 v17, 3456, v16
        v_bfe_u32 v16, v0, 4, 1
        v_bfe_u32 v26, v0, 1, 2
        v_xor_b32 v26, v26, v16
        v_and_b32 v16, 1, v0
        v_lshl_add_u32 v17, v16, 4, v17
        s_lshl_b32 s55, {sr(sNB)}, 7
        v_add_u32 v17, s55, v17
        v_lshl_add_u32 v26, v26, 5, v17
        v_xor_b32 v27, 64, v26
        s_mul_i32 {sr(sWR)}, {sr(sM1)}, 5
        s_mov_b32 {sr(sWO)}, 0
        ''')
        k(f's_lshl_b32 s55, {sr(sW)}, 6\nv_add_u32 v89, s55, v0')
        k(f'''
        s_lshl_b32 s55, {sr(sW)}, 1
        s_lshr_b32 s56, 0xffa4, s55
        s_and_b32 s56, s56, 3
        s_lshl_b32 s57, s56, 3
        v_lshlrev_b32 v10, 2, v89
        ''')
        for j in range(4):
            k(f'''
            v_add_u32 v11, {j}, v10
            v_cvt_f32_u32 v11, v11
            v_cvt_pk_bf16_f32 v11, v11, v11
            v_lshlrev_b32 v11, 16, v11
            v_cvt_u32_f32 v11, v11
            v_lshrrev_b32 v12, 7, v11
            v_and_b32 v13, 7, v11
            v_lshl_add_u32 v12, v12, 3, v13
            v_lshrrev_b32 v12, s56, v12
            v_add_u32 v12, s57, v12
            v_mul_u32_u24 v12, 20, v12
            v_bfe_u32 v11, v11, 3, 4
            v_add_lshl_u32 v11, v12, v11, 2
            v_add_u32 {vr(GA + j)}, {KC}, v11
            ''')
        k(f'''
        v_lshlrev_b32 v208, 1, v10
        v_lshlrev_b32 v209, 2, v10
        ''')
        for i in range(2):
            k(f'''
            v_add_u32 v11, {512 * i}, v89
            v_mul_u32_u24 v12, 0x5556, v11
            v_lshrrev_b32 v12, 16, v12
            v_mul_u32_u24 v13, 3, v12
            v_sub_u32 v11, v11, v13
            v_add_u32 v11, {sr(sD0)}, v11
            v_mul_u32_u24 v12, 10240, v12
            v_lshl_add_u32 {vr(210 + i)}, v11, 4, v12
            ''')
        k('v_lshlrev_b32 v212, 4, v89')
        self.wread_addr(213)
        k(f'''
        v_lshrrev_b32 v11, 2, v0
        v_min_u32 v11, 11, v11
        v_mul_u32_u24 v12, 0x5556, v11
        v_lshrrev_b32 v12, 16, v12
        v_mul_u32_u24 v13, 3, v12
        v_sub_u32 v11, v11, v13
        v_cmp_eq_u32 vcc, 3, v12
        v_addc_co_u32 v12, vcc, 0, v12, vcc
        v_mul_u32_u24 v12, 640, v12
        v_add3_u32 v11, v11, v12, {sr(sD0)}
        v_lshrrev_b32 v12, 6, v11
        v_and_b32 v11, 63, v11
        v_lshlrev_b32 v11, 2, v11
        v_lshl_add_u32 v11, v12, 11, v11
        v_and_b32 v12, 3, v0
        v_lshl_add_u32 v11, v12, 8, v11
        v_add_u32 v88, {MODP}, v11
        v_min_u32 v89, 319, v89
        v_lshlrev_b32 v90, 3, v89
        v_add_u32 v90, {MOD + 3 * 2560}, v90
        ''')
        k(f'''
        v_lshrrev_b32 v8, 4, v0
        v_bfe_u32 v9, v0, 2, 2
        v_and_b32 v10, 3, v0
        v_lshlrev_b32 v11, 1, v10
        v_lshl_add_u32 v11, v8, 2, v11
        v_lshrrev_b32 v12, 1, v9
        v_add_u32 v11, v11, v12
        v_mul_u32_u24 v11, 48, v11
        v_and_b32 v12, 1, v9
        v_lshl_add_u32 v11, v12, 3, v11
        v_add_u32 v1, {XNL0 - 14 * 48}, v11
        v_sub_u32 v11, v10, v9
        v_lshlrev_b32 v12, 3, v8
        v_sub_u32 v11, v11, v12
        v_lshlrev_b32 v11, 3, v11
        v_add_u32 v2, {KA + 32 + 2 * (112 - 16)}, v11
        v_lshlrev_b32 v11, 3, v9
        v_lshl_add_u32 v11, v8, 1, v11
        v_lshrrev_b32 v12, 1, v10
        v_add_u32 v11, v11, v12
        v_mul_u32_u24 v11, 48, v11
        v_and_b32 v12, 1, v10
        v_lshl_add_u32 v11, v12, 3, v11
        v_add_u32 v5, {XNL0}, v11
        ''')
        k(f'''
        s_mul_i32 s56, {sr(sW)}, {TRR}
        s_add_u32 s56, s56, {TR}
        v_lshl_add_u32 v6, v0, 4, s56
        v_lshl_add_u32 v7, v0, 2, s56
        v_mul_u32_u24 v4, {TRR}, v9
        v_lshl_add_u32 v4, v8, 5, v4
        v_lshl_add_u32 v4, v10, 3, v4
        s_and_b32 s55, {sr(sW)}, 1
        s_mul_i32 s56, s55, 640
        s_add_u32 s56, s56, {TR}
        v_add_u32 v4, s56, v4
        s_mul_i32 s57, s2, 10240
        s_mul_i32 s56, s55, 5120
        s_add_u32 s57, s57, s56
        v_lshl_add_u32 v3, v0, 4, s57
        s_add_u32 {sr(sTAG)}, {sr(sTAG)}, 0x9e3779b9
        ''')
        k(f'''
        s_and_b32 s55, s2, 7
        s_lshl_b32 s55, s55, 12
        v_lshrrev_b32 v11, 1, v0
        v_lshlrev_b32 v11, 7, v11
        v_and_b32 v12, 1, v0
        v_lshl_add_u32 v11, v12, 5, v11
        v_add_u32 v215, s55, v11
        ''')

    def poll_sync1_issue(self, va, vd):
        self.k(f'''
        global_load_dwordx4 {vr(vd, 4)}, {vr(va)}, {P2(pWS)} offset:{SYNC1} sc1
        global_load_dwordx4 {vr(vd + 4, 4)}, {vr(va)}, {P2(pWS)} offset:{SYNC1 + 16} sc1
        ''')

    def poll_sync1(self, va, vd, preissued=False):
        k = self.k
        L, D = k.label('p1'), k.label('p1d')
        if preissued:
            self.sync1_check(vd, D)
        k(f'{L}:')
        self.poll_sync1_issue(va, vd)
        self.sync1_check(vd, D)
        k(f'''
        s_sleep {self.o.get('sleep', 2)}
        s_add_u32 {sr(sSPIN)}, {sr(sSPIN)}, 1
        s_cmp_lt_u32 {sr(sSPIN)}, {SPIN_MAX}
        s_cbranch_scc1 {L}
        {D}:
        ''')

    def sync1_check(self, vd, D):
        k = self.k
        k(f'''
        v_min3_u32 {vr(vd + 8)}, {vr(vd)}, {vr(vd + 1)}, {vr(vd + 2)}
        v_max3_u32 {vr(vd + 9)}, {vr(vd)}, {vr(vd + 1)}, {vr(vd + 2)}
        v_min3_u32 {vr(vd + 8)}, {vr(vd + 8)}, {vr(vd + 3)}, {vr(vd + 4)}
        v_max3_u32 {vr(vd + 9)}, {vr(vd + 9)}, {vr(vd + 3)}, {vr(vd + 4)}
        v_min3_u32 {vr(vd + 8)}, {vr(vd + 8)}, {vr(vd + 5)}, {vr(vd + 6)}
        v_max3_u32 {vr(vd + 9)}, {vr(vd + 9)}, {vr(vd + 5)}, {vr(vd + 6)}
        v_min_u32 {vr(vd + 8)}, {vr(vd + 8)}, {vr(vd + 7)}
        v_max_u32 {vr(vd + 9)}, {vr(vd + 9)}, {vr(vd + 7)}
        v_xor_b32 {vr(vd + 8)}, {sr(sTAG)}, {vr(vd + 8)}
        v_xor_b32 {vr(vd + 9)}, {sr(sTAG)}, {vr(vd + 9)}
        v_or_b32 {vr(vd + 8)}, {vr(vd + 8)}, {vr(vd + 9)}
        v_cmp_ne_u32 vcc, 0, {vr(vd + 8)}
        s_cbranch_vccz {D}
        ''')

    def touch(self, ptr, size, sbyte, stride=128, lanes=64):
        k = self.k
        k(f'''
        v_mul_u32_u24 v84, {stride}, v0
        v_add_u32 v84, {sbyte}, v84
        v_min_u32 v84, {size - 4}, v84
        ''')
        if lanes < 64:
            k(f's_mov_b32 exec_lo, {hex((1 << min(lanes, 32)) - 1)}\ns_mov_b32 exec_hi, {hex((1 << max(lanes - 32, 0)) - 1)}')
        k(f'global_load_dword v83, v84, {P2(ptr)} {self.o.get("wpol", "")}')
        if lanes < 64:
            k('s_mov_b64 exec, -1')

    def stage_a(self):
        k = self.k
        L, L5 = k.label('nsa'), k.label('sa5')
        k(f'''
        s_cmp_lt_u32 s2, 40
        s_cbranch_scc1 {L}
        s_cmp_ge_u32 {sr(sW)}, 6
        s_cbranch_scc1 {L}
        s_cmp_eq_u32 {sr(sW)}, 5
        s_cbranch_scc1 {L5}
        s_mov_b32 {sr(sWI)}, {sr(sW)}
        ''')
        self.wunits(1, 5, 1, pol=self.o.get('wpol', ''))
        k(f's_branch {L}\n{L5}:')
        if self.o.get('pf1', 2) == 2:
            k(f'''
            s_mul_i32 s55, {sr(sWR)}, {8 * 3456}
            s_lshl_b32 s58, {sr(sNB)}, 7
            s_add_u32 s55, s55, s58
            s_add_u32 s55, s55, {320 * 3456}
            ''')
            self.touch(pWG, 640 * 1728 * 2, 's55', stride=3456, lanes=40)
            self.touch(pWU, 640 * 1728 * 2, 's55', stride=3456, lanes=40)
        if self.o.get('tm', 0):
            k(f's_mul_i32 s55, {sr(sI)}, {178 * 128}')
            for i in range(3):
                self.touch(pWM, 640 * 3840 * 2, 's55')
                if i < 2:
                    k('s_add_u32 s55, s55, 8192')
        k(f'{L}:')

    def stage_b_touch(self):
        k = self.k
        if not self.o.get('tb', 0):
            return
        L = [k.label('tb') for _ in range(5)]
        k(f's_cmp_lt_u32 {sr(sW)}, 2\ns_cbranch_scc0 {L[0]}')
        k(f's_mul_i32 s55, {sr(sI)}, {80 * 128}\ns_mul_i32 s56, {sr(sW)}, {40 * 128}\ns_add_u32 s55, s55, s56')
        self.touch(pWD, 1728 * 640 * 2, 's55', lanes=40)
        k(f's_branch {L[2]}\n{L[0]}:')
        k(f'''
        s_mul_i32 s55, {sr(sWR)}, {8 * 3456}
        s_lshl_b32 s56, {sr(sNB)}, 7
        s_add_u32 s55, s55, s56
        s_add_u32 s55, s55, {320 * 3456}
        s_cmp_eq_u32 {sr(sW)}, 2
        s_cbranch_scc0 {L[1]}
        ''')
        self.touch(pWG, 640 * 1728 * 2, 's55', stride=3456, lanes=40)
        k(f's_branch {L[2]}\n{L[1]}:\ns_cmp_eq_u32 {sr(sW)}, 3\ns_cbranch_scc0 {L[2]}')
        self.touch(pWU, 640 * 1728 * 2, 's55', stride=3456, lanes=40)
        k(f'{L[2]}:')

    def ln1(self):
        k = self.k
        X = [92, 93, 94, 95, 91]
        k('v_mov_b32 v10, v91')
        self.stamp('xld')
        if self.o.get('sa_pos', 0) == 0:
            self.stage_a()
        k(f'''
        s_mov_b32 s55, 0x3f803f80
        v_mov_b32 v10, 0
        v_mov_b32 v11, 0
        ''')
        for j in range(5):
            k(f'v_dot2_f32_bf16 v10, v{X[j]}, s55, v10')
            k(f'v_dot2_f32_bf16 v11, v{X[j]}, v{X[j]}, v11')
        k(f'''
        v_permlane32_swap_b32 v10, v11
        v_add_f32 v10, v10, v11
        ''')
        for n in (8, 4, 2, 1):
            k(f'v_add_f32_dpp v10, v10, v10 row_ror:{n} row_mask:0xf bank_mask:0xf')
        k(f'''
        v_add_f32_dpp v10, v10, v10 row_bcast:15 row_mask:0xa bank_mask:0xf
        v_mov_b32 v13, {f32(1.0 / 640)}
        v_readlane_b32 s55, v10, 31
        v_readlane_b32 s56, v10, 63
        s_lshl_b32 s57, {sr(sW)}, 2
        v_mov_b32 v14, s57
        v_mul_f32 v10, s55, v13
        v_mul_f32 v11, s56, v13
        v_fma_f32 v11, -v10, v10, v11
        v_max_f32 v11, 0, v11
        v_cvt_pk_bf16_f32 v10, v10, v11
        v_and_b32 v11, 0xffff0000, v10
        v_lshlrev_b32 v10, 16, v10
        v_add_f32 v11, {f32(1e-5)}, v11
        v_cvt_pk_bf16_f32 v11, v11, v11
        v_lshlrev_b32 v11, 16, v11
        v_sqrt_f32 v11, v11
        v_lshlrev_b32 v15, 16, v92
        v_cvt_pk_bf16_f32 v13, v10, v11
        v_and_b32 v11, 0xffff0000, v13
        v_rcp_f32 v11, v11
        ''')
        k(f'ds_write_b32 v14, v13 offset:{TR + TRM}', tag='trw')
        k('v_mul_f32 v10, -v10, v11')
        for j in range(5):
            k(f'''
            v_lshlrev_b32 v13, 16, v{X[j]}
            v_and_b32 v14, 0xffff0000, v{X[j]}
            v_fma_f32 v13, v13, v11, v10
            v_fma_f32 v14, v14, v11, v10
            v_cvt_pk_bf16_f32 v{X[j]}, v13, v14
            ''')
            if j == 3:
                k('ds_write_b128 v6, v[92:95]', tag='trw')
        k('ds_write_b32 v7, v91 offset:1024', tag='trw')
        k.wait('trw')
        k('s_barrier')
        if self.o.get('sa_pos', 0) == 1:
            self.stage_a()
        Ls = k.label('nost')
        k(f'''
        s_cmp_lt_u32 {sr(sW)}, 6
        s_cbranch_scc1 {Ls}
        ''')
        for i in range(5):
            k(f'ds_read_b64_tr_b16 v[{28 + 4 * i}:{29 + 4 * i}], v4 offset:{128 * i}')
            k(f'ds_read_b64_tr_b16 v[{30 + 4 * i}:{31 + 4 * i}], v4 offset:{128 * i + 4 * TRR}')
        k(f'''
        v_lshlrev_b32 v72, 4, v0
        ds_read_b128 v[68:71], v72 offset:{TR + TRM}
        s_mov_b32 s58, {XN}
        s_mov_b32 s59, {XN + 4096}
        ''')
        for i in range(5):
            k(f'buffer_store_dwordx4 v[{28 + 4 * i}:{31 + 4 * i}], v3, {P4(rWS)}, s{58 + i // 4} offen offset:{1024 * (i % 4)} sc1', tag='xnst')
        L6, L7, L8 = k.label('w6'), k.label('w7'), k.label('w8')
        k(f'''
        s_cmp_eq_u32 {sr(sW)}, 6
        s_cbranch_scc1 {L6}
        v_mov_b32 v68, 0
        v_mov_b32 v69, 0
        v_mov_b32 v70, 0
        v_mov_b32 v71, 0
        s_cmp_ge_u32 s2, 30
        s_cbranch_scc1 {L8}
        s_add_u32 s56, s2, 30
        s_lshl_b32 s56, s56, 8
        s_add_u32 s56, s56, {MOD}
        s_mov_b64 exec, 0xffff
        buffer_store_dwordx4 v[68:71], v72, {P4(rWS)}, s56 offen sc1
        {L8}:
        s_mul_i32 s56, s2, 352
        s_add_u32 s56, s56, {ZBEG}
        s_mov_b64 exec, 0x3fffff
        s_branch {L7}
        {L6}:
        s_lshl_b32 s56, s2, 5
        s_add_u32 s56, s56, {MS}
        s_mov_b64 exec, 3
        {L7}:
        ''')
        k(f'buffer_store_dwordx4 v[68:71], v72, {P4(rWS)}, s56 offen sc1', tag='xnst')
        k(f'''
        s_cmp_lt_u32 s2, 240
        s_cselect_b64 exec, 0xffff, 0
        v_mov_b32 v74, 0
        v_mov_b32 v75, 0
        v_mov_b32 v76, 0
        v_mov_b32 v77, 0
        s_lshl_b32 s56, s68, 8
        s_add_u32 s69, s56, {MODP}
        ''')
        k(f'buffer_store_dwordx4 v[74:77], v72, {P4(rWS)}, s69 offen sc1', tag='xnst')
        k(f'''
        s_mov_b64 exec, -1
        v_mov_b32 v74, 0
        v_mov_b32 v75, 0
        v_mov_b32 v76, 0
        v_mov_b32 v77, 0
        s_lshl_b32 s56, {sr(sNB)}, 3
        s_add_u32 s56, s56, {sr(sM1)}
        s_lshl_b32 s56, s56, 10
        s_and_b32 s57, {sr(sW)}, 1
        s_lshl_b32 s57, s57, 9
        s_add_u32 s56, s56, s57
        s_add_u32 s56, s56, {CSP}
        s_cmp_ge_u32 s2, 40
        s_cselect_b32 exec_lo, -1, 0
        s_mov_b32 exec_hi, 0
        ''')
        k(f'buffer_store_dwordx4 v[74:77], v72, {P4(rWS)}, s56 offen sc1', tag='xnst')
        k('s_mov_b64 exec, -1')
        self.silu10()
        k(f'''
        s_mov_b64 exec, -1
        s_lshr_b32 s56, s2, 3
        s_lshl_b32 s56, s56, 7
        s_and_b32 s57, s2, 7
        s_lshl_b32 s57, s57, 3
        s_add_u32 s56, s56, s57
        s_and_b32 s57, {sr(sW)}, 1
        s_lshl_b32 s57, s57, 2
        s_add_u32 s56, s56, s57
        v_lshl_add_u32 v16, v0, 12, s56
        v_mov_b32 v17, {sr(sTAG)}
        s_mov_b64 exec, 0xff
        ''')
        k.wait('xnst')
        k(f'''
        global_store_dword v16, v17, {P2(pWS)} offset:{SYNC1} sc1
        s_mov_b64 exec, -1
        ''')
        self.stamp('A')
        Lm = k.label('nwb')
        nb_ = self.o.get('wb', 10)

        def mod_loads():
            k('s_cmp_lt_u32 s2, 240\ns_cselect_b64 exec, -1, 0')
            for i in range(10):
                k(f'global_load_dwordx4 {vr(216 + 4 * i, 4)}, v20, {P2(pWM)} {self.o["nt"]}')
                if i < 9:
                    k('v_add_u32 v20, 7680, v20')
            k('s_mov_b64 exec, -1')
        if self.o.get('mod_first', 0):
            mod_loads()
        if nb_:
            k(f'''
            s_cmp_lt_u32 s2, 40
            s_cbranch_scc1 {Lm}
            s_sub_u32 {sr(sWI)}, {sr(sW)}, 1
            ''')
            self.wunits(nb_, 5 + 2 * nb_, 2, check=False)
            k(f'{Lm}:')
        if not self.o.get('mod_first', 0):
            mod_loads()
        k(f'{Ls}:')

    def silu10(self):
        k = self.k
        CV = 140
        for i in range(10):
            k(f'v_lshlrev_b32 {vr(CV + i)}, 16, {vr(160 + i // 2)}' if i % 2 == 0 else f'v_and_b32 {vr(CV + i)}, 0xffff0000, {vr(160 + i // 2)}')
            k(f'v_mul_f32 {vr(150 + i)}, {f32(-LOG2E)}, {vr(CV + i)}')
        for op in ('v_exp_f32 {t}, {t}', 'v_add_f32 {t}, 1.0, {t}', 'v_rcp_f32 {t}, {t}', 'v_mul_f32 {c}, {c}, {t}',
                   'v_cvt_pk_bf16_f32 {c}, {c}, {c}', 'v_lshlrev_b32 {c}, 16, {c}'):
            for i in range(10):
                k(op.format(t=vr(150 + i), c=vr(CV + i)))

    def mod_partial(self):
        k = self.k
        LD, CV, V = 216, 140, 68
        L = k.label('nomp')
        k(f's_cmp_lt_u32 {sr(sW)}, 6\ns_cbranch_scc1 {L}\ns_cmp_ge_u32 s2, 240\ns_cbranch_scc1 {L}')
        for i in range(10):
            for j in range(4):
                r = LD + 4 * i + j
                a, b = 76 + 2 * (j % 2), 77 + 2 * (j % 2)
                k(f'v_lshlrev_b32 v{a}, 16, {vr(r)}\nv_and_b32 v{b}, 0xffff0000, {vr(r)}')
                if i == 0:
                    k(f'v_mul_f32 {vr(V + 2 * j)}, v{a}, {vr(CV)}\nv_mul_f32 {vr(V + 2 * j + 1)}, v{b}, {vr(CV)}')
                else:
                    k(f'v_fmac_f32 {vr(V + 2 * j)}, v{a}, {vr(CV + i)}\nv_fmac_f32 {vr(V + 2 * j + 1)}, v{b}, {vr(CV + i)}')
        for i in range(4):
            k(f'v_permlane32_swap_b32 {vr(V + i)}, {vr(V + 4 + i)}')
        for i in range(4):
            k(f'v_add_f32 {vr(V + i)}, {vr(V + i)}, {vr(V + 4 + i)}')
        for i in range(2):
            k(f'v_permlane16_swap_b32 {vr(V + i)}, {vr(V + 2 + i)}')
        for i in range(2):
            k(f'v_add_f32 {vr(V + i)}, {vr(V + i)}, {vr(V + 2 + i)}')
        k(f'''
        v_lshrrev_b32 v76, 4, v0
        v_and_b32 v77, 7, v0
        v_lshlrev_b32 v76, 3, v76
        v_lshl_add_u32 v76, v77, 5, v76
        ''')
        for i in range(2):
            k(f'v_add_f32_dpp {vr(V + i)}, {vr(V + i)}, {vr(V + i)} row_ror:8 row_mask:0xf bank_mask:0xf')
        k(f'''
        v_or_b32 {vr(V)}, 1, {vr(V)}
        v_or_b32 {vr(V + 1)}, 1, {vr(V + 1)}
        s_mov_b32 exec_lo, 0x00ff00ff
        s_mov_b32 exec_hi, 0x00ff00ff
        buffer_store_dwordx2 {vr(V, 2)}, v76, {P4(rWS)}, s69 offen sc1
        s_mov_b64 exec, -1
        ''')
        self.stamp('modp')
        k(f'{L}:')

    def wunits(self, n, end, step, check=True, pol=''):
        k = self.k
        L = k.label('wsd')
        for i in range(n):
            if check:
                k(f's_cmp_ge_u32 {sr(sWI)}, {end}\ns_cbranch_scc1 {L}')
            k(f'''
            s_add_u32 s55, {sr(sWI)}, {sr(sWR)}
            s_sub_u32 s56, s55, 40
            s_cselect_b32 s55, s55, s56
            s_lshl_b32 s56, s55, 11
            s_add_u32 m0, s56, {STG}
            s_mul_i32 s55, s55, {8 * 3456}
            s_add_u32 s55, s55, {sr(sWO)}
            s_add_u32 {sr(sWI)}, {sr(sWI)}, {step}
            ''')
            k(f'buffer_load_dwordx4 v26, {P4(rA)}, s55 offen {pol} lds', tag='wst')
            k(f's_add_u32 m0, s56, {STG + 1024}')
            k(f'buffer_load_dwordx4 v27, {P4(rB)}, s55 offen {pol} lds', tag='wst')
        k(f'{L}:')

    def wread_addr(self, va):
        self.k(f'''
        v_bfe_u32 {vr(va + 1)}, v0, 3, 2
        s_and_b32 s55, {sr(sW)}, 3
        v_xor_b32 {vr(va + 1)}, s55, {vr(va + 1)}
        v_lshrrev_b32 {vr(va)}, 4, v0
        v_lshlrev_b32 {vr(va)}, 10, {vr(va)}
        v_lshl_add_u32 {vr(va)}, {vr(va + 1)}, 5, {vr(va)}
        v_bfe_u32 {vr(va + 1)}, v0, 2, 2
        v_lshl_add_u32 {vr(va)}, {vr(va + 1)}, 7, {vr(va)}
        v_and_b32 {vr(va + 1)}, 3, v0
        v_lshl_add_u32 {vr(va)}, {vr(va + 1)}, 3, {vr(va)}
        v_add_u32 {vr(va)}, {STG}, {vr(va)}
        v_add_u32 {vr(va + 1)}, {10 * 4096}, {vr(va)}
        ''')

    def wstage_read(self, rnd, va):
        k = self.k
        for s in range(20):
            r = WF + 4 * (20 * rnd + s)
            a = va if s < 10 else va + 1
            off = (s % 10) * 4096
            k(f'ds_read_b64_tr_b16 {vr(r, 2)}, {vr(a)} offset:{off}', tag='wrd')
            k(f'ds_read_b64_tr_b16 {vr(r + 2, 2)}, {vr(a)} offset:{off + 512}', tag='wrd')

    def cmul(self, d, a, b):
        self.k(f'v_pk_mul_f32 {vr(d, 2)}, {vr(a, 2)}, {vr(b, 2)} op_sel:[0,0] op_sel_hi:[0,1]')
        self.k(f'v_pk_fma_f32 {vr(d, 2)}, {vr(a, 2)}, {vr(b, 2)}, {vr(d, 2)} op_sel:[1,1,0] op_sel_hi:[1,0,1] neg_lo:[1,0,0]')

    def zpow(self, d, e, a2, fr, t):
        k = self.k
        k(f'''
        v_mul_f32 {vr(t)}, {f32(e)}, {vr(a2)}
        v_mul_f32 {vr(t + 1)}, {f32(e)}, {vr(fr)}
        v_exp_f32 {vr(t)}, {vr(t)}
        v_fract_f32 {vr(t + 1)}, {vr(t + 1)}
        v_cos_f32 {vr(d)}, {vr(t + 1)}
        v_sin_f32 {vr(d + 1)}, {vr(t + 1)}
        v_mul_f32 {vr(d)}, {vr(d)}, {vr(t)}
        v_mul_f32 {vr(d + 1)}, {vr(d + 1)}, {vr(t)}
        ''')

    def kgen(self):
        k = self.k
        Lskip = k.label('nokg')
        k(f's_cmp_ge_u32 {sr(sW)}, 6\ns_cbranch_scc1 {Lskip}')
        A2, FR, T = 28, 29, 30
        Z = {e: 32 + 2 * e for e in range(1, 8)}
        Z8, Z128, QA, QB, PA, PB, PC = 48, 50, 52, 54, 56, 58, 60
        CV = 62
        QF, PF, AC = 64, 176, 192
        RA = 80
        k(f'''
        v_lshlrev_b32 v24, 16, v24
        v_lshlrev_b32 v20, 16, v20
        v_mul_f32 v24, {f32(LOG2E)}, v24
        v_mul_f32 v20, {f32(LOG2E)}, v20
        v_exp_f32 v24, v24
        v_exp_f32 v20, v20
        v_lshlrev_b32 v21, 16, v21
        v_cvt_pk_bf16_f32 v20, v20, v24
        v_and_b32 v24, 0xffff0000, v20
        v_lshlrev_b32 v20, 16, v20
        v_mul_f32 {vr(A2)}, v20, v24
        v_mul_f32 {vr(FR)}, v21, v24
        v_mul_f32 {vr(A2)}, {f32(-LOG2E)}, {vr(A2)}
        v_mul_f32 {vr(FR)}, 0.15915494, {vr(FR)}
        v_add_f32 v24, v24, v24
        v_lshlrev_b32 v22, 16, v22
        v_lshlrev_b32 v23, 16, v23
        v_mul_f32 {vr(QA)}, v22, v24
        v_mul_f32 {vr(QA + 1)}, v23, v24
        s_mul_i32 s60, {sr(sW)}, {KGS}
        s_mov_b32 m0, s60
        v_and_b32 {vr(RA)}, 15, v0
        v_mul_u32_u24 {vr(RA)}, 288, {vr(RA)}
        v_lshrrev_b32 {vr(RA + 1)}, 4, v0
        v_lshl_add_u32 {vr(RA)}, {vr(RA + 1)}, 4, {vr(RA)}
        v_add_u32 {vr(RA)}, s60, {vr(RA)}
        ''')
        self.zpow(Z8, 8.0, A2, FR, T)
        self.zpow(Z[1], 1.0, A2, FR, T)
        self.zpow(Z128, 128.0, A2, FR, T)
        flip = [0]

        def put(row, r, neg=False):
            c = CV + flip[0]
            flip[0] ^= 1
            k(f'v_cvt_pk_bf16_f32 {vr(c)}, {vr(r)}, {"-" if neg else ""}{vr(r + 1)}')
            k(f'ds_write_addtid_b32 {vr(c)} offset:{288 * row}')

        def frags(dst):
            for s in range(4):
                k(f'ds_read_b128 {vr(dst + 4 * s, 4)}, {vr(RA)} offset:{64 * s}')

        def mm(acc):
            for s in range(4):
                c = '0' if s == 0 else vr(acc, 4)
                k(f'v_mfma_f32_16x16x32_bf16 {vr(acc, 4)}, {vr(PF + 4 * s, 4)}, {vr(QF + 4 * s, 4)}, {c}')

        small = [(2, 1, 1), (3, 2, 1), (4, 2, 2), (5, 4, 1), (6, 4, 2), (7, 4, 3)]
        cur, nxt = QA, QB
        for b in range(16):
            if b < 15:
                self.cmul(nxt, cur, Z8)
            put(b, cur, neg=True)
            if b < len(small):
                e, x, y = small[b]
                self.cmul(Z[e], Z[x], Z[y])
            cur, nxt = nxt, cur
        frags(QF)
        self.stage_b_touch()
        k(f'v_mov_b32 {vr(CV)}, 0x3f80')
        k(f'ds_write_addtid_b32 {vr(CV)} offset:0')
        flip[0] = 1
        put(8, Z128)
        cur, nxt = PA, PB
        for e in range(1, 8):
            self.cmul(cur, Z[e], Z128)
            put(e, Z[e])
            put(8 + e, cur)
            cur, nxt = nxt, cur
        frags(PF)
        self.cmul(QA, Z128, Z128)
        self.cmul(QB, QA, Z128)
        mm(AC)
        put(0, QA)
        put(4, QB)
        for e in (1, 2, 3):
            self.cmul(PA, QA, Z[2 * e])
            self.cmul(PB, QB, Z[2 * e])
            put(e, PA)
            put(4 + e, PB)
        cur, nxt = QB, QA
        for a in range(4):
            self.cmul(nxt, cur, Z128)
            self.cmul(PA, nxt, Z[4])
            put(8 + 2 * a, nxt)
            put(9 + 2 * a, PA)
            cur, nxt = nxt, cur
        frags(PF)
        self.cmul(nxt, cur, Z128)
        cur, nxt = nxt, cur
        mm(AC + 4)
        for a in range(9):
            if a < 8:
                self.cmul(nxt, cur, Z128)
            put(a, cur)
            cur, nxt = nxt, cur
        frags(PF)
        k(f'''
        v_lshrrev_b32 {vr(RA + 1)}, 4, v0
        v_mul_u32_u24 {vr(RA + 1)}, 320, {vr(RA + 1)}
        v_and_b32 {vr(RA + 2)}, 15, v0
        v_lshl_add_u32 {vr(RA + 1)}, {vr(RA + 2)}, 2, {vr(RA + 1)}
        s_mul_i32 s55, {sr(sW)}, {KCS}
        s_add_u32 s55, s55, {KC}
        v_add_u32 {vr(RA + 1)}, s55, {vr(RA + 1)}
        ''')
        for Tt in range(2):
            for i in range(4):
                k(f'ds_write_b32 {vr(RA + 1)}, {vr(AC + 4 * Tt + i)} offset:{(16 * Tt + i) * 80}', tag='kcw')
        mm(AC + 8)
        for i in range(4):
            k(f'ds_write_b32 {vr(RA + 1)}, {vr(AC + 8 + i)} offset:{(32 + i) * 80}', tag='kcw')
        wk = self.o.get('wk', 0)
        if wk:
            k(f's_cmp_ge_u32 {sr(sW)}, 4\ns_cbranch_scc1 {Lskip}')
            k(f's_add_u32 {sr(sWI)}, {sr(sW)}, {5 + 2 * self.o.get("wb", 10)}')
            self.wunits(wk, min(40, 5 + 2 * self.o.get('wb', 10) + 4 * wk), 4)
        k(f'{Lskip}:')

    def kexpand1(self):
        k = self.k
        V = lambda ch, j: 36 + 4 * ch + j
        PK, SC = 48, 54
        k(f'''
        v_lshlrev_b32 v25, 16, v25
        v_cmp_eq_u32 s[58:59], 0, v208
        v_readlane_b32 s62, v25, 0
        v_readlane_b32 s63, v25, 1
        v_readlane_b32 s64, v25, 2
        v_mov_b32 v64, 0
        v_mov_b32 v65, 0
        v_mov_b32 v66, 0
        v_mov_b32 v67, 0
        v_lshlrev_b32 v35, 4, v0
        ''')
        for ch in range(3):
            k(f'v_mov_b32 {vr(SC + ch)}, s{62 + ch}')
            k(f'v_cndmask_b32 {vr(SC + ch)}, 0, {vr(SC + ch)}, s[58:59]')
        k.wait('kcw')
        k('s_barrier')
        self.stamp('kcw')
        if self.o.get('pre1', 2) == 1:
            L = self.only_wave(0)
            self.poll_sync1_issue(215, 68)
            k(f'{L}:')
        for ch in range(3):
            for j in range(4):
                k(f'ds_read2st64_b32 {vr(176 + 8 * ch + 2 * j, 2)}, {vr(GA + j)} offset0:{30 * ch} offset1:{30 * ch + 15}')
        L = self.only_wave(7)
        k(f's_mov_b32 exec_lo, -1\ns_mov_b32 exec_hi, 0x3ff')
        k(f'ds_write_b128 v35, v[64:67] offset:{XNL0 - 672}', tag='kaw')
        k(f's_mov_b64 exec, 3')
        for ch in range(3):
            k(f'ds_write_b128 v35, v[64:67] offset:{KA + ch * KAS}', tag='kaw')
        k(f's_mov_b64 exec, -1')
        k(f'{L}:')
        done = min(40, 5 + 2 * self.o.get('wb', 10) + 4 * self.o.get('wk', 0))
        if done < 40:
            k(f's_add_u32 {sr(sWI)}, {sr(sW)}, {done}')
            self.wunits((40 - done + 7) // 8, 40, 8)
        for ch in range(3):
            for j in range(4):
                k(f'v_add_f32 {vr(V(ch, j))}, {vr(176 + 8 * ch + 2 * j)}, {vr(177 + 8 * ch + 2 * j)}')
            k(f'v_add_f32 {vr(V(ch, 0))}, {vr(V(ch, 0))}, {vr(SC + ch)}')
        for ch in range(3):
            k(f'v_cvt_pk_bf16_f32 {vr(PK + 2 * ch)}, {vr(V(ch, 0))}, {vr(V(ch, 1))}')
            k(f'v_cvt_pk_bf16_f32 {vr(PK + 2 * ch + 1)}, {vr(V(ch, 2))}, {vr(V(ch, 3))}')
            k(f'ds_write_b64 v208, {vr(PK + 2 * ch, 2)} offset:{KA + ch * KAS + 32}', tag='kaw')
        if self.o.get('pre1', 2) == 2:
            L = self.only_wave(0)
            self.poll_sync1_issue(215, 68)
            k(f'{L}:')
        for j in range(1, 4):
            for ch in range(3):
                k(f'v_add_f32 {vr(V(ch, j))}, {vr(V(ch, j))}, {vr(V(ch, j - 1))}')
        for n in (1, 2, 4, 8):
            for ch in range(3):
                src = V(ch, 3) if n == 1 else SC + ch
                k(f'v_add_f32_dpp {vr(SC + ch)}, {vr(src)}, {vr(src)} row_shr:{n} row_mask:0xf bank_mask:0xf bound_ctrl:0')
        for ch in range(3):
            k(f'v_add_f32_dpp {vr(SC + ch)}, {vr(SC + ch)}, {vr(SC + ch)} row_bcast:15 row_mask:0xa bank_mask:0xf')
        for ch in range(3):
            k(f'v_add_f32_dpp {vr(SC + ch)}, {vr(SC + ch)}, {vr(SC + ch)} row_bcast:31 row_mask:0xc bank_mask:0xf')
        k(f'''
        s_lshl_b32 s55, {sr(sW)}, 2
        s_add_u32 s55, s55, {WT}
        v_mov_b32 v33, s55
        s_mov_b32 exec_lo, 0
        s_brev_b32 exec_hi, 1
        ''')
        for ch in range(3):
            k(f'ds_write_b32 v33, {vr(SC + ch)} offset:{32 * ch}', tag='kaw')
        k('s_mov_b64 exec, -1')

    def kexpand2(self):
        k = self.k
        V = lambda ch, j: 36 + 4 * ch + j
        SC = 54
        k(f'''
        v_min_u32 v33, 23, v0
        v_lshlrev_b32 v33, 2, v33
        v_add_u32 v33, {WT}, v33
        ds_read_b32 v34, v33
        v_and_b32 v33, 7, v0
        v_cmp_gt_u32 vcc, {sr(sW)}, v33
        ''')
        for ch in range(3):
            k(f'v_sub_f32 {vr(SC + ch)}, {vr(SC + ch)}, {vr(V(ch, 3))}')
        k('v_cndmask_b32 v34, 0, v34, vcc')
        for n in (1, 2, 4):
            k(f'v_add_f32_dpp v34, v34, v34 row_shr:{n} row_mask:0xf bank_mask:0xf bound_ctrl:0')
        k(f'''
        v_readlane_b32 s62, v34, 7
        v_readlane_b32 s63, v34, 15
        v_readlane_b32 s64, v34, 23
        ''')
        for ch in range(3):
            k(f'v_add_f32 {vr(SC + ch)}, s{62 + ch}, {vr(SC + ch)}')
            for j in range(4):
                k(f'v_add_f32 {vr(V(ch, j))}, {vr(V(ch, j))}, {vr(SC + ch)}')
            k(f'ds_write_b128 v209, {vr(V(ch, 0), 4)} offset:{SA + ch * SAS}', tag='saw')

    def conv_loads(self):
        k = self.k
        k(f'''
        s_lshl_b32 s60, {sr(sW)}, 10
        s_mov_b32 s57, {XN}
        s_mov_b32 s58, {MS}
        ''')
        L = self.only_wave(0)
        self.poll_sync1(215, 68, preissued=self.o.get('pre1', 2))
        k(f'{L}:')
        k.wait('kaw', 'wst')
        k('s_barrier')
        self.stamp('sync1')
        k(f's_add_u32 m0, s60, {XNL0}')
        k(f'buffer_load_dwordx4 v210, {P4(rWS)}, s57 offen sc1 lds', tag='xnl')
        L = k.label('x2')
        k(f's_cmp_ge_u32 {sr(sW)}, 4\ns_cbranch_scc1 {L}\ns_add_u32 m0, s60, {XNL0 + 8192}')
        k(f'buffer_load_dwordx4 v211, {P4(rWS)}, s57 offen sc1 lds', tag='xnl')
        k(f'{L}:\ns_add_u32 m0, s60, {MSL}')
        k(f'buffer_load_dwordx4 v212, {P4(rWS)}, s58 offen sc1 lds', tag='xnl')
        if self.o.get('pf1', 2) == 1:
            L = k.label('npf')
            k(f'''
            s_cmp_ge_u32 {sr(sW)}, 2
            s_cbranch_scc1 {L}
            s_cmp_eq_u32 {sr(sW)}, 0
            s_cselect_b32 s56, s{pWG}, s{pWU}
            s_cselect_b32 s57, s{pWG + 1}, s{pWU + 1}
            s_mul_i32 s55, {sr(sWR)}, {8 * 3456}
            s_lshl_b32 s58, {sr(sNB)}, 7
            s_add_u32 s55, s55, s58
            s_add_u32 s55, s55, {320 * 3456}
            ''')
            self.touch(56, 640 * 1728 * 2, 's55', stride=3456, lanes=40)
            k(f'{L}:')

    def conv_consts(self):
        k = self.k
        Lr, Ld = k.label('mr'), k.label('md')
        chk = f'''
        v_min_u32 v16, v17, v23
        v_cmp_eq_u32 vcc, 0, v16
        s_cbranch_vccz {Ld}
        '''
        k(chk)
        k(f'''
        {Lr}:
        global_load_dword v17, v88, {P2(pWS)} sc1
        global_load_dword v23, v88, {P2(pWS)} offset:1024 sc1
        ''')
        k(chk)
        k(f'''
        s_sleep {self.o.get('sleep', 2)}
        s_add_u32 {sr(sSPIN)}, {sr(sSPIN)}, 1
        s_cmp_lt_u32 {sr(sSPIN)}, {SPIN_MAX}
        s_cbranch_scc1 {Lr}
        {Ld}:
        v_add_f32 v17, v17, v23
        v_add_f32_dpp v17, v17, v17 quad_perm:[1,0,3,2] row_mask:0xf bank_mask:0xf
        v_add_f32_dpp v17, v17, v17 quad_perm:[2,3,0,1] row_mask:0xf bank_mask:0xf
        v_cvt_pk_bf16_f32 v17, v17, v17
        v_lshlrev_b32 v17, 16, v17
        v_add_f32 v16, 1.0, v17
        v_cvt_pk_bf16_f32 v16, v16, v16
        v_lshlrev_b32 v16, 16, v16
        ''')
        for ch in range(3):
            k(f'v_readlane_b32 s55, v17, {4 * (6 + ch)}')
            k(f'v_readlane_b32 {sr(sCH + 3 * ch + 2)}, v16, {4 * (9 + ch)}')
            k(f'v_mul_f32 v18, s55, v16\nv_mul_f32 v19, s55, v17')
            k(f'v_readlane_b32 {sr(sCH + 3 * ch)}, v18, {4 * (3 + ch)}')
            k(f'v_readlane_b32 {sr(sCH + 3 * ch + 1)}, v19, {4 * ch}')

    def conv(self):
        k = self.k
        H, KF, ACC, AX = 32, 64, 176, 208
        vHB, vKB, vH, vK, vXB, vSB, vO = 1, 2, 3, 4, 5, 6, 7
        XV, SV, TT, MV = 212, 216, 224, 244
        sL, sG, sC, sN = 65, 66, 67, 68
        sG2, sC2, sM, sO, sME, sOE = 94, 95, 96, 97, 98, 99
        U = lambda G, ch: 4 * ch + G
        lists = self.o.get('units') or [[U(3, 0)], [U(3, 1)], [U(3, 2)], [U(2, 0)], [U(0, 0), U(1, 0)], [U(0, 1), U(1, 1)],
                                        [U(0, 2), U(2, 2)], [U(1, 2), U(2, 1)]]
        lo = sum(lists[w][0] << (4 * w) for w in range(8))
        hi = sum(lists[w][1] << (4 * (w - 4)) for w in range(4, 8))
        hs = lambda m: H + 4 * (m % 8)
        ks = lambda q: KF + 4 * (q % 4)

        def ldh(slot_m, base, off):
            k(f'ds_read_b64_tr_b16 {vr(hs(slot_m), 2)}, {vr(base)} offset:{off}')
            k(f'ds_read_b64_tr_b16 {vr(hs(slot_m) + 2, 2)}, {vr(base)} offset:{off + 96}')

        def ldk(q, off):
            k(f'ds_read_b64_tr_b16 {vr(ks(q), 2)}, {vr(vK)} offset:{off + 32}')
            k(f'ds_read_b64_tr_b16 {vr(ks(q) + 2, 2)}, {vr(vK)} offset:{off}')

        def mf(acc, m, q, zero=False):
            c = '0' if zero else vr(acc, 4)
            k(f'v_mfma_f32_16x16x32_bf16 {vr(acc, 4)}, {vr(hs(m), 4)}, {vr(ks(q), 4)}, {c}')

        def decode(code):
            k(f"""
            s_and_b32 {sr(sG)}, {code}, 3
            s_bfe_u32 {sr(sC)}, {code}, 0x20002
            s_mul_i32 s55, {sr(sG)}, 3072
            s_lshl_b32 s56, {sr(sC)}, 4
            s_add_u32 s55, s55, s56
            v_add_u32 {vr(vH)}, s55, {vr(vHB)}
            v_add_u32 v8, s55, {vr(vXB)}
            s_mul_i32 s56, {sr(sC)}, {KAS}
            v_add_u32 {vr(vK)}, s56, {vr(vKB)}
            s_lshl_b32 s55, {sr(sC)}, 13
            s_lshl_b32 s56, {sr(sG)}, 11
            s_add_u32 s55, s55, s56
            s_add_u32 s55, s55, {SA}
            v_lshl_add_u32 {vr(vSB)}, v0, 2, s55
            s_add_u32 s56, s56, {MSL}
            v_lshl_add_u32 v22, v0, 2, s56
            """)

        def first_loads():
            ldk(0, 0)
            for i in (7, 6, 5, 4, 3, 2, 1, 0):
                ldh(i, vH, 384 * i)
            ldk(1, 256)
            k(f'v_subrev_u32 v11, 768, {vr(vH)}\nv_subrev_u32 {vr(vH)}, 3840, {vr(vH)}')

        def const_loads():
            k(f'global_load_dword v17, v88, {P2(pWS)} sc1\nglobal_load_dword v23, v88, {P2(pWS)} offset:1024 sc1')

        def tab_loads():
            k(f'global_load_dwordx2 v[12:13], v90, {P2(pWS)} sc1\nglobal_load_dwordx2 v[14:15], v90, {P2(pWS)} offset:2560 sc1')

        def wdma(part):
            if self.o.get('x_cnow'):
                return
            if part == 0:
                k(f's_mov_b32 m0, {sr(sM)}')
                k(f'buffer_load_dwordx4 v26, {P4(rA)}, {sr(sO)} offen lds', tag='wst')
            else:
                k(f's_add_u32 m0, {sr(sM)}, 1024\ns_add_u32 {sr(sM)}, {sr(sM)}, 2048')
                k(f'buffer_load_dwordx4 v27, {P4(rB)}, {sr(sO)} offen lds', tag='wst')
                k(f's_add_u32 {sr(sO)}, {sr(sO)}, {8 * 3456}\ns_min_u32 {sr(sM)}, {sr(sM)}, {sr(sME)}\ns_min_u32 {sr(sO)}, {sr(sO)}, {sr(sOE)}')

        def mfma_part(dma, consts, tabs, maybe_short):
            Lloop, Ltail = k.label('cl'), k.label('ct')
            for e in range(4):
                k(f'v_mov_b32 {vr(AX + e)}, 0')
            k(f's_mov_b32 {sr(sN)}, {sr(sG)}')
            mf(ACC + 28, 7, 0, True)
            mf(ACC + 24, 6, 0, True)
            ldh(6, 11, 0)
            ldh(7, 11, 384)
            for i in (5, 4, 3, 2, 1, 0):
                mf(ACC + 4 * i, i, 0, True)
            if maybe_short:
                k(f's_cmp_eq_u32 {sr(sN)}, 0\ns_cbranch_scc1 {Ltail}')
            k(f'{Lloop}:')
            for u in range(1, 5):
                mf(ACC + 28, 7 - 2 * u, u)
                mf(ACC + 24, 6 - 2 * u, u)
                ldh(6 - 2 * u, vH, 384 * (8 - 2 * u))
                ldh(7 - 2 * u, vH, 384 * (9 - 2 * u))
                ldk(u + 1, 256 * (u + 1))
                for i in (5, 4, 3, 2, 1, 0):
                    mf(ACC + 4 * i, i - 2 * u, u)
                    if self.o.get('wslow', 1):
                        if dma and i == 3:
                            wdma((u + 1) % 2)
                    else:
                        if dma and i == 5:
                            wdma(0)
                        if dma and i == 2:
                            wdma(1)
                    if i == 4 and u == 2 and consts:
                        const_loads()
                    if i == 4 and u == 3 and tabs and not self.o.get('tab_tail', 1):
                        tab_loads()
                    if u == 4 and i == 1:
                        k(f's_sub_u32 {sr(sN)}, {sr(sN)}, 1')
                        k(f'v_subrev_u32 {vr(vH)}, 3072, {vr(vH)}\nv_add_u32 {vr(vK)}, 1024, {vr(vK)}')
                mf(AX, 1 - 2 * u, u - 1)
            k(f's_cmp_lg_u32 {sr(sN)}, 0\ns_cbranch_scc1 {Lloop}\n{Ltail}:')
            if tabs and self.o.get('tab_tail', 1):
                tab_loads()
            ldk(2, 512)
            for i in (7, 6, 5, 4, 3, 2):
                mf(ACC + 4 * i, i - 2, 1)
                if dma and self.o.get('wslow', 1) and i in (6, 3):
                    wdma(0 if i == 6 else 1)
            ldk(3, 768)
            k(f'ds_read_b64_tr_b16 {vr(XV, 2)}, v8')
            k(f'ds_read_b64_tr_b16 {vr(XV + 2, 2)}, v8 offset:1536')
            for i in range(4):
                k(f'ds_read2st64_b32 {vr(SV + 2 * i, 2)}, {vr(vSB)} offset0:{2 * i} offset1:{2 * i + 1}')
            for i in range(4):
                k(f'ds_read2st64_b32 {vr(MV + 2 * i, 2)}, v22 offset0:{2 * i} offset1:{2 * i + 1}')
            for i in (7, 6, 5, 4):
                mf(ACC + 4 * i, i - 4, 2)
            for i in (7, 6):
                mf(ACC + 4 * i, i - 6, 3)

        def epilogue(g, c, consts):
            SH = 'wave_shr:1 row_mask:0xf bank_mask:0xf'
            RO = 'wave_ror:1 row_mask:0xf bank_mask:0xf'
            a = lambda i, e: (AX if i < 0 else ACC + 4 * i) + e
            t2 = lambda i: TT + 1 + i
            t1 = lambda i: TT + 11 + i
            k(f"""
            s_add_u32 s58, {sr(sD0)}, {sr(c)}
            s_lshl_b32 s58, s58, 12
            s_lshl_b32 s59, {sr(g)}, 10
            s_add_u32 s58, s58, s59
            s_add_u32 s59, s58, {X1S}
            s_add_u32 s58, s58, {X1T}
            """)
            k(f'v_add_f32_dpp {vr(t2(-1))}, {vr(a(-1, 3))}, {vr(a(-1, 2))} {SH} bound_ctrl:0')
            for i in range(8):
                k(f'v_add_f32_dpp {vr(t2(i))}, {vr(a(i - 1, 3))}, {vr(a(i, 2))} {RO}')
            for i in range(8):
                k(f'v_add_f32_dpp {vr(t2(i))}, {vr(a(i, 3))}, {vr(a(i, 2))} {SH}')
            k(f'v_add_f32_dpp {vr(t1(-1))}, {vr(t2(-1))}, {vr(a(-1, 1))} {SH} bound_ctrl:0')
            for i in range(8):
                k(f'v_add_f32_dpp {vr(t1(i))}, {vr(t2(i - 1))}, {vr(a(i, 1))} {RO}')
            for i in range(8):
                k(f'v_add_f32_dpp {vr(t1(i))}, {vr(t2(i))}, {vr(a(i, 1))} {SH}')
            for i in range(8):
                k(f'v_add_f32_dpp {vr(a(i, 3))}, {vr(t1(i - 1))}, {vr(a(i, 0))} {RO}')
            for i in range(8):
                k(f'v_add_f32_dpp {vr(a(i, 3))}, {vr(t1(i))}, {vr(a(i, 0))} {SH}')
            for i in range(8):
                xr = XV + i // 2
                if i % 2 == 0:
                    k(f'v_lshlrev_b32 {vr(t1(i))}, 16, {vr(xr)}')
                else:
                    k(f'v_and_b32 {vr(t1(i))}, 0xffff0000, {vr(xr)}')
                k(f'v_lshlrev_b32 {vr(t2(i))}, 16, {vr(MV + i)}')
                k(f'v_and_b32 {vr(MV + i)}, 0xffff0000, {vr(MV + i)}')
                k(f'v_fmac_f32 {vr(t2(i))}, {vr(t1(i))}, {vr(MV + i)}')
            if consts:
                self.conv_consts()
            k(f"""
            s_cmp_eq_u32 {sr(c)}, 1
            s_cselect_b32 s55, {sr(sCH + 3)}, {sr(sCH)}
            s_cselect_b32 s56, {sr(sCH + 4)}, {sr(sCH + 1)}
            s_cselect_b32 s57, {sr(sCH + 5)}, {sr(sCH + 2)}
            s_cmp_eq_u32 {sr(c)}, 2
            s_cselect_b32 s55, {sr(sCH + 6)}, s55
            s_cselect_b32 s56, {sr(sCH + 7)}, s56
            s_cselect_b32 s57, {sr(sCH + 8)}, s57
            """)
            for i in range(8):
                k(f'v_fmac_f32 {vr(t2(i))}, s56, {vr(SV + i)}')
            for i in range(8):
                k(f'v_fmac_f32 {vr(t2(i))}, s55, {vr(a(i, 3))}')
            for i in range(4):
                k(f'v_cvt_pk_bf16_f32 {vr(XV + i)}, {vr(t2(2 * i))}, {vr(t2(2 * i + 1))}')
            for i in range(8):
                k(f'v_mul_f32 {vr(t2(i))}, s57, {vr(t2(i))}')
            k(f'buffer_store_dwordx4 {vr(XV, 4)}, {vr(vO)}, {P4(rWS)}, s58 offen sc1', tag='x1st')
            for i in range(4):
                k(f'v_cvt_pk_bf16_f32 {vr(SV + i)}, {vr(t2(2 * i))}, {vr(t2(2 * i + 1))}')
            k(f'buffer_store_dwordx4 {vr(SV, 4)}, {vr(vO)}, {P4(rWS)}, s59 offen sc1', tag='x1st')

        if self.o.get('wslow', 1):
            cnt = [7, 7, 7, 5, 3, 3, 4, 4]
            st = [sum(cnt[:w]) for w in range(8)]
            pk = lambda v: (sum(x << (8 * i) for i, x in enumerate(v[:4])), sum(x << (8 * i) for i, x in enumerate(v[4:])))
            a, b = pk(st), pk([x + c - 1 for x, c in zip(st, cnt)])
            wrange = f'''s_cmp_lt_u32 {sr(sW)}, 4
            s_mov_b32 s55, {a[1]}
            s_cmov_b32 s55, {a[0]}
            s_mov_b32 s56, {b[1]}
            s_cmov_b32 s56, {b[0]}
            s_and_b32 s57, {sr(sW)}, 3
            s_lshl_b32 s57, s57, 3
            s_lshr_b32 s55, s55, s57
            s_lshr_b32 s56, s56, s57
            s_and_b32 s55, s55, 0xff
            s_and_b32 s56, s56, 0xff'''
        else:
            wrange = f's_mul_i32 s55, {sr(sW)}, 11\ns_add_u32 s56, s55, 10\ns_min_u32 s56, s56, 39'
        k(f"""
        s_lshl_b32 s55, {sr(sW)}, 2
        s_lshr_b32 {sr(sL)}, {hex(lo)}, s55
        v_lshlrev_b32 {vr(vO)}, 4, v0
        {wrange}
        s_lshl_b32 {sr(sM)}, s55, 11
        s_add_u32 {sr(sM)}, {sr(sM)}, {STG}
        s_lshl_b32 {sr(sME)}, s56, 11
        s_add_u32 {sr(sME)}, {sr(sME)}, {STG}
        s_add_u32 s55, s55, 40
        s_mul_i32 {sr(sO)}, s55, {8 * 3456}
        s_add_u32 s56, s56, 40
        s_mul_i32 {sr(sOE)}, s56, {8 * 3456}
        """)
        decode(sr(sL))
        Ly, Ld = k.label('cy'), k.label('cdone')
        k.wait('xnl', 'saw', 'wrd')
        k(f's_cmp_ge_u32 {sr(sW)}, 4\ns_cbranch_scc1 {Ly}')
        k('s_barrier')
        self.stamp('xnl')
        first_loads()
        mfma_part(True, True, True, False)
        self.stamp('c_mm')
        epilogue(sG, sC, True)
        k(f's_branch {Ld}')
        k(f'{Ly}:')
        if self.o.get('prio', True):
            k('s_setprio 2')
        k('s_barrier')
        self.stamp('xnl')
        first_loads()
        const_loads()
        mfma_part(False, True, False, True)
        k(f"""
        s_mov_b32 {sr(sG2)}, {sr(sG)}
        s_mov_b32 {sr(sC2)}, {sr(sC)}
        s_lshl_b32 s55, {sr(sW)}, 2
        s_lshr_b32 {sr(sL)}, {hex(hi << 16)}, s55
        """)
        decode(sr(sL))
        first_loads()
        epilogue(sG2, sC2, True)
        def pub(g):
            Ln = k.label('npub')
            k(f"""
            s_cmp_ge_u32 {sr(g)}, 2
            s_cbranch_scc1 {Ln}
            s_sub_u32 s55, {sr(sW)}, 4
            s_min_u32 s55, s55, 2
            s_lshl_b32 s55, s55, 3
            s_add_u32 s55, s55, {sr(sMB)}
            s_mul_i32 s56, {sr(g)}, {(SYNC2C - SYNC2A) // 128}
            s_add_u32 s55, s55, s56
            """)
            k.wait('x1st')
            self.arrive(SYNC2A, 24, 's55', 9)
            self.stamp('pub0')
            k(f'{Ln}:')
        Lp = k.label('kp')
        if self.o.get('prio1', 1):
            k(f's_cmp_eq_u32 {sr(sG)}, 1\ns_cbranch_scc1 {Lp}')
        k(f's_setprio 0\n{Lp}:')
        pub(sG2)
        mfma_part(bool(self.o.get('wslow', 1)), False, True, False)
        self.stamp('c_mm')
        epilogue(sG, sC, False)
        k('s_setprio 0')
        pub(sG)
        k(f'{Ld}:')
        self.stamp('conv')

    def window2(self):
        k = self.k
        AC, TF, CB = 32, 16, 92
        Lr, Ld = k.label('tb'), k.label('tbd')
        chk = f'''
        v_min_u32 v16, v12, v13
        v_min3_u32 v16, v16, v14, v15
        v_cmp_eq_u32 vcc, 0, v16
        s_cbranch_vccz {Ld}
        '''
        k(chk)
        k(f'''
        {Lr}:
        global_load_dwordx2 v[12:13], v90, {P2(pWS)} sc1
        global_load_dwordx2 v[14:15], v90, {P2(pWS)} offset:2560 sc1
        ''')
        k(chk)
        k(f'''
        s_sleep {self.o.get('sleep', 2)}
        s_add_u32 {sr(sSPIN)}, {sr(sSPIN)}, 1
        s_cmp_lt_u32 {sr(sSPIN)}, {SPIN_MAX}
        s_cbranch_scc1 {Lr}
        {Ld}:
        v_and_b32 v14, 0xffff0000, v14
        v_and_b32 v15, 0xffff0000, v15
        v_add_f32 v14, 1.0, v14
        v_add_f32 v15, 1.0, v15
        s_mov_b32 s55, 0x07060302
        v_cvt_pk_bf16_f32 v14, v14, v15
        v_perm_b32 v12, v13, v12, s55
        v_lshlrev_b32 v20, 2, v89
        v_add_u32 v20, {TAB}, v20
        ''')
        k(f'ds_write_b32 v20, v14', tag='tabw')
        k(f'ds_write_b32 v20, v12 offset:1280', tag='tabw')
        self.g1_setup()
        L = self.only_wave(0)
        self.poll(7, 5, 27, nl=24)
        k(f'{L}:')
        k.wait('wst', 'tabw')
        k('s_barrier')
        self.stamp('barX')
        if self.o['stop'] != 'conv':
            for c in range(2):
                for i in range(2):
                    self.g1_dma(c, i)

        self.wstage_read(1, 10)
        Lj = k.label('csj')
        k(f'''
        s_cmp_ge_u32 {sr(sW)}, 4
        s_cbranch_scc1 {Lj}
        s_mul_i32 s55, {sr(sM1)}, 160
        v_add_u32 v8, s55, v8
        ''')
        for n in range(5):
            k(f'ds_read_b128 {vr(48 + 4 * n, 4)}, v8 offset:{32 * n}')
        Lv = [k.label('csv') for _ in range(8)]
        Le = k.label('cse')
        for m in range(1, 8):
            k(f's_cmp_eq_u32 {sr(sM1)}, {m}\ns_cbranch_scc1 {Lv[m]}')
        for m in range(8):
            k(f'{Lv[m]}:')
            for n in range(5):
                c = '0' if n == 0 else vr(AC, 16)
                k(f'v_mfma_f32_32x32x16_bf16 {vr(AC, 16)}, {vr(48 + 4 * n, 4)}, {vr(WF + 4 * (5 * m + n), 4)}, {c}')
            if m < 7:
                k(f's_branch {Le}')
        k(f'''
        {Le}:
        s_lshl_b32 s55, {sr(sNB)}, 3
        s_add_u32 s55, s55, {sr(sM1)}
        s_lshl_b32 s55, s55, 2
        s_add_u32 s55, s55, {sr(sW)}
        s_lshl_b32 s55, s55, 8
        s_add_u32 s55, s55, {CSP}
        v_lshlrev_b32 v9, 3, v0
        v_or_b32 {vr(AC)}, 1, {vr(AC)}
        v_or_b32 {vr(AC + 1)}, 1, {vr(AC + 1)}
        s_mov_b32 exec_hi, 0
        buffer_store_dwordx2 {vr(AC, 2)}, v9, {P4(rWS)}, s55 offen sc1
        s_mov_b32 exec_hi, -1
        {Lj}:
        ''')
        k.wait('x1st', 'wrd', 'ch0')
        k('s_barrier')
        self.stamp('barY')
        L = self.only_wave(4)
        k(f'''
        s_mul_i32 s55, {sr(sQ)}, 0x5556
        s_lshr_b32 s55, s55, 16
        s_mul_i32 s55, s55, 3
        s_sub_u32 s55, {sr(sQ)}, s55
        s_lshl_b32 s55, s55, 3
        s_add_u32 s55, s55, {sr(sMB)}
        ''')
        self.arrive(SYNC2B, 24, 's55', 12)
        k(f'{L}:')

    def cs_loads(self):
        k = self.k
        for j in range(4):
            k(f'global_load_dwordx2 {vr(80 + 2 * j if j < 3 else 88, 2)}, v79, {P2(pWS)} offset:{1024 * j} sc1')

    def cs_addr(self):
        self.k(f'''
        s_lshl_b32 s55, {sr(sNB)}, 13
        s_and_b32 s56, {sr(sW)}, 3
        s_lshl_b32 s56, s56, 8
        s_add_u32 s55, s55, s56
        s_add_u32 s55, s55, {CSP}
        v_lshrrev_b32 v79, 5, v0
        v_lshlrev_b32 v79, 12, v79
        v_and_b32 v78, 31, v0
        v_lshl_add_u32 v79, v78, 3, v79
        v_add_u32 v79, s55, v79
        ''')

    def cs_finish(self):
        k = self.k
        CB = 92
        Lr, Ld = k.label('cr'), k.label('cd')
        chk = f'''
        v_min3_u32 v90, v80, v81, v82
        v_min3_u32 v90, v90, v83, v84
        v_min3_u32 v90, v90, v85, v88
        v_min_u32 v90, v90, v89
        v_cmp_eq_u32 vcc, 0, v90
        s_cbranch_vccz {Ld}
        '''
        k(chk)
        k(f'{Lr}:\ns_sleep {self.o.get("sleep", 2)}')
        self.cs_loads()
        k(chk)
        k(f'''
        s_add_u32 {sr(sSPIN)}, {sr(sSPIN)}, 1
        s_cmp_lt_u32 {sr(sSPIN)}, {SPIN_MAX}
        s_cbranch_scc1 {Lr}
        {Ld}:
        v_add_f32 v80, v80, v82
        v_add_f32 v81, v81, v83
        v_add_f32 v84, v84, v88
        v_add_f32 v85, v85, v89
        v_add_f32 v80, v80, v84
        v_add_f32 v81, v81, v85
        v_mov_b32 v82, v80
        v_mov_b32 v83, v81
        v_cmp_gt_u32 vcc, 32, v0
        v_permlane32_swap_b32 v80, v82
        v_permlane32_swap_b32 v81, v83
        v_mov_b32 {vr(CB + 2)}, 0
        v_mov_b32 {vr(CB + 3)}, 0
        v_add_f32 v80, v80, v82
        v_add_f32 v81, v81, v83
        v_cvt_pk_bf16_f32 v82, v80, v81
        v_lshlrev_b32 v83, 16, v82
        v_and_b32 v84, 0xffff0000, v82
        v_sub_f32 v80, v80, v83
        v_sub_f32 v81, v81, v84
        v_cvt_pk_bf16_f32 v80, v83, v80
        v_cvt_pk_bf16_f32 v81, v84, v81
        v_cndmask_b32 {vr(CB)}, 0, v80, vcc
        v_cndmask_b32 {vr(CB + 1)}, 0, v81, vcc
        ''')

    def g1_addr_early(self):
        self.k(f'''
        v_lshrrev_b32 v12, 3, v0
        v_lshlrev_b32 v24, 12, v12
        v_bfe_u32 v12, v0, 4, 1
        v_lshlrev_b32 v12, 2, v12
        v_and_b32 v13, 7, v0
        v_xor_b32 v12, v12, v13
        v_lshl_add_u32 v24, v12, 4, v24
        v_lshrrev_b32 v12, 5, v0
        v_bfe_u32 v13, v0, 2, 2
        v_lshl_add_u32 v12, v12, 3, v13
        v_lshlrev_b32 v25, 7, v12
        v_lshrrev_b32 v13, 1, v13
        s_lshr_b32 s55, {sr(sW)}, 2
        v_xor_b32 v13, s55, v13
        v_lshl_add_u32 v25, v13, 6, v25
        v_bfe_u32 v13, v0, 4, 1
        v_lshl_add_u32 v25, v13, 5, v25
        v_and_b32 v13, 3, v0
        v_lshl_add_u32 v25, v13, 3, v25
        v_add_u32 v25, {RING}, v25
        s_lshl_b32 s56, {sr(sM1)}, 6
        s_lshl_b32 s61, s55, 5
        s_add_u32 s56, s56, s61
        v_and_b32 v13, 31, v0
        v_add_u32 v13, s56, v13
        v_lshlrev_b32 v13, 2, v13
        v_add_u32 v28, {STATS}, v13
        s_lshl_b32 s56, {sr(sM1)}, 1
        s_add_u32 s56, s56, s55
        s_mul_i32 s56, s56, 108
        s_lshl_b32 s61, {sr(sNB)}, 2
        s_add_u32 s56, s56, s61
        s_and_b32 s61, {sr(sW)}, 3
        s_add_u32 s56, s56, s61
        s_lshl_b32 s56, s56, 10
        s_add_u32 s100, s56, {ACT}
        s_lshl_b32 s101, {sr(sW)}, 16
        s_lshl_b32 s55, {sr(sM1)}, 7
        s_add_u32 s101, s101, s55
        s_add_u32 s101, s101, {X1S}
        v_and_b32 v29, 1, v0
        v_mul_u32_u24 v29, 1280, v29
        v_lshrrev_b32 v13, 5, v0
        v_lshl_add_u32 v29, v13, 4, v29
        v_add_u32 v29, {TAB}, v29
        ''')
        self.wread_addr(30)
        self.poll_addr(SYNC2A, 24, 21)

    def g1_setup(self):
        self.k(f'''
        v_mov_b32 v1, v24
        v_mov_b32 v2, v25
        v_add_u32 v3, {3 * 16384}, v25
        v_mov_b32 v6, v28
        v_mov_b32 v8, v29
        v_mov_b32 v10, v30
        v_mov_b32 v11, v31
        v_mov_b32 v7, v21
        s_mov_b32 s65, s100
        s_mov_b32 s66, s101
        s_lshl_b32 s67, {sr(sW)}, 11
        ''')

    def g1_dma(self, c, i):
        k = self.k
        slot = c % NS
        t, cc = divmod(c, 5)
        if self.o.get('x_nodma') and c >= 5:
            return
        k(f's_add_u32 m0, s67, {RING + slot * 16384 + i * 1024}')
        k(f's_add_u32 s3, s66, {t * 1024 + (cc * 128 + 8 * i) * 4096}')
        k(f'buffer_load_dwordx4 v1, {P4(rWS)}, s3 offen sc1 lds', tag=f'ch{c}')

    def g2_park(self, i, f):
        k = self.k
        if i == 6:
            k(f's_cmp_lt_u32 {sr(sW)}, 6\ns_cselect_b64 exec, -1, 0')
        k(f's_add_u32 m0, s{64 if i == 0 else 60}, {f * 1024}\ns_add_u32 s3, s63, {i * 8 * 5120 + f * 1024}')
        k(f'buffer_load_dwordx4 v4, {P4(rWS)}, s3 offen sc1 lds', tag=f'park{i}')
        if i == 6:
            k('s_mov_b64 exec, -1')

    def g2_wload(self, i, f, mains_only=False):
        k = self.k
        if i in self.o.get('y_now', ()):
            return
        k(f's_add_u32 s3, s63, {i * 8 * 5120 + f * 1024}')
        k(f'buffer_load_dwordx4 {vr(W2[i] + 4 * f, 4)}, v4, {P4(rWS)}, s3 offen sc1')

    def g2_setup(self):
        k = self.k
        k(f'''
        s_lshr_b32 s55, s2, 3
        s_and_b32 s61, s55, 7
        s_lshr_b32 s55, s55, 3
        s_and_b32 s90, s55, 1
        s_lshr_b32 s55, s55, 1
        s_lshl_b32 s55, s55, 3
        s_add_u32 s62, s55, {sr(sMB)}
        s_mul_i32 s55, {sr(sW)}, 5120
        s_add_u32 s64, s55, {PARK0}
        s_add_u32 s60, s55, {PARK6A}
        s_sub_u32 s56, s55, {4 * 5120 - PARK6B}
        s_cmp_ge_u32 {sr(sW)}, 4
        s_cselect_b32 s60, s56, s60
        s_mul_i32 s63, s61, {54 * 5120}
        s_add_u32 s63, s63, {WD}
        s_add_u32 s63, s63, s55
        v_lshlrev_b32 v4, 4, v0
        ''')

    def g2_addr(self):
        k = self.k
        k(f'''
        v_lshrrev_b32 v76, 5, v0
        v_lshlrev_b32 v64, 10, v76
        v_bfe_u32 v76, v0, 4, 1
        v_lshl_add_u32 v64, v76, 9, v64
        v_and_b32 v77, 15, v0
        v_lshl_add_u32 v64, v77, 4, v64
        s_lshl_b32 s55, s62, 1
        s_add_u32 s55, s55, s90
        s_mul_i32 s55, s55, {108 * 1024}
        s_lshl_b32 s56, {sr(sW)}, 11
        s_add_u32 s55, s55, s56
        s_add_u32 s83, s55, {ACT}
        s_lshl_b32 s55, s62, 7
        s_add_u32 s55, s55, {SYNC3}
        v_mov_b32 v65, s55
        s_lshl_b32 s55, {sr(sW)}, 10
        s_add_u32 s55, s55, {PART}
        v_add_u32 v66, s55, v4
        v_add_u32 v67, 65536, v66
        s_lshl_b32 s55, {sr(sW)}, 13
        s_add_u32 s55, s55, {PART}
        v_add_u32 v68, s55, v4
        s_lshr_b32 s57, {sr(sW)}, 2
        s_and_b32 s58, {sr(sW)}, 3
        s_lshl_b32 s55, s57, 13
        s_lshl_b32 s56, s58, 8
        s_add_u32 s55, s55, s56
        s_add_u32 s55, s55, {PART + 65536}
        v_lshl_add_u32 v69, v77, 4, s55
        s_cmp_ge_u32 {sr(sW)}, 5
        s_cselect_b32 s59, 1, 0
        s_mul_i32 s55, s59, 5
        s_sub_u32 s86, {sr(sW)}, s55
        s_add_u32 s57, s57, 3
        v_lshrrev_b32 v76, 2, v0
        v_lshlrev_b32 v70, 6, v76
        v_and_b32 v78, 3, v0
        v_lshl_add_u32 v70, v78, 3, v70
        v_and_b32 v71, 0xff, v70
        s_lshl_b32 s55, s86, 10
        s_lshl_b32 s56, s59, 5
        s_add_u32 s55, s55, s56
        s_add_u32 s55, s55, {RESID}
        v_add_u32 v70, s55, v70
        s_lshl_b32 s55, s57, 10
        s_lshl_b32 s56, s58, 8
        s_add_u32 s55, s55, s56
        s_add_u32 s55, s55, {RESID + 32}
        v_add_u32 v71, s55, v71
        s_mul_i32 s87, s61, 80
        s_lshl_b32 s55, s86, 4
        s_add_u32 s55, s55, s87
        v_lshrrev_b32 v76, 4, v0
        v_lshl_add_u32 v72, v76, 2, s55
        s_lshl_b32 s55, s57, 4
        s_lshl_b32 s56, s58, 2
        s_add_u32 s55, s55, s56
        s_add_u32 s55, s55, s87
        v_mov_b32 v73, s55
        s_lshl_b32 s55, s90, 5
        s_lshl_b32 s56, s59, 4
        s_add_u32 s56, s56, s55
        s_add_u32 s55, s55, 16
        s_lshr_b32 s88, s62, 3
        s_lshl_b32 s88, s88, 9
        s_lshl_b32 s89, {sr(sMB)}, 3
        s_add_u32 s88, s88, s89
        ''')
        for dst, ch, sp in ((74, 72, 's56'), (75, 73, 's55')):
            k(f'''
            v_add_u32 v76, {sp}, v77
            v_and_b32 v78, 7, v76
            v_lshrrev_b32 v76, 3, v76
            v_lshl_add_u32 v76, v78, 6, v76
            v_add_u32 v76, s88, v76
            v_mul_u32_u24 v76, 1280, v76
            v_lshl_add_u32 {vr(dst)}, {vr(ch)}, 1, v76
            v_lshlrev_b32 {vr(ch)}, 2, {vr(ch)}
            v_add_u32 {vr(ch)}, {MOD + 5 * 2560}, {vr(ch)}
            ''')

    def g1(self):
        k = self.k
        TF, CB = 16, 92
        ACC = [32, 48]
        vRA, vRB, vST, vSTA, vPA, vPD = 2, 3, 5, 6, 7, 8
        K1, K2, S2 = 9, 10, 11
        BF = 12
        ET = 80
        OUTR = 88
        k(f'v_mov_b32 {vr(BF + 2)}, 0\nv_mov_b32 {vr(BF + 3)}, 0')
        L = self.only_wave(0)
        self.poll_addr(SYNC2C, 24, vPA)
        self.poll_issue(vPA, vPD, 24)
        k(f'{L}:')

        def rd(sig):
            c, s8 = divmod(sig, 8)
            slot = c % NS
            base, off = (vRA, slot * 16384) if slot < 3 else (vRB, (slot - 3) * 16384)
            off += s8 * 2048
            r = TF + 4 * (sig % 4)
            if self.o.get('x_nord') and sig >= 4:
                return
            if self.o.get('x_b128'):
                k(f'ds_read_b128 {vr(r, 4)}, v4 offset:{off % 32768}')
                return
            k(f'ds_read_b64_tr_b16 {vr(r, 2)}, {vr(base)} offset:{off}')
            k(f'ds_read_b64_tr_b16 {vr(r + 2, 2)}, {vr(base)} offset:{off + 512}')

        C1 = -2 * LOG2E * math.sqrt(2 / math.pi) * 0.044715
        C2 = -2 * LOG2E * math.sqrt(2 / math.pi)

        def epi_ops(t):
            acc = ACC[t % 2]
            ops = []

            def head():
                self.poll(vSTA, vST, '0x10000', preissued=True, off=2048 * (t & 1))
                k(f'''
                s_mov_b32 s55, 0x01000100
                s_mov_b32 s56, 0x03020302
                v_perm_b32 {vr(BF)}, {vr(vST)}, {vr(vST)}, s55
                v_perm_b32 {vr(BF + 1)}, {vr(vST)}, {vr(vST)}, s56
                v_xor_b32 {vr(BF)}, 0x80008000, {vr(BF)}
                v_and_b32 {vr(S2)}, 0xffff0000, {vr(vST)}
                v_rcp_f32 {vr(K2)}, {vr(S2)}
                v_mfma_f32_32x32x16_bf16 {vr(acc, 16)}, {vr(CB, 4)}, {vr(BF, 4)}, {vr(acc, 16)}
                ''')
            ops.append(head)
            ops.append(lambda: k(f'''
                v_mul_f32 {vr(S2)}, {vr(S2)}, {vr(S2)}
                v_mul_f32 {vr(K1)}, {vr(K2)}, {vr(K2)}
                v_mul_f32 {vr(K2)}, {f32(C2)}, {vr(K2)}
                '''))
            ops.append(lambda: k(f'''
                v_mul_f32 {vr(K1)}, {f32(0.044715)}, {vr(K1)}
                v_mul_f32 {vr(K1)}, {vr(K1)}, {vr(K2)}
                '''))
            ops.append(lambda: None)
            flat = []
            for grp in range(2):
                E = range(4 * grp, 4 * grp + 4)
                for fmt in ('v_mul_f32 {t}, {g}, {g}', 'v_fma_f32 {t}, {t}, {k1}, {k2}', 'v_mul_f32 {t}, {t}, {g}', 'v_exp_f32 {t}, {t}',
                            'v_mul_f32 {u}, {u}, {g}', 'v_fma_f32 {t}, {t}, {s2}, {s2}', 'v_rcp_f32 {t}, {t}', 'v_mul_f32 {u}, {u}, {t}'):
                    for e in E:
                        flat.append(fmt.format(t=vr(ET + e % 4), g=vr(acc + e), u=vr(acc + 8 + e), k1=vr(K1), k2=vr(K2), s2=vr(S2)))
                for p in (2 * grp, 2 * grp + 1):
                    flat.append(f'v_cvt_pk_bf16_f32 {vr(OUTR + p)}, {vr(acc + 8 + 2 * p)}, {vr(acc + 9 + 2 * p)}')
            nst = self.o.get('epi_steps', 16)
            cost = lambda x: 2 if ('exp' in x or 'rcp' in x) else 1
            tot = sum(map(cost, flat))
            cum, cur, n = 0, [], 1
            for x in flat:
                cur.append(x)
                cum += cost(x)
                if cum * nst >= n * tot:
                    ops.append(lambda cur=cur: k('\n'.join(cur)))
                    cur = []
                    n += 1
            assert not cur

            def fin():
                k(f's_add_u32 s3, s65, {t * 16 * 108 * 1024}')
                k(f'buffer_store_dwordx4 {vr(OUTR, 4)}, v4, {P4(rWS)}, s3 offen sc1', tag=f'act{t}')
            ops.append(fin)
            return ops

        def publish(t):
            L = self.only_wave(0)
            k(f'''
            s_add_u32 s55, {sr(sM1)}, {8 * t}
            s_lshl_b32 s55, s55, 7
            s_add_u32 s55, s55, {SYNC3}
            v_mov_b32 {vr(ET + 4)}, s55
            v_mov_b32 {vr(ET + 5)}, 1
            s_mov_b64 exec, 1
            global_atomic_add {vr(ET + 4)}, {vr(ET + 5)}, {P2(pWS)} sc1
            s_mov_b64 exec, -1
            {L}:
            ''')

        epi_start = self.o.get('epi_start', [50, 81, 122, 160])
        epi_rate = self.o.get('epi_rate', [1, 1, 1, 1])
        stat_ld = {max(0, s - self.o.get('stat_pre', 14)): t for t, s in enumerate(epi_start)}
        todo = {}
        for t in range(3):
            ops = epi_ops(t)
            sig = epi_start[t]
            while ops:
                for _ in range(epi_rate[t]):
                    if ops:
                        todo.setdefault(sig, []).append(ops.pop(0))
                sig += 1
            assert sig <= 160 and (t == 2 or sig <= epi_start[t + 1]), (t, sig)
            assert sig <= 40 * (t + 2)
            todo.setdefault('done', {})[t] = sig
        done_at = todo.pop('done')
        pub_at = {}
        for t in range(3):
            s = done_at[t] + self.o.get('pub_lag', 16)
            s = ((s - 3 + 7) // 8) * 8 + 3
            pub_at.setdefault(min(s, 163), []).append(t)
        B2 = self.o.get('b2_chunk', 1)
        B3 = self.o.get('b3_chunk', 6)
        self.stamp('g1go')
        keep, self.k = self.k, Kern()
        self.cs_addr()
        self.g2_setup()
        self.g2_addr()
        late, self.k = self.k.ins, keep
        grp, cur = [], []
        for x in late:
            cur.append(x)
            if len(cur) >= 4 and not x.op.startswith('s_cmp') and not x.op.startswith('s_cselect'):
                grp.append(cur)
                cur = []
        grp.append(cur)
        assert len(grp) <= 31
        if self.o.get('x_latefirst'):
            for g_ in grp:
                k.ins += g_
            grp = []
            self.stamp('g1go2')
        for sig in range(4):
            rd(sig)
        issued = 5
        dq = [lambda c=c, i=i: self.g1_dma(c, i) for c in (2, 3, 4) for i in range(2)]
        g2at = {5 + n: [(0, n)] if n < 5 else [(6, n - 5)] for n in range(10)}
        pissue = {8 * B2 + 4: (SYNCW, 4, vPA), 36: (SYNC2B, 24, vPA), self.o.get('pa_issue', 140): (None, 1, 65)}
        pcheck = {B2: (27, 24, vPA), 4: (10, 4, vPA), B3: (9, 24, vPA), 19: (27, 1, 65)}
        nd = self.o.get('w2_in_t3', 15)
        wl = {126 + (33 * n) // nd: (1 + n // 5, n % 5) for n in range(nd)}
        assert all(sg >= 120 + 5 * (i - 1) + f for sg, (i, f) in wl.items()) and len(wl) == nd
        for sig in range(160):
            t, s = divmod(sig, 40)
            c = sig // 8
            acc = ACC[t % 2]
            cop = '0' if s == 0 else vr(acc, 16)
            k(f'v_mfma_f32_32x32x16_bf16 {vr(acc, 16)}, {vr(WF + 4 * s, 4)}, {vr(TF + 4 * (sig % 4), 4)}, {cop}')
            if sig in pissue:
                base, nl, va = pissue[sig]
                L = self.only_wave(0)
                if base is not None:
                    self.poll_addr(base, nl, va)
                self.poll_issue(va, vPD, nl)
                k(f'{L}:')
            if sig % 8 == 3:
                if c in pcheck:
                    cnt, nl, va = pcheck[c]
                    L = self.only_wave(0)
                    self.poll(va, vPD, cnt, preissued=True, nl=nl)
                    k(f'{L}:')
                w = [f'ch{c + 1}'] if c + 1 < 20 else ['resid']
                w += [f'act{tt}' for tt in pub_at.get(sig, [])]
                if w and not self.o.get('x_nowait'):
                    k.wait(*w)
                if not self.o.get('x_nobar') or c in (B2, B2 + 2):
                    k('s_barrier')
                for tt in pub_at.get(sig, []):
                    publish(tt)
                if c >= B2:
                    while issued < (20 if c >= B3 else 10) and issued <= c - 1 + NS:
                        dq += [lambda c=issued, i=i: self.g1_dma(c, i) for i in range(2)]
                        issued += 1
                if c in g2at and not self.o.get('x_nog2d'):
                    dq += [lambda j=j, i=i: self.g2_park(j, i) for j, i in g2at[c]]
            elif dq:
                dq.pop(0)()
            if sig + 4 < 160:
                rd(sig + 4)
            if sig >= 4 and grp and sig % 8 != 3:
                k.ins += grp.pop(0)
            if sig == self.o.get('cs_ld', 30):
                self.cs_loads()
            if sig == self.o.get('cs_fin', 46):
                self.cs_finish()
            if sig in wl:
                self.g2_wload(*wl[sig])
            tw = self.o.get('twd', 0)
            if tw and sig in (tw, tw + 16):
                k(f'''
                s_mul_i32 s55, {sr(sQ)}, 640
                s_mul_i32 s56, {sr(sW)}, 80
                s_add_u32 s55, s55, s56
                s_add_u32 s55, s55, {0 if sig == tw else 40}
                s_lshl_b32 s55, s55, 7
                s_add_u32 s55, s55, {WD}
                v_lshlrev_b32 v78, 7, v0
                s_mov_b32 exec_hi, 0xff
                buffer_load_dword v79, v78, {P4(rWS)}, s55 offen sc1
                s_mov_b32 exec_hi, -1
                ''')
            if sig == 140:
                self.resid_dma(76)
            if sig in stat_ld:
                tt = stat_ld[sig]
                if tt == 2:
                    k(f'v_add_u32 {vr(vSTA)}, 4096, {vr(vSTA)}')
                k(f'global_load_dword {vr(vST)}, {vr(vSTA)}, {P2(pWS)} offset:{2048 * (tt & 1)} sc1')
            for op in todo.get(sig, []):
                if not self.o.get('x_noepi'):
                    op()
            if sig % 40 == 39:
                self.stamp(f't{t}')
            if sig % 8 == 7 and sig < 80:
                self.stamp(f'c{sig // 8}')
        assert not dq
        for n in range(2):
            self.g2_lda(0, n)
        k.wait('park0', 'park6')
        k(f'v_add_u32 v76, s64, v4\nv_add_u32 v77, s60, v4')
        for f in range(5):
            k(f'ds_read_b128 {vr(W2[0] + 4 * f, 4)}, v76 offset:{1024 * f}')
        for f in range(5):
            k(f'ds_read_b128 {vr(W2[6] + 4 * f, 4)}, v77 offset:{1024 * f}', tag='parkrd')
        rest = [(1 + n // 5, n % 5) for n in range(nd, 25)]
        ops = epi_ops(3)
        for op in ops[:3]:
            op()
        acc = ACC[1]
        T = lambda e: 32 + e
        for fmt in ('v_mul_f32 {t}, {g}, {g}', 'v_fma_f32 {t}, {t}, {k1}, {k2}', 'v_mul_f32 {t}, {t}, {g}', 'v_exp_f32 {t}, {t}',
                    'v_mul_f32 {u}, {u}, {g}', 'v_fma_f32 {t}, {t}, {s2}, {s2}', 'v_rcp_f32 {t}, {t}', 'v_mul_f32 {u}, {u}, {t}'):
            for e in range(8):
                k(fmt.format(t=vr(T(e)), g=vr(acc + e), u=vr(acc + 8 + e), k1=vr(K1), k2=vr(K2), s2=vr(S2)))
            if len(rest) > 10 - self.o.get('w2_tail', 0):
                self.g2_wload(*rest.pop(0))
        for p in range(4):
            k(f'v_cvt_pk_bf16_f32 {vr(OUTR + p)}, {vr(acc + 8 + 2 * p)}, {vr(acc + 9 + 2 * p)}')
        ops[-1]()
        self.stamp('g1end')
        for n in range(2, 4):
            self.g2_lda(0, n)
        self.resid_read()
        self.g2_rest = rest
        self.late_pub = pub_at.get(163, []) + [3]
        self.publish = publish

    def resid_dma(self, va=1):
        k = self.k
        k(f'''
        v_lshrrev_b32 v{va}, 2, v0
        v_lshlrev_b32 v{va}, 12, v{va}
        v_and_b32 v{va + 1}, 3, v0
        v_lshl_add_u32 v{va}, v{va + 1}, 4, v{va}
        s_lshl_b32 s55, s86, 4
        s_add_u32 s55, s55, s87
        s_lshl_b32 s55, s55, 12
        s_lshl_b32 s56, s62, 7
        s_lshl_b32 s57, s90, 6
        s_add_u32 s56, s56, s57
        s_add_u32 s56, s56, {X1T}
        s_cmp_ge_u32 {sr(sW)}, 5
        s_cselect_b32 s57, 2048, 0
        s_add_u32 s55, s55, s56
        s_add_u32 s55, s55, s57
        s_lshl_b32 s57, {sr(sW)}, 10
        s_add_u32 m0, s57, {RESID}
        ''')
        k(f'buffer_load_dwordx4 v{va}, {P4(rWS)}, s55 offen sc1 lds', tag='resid')
        k(f'''
        s_add_u32 s55, {sr(sW)}, 3
        s_lshl_b32 s55, s55, 4
        s_add_u32 s55, s55, s87
        s_lshl_b32 s55, s55, 12
        s_add_u32 s55, s55, s56
        s_add_u32 s55, s55, 2048
        s_add_u32 m0, s57, {RESID + 8192}
        s_cmp_lt_u32 {sr(sW)}, 2
        s_cselect_b64 exec, -1, 0
        ''')
        k(f'buffer_load_dwordx4 v{va}, {P4(rWS)}, s55 offen sc1 lds', tag='resid')
        k('s_mov_b64 exec, -1')

    RESR = {(0, 0): 92, (0, 1): 94, (1, 0): 90, (1, 1): 6}

    def resid_read(self):
        for (h, p), r in self.RESR.items():
            self.k(f'ds_read_b64_tr_b16 {vr(r, 2)}, v{70 + p} offset:{5120 * h}', tag='parkrd')

    G2ORD = [0, 6, 1, 2, 3, 4, 5]

    def g2_af(self, h, n, tt):
        r = (2 * (7 * h + n) + tt) % 8
        return 16 + 4 * r if r < 4 else 236 + 4 * (r - 4)

    def g2_lda(self, h, n, only=None):
        k = self.k
        if self.o.get('y_noact') == h + 1 and n > 0:
            return
        k(f's_add_u32 s3, s83, {h * 32 * 108 * 1024 + self.G2ORD[n] * 16384}')
        for tt in (range(2) if only is None else [only]):
            k(f'buffer_load_dwordx4 {vr(self.g2_af(h, n, tt), 4)}, v64, {P4(rWS)}, s3 offen offset:{256 * tt} {self.o.get("actpol", "sc1")}')

    def g2(self):
        k = self.k
        ACC, GB = 24, 8
        acc = lambda t: 32 + 4 * t if t < 8 else 76 + 4 * (t - 8)
        k('L_g2:')

        def steps(h):
            q = [lambda i=i, f=f: self.g2_wload(i, f) for i, f in (self.g2_rest if h == 0 else [])]
            qa = [lambda n=n, tt=tt: self.g2_lda(h, n, tt) for n in range(4, 7) for tt in range(2)]
            need = {}
            ps = self.o.get('pub_step', 0)
            for n in range(7):
                i = self.G2ORD[n]
                L = None
                if i == 6:
                    L = k.label('s6')
                    k(f's_cmp_ge_u32 {sr(sW)}, 6\ns_cbranch_scc1 {L}')
                for tt in range(2):
                    for j in range(5):
                        a = acc(5 * tt + j)
                        c = '0' if n == 0 else vr(a, 4)
                        k(f'v_mfma_f32_16x16x32_bf16 {vr(a, 4)}, {vr(W2[i] + 4 * j, 4)}, {vr(self.g2_af(h, n, tt), 4)}, {c}')
                        if not L and j == 4 and qa:
                            qa.pop(0)()
                        elif not L and j in (0, 1, 2) and q:
                            q.pop(0)()
                if L:
                    k(f'{L}:')
                    for _ in range(2):
                        if qa:
                            qa.pop(0)()
                if h == 0 and n == ps:
                    k.wait('parkrd', *[f'act{t}' for t in self.late_pub])
                    k('s_barrier')
                    Lh = k.label('hp')
                    k(f's_cmp_lt_u32 s2, 40\ns_cbranch_scc1 {Lh}')
                    for t in self.late_pub:
                        self.publish(t)
                    k(f'{Lh}:')
                    self.stamp('pub3')
                if h == 0 and n == 5:
                    k(f'global_load_dwordx4 v[8:11], v72, {P2(pWS)} sc1\nglobal_load_dwordx4 v[12:15], v73, {P2(pWS)} sc1')
                if h == 0 and n == 6:
                    L = self.only_wave(0)
                    self.poll_issue(65, 3, 1, off=2048)
                    k(f'{L}:')
            assert not q and not qa
            if h == 0:
                self.stamp('h0')
            for t in range(10):
                k(f'ds_write_b128 v{66 + t // 8}, {vr(acc(t), 4)} offset:{8192 * (t % 8)}', tag='pw')
            if h == 0:
                L = self.only_wave(0)
                self.poll(65, 3, 27, preissued=True, nl=1, off=2048, sleep=self.o.get('sleep3', 4))
                k(f'{L}:')
                k('v_add_u32 v66, 81920, v66\nv_add_u32 v67, 81920, v67')

        def finalize(h):
            R = {0: 32, 1: 48}
            for half in range(2):
                for p in range(2):
                    for w in range(4):
                        dst = (R[p] if half == 0 else (76 if p == 0 else 252)) if w == 0 and half == 1 else R[p] + 4 * w
                        k(f'ds_read_b128 {vr(dst, 4)}, v{68 + p} offset:{1024 * (4 * half + w)}', tag='fin')
                if half == 0:
                    if h == 0:
                        self.g2_lda(1, 2)
                    for p in range(2):
                        for a, b in ((0, 1), (2, 3), (0, 2)):
                            for e in (0, 2):
                                k(f'v_pk_add_f32 {vr(R[p] + 4 * a + e, 2)}, {vr(R[p] + 4 * a + e, 2)}, {vr(R[p] + 4 * b + e, 2)}')
            if h == 0:
                self.g2_lda(1, 3)
            for p in range(2):
                x = 76 if p == 0 else 252
                for a, b in ((x, R[p] + 4), (R[p] + 8, R[p] + 12), (R[p], x), (R[p], R[p] + 8)):
                    for e in (0, 2):
                        k(f'v_pk_add_f32 {vr(a + e, 2)}, {vr(a + e, 2)}, {vr(b + e, 2)}')
                for e in range(4):
                    g, t = GB + 4 * p + e, R[p] + 4 + e
                    if h == 0:
                        k(f'v_and_b32 {vr(g)}, 0xffff0000, {vr(g)}')
                    k(f'v_lshlrev_b32 {vr(t)}, 16, {vr(self.RESR[h, p] + e // 2)}' if e % 2 == 0 else f'v_and_b32 {vr(t)}, 0xffff0000, {vr(self.RESR[h, p] + e // 2)}')
                    k(f'v_fmac_f32 {vr(t)}, {vr(R[p] + e)}, {vr(g)}')
                o = 84 if p == 0 else 88
                k(f'v_cvt_pk_bf16_f32 v{o}, {vr(R[p] + 4)}, {vr(R[p] + 5)}\nv_cvt_pk_bf16_f32 v{o + 1}, {vr(R[p] + 6)}, {vr(R[p] + 7)}')
                if p == 1:
                    k('s_mov_b64 exec, 0xffff')
                k(f'global_store_dwordx2 v{74 + p}, v[{o}:{o + 1}], {P2(pOUT)} {self.o.get("outpol", "")}')
                if p == 1:
                    k('s_mov_b64 exec, -1')
            if h == 0:
                k(f'v_add_u32 v74, {1024 * 1280}, v74\nv_add_u32 v75, {1024 * 1280}, v75\nv_add_u32 v68, 81920, v68\nv_add_u32 v69, 81920, v69')

        steps(0)
        k.wait('pw')
        k('s_barrier')
        self.stamp('s3')
        for n in range(2):
            self.g2_lda(1, n)
        finalize(0)
        self.stamp('f0')
        steps(1)
        self.stamp('g2m')
        k.wait('pw')
        k('s_barrier')
        finalize(1)
        self.stamp('end')

    def strip_reduce(self, nval, V, RED):
        k = self.k
        n = nval
        for i in range(n // 2):
            k(f'v_permlane32_swap_b32 {vr(V + i)}, {vr(V + n // 2 + i)}')
        for i in range(n // 2):
            k(f'v_add_f32 {vr(V + i)}, {vr(V + i)}, {vr(V + n // 2 + i)}')
        n //= 2
        for i in range(n // 2):
            k(f'v_permlane16_swap_b32 {vr(V + i)}, {vr(V + n // 2 + i)}')
        for i in range(n // 2):
            k(f'v_add_f32 {vr(V + i)}, {vr(V + i)}, {vr(V + n // 2 + i)}')
        n //= 2
        for i in range(n):
            k(f'v_add_f32_dpp {vr(V + i)}, {vr(V + i)}, {vr(V + i)} row_ror:8 row_mask:0xf bank_mask:0xf')
        q = nval // 4
        k(f'''
        v_lshrrev_b32 v8, 4, v0
        v_mul_u32_u24 v8, {q}, v8
        v_and_b32 v9, 7, v8
        v_lshrrev_b32 v8, 3, v8
        v_lshl_add_u32 v9, v8, 6, v9
        v_and_b32 v8, 7, v0
        v_lshl_add_u32 v9, v8, 3, v9
        s_mul_i32 s55, {sr(sW)}, {8 * nval}
        v_add_u32 v9, s55, v9
        v_lshlrev_b32 v9, 2, v9
        s_mov_b32 exec_lo, 0x00ff00ff
        s_mov_b32 exec_hi, 0x00ff00ff
        ''')
        if q == 2:
            k(f'ds_write_b64 v9, {vr(V, 2)} offset:{RED}', tag='redw')
        else:
            k(f'ds_write_b128 v9, {vr(V, 4)} offset:{RED}', tag='redw')
        k('s_mov_b64 exec, -1')
        k.wait('redw')
        k('s_barrier')

    def mod_and_wd(self):
        k = self.k
        k(f'''
        s_cmp_lt_u32 s2, 14
        s_cselect_b32 s76, 2, 1
        s_mov_b32 s75, s2
        s_mul_i32 s72, {sr(sW)}, 5120
        s_mul_i32 s71, s75, 40960
        s_add_u32 s71, s71, s72
        s_add_u32 s72, s72, 8192
        v_lshlrev_b32 v21, 4, v0
        ''')
        self.mod_partial()
        k('s_barrier')
        for i in range(10):
            k(f'''
            s_cmp_ge_u32 s76, {1 + i // 5}
            s_cselect_b64 exec, -1, 0
            s_mov_b32 m0, s72
            s_add_u32 s72, s72, {1024 if i != 4 else 40960 - 4096}
            ''')
            k(f'buffer_load_dwordx4 v21, {P4(rB)}, s71 offen {self.o["nt"]} lds', tag='wdl')
            k(f's_mov_b64 exec, -1\ns_add_u32 s71, s71, {1024 if i != 4 else 40 * 40960 - 4096}')
        L = self.only_wave(0)
        self.poll_sync1(215, 58)
        Lr, Ld = k.label('fr'), k.label('fd')
        k(f'''
        s_cmp_ge_u32 s2, 30
        s_cbranch_scc1 {L}
        s_add_u32 s55, s2, 30
        s_lshl_b32 s56, s55, 11
        s_add_u32 s56, s56, {MODP}
        v_lshl_add_u32 v8, v0, 2, s56
        {Lr}:
        ''')
        for e in range(8):
            k(f'global_load_dword {vr(32 + e)}, v8, {P2(pWS)} offset:{256 * e} sc1')
        k(f'''
        v_min3_u32 v40, v32, v33, v34
        v_min3_u32 v40, v40, v35, v36
        v_min3_u32 v40, v40, v37, v38
        v_min_u32 v40, v40, v39
        v_cmp_eq_u32 vcc, 0, v40
        s_cbranch_vccz {Ld}
        s_sleep {self.o.get('sleep', 2)}
        s_add_u32 {sr(sSPIN)}, {sr(sSPIN)}, 1
        s_cmp_lt_u32 {sr(sSPIN)}, {SPIN_MAX}
        s_cbranch_scc1 {Lr}
        {Ld}:
        v_add_f32 v32, v32, v36
        v_add_f32 v33, v33, v37
        v_add_f32 v34, v34, v38
        v_add_f32 v35, v35, v39
        v_add_f32 v32, v32, v33
        v_add_f32 v34, v34, v35
        v_add_f32 v32, v32, v34
        v_cvt_pk_bf16_f32 v32, v32, v32
        v_and_b32 v32, 0xffff0000, v32
        v_or_b32 v32, 1, v32
        s_lshl_b32 s55, s55, 8
        s_add_u32 s55, s55, {MOD}
        v_lshlrev_b32 v8, 2, v0
        buffer_store_dword v32, v8, {P4(rWS)}, s55 offen sc1
        ''')
        self.stamp('h_mod')
        k(f'{L}:')
        Lw, Lwd = k.label('wdl'), k.label('wdd')
        k(f'''
        v_lshrrev_b32 v9, 5, v0
        v_lshlrev_b32 v9, 4, v9
        v_bfe_u32 v10, v0, 2, 3
        v_add_u32 v9, v9, v10
        v_mul_u32_u24 v9, 1280, v9
        v_and_b32 v10, 3, v0
        v_lshl_add_u32 v9, v10, 3, v9
        s_mul_i32 s56, {sr(sW)}, 160
        v_add_u32 v9, s56, v9
        s_mul_i32 s55, {sr(sW)}, {54 * 5120}
        s_mul_i32 s56, s75, 5120
        s_add_u32 s55, s55, s56
        s_add_u32 s55, s55, {WD}
        s_waitcnt vmcnt(0)
        s_barrier
        s_cmp_eq_u32 s76, 0
        s_cbranch_scc1 {Lwd}
        {Lw}:
        ''')
        for j in range(5):
            k(f'ds_read_b64_tr_b16 {vr(32 + 4 * j, 2)}, v9 offset:{8192 + 32 * j}')
            k(f'ds_read_b64_tr_b16 {vr(34 + 4 * j, 2)}, v9 offset:{8192 + 32 * j + 8 * 1280}')
        k('s_add_u32 s56, s55, 4096')
        for j in range(5):
            k(f'buffer_store_dwordx4 {vr(32 + 4 * j, 4)}, v21, {P4(rWS)}, s{55 + j // 4} offen offset:{1024 * (j % 4)} sc1')
        k(f'''
        s_add_u32 s55, s55, {40 * 5120}
        v_add_u32 v9, 40960, v9
        s_sub_u32 s76, s76, 1
        s_cmp_lg_u32 s76, 0
        s_cbranch_scc1 {Lw}
        {Lwd}:
        s_waitcnt vmcnt(0)
        s_barrier
        ''')

    def stats_job(self):
        k = self.k
        LD, V = 96, 32
        k(f'''
        v_lshrrev_b32 v8, 3, v0
        s_mul_i32 s55, {sr(sW)}, 80
        v_add_u32 v8, s55, v8
        v_lshlrev_b32 v8, 12, v8
        v_and_b32 v10, 7, v0
        v_lshl_add_u32 v8, v10, 4, v8
        s_lshl_b32 s55, s2, 7
        s_add_u32 s55, s55, {X1T}
        ''')
        for i in range(10):
            k(f'buffer_load_dwordx4 {vr(LD + 4 * i, 4)}, v8, {P4(rWS)}, s55 offen sc1')
            if i < 9:
                k(f's_add_u32 s55, s55, {8 * 4096}')
        for i in range(10):
            for j in range(4):
                r = LD + 4 * i + j
                if i == 0:
                    k(f'''
                    v_lshlrev_b32 {vr(V + 2 * j)}, 16, {vr(r)}
                    v_and_b32 {vr(V + 2 * j + 1)}, 0xffff0000, {vr(r)}
                    v_mul_f32 {vr(V + 8 + 2 * j)}, {vr(V + 2 * j)}, {vr(V + 2 * j)}
                    v_mul_f32 {vr(V + 9 + 2 * j)}, {vr(V + 2 * j + 1)}, {vr(V + 2 * j + 1)}
                    ''')
                else:
                    k(f'''
                    v_lshlrev_b32 v11, 16, {vr(r)}
                    v_and_b32 v12, 0xffff0000, {vr(r)}
                    v_add_f32 {vr(V + 2 * j)}, {vr(V + 2 * j)}, v11
                    v_add_f32 {vr(V + 2 * j + 1)}, {vr(V + 2 * j + 1)}, v12
                    v_fmac_f32 {vr(V + 8 + 2 * j)}, v11, v11
                    v_fmac_f32 {vr(V + 9 + 2 * j)}, v12, v12
                    ''')
        self.strip_reduce(16, V, 0)
        L = self.only_wave(0)
        k('v_lshlrev_b32 v8, 2, v0')
        for w in range(8):
            k(f'ds_read2st64_b32 {vr(V + 2 * w, 2)}, v8 offset0:{2 * w} offset1:{2 * w + 1}')
        for w in range(1, 8):
            k(f'v_add_f32 {vr(V)}, {vr(V)}, {vr(V + 2 * w)}')
            k(f'v_add_f32 {vr(V + 1)}, {vr(V + 1)}, {vr(V + 2 * w + 1)}')
        k(f'''
        v_mul_f32 v10, {f32(1.0 / 640)}, {vr(V)}
        v_mul_f32 v11, {f32(1.0 / 640)}, {vr(V + 1)}
        v_fma_f32 v11, -v10, v10, v11
        v_max_f32 v11, 0, v11
        v_cvt_pk_bf16_f32 v11, v11, v11
        v_lshlrev_b32 v11, 16, v11
        v_add_f32 v11, {f32(1e-5)}, v11
        v_cvt_pk_bf16_f32 v11, v11, v11
        v_lshlrev_b32 v11, 16, v11
        v_sqrt_f32 v11, v11
        v_cvt_pk_bf16_f32 v10, v10, v11
        s_lshl_b32 s55, s2, 8
        s_add_u32 s55, s55, {STATS}
        buffer_store_dword v10, v8, {P4(rWS)}, s55 offen sc1
        {L}:
        s_barrier
        ''')

    def helper(self):
        k = self.k
        k('L_helper:')
        self.srd(rB, pWD, 1728 * 640 * 2)
        self.mod_and_wd()
        L = self.only_wave(0)
        k('s_and_b32 s55, s2, 3')
        self.arrive(SYNCW, 4, 's55', 16)
        k(f'{L}:')
        self.stamp('h_wd')
        if self.o['stop'] in ('A', 'kgen'):
            k('s_branch L_fin')
            return
        Lns = k.label('nostat')
        Lb, Lp = k.label('lateb'), k.label('polled')
        L = self.only_wave(0)
        k(f's_cmp_ge_u32 s2, 16\ns_cbranch_scc1 {Lb}')
        self.poll_addr(SYNC2A, 24, 16)
        k(f's_lshr_b32 s55, s2, 3\ns_mul_i32 s55, s55, {SYNC2C - SYNC2A}\nv_add_u32 v16, s55, v16')
        self.poll(16, 17, 27, nl=24, sleep=4)
        k(f's_branch {Lp}\n{Lb}:')
        self.poll_addr(SYNC2B, 24, 16)
        self.poll(16, 17, 9, nl=24, sleep=4)
        k(f'{Lp}:\n{L}:')
        k('s_barrier')
        self.stamp('s2a')
        k(f's_cmp_ge_u32 s2, 32\ns_cbranch_scc1 {Lns}')
        self.stats_job()
        k(f'{Lns}:')
        self.stamp('h_stat')
        if self.o['stop'] in ('conv', 'g1'):
            k('s_branch L_fin')
            return
        L = self.only_wave(0)
        self.poll_addr(SYNC2B, 24, 16)
        self.poll(16, 17, 9, nl=24, sleep=4)
        self.poll_addr(SYNCW, 4, 16)
        self.poll(16, 17, 10, nl=4)
        k(f'{L}:')
        k('s_barrier')
        self.g2_setup()
        self.g2_addr()
        for i in range(7):
            for f in range(5):
                self.g2_wload(i, f)
        self.resid_dma()
        L = self.only_wave(0)
        self.poll(65, 3, 27, nl=1, sleep=8)
        k(f'{L}:')
        k('s_waitcnt vmcnt(0)\ns_barrier')
        self.resid_read()
        for n in range(2):
            self.g2_lda(0, n)
        for _ in range(1 + self.o.get('w2_tail', 0)):
            k(f'global_load_dword v79, v72, {P2(pWS)} sc1')
        for n in range(2, 4):
            self.g2_lda(0, n)
        k('s_branch L_g2')

    def build(self):
        k = self.k
        stop = self.o['stop']
        self.prologue()
        self.early_addresses()
        self.ln1()
        k('s_cmp_lt_u32 s2, 40\ns_cbranch_scc1 L_helper')
        while True:
            if stop == 'A':
                break
            self.kgen()
            self.stamp('kgen')
            self.kexpand1()
            self.stamp('kexp')
            if self.o.get('mp_early', 0):
                self.mod_partial()
            self.conv_loads()
            if not self.o.get('mp_early', 0):
                self.mod_partial()
            self.kexpand2()
            self.wstage_read(0, 213)
            self.g1_addr_early()
            if stop == 'kgen':
                self.dump_k()
                break
            self.conv()
            self.window2()
            if stop == 'conv':
                break
            self.g1()
            if stop == 'g1':
                break
            self.g2()
            break
        k('L_fin:')
        if self.o.get('diag_T'):
            k(f'''
            L_dt:
            s_memrealtime s[96:97]
            s_waitcnt lgkmcnt(0)
            s_sub_u32 s96, s96, s94
            s_cmp_lt_u32 s96, {self.o['diag_T']}
            s_cbranch_scc1 L_dt
            ''')
        k(f'''
        s_or_b32 s3, s2, {sr(sW)}
        s_cmp_lg_u32 s3, 0
        s_cbranch_scc1 L_nogen
        v_mov_b32 v8, {GEN}
        v_mov_b32 v9, {sr(sTAG)}
        s_mov_b64 exec, 1
        global_store_dword v8, v9, {P2(pWS)} sc1
        s_mov_b64 exec, -1
        L_nogen:
        ''')
        self.stamp_flush()
        k('s_endpgm')
        self.helper()
        k('L_end:\ns_endpgm')
        body = k.text()
        hdr = open('adaLN_cond__ssm_conv_s4d__geglu_ffn__prompt.s.ref').read().split('; Override')[0]
        return hdr + f'''; @launch kernel={NAME} grid=(256,1,1) block=(512,1,1) lds={LDS_BYTES}
.amdgcn_target "amdgcn-amd-amdhsa--gfx950"
.text
.globl {NAME}
.p2align 8
.type {NAME},@function
{NAME}:
{body}.section .rodata,"a"
.p2align 6
.amdhsa_kernel {NAME}
  .amdhsa_next_free_vgpr 256
  .amdhsa_next_free_sgpr 102
  .amdhsa_accum_offset 256
  .amdhsa_group_segment_fixed_size 0
  .amdhsa_kernarg_size 128
  .amdhsa_user_sgpr_count 2
  .amdhsa_user_sgpr_kernarg_segment_ptr 1
  .amdhsa_system_sgpr_workgroup_id_x 1
.end_amdhsa_kernel
'''

    def dump_k(self):
        k = self.k
        k.wait('saw')
        k('s_barrier')
        k(f's_lshl_b32 s55, {sr(sW)}, 6\nv_add_u32 v8, s55, v0\nv_lshlrev_b32 v9, 3, v8\nv_lshlrev_b32 v10, 4, v8')
        for ch in range(3):
            k(f'''
            ds_read_b64 v[12:13], v9 offset:{KA + ch * KAS + 32}
            ds_read_b128 v[16:19], v10 offset:{SA + ch * SAS}
            s_add_u32 s55, {sr(sD0)}, {ch}
            s_lshl_b32 s56, s55, 12
            s_add_u32 s56, s56, {X1T}
            s_lshl_b32 s57, s55, 13
            s_add_u32 s57, s57, {ACT}
            buffer_store_dwordx2 v[12:13], v9, {P4(rWS)}, s56 offen
            buffer_store_dwordx4 v[16:19], v10, {P4(rWS)}, s57 offen
            s_waitcnt vmcnt(0)
            ''')


LAST = None
def generate(**opt):
    global LAST
    LAST = Gen(opt)
    return LAST.build()


if __name__ == '__main__':
    opt = {}
    for a in sys.argv[2:]:
        kx, v = a.split('=')
        opt[kx] = eval(v)
    open(sys.argv[1], 'w').write(generate(**opt))
```

```python
import sys, math
from asmgen import Kern, vr, sr, f32

NAME = 'adaLN_cond__ssm_conv_s4d__geglu_ffn__prompt_kernel'

SYNC1 = 0x0
GEN = 0x22000
MS = 0x1E000
SYNC2A, SYNC2B, SYNCW, SYNC3, SYNC2C = 0x8000, 0xE000, 0x14000, 0x15000, 0x18000
MODP = 0xC0000
MOD, STATS = 0x24000, 0x16000
ZBEG, ZEND = 0x8000, 0x1E000
STAMP = 0x30000
CSP = 0x3C0000
XN, XT, X1T, X1S, WD, ACT = 0x100000, 0x400000, 0x700000, 0xA00000, 0xD00000, 0x1000000
XNS, X1R = 10240 + 128, 4096 + 128
KG, KGS = 0, 4608
XNL0, MSL = 1696, 13984
KA, KAS = 27648, 4128
SA, SAS = 40032, 8192
TR, TRR, TRM = 40032, 1344, 10752
WT = 81408
KC, KCS = 51200, 3840
GA = 204
TAB, EXC = 64704, 10240
STG = 81920
RING, NS = 16384, 5
PARK0, PARK6A, PARK6B, PARK7 = 122880, 98304, 0, 118784
RESID, PART = 16384, 0
W2 = {1: 96, 2: 116, 3: 136, 4: 156, 5: 176, 0: 196, 6: 216}
sOW = {0: 70, 6: 71, 1: 72, 2: 73, 3: 74, 4: 75, 5: 76}
sOA = {0: 94, 6: 95, 1: 96, 2: 97, 3: 98, 4: 99, 5: 77}
LDS_BYTES = 163840
pX, pLA, pAI, pCR, pCI, pDT, pDS, pWG, pWU, pWD, pC, pWM, pOUT, pDBG, pWS = 4, 6, 8, 10, 12, 14, 16, 20, 22, 24, 26, 28, 30, 32, 34
sW, sI, sPC = 36, 37, 38
rWS, rA, rB = 40, 44, 48
sD0, sMB, sNB = 52, 53, 54
sT = 55
sCH = 70
sSPIN = 79
sST = 80
sFLAG = 82
sWL, sWO, sWI, sWR = 86, 87, 88, 89
sQ, sM1, sTAG = 91, 92, 93
P2 = lambda r: sr(r, 2)
P4 = lambda r: sr(r, 4)
WF = 96
SPIN_MAX = 400000

LOG2E = 1.4426950408889634


class Gen:
    def __init__(self, opt):
        self.o = dict(stop=None, stamps=False, nt='nt')
        self.o.update(opt)
        self.k = Kern()
        self.nst = 0

    def stamp(self, name, vt=None):
        if not self.o['stamps']:
            return
        if isinstance(self.o['stamps'], (list, tuple)) and name not in self.o['stamps']:
            return
        names = self.o.setdefault('stamp_names', [])
        if name not in names:
            names.append(name)
        idx = names.index(name)
        assert idx < 32, names
        self.k(f'''
        s_memrealtime {sr(sST, 2)}
        s_memtime s[84:85]
        s_waitcnt lgkmcnt(0)
        v_writelane_b32 v87, {sr(sST)}, {idx}
        v_writelane_b32 v87, s84, {32 + idx}
        ''')

    def stamp_flush(self):
        if not self.o['stamps']:
            return
        self.k(f'''
        s_lshl_b32 s3, s2, 3
        s_add_u32 s3, s3, {sr(sW)}
        s_lshl_b32 s3, s3, 8
        s_add_u32 s3, s3, {STAMP}
        v_lshl_add_u32 v86, v0, 2, s3
        global_store_dword v86, v87, {P2(pWS)}
        ''')

    def arrive(self, base, nshard, shard_sreg, vt):
        k = self.k
        k(f'''
        s_lshl_b32 s3, {shard_sreg}, 7
        s_add_u32 s3, s3, {base}
        v_mul_u32_u24 {vr(vt)}, {128 * nshard}, v0
        v_add_u32 {vr(vt)}, s3, {vr(vt)}
        v_mov_b32 {vr(vt + 1)}, 1
        s_mov_b64 exec, 0xff
        global_atomic_add {vr(vt)}, {vr(vt + 1)}, {P2(pWS)} sc1
        s_mov_b64 exec, -1
        ''')

    def poll_addr(self, base, nshard, va):
        k = self.k
        k(f'''
        s_and_b32 s3, s2, 7
        s_mul_i32 s3, s3, {128 * nshard}
        s_add_u32 s3, s3, {base}
        v_min_u32 {vr(va)}, {nshard - 1}, v0
        v_lshlrev_b32 {vr(va)}, 7, {vr(va)}
        v_add_u32 {vr(va)}, s3, {vr(va)}
        ''')

    def poll_issue(self, va, vd, nl, off=0):
        k = self.k
        if nl and self.o.get('apoll', 1):
            k(f'''
            v_mov_b32 {vr(vd)}, 0
            s_mov_b64 exec, {hex((1 << nl) - 1)}
            global_atomic_add {vr(vd)}, {vr(va)}, {vr(vd)}, {P2(pWS)} offset:{off} sc0 sc1
            s_mov_b64 exec, -1
            ''')
        else:
            k(f'global_load_dword {vr(vd)}, {vr(va)}, {P2(pWS)} offset:{off} sc1')

    def poll(self, va, vd, count, preissued=False, off=0, nl=0, sleep=None):
        k = self.k
        L, D = k.label('poll'), k.label('polld')
        ap = nl and self.o.get('apoll', 1)

        def check():
            k(f'v_cmp_gt_u32 vcc, {count}, {vr(vd)}')
            if ap:
                k(f's_and_b32 vcc_lo, vcc_lo, {hex((1 << nl) - 1)}\ns_cbranch_scc0 {D}')
            else:
                k(f's_cbranch_vccz {D}')
        if not preissued:
            self.poll_issue(va, vd, nl, off)
        check()
        k(f'{L}:')
        k(f's_sleep {self.o.get("sleep", 2) if sleep is None else sleep}')
        self.poll_issue(va, vd, nl, off)
        check()
        k(f'''
        s_add_u32 {sr(sSPIN)}, {sr(sSPIN)}, 1
        s_cmp_lt_u32 {sr(sSPIN)}, {SPIN_MAX}
        s_cbranch_scc1 {L}
        {D}:
        ''')

    def srd(self, r, ptr, size):
        self.k(f'''
        s_mov_b32 {sr(r)}, {sr(ptr)}
        s_and_b32 {sr(r + 1)}, {sr(ptr + 1)}, 0xffff
        s_mov_b32 {sr(r + 2)}, {size}
        s_mov_b32 {sr(r + 3)}, 0x20000
        ''')

    def only_wave(self, w):
        L = self.k.label('ow')
        self.k(f's_cmp_lg_u32 {sr(sW)}, {w}\ns_cbranch_scc1 {L}')
        return L

    def prologue(self):
        k = self.k
        k(f'''
        s_cmp_ge_u32 s2, 256
        s_cbranch_scc1 L_end
        s_load_dwordx16 s[4:19], s[0:1], 0
        s_load_dwordx16 s[20:35], s[0:1], 64
        s_getpc_b64 {P2(sPC)}
        L_pc:
        v_lshrrev_b32 v1, 6, v0
        v_and_b32 v0, 63, v0
        v_readfirstlane_b32 {sr(sW)}, v1
        s_mov_b32 {sr(sSPIN)}, 0
        ''')
        if self.o.get('diag_T'):
            k('s_memrealtime s[94:95]')
        if self.o.get('diag_alu'):
            k(f's_mov_b32 s3, {self.o["diag_alu"]}\nL_da:')
            for _ in range(100):
                k('v_add_u32 v1, v1, v1')
            k('s_sub_u32 s3, s3, 1\ns_cmp_lg_u32 s3, 0\ns_cbranch_scc1 L_da')
        if self.o['stamps']:
            k('v_mov_b32 v87, 0')
        L = k.label('pf')
        k(f'''
        s_lshr_b32 s3, s2, 3
        s_and_b32 s3, s3, 7
        s_cmp_eq_u32 {sr(sW)}, 0
        s_cselect_b32 s56, 0, s3
        s_cmp_eq_u32 {sr(sW)}, s56
        s_cbranch_scc0 {L}
        s_lshl_b32 s3, {sr(sW)}, 13
        v_lshlrev_b32 v2, 7, v0
        v_add_u32 v2, s3, v2
        v_min_u32 v2, L_end-L_pc, v2
        global_load_dword v83, v2, {P2(sPC)}
        {L}:
        s_lshl_b32 s3, s2, 3
        s_add_u32 s3, s3, {sr(sW)}
        s_mul_i32 s3, s3, 1280
        v_lshl_add_u32 v2, v0, 4, s3
        v_lshl_add_u32 v3, v0, 2, s3
        s_sub_u32 {sr(sI)}, s2, 40
        s_and_b32 {sr(sMB)}, s2, 7
        s_lshr_b32 {sr(sQ)}, {sr(sI)}, 3
        s_mul_i32 s3, {sr(sMB)}, 27
        s_add_u32 s3, s3, {sr(sQ)}
        s_lshr_b32 {sr(sNB)}, s3, 3
        s_and_b32 {sr(sM1)}, s3, 7
        s_mul_i32 s3, s3, 3
        s_min_u32 {sr(sD0)}, s3, 637
        s_min_u32 s55, {sr(sW)}, 5
        s_lshl_b32 s56, {sr(sD0)}, 1
        s_add_u32 s56, s56, s55
        s_lshl_b32 s56, s56, 7
        v_lshl_add_u32 v18, v0, 1, s56
        s_lshr_b32 s55, s55, 1
        s_add_u32 s55, s55, {sr(sD0)}
        s_lshl_b32 s55, s55, 1
        v_mov_b32 v19, s55
        v_min_u32 v17, 2, v0
        v_add_u32 v17, {sr(sD0)}, v17
        v_lshlrev_b32 v17, 1, v17
        ''')
        if self.o.get('wsoff'):
            k(f's_add_u32 s{pWS}, s{pWS}, {self.o["wsoff"] << 20}\ns_addc_u32 s{pWS + 1}, s{pWS + 1}, 0')
        self.stamp('start')
        if self.o.get('chase'):
            ptr, stride = self.o.get('chase_ptr', 18), self.o.get('chase_stride', 256 * 512)
            k(f's_lshl_b32 s55, s2, 9\nv_mov_b32 v10, s55')
            for i in range(self.o['chase']):
                k(f'''
                global_load_dword v11, v10, {P2(ptr)}
                v_and_b32 v11, 0, v11
                v_add_u32 v10, {stride}, v10
                v_add_u32 v10, v11, v10
                ''')
            self.stamp('chase')
        k(f'''
        global_load_dwordx4 v[92:95], v2, {P2(pX)} {self.o['nt']}
        global_load_dword v91, v3, {P2(pX)} offset:1024 {self.o['nt']}
        s_load_dword {sr(sTAG)}, {P2(pWS)}, {GEN}
        ''')
        L, Lh = k.label('nokl'), k.label('hc')
        k(f'''
        s_lshl_b32 s68, s2, 1
        s_and_b32 s55, {sr(sW)}, 1
        s_add_u32 s68, s68, s55
        s_min_u32 s68, s68, 479
        s_and_b32 s55, s68, 7
        s_mul_i32 s55, s55, 80
        v_lshrrev_b32 v20, 3, v0
        v_mul_u32_u24 v20, 10, v20
        v_add_u32 v20, s55, v20
        s_cmp_lt_u32 {sr(sW)}, 6
        s_cbranch_scc1 {Lh}
        v_lshlrev_b32 v21, 1, v20
        global_load_dwordx4 v[160:163], v21, {P2(pC)}
        global_load_dword v164, v21, {P2(pC)} offset:16
        v_mul_u32_u24 v20, 7680, v20
        v_and_b32 v21, 7, v0
        v_lshl_add_u32 v20, v21, 4, v20
        s_lshr_b32 s55, s68, 3
        s_lshl_b32 s55, s55, 7
        v_add_u32 v20, s55, v20
        s_branch {L}
        {Lh}:
        s_cmp_lt_u32 s2, 40
        s_cbranch_scc1 {L}
        global_load_ushort v20, v18, {P2(pLA)} {self.o['nt']}
        global_load_ushort v24, v19, {P2(pDT)}
        global_load_ushort v21, v18, {P2(pAI)} {self.o['nt']}
        global_load_ushort v22, v18, {P2(pCR)} {self.o['nt']}
        global_load_ushort v23, v18, {P2(pCI)} {self.o['nt']}
        global_load_ushort v25, v17, {P2(pDS)}
        {L}:
        ''')
        self.srd(rWS, pWS, 0x2000000)
        self.srd(rA, pWG, 640 * 1728 * 2)
        self.srd(rB, pWU, 640 * 1728 * 2)

    def early_addresses(self):
        k = self.k
        k(f'''
        v_lshrrev_b32 v16, 3, v0
        v_mul_u32_u24 v17, 3456, v16
        v_bfe_u32 v16, v0, 4, 1
        v_bfe_u32 v26, v0, 1, 2
        v_xor_b32 v26, v26, v16
        v_and_b32 v16, 1, v0
        v_lshl_add_u32 v17, v16, 4, v17
        s_lshl_b32 s55, {sr(sNB)}, 7
        v_add_u32 v17, s55, v17
        v_lshl_add_u32 v26, v26, 5, v17
        v_xor_b32 v27, 64, v26
        s_mul_i32 {sr(sWR)}, {sr(sM1)}, 5
        s_mov_b32 {sr(sWO)}, 0
        ''')
        k(f's_lshl_b32 s55, {sr(sW)}, 6\nv_add_u32 v89, s55, v0')
        k(f'''
        s_lshl_b32 s55, {sr(sW)}, 1
        s_lshr_b32 s56, 0xffa4, s55
        s_and_b32 s56, s56, 3
        s_lshl_b32 s57, s56, 3
        v_lshlrev_b32 v10, 2, v89
        ''')
        for j in range(4):
            k(f'''
            v_add_u32 v11, {j}, v10
            v_cvt_f32_u32 v11, v11
            v_cvt_pk_bf16_f32 v11, v11, v11
            v_lshlrev_b32 v11, 16, v11
            v_cvt_u32_f32 v11, v11
            v_lshrrev_b32 v12, 7, v11
            v_and_b32 v13, 7, v11
            v_lshl_add_u32 v12, v12, 3, v13
            v_lshrrev_b32 v12, s56, v12
            v_add_u32 v12, s57, v12
            v_mul_u32_u24 v12, 20, v12
            v_bfe_u32 v11, v11, 3, 4
            v_add_lshl_u32 v11, v12, v11, 2
            v_add_u32 {vr(GA + j)}, {KC}, v11
            ''')
        k(f'''
        v_lshlrev_b32 v208, 1, v10
        v_lshlrev_b32 v209, 2, v10
        ''')
        for i in range(2):
            k(f'''
            v_add_u32 v11, {512 * i}, v89
            v_mul_u32_u24 v12, 0x5556, v11
            v_lshrrev_b32 v12, 16, v12
            v_mul_u32_u24 v13, 3, v12
            v_sub_u32 v11, v11, v13
            v_add_u32 v11, {sr(sD0)}, v11
            v_mul_u32_u24 v12, {XNS}, v12
            v_lshl_add_u32 {vr(210 + i)}, v11, 4, v12
            ''')
        k('v_lshlrev_b32 v212, 4, v89')
        self.wread_addr(213)
        k(f'''
        v_lshrrev_b32 v11, 2, v0
        v_min_u32 v11, 11, v11
        v_mul_u32_u24 v12, 0x5556, v11
        v_lshrrev_b32 v12, 16, v12
        v_mul_u32_u24 v13, 3, v12
        v_sub_u32 v11, v11, v13
        v_cmp_eq_u32 vcc, 3, v12
        v_addc_co_u32 v12, vcc, 0, v12, vcc
        v_mul_u32_u24 v12, 640, v12
        v_add3_u32 v11, v11, v12, {sr(sD0)}
        v_lshrrev_b32 v12, 6, v11
        v_and_b32 v11, 63, v11
        v_lshlrev_b32 v11, 2, v11
        v_lshl_add_u32 v11, v12, 11, v11
        v_and_b32 v12, 3, v0
        v_lshl_add_u32 v11, v12, 8, v11
        v_add_u32 v88, {MODP}, v11
        v_min_u32 v89, 319, v89
        v_lshlrev_b32 v90, 3, v89
        v_add_u32 v90, {MOD + 3 * 2560}, v90
        ''')
        k(f'''
        v_lshrrev_b32 v8, 4, v0
        v_bfe_u32 v9, v0, 2, 2
        v_and_b32 v10, 3, v0
        v_lshlrev_b32 v11, 1, v10
        v_lshl_add_u32 v11, v8, 2, v11
        v_lshrrev_b32 v12, 1, v9
        v_add_u32 v11, v11, v12
        v_mul_u32_u24 v11, 48, v11
        v_and_b32 v12, 1, v9
        v_lshl_add_u32 v11, v12, 3, v11
        v_add_u32 v1, {XNL0 - 14 * 48}, v11
        v_sub_u32 v11, v10, v9
        v_lshlrev_b32 v12, 3, v8
        v_sub_u32 v11, v11, v12
        v_lshlrev_b32 v11, 3, v11
        v_add_u32 v2, {KA + 32 + 2 * (112 - 16)}, v11
        v_lshlrev_b32 v11, 3, v9
        v_lshl_add_u32 v11, v8, 1, v11
        v_lshrrev_b32 v12, 1, v10
        v_add_u32 v11, v11, v12
        v_mul_u32_u24 v11, 48, v11
        v_and_b32 v12, 1, v10
        v_lshl_add_u32 v11, v12, 3, v11
        v_add_u32 v5, {XNL0}, v11
        ''')
        k(f'''
        s_mul_i32 s56, {sr(sW)}, {TRR}
        s_add_u32 s56, s56, {TR}
        v_lshl_add_u32 v6, v0, 4, s56
        v_lshl_add_u32 v7, v0, 2, s56
        v_mul_u32_u24 v4, {TRR}, v9
        v_lshl_add_u32 v4, v8, 5, v4
        v_lshl_add_u32 v4, v10, 3, v4
        s_and_b32 s55, {sr(sW)}, 1
        s_mul_i32 s56, s55, 640
        s_add_u32 s56, s56, {TR}
        v_add_u32 v4, s56, v4
        s_mul_i32 s57, s2, {XNS}
        s_mul_i32 s56, s55, 5120
        s_add_u32 s57, s57, s56
        v_lshl_add_u32 v3, v0, 4, s57
        s_add_u32 {sr(sTAG)}, {sr(sTAG)}, 0x9e3779b9
        ''')
        k(f'''
        s_and_b32 s55, s2, 7
        s_lshl_b32 s55, s55, 12
        v_lshrrev_b32 v11, 1, v0
        v_lshlrev_b32 v11, 7, v11
        v_and_b32 v12, 1, v0
        v_lshl_add_u32 v11, v12, 5, v11
        v_add_u32 v215, s55, v11
        ''')

    def poll_sync1_issue(self, va, vd):
        self.k(f'''
        global_load_dwordx4 {vr(vd, 4)}, {vr(va)}, {P2(pWS)} offset:{SYNC1} sc1
        global_load_dwordx4 {vr(vd + 4, 4)}, {vr(va)}, {P2(pWS)} offset:{SYNC1 + 16} sc1
        ''')

    def poll_sync1(self, va, vd, preissued=False):
        k = self.k
        L, D = k.label('p1'), k.label('p1d')
        if preissued:
            self.sync1_check(vd, D)
        k(f'{L}:')
        self.poll_sync1_issue(va, vd)
        self.sync1_check(vd, D)
        k(f'''
        s_sleep {self.o.get('sleep', 2)}
        s_add_u32 {sr(sSPIN)}, {sr(sSPIN)}, 1
        s_cmp_lt_u32 {sr(sSPIN)}, {SPIN_MAX}
        s_cbranch_scc1 {L}
        {D}:
        ''')

    def sync1_check(self, vd, D):
        k = self.k
        k(f'''
        v_min3_u32 {vr(vd + 8)}, {vr(vd)}, {vr(vd + 1)}, {vr(vd + 2)}
        v_max3_u32 {vr(vd + 9)}, {vr(vd)}, {vr(vd + 1)}, {vr(vd + 2)}
        v_min3_u32 {vr(vd + 8)}, {vr(vd + 8)}, {vr(vd + 3)}, {vr(vd + 4)}
        v_max3_u32 {vr(vd + 9)}, {vr(vd + 9)}, {vr(vd + 3)}, {vr(vd + 4)}
        v_min3_u32 {vr(vd + 8)}, {vr(vd + 8)}, {vr(vd + 5)}, {vr(vd + 6)}
        v_max3_u32 {vr(vd + 9)}, {vr(vd + 9)}, {vr(vd + 5)}, {vr(vd + 6)}
        v_min_u32 {vr(vd + 8)}, {vr(vd + 8)}, {vr(vd + 7)}
        v_max_u32 {vr(vd + 9)}, {vr(vd + 9)}, {vr(vd + 7)}
        v_xor_b32 {vr(vd + 8)}, {sr(sTAG)}, {vr(vd + 8)}
        v_xor_b32 {vr(vd + 9)}, {sr(sTAG)}, {vr(vd + 9)}
        v_or_b32 {vr(vd + 8)}, {vr(vd + 8)}, {vr(vd + 9)}
        v_cmp_ne_u32 vcc, 0, {vr(vd + 8)}
        s_cbranch_vccz {D}
        ''')

    def touch(self, ptr, size, sbyte, stride=128, lanes=64):
        k = self.k
        k(f'''
        v_mul_u32_u24 v84, {stride}, v0
        v_add_u32 v84, {sbyte}, v84
        v_min_u32 v84, {size - 4}, v84
        ''')
        if lanes < 64:
            k(f's_mov_b32 exec_lo, {hex((1 << min(lanes, 32)) - 1)}\ns_mov_b32 exec_hi, {hex((1 << max(lanes - 32, 0)) - 1)}')
        k(f'global_load_dword v83, v84, {P2(ptr)} {self.o.get("wpol", "")}')
        if lanes < 64:
            k('s_mov_b64 exec, -1')

    def stage_a(self):
        k = self.k
        L, L5 = k.label('nsa'), k.label('sa5')
        k(f'''
        s_cmp_lt_u32 s2, 40
        s_cbranch_scc1 {L}
        s_cmp_ge_u32 {sr(sW)}, 6
        s_cbranch_scc1 {L}
        s_cmp_eq_u32 {sr(sW)}, 5
        s_cbranch_scc1 {L5}
        s_mov_b32 {sr(sWI)}, {sr(sW)}
        ''')
        self.wunits(1, 5, 1, pol=self.o.get('wpol', ''))
        k(f's_branch {L}\n{L5}:')
        if self.o.get('pf1', 2) == 2:
            k(f'''
            s_mul_i32 s55, {sr(sWR)}, {8 * 3456}
            s_lshl_b32 s58, {sr(sNB)}, 7
            s_add_u32 s55, s55, s58
            s_add_u32 s55, s55, {320 * 3456}
            ''')
            self.touch(pWG, 640 * 1728 * 2, 's55', stride=3456, lanes=40)
            self.touch(pWU, 640 * 1728 * 2, 's55', stride=3456, lanes=40)
        if self.o.get('tm', 0):
            k(f's_mul_i32 s55, {sr(sI)}, {178 * 128}')
            for i in range(3):
                self.touch(pWM, 640 * 3840 * 2, 's55')
                if i < 2:
                    k('s_add_u32 s55, s55, 8192')
        k(f'{L}:')

    def stage_b_touch(self):
        k = self.k
        if not self.o.get('tb', 0):
            return
        L = [k.label('tb') for _ in range(5)]
        k(f's_cmp_lt_u32 {sr(sW)}, 2\ns_cbranch_scc0 {L[0]}')
        k(f's_mul_i32 s55, {sr(sI)}, {80 * 128}\ns_mul_i32 s56, {sr(sW)}, {40 * 128}\ns_add_u32 s55, s55, s56')
        self.touch(pWD, 1728 * 640 * 2, 's55', lanes=40)
        k(f's_branch {L[2]}\n{L[0]}:')
        k(f'''
        s_mul_i32 s55, {sr(sWR)}, {8 * 3456}
        s_lshl_b32 s56, {sr(sNB)}, 7
        s_add_u32 s55, s55, s56
        s_add_u32 s55, s55, {320 * 3456}
        s_cmp_eq_u32 {sr(sW)}, 2
        s_cbranch_scc0 {L[1]}
        ''')
        self.touch(pWG, 640 * 1728 * 2, 's55', stride=3456, lanes=40)
        k(f's_branch {L[2]}\n{L[1]}:\ns_cmp_eq_u32 {sr(sW)}, 3\ns_cbranch_scc0 {L[2]}')
        self.touch(pWU, 640 * 1728 * 2, 's55', stride=3456, lanes=40)
        k(f'{L[2]}:')

    def ln1(self):
        k = self.k
        X = [92, 93, 94, 95, 91]
        k('v_mov_b32 v10, v91')
        self.stamp('xld')
        if self.o.get('sa_pos', 0) == 0:
            self.stage_a()
        k(f'''
        s_mov_b32 s55, 0x3f803f80
        v_mov_b32 v10, 0
        v_mov_b32 v11, 0
        ''')
        for j in range(5):
            k(f'v_dot2_f32_bf16 v10, v{X[j]}, s55, v10')
            k(f'v_dot2_f32_bf16 v11, v{X[j]}, v{X[j]}, v11')
        k(f'''
        v_permlane32_swap_b32 v10, v11
        v_add_f32 v10, v10, v11
        ''')
        for n in (8, 4, 2, 1):
            k(f'v_add_f32_dpp v10, v10, v10 row_ror:{n} row_mask:0xf bank_mask:0xf')
        k(f'''
        v_add_f32_dpp v10, v10, v10 row_bcast:15 row_mask:0xa bank_mask:0xf
        v_mov_b32 v13, {f32(1.0 / 640)}
        v_readlane_b32 s55, v10, 31
        v_readlane_b32 s56, v10, 63
        s_lshl_b32 s57, {sr(sW)}, 2
        v_mov_b32 v14, s57
        v_mul_f32 v10, s55, v13
        v_mul_f32 v11, s56, v13
        v_fma_f32 v11, -v10, v10, v11
        v_max_f32 v11, 0, v11
        v_cvt_pk_bf16_f32 v10, v10, v11
        v_and_b32 v11, 0xffff0000, v10
        v_lshlrev_b32 v10, 16, v10
        v_add_f32 v11, {f32(1e-5)}, v11
        v_cvt_pk_bf16_f32 v11, v11, v11
        v_lshlrev_b32 v11, 16, v11
        v_sqrt_f32 v11, v11
        v_lshlrev_b32 v15, 16, v92
        v_cvt_pk_bf16_f32 v13, v10, v11
        v_and_b32 v11, 0xffff0000, v13
        v_rcp_f32 v11, v11
        ''')
        k(f'ds_write_b32 v14, v13 offset:{TR + TRM}', tag='trw')
        k('v_mul_f32 v10, -v10, v11')
        for j in range(5):
            k(f'''
            v_lshlrev_b32 v13, 16, v{X[j]}
            v_and_b32 v14, 0xffff0000, v{X[j]}
            v_fma_f32 v13, v13, v11, v10
            v_fma_f32 v14, v14, v11, v10
            v_cvt_pk_bf16_f32 v{X[j]}, v13, v14
            ''')
            if j == 3:
                k('ds_write_b128 v6, v[92:95]', tag='trw')
        k('ds_write_b32 v7, v91 offset:1024', tag='trw')
        k.wait('trw')
        k('s_barrier')
        self.stamp('trb')
        if self.o.get('sa_pos', 0) == 1:
            self.stage_a()
        Ls = k.label('nost')
        k(f'''
        s_cmp_lt_u32 {sr(sW)}, 6
        s_cbranch_scc1 {Ls}
        ''')
        for i in range(5):
            k(f'ds_read_b64_tr_b16 v[{28 + 4 * i}:{29 + 4 * i}], v4 offset:{128 * i}')
            k(f'ds_read_b64_tr_b16 v[{30 + 4 * i}:{31 + 4 * i}], v4 offset:{128 * i + 4 * TRR}')
        k(f'''
        v_lshlrev_b32 v72, 4, v0
        ds_read_b128 v[68:71], v72 offset:{TR + TRM}
        s_mov_b32 s58, {XN}
        s_mov_b32 s59, {XN + 4096}
        ''')
        for i in range(5):
            k(f'buffer_store_dwordx4 v[{28 + 4 * i}:{31 + 4 * i}], v3, {P4(rWS)}, s{58 + i // 4} offen offset:{1024 * (i % 4)} sc1', tag='xnst')
        L6, L7, L8 = k.label('w6'), k.label('w7'), k.label('w8')
        k(f'''
        s_cmp_eq_u32 {sr(sW)}, 6
        s_cbranch_scc1 {L6}
        v_mov_b32 v68, 0
        v_mov_b32 v69, 0
        v_mov_b32 v70, 0
        v_mov_b32 v71, 0
        s_cmp_ge_u32 s2, 30
        s_cbranch_scc1 {L8}
        s_add_u32 s56, s2, 30
        s_lshl_b32 s56, s56, 8
        s_add_u32 s56, s56, {MOD}
        s_mov_b64 exec, 0xffff
        buffer_store_dwordx4 v[68:71], v72, {P4(rWS)}, s56 offen sc1
        {L8}:
        s_mul_i32 s56, s2, 352
        s_add_u32 s56, s56, {ZBEG}
        s_mov_b64 exec, 0x3fffff
        s_branch {L7}
        {L6}:
        s_lshl_b32 s56, s2, 5
        s_add_u32 s56, s56, {MS}
        s_mov_b64 exec, 3
        {L7}:
        ''')
        k(f'buffer_store_dwordx4 v[68:71], v72, {P4(rWS)}, s56 offen sc1', tag='xnst')
        k(f'''
        s_cmp_lt_u32 s2, 240
        s_cselect_b64 exec, 0xffff, 0
        v_mov_b32 v74, 0
        v_mov_b32 v75, 0
        v_mov_b32 v76, 0
        v_mov_b32 v77, 0
        s_lshl_b32 s56, s68, 8
        s_add_u32 s69, s56, {MODP}
        ''')
        k(f'buffer_store_dwordx4 v[74:77], v72, {P4(rWS)}, s69 offen sc1', tag='xnst')
        k(f'''
        s_mov_b64 exec, -1
        v_mov_b32 v74, 0
        v_mov_b32 v75, 0
        v_mov_b32 v76, 0
        v_mov_b32 v77, 0
        s_lshl_b32 s56, {sr(sNB)}, 3
        s_add_u32 s56, s56, {sr(sM1)}
        s_lshl_b32 s56, s56, 10
        s_and_b32 s57, {sr(sW)}, 1
        s_lshl_b32 s57, s57, 9
        s_add_u32 s56, s56, s57
        s_add_u32 s56, s56, {CSP}
        s_cmp_ge_u32 s2, 40
        s_cselect_b32 exec_lo, -1, 0
        s_mov_b32 exec_hi, 0
        ''')
        k(f'buffer_store_dwordx4 v[74:77], v72, {P4(rWS)}, s56 offen sc1', tag='xnst')
        k('s_mov_b64 exec, -1')

        def mod_loads():
            k('s_cmp_lt_u32 s2, 240\ns_cselect_b64 exec, -1, 0')
            for i in range(10):
                k(f'global_load_dwordx4 {vr(216 + 4 * i, 4)}, v20, {P2(pWM)} {self.o["nt"]}')
                if i < 9:
                    k('v_add_u32 v20, 7680, v20')
            k('s_mov_b64 exec, -1')
        if self.o.get('mod_pre', 1):
            mod_loads()
        self.silu10()
        k(f'''
        s_mov_b64 exec, -1
        s_lshr_b32 s56, s2, 3
        s_lshl_b32 s56, s56, 7
        s_and_b32 s57, s2, 7
        s_lshl_b32 s57, s57, 3
        s_add_u32 s56, s56, s57
        s_and_b32 s57, {sr(sW)}, 1
        s_lshl_b32 s57, s57, 2
        s_add_u32 s56, s56, s57
        v_lshl_add_u32 v16, v0, 12, s56
        v_mov_b32 v17, {sr(sTAG)}
        s_mov_b64 exec, 0xff
        ''')
        k.wait('xnst')
        k(f'''
        global_store_dword v16, v17, {P2(pWS)} offset:{SYNC1} sc1
        s_mov_b64 exec, -1
        ''')
        self.stamp('A')
        Lm = k.label('nwb')
        nb_ = self.o.get('wb', 0)

        if self.o.get('mod_first', 0) and not self.o.get('mod_pre', 1):
            mod_loads()
        if nb_:
            k(f'''
            s_cmp_lt_u32 s2, 40
            s_cbranch_scc1 {Lm}
            s_sub_u32 {sr(sWI)}, {sr(sW)}, 1
            ''')
            self.wunits(nb_, 5 + 2 * nb_, 2, check=False)
            k(f'{Lm}:')
        if not self.o.get('mod_first', 0) and not self.o.get('mod_pre', 1):
            mod_loads()
        k(f'{Ls}:')

    def silu10(self):
        k = self.k
        CV = 140
        for i in range(10):
            k(f'v_lshlrev_b32 {vr(CV + i)}, 16, {vr(160 + i // 2)}' if i % 2 == 0 else f'v_and_b32 {vr(CV + i)}, 0xffff0000, {vr(160 + i // 2)}')
            k(f'v_mul_f32 {vr(150 + i)}, {f32(-LOG2E)}, {vr(CV + i)}')
        for op in ('v_exp_f32 {t}, {t}', 'v_add_f32 {t}, 1.0, {t}', 'v_rcp_f32 {t}, {t}', 'v_mul_f32 {c}, {c}, {t}',
                   'v_cvt_pk_bf16_f32 {c}, {c}, {c}', 'v_lshlrev_b32 {c}, 16, {c}'):
            for i in range(10):
                k(op.format(t=vr(150 + i), c=vr(CV + i)))

    def mod_partial(self):
        k = self.k
        LD, CV, V = 216, 140, 68
        L = k.label('nomp')
        k(f's_cmp_lt_u32 {sr(sW)}, 6\ns_cbranch_scc1 {L}\ns_cmp_ge_u32 s2, 240\ns_cbranch_scc1 {L}')
        for i in range(10):
            for j in range(4):
                r = LD + 4 * i + j
                a, b = 76 + 2 * (j % 2), 77 + 2 * (j % 2)
                k(f'v_lshlrev_b32 v{a}, 16, {vr(r)}\nv_and_b32 v{b}, 0xffff0000, {vr(r)}')
                if i == 0:
                    k(f'v_mul_f32 {vr(V + 2 * j)}, v{a}, {vr(CV)}\nv_mul_f32 {vr(V + 2 * j + 1)}, v{b}, {vr(CV)}')
                else:
                    k(f'v_fmac_f32 {vr(V + 2 * j)}, v{a}, {vr(CV + i)}\nv_fmac_f32 {vr(V + 2 * j + 1)}, v{b}, {vr(CV + i)}')
        for i in range(4):
            k(f'v_permlane32_swap_b32 {vr(V + i)}, {vr(V + 4 + i)}')
        for i in range(4):
            k(f'v_add_f32 {vr(V + i)}, {vr(V + i)}, {vr(V + 4 + i)}')
        for i in range(2):
            k(f'v_permlane16_swap_b32 {vr(V + i)}, {vr(V + 2 + i)}')
        for i in range(2):
            k(f'v_add_f32 {vr(V + i)}, {vr(V + i)}, {vr(V + 2 + i)}')
        k(f'''
        v_lshrrev_b32 v76, 4, v0
        v_and_b32 v77, 7, v0
        v_lshlrev_b32 v76, 3, v76
        v_lshl_add_u32 v76, v77, 5, v76
        ''')
        for i in range(2):
            k(f'v_add_f32_dpp {vr(V + i)}, {vr(V + i)}, {vr(V + i)} row_ror:8 row_mask:0xf bank_mask:0xf')
        k(f'''
        v_or_b32 {vr(V)}, 1, {vr(V)}
        v_or_b32 {vr(V + 1)}, 1, {vr(V + 1)}
        s_mov_b32 exec_lo, 0x00ff00ff
        s_mov_b32 exec_hi, 0x00ff00ff
        buffer_store_dwordx2 {vr(V, 2)}, v76, {P4(rWS)}, s69 offen sc1
        s_mov_b64 exec, -1
        ''')
        self.stamp('modp')
        k(f'{L}:')

    def wunits(self, n, end, step, check=True, pol=''):
        k = self.k
        L = k.label('wsd')
        for i in range(n):
            if check:
                k(f's_cmp_ge_u32 {sr(sWI)}, {end}\ns_cbranch_scc1 {L}')
            k(f'''
            s_add_u32 s55, {sr(sWI)}, {sr(sWR)}
            s_sub_u32 s56, s55, 40
            s_cselect_b32 s55, s55, s56
            s_lshl_b32 s56, s55, 11
            s_add_u32 m0, s56, {STG}
            s_mul_i32 s55, s55, {8 * 3456}
            s_add_u32 s55, s55, {sr(sWO)}
            s_add_u32 {sr(sWI)}, {sr(sWI)}, {step}
            ''')
            k(f'buffer_load_dwordx4 v26, {P4(rA)}, s55 offen {pol} lds', tag='wst')
            k(f's_add_u32 m0, s56, {STG + 1024}')
            k(f'buffer_load_dwordx4 v27, {P4(rB)}, s55 offen {pol} lds', tag='wst')
        k(f'{L}:')

    def wread_addr(self, va):
        self.k(f'''
        v_bfe_u32 {vr(va + 1)}, v0, 3, 2
        s_and_b32 s55, {sr(sW)}, 3
        v_xor_b32 {vr(va + 1)}, s55, {vr(va + 1)}
        v_lshrrev_b32 {vr(va)}, 4, v0
        v_lshlrev_b32 {vr(va)}, 10, {vr(va)}
        v_lshl_add_u32 {vr(va)}, {vr(va + 1)}, 5, {vr(va)}
        v_bfe_u32 {vr(va + 1)}, v0, 2, 2
        v_lshl_add_u32 {vr(va)}, {vr(va + 1)}, 7, {vr(va)}
        v_and_b32 {vr(va + 1)}, 3, v0
        v_lshl_add_u32 {vr(va)}, {vr(va + 1)}, 3, {vr(va)}
        v_add_u32 {vr(va)}, {STG}, {vr(va)}
        v_add_u32 {vr(va + 1)}, {10 * 4096}, {vr(va)}
        ''')

    def wstage_read(self, rnd, va):
        k = self.k
        for s in range(20):
            r = WF + 4 * (20 * rnd + s)
            a = va if s < 10 else va + 1
            off = (s % 10) * 4096
            k(f'ds_read_b64_tr_b16 {vr(r, 2)}, {vr(a)} offset:{off}', tag='wrd')
            k(f'ds_read_b64_tr_b16 {vr(r + 2, 2)}, {vr(a)} offset:{off + 512}', tag='wrd')

    def cmul(self, d, a, b):
        self.k(f'v_pk_mul_f32 {vr(d, 2)}, {vr(a, 2)}, {vr(b, 2)} op_sel:[0,0] op_sel_hi:[0,1]')
        self.k(f'v_pk_fma_f32 {vr(d, 2)}, {vr(a, 2)}, {vr(b, 2)}, {vr(d, 2)} op_sel:[1,1,0] op_sel_hi:[1,0,1] neg_lo:[1,0,0]')

    def zpow(self, d, e, a2, fr, t):
        k = self.k
        k(f'''
        v_mul_f32 {vr(t)}, {f32(e)}, {vr(a2)}
        v_mul_f32 {vr(t + 1)}, {f32(e)}, {vr(fr)}
        v_exp_f32 {vr(t)}, {vr(t)}
        v_fract_f32 {vr(t + 1)}, {vr(t + 1)}
        v_cos_f32 {vr(d)}, {vr(t + 1)}
        v_sin_f32 {vr(d + 1)}, {vr(t + 1)}
        v_mul_f32 {vr(d)}, {vr(d)}, {vr(t)}
        v_mul_f32 {vr(d + 1)}, {vr(d + 1)}, {vr(t)}
        ''')

    def kgen(self):
        k = self.k
        Lskip = k.label('nokg')
        k(f's_cmp_ge_u32 {sr(sW)}, 6\ns_cbranch_scc1 {Lskip}')
        A2, FR, T = 28, 29, 30
        Z = {e: 32 + 2 * e for e in range(1, 8)}
        Z8, Z128, QA, QB, PA, PB, PC = 48, 50, 52, 54, 56, 58, 60
        CV = 62
        QF, PF, AC = 64, 176, 192
        RA = 80
        k(f'''
        v_lshlrev_b32 v24, 16, v24
        v_lshlrev_b32 v20, 16, v20
        v_mul_f32 v24, {f32(LOG2E)}, v24
        v_mul_f32 v20, {f32(LOG2E)}, v20
        v_exp_f32 v24, v24
        v_exp_f32 v20, v20
        v_lshlrev_b32 v21, 16, v21
        v_cvt_pk_bf16_f32 v20, v20, v24
        v_and_b32 v24, 0xffff0000, v20
        v_lshlrev_b32 v20, 16, v20
        v_mul_f32 {vr(A2)}, v20, v24
        v_mul_f32 {vr(FR)}, v21, v24
        v_mul_f32 {vr(A2)}, {f32(-LOG2E)}, {vr(A2)}
        v_mul_f32 {vr(FR)}, 0.15915494, {vr(FR)}
        v_add_f32 v24, v24, v24
        v_lshlrev_b32 v22, 16, v22
        v_lshlrev_b32 v23, 16, v23
        v_mul_f32 {vr(QA)}, v22, v24
        v_mul_f32 {vr(QA + 1)}, v23, v24
        s_mul_i32 s60, {sr(sW)}, {KGS}
        s_mov_b32 m0, s60
        v_and_b32 {vr(RA)}, 15, v0
        v_mul_u32_u24 {vr(RA)}, 288, {vr(RA)}
        v_lshrrev_b32 {vr(RA + 1)}, 4, v0
        v_lshl_add_u32 {vr(RA)}, {vr(RA + 1)}, 4, {vr(RA)}
        v_add_u32 {vr(RA)}, s60, {vr(RA)}
        ''')
        self.zpow(Z8, 8.0, A2, FR, T)
        self.zpow(Z[1], 1.0, A2, FR, T)
        self.zpow(Z128, 128.0, A2, FR, T)
        flip = [0]

        def put(row, r, neg=False):
            c = CV + flip[0]
            flip[0] ^= 1
            k(f'v_cvt_pk_bf16_f32 {vr(c)}, {vr(r)}, {"-" if neg else ""}{vr(r + 1)}')
            k(f'ds_write_addtid_b32 {vr(c)} offset:{288 * row}')

        def frags(dst):
            for s in range(4):
                k(f'ds_read_b128 {vr(dst + 4 * s, 4)}, {vr(RA)} offset:{64 * s}')

        def mm(acc):
            for s in range(4):
                c = '0' if s == 0 else vr(acc, 4)
                k(f'v_mfma_f32_16x16x32_bf16 {vr(acc, 4)}, {vr(PF + 4 * s, 4)}, {vr(QF + 4 * s, 4)}, {c}')

        small = [(2, 1, 1), (3, 2, 1), (4, 2, 2), (5, 4, 1), (6, 4, 2), (7, 4, 3)]
        cur, nxt = QA, QB
        for b in range(16):
            if b < 15:
                self.cmul(nxt, cur, Z8)
            put(b, cur, neg=True)
            if b < len(small):
                e, x, y = small[b]
                self.cmul(Z[e], Z[x], Z[y])
            cur, nxt = nxt, cur
        frags(QF)
        self.stage_b_touch()
        k(f'v_mov_b32 {vr(CV)}, 0x3f80')
        k(f'ds_write_addtid_b32 {vr(CV)} offset:0')
        flip[0] = 1
        put(8, Z128)
        cur, nxt = PA, PB
        for e in range(1, 8):
            self.cmul(cur, Z[e], Z128)
            put(e, Z[e])
            put(8 + e, cur)
            cur, nxt = nxt, cur
        frags(PF)
        self.cmul(QA, Z128, Z128)
        self.cmul(QB, QA, Z128)
        mm(AC)
        put(0, QA)
        put(4, QB)
        for e in (1, 2, 3):
            self.cmul(PA, QA, Z[2 * e])
            self.cmul(PB, QB, Z[2 * e])
            put(e, PA)
            put(4 + e, PB)
        cur, nxt = QB, QA
        for a in range(4):
            self.cmul(nxt, cur, Z128)
            self.cmul(PA, nxt, Z[4])
            put(8 + 2 * a, nxt)
            put(9 + 2 * a, PA)
            cur, nxt = nxt, cur
        frags(PF)
        self.cmul(nxt, cur, Z128)
        cur, nxt = nxt, cur
        mm(AC + 4)
        for a in range(9):
            if a < 8:
                self.cmul(nxt, cur, Z128)
            put(a, cur)
            cur, nxt = nxt, cur
        frags(PF)
        k(f'''
        v_lshrrev_b32 {vr(RA + 1)}, 4, v0
        v_mul_u32_u24 {vr(RA + 1)}, 320, {vr(RA + 1)}
        v_and_b32 {vr(RA + 2)}, 15, v0
        v_lshl_add_u32 {vr(RA + 1)}, {vr(RA + 2)}, 2, {vr(RA + 1)}
        s_mul_i32 s55, {sr(sW)}, {KCS}
        s_add_u32 s55, s55, {KC}
        v_add_u32 {vr(RA + 1)}, s55, {vr(RA + 1)}
        ''')
        for Tt in range(2):
            for i in range(4):
                k(f'ds_write_b32 {vr(RA + 1)}, {vr(AC + 4 * Tt + i)} offset:{(16 * Tt + i) * 80}', tag='kcw')
        mm(AC + 8)
        for i in range(4):
            k(f'ds_write_b32 {vr(RA + 1)}, {vr(AC + 8 + i)} offset:{(32 + i) * 80}', tag='kcw')
        wk = self.o.get('wk', 5)
        if wk:
            k(f's_cmp_ge_u32 {sr(sW)}, 4\ns_cbranch_scc1 {Lskip}')
            k(f's_add_u32 {sr(sWI)}, {sr(sW)}, {5 + 2 * self.o.get("wb", 0)}')
            self.wunits(wk, min(40, 5 + 2 * self.o.get('wb', 0) + 4 * wk), 4)
        k(f'{Lskip}:')

    def kexpand1(self):
        k = self.k
        V = lambda ch, j: 36 + 4 * ch + j
        PK, SC = 48, 54
        k(f'''
        v_lshlrev_b32 v25, 16, v25
        v_cmp_eq_u32 s[58:59], 0, v208
        v_readlane_b32 s62, v25, 0
        v_readlane_b32 s63, v25, 1
        v_readlane_b32 s64, v25, 2
        v_mov_b32 v64, 0
        v_mov_b32 v65, 0
        v_mov_b32 v66, 0
        v_mov_b32 v67, 0
        v_lshlrev_b32 v35, 4, v0
        ''')
        for ch in range(3):
            k(f'v_mov_b32 {vr(SC + ch)}, s{62 + ch}')
            k(f'v_cndmask_b32 {vr(SC + ch)}, 0, {vr(SC + ch)}, s[58:59]')
        k.wait('kcw')
        k('s_barrier')
        self.stamp('kcw')
        if self.o.get('pre1', 2) == 1:
            L = self.only_wave(0)
            self.poll_sync1_issue(215, 68)
            k(f'{L}:')
        for ch in range(3):
            for j in range(4):
                k(f'ds_read2st64_b32 {vr(176 + 8 * ch + 2 * j, 2)}, {vr(GA + j)} offset0:{30 * ch} offset1:{30 * ch + 15}')
        L = self.only_wave(7)
        k(f's_mov_b32 exec_lo, -1\ns_mov_b32 exec_hi, 0x3ff')
        k(f'ds_write_b128 v35, v[64:67] offset:{XNL0 - 672}', tag='kaw')
        k(f's_mov_b64 exec, 3')
        for ch in range(3):
            k(f'ds_write_b128 v35, v[64:67] offset:{KA + ch * KAS}', tag='kaw')
        k(f's_mov_b64 exec, -1')
        k(f'{L}:')
        done = min(40, 5 + 2 * self.o.get('wb', 0) + 4 * self.o.get('wk', 5))
        if done < 40:
            k(f's_add_u32 {sr(sWI)}, {sr(sW)}, {done}')
            self.wunits((40 - done + 7) // 8, 40, 8)
        for ch in range(3):
            for j in range(4):
                k(f'v_add_f32 {vr(V(ch, j))}, {vr(176 + 8 * ch + 2 * j)}, {vr(177 + 8 * ch + 2 * j)}')
            k(f'v_add_f32 {vr(V(ch, 0))}, {vr(V(ch, 0))}, {vr(SC + ch)}')
        for ch in range(3):
            k(f'v_cvt_pk_bf16_f32 {vr(PK + 2 * ch)}, {vr(V(ch, 0))}, {vr(V(ch, 1))}')
            k(f'v_cvt_pk_bf16_f32 {vr(PK + 2 * ch + 1)}, {vr(V(ch, 2))}, {vr(V(ch, 3))}')
            k(f'ds_write_b64 v208, {vr(PK + 2 * ch, 2)} offset:{KA + ch * KAS + 32}', tag='kaw')
        if self.o.get('pre1', 2) == 2:
            L = self.only_wave(0)
            self.poll_sync1_issue(215, 68)
            k(f'{L}:')
        for j in range(1, 4):
            for ch in range(3):
                k(f'v_add_f32 {vr(V(ch, j))}, {vr(V(ch, j))}, {vr(V(ch, j - 1))}')
        for n in (1, 2, 4, 8):
            for ch in range(3):
                src = V(ch, 3) if n == 1 else SC + ch
                k(f'v_add_f32_dpp {vr(SC + ch)}, {vr(src)}, {vr(src)} row_shr:{n} row_mask:0xf bank_mask:0xf bound_ctrl:0')
        for ch in range(3):
            k(f'v_add_f32_dpp {vr(SC + ch)}, {vr(SC + ch)}, {vr(SC + ch)} row_bcast:15 row_mask:0xa bank_mask:0xf')
        for ch in range(3):
            k(f'v_add_f32_dpp {vr(SC + ch)}, {vr(SC + ch)}, {vr(SC + ch)} row_bcast:31 row_mask:0xc bank_mask:0xf')
        k(f'''
        s_lshl_b32 s55, {sr(sW)}, 2
        s_add_u32 s55, s55, {WT}
        v_mov_b32 v33, s55
        s_mov_b32 exec_lo, 0
        s_brev_b32 exec_hi, 1
        ''')
        for ch in range(3):
            k(f'ds_write_b32 v33, {vr(SC + ch)} offset:{32 * ch}', tag='kaw')
        k('s_mov_b64 exec, -1')

    def kexpand2(self):
        k = self.k
        V = lambda ch, j: 36 + 4 * ch + j
        SC = 54
        k(f'''
        v_min_u32 v33, 23, v0
        v_lshlrev_b32 v33, 2, v33
        v_add_u32 v33, {WT}, v33
        ds_read_b32 v34, v33
        v_and_b32 v33, 7, v0
        v_cmp_gt_u32 vcc, {sr(sW)}, v33
        ''')
        for ch in range(3):
            k(f'v_sub_f32 {vr(SC + ch)}, {vr(SC + ch)}, {vr(V(ch, 3))}')
        k('v_cndmask_b32 v34, 0, v34, vcc')
        for n in (1, 2, 4):
            k(f'v_add_f32_dpp v34, v34, v34 row_shr:{n} row_mask:0xf bank_mask:0xf bound_ctrl:0')
        k(f'''
        v_readlane_b32 s62, v34, 7
        v_readlane_b32 s63, v34, 15
        v_readlane_b32 s64, v34, 23
        ''')
        for ch in range(3):
            k(f'v_add_f32 {vr(SC + ch)}, s{62 + ch}, {vr(SC + ch)}')
            for j in range(4):
                k(f'v_add_f32 {vr(V(ch, j))}, {vr(V(ch, j))}, {vr(SC + ch)}')
            k(f'ds_write_b128 v209, {vr(V(ch, 0), 4)} offset:{SA + ch * SAS}', tag='saw')

    def conv_loads(self):
        k = self.k
        k(f'''
        s_lshl_b32 s60, {sr(sW)}, 10
        s_mov_b32 s57, {XN}
        s_mov_b32 s58, {MS}
        ''')
        L = self.only_wave(0)
        self.poll_sync1(215, 68, preissued=self.o.get('pre1', 2))
        k(f'{L}:')
        self.stamp('polled')
        k.wait('kaw', 'wst')
        self.stamp('wland')
        k('s_barrier')
        self.stamp('sync1')
        k(f's_add_u32 m0, s60, {XNL0}')
        k(f'buffer_load_dwordx4 v210, {P4(rWS)}, s57 offen sc1 lds', tag='xnl')
        L = k.label('x2')
        k(f's_cmp_ge_u32 {sr(sW)}, 4\ns_cbranch_scc1 {L}\ns_add_u32 m0, s60, {XNL0 + 8192}')
        k(f'buffer_load_dwordx4 v211, {P4(rWS)}, s57 offen sc1 lds', tag='xnl')
        k(f'{L}:\ns_add_u32 m0, s60, {MSL}')
        k(f'buffer_load_dwordx4 v212, {P4(rWS)}, s58 offen sc1 lds', tag='xnl')
        if self.o.get('pf1', 2) == 1:
            L = k.label('npf')
            k(f'''
            s_cmp_ge_u32 {sr(sW)}, 2
            s_cbranch_scc1 {L}
            s_cmp_eq_u32 {sr(sW)}, 0
            s_cselect_b32 s56, s{pWG}, s{pWU}
            s_cselect_b32 s57, s{pWG + 1}, s{pWU + 1}
            s_mul_i32 s55, {sr(sWR)}, {8 * 3456}
            s_lshl_b32 s58, {sr(sNB)}, 7
            s_add_u32 s55, s55, s58
            s_add_u32 s55, s55, {320 * 3456}
            ''')
            self.touch(56, 640 * 1728 * 2, 's55', stride=3456, lanes=40)
            k(f'{L}:')

    def conv_consts(self):
        k = self.k
        Lr, Ld = k.label('mr'), k.label('md')
        chk = f'''
        v_min_u32 v16, v17, v23
        v_cmp_eq_u32 vcc, 0, v16
        s_cbranch_vccz {Ld}
        '''
        k(chk)
        k(f'''
        {Lr}:
        global_load_dword v17, v88, {P2(pWS)} sc1
        global_load_dword v23, v88, {P2(pWS)} offset:1024 sc1
        ''')
        k(chk)
        k(f'''
        s_sleep {self.o.get('sleep', 2)}
        s_add_u32 {sr(sSPIN)}, {sr(sSPIN)}, 1
        s_cmp_lt_u32 {sr(sSPIN)}, {SPIN_MAX}
        s_cbranch_scc1 {Lr}
        {Ld}:
        v_add_f32 v17, v17, v23
        v_add_f32_dpp v17, v17, v17 quad_perm:[1,0,3,2] row_mask:0xf bank_mask:0xf
        v_add_f32_dpp v17, v17, v17 quad_perm:[2,3,0,1] row_mask:0xf bank_mask:0xf
        v_cvt_pk_bf16_f32 v17, v17, v17
        v_lshlrev_b32 v17, 16, v17
        v_add_f32 v16, 1.0, v17
        v_cvt_pk_bf16_f32 v16, v16, v16
        v_lshlrev_b32 v16, 16, v16
        ''')
        for ch in range(3):
            k(f'v_readlane_b32 s55, v17, {4 * (6 + ch)}')
            k(f'v_readlane_b32 {sr(sCH + 3 * ch + 2)}, v16, {4 * (9 + ch)}')
            k(f'v_mul_f32 v18, s55, v16\nv_mul_f32 v19, s55, v17')
            k(f'v_readlane_b32 {sr(sCH + 3 * ch)}, v18, {4 * (3 + ch)}')
            k(f'v_readlane_b32 {sr(sCH + 3 * ch + 1)}, v19, {4 * ch}')

    def conv(self, setup_only=False):
        k = self.k
        H, KF, ACC, AX = 32, 64, 176, 208
        vHB, vKB, vH, vK, vXB, vSB, vO = 1, 2, 3, 4, 5, 6, 7
        XV, SV, TT, MV = 212, 216, 224, 244
        sL, sG, sC, sN = 65, 66, 67, 68
        sG2, sC2, sM, sO, sME, sOE = 94, 95, 96, 97, 98, 99
        U = lambda G, ch: 4 * ch + G
        lists = self.o.get('units') or [[U(3, 0)], [U(3, 1)], [U(3, 2)], [U(2, 0)], [U(0, 0), U(1, 0)], [U(0, 1), U(1, 1)],
                                        [U(0, 2), U(2, 2)], [U(1, 2), U(2, 1)]]
        lo = sum(lists[w][0] << (4 * w) for w in range(8))
        hi = sum(lists[w][1] << (4 * (w - 4)) for w in range(4, 8))
        hs = lambda m: H + 4 * (m % 8)
        ks = lambda q: KF + 4 * (q % 4)

        def ldh(slot_m, base, off):
            k(f'ds_read_b64_tr_b16 {vr(hs(slot_m), 2)}, {vr(base)} offset:{off}')
            k(f'ds_read_b64_tr_b16 {vr(hs(slot_m) + 2, 2)}, {vr(base)} offset:{off + 96}')

        def ldk(q, off):
            k(f'ds_read_b64_tr_b16 {vr(ks(q), 2)}, {vr(vK)} offset:{off + 32}')
            k(f'ds_read_b64_tr_b16 {vr(ks(q) + 2, 2)}, {vr(vK)} offset:{off}')

        def mf(acc, m, q, zero=False):
            c = '0' if zero else vr(acc, 4)
            k(f'v_mfma_f32_16x16x32_bf16 {vr(acc, 4)}, {vr(hs(m), 4)}, {vr(ks(q), 4)}, {c}')

        def decode(code):
            k(f"""
            s_and_b32 {sr(sG)}, {code}, 3
            s_bfe_u32 {sr(sC)}, {code}, 0x20002
            s_mul_i32 s55, {sr(sG)}, 3072
            s_lshl_b32 s56, {sr(sC)}, 4
            s_add_u32 s55, s55, s56
            v_add_u32 {vr(vH)}, s55, {vr(vHB)}
            v_add_u32 v8, s55, {vr(vXB)}
            s_mul_i32 s56, {sr(sC)}, {KAS}
            v_add_u32 {vr(vK)}, s56, {vr(vKB)}
            s_lshl_b32 s55, {sr(sC)}, 13
            s_lshl_b32 s56, {sr(sG)}, 11
            s_add_u32 s55, s55, s56
            s_add_u32 s55, s55, {SA}
            v_lshl_add_u32 {vr(vSB)}, v0, 2, s55
            s_add_u32 s56, s56, {MSL}
            v_lshl_add_u32 v22, v0, 2, s56
            """)

        def first_loads():
            ldk(0, 0)
            for i in (7, 6, 5, 4, 3, 2, 1, 0):
                ldh(i, vH, 384 * i)
            ldk(1, 256)
            k(f'v_subrev_u32 v11, 768, {vr(vH)}\nv_subrev_u32 {vr(vH)}, 3840, {vr(vH)}')

        def const_loads():
            k(f'global_load_dword v17, v88, {P2(pWS)} sc1\nglobal_load_dword v23, v88, {P2(pWS)} offset:1024 sc1')

        def tab_loads():
            k(f'global_load_dwordx2 v[12:13], v90, {P2(pWS)} sc1\nglobal_load_dwordx2 v[14:15], v90, {P2(pWS)} offset:2560 sc1')

        def wdma(part):
            if self.o.get('x_cnow'):
                return
            if part == 0:
                k(f's_mov_b32 m0, {sr(sM)}')
                k(f'buffer_load_dwordx4 v26, {P4(rA)}, {sr(sO)} offen lds', tag='wst')
            else:
                k(f's_add_u32 m0, {sr(sM)}, 1024\ns_add_u32 {sr(sM)}, {sr(sM)}, 2048')
                k(f'buffer_load_dwordx4 v27, {P4(rB)}, {sr(sO)} offen lds', tag='wst')
                k(f's_add_u32 {sr(sO)}, {sr(sO)}, {8 * 3456}\ns_min_u32 {sr(sM)}, {sr(sM)}, {sr(sME)}\ns_min_u32 {sr(sO)}, {sr(sO)}, {sr(sOE)}')

        def mfma_part(dma, consts, tabs, maybe_short):
            Lloop, Ltail = k.label('cl'), k.label('ct')
            for e in range(4):
                k(f'v_mov_b32 {vr(AX + e)}, 0')
            k(f's_mov_b32 {sr(sN)}, {sr(sG)}')
            mf(ACC + 28, 7, 0, True)
            mf(ACC + 24, 6, 0, True)
            ldh(6, 11, 0)
            ldh(7, 11, 384)
            for i in (5, 4, 3, 2, 1, 0):
                mf(ACC + 4 * i, i, 0, True)
            if maybe_short:
                k(f's_cmp_eq_u32 {sr(sN)}, 0\ns_cbranch_scc1 {Ltail}')
            k(f'{Lloop}:')
            for u in range(1, 5):
                mf(ACC + 28, 7 - 2 * u, u)
                mf(ACC + 24, 6 - 2 * u, u)
                ldh(6 - 2 * u, vH, 384 * (8 - 2 * u))
                ldh(7 - 2 * u, vH, 384 * (9 - 2 * u))
                ldk(u + 1, 256 * (u + 1))
                for i in (5, 4, 3, 2, 1, 0):
                    mf(ACC + 4 * i, i - 2 * u, u)
                    if self.o.get('wslow', 1):
                        if dma and i == 3:
                            wdma((u + 1) % 2)
                    else:
                        if dma and i == 5:
                            wdma(0)
                        if dma and i == 2:
                            wdma(1)
                    if i == 4 and u == 2 and consts:
                        const_loads()
                    if i == 4 and u == 3 and tabs and not self.o.get('tab_tail', 1):
                        tab_loads()
                    if u == 4 and i == 1:
                        k(f's_sub_u32 {sr(sN)}, {sr(sN)}, 1')
                        k(f'v_subrev_u32 {vr(vH)}, 3072, {vr(vH)}\nv_add_u32 {vr(vK)}, 1024, {vr(vK)}')
                mf(AX, 1 - 2 * u, u - 1)
            k(f's_cmp_lg_u32 {sr(sN)}, 0\ns_cbranch_scc1 {Lloop}\n{Ltail}:')
            if tabs and self.o.get('tab_tail', 1):
                tab_loads()
            ldk(2, 512)
            for i in (7, 6, 5, 4, 3, 2):
                mf(ACC + 4 * i, i - 2, 1)
                if dma and self.o.get('wslow', 1) and i in (6, 3):
                    wdma(0 if i == 6 else 1)
            ldk(3, 768)
            k(f'ds_read_b64_tr_b16 {vr(XV, 2)}, v8')
            k(f'ds_read_b64_tr_b16 {vr(XV + 2, 2)}, v8 offset:1536')
            for i in range(4):
                k(f'ds_read2st64_b32 {vr(SV + 2 * i, 2)}, {vr(vSB)} offset0:{2 * i} offset1:{2 * i + 1}')
            for i in range(4):
                k(f'ds_read2st64_b32 {vr(MV + 2 * i, 2)}, v22 offset0:{2 * i} offset1:{2 * i + 1}')
            for i in (7, 6, 5, 4):
                mf(ACC + 4 * i, i - 4, 2)
            for i in (7, 6):
                mf(ACC + 4 * i, i - 6, 3)

        def epilogue(g, c, consts):
            SH = 'wave_shr:1 row_mask:0xf bank_mask:0xf'
            RO = 'wave_ror:1 row_mask:0xf bank_mask:0xf'
            a = lambda i, e: (AX if i < 0 else ACC + 4 * i) + e
            t2 = lambda i: TT + 1 + i
            t1 = lambda i: TT + 11 + i
            k(f"""
            s_add_u32 s58, {sr(sD0)}, {sr(c)}
            s_mul_i32 s58, s58, {X1R}
            s_lshl_b32 s59, {sr(g)}, 10
            s_add_u32 s58, s58, s59
            s_add_u32 s59, s58, {X1S}
            s_add_u32 s58, s58, {X1T}
            """)
            k(f'v_add_f32_dpp {vr(t2(-1))}, {vr(a(-1, 3))}, {vr(a(-1, 2))} {SH} bound_ctrl:0')
            for i in range(8):
                k(f'v_add_f32_dpp {vr(t2(i))}, {vr(a(i - 1, 3))}, {vr(a(i, 2))} {RO}')
            for i in range(8):
                k(f'v_add_f32_dpp {vr(t2(i))}, {vr(a(i, 3))}, {vr(a(i, 2))} {SH}')
            k(f'v_add_f32_dpp {vr(t1(-1))}, {vr(t2(-1))}, {vr(a(-1, 1))} {SH} bound_ctrl:0')
            for i in range(8):
                k(f'v_add_f32_dpp {vr(t1(i))}, {vr(t2(i - 1))}, {vr(a(i, 1))} {RO}')
            for i in range(8):
                k(f'v_add_f32_dpp {vr(t1(i))}, {vr(t2(i))}, {vr(a(i, 1))} {SH}')
            for i in range(8):
                k(f'v_add_f32_dpp {vr(a(i, 3))}, {vr(t1(i - 1))}, {vr(a(i, 0))} {RO}')
            for i in range(8):
                k(f'v_add_f32_dpp {vr(a(i, 3))}, {vr(t1(i))}, {vr(a(i, 0))} {SH}')
            for i in range(8):
                xr = XV + i // 2
                if i % 2 == 0:
                    k(f'v_lshlrev_b32 {vr(t1(i))}, 16, {vr(xr)}')
                else:
                    k(f'v_and_b32 {vr(t1(i))}, 0xffff0000, {vr(xr)}')
                k(f'v_lshlrev_b32 {vr(t2(i))}, 16, {vr(MV + i)}')
                k(f'v_and_b32 {vr(MV + i)}, 0xffff0000, {vr(MV + i)}')
                k(f'v_fmac_f32 {vr(t2(i))}, {vr(t1(i))}, {vr(MV + i)}')
            if consts:
                self.conv_consts()
            k(f"""
            s_cmp_eq_u32 {sr(c)}, 1
            s_cselect_b32 s55, {sr(sCH + 3)}, {sr(sCH)}
            s_cselect_b32 s56, {sr(sCH + 4)}, {sr(sCH + 1)}
            s_cselect_b32 s57, {sr(sCH + 5)}, {sr(sCH + 2)}
            s_cmp_eq_u32 {sr(c)}, 2
            s_cselect_b32 s55, {sr(sCH + 6)}, s55
            s_cselect_b32 s56, {sr(sCH + 7)}, s56
            s_cselect_b32 s57, {sr(sCH + 8)}, s57
            """)
            for i in range(8):
                k(f'v_fmac_f32 {vr(t2(i))}, s56, {vr(SV + i)}')
            for i in range(8):
                k(f'v_fmac_f32 {vr(t2(i))}, s55, {vr(a(i, 3))}')
            for i in range(4):
                k(f'v_cvt_pk_bf16_f32 {vr(XV + i)}, {vr(t2(2 * i))}, {vr(t2(2 * i + 1))}')
            for i in range(8):
                k(f'v_mul_f32 {vr(t2(i))}, s57, {vr(t2(i))}')
            k(f'buffer_store_dwordx4 {vr(XV, 4)}, {vr(vO)}, {P4(rWS)}, s58 offen sc1', tag='x1st')
            for i in range(4):
                k(f'v_cvt_pk_bf16_f32 {vr(SV + i)}, {vr(t2(2 * i))}, {vr(t2(2 * i + 1))}')
            k(f'buffer_store_dwordx4 {vr(SV, 4)}, {vr(vO)}, {P4(rWS)}, s59 offen sc1', tag='x1st')

        if setup_only:
            if self.o.get('wslow', 1):
                cnt = [7, 7, 7, 5, 3, 3, 4, 4]
                st = [sum(cnt[:w]) for w in range(8)]
                pk = lambda v: (sum(x << (8 * i) for i, x in enumerate(v[:4])), sum(x << (8 * i) for i, x in enumerate(v[4:])))
                a, b = pk(st), pk([x + c - 1 for x, c in zip(st, cnt)])
                wrange = f'''s_cmp_lt_u32 {sr(sW)}, 4
            s_mov_b32 s55, {a[1]}
            s_cmov_b32 s55, {a[0]}
            s_mov_b32 s56, {b[1]}
            s_cmov_b32 s56, {b[0]}
            s_and_b32 s57, {sr(sW)}, 3
            s_lshl_b32 s57, s57, 3
            s_lshr_b32 s55, s55, s57
            s_lshr_b32 s56, s56, s57
            s_and_b32 s55, s55, 0xff
            s_and_b32 s56, s56, 0xff'''
            else:
                wrange = f's_mul_i32 s55, {sr(sW)}, 11\ns_add_u32 s56, s55, 10\ns_min_u32 s56, s56, 39'
            k(f"""
        s_lshl_b32 s55, {sr(sW)}, 2
        s_lshr_b32 {sr(sL)}, {hex(lo)}, s55
        v_lshlrev_b32 {vr(vO)}, 4, v0
        {wrange}
        s_lshl_b32 {sr(sM)}, s55, 11
        s_add_u32 {sr(sM)}, {sr(sM)}, {STG}
        s_lshl_b32 {sr(sME)}, s56, 11
        s_add_u32 {sr(sME)}, {sr(sME)}, {STG}
        s_add_u32 s55, s55, 40
        s_mul_i32 {sr(sO)}, s55, {8 * 3456}
        s_add_u32 s56, s56, 40
        s_mul_i32 {sr(sOE)}, s56, {8 * 3456}
        """)
            decode(sr(sL))
            return
        Ly, Ld = k.label('cy'), k.label('cdone')
        self.stamp('prexn')
        k.wait('xnl', 'saw', 'wrd')
        self.stamp('xnland')
        k(f's_cmp_ge_u32 {sr(sW)}, 4\ns_cbranch_scc1 {Ly}')
        k('s_barrier')
        self.stamp('xnl')
        first_loads()
        mfma_part(True, True, True, False)
        self.stamp('c_mm')
        epilogue(sG, sC, True)
        self.g1_addr_early()
        k(f's_branch {Ld}')
        k(f'{Ly}:')
        if self.o.get('prio', True):
            k('s_setprio 2')
        k('s_barrier')
        self.stamp('xnl')
        first_loads()
        const_loads()
        mfma_part(False, True, False, True)
        self.stamp('y_m1')
        k(f"""
        s_mov_b32 {sr(sG2)}, {sr(sG)}
        s_mov_b32 {sr(sC2)}, {sr(sC)}
        s_lshl_b32 s55, {sr(sW)}, 2
        s_lshr_b32 {sr(sL)}, {hex(hi << 16)}, s55
        """)
        decode(sr(sL))
        first_loads()
        epilogue(sG2, sC2, True)
        self.stamp('y_e1')
        def pub(g):
            Ln = k.label('npub')
            k(f"""
            s_cmp_ge_u32 {sr(g)}, {2 if self.o.get('s2c', 0) else 1}
            s_cbranch_scc1 {Ln}
            s_sub_u32 s55, {sr(sW)}, 4
            s_min_u32 s55, s55, 2
            s_lshl_b32 s55, s55, 3
            s_add_u32 s55, s55, {sr(sMB)}
            s_mul_i32 s56, {sr(g)}, {(SYNC2C - SYNC2A) // 128}
            s_add_u32 s55, s55, s56
            """)
            k.wait('x1st')
            self.arrive(SYNC2A, 24, 's55', 9)
            self.stamp('pub0')
            k(f'{Ln}:')
        Lp = k.label('kp')
        if self.o.get('prio1', 1) and self.o.get('s2c', 0):
            k(f's_cmp_eq_u32 {sr(sG)}, 1\ns_cbranch_scc1 {Lp}')
        k(f's_setprio 0\n{Lp}:')
        self.g1_addr_early()
        pub(sG2)
        self.stamp('y_p1')
        mfma_part(bool(self.o.get('wslow', 1)), False, True, False)
        self.stamp('c_mm')
        epilogue(sG, sC, False)
        self.stamp('y_e2')
        k('s_setprio 0')
        if self.o.get('s2c', 0):
            pub(sG)
        k(f'{Ld}:')
        self.stamp('conv')

    def window2(self):
        k = self.k
        AC, TF, CB = 32, 16, 92
        Lr, Ld = k.label('tb'), k.label('tbd')
        chk = f'''
        v_min_u32 v16, v12, v13
        v_min3_u32 v16, v16, v14, v15
        v_cmp_eq_u32 vcc, 0, v16
        s_cbranch_vccz {Ld}
        '''
        k(chk)
        k(f'''
        {Lr}:
        global_load_dwordx2 v[12:13], v90, {P2(pWS)} sc1
        global_load_dwordx2 v[14:15], v90, {P2(pWS)} offset:2560 sc1
        ''')
        k(chk)
        k(f'''
        s_sleep {self.o.get('sleep', 2)}
        s_add_u32 {sr(sSPIN)}, {sr(sSPIN)}, 1
        s_cmp_lt_u32 {sr(sSPIN)}, {SPIN_MAX}
        s_cbranch_scc1 {Lr}
        {Ld}:
        v_and_b32 v14, 0xffff0000, v14
        v_and_b32 v15, 0xffff0000, v15
        v_add_f32 v14, 1.0, v14
        v_add_f32 v15, 1.0, v15
        s_mov_b32 s55, 0x07060302
        v_cvt_pk_bf16_f32 v14, v14, v15
        v_perm_b32 v12, v13, v12, s55
        v_lshlrev_b32 v20, 2, v89
        v_add_u32 v20, {TAB}, v20
        ''')
        k(f'ds_write_b32 v20, v14', tag='tabw')
        k(f'ds_write_b32 v20, v12 offset:1280', tag='tabw')
        self.g1_setup()
        L = self.only_wave(0)
        self.poll(7, 5, 27, nl=24)
        k(f'{L}:')
        k.wait('wst', 'tabw')
        k('s_barrier')
        self.stamp('barX')
        if self.o['stop'] != 'conv':
            for c in range(2):
                for i in range(2):
                    self.g1_dma(c, i)

        self.wstage_read(1, 10)
        Lj = k.label('csj')
        k(f'''
        s_cmp_ge_u32 {sr(sW)}, 4
        s_cbranch_scc1 {Lj}
        s_mul_i32 s55, {sr(sM1)}, 160
        v_add_u32 v8, s55, v8
        ''')
        for n in range(5):
            k(f'ds_read_b128 {vr(48 + 4 * n, 4)}, v8 offset:{32 * n}')
        Lv = [k.label('csv') for _ in range(8)]
        Le = k.label('cse')
        for m in range(1, 8):
            k(f's_cmp_eq_u32 {sr(sM1)}, {m}\ns_cbranch_scc1 {Lv[m]}')
        for m in range(8):
            k(f'{Lv[m]}:')
            for n in range(5):
                c = '0' if n == 0 else vr(AC, 16)
                k(f'v_mfma_f32_32x32x16_bf16 {vr(AC, 16)}, {vr(48 + 4 * n, 4)}, {vr(WF + 4 * (5 * m + n), 4)}, {c}')
            if m < 7:
                k(f's_branch {Le}')
        k(f'''
        {Le}:
        s_lshl_b32 s55, {sr(sNB)}, 3
        s_add_u32 s55, s55, {sr(sM1)}
        s_lshl_b32 s55, s55, 2
        s_add_u32 s55, s55, {sr(sW)}
        s_lshl_b32 s55, s55, 8
        s_add_u32 s55, s55, {CSP}
        v_lshlrev_b32 v9, 3, v0
        v_or_b32 {vr(AC)}, 1, {vr(AC)}
        v_or_b32 {vr(AC + 1)}, 1, {vr(AC + 1)}
        s_mov_b32 exec_hi, 0
        buffer_store_dwordx2 {vr(AC, 2)}, v9, {P4(rWS)}, s55 offen sc1
        s_mov_b32 exec_hi, -1
        {Lj}:
        ''')
        k.wait('x1st', 'wrd', 'ch0')
        k('s_barrier')
        self.stamp('barY')
        L = self.only_wave(4)
        k(f'''
        s_mul_i32 s55, {sr(sQ)}, 0x5556
        s_lshr_b32 s55, s55, 16
        s_mul_i32 s55, s55, 3
        s_sub_u32 s55, {sr(sQ)}, s55
        s_lshl_b32 s55, s55, 3
        s_add_u32 s55, s55, {sr(sMB)}
        ''')
        self.arrive(SYNC2B, 24, 's55', 12)
        k(f'{L}:')

    def cs_loads(self):
        k = self.k
        for j in range(4):
            k(f'global_load_dwordx2 {vr(80 + 2 * j if j < 3 else 88, 2)}, v79, {P2(pWS)} offset:{1024 * j} sc1')

    def cs_addr(self):
        self.k(f'''
        s_lshl_b32 s55, {sr(sNB)}, 13
        s_and_b32 s56, {sr(sW)}, 3
        s_lshl_b32 s56, s56, 8
        s_add_u32 s55, s55, s56
        s_add_u32 s55, s55, {CSP}
        v_lshrrev_b32 v79, 5, v0
        v_lshlrev_b32 v79, 12, v79
        v_and_b32 v78, 31, v0
        v_lshl_add_u32 v79, v78, 3, v79
        v_add_u32 v79, s55, v79
        ''')

    def cs_finish(self):
        k = self.k
        CB = 92
        Lr, Ld = k.label('cr'), k.label('cd')
        chk = f'''
        v_min3_u32 v90, v80, v81, v82
        v_min3_u32 v90, v90, v83, v84
        v_min3_u32 v90, v90, v85, v88
        v_min_u32 v90, v90, v89
        v_cmp_eq_u32 vcc, 0, v90
        s_cbranch_vccz {Ld}
        '''
        k(chk)
        k(f'{Lr}:\ns_sleep {self.o.get("sleep", 2)}')
        self.cs_loads()
        k(chk)
        k(f'''
        s_add_u32 {sr(sSPIN)}, {sr(sSPIN)}, 1
        s_cmp_lt_u32 {sr(sSPIN)}, {SPIN_MAX}
        s_cbranch_scc1 {Lr}
        {Ld}:
        v_add_f32 v80, v80, v82
        v_add_f32 v81, v81, v83
        v_add_f32 v84, v84, v88
        v_add_f32 v85, v85, v89
        v_add_f32 v80, v80, v84
        v_add_f32 v81, v81, v85
        v_mov_b32 v82, v80
        v_mov_b32 v83, v81
        v_cmp_gt_u32 vcc, 32, v0
        v_permlane32_swap_b32 v80, v82
        v_permlane32_swap_b32 v81, v83
        v_mov_b32 {vr(CB + 2)}, 0
        v_mov_b32 {vr(CB + 3)}, 0
        v_add_f32 v80, v80, v82
        v_add_f32 v81, v81, v83
        v_cvt_pk_bf16_f32 v82, v80, v81
        v_lshlrev_b32 v83, 16, v82
        v_and_b32 v84, 0xffff0000, v82
        v_sub_f32 v80, v80, v83
        v_sub_f32 v81, v81, v84
        v_cvt_pk_bf16_f32 v80, v83, v80
        v_cvt_pk_bf16_f32 v81, v84, v81
        v_cndmask_b32 {vr(CB)}, 0, v80, vcc
        v_cndmask_b32 {vr(CB + 1)}, 0, v81, vcc
        ''')

    def g1_addr_early(self):
        self.k(f'''
        v_lshrrev_b32 v18, 3, v0
        v_mul_u32_u24 v24, {X1R}, v18
        v_bfe_u32 v18, v0, 4, 1
        v_lshlrev_b32 v18, 2, v18
        v_and_b32 v19, 7, v0
        v_xor_b32 v18, v18, v19
        v_lshl_add_u32 v24, v18, 4, v24
        v_lshrrev_b32 v18, 5, v0
        v_bfe_u32 v19, v0, 2, 2
        v_lshl_add_u32 v18, v18, 3, v19
        v_lshlrev_b32 v25, 7, v18
        v_lshrrev_b32 v19, 1, v19
        s_lshr_b32 s55, {sr(sW)}, 2
        v_xor_b32 v19, s55, v19
        v_lshl_add_u32 v25, v19, 6, v25
        v_bfe_u32 v19, v0, 4, 1
        v_lshl_add_u32 v25, v19, 5, v25
        v_and_b32 v19, 3, v0
        v_lshl_add_u32 v25, v19, 3, v25
        v_add_u32 v25, {RING}, v25
        s_lshl_b32 s56, {sr(sM1)}, 6
        s_lshl_b32 s61, s55, 5
        s_add_u32 s56, s56, s61
        v_and_b32 v19, 31, v0
        v_add_u32 v19, s56, v19
        v_lshlrev_b32 v19, 2, v19
        v_add_u32 v28, {STATS}, v19
        s_lshl_b32 s56, {sr(sM1)}, 1
        s_add_u32 s56, s56, s55
        s_mul_i32 s56, s56, 108
        s_lshl_b32 s61, {sr(sNB)}, 2
        s_add_u32 s56, s56, s61
        s_and_b32 s61, {sr(sW)}, 3
        s_add_u32 s56, s56, s61
        s_lshl_b32 s56, s56, 10
        s_add_u32 s100, s56, {ACT}
        s_mul_i32 s101, {sr(sW)}, {16 * X1R}
        s_lshl_b32 s55, {sr(sM1)}, 7
        s_add_u32 s101, s101, s55
        s_add_u32 s101, s101, {X1S}
        v_and_b32 v29, 1, v0
        v_mul_u32_u24 v29, 1280, v29
        v_lshrrev_b32 v19, 5, v0
        v_lshl_add_u32 v29, v19, 4, v29
        v_add_u32 v29, {TAB}, v29
        ''')
        self.wread_addr(30)
        self.poll_addr(SYNC2A, 24, 21)

    def g1_setup(self):
        self.k(f'''
        v_mov_b32 v1, v24
        v_mov_b32 v2, v25
        v_add_u32 v3, {3 * 16384}, v25
        v_mov_b32 v6, v28
        v_mov_b32 v8, v29
        v_mov_b32 v10, v30
        v_mov_b32 v11, v31
        v_mov_b32 v7, v21
        s_mov_b32 s65, s100
        s_mov_b32 s66, s101
        s_lshl_b32 s67, {sr(sW)}, 11
        ''')

    def g1_dma(self, c, i):
        k = self.k
        slot = c % NS
        t, cc = divmod(c, 5)
        if self.o.get('x_nodma') and c >= 5:
            return
        k(f's_add_u32 m0, s67, {RING + slot * 16384 + i * 1024}')
        k(f's_add_u32 s3, s66, {t * 1024 + (cc * 128 + 8 * i) * X1R}')
        k(f'buffer_load_dwordx4 v1, {P4(rWS)}, s3 offen sc1 lds', tag=f'ch{c}')

    def g2_park(self, i, f):
        k = self.k
        m = f's_add_u32 m0, s{64 if i == 0 else 60}, {f * 1024}' if (i, f) != (6, 4) else 's_mov_b32 m0, s78'
        k(f'{m}\ns_add_u32 s3, s{sOW[i]}, {f * 1024}')
        k(f'buffer_load_dwordx4 v4, {P4(rWS)}, s3 offen sc1 lds', tag=f'park{i}')

    def g2_wload(self, i, f, mains_only=False):
        k = self.k
        if i in self.o.get('y_now', ()):
            return
        if f < 4:
            k(f'buffer_load_dwordx4 {vr(W2[i] + 4 * f, 4)}, v4, {P4(rWS)}, s{sOW[i]} offen offset:{1024 * f} sc1')
        else:
            k(f's_add_u32 s3, s{sOW[i]}, 4096')
            k(f'buffer_load_dwordx4 {vr(W2[i] + 4 * f, 4)}, v4, {P4(rWS)}, s3 offen sc1')

    def g2_setup(self):
        k = self.k
        k(f'''
        s_lshr_b32 s55, s2, 3
        s_and_b32 s61, s55, 7
        s_lshr_b32 s55, s55, 3
        s_and_b32 s90, s55, 1
        s_lshr_b32 s55, s55, 1
        s_lshl_b32 s55, s55, 3
        s_add_u32 s62, s55, {sr(sMB)}
        s_mul_i32 s55, {sr(sW)}, 5120
        s_add_u32 s64, s55, {PARK0}
        s_add_u32 s60, s55, {PARK6A}
        s_sub_u32 s56, s55, {4 * 5120 - PARK6B}
        s_cmp_ge_u32 {sr(sW)}, 4
        s_cselect_b32 s60, s56, s60
        s_add_u32 s78, s60, 4096
        s_cmp_eq_u32 {sr(sW)}, 7
        s_cmov_b32 s60, {PARK7}
        s_cmov_b32 s78, 15360
        s_mul_i32 s63, s61, {54 * 5120}
        s_add_u32 s63, s63, {WD}
        s_add_u32 s63, s63, s55
        v_lshlrev_b32 v4, 4, v0
        ''')

    def g2_addr(self):
        k = self.k
        k(f'''
        v_lshrrev_b32 v76, 5, v0
        v_lshlrev_b32 v64, 10, v76
        v_bfe_u32 v76, v0, 4, 1
        v_lshl_add_u32 v64, v76, 9, v64
        v_and_b32 v77, 15, v0
        v_lshl_add_u32 v64, v77, 4, v64
        s_lshl_b32 s55, s62, 1
        s_add_u32 s55, s55, s90
        s_mul_i32 s55, s55, {108 * 1024}
        s_lshl_b32 s56, {sr(sW)}, 11
        s_add_u32 s55, s55, s56
        s_add_u32 s83, s55, {ACT}
        s_lshr_b32 s55, s2, 6
        s_lshl_b32 s55, s55, 1
        s_add_u32 s55, s55, s61
        s_mul_i32 s55, s55, {self.o.get('rot2', 0)}
        s_sub_u32 s56, s55, 7
        s_cselect_b32 s89, s55, s56
        ''')
        for n, i in enumerate(self.G2ORD):
            k(f'''
            s_add_u32 s55, s89, {n}
            s_sub_u32 s56, s55, 7
            s_cselect_b32 s55, s55, s56
            s_mul_i32 s{sOW[i]}, s55, 40960
            s_add_u32 s{sOW[i]}, s{sOW[i]}, s63
            s_lshl_b32 s{sOA[i]}, s55, 14
            s_add_u32 s{sOA[i]}, s{sOA[i]}, s83
            s_lshl_b32 s55, s55, 3
            s_add_u32 s55, s55, {sr(sW)}
            s_cmp_ge_u32 s55, 54
            s_cmov_b32 s{sOW[i]}, 0x2000000
            s_cmov_b32 s{sOA[i]}, 0x2000000
            ''')
        k(f'''
        s_lshl_b32 s55, s62, 7
        s_add_u32 s55, s55, {SYNC3}
        v_mov_b32 v65, s55
        s_lshl_b32 s55, {sr(sW)}, 10
        s_add_u32 s55, s55, {PART}
        v_add_u32 v66, s55, v4
        v_add_u32 v67, 65536, v66
        s_lshl_b32 s55, {sr(sW)}, 13
        s_add_u32 s55, s55, {PART}
        v_add_u32 v68, s55, v4
        s_lshr_b32 s57, {sr(sW)}, 2
        s_and_b32 s58, {sr(sW)}, 3
        s_lshl_b32 s55, s57, 13
        s_lshl_b32 s56, s58, 8
        s_add_u32 s55, s55, s56
        s_add_u32 s55, s55, {PART + 65536}
        v_lshl_add_u32 v69, v77, 4, s55
        s_cmp_ge_u32 {sr(sW)}, 5
        s_cselect_b32 s59, 1, 0
        s_mul_i32 s55, s59, 5
        s_sub_u32 s86, {sr(sW)}, s55
        s_add_u32 s57, s57, 3
        v_lshrrev_b32 v76, 2, v0
        v_lshlrev_b32 v70, 6, v76
        v_and_b32 v78, 3, v0
        v_lshl_add_u32 v70, v78, 3, v70
        v_and_b32 v71, 0xff, v70
        s_lshl_b32 s55, s86, 10
        s_lshl_b32 s56, s59, 5
        s_add_u32 s55, s55, s56
        s_add_u32 s55, s55, {RESID}
        v_add_u32 v70, s55, v70
        s_lshl_b32 s55, s57, 10
        s_lshl_b32 s56, s58, 8
        s_add_u32 s55, s55, s56
        s_add_u32 s55, s55, {RESID + 32}
        v_add_u32 v71, s55, v71
        s_mul_i32 s87, s61, 80
        s_lshl_b32 s55, s86, 4
        s_add_u32 s55, s55, s87
        v_lshrrev_b32 v76, 4, v0
        v_lshl_add_u32 v72, v76, 2, s55
        s_lshl_b32 s55, s57, 4
        s_lshl_b32 s56, s58, 2
        s_add_u32 s55, s55, s56
        s_add_u32 s55, s55, s87
        v_mov_b32 v73, s55
        s_lshl_b32 s55, s90, 5
        s_lshl_b32 s56, s59, 4
        s_add_u32 s56, s56, s55
        s_add_u32 s55, s55, 16
        s_lshr_b32 s88, s62, 3
        s_lshl_b32 s88, s88, 9
        s_lshl_b32 s89, {sr(sMB)}, 3
        s_add_u32 s88, s88, s89
        ''')
        for dst, ch, sp in ((74, 72, 's56'), (75, 73, 's55')):
            k(f'''
            v_add_u32 v76, {sp}, v77
            v_and_b32 v78, 7, v76
            v_lshrrev_b32 v76, 3, v76
            v_lshl_add_u32 v76, v78, 6, v76
            v_add_u32 v76, s88, v76
            v_mul_u32_u24 v76, 1280, v76
            v_lshl_add_u32 {vr(dst)}, {vr(ch)}, 1, v76
            v_lshlrev_b32 {vr(ch)}, 2, {vr(ch)}
            v_add_u32 {vr(ch)}, {MOD + 5 * 2560}, {vr(ch)}
            ''')

    def g1(self):
        k = self.k
        TF, CB = 16, 92
        ACC = [32, 48]
        vRA, vRB, vST, vSTA, vPA, vPD = 2, 3, 5, 6, 7, 8
        K1, K2, S2 = 9, 10, 11
        BF = 12
        ET = 80
        OUTR = 88
        k(f'v_mov_b32 {vr(BF + 2)}, 0\nv_mov_b32 {vr(BF + 3)}, 0')
        if self.o.get('s2c', 0):
            L = self.only_wave(0)
            self.poll_addr(SYNC2C, 24, vPA)
            self.poll_issue(vPA, vPD, 24)
            k(f'{L}:')

        def rd(sig):
            c, s8 = divmod(sig, 8)
            slot = c % NS
            base, off = (vRA, slot * 16384) if slot < 3 else (vRB, (slot - 3) * 16384)
            off += s8 * 2048
            r = TF + 4 * (sig % 4)
            if self.o.get('x_nord') and sig >= 4:
                return
            if self.o.get('x_b128'):
                k(f'ds_read_b128 {vr(r, 4)}, v4 offset:{off % 32768}')
                return
            k(f'ds_read_b64_tr_b16 {vr(r, 2)}, {vr(base)} offset:{off}')
            k(f'ds_read_b64_tr_b16 {vr(r + 2, 2)}, {vr(base)} offset:{off + 512}')

        C1 = -2 * LOG2E * math.sqrt(2 / math.pi) * 0.044715
        C2 = -2 * LOG2E * math.sqrt(2 / math.pi)

        def epi_ops(t):
            acc = ACC[t % 2]
            ops = []

            def head():
                if not self.o.get('x_nostat'):
                    self.poll(vSTA, vST, '0x10000', preissued=True, off=2048 * (t & 1))
                k(f'''
                s_mov_b32 s55, 0x01000100
                s_mov_b32 s56, 0x03020302
                v_perm_b32 {vr(BF)}, {vr(vST)}, {vr(vST)}, s55
                v_perm_b32 {vr(BF + 1)}, {vr(vST)}, {vr(vST)}, s56
                v_xor_b32 {vr(BF)}, 0x80008000, {vr(BF)}
                v_and_b32 {vr(S2)}, 0xffff0000, {vr(vST)}
                v_rcp_f32 {vr(K2)}, {vr(S2)}
                v_mfma_f32_32x32x16_bf16 {vr(acc, 16)}, {vr(CB, 4)}, {vr(BF, 4)}, {vr(acc, 16)}
                ''')
            ops.append(head)
            ops.append(lambda: k(f'''
                v_mul_f32 {vr(S2)}, {vr(S2)}, {vr(S2)}
                v_mul_f32 {vr(K1)}, {vr(K2)}, {vr(K2)}
                v_mul_f32 {vr(K2)}, {f32(C2)}, {vr(K2)}
                '''))
            ops.append(lambda: k(f'''
                v_mul_f32 {vr(K1)}, {f32(0.044715)}, {vr(K1)}
                v_mul_f32 {vr(K1)}, {vr(K1)}, {vr(K2)}
                '''))
            ops.append(lambda: None)
            flat = []
            for grp in range(2):
                E = range(4 * grp, 4 * grp + 4)
                for fmt in ('v_mul_f32 {t}, {g}, {g}', 'v_fma_f32 {t}, {t}, {k1}, {k2}', 'v_mul_f32 {t}, {t}, {g}', 'v_exp_f32 {t}, {t}',
                            'v_mul_f32 {u}, {u}, {g}', 'v_fma_f32 {t}, {t}, {s2}, {s2}', 'v_rcp_f32 {t}, {t}', 'v_mul_f32 {u}, {u}, {t}'):
                    for e in E:
                        flat.append(fmt.format(t=vr(ET + e % 4), g=vr(acc + e), u=vr(acc + 8 + e), k1=vr(K1), k2=vr(K2), s2=vr(S2)))
                for p in (2 * grp, 2 * grp + 1):
                    flat.append(f'v_cvt_pk_bf16_f32 {vr(OUTR + p)}, {vr(acc + 8 + 2 * p)}, {vr(acc + 9 + 2 * p)}')
            nst = self.o.get('epi_steps', [24, 16, 30, 16])
            nst = nst if isinstance(nst, int) else nst[t]
            cost = lambda x: 2 if ('exp' in x or 'rcp' in x) else 1
            tot = sum(map(cost, flat))
            cum, cur, n = 0, [], 1
            for x in flat:
                cur.append(x)
                cum += cost(x)
                if cum * nst >= n * tot:
                    ops.append(lambda cur=cur: k('\n'.join(cur)))
                    cur = []
                    n += 1
            assert not cur

            def fin():
                k(f's_add_u32 s3, s65, {t * 16 * 108 * 1024}')
                k(f'buffer_store_dwordx4 {vr(OUTR, 4)}, v4, {P4(rWS)}, s3 offen sc1', tag=f'act{t}')
            ops.append(fin)
            return ops

        def publish(t):
            L = self.only_wave(0)
            k(f'''
            s_add_u32 s55, {sr(sM1)}, {8 * t}
            s_lshl_b32 s55, s55, 7
            s_add_u32 s55, s55, {SYNC3}
            v_mov_b32 {vr(ET + 4)}, s55
            v_mov_b32 {vr(ET + 5)}, 1
            s_mov_b64 exec, 1
            global_atomic_add {vr(ET + 4)}, {vr(ET + 5)}, {P2(pWS)} sc1
            s_mov_b64 exec, -1
            {L}:
            ''')

        epi_start = self.o.get('epi_start', [50, 81, 122, 160])
        epi_rate = self.o.get('epi_rate', [1, 1, 1, 1])
        stat_ld = {max(0, s - self.o.get('stat_pre', 14)): t for t, s in enumerate(epi_start)}
        todo = {}
        for t in range(3):
            ops = epi_ops(t)
            sig = epi_start[t]
            while ops:
                for _ in range(epi_rate[t]):
                    if ops:
                        todo.setdefault(sig, []).append(ops.pop(0))
                sig += 1
            assert sig <= 160 and (t == 2 or sig <= epi_start[t + 1]), (t, sig)
            assert sig <= 40 * (t + 2)
            todo.setdefault('done', {})[t] = sig
        done_at = todo.pop('done')
        pub_at = {}
        for t in range(3):
            s = done_at[t] + self.o.get('pub_lag', 16)
            s = ((s - 3 + 7) // 8) * 8 + 3
            pub_at.setdefault(min(s, 163), []).append(t)
        s2c = self.o.get('s2c', 0)
        B2 = self.o.get('b2_chunk', 1 if s2c else 2)
        B3 = self.o.get('b3_chunk', 6)
        self.stamp('g1go')
        keep, self.k = self.k, Kern()
        self.cs_addr()
        self.g2_setup()
        self.g2_addr()
        late, self.k = self.k.ins, keep
        grp, cur = [], []
        for x in late:
            cur.append(x)
            if len(cur) >= 7 and x.op in ('s_add_u32', 's_lshl_b32', 's_mul_i32', 's_and_b32', 's_lshr_b32') or (len(cur) >= 7 and x.op.startswith('v_')):
                grp.append(cur)
                cur = []
        grp.append(cur)
        assert len(grp) <= 31
        if self.o.get('x_latefirst'):
            for g_ in grp:
                k.ins += g_
            grp = []
            self.stamp('g1go2')
        for sig in range(4):
            rd(sig)
        issued = 5
        dq = [lambda c=c, i=i: self.g1_dma(c, i) for c in (2, 3, 4) for i in range(2)]
        p0 = self.o.get('park_at', 5)
        g2at = {p0 + n: [(0, n)] if n < 5 else [(6, n - 5)] for n in range(10)}
        if self.o.get('park2'):
            g2at = {p0 + n: [(0, n), (6, n)] for n in range(5)}
        pissue = {8 * B2 + 4: (SYNCW, 4, vPA), 36: (SYNC2B, 24, vPA), self.o.get('pa_issue', 140): (None, 1, 65)}
        pcheck = {B2: (27, 24, vPA), 4: (10, 4, vPA), B3: (9, 24, vPA), 19: (27, 1, 65)}
        if not s2c:
            B3 = B2
            pissue = {8 * B2 + 3 - self.o.get('b2_pre', 10): (SYNC2B, 24, vPA), 8 * B2 + 4: (SYNCW, 4, vPA), self.o.get('pa_issue', 140): (None, 1, 65)}
            pcheck = {B2: (9, 24, vPA), 4: (10, 4, vPA), 19: (27, 1, 65)}
        nd = self.o.get('w2_in_t3', 15)
        wl = {126 + (33 * n) // nd: (1 + n // 5, n % 5) for n in range(nd)}
        assert all(sg >= 120 + 5 * (i - 1) + f for sg, (i, f) in wl.items()) and len(wl) == nd
        for sig in range(160):
            t, s = divmod(sig, 40)
            c = sig // 8
            acc = ACC[t % 2]
            cop = '0' if s == 0 else vr(acc, 16)
            k(f'v_mfma_f32_32x32x16_bf16 {vr(acc, 16)}, {vr(WF + 4 * s, 4)}, {vr(TF + 4 * (sig % 4), 4)}, {cop}')
            if sig in pissue and not self.o.get('x_nopoll'):
                base, nl, va = pissue[sig]
                L = self.only_wave(0)
                if base is not None:
                    self.poll_addr(base, nl, va)
                self.poll_issue(va, vPD, nl)
                k(f'{L}:')
            if sig % 8 == 3:
                if c in pcheck and not self.o.get('x_nopoll'):
                    cnt, nl, va = pcheck[c]
                    L = self.only_wave(0)
                    self.poll(va, vPD, cnt, preissued=True, nl=nl)
                    k(f'{L}:')
                w = [f'ch{c + 1}'] if c + 1 < 20 else ['resid']
                w += [f'act{tt}' for tt in pub_at.get(sig, [])]
                if w and not self.o.get('x_nowait'):
                    k.wait(*w)
                if not self.o.get('x_nobar') or c in (B2, B2 + 2):
                    k('s_barrier')
                for tt in pub_at.get(sig, []):
                    publish(tt)
                if c >= B2:
                    while issued < (20 if c >= B3 else 10) and issued <= c - 1 + NS:
                        dq += [lambda c=issued, i=i: self.g1_dma(c, i) for i in range(2)]
                        issued += 1
                if c in g2at and not self.o.get('x_nog2d'):
                    dq += [lambda j=j, i=i: self.g2_park(j, i) for j, i in g2at[c]]
            elif dq:
                dq.pop(0)()
            if sig + 4 < 160:
                rd(sig + 4)
            if sig >= 4 and grp and sig % 8 != 3:
                k.ins += grp.pop(0)
            if sig == self.o.get('cs_ld', 30) and not self.o.get('x_nocs'):
                self.cs_loads()
            if sig == self.o.get('cs_fin', 46) and not self.o.get('x_nocs'):
                self.cs_finish()
            if sig in wl:
                self.g2_wload(*wl[sig])
            tw = self.o.get('twd', 0)
            if tw and sig in (tw, tw + 16):
                k(f'''
                s_mul_i32 s55, {sr(sQ)}, 640
                s_mul_i32 s56, {sr(sW)}, 80
                s_add_u32 s55, s55, s56
                s_add_u32 s55, s55, {0 if sig == tw else 40}
                s_lshl_b32 s55, s55, 7
                s_add_u32 s55, s55, {WD}
                v_lshlrev_b32 v78, 7, v0
                s_mov_b32 exec_hi, 0xff
                buffer_load_dword v79, v78, {P4(rWS)}, s55 offen sc1
                s_mov_b32 exec_hi, -1
                ''')
            if sig == 140:
                self.resid_dma(76)
            if sig in stat_ld:
                tt = stat_ld[sig]
                if tt == 2:
                    k(f'v_add_u32 {vr(vSTA)}, 4096, {vr(vSTA)}')
                if not self.o.get('x_nostat'):
                    k(f'global_load_dword {vr(vST)}, {vr(vSTA)}, {P2(pWS)} offset:{2048 * (tt & 1)} sc1')
            for op in todo.get(sig, []):
                if not self.o.get('x_noepi'):
                    op()
            if sig % 40 == 39:
                self.stamp(f't{t}')
            if sig % 8 == 7 and sig < 80:
                self.stamp(f'c{sig // 8}')
        assert not dq
        for n in range(2):
            self.g2_lda(0, n)
        k.wait('park0', 'park6')
        k(f'v_add_u32 v76, s64, v4\nv_add_u32 v77, s60, v4\nv_add_u32 v78, s78, v4')
        for f in range(5):
            k(f'ds_read_b128 {vr(W2[0] + 4 * f, 4)}, v76 offset:{1024 * f}')
        for f in range(5):
            k(f'ds_read_b128 {vr(W2[6] + 4 * f, 4)}, v77 offset:{1024 * f}' if f < 4 else f'ds_read_b128 {vr(W2[6] + 16, 4)}, v78', tag='parkrd')
        rest = [(1 + n // 5, n % 5) for n in range(nd, 25)]
        ops = epi_ops(3)
        if self.o.get('tprio', 1):
            k('s_setprio 2')
        for op in ops[:3]:
            op()
        acc = ACC[1]
        T = lambda e: 32 + e
        for fmt in ('v_mul_f32 {t}, {g}, {g}', 'v_fma_f32 {t}, {t}, {k1}, {k2}', 'v_mul_f32 {t}, {t}, {g}', 'v_exp_f32 {t}, {t}',
                    'v_mul_f32 {u}, {u}, {g}', 'v_fma_f32 {t}, {t}, {s2}, {s2}', 'v_rcp_f32 {t}, {t}', 'v_mul_f32 {u}, {u}, {t}'):
            for e in range(8):
                k(fmt.format(t=vr(T(e)), g=vr(acc + e), u=vr(acc + 8 + e), k1=vr(K1), k2=vr(K2), s2=vr(S2)))
            if len(rest) > 10 - self.o.get('w2_tail', 0):
                self.g2_wload(*rest.pop(0))
        for p in range(4):
            k(f'v_cvt_pk_bf16_f32 {vr(OUTR + p)}, {vr(acc + 8 + 2 * p)}, {vr(acc + 9 + 2 * p)}')
        ops[-1]()
        k('s_setprio 0')
        self.stamp('g1end')
        if not self.o.get('hold', 0):
            for n in range(2, 4):
                self.g2_lda(0, n)
        self.resid_read()
        self.g2_rest = rest
        self.late_pub = pub_at.get(163, []) + [3]
        self.publish = publish

    def resid_dma(self, va=1):
        k = self.k
        k(f'''
        v_lshrrev_b32 v{va}, 2, v0
        v_mul_u32_u24 v{va}, {X1R}, v{va}
        v_and_b32 v{va + 1}, 3, v0
        v_lshl_add_u32 v{va}, v{va + 1}, 4, v{va}
        s_lshl_b32 s55, s86, 4
        s_add_u32 s55, s55, s87
        s_mul_i32 s55, s55, {X1R}
        s_lshl_b32 s56, s62, 7
        s_lshl_b32 s57, s90, 6
        s_add_u32 s56, s56, s57
        s_add_u32 s56, s56, {X1T}
        s_cmp_ge_u32 {sr(sW)}, 5
        s_cselect_b32 s57, 2048, 0
        s_add_u32 s55, s55, s56
        s_add_u32 s55, s55, s57
        s_lshl_b32 s57, {sr(sW)}, 10
        s_add_u32 m0, s57, {RESID}
        ''')
        k(f'buffer_load_dwordx4 v{va}, {P4(rWS)}, s55 offen sc1 lds', tag='resid')
        k(f'''
        s_add_u32 s55, {sr(sW)}, 3
        s_lshl_b32 s55, s55, 4
        s_add_u32 s55, s55, s87
        s_mul_i32 s55, s55, {X1R}
        s_add_u32 s55, s55, s56
        s_add_u32 s55, s55, 2048
        s_add_u32 m0, s57, {RESID + 8192}
        s_cmp_lt_u32 {sr(sW)}, 2
        s_cselect_b64 exec, -1, 0
        ''')
        k(f'buffer_load_dwordx4 v{va}, {P4(rWS)}, s55 offen sc1 lds', tag='resid')
        k('s_mov_b64 exec, -1')

    RESR = {(0, 0): 92, (0, 1): 94, (1, 0): 90, (1, 1): 6}

    def resid_read(self):
        for (h, p), r in self.RESR.items():
            self.k(f'ds_read_b64_tr_b16 {vr(r, 2)}, v{70 + p} offset:{5120 * h}', tag='parkrd')

    G2ORD = [0, 6, 1, 2, 3, 4, 5]

    def g2_af(self, h, n, tt):
        r = (2 * (7 * h + n) + tt) % 8
        return 16 + 4 * r if r < 4 else 236 + 4 * (r - 4)

    def g2_lda(self, h, n, only=None):
        k = self.k
        if self.o.get('y_noact') == h + 1 and n > 0:
            return
        so = f's{sOA[self.G2ORD[n]]}'
        if h:
            k(f's_add_u32 s3, {so}, {32 * 108 * 1024}')
            so = 's3'
        for tt in (range(2) if only is None else [only]):
            k(f'buffer_load_dwordx4 {vr(self.g2_af(h, n, tt), 4)}, v64, {P4(rWS)}, {so} offen offset:{256 * tt} {self.o.get("actpol", "sc1")}')

    def g2(self):
        k = self.k
        ACC, GB = 24, 8
        acc = lambda t: 32 + 4 * t if t < 8 else 76 + 4 * (t - 8)
        k('L_g2:')

        def steps(h):
            q = [lambda i=i, f=f: self.g2_wload(i, f) for i, f in (self.g2_rest if h == 0 else [])]
            qa = [lambda n=n, tt=tt: self.g2_lda(h, n, tt) for n in range(4, 7) for tt in range(2)]
            need = {}
            ps = self.o.get('pub_step', 0)
            for n in range(7):
                i = self.G2ORD[n]
                L = None
                for tt in range(2):
                    for j in range(5):
                        a = acc(5 * tt + j)
                        c = '0' if n == 0 else vr(a, 4)
                        k(f'v_mfma_f32_16x16x32_bf16 {vr(a, 4)}, {vr(W2[i] + 4 * j, 4)}, {vr(self.g2_af(h, n, tt), 4)}, {c}')
                        if self.o.get('hold', 0) and h == 0 and n <= ps:
                            continue
                        if not L and j == 4 and qa:
                            qa.pop(0)()
                        elif not L and j in (0, 1, 2) and q:
                            q.pop(0)()
                if L:
                    k(f'{L}:')
                    for _ in range(2):
                        if qa:
                            qa.pop(0)()
                po = self.o.get('pub_step_o', 3)
                if h == 0 and n in (ps, po):
                    Ls = None
                    if ps != po:
                        Ls = k.label('pbs')
                        k(f's_cmp_{"lt" if n == ps else "ge"}_u32 {sr(sW)}, 4\ns_cbranch_scc1 {Ls}')
                    k.wait('parkrd', *[f'act{t}' for t in self.late_pub])
                    k('s_barrier')
                    if n == po:
                        Lh = k.label('hp')
                        k(f's_cmp_lt_u32 s2, 40\ns_cbranch_scc1 {Lh}')
                        for t in self.late_pub:
                            self.publish(t)
                        k(f'{Lh}:')
                    self.stamp('pub3')
                    if Ls:
                        k(f'{Ls}:')
                if h == 0 and n == 5:
                    k(f'global_load_dwordx4 v[8:11], v72, {P2(pWS)} sc1\nglobal_load_dwordx4 v[12:15], v73, {P2(pWS)} sc1')
                if h == 0 and n == 6:
                    L = self.only_wave(0)
                    self.poll_issue(65, 3, 1, off=2048)
                    k(f'{L}:')
            assert not q and not qa
            if h == 0:
                self.stamp('h0')
            for t in range(10):
                k(f'ds_write_b128 v{66 + t // 8}, {vr(acc(t), 4)} offset:{8192 * (t % 8)}', tag='pw')
            if h == 0:
                L = self.only_wave(0)
                self.poll(65, 3, 27, preissued=True, nl=1, off=2048, sleep=self.o.get('sleep3', 4))
                k(f'{L}:')
                k('v_add_u32 v66, 81920, v66\nv_add_u32 v67, 81920, v67')

        def finalize(h):
            R = {0: 32, 1: 48}
            if self.o.get('fprio', 0):
                k('s_setprio 2')
            for half in range(2):
                for p in range(2):
                    for w in range(4):
                        dst = (R[p] if half == 0 else (76 if p == 0 else 252)) if w == 0 and half == 1 else R[p] + 4 * w
                        k(f'ds_read_b128 {vr(dst, 4)}, v{68 + p} offset:{1024 * (4 * half + w)}', tag='fin')
                if half == 0:
                    if h == 0:
                        self.g2_lda(1, 2)
                    for p in range(2):
                        for a, b in ((0, 1), (2, 3), (0, 2)):
                            for e in (0, 2):
                                k(f'v_pk_add_f32 {vr(R[p] + 4 * a + e, 2)}, {vr(R[p] + 4 * a + e, 2)}, {vr(R[p] + 4 * b + e, 2)}')
            if h == 0:
                self.g2_lda(1, 3)
            for p in range(2):
                x = 76 if p == 0 else 252
                for a, b in ((x, R[p] + 4), (R[p] + 8, R[p] + 12), (R[p], x), (R[p], R[p] + 8)):
                    for e in (0, 2):
                        k(f'v_pk_add_f32 {vr(a + e, 2)}, {vr(a + e, 2)}, {vr(b + e, 2)}')
                for e in range(4):
                    g, t = GB + 4 * p + e, R[p] + 4 + e
                    if h == 0:
                        k(f'v_and_b32 {vr(g)}, 0xffff0000, {vr(g)}')
                    k(f'v_lshlrev_b32 {vr(t)}, 16, {vr(self.RESR[h, p] + e // 2)}' if e % 2 == 0 else f'v_and_b32 {vr(t)}, 0xffff0000, {vr(self.RESR[h, p] + e // 2)}')
                    k(f'v_fmac_f32 {vr(t)}, {vr(R[p] + e)}, {vr(g)}')
                o = 84 if p == 0 else 88
                k(f'v_cvt_pk_bf16_f32 v{o}, {vr(R[p] + 4)}, {vr(R[p] + 5)}\nv_cvt_pk_bf16_f32 v{o + 1}, {vr(R[p] + 6)}, {vr(R[p] + 7)}')
                if p == 1:
                    k('s_mov_b64 exec, 0xffff')
                k(f'global_store_dwordx2 v{74 + p}, v[{o}:{o + 1}], {P2(pOUT)} {self.o.get("outpol", "")}')
                if p == 1:
                    k('s_mov_b64 exec, -1')
            k('s_setprio 0')
            if h == 0:
                k(f'v_add_u32 v74, {1024 * 1280}, v74\nv_add_u32 v75, {1024 * 1280}, v75\nv_add_u32 v68, 81920, v68\nv_add_u32 v69, 81920, v69')

        steps(0)
        k.wait('pw')
        k('s_barrier')
        self.stamp('s3')
        for n in range(2):
            self.g2_lda(1, n)
        finalize(0)
        if self.o.get('wb2'):
            L = self.only_wave(7)
            k(f's_lshr_b32 s55, s2, 3\ns_and_b32 s55, s55, {self.o["wb2"] - 1}\ns_cmp_lg_u32 s55, 0\ns_cbranch_scc1 {L}\nbuffer_wbl2 sc1')
            k(f'{L}:')
        self.stamp('f0')
        steps(1)
        self.stamp('g2m')
        k.wait('pw')
        k('s_barrier')
        finalize(1)
        self.stamp('end')

    def strip_reduce(self, nval, V, RED):
        k = self.k
        n = nval
        for i in range(n // 2):
            k(f'v_permlane32_swap_b32 {vr(V + i)}, {vr(V + n // 2 + i)}')
        for i in range(n // 2):
            k(f'v_add_f32 {vr(V + i)}, {vr(V + i)}, {vr(V + n // 2 + i)}')
        n //= 2
        for i in range(n // 2):
            k(f'v_permlane16_swap_b32 {vr(V + i)}, {vr(V + n // 2 + i)}')
        for i in range(n // 2):
            k(f'v_add_f32 {vr(V + i)}, {vr(V + i)}, {vr(V + n // 2 + i)}')
        n //= 2
        for i in range(n):
            k(f'v_add_f32_dpp {vr(V + i)}, {vr(V + i)}, {vr(V + i)} row_ror:8 row_mask:0xf bank_mask:0xf')
        q = nval // 4
        k(f'''
        v_lshrrev_b32 v8, 4, v0
        v_mul_u32_u24 v8, {q}, v8
        v_and_b32 v9, 7, v8
        v_lshrrev_b32 v8, 3, v8
        v_lshl_add_u32 v9, v8, 6, v9
        v_and_b32 v8, 7, v0
        v_lshl_add_u32 v9, v8, 3, v9
        s_mul_i32 s55, {sr(sW)}, {8 * nval}
        v_add_u32 v9, s55, v9
        v_lshlrev_b32 v9, 2, v9
        s_mov_b32 exec_lo, 0x00ff00ff
        s_mov_b32 exec_hi, 0x00ff00ff
        ''')
        if q == 2:
            k(f'ds_write_b64 v9, {vr(V, 2)} offset:{RED}', tag='redw')
        else:
            k(f'ds_write_b128 v9, {vr(V, 4)} offset:{RED}', tag='redw')
        k('s_mov_b64 exec, -1')
        k.wait('redw')
        k('s_barrier')

    def mod_and_wd(self):
        k = self.k
        k(f'''
        s_cmp_lt_u32 s2, 14
        s_cselect_b32 s76, 2, 1
        s_mov_b32 s75, s2
        s_mul_i32 s72, {sr(sW)}, 5120
        s_mul_i32 s71, s75, 40960
        s_add_u32 s71, s71, s72
        s_add_u32 s72, s72, 8192
        v_lshlrev_b32 v21, 4, v0
        ''')
        self.mod_partial()
        k('s_barrier')
        for i in range(10):
            k(f'''
            s_cmp_ge_u32 s76, {1 + i // 5}
            s_cselect_b64 exec, -1, 0
            s_mov_b32 m0, s72
            s_add_u32 s72, s72, {1024 if i != 4 else 40960 - 4096}
            ''')
            k(f'buffer_load_dwordx4 v21, {P4(rB)}, s71 offen {self.o["nt"]} lds', tag='wdl')
            k(f's_mov_b64 exec, -1\ns_add_u32 s71, s71, {1024 if i != 4 else 40 * 40960 - 4096}')
        L = self.only_wave(0)
        self.poll_sync1(215, 58)
        Lr, Ld = k.label('fr'), k.label('fd')
        k(f'''
        s_cmp_ge_u32 s2, 30
        s_cbranch_scc1 {L}
        s_add_u32 s55, s2, 30
        s_lshl_b32 s56, s55, 11
        s_add_u32 s56, s56, {MODP}
        v_lshl_add_u32 v8, v0, 2, s56
        {Lr}:
        ''')
        for e in range(8):
            k(f'global_load_dword {vr(32 + e)}, v8, {P2(pWS)} offset:{256 * e} sc1')
        k(f'''
        v_min3_u32 v40, v32, v33, v34
        v_min3_u32 v40, v40, v35, v36
        v_min3_u32 v40, v40, v37, v38
        v_min_u32 v40, v40, v39
        v_cmp_eq_u32 vcc, 0, v40
        s_cbranch_vccz {Ld}
        s_sleep {self.o.get('sleep', 2)}
        s_add_u32 {sr(sSPIN)}, {sr(sSPIN)}, 1
        s_cmp_lt_u32 {sr(sSPIN)}, {SPIN_MAX}
        s_cbranch_scc1 {Lr}
        {Ld}:
        v_add_f32 v32, v32, v36
        v_add_f32 v33, v33, v37
        v_add_f32 v34, v34, v38
        v_add_f32 v35, v35, v39
        v_add_f32 v32, v32, v33
        v_add_f32 v34, v34, v35
        v_add_f32 v32, v32, v34
        v_cvt_pk_bf16_f32 v32, v32, v32
        v_and_b32 v32, 0xffff0000, v32
        v_or_b32 v32, 1, v32
        s_lshl_b32 s55, s55, 8
        s_add_u32 s55, s55, {MOD}
        v_lshlrev_b32 v8, 2, v0
        buffer_store_dword v32, v8, {P4(rWS)}, s55 offen sc1
        ''')
        self.stamp('h_mod')
        k(f'{L}:')
        Lw, Lwd = k.label('wdl'), k.label('wdd')
        k(f'''
        v_lshrrev_b32 v9, 5, v0
        v_lshlrev_b32 v9, 4, v9
        v_bfe_u32 v10, v0, 2, 3
        v_add_u32 v9, v9, v10
        v_mul_u32_u24 v9, 1280, v9
        v_and_b32 v10, 3, v0
        v_lshl_add_u32 v9, v10, 3, v9
        s_mul_i32 s56, {sr(sW)}, 160
        v_add_u32 v9, s56, v9
        s_mul_i32 s55, {sr(sW)}, {54 * 5120}
        s_mul_i32 s56, s75, 5120
        s_add_u32 s55, s55, s56
        s_add_u32 s55, s55, {WD}
        s_waitcnt vmcnt(0)
        s_barrier
        s_cmp_eq_u32 s76, 0
        s_cbranch_scc1 {Lwd}
        {Lw}:
        ''')
        for j in range(5):
            k(f'ds_read_b64_tr_b16 {vr(32 + 4 * j, 2)}, v9 offset:{8192 + 32 * j}')
            k(f'ds_read_b64_tr_b16 {vr(34 + 4 * j, 2)}, v9 offset:{8192 + 32 * j + 8 * 1280}')
        k('s_add_u32 s56, s55, 4096')
        for j in range(5):
            k(f'buffer_store_dwordx4 {vr(32 + 4 * j, 4)}, v21, {P4(rWS)}, s{55 + j // 4} offen offset:{1024 * (j % 4)} sc1')
        k(f'''
        s_add_u32 s55, s55, {40 * 5120}
        v_add_u32 v9, 40960, v9
        s_sub_u32 s76, s76, 1
        s_cmp_lg_u32 s76, 0
        s_cbranch_scc1 {Lw}
        {Lwd}:
        s_waitcnt vmcnt(0)
        s_barrier
        ''')

    def stats_job(self):
        k = self.k
        LD, V = 96, 32
        k(f'''
        v_lshrrev_b32 v8, 3, v0
        s_mul_i32 s55, {sr(sW)}, 80
        v_add_u32 v8, s55, v8
        v_mul_u32_u24 v8, {X1R}, v8
        v_and_b32 v10, 7, v0
        v_lshl_add_u32 v8, v10, 4, v8
        s_lshl_b32 s55, s2, 7
        s_add_u32 s55, s55, {X1T}
        ''')
        for i in range(10):
            k(f'buffer_load_dwordx4 {vr(LD + 4 * i, 4)}, v8, {P4(rWS)}, s55 offen sc1')
            if i < 9:
                k(f's_add_u32 s55, s55, {8 * X1R}')
        for i in range(10):
            for j in range(4):
                r = LD + 4 * i + j
                if i == 0:
                    k(f'''
                    v_lshlrev_b32 {vr(V + 2 * j)}, 16, {vr(r)}
                    v_and_b32 {vr(V + 2 * j + 1)}, 0xffff0000, {vr(r)}
                    v_mul_f32 {vr(V + 8 + 2 * j)}, {vr(V + 2 * j)}, {vr(V + 2 * j)}
                    v_mul_f32 {vr(V + 9 + 2 * j)}, {vr(V + 2 * j + 1)}, {vr(V + 2 * j + 1)}
                    ''')
                else:
                    k(f'''
                    v_lshlrev_b32 v11, 16, {vr(r)}
                    v_and_b32 v12, 0xffff0000, {vr(r)}
                    v_add_f32 {vr(V + 2 * j)}, {vr(V + 2 * j)}, v11
                    v_add_f32 {vr(V + 2 * j + 1)}, {vr(V + 2 * j + 1)}, v12
                    v_fmac_f32 {vr(V + 8 + 2 * j)}, v11, v11
                    v_fmac_f32 {vr(V + 9 + 2 * j)}, v12, v12
                    ''')
        self.strip_reduce(16, V, 0)
        L = self.only_wave(0)
        k('v_lshlrev_b32 v8, 2, v0')
        for w in range(8):
            k(f'ds_read2st64_b32 {vr(V + 2 * w, 2)}, v8 offset0:{2 * w} offset1:{2 * w + 1}')
        for w in range(1, 8):
            k(f'v_add_f32 {vr(V)}, {vr(V)}, {vr(V + 2 * w)}')
            k(f'v_add_f32 {vr(V + 1)}, {vr(V + 1)}, {vr(V + 2 * w + 1)}')
        k(f'''
        v_mul_f32 v10, {f32(1.0 / 640)}, {vr(V)}
        v_mul_f32 v11, {f32(1.0 / 640)}, {vr(V + 1)}
        v_fma_f32 v11, -v10, v10, v11
        v_max_f32 v11, 0, v11
        v_cvt_pk_bf16_f32 v11, v11, v11
        v_lshlrev_b32 v11, 16, v11
        v_add_f32 v11, {f32(1e-5)}, v11
        v_cvt_pk_bf16_f32 v11, v11, v11
        v_lshlrev_b32 v11, 16, v11
        v_sqrt_f32 v11, v11
        v_cvt_pk_bf16_f32 v10, v10, v11
        s_lshl_b32 s55, s2, 8
        s_add_u32 s55, s55, {STATS}
        buffer_store_dword v10, v8, {P4(rWS)}, s55 offen sc1
        {L}:
        s_barrier
        ''')

    def helper(self):
        k = self.k
        k('L_helper:')
        self.srd(rB, pWD, 1728 * 640 * 2)
        self.mod_and_wd()
        L = self.only_wave(0)
        k('s_and_b32 s55, s2, 3')
        self.arrive(SYNCW, 4, 's55', 16)
        k(f'{L}:')
        self.stamp('h_wd')
        if self.o['stop'] in ('A', 'kgen'):
            k('s_branch L_fin')
            return
        Lns = k.label('nostat')
        Lb, Lp = k.label('lateb'), k.label('polled')
        L = self.only_wave(0)
        k(f's_cmp_ge_u32 s2, {16 if self.o.get("s2c", 0) else 8}\ns_cbranch_scc1 {Lb}')
        self.poll_addr(SYNC2A, 24, 16)
        k(f's_lshr_b32 s55, s2, 3\ns_mul_i32 s55, s55, {SYNC2C - SYNC2A}\nv_add_u32 v16, s55, v16')
        self.poll(16, 17, 27, nl=24, sleep=4)
        k(f's_branch {Lp}\n{Lb}:')
        self.poll_addr(SYNC2B, 24, 16)
        self.poll(16, 17, 9, nl=24, sleep=4)
        k(f'{Lp}:\n{L}:')
        k('s_barrier')
        self.stamp('s2a')
        k(f's_cmp_ge_u32 s2, 32\ns_cbranch_scc1 {Lns}')
        self.stats_job()
        k(f'{Lns}:')
        self.stamp('h_stat')
        if self.o['stop'] in ('conv', 'g1'):
            k('s_branch L_fin')
            return
        L = self.only_wave(0)
        self.poll_addr(SYNC2B, 24, 16)
        self.poll(16, 17, 9, nl=24, sleep=4)
        self.poll_addr(SYNCW, 4, 16)
        self.poll(16, 17, 10, nl=4)
        k(f'{L}:')
        k('s_barrier')
        self.g2_setup()
        self.g2_addr()
        for i in range(7):
            for f in range(5):
                self.g2_wload(i, f)
        self.resid_dma()
        L = self.only_wave(0)
        self.poll(65, 3, 27, nl=1, sleep=8)
        k(f'{L}:')
        k('s_waitcnt vmcnt(0)\ns_barrier')
        self.resid_read()
        if self.o.get('hpf', 0):
            k(f'''
            s_lshl_b32 s55, s61, 3
            s_add_u32 s55, s55, {sr(sW)}
            v_lshlrev_b32 v1, 7, v0
            s_min_u32 s56, s55, 29
            s_mul_i32 s57, s56, 0x199a
            s_lshr_b32 s57, s57, 16
            s_mul_i32 s58, s57, 10
            s_sub_u32 s56, s56, s58
            s_add_u32 s57, s57, 5
            s_mul_i32 s57, s57, {54 * 5120}
            s_lshl_b32 s56, s56, 13
            s_add_u32 s56, s56, s57
            s_add_u32 s56, s56, {WD + 5 * 40960}
            buffer_load_dword v79, v1, {P4(rWS)}, s56 offen sc1
            s_lshl_b32 s57, {sr(sMB)}, 1
            s_add_u32 s57, s57, 1
            s_mul_i32 s57, s57, {108 * 1024}
            s_add_u32 s57, s57, {ACT}
            s_min_u32 s56, s55, 13
            s_lshl_b32 s56, s56, 13
            s_add_u32 s56, s56, s57
            s_cmp_lt_u32 s55, 14
            s_cselect_b64 exec, -1, 0
            buffer_load_dword v79, v1, {P4(rWS)}, s56 offen sc1
            s_mov_b64 exec, -1
            ''')
            L = self.only_wave(0)
            self.poll(65, 3, 27, nl=1, sleep=8, off=1024)
            k(f'''
            {L}:
            s_barrier
            s_add_u32 s57, s57, {15 * 108 * 1024}
            s_min_u32 s56, s55, 26
            s_lshl_b32 s56, s56, 13
            s_add_u32 s56, s56, s57
            s_cmp_lt_u32 s55, 27
            s_cselect_b64 exec, -1, 0
            buffer_load_dword v79, v1, {P4(rWS)}, s56 offen sc1
            s_mov_b64 exec, -1
            s_waitcnt vmcnt(0)
            ''')
        for n in range(2):
            self.g2_lda(0, n)
        for _ in range(1 + self.o.get('w2_tail', 0)):
            k(f'global_load_dword v79, v72, {P2(pWS)} sc1')
        if not self.o.get('hold', 0):
            for n in range(2, 4):
                self.g2_lda(0, n)
        k('s_branch L_g2')

    def build(self):
        k = self.k
        stop = self.o['stop']
        self.prologue()
        self.early_addresses()
        self.ln1()
        k('s_cmp_lt_u32 s2, 40\ns_cbranch_scc1 L_helper')
        while True:
            if stop == 'A':
                break
            self.kgen()
            if self.o.get('mp_early', 2) == 2:
                self.mod_partial()
            self.stamp('kgen')
            self.kexpand1()
            self.conv(setup_only=True)
            self.stamp('kexp')
            if self.o.get('mp_early', 2) == 1:
                self.mod_partial()
            self.conv_loads()
            if not self.o.get('mp_early', 2):
                self.mod_partial()
            self.kexpand2()
            self.wstage_read(0, 213)
            if stop == 'kgen':
                self.dump_k()
                break
            self.conv()
            self.window2()
            if stop == 'conv':
                break
            self.g1()
            if stop == 'g1':
                break
            self.g2()
            break
        k('L_fin:')
        if self.o.get('diag_T'):
            k(f'''
            L_dt:
            s_memrealtime s[96:97]
            s_waitcnt lgkmcnt(0)
            s_sub_u32 s96, s96, s94
            s_cmp_lt_u32 s96, {self.o['diag_T']}
            s_cbranch_scc1 L_dt
            ''')
        k(f'''
        s_or_b32 s3, s2, {sr(sW)}
        s_cmp_lg_u32 s3, 0
        s_cbranch_scc1 L_nogen
        v_mov_b32 v8, {GEN}
        v_mov_b32 v9, {sr(sTAG)}
        s_mov_b64 exec, 1
        global_store_dword v8, v9, {P2(pWS)} sc1
        s_mov_b64 exec, -1
        L_nogen:
        ''')
        self.stamp_flush()
        k('s_endpgm')
        self.helper()
        k('L_end:\ns_endpgm')
        body = k.text()
        hdr = open('adaLN_cond__ssm_conv_s4d__geglu_ffn__prompt.s.ref').read().split('; Override')[0]
        return hdr + f'''; @launch kernel={NAME} grid=(256,1,1) block=(512,1,1) lds={LDS_BYTES}
.amdgcn_target "amdgcn-amd-amdhsa--gfx950"
.text
.globl {NAME}
.p2align 8
.type {NAME},@function
{NAME}:
{body}.section .rodata,"a"
.p2align 6
.amdhsa_kernel {NAME}
  .amdhsa_next_free_vgpr 256
  .amdhsa_next_free_sgpr 102
  .amdhsa_accum_offset 256
  .amdhsa_group_segment_fixed_size 0
  .amdhsa_kernarg_size 128
  .amdhsa_user_sgpr_count 2
  .amdhsa_user_sgpr_kernarg_segment_ptr 1
  .amdhsa_system_sgpr_workgroup_id_x 1
.end_amdhsa_kernel
'''

    def dump_k(self):
        k = self.k
        k.wait('saw')
        k('s_barrier')
        k(f's_lshl_b32 s55, {sr(sW)}, 6\nv_add_u32 v8, s55, v0\nv_lshlrev_b32 v9, 3, v8\nv_lshlrev_b32 v10, 4, v8')
        for ch in range(3):
            k(f'''
            ds_read_b64 v[12:13], v9 offset:{KA + ch * KAS + 32}
            ds_read_b128 v[16:19], v10 offset:{SA + ch * SAS}
            s_add_u32 s55, {sr(sD0)}, {ch}
            s_lshl_b32 s56, s55, 12
            s_add_u32 s56, s56, {X1T}
            s_lshl_b32 s57, s55, 13
            s_add_u32 s57, s57, {ACT}
            buffer_store_dwordx2 v[12:13], v9, {P4(rWS)}, s56 offen
            buffer_store_dwordx4 v[16:19], v10, {P4(rWS)}, s57 offen
            s_waitcnt vmcnt(0)
            ''')


LAST = None
def generate(**opt):
    global LAST
    LAST = Gen(opt)
    return LAST.build()


if __name__ == '__main__':
    opt = {}
    for a in sys.argv[2:]:
        kx, v = a.split('=')
        opt[kx] = eval(v)
    open(sys.argv[1], 'w').write(generate(**opt))
```

```python
import sys, math
from asmgen import Kern, vr, sr, f32

NAME = 'adaLN_cond__ssm_conv_s4d__geglu_ffn__prompt_kernel'

SYNC1 = 0x0
GEN = 0x22000
MS = 0x1E000
SYNC2A, SYNC2B, SYNCW, SYNC3, SYNC2C = 0x8000, 0xE000, 0x14000, 0x15000, 0x18000
MODP = 0xC0000
MOD, STATS = 0x24000, 0x16000
ZBEG, ZEND = 0x8000, 0x1E000
STAMP = 0x30000
CSP = 0x3C0000
XN, XT, X1T, X1S, WD, ACT = 0x100000, 0x400000, 0x700000, 0xA00000, 0xD00000, 0x1000000
XNS, X1R = 10240 + 128, 4096 + 128
KG, KGS = 0, 4608
XNL0, MSL = 1696, 13984
KA, KAS = 27648, 4128
SA, SAS = 40032, 8192
TR, TRR, TRM = 40032, 1344, 10752
WT = 81408
KC, KCS = 51200, 3840
GA = 204
TAB, EXC = 78336, 10240
STG = 81920
RING, NS = 16384, 5
PARK0, PARK6A, PARK6B, PARK7 = 122880, 98304, 0, 118784
RESID, PART = 16384, 0
W2 = {1: 96, 2: 116, 3: 136, 4: 156, 5: 176, 0: 196, 6: 216}
sOW = {0: 70, 6: 71, 1: 72, 2: 73, 3: 74, 4: 75, 5: 76}
sOA = {0: 94, 6: 95, 1: 96, 2: 97, 3: 98, 4: 99, 5: 77}
LDS_BYTES = 163840
pX, pLA, pAI, pCR, pCI, pDT, pDS, pWG, pWU, pWD, pC, pWM, pOUT, pDBG, pWS = 4, 6, 8, 10, 12, 14, 16, 20, 22, 24, 26, 28, 30, 32, 34
sW, sI, sPC = 36, 37, 38
rWS, rA, rB = 40, 44, 48
sD0, sMB, sNB = 52, 53, 54
sT = 55
sCH = 70
sSPIN = 79
sST = 80
sFLAG = 82
sWL, sWO, sWI, sWR = 86, 87, 88, 89
sQ, sM1, sTAG = 91, 92, 93
P2 = lambda r: sr(r, 2)
P4 = lambda r: sr(r, 4)
WF = 96
SPIN_MAX = 400000

LOG2E = 1.4426950408889634


class Gen:
    def __init__(self, opt):
        self.o = dict(stop=None, stamps=False, nt='nt')
        self.o.update(opt)
        self.k = Kern()
        self.nst = 0

    def stamp(self, name, vt=None):
        if not self.o['stamps']:
            return
        if isinstance(self.o['stamps'], (list, tuple)) and name not in self.o['stamps']:
            return
        names = self.o.setdefault('stamp_names', [])
        if name not in names:
            names.append(name)
        idx = names.index(name)
        assert idx < 32, names
        self.k(f'''
        s_memrealtime {sr(sST, 2)}
        s_memtime s[84:85]
        s_waitcnt lgkmcnt(0)
        v_writelane_b32 v87, {sr(sST)}, {idx}
        v_writelane_b32 v87, s84, {32 + idx}
        ''')

    def stamp_flush(self):
        if not self.o['stamps']:
            return
        self.k(f'''
        s_lshl_b32 s3, s2, 3
        s_add_u32 s3, s3, {sr(sW)}
        s_lshl_b32 s3, s3, 8
        s_add_u32 s3, s3, {STAMP}
        v_lshl_add_u32 v86, v0, 2, s3
        global_store_dword v86, v87, {P2(pWS)}
        ''')

    def arrive(self, base, nshard, shard_sreg, vt):
        k = self.k
        k(f'''
        s_lshl_b32 s3, {shard_sreg}, 7
        s_add_u32 s3, s3, {base}
        v_mul_u32_u24 {vr(vt)}, {128 * nshard}, v0
        v_add_u32 {vr(vt)}, s3, {vr(vt)}
        v_mov_b32 {vr(vt + 1)}, 1
        s_mov_b64 exec, 0xff
        global_atomic_add {vr(vt)}, {vr(vt + 1)}, {P2(pWS)} sc1
        s_mov_b64 exec, -1
        ''')

    def poll_addr(self, base, nshard, va):
        k = self.k
        k(f'''
        s_and_b32 s3, s2, 7
        s_mul_i32 s3, s3, {128 * nshard}
        s_add_u32 s3, s3, {base}
        v_min_u32 {vr(va)}, {nshard - 1}, v0
        v_lshlrev_b32 {vr(va)}, 7, {vr(va)}
        v_add_u32 {vr(va)}, s3, {vr(va)}
        ''')

    def poll_issue(self, va, vd, nl, off=0):
        k = self.k
        if nl and self.o.get('apoll', 1):
            k(f'''
            v_mov_b32 {vr(vd)}, 0
            s_mov_b64 exec, {hex((1 << nl) - 1)}
            global_atomic_add {vr(vd)}, {vr(va)}, {vr(vd)}, {P2(pWS)} offset:{off} sc0 sc1
            s_mov_b64 exec, -1
            ''')
        else:
            k(f'global_load_dword {vr(vd)}, {vr(va)}, {P2(pWS)} offset:{off} sc1')

    def poll(self, va, vd, count, preissued=False, off=0, nl=0, sleep=None):
        k = self.k
        L, D = k.label('poll'), k.label('polld')
        ap = nl and self.o.get('apoll', 1)

        def check():
            k(f'v_cmp_gt_u32 vcc, {count}, {vr(vd)}')
            if ap:
                k(f's_and_b32 vcc_lo, vcc_lo, {hex((1 << nl) - 1)}\ns_cbranch_scc0 {D}')
            else:
                k(f's_cbranch_vccz {D}')
        if not preissued:
            self.poll_issue(va, vd, nl, off)
        check()
        k(f'{L}:')
        k(f's_sleep {self.o.get("sleep", 2) if sleep is None else sleep}')
        self.poll_issue(va, vd, nl, off)
        check()
        k(f'''
        s_add_u32 {sr(sSPIN)}, {sr(sSPIN)}, 1
        s_cmp_lt_u32 {sr(sSPIN)}, {SPIN_MAX}
        s_cbranch_scc1 {L}
        {D}:
        ''')

    def srd(self, r, ptr, size):
        self.k(f'''
        s_mov_b32 {sr(r)}, {sr(ptr)}
        s_and_b32 {sr(r + 1)}, {sr(ptr + 1)}, 0xffff
        s_mov_b32 {sr(r + 2)}, {size}
        s_mov_b32 {sr(r + 3)}, 0x20000
        ''')

    def only_wave(self, w):
        L = self.k.label('ow')
        self.k(f's_cmp_lg_u32 {sr(sW)}, {w}\ns_cbranch_scc1 {L}')
        return L

    def prologue(self):
        k = self.k
        k(f'''
        s_cmp_ge_u32 s2, 256
        s_cbranch_scc1 L_end
        s_load_dwordx16 s[4:19], s[0:1], 0
        s_load_dwordx16 s[20:35], s[0:1], 64
        s_getpc_b64 {P2(sPC)}
        L_pc:
        v_lshrrev_b32 v1, 6, v0
        v_and_b32 v0, 63, v0
        v_readfirstlane_b32 {sr(sW)}, v1
        s_mov_b32 {sr(sSPIN)}, 0
        ''')
        if self.o.get('diag_T'):
            k('s_memrealtime s[94:95]')
        if self.o.get('diag_alu'):
            k(f's_mov_b32 s3, {self.o["diag_alu"]}\nL_da:')
            for _ in range(100):
                k('v_add_u32 v1, v1, v1')
            k('s_sub_u32 s3, s3, 1\ns_cmp_lg_u32 s3, 0\ns_cbranch_scc1 L_da')
        if self.o['stamps']:
            k('v_mov_b32 v87, 0')
        L = k.label('pf')
        k(f'''
        s_lshr_b32 s3, s2, 3
        s_and_b32 s3, s3, 7
        s_cmp_eq_u32 {sr(sW)}, 0
        s_cselect_b32 s56, 0, s3
        s_cmp_eq_u32 {sr(sW)}, s56
        s_cbranch_scc0 {L}
        s_lshl_b32 s3, {sr(sW)}, 13
        v_lshlrev_b32 v2, 7, v0
        v_add_u32 v2, s3, v2
        v_min_u32 v2, L_end-L_pc, v2
        global_load_dword v83, v2, {P2(sPC)}
        {L}:
        s_lshl_b32 s3, s2, 3
        s_add_u32 s3, s3, {sr(sW)}
        s_mul_i32 s3, s3, 1280
        v_lshl_add_u32 v2, v0, 4, s3
        v_lshl_add_u32 v3, v0, 2, s3
        s_sub_u32 {sr(sI)}, s2, 40
        s_and_b32 {sr(sMB)}, s2, 7
        s_lshr_b32 {sr(sQ)}, {sr(sI)}, 3
        s_mul_i32 s3, {sr(sMB)}, 27
        s_add_u32 s3, s3, {sr(sQ)}
        s_lshr_b32 {sr(sNB)}, s3, 3
        s_and_b32 {sr(sM1)}, s3, 7
        s_mul_i32 s3, s3, 3
        s_min_u32 {sr(sD0)}, s3, 637
        s_min_u32 s55, {sr(sW)}, 5
        s_lshl_b32 s56, {sr(sD0)}, 1
        s_add_u32 s56, s56, s55
        s_lshl_b32 s56, s56, 7
        v_lshl_add_u32 v18, v0, 1, s56
        s_lshr_b32 s55, s55, 1
        s_add_u32 s55, s55, {sr(sD0)}
        s_lshl_b32 s55, s55, 1
        v_mov_b32 v19, s55
        v_min_u32 v17, 2, v0
        v_add_u32 v17, {sr(sD0)}, v17
        v_lshlrev_b32 v17, 1, v17
        ''')
        if self.o.get('wsoff'):
            k(f's_add_u32 s{pWS}, s{pWS}, {self.o["wsoff"] << 20}\ns_addc_u32 s{pWS + 1}, s{pWS + 1}, 0')
        self.stamp('start')
        if self.o.get('chase'):
            ptr, stride = self.o.get('chase_ptr', 18), self.o.get('chase_stride', 256 * 512)
            k(f's_lshl_b32 s55, s2, 9\nv_mov_b32 v10, s55')
            for i in range(self.o['chase']):
                k(f'''
                global_load_dword v11, v10, {P2(ptr)}
                v_and_b32 v11, 0, v11
                v_add_u32 v10, {stride}, v10
                v_add_u32 v10, v11, v10
                ''')
            self.stamp('chase')
        k(f'''
        global_load_dwordx4 v[92:95], v2, {P2(pX)} {self.o['nt']}
        global_load_dword v91, v3, {P2(pX)} offset:1024 {self.o['nt']}
        s_load_dword {sr(sTAG)}, {P2(pWS)}, {GEN}
        ''')
        L, Lh = k.label('nokl'), k.label('hc')
        k(f'''
        s_lshl_b32 s68, s2, 1
        s_and_b32 s55, {sr(sW)}, 1
        s_add_u32 s68, s68, s55
        s_min_u32 s68, s68, 479
        s_and_b32 s55, s68, 7
        s_mul_i32 s55, s55, 80
        v_lshrrev_b32 v20, 3, v0
        v_mul_u32_u24 v20, 10, v20
        v_add_u32 v20, s55, v20
        s_cmp_lt_u32 {sr(sW)}, 6
        s_cbranch_scc1 {Lh}
        v_lshlrev_b32 v21, 1, v20
        global_load_dwordx4 v[160:163], v21, {P2(pC)}
        global_load_dword v164, v21, {P2(pC)} offset:16
        v_mul_u32_u24 v20, 7680, v20
        v_and_b32 v21, 7, v0
        v_lshl_add_u32 v20, v21, 4, v20
        s_lshr_b32 s55, s68, 3
        s_lshl_b32 s55, s55, 7
        v_add_u32 v20, s55, v20
        s_branch {L}
        {Lh}:
        s_cmp_lt_u32 s2, 40
        s_cbranch_scc1 {L}
        global_load_ushort v20, v18, {P2(pLA)} {self.o['nt']}
        global_load_ushort v24, v19, {P2(pDT)}
        global_load_ushort v21, v18, {P2(pAI)} {self.o['nt']}
        global_load_ushort v22, v18, {P2(pCR)} {self.o['nt']}
        global_load_ushort v23, v18, {P2(pCI)} {self.o['nt']}
        global_load_ushort v25, v17, {P2(pDS)}
        {L}:
        ''')
        self.srd(rWS, pWS, 0x2000000)
        self.srd(rA, pWG, 640 * 1728 * 2)
        self.srd(rB, pWU, 640 * 1728 * 2)

    def early_addresses(self):
        k = self.k
        k(f'''
        v_lshrrev_b32 v16, 3, v0
        v_mul_u32_u24 v17, 3456, v16
        v_bfe_u32 v16, v0, 4, 1
        v_bfe_u32 v26, v0, 1, 2
        v_xor_b32 v26, v26, v16
        v_and_b32 v16, 1, v0
        v_lshl_add_u32 v17, v16, 4, v17
        s_lshl_b32 s55, {sr(sNB)}, 7
        v_add_u32 v17, s55, v17
        v_lshl_add_u32 v26, v26, 5, v17
        v_xor_b32 v27, 64, v26
        s_mul_i32 {sr(sWR)}, {sr(sM1)}, 5
        s_mov_b32 {sr(sWO)}, 0
        ''')
        k(f's_lshl_b32 s55, {sr(sW)}, 6\nv_add_u32 v89, s55, v0')
        k(f'''
        s_lshl_b32 s55, {sr(sW)}, 1
        s_lshr_b32 s56, 0xffa4, s55
        s_and_b32 s56, s56, 3
        s_lshl_b32 s57, s56, 3
        v_lshlrev_b32 v10, 2, v89
        ''')
        for j in range(4):
            k(f'''
            v_add_u32 v11, {j}, v10
            v_cvt_f32_u32 v11, v11
            v_cvt_pk_bf16_f32 v11, v11, v11
            v_lshlrev_b32 v11, 16, v11
            v_cvt_u32_f32 v11, v11
            v_lshrrev_b32 v12, 7, v11
            v_and_b32 v13, 7, v11
            v_lshl_add_u32 v12, v12, 3, v13
            v_lshrrev_b32 v12, s56, v12
            v_add_u32 v12, s57, v12
            v_mul_u32_u24 v12, 20, v12
            v_bfe_u32 v11, v11, 3, 4
            v_add_lshl_u32 v11, v12, v11, 2
            v_add_u32 {vr(GA + j)}, {KC}, v11
            ''')
        k(f'''
        v_lshlrev_b32 v208, 1, v10
        v_lshlrev_b32 v209, 2, v10
        ''')
        for i in range(2):
            k(f'''
            v_add_u32 v11, {512 * i}, v89
            v_mul_u32_u24 v12, 0x5556, v11
            v_lshrrev_b32 v12, 16, v12
            v_mul_u32_u24 v13, 3, v12
            v_sub_u32 v11, v11, v13
            v_add_u32 v11, {sr(sD0)}, v11
            v_mul_u32_u24 v12, {XNS}, v12
            v_lshl_add_u32 {vr(210 + i)}, v11, 4, v12
            ''')
        k('v_lshlrev_b32 v212, 4, v89')
        self.wread_addr(213)
        k(f'''
        v_lshrrev_b32 v11, 2, v0
        v_min_u32 v11, 11, v11
        v_mul_u32_u24 v12, 0x5556, v11
        v_lshrrev_b32 v12, 16, v12
        v_mul_u32_u24 v13, 3, v12
        v_sub_u32 v11, v11, v13
        v_cmp_eq_u32 vcc, 3, v12
        v_addc_co_u32 v12, vcc, 0, v12, vcc
        v_mul_u32_u24 v12, 640, v12
        v_add3_u32 v11, v11, v12, {sr(sD0)}
        v_lshrrev_b32 v12, 6, v11
        v_and_b32 v11, 63, v11
        v_lshlrev_b32 v11, 2, v11
        v_lshl_add_u32 v11, v12, 11, v11
        v_and_b32 v12, 3, v0
        v_lshl_add_u32 v11, v12, 8, v11
        v_add_u32 v88, {MODP}, v11
        v_min_u32 v89, 319, v89
        v_lshlrev_b32 v90, 3, v89
        v_add_u32 v90, {MOD + 3 * 2560}, v90
        ''')
        k(f'''
        v_lshrrev_b32 v8, 4, v0
        v_bfe_u32 v9, v0, 2, 2
        v_and_b32 v10, 3, v0
        v_lshlrev_b32 v11, 1, v10
        v_lshl_add_u32 v11, v8, 2, v11
        v_lshrrev_b32 v12, 1, v9
        v_add_u32 v11, v11, v12
        v_mul_u32_u24 v11, 48, v11
        v_and_b32 v12, 1, v9
        v_lshl_add_u32 v11, v12, 3, v11
        v_add_u32 v1, {XNL0 - 14 * 48}, v11
        v_sub_u32 v11, v10, v9
        v_lshlrev_b32 v12, 3, v8
        v_sub_u32 v11, v11, v12
        v_lshlrev_b32 v11, 3, v11
        v_add_u32 v2, {KA + 32 + 2 * (112 - 16)}, v11
        v_lshlrev_b32 v11, 3, v9
        v_lshl_add_u32 v11, v8, 1, v11
        v_lshrrev_b32 v12, 1, v10
        v_add_u32 v11, v11, v12
        v_mul_u32_u24 v11, 48, v11
        v_and_b32 v12, 1, v10
        v_lshl_add_u32 v11, v12, 3, v11
        v_add_u32 v5, {XNL0}, v11
        ''')
        k(f'''
        s_mul_i32 s56, {sr(sW)}, {TRR}
        s_add_u32 s56, s56, {TR}
        v_lshl_add_u32 v6, v0, 4, s56
        v_lshl_add_u32 v7, v0, 2, s56
        v_mul_u32_u24 v4, {TRR}, v9
        v_lshl_add_u32 v4, v8, 5, v4
        v_lshl_add_u32 v4, v10, 3, v4
        s_and_b32 s55, {sr(sW)}, 1
        s_mul_i32 s56, s55, 640
        s_add_u32 s56, s56, {TR}
        v_add_u32 v4, s56, v4
        s_mul_i32 s57, s2, {XNS}
        s_mul_i32 s56, s55, 5120
        s_add_u32 s57, s57, s56
        v_lshl_add_u32 v3, v0, 4, s57
        s_add_u32 {sr(sTAG)}, {sr(sTAG)}, 0x9e3779b9
        ''')
        k(f'''
        s_and_b32 s55, s2, 7
        s_lshl_b32 s55, s55, 12
        v_lshrrev_b32 v11, 1, v0
        v_lshlrev_b32 v11, 7, v11
        v_and_b32 v12, 1, v0
        v_lshl_add_u32 v11, v12, 5, v11
        v_add_u32 v215, s55, v11
        ''')

    def poll_sync1_issue(self, va, vd):
        self.k(f'''
        global_load_dwordx4 {vr(vd, 4)}, {vr(va)}, {P2(pWS)} offset:{SYNC1} sc1
        global_load_dwordx4 {vr(vd + 4, 4)}, {vr(va)}, {P2(pWS)} offset:{SYNC1 + 16} sc1
        ''')

    def poll_sync1(self, va, vd, preissued=False):
        k = self.k
        L, D = k.label('p1'), k.label('p1d')
        if preissued:
            self.sync1_check(vd, D)
        k(f'{L}:')
        self.poll_sync1_issue(va, vd)
        self.sync1_check(vd, D)
        k(f'''
        s_sleep {self.o.get('sleep', 2)}
        s_add_u32 {sr(sSPIN)}, {sr(sSPIN)}, 1
        s_cmp_lt_u32 {sr(sSPIN)}, {SPIN_MAX}
        s_cbranch_scc1 {L}
        {D}:
        ''')

    def sync1_check(self, vd, D):
        k = self.k
        k(f'''
        v_min3_u32 {vr(vd + 8)}, {vr(vd)}, {vr(vd + 1)}, {vr(vd + 2)}
        v_max3_u32 {vr(vd + 9)}, {vr(vd)}, {vr(vd + 1)}, {vr(vd + 2)}
        v_min3_u32 {vr(vd + 8)}, {vr(vd + 8)}, {vr(vd + 3)}, {vr(vd + 4)}
        v_max3_u32 {vr(vd + 9)}, {vr(vd + 9)}, {vr(vd + 3)}, {vr(vd + 4)}
        v_min3_u32 {vr(vd + 8)}, {vr(vd + 8)}, {vr(vd + 5)}, {vr(vd + 6)}
        v_max3_u32 {vr(vd + 9)}, {vr(vd + 9)}, {vr(vd + 5)}, {vr(vd + 6)}
        v_min_u32 {vr(vd + 8)}, {vr(vd + 8)}, {vr(vd + 7)}
        v_max_u32 {vr(vd + 9)}, {vr(vd + 9)}, {vr(vd + 7)}
        v_xor_b32 {vr(vd + 8)}, {sr(sTAG)}, {vr(vd + 8)}
        v_xor_b32 {vr(vd + 9)}, {sr(sTAG)}, {vr(vd + 9)}
        v_or_b32 {vr(vd + 8)}, {vr(vd + 8)}, {vr(vd + 9)}
        v_cmp_ne_u32 vcc, 0, {vr(vd + 8)}
        s_cbranch_vccz {D}
        ''')

    def touch(self, ptr, size, sbyte, stride=128, lanes=64):
        k = self.k
        k(f'''
        v_mul_u32_u24 v84, {stride}, v0
        v_add_u32 v84, {sbyte}, v84
        v_min_u32 v84, {size - 4}, v84
        ''')
        if lanes < 64:
            k(f's_mov_b32 exec_lo, {hex((1 << min(lanes, 32)) - 1)}\ns_mov_b32 exec_hi, {hex((1 << max(lanes - 32, 0)) - 1)}')
        k(f'global_load_dword v83, v84, {P2(ptr)} {self.o.get("wpol", "")}')
        if lanes < 64:
            k('s_mov_b64 exec, -1')

    def stage_a(self):
        k = self.k
        L, L5 = k.label('nsa'), k.label('sa5')
        k(f'''
        s_cmp_lt_u32 s2, 40
        s_cbranch_scc1 {L}
        s_cmp_ge_u32 {sr(sW)}, 6
        s_cbranch_scc1 {L}
        s_cmp_eq_u32 {sr(sW)}, 5
        s_cbranch_scc1 {L5}
        s_mov_b32 {sr(sWI)}, {sr(sW)}
        ''')
        self.wunits(1, 5, 1, pol=self.o.get('wpol', ''))
        k(f's_branch {L}\n{L5}:')
        if self.o.get('pf1', 2) == 2:
            k(f'''
            s_mul_i32 s55, {sr(sWR)}, {8 * 3456}
            s_lshl_b32 s58, {sr(sNB)}, 7
            s_add_u32 s55, s55, s58
            s_add_u32 s55, s55, {320 * 3456}
            ''')
            self.touch(pWG, 640 * 1728 * 2, 's55', stride=3456, lanes=40)
            self.touch(pWU, 640 * 1728 * 2, 's55', stride=3456, lanes=40)
        if self.o.get('tm', 0):
            k(f's_mul_i32 s55, {sr(sI)}, {178 * 128}')
            for i in range(3):
                self.touch(pWM, 640 * 3840 * 2, 's55')
                if i < 2:
                    k('s_add_u32 s55, s55, 8192')
        k(f'{L}:')

    def stage_b_touch(self):
        k = self.k
        if not self.o.get('tb', 0):
            return
        L = [k.label('tb') for _ in range(5)]
        k(f's_cmp_lt_u32 {sr(sW)}, 2\ns_cbranch_scc0 {L[0]}')
        k(f's_mul_i32 s55, {sr(sI)}, {80 * 128}\ns_mul_i32 s56, {sr(sW)}, {40 * 128}\ns_add_u32 s55, s55, s56')
        self.touch(pWD, 1728 * 640 * 2, 's55', lanes=40)
        k(f's_branch {L[2]}\n{L[0]}:')
        k(f'''
        s_mul_i32 s55, {sr(sWR)}, {8 * 3456}
        s_lshl_b32 s56, {sr(sNB)}, 7
        s_add_u32 s55, s55, s56
        s_add_u32 s55, s55, {320 * 3456}
        s_cmp_eq_u32 {sr(sW)}, 2
        s_cbranch_scc0 {L[1]}
        ''')
        self.touch(pWG, 640 * 1728 * 2, 's55', stride=3456, lanes=40)
        k(f's_branch {L[2]}\n{L[1]}:\ns_cmp_eq_u32 {sr(sW)}, 3\ns_cbranch_scc0 {L[2]}')
        self.touch(pWU, 640 * 1728 * 2, 's55', stride=3456, lanes=40)
        k(f'{L[2]}:')

    def ln1(self):
        k = self.k
        X = [92, 93, 94, 95, 91]
        k('v_mov_b32 v10, v91')
        self.stamp('xld')
        if self.o.get('sa_pos', 0) == 0:
            self.stage_a()
        k(f'''
        s_mov_b32 s55, 0x3f803f80
        v_mov_b32 v10, 0
        v_mov_b32 v11, 0
        ''')
        for j in range(5):
            k(f'v_dot2_f32_bf16 v10, v{X[j]}, s55, v10')
            k(f'v_dot2_f32_bf16 v11, v{X[j]}, v{X[j]}, v11')
        k(f'''
        v_permlane32_swap_b32 v10, v11
        v_add_f32 v10, v10, v11
        ''')
        for n in (8, 4, 2, 1):
            k(f'v_add_f32_dpp v10, v10, v10 row_ror:{n} row_mask:0xf bank_mask:0xf')
        k(f'''
        v_add_f32_dpp v10, v10, v10 row_bcast:15 row_mask:0xa bank_mask:0xf
        v_mov_b32 v13, {f32(1.0 / 640)}
        v_readlane_b32 s55, v10, 31
        v_readlane_b32 s56, v10, 63
        s_lshl_b32 s57, {sr(sW)}, 2
        v_mov_b32 v14, s57
        v_mul_f32 v10, s55, v13
        v_mul_f32 v11, s56, v13
        v_fma_f32 v11, -v10, v10, v11
        v_max_f32 v11, 0, v11
        v_cvt_pk_bf16_f32 v10, v10, v11
        v_and_b32 v11, 0xffff0000, v10
        v_lshlrev_b32 v10, 16, v10
        v_add_f32 v11, {f32(1e-5)}, v11
        v_cvt_pk_bf16_f32 v11, v11, v11
        v_lshlrev_b32 v11, 16, v11
        v_sqrt_f32 v11, v11
        v_lshlrev_b32 v15, 16, v92
        v_cvt_pk_bf16_f32 v13, v10, v11
        v_and_b32 v11, 0xffff0000, v13
        v_rcp_f32 v11, v11
        ''')
        k(f'ds_write_b32 v14, v13 offset:{TR + TRM}', tag='trw')
        k('v_mul_f32 v10, -v10, v11')
        for j in range(5):
            k(f'''
            v_lshlrev_b32 v13, 16, v{X[j]}
            v_and_b32 v14, 0xffff0000, v{X[j]}
            v_fma_f32 v13, v13, v11, v10
            v_fma_f32 v14, v14, v11, v10
            v_cvt_pk_bf16_f32 v{X[j]}, v13, v14
            ''')
            if j == 3:
                k('ds_write_b128 v6, v[92:95]', tag='trw')
        k('ds_write_b32 v7, v91 offset:1024', tag='trw')
        k.wait('trw')
        k('s_barrier')
        self.stamp('trb')
        if self.o.get('sa_pos', 0) == 1:
            self.stage_a()
        Ls = k.label('nost')
        k(f'''
        s_cmp_lt_u32 {sr(sW)}, 6
        s_cbranch_scc1 {Ls}
        ''')
        for i in range(5):
            k(f'ds_read_b64_tr_b16 v[{28 + 4 * i}:{29 + 4 * i}], v4 offset:{128 * i}')
            k(f'ds_read_b64_tr_b16 v[{30 + 4 * i}:{31 + 4 * i}], v4 offset:{128 * i + 4 * TRR}')
        k(f'''
        v_lshlrev_b32 v72, 4, v0
        ds_read_b128 v[68:71], v72 offset:{TR + TRM}
        s_mov_b32 s58, {XN}
        s_mov_b32 s59, {XN + 4096}
        ''')
        for i in range(5):
            k(f'buffer_store_dwordx4 v[{28 + 4 * i}:{31 + 4 * i}], v3, {P4(rWS)}, s{58 + i // 4} offen offset:{1024 * (i % 4)} sc1', tag='xnst')
        L6, L7, L8 = k.label('w6'), k.label('w7'), k.label('w8')
        k(f'''
        s_cmp_eq_u32 {sr(sW)}, 6
        s_cbranch_scc1 {L6}
        v_mov_b32 v68, 0
        v_mov_b32 v69, 0
        v_mov_b32 v70, 0
        v_mov_b32 v71, 0
        s_cmp_ge_u32 s2, 30
        s_cbranch_scc1 {L8}
        s_add_u32 s56, s2, 30
        s_lshl_b32 s56, s56, 8
        s_add_u32 s56, s56, {MOD}
        s_mov_b64 exec, 0xffff
        buffer_store_dwordx4 v[68:71], v72, {P4(rWS)}, s56 offen sc1
        {L8}:
        s_mul_i32 s56, s2, 352
        s_add_u32 s56, s56, {ZBEG}
        s_mov_b64 exec, 0x3fffff
        s_branch {L7}
        {L6}:
        s_lshl_b32 s56, s2, 5
        s_add_u32 s56, s56, {MS}
        s_mov_b64 exec, 3
        {L7}:
        ''')
        k(f'buffer_store_dwordx4 v[68:71], v72, {P4(rWS)}, s56 offen sc1', tag='xnst')
        k(f'''
        s_cmp_lt_u32 s2, 240
        s_cselect_b64 exec, 0xffff, 0
        v_mov_b32 v74, 0
        v_mov_b32 v75, 0
        v_mov_b32 v76, 0
        v_mov_b32 v77, 0
        s_lshl_b32 s56, s68, 8
        s_add_u32 s69, s56, {MODP}
        ''')
        k(f'buffer_store_dwordx4 v[74:77], v72, {P4(rWS)}, s69 offen sc1', tag='xnst')
        k(f'''
        s_mov_b64 exec, -1
        v_mov_b32 v74, 0
        v_mov_b32 v75, 0
        v_mov_b32 v76, 0
        v_mov_b32 v77, 0
        s_lshl_b32 s56, {sr(sNB)}, 3
        s_add_u32 s56, s56, {sr(sM1)}
        s_lshl_b32 s56, s56, 10
        s_and_b32 s57, {sr(sW)}, 1
        s_lshl_b32 s57, s57, 9
        s_add_u32 s56, s56, s57
        s_add_u32 s56, s56, {CSP}
        s_cmp_ge_u32 s2, 40
        s_cselect_b32 exec_lo, -1, 0
        s_mov_b32 exec_hi, 0
        ''')
        k(f'buffer_store_dwordx4 v[74:77], v72, {P4(rWS)}, s56 offen sc1', tag='xnst')
        k('s_mov_b64 exec, -1')

        def mod_loads():
            k('s_cmp_lt_u32 s2, 240\ns_cselect_b64 exec, -1, 0')
            for i in range(10):
                k(f'global_load_dwordx4 {vr(216 + 4 * i, 4)}, v20, {P2(pWM)} {self.o["nt"]}')
                if i < 9:
                    k('v_add_u32 v20, 7680, v20')
            k('s_mov_b64 exec, -1')
        if self.o.get('mod_pre', 1):
            mod_loads()
        self.silu10()
        k(f'''
        s_mov_b64 exec, -1
        s_lshr_b32 s56, s2, 3
        s_lshl_b32 s56, s56, 7
        s_and_b32 s57, s2, 7
        s_lshl_b32 s57, s57, 3
        s_add_u32 s56, s56, s57
        s_and_b32 s57, {sr(sW)}, 1
        s_lshl_b32 s57, s57, 2
        s_add_u32 s56, s56, s57
        v_lshl_add_u32 v16, v0, 12, s56
        v_mov_b32 v17, {sr(sTAG)}
        s_mov_b64 exec, 0xff
        ''')
        k.wait('xnst')
        k(f'''
        global_store_dword v16, v17, {P2(pWS)} offset:{SYNC1} sc1
        s_mov_b64 exec, -1
        ''')
        self.stamp('A')
        Lm = k.label('nwb')
        nb_ = self.o.get('wb', 0)

        if self.o.get('mod_first', 0) and not self.o.get('mod_pre', 1):
            mod_loads()
        if nb_:
            k(f'''
            s_cmp_lt_u32 s2, 40
            s_cbranch_scc1 {Lm}
            s_sub_u32 {sr(sWI)}, {sr(sW)}, 1
            ''')
            self.wunits(nb_, 5 + 2 * nb_, 2, check=False)
            k(f'{Lm}:')
        if not self.o.get('mod_first', 0) and not self.o.get('mod_pre', 1):
            mod_loads()
        k(f'{Ls}:')

    def silu10(self):
        k = self.k
        CV = 140
        for i in range(10):
            k(f'v_lshlrev_b32 {vr(CV + i)}, 16, {vr(160 + i // 2)}' if i % 2 == 0 else f'v_and_b32 {vr(CV + i)}, 0xffff0000, {vr(160 + i // 2)}')
            k(f'v_mul_f32 {vr(150 + i)}, {f32(-LOG2E)}, {vr(CV + i)}')
        for op in ('v_exp_f32 {t}, {t}', 'v_add_f32 {t}, 1.0, {t}', 'v_rcp_f32 {t}, {t}', 'v_mul_f32 {c}, {c}, {t}',
                   'v_cvt_pk_bf16_f32 {c}, {c}, {c}', 'v_lshlrev_b32 {c}, 16, {c}'):
            for i in range(10):
                k(op.format(t=vr(150 + i), c=vr(CV + i)))

    def mod_partial(self):
        k = self.k
        LD, CV, V = 216, 140, 68
        L = k.label('nomp')
        k(f's_cmp_lt_u32 {sr(sW)}, 6\ns_cbranch_scc1 {L}\ns_cmp_ge_u32 s2, 240\ns_cbranch_scc1 {L}')
        for i in range(10):
            for j in range(4):
                r = LD + 4 * i + j
                a, b = 76 + 2 * (j % 2), 77 + 2 * (j % 2)
                k(f'v_lshlrev_b32 v{a}, 16, {vr(r)}\nv_and_b32 v{b}, 0xffff0000, {vr(r)}')
                if i == 0:
                    k(f'v_mul_f32 {vr(V + 2 * j)}, v{a}, {vr(CV)}\nv_mul_f32 {vr(V + 2 * j + 1)}, v{b}, {vr(CV)}')
                else:
                    k(f'v_fmac_f32 {vr(V + 2 * j)}, v{a}, {vr(CV + i)}\nv_fmac_f32 {vr(V + 2 * j + 1)}, v{b}, {vr(CV + i)}')
        for i in range(4):
            k(f'v_permlane32_swap_b32 {vr(V + i)}, {vr(V + 4 + i)}')
        for i in range(4):
            k(f'v_add_f32 {vr(V + i)}, {vr(V + i)}, {vr(V + 4 + i)}')
        for i in range(2):
            k(f'v_permlane16_swap_b32 {vr(V + i)}, {vr(V + 2 + i)}')
        for i in range(2):
            k(f'v_add_f32 {vr(V + i)}, {vr(V + i)}, {vr(V + 2 + i)}')
        k(f'''
        v_lshrrev_b32 v76, 4, v0
        v_and_b32 v77, 7, v0
        v_lshlrev_b32 v76, 3, v76
        v_lshl_add_u32 v76, v77, 5, v76
        ''')
        for i in range(2):
            k(f'v_add_f32_dpp {vr(V + i)}, {vr(V + i)}, {vr(V + i)} row_ror:8 row_mask:0xf bank_mask:0xf')
        k(f'''
        v_or_b32 {vr(V)}, 1, {vr(V)}
        v_or_b32 {vr(V + 1)}, 1, {vr(V + 1)}
        s_mov_b32 exec_lo, 0x00ff00ff
        s_mov_b32 exec_hi, 0x00ff00ff
        buffer_store_dwordx2 {vr(V, 2)}, v76, {P4(rWS)}, s69 offen sc1
        s_mov_b64 exec, -1
        ''')
        self.stamp('modp')
        k(f'{L}:')

    def wunits(self, n, end, step, check=True, pol=''):
        k = self.k
        L = k.label('wsd')
        for i in range(n):
            if check:
                k(f's_cmp_ge_u32 {sr(sWI)}, {end}\ns_cbranch_scc1 {L}')
            k(f'''
            s_add_u32 s55, {sr(sWI)}, {sr(sWR)}
            s_sub_u32 s56, s55, 40
            s_cselect_b32 s55, s55, s56
            s_lshl_b32 s56, s55, 11
            s_add_u32 m0, s56, {STG}
            s_mul_i32 s55, s55, {8 * 3456}
            s_add_u32 s55, s55, {sr(sWO)}
            s_add_u32 {sr(sWI)}, {sr(sWI)}, {step}
            ''')
            k(f'buffer_load_dwordx4 v26, {P4(rA)}, s55 offen {pol} lds', tag='wst')
            k(f's_add_u32 m0, s56, {STG + 1024}')
            k(f'buffer_load_dwordx4 v27, {P4(rB)}, s55 offen {pol} lds', tag='wst')
        k(f'{L}:')

    def wread_addr(self, va):
        self.k(f'''
        v_bfe_u32 {vr(va + 1)}, v0, 3, 2
        s_and_b32 s55, {sr(sW)}, 3
        v_xor_b32 {vr(va + 1)}, s55, {vr(va + 1)}
        v_lshrrev_b32 {vr(va)}, 4, v0
        v_lshlrev_b32 {vr(va)}, 10, {vr(va)}
        v_lshl_add_u32 {vr(va)}, {vr(va + 1)}, 5, {vr(va)}
        v_bfe_u32 {vr(va + 1)}, v0, 2, 2
        v_lshl_add_u32 {vr(va)}, {vr(va + 1)}, 7, {vr(va)}
        v_and_b32 {vr(va + 1)}, 3, v0
        v_lshl_add_u32 {vr(va)}, {vr(va + 1)}, 3, {vr(va)}
        v_add_u32 {vr(va)}, {STG}, {vr(va)}
        v_add_u32 {vr(va + 1)}, {10 * 4096}, {vr(va)}
        ''')

    def wstage_read(self, rnd, va):
        k = self.k
        for s in range(20):
            r = WF + 4 * (20 * rnd + s)
            a = va if s < 10 else va + 1
            off = (s % 10) * 4096
            k(f'ds_read_b64_tr_b16 {vr(r, 2)}, {vr(a)} offset:{off}', tag='wrd')
            k(f'ds_read_b64_tr_b16 {vr(r + 2, 2)}, {vr(a)} offset:{off + 512}', tag='wrd')

    def cmul(self, d, a, b):
        self.k(f'v_pk_mul_f32 {vr(d, 2)}, {vr(a, 2)}, {vr(b, 2)} op_sel:[0,0] op_sel_hi:[0,1]')
        self.k(f'v_pk_fma_f32 {vr(d, 2)}, {vr(a, 2)}, {vr(b, 2)}, {vr(d, 2)} op_sel:[1,1,0] op_sel_hi:[1,0,1] neg_lo:[1,0,0]')

    def zpow(self, d, e, a2, fr, t):
        k = self.k
        k(f'''
        v_mul_f32 {vr(t)}, {f32(e)}, {vr(a2)}
        v_mul_f32 {vr(t + 1)}, {f32(e)}, {vr(fr)}
        v_exp_f32 {vr(t)}, {vr(t)}
        v_fract_f32 {vr(t + 1)}, {vr(t + 1)}
        v_cos_f32 {vr(d)}, {vr(t + 1)}
        v_sin_f32 {vr(d + 1)}, {vr(t + 1)}
        v_mul_f32 {vr(d)}, {vr(d)}, {vr(t)}
        v_mul_f32 {vr(d + 1)}, {vr(d + 1)}, {vr(t)}
        ''')

    def kgen(self):
        k = self.k
        Lskip = k.label('nokg')
        k(f's_cmp_ge_u32 {sr(sW)}, 6\ns_cbranch_scc1 {Lskip}')
        A2, FR, T = 28, 29, 30
        Z = {e: 32 + 2 * e for e in range(1, 8)}
        Z8, Z128, QA, QB, PA, PB, PC = 48, 50, 52, 54, 56, 58, 60
        CV = 62
        QF, PF, AC = 64, 176, 192
        RA = 80
        k(f'''
        v_lshlrev_b32 v24, 16, v24
        v_lshlrev_b32 v20, 16, v20
        v_mul_f32 v24, {f32(LOG2E)}, v24
        v_mul_f32 v20, {f32(LOG2E)}, v20
        v_exp_f32 v24, v24
        v_exp_f32 v20, v20
        v_lshlrev_b32 v21, 16, v21
        v_cvt_pk_bf16_f32 v20, v20, v24
        v_and_b32 v24, 0xffff0000, v20
        v_lshlrev_b32 v20, 16, v20
        v_mul_f32 {vr(A2)}, v20, v24
        v_mul_f32 {vr(FR)}, v21, v24
        v_mul_f32 {vr(A2)}, {f32(-LOG2E)}, {vr(A2)}
        v_mul_f32 {vr(FR)}, 0.15915494, {vr(FR)}
        v_add_f32 v24, v24, v24
        v_lshlrev_b32 v22, 16, v22
        v_lshlrev_b32 v23, 16, v23
        v_mul_f32 {vr(QA)}, v22, v24
        v_mul_f32 {vr(QA + 1)}, v23, v24
        s_mul_i32 s60, {sr(sW)}, {KGS}
        s_mov_b32 m0, s60
        v_and_b32 {vr(RA)}, 15, v0
        v_mul_u32_u24 {vr(RA)}, 288, {vr(RA)}
        v_lshrrev_b32 {vr(RA + 1)}, 4, v0
        v_lshl_add_u32 {vr(RA)}, {vr(RA + 1)}, 4, {vr(RA)}
        v_add_u32 {vr(RA)}, s60, {vr(RA)}
        ''')
        self.zpow(Z8, 8.0, A2, FR, T)
        self.zpow(Z[1], 1.0, A2, FR, T)
        self.zpow(Z128, 128.0, A2, FR, T)
        flip = [0]

        def put(row, r, neg=False):
            c = CV + flip[0]
            flip[0] ^= 1
            k(f'v_cvt_pk_bf16_f32 {vr(c)}, {vr(r)}, {"-" if neg else ""}{vr(r + 1)}')
            k(f'ds_write_addtid_b32 {vr(c)} offset:{288 * row}')

        def frags(dst):
            for s in range(4):
                k(f'ds_read_b128 {vr(dst + 4 * s, 4)}, {vr(RA)} offset:{64 * s}')

        def mm(acc):
            for s in range(4):
                c = '0' if s == 0 else vr(acc, 4)
                k(f'v_mfma_f32_16x16x32_bf16 {vr(acc, 4)}, {vr(PF + 4 * s, 4)}, {vr(QF + 4 * s, 4)}, {c}')

        small = [(2, 1, 1), (3, 2, 1), (4, 2, 2), (5, 4, 1), (6, 4, 2), (7, 4, 3)]
        cur, nxt = QA, QB
        for b in range(16):
            if b < 15:
                self.cmul(nxt, cur, Z8)
            put(b, cur, neg=True)
            if b < len(small):
                e, x, y = small[b]
                self.cmul(Z[e], Z[x], Z[y])
            cur, nxt = nxt, cur
        frags(QF)
        self.stage_b_touch()
        k(f'v_mov_b32 {vr(CV)}, 0x3f80')
        k(f'ds_write_addtid_b32 {vr(CV)} offset:0')
        flip[0] = 1
        put(8, Z128)
        cur, nxt = PA, PB
        for e in range(1, 8):
            self.cmul(cur, Z[e], Z128)
            put(e, Z[e])
            put(8 + e, cur)
            cur, nxt = nxt, cur
        frags(PF)
        self.cmul(QA, Z128, Z128)
        self.cmul(QB, QA, Z128)
        mm(AC)
        put(0, QA)
        put(4, QB)
        for e in (1, 2, 3):
            self.cmul(PA, QA, Z[2 * e])
            self.cmul(PB, QB, Z[2 * e])
            put(e, PA)
            put(4 + e, PB)
        cur, nxt = QB, QA
        for a in range(4):
            self.cmul(nxt, cur, Z128)
            self.cmul(PA, nxt, Z[4])
            put(8 + 2 * a, nxt)
            put(9 + 2 * a, PA)
            cur, nxt = nxt, cur
        frags(PF)
        self.cmul(nxt, cur, Z128)
        cur, nxt = nxt, cur
        mm(AC + 4)
        for a in range(9):
            if a < 8:
                self.cmul(nxt, cur, Z128)
            put(a, cur)
            cur, nxt = nxt, cur
        frags(PF)
        k(f'''
        v_lshrrev_b32 {vr(RA + 1)}, 4, v0
        v_mul_u32_u24 {vr(RA + 1)}, 320, {vr(RA + 1)}
        v_and_b32 {vr(RA + 2)}, 15, v0
        v_lshl_add_u32 {vr(RA + 1)}, {vr(RA + 2)}, 2, {vr(RA + 1)}
        s_mul_i32 s55, {sr(sW)}, {KCS}
        s_add_u32 s55, s55, {KC}
        v_add_u32 {vr(RA + 1)}, s55, {vr(RA + 1)}
        ''')
        for Tt in range(2):
            for i in range(4):
                k(f'ds_write_b32 {vr(RA + 1)}, {vr(AC + 4 * Tt + i)} offset:{(16 * Tt + i) * 80}', tag='kcw')
        mm(AC + 8)
        for i in range(4):
            k(f'ds_write_b32 {vr(RA + 1)}, {vr(AC + 8 + i)} offset:{(32 + i) * 80}', tag='kcw')
        wk = self.o.get('wk', 5)
        if wk:
            k(f's_cmp_ge_u32 {sr(sW)}, 4\ns_cbranch_scc1 {Lskip}')
            k(f's_add_u32 {sr(sWI)}, {sr(sW)}, {5 + 2 * self.o.get("wb", 0)}')
            self.wunits(wk, min(40, 5 + 2 * self.o.get('wb', 0) + 4 * wk), 4)
        k(f'{Lskip}:')

    def kexpand1(self):
        k = self.k
        V = lambda ch, j: 36 + 4 * ch + j
        PK, SC = 48, 54
        k(f'''
        v_lshlrev_b32 v25, 16, v25
        v_cmp_eq_u32 s[58:59], 0, v208
        v_readlane_b32 s62, v25, 0
        v_readlane_b32 s63, v25, 1
        v_readlane_b32 s64, v25, 2
        v_mov_b32 v64, 0
        v_mov_b32 v65, 0
        v_mov_b32 v66, 0
        v_mov_b32 v67, 0
        v_lshlrev_b32 v35, 4, v0
        ''')
        for ch in range(3):
            k(f'v_mov_b32 {vr(SC + ch)}, s{62 + ch}')
            k(f'v_cndmask_b32 {vr(SC + ch)}, 0, {vr(SC + ch)}, s[58:59]')
        k.wait('kcw')
        k('s_barrier')
        self.stamp('kcw')
        if self.o.get('pre1', 2) == 1:
            L = self.only_wave(0)
            self.poll_sync1_issue(215, 68)
            k(f'{L}:')
        for ch in range(3):
            for j in range(4):
                k(f'ds_read2st64_b32 {vr(176 + 8 * ch + 2 * j, 2)}, {vr(GA + j)} offset0:{30 * ch} offset1:{30 * ch + 15}')
        L = self.only_wave(7)
        k(f's_mov_b32 exec_lo, -1\ns_mov_b32 exec_hi, 0x3ff')
        k(f'ds_write_b128 v35, v[64:67] offset:{XNL0 - 672}', tag='kaw')
        k(f's_mov_b64 exec, 3')
        for ch in range(3):
            k(f'ds_write_b128 v35, v[64:67] offset:{KA + ch * KAS}', tag='kaw')
        k(f's_mov_b64 exec, -1')
        k(f'{L}:')
        done = min(40, 5 + 2 * self.o.get('wb', 0) + 4 * self.o.get('wk', 5))
        if done < 40:
            k(f's_add_u32 {sr(sWI)}, {sr(sW)}, {done}')
            self.wunits((40 - done + 7) // 8, 40, 8)
        for ch in range(3):
            for j in range(4):
                k(f'v_add_f32 {vr(V(ch, j))}, {vr(176 + 8 * ch + 2 * j)}, {vr(177 + 8 * ch + 2 * j)}')
            k(f'v_add_f32 {vr(V(ch, 0))}, {vr(V(ch, 0))}, {vr(SC + ch)}')
        for ch in range(3):
            k(f'v_cvt_pk_bf16_f32 {vr(PK + 2 * ch)}, {vr(V(ch, 0))}, {vr(V(ch, 1))}')
            k(f'v_cvt_pk_bf16_f32 {vr(PK + 2 * ch + 1)}, {vr(V(ch, 2))}, {vr(V(ch, 3))}')
            k(f'ds_write_b64 v208, {vr(PK + 2 * ch, 2)} offset:{KA + ch * KAS + 32}', tag='kaw')
        if self.o.get('pre1', 2) == 2:
            L = self.only_wave(0)
            self.poll_sync1_issue(215, 68)
            k(f'{L}:')
        for j in range(1, 4):
            for ch in range(3):
                k(f'v_add_f32 {vr(V(ch, j))}, {vr(V(ch, j))}, {vr(V(ch, j - 1))}')
        for n in (1, 2, 4, 8):
            for ch in range(3):
                src = V(ch, 3) if n == 1 else SC + ch
                k(f'v_add_f32_dpp {vr(SC + ch)}, {vr(src)}, {vr(src)} row_shr:{n} row_mask:0xf bank_mask:0xf bound_ctrl:0')
        for ch in range(3):
            k(f'v_add_f32_dpp {vr(SC + ch)}, {vr(SC + ch)}, {vr(SC + ch)} row_bcast:15 row_mask:0xa bank_mask:0xf')
        for ch in range(3):
            k(f'v_add_f32_dpp {vr(SC + ch)}, {vr(SC + ch)}, {vr(SC + ch)} row_bcast:31 row_mask:0xc bank_mask:0xf')
        k(f'''
        s_lshl_b32 s55, {sr(sW)}, 2
        s_add_u32 s55, s55, {WT}
        v_mov_b32 v33, s55
        s_mov_b32 exec_lo, 0
        s_brev_b32 exec_hi, 1
        ''')
        for ch in range(3):
            k(f'ds_write_b32 v33, {vr(SC + ch)} offset:{32 * ch}', tag='kaw')
        k('s_mov_b64 exec, -1')

    def kexpand2(self):
        k = self.k
        V = lambda ch, j: 36 + 4 * ch + j
        SC = 54
        k(f'''
        v_min_u32 v33, 23, v0
        v_lshlrev_b32 v33, 2, v33
        v_add_u32 v33, {WT}, v33
        ds_read_b32 v34, v33
        v_and_b32 v33, 7, v0
        v_cmp_gt_u32 vcc, {sr(sW)}, v33
        ''')
        for ch in range(3):
            k(f'v_sub_f32 {vr(SC + ch)}, {vr(SC + ch)}, {vr(V(ch, 3))}')
        k('v_cndmask_b32 v34, 0, v34, vcc')
        for n in (1, 2, 4):
            k(f'v_add_f32_dpp v34, v34, v34 row_shr:{n} row_mask:0xf bank_mask:0xf bound_ctrl:0')
        k(f'''
        v_readlane_b32 s62, v34, 7
        v_readlane_b32 s63, v34, 15
        v_readlane_b32 s64, v34, 23
        ''')
        for ch in range(3):
            k(f'v_add_f32 {vr(SC + ch)}, s{62 + ch}, {vr(SC + ch)}')
            for j in range(4):
                k(f'v_add_f32 {vr(V(ch, j))}, {vr(V(ch, j))}, {vr(SC + ch)}')
            k(f'ds_write_b128 v209, {vr(V(ch, 0), 4)} offset:{SA + ch * SAS}', tag='saw')

    def conv_loads(self):
        k = self.k
        k(f'''
        s_lshl_b32 s60, {sr(sW)}, 10
        s_mov_b32 s57, {XN}
        s_mov_b32 s58, {MS}
        ''')
        L = self.only_wave(0)
        self.poll_sync1(215, 68, preissued=self.o.get('pre1', 2))
        k(f'{L}:')
        self.stamp('polled')
        k.wait('kaw', 'wst')
        self.stamp('wland')
        k('s_barrier')
        self.stamp('sync1')
        k(f's_add_u32 m0, s60, {XNL0}')
        k(f'buffer_load_dwordx4 v210, {P4(rWS)}, s57 offen sc1 lds', tag='xnl')
        L = k.label('x2')
        k(f's_cmp_ge_u32 {sr(sW)}, 4\ns_cbranch_scc1 {L}\ns_add_u32 m0, s60, {XNL0 + 8192}')
        k(f'buffer_load_dwordx4 v211, {P4(rWS)}, s57 offen sc1 lds', tag='xnl')
        k(f'{L}:\ns_add_u32 m0, s60, {MSL}')
        k(f'buffer_load_dwordx4 v212, {P4(rWS)}, s58 offen sc1 lds', tag='xnl')
        if self.o.get('pf1', 2) == 1:
            L = k.label('npf')
            k(f'''
            s_cmp_ge_u32 {sr(sW)}, 2
            s_cbranch_scc1 {L}
            s_cmp_eq_u32 {sr(sW)}, 0
            s_cselect_b32 s56, s{pWG}, s{pWU}
            s_cselect_b32 s57, s{pWG + 1}, s{pWU + 1}
            s_mul_i32 s55, {sr(sWR)}, {8 * 3456}
            s_lshl_b32 s58, {sr(sNB)}, 7
            s_add_u32 s55, s55, s58
            s_add_u32 s55, s55, {320 * 3456}
            ''')
            self.touch(56, 640 * 1728 * 2, 's55', stride=3456, lanes=40)
            k(f'{L}:')

    def conv_consts(self):
        k = self.k
        Lr, Ld = k.label('mr'), k.label('md')
        chk = f'''
        v_min_u32 v16, v17, v23
        v_cmp_eq_u32 vcc, 0, v16
        s_cbranch_vccz {Ld}
        '''
        k(chk)
        k(f'''
        {Lr}:
        global_load_dword v17, v88, {P2(pWS)} sc1
        global_load_dword v23, v88, {P2(pWS)} offset:1024 sc1
        ''')
        k(chk)
        k(f'''
        s_sleep {self.o.get('sleep', 2)}
        s_add_u32 {sr(sSPIN)}, {sr(sSPIN)}, 1
        s_cmp_lt_u32 {sr(sSPIN)}, {SPIN_MAX}
        s_cbranch_scc1 {Lr}
        {Ld}:
        v_add_f32 v17, v17, v23
        v_add_f32_dpp v17, v17, v17 quad_perm:[1,0,3,2] row_mask:0xf bank_mask:0xf
        v_add_f32_dpp v17, v17, v17 quad_perm:[2,3,0,1] row_mask:0xf bank_mask:0xf
        v_cvt_pk_bf16_f32 v17, v17, v17
        v_lshlrev_b32 v17, 16, v17
        v_add_f32 v16, 1.0, v17
        v_cvt_pk_bf16_f32 v16, v16, v16
        v_lshlrev_b32 v16, 16, v16
        ''')
        for ch in range(3):
            k(f'v_readlane_b32 s55, v17, {4 * (6 + ch)}')
            k(f'v_readlane_b32 {sr(sCH + 3 * ch + 2)}, v16, {4 * (9 + ch)}')
            k(f'v_mul_f32 v18, s55, v16\nv_mul_f32 v19, s55, v17')
            k(f'v_readlane_b32 {sr(sCH + 3 * ch)}, v18, {4 * (3 + ch)}')
            k(f'v_readlane_b32 {sr(sCH + 3 * ch + 1)}, v19, {4 * ch}')

    def conv(self, setup_only=False):
        k = self.k
        H, KF, ACC, AX = 32, 64, 176, 208
        vHB, vKB, vH, vK, vXB, vSB, vO = 1, 2, 3, 4, 5, 6, 7
        XV, SV, TT, MV = 212, 216, 224, 244
        sL, sG, sC, sN = 65, 66, 67, 68
        sG2, sC2, sM, sO, sME, sOE = 94, 95, 96, 97, 98, 99
        U = lambda G, ch: 4 * ch + G
        lists = self.o.get('units') or [[U(3, 0)], [U(3, 1)], [U(3, 2)], [U(2, 0)], [U(0, 0), U(1, 0)], [U(0, 1), U(1, 1)],
                                        [U(0, 2), U(2, 2)], [U(1, 2), U(2, 1)]]
        lo = sum(lists[w][0] << (4 * w) for w in range(8))
        hi = sum(lists[w][1] << (4 * (w - 4)) for w in range(4, 8))
        hs = lambda m: H + 4 * (m % 8)
        ks = lambda q: KF + 4 * (q % 4)

        def ldh(slot_m, base, off):
            k(f'ds_read_b64_tr_b16 {vr(hs(slot_m), 2)}, {vr(base)} offset:{off}')
            k(f'ds_read_b64_tr_b16 {vr(hs(slot_m) + 2, 2)}, {vr(base)} offset:{off + 96}')

        def ldk(q, off):
            k(f'ds_read_b64_tr_b16 {vr(ks(q), 2)}, {vr(vK)} offset:{off + 32}')
            k(f'ds_read_b64_tr_b16 {vr(ks(q) + 2, 2)}, {vr(vK)} offset:{off}')

        def mf(acc, m, q, zero=False):
            c = '0' if zero else vr(acc, 4)
            k(f'v_mfma_f32_16x16x32_bf16 {vr(acc, 4)}, {vr(hs(m), 4)}, {vr(ks(q), 4)}, {c}')

        def decode(code):
            k(f"""
            s_and_b32 {sr(sG)}, {code}, 3
            s_bfe_u32 {sr(sC)}, {code}, 0x20002
            s_mul_i32 s55, {sr(sG)}, 3072
            s_lshl_b32 s56, {sr(sC)}, 4
            s_add_u32 s55, s55, s56
            v_add_u32 {vr(vH)}, s55, {vr(vHB)}
            v_add_u32 v8, s55, {vr(vXB)}
            s_mul_i32 s56, {sr(sC)}, {KAS}
            v_add_u32 {vr(vK)}, s56, {vr(vKB)}
            s_lshl_b32 s55, {sr(sC)}, 13
            s_lshl_b32 s56, {sr(sG)}, 11
            s_add_u32 s55, s55, s56
            s_add_u32 s55, s55, {SA}
            v_lshl_add_u32 {vr(vSB)}, v0, 2, s55
            s_add_u32 s56, s56, {MSL}
            v_lshl_add_u32 v22, v0, 2, s56
            """)

        def first_loads():
            ldk(0, 0)
            for i in (7, 6, 5, 4, 3, 2, 1, 0):
                ldh(i, vH, 384 * i)
            ldk(1, 256)
            k(f'v_subrev_u32 v11, 768, {vr(vH)}\nv_subrev_u32 {vr(vH)}, 3840, {vr(vH)}')

        def const_loads():
            k(f'global_load_dword v17, v88, {P2(pWS)} sc1\nglobal_load_dword v23, v88, {P2(pWS)} offset:1024 sc1')

        def tab_loads():
            k(f'global_load_dwordx2 v[12:13], v90, {P2(pWS)} sc1\nglobal_load_dwordx2 v[14:15], v90, {P2(pWS)} offset:2560 sc1')

        def wdma(part):
            if self.o.get('x_cnow'):
                return
            if part == 0:
                k(f's_mov_b32 m0, {sr(sM)}')
                k(f'buffer_load_dwordx4 v26, {P4(rA)}, {sr(sO)} offen lds', tag='wst')
            else:
                k(f's_add_u32 m0, {sr(sM)}, 1024\ns_add_u32 {sr(sM)}, {sr(sM)}, 2048')
                k(f'buffer_load_dwordx4 v27, {P4(rB)}, {sr(sO)} offen lds', tag='wst')
                k(f's_add_u32 {sr(sO)}, {sr(sO)}, {8 * 3456}\ns_min_u32 {sr(sM)}, {sr(sM)}, {sr(sME)}\ns_min_u32 {sr(sO)}, {sr(sO)}, {sr(sOE)}')

        def base_ops(i):
            xr, t, u = XV + i // 2, TT + 11 + i, TT + 1 + i
            return [f'v_lshlrev_b32 {vr(t)}, 16, {vr(xr)}' if i % 2 == 0 else f'v_and_b32 {vr(t)}, 0xffff0000, {vr(xr)}',
                    f'v_and_b32 {vr(u)}, 0xffff0000, {vr(MV + i)}',
                    f'v_lshlrev_b32 {vr(MV + i)}, 16, {vr(MV + i)}',
                    f'v_fmac_f32 {vr(MV + i)}, {vr(t)}, {vr(u)}']

        def mfma_part(dma, consts, tabs, maybe_short, hook=None):
            Lloop, Ltail = k.label('cl'), k.label('ct')
            for e in range(4):
                k(f'v_mov_b32 {vr(AX + e)}, 0')
            k(f's_mov_b32 {sr(sN)}, {sr(sG)}')
            mf(ACC + 28, 7, 0, True)
            mf(ACC + 24, 6, 0, True)
            ldh(6, 11, 0)
            ldh(7, 11, 384)
            for i in (5, 4, 3, 2, 1, 0):
                mf(ACC + 4 * i, i, 0, True)
            if maybe_short:
                k(f's_cmp_eq_u32 {sr(sN)}, 0\ns_cbranch_scc1 {Ltail}')
            k(f'{Lloop}:')
            for u in range(1, 5):
                mf(ACC + 28, 7 - 2 * u, u)
                mf(ACC + 24, 6 - 2 * u, u)
                ldh(6 - 2 * u, vH, 384 * (8 - 2 * u))
                ldh(7 - 2 * u, vH, 384 * (9 - 2 * u))
                ldk(u + 1, 256 * (u + 1))
                for i in (5, 4, 3, 2, 1, 0):
                    mf(ACC + 4 * i, i - 2 * u, u)
                    if self.o.get('wslow', 1):
                        if dma and i == 3:
                            wdma((u + 1) % 2)
                    else:
                        if dma and i == 5:
                            wdma(0)
                        if dma and i == 2:
                            wdma(1)
                    if i == 4 and u == 2 and consts:
                        const_loads()
                    if i == 4 and u == 3 and tabs and not self.o.get('tab_tail', 1):
                        tab_loads()
                    if u == 4 and i == 1:
                        k(f's_sub_u32 {sr(sN)}, {sr(sN)}, 1')
                        k(f'v_subrev_u32 {vr(vH)}, 3072, {vr(vH)}\nv_add_u32 {vr(vK)}, 1024, {vr(vK)}')
                mf(AX, 1 - 2 * u, u - 1)
            if hook:
                hook()
            k(f's_cmp_lg_u32 {sr(sN)}, 0\ns_cbranch_scc1 {Lloop}\n{Ltail}:')
            if tabs and self.o.get('tab_tail', 1):
                tab_loads()
            ldk(2, 512)
            for i in (7, 6, 5, 4, 3, 2):
                mf(ACC + 4 * i, i - 2, 1)
                if dma and self.o.get('wslow', 1) and i in (6, 3):
                    wdma(0 if i == 6 else 1)
            ldk(3, 768)
            k(f'ds_read_b64_tr_b16 {vr(XV, 2)}, v8')
            k(f'ds_read_b64_tr_b16 {vr(XV + 2, 2)}, v8 offset:1536')
            for i in range(4):
                k(f'ds_read2st64_b32 {vr(SV + 2 * i, 2)}, {vr(vSB)} offset0:{2 * i} offset1:{2 * i + 1}')
            for i in range(4):
                k(f'ds_read2st64_b32 {vr(MV + 2 * i, 2)}, v22 offset0:{2 * i} offset1:{2 * i + 1}')
            pre = []
            if self.o.get('cpre', 1):
                for i in range(8):
                    pre += base_ops(i)
            for i in (7, 6, 5, 4):
                mf(ACC + 4 * i, i - 4, 2)
            for i in (7, 6):
                mf(ACC + 4 * i, i - 6, 3)
                for x in pre[:16]:
                    k(x)
                pre = pre[16:]

        def epilogue(g, c, consts):
            SH = 'wave_shr:1 row_mask:0xf bank_mask:0xf'
            RO = 'wave_ror:1 row_mask:0xf bank_mask:0xf'
            a = lambda i, e: (AX if i < 0 else ACC + 4 * i) + e
            t2 = lambda i: TT + 1 + i
            t1 = lambda i: TT + 11 + i
            k(f"""
            s_add_u32 s58, {sr(sD0)}, {sr(c)}
            s_mul_i32 s58, s58, {X1R}
            s_lshl_b32 s59, {sr(g)}, 10
            s_add_u32 s58, s58, s59
            s_add_u32 s59, s58, {X1S}
            s_add_u32 s58, s58, {X1T}
            """)
            k(f'v_add_f32_dpp {vr(t2(-1))}, {vr(a(-1, 3))}, {vr(a(-1, 2))} {SH} bound_ctrl:0')
            for i in range(8):
                k(f'v_add_f32_dpp {vr(t2(i))}, {vr(a(i - 1, 3))}, {vr(a(i, 2))} {RO}')
            for i in range(8):
                k(f'v_add_f32_dpp {vr(t2(i))}, {vr(a(i, 3))}, {vr(a(i, 2))} {SH}')
            k(f'v_add_f32_dpp {vr(t1(-1))}, {vr(t2(-1))}, {vr(a(-1, 1))} {SH} bound_ctrl:0')
            for i in range(8):
                k(f'v_add_f32_dpp {vr(t1(i))}, {vr(t2(i - 1))}, {vr(a(i, 1))} {RO}')
            for i in range(8):
                k(f'v_add_f32_dpp {vr(t1(i))}, {vr(t2(i))}, {vr(a(i, 1))} {SH}')
            for i in range(8):
                k(f'v_add_f32_dpp {vr(a(i, 3))}, {vr(t1(i - 1))}, {vr(a(i, 0))} {RO}')
            for i in range(8):
                k(f'v_add_f32_dpp {vr(a(i, 3))}, {vr(t1(i))}, {vr(a(i, 0))} {SH}')
            if not self.o.get('cpre', 1):
                for i in range(8):
                    for x in base_ops(i):
                        k(x)
            if consts:
                self.conv_consts()
            k(f"""
            s_cmp_eq_u32 {sr(c)}, 1
            s_cselect_b32 s55, {sr(sCH + 3)}, {sr(sCH)}
            s_cselect_b32 s56, {sr(sCH + 4)}, {sr(sCH + 1)}
            s_cselect_b32 s57, {sr(sCH + 5)}, {sr(sCH + 2)}
            s_cmp_eq_u32 {sr(c)}, 2
            s_cselect_b32 s55, {sr(sCH + 6)}, s55
            s_cselect_b32 s56, {sr(sCH + 7)}, s56
            s_cselect_b32 s57, {sr(sCH + 8)}, s57
            """)
            for i in range(8):
                k(f'v_fmac_f32 {vr(MV + i)}, s56, {vr(SV + i)}')
            for i in range(8):
                k(f'v_fmac_f32 {vr(MV + i)}, s55, {vr(a(i, 3))}')
            for i in range(4):
                k(f'v_cvt_pk_bf16_f32 {vr(XV + i)}, {vr(MV + 2 * i)}, {vr(MV + 2 * i + 1)}')
            for i in range(8):
                k(f'v_mul_f32 {vr(MV + i)}, s57, {vr(MV + i)}')
            k(f'buffer_store_dwordx4 {vr(XV, 4)}, {vr(vO)}, {P4(rWS)}, s58 offen sc1', tag='x1st')
            for i in range(4):
                k(f'v_cvt_pk_bf16_f32 {vr(SV + i)}, {vr(MV + 2 * i)}, {vr(MV + 2 * i + 1)}')
            k(f'buffer_store_dwordx4 {vr(SV, 4)}, {vr(vO)}, {P4(rWS)}, s59 offen sc1', tag='x1st')

        if setup_only:
            if self.o.get('wslow', 1):
                cnt = [7, 7, 7, 5, 3, 3, 4, 4]
                st = [sum(cnt[:w]) for w in range(8)]
                pk = lambda v: (sum(x << (8 * i) for i, x in enumerate(v[:4])), sum(x << (8 * i) for i, x in enumerate(v[4:])))
                a, b = pk(st), pk([x + c - 1 for x, c in zip(st, cnt)])
                wrange = f'''s_cmp_lt_u32 {sr(sW)}, 4
            s_mov_b32 s55, {a[1]}
            s_cmov_b32 s55, {a[0]}
            s_mov_b32 s56, {b[1]}
            s_cmov_b32 s56, {b[0]}
            s_and_b32 s57, {sr(sW)}, 3
            s_lshl_b32 s57, s57, 3
            s_lshr_b32 s55, s55, s57
            s_lshr_b32 s56, s56, s57
            s_and_b32 s55, s55, 0xff
            s_and_b32 s56, s56, 0xff'''
            else:
                wrange = f's_mul_i32 s55, {sr(sW)}, 11\ns_add_u32 s56, s55, 10\ns_min_u32 s56, s56, 39'
            k(f"""
        s_lshl_b32 s55, {sr(sW)}, 2
        s_lshr_b32 {sr(sL)}, {hex(lo)}, s55
        v_lshlrev_b32 {vr(vO)}, 4, v0
        {wrange}
        s_lshl_b32 {sr(sM)}, s55, 11
        s_add_u32 {sr(sM)}, {sr(sM)}, {STG}
        s_lshl_b32 {sr(sME)}, s56, 11
        s_add_u32 {sr(sME)}, {sr(sME)}, {STG}
        s_add_u32 s55, s55, 40
        s_mul_i32 {sr(sO)}, s55, {8 * 3456}
        s_add_u32 s56, s56, 40
        s_mul_i32 {sr(sOE)}, s56, {8 * 3456}
        """)
            decode(sr(sL))
            return
        Ly, Ld = k.label('cy'), k.label('cdone')
        self.stamp('prexn')
        k.wait('xnl', 'saw', 'wrd')
        self.stamp('xnland')
        k(f's_cmp_ge_u32 {sr(sW)}, 4\ns_cbranch_scc1 {Ly}')
        k('s_barrier')
        self.stamp('xnl')
        first_loads()
        if self.o.get('pf1', 2) == 3:
            L = k.label('npf')
            k(f'''
            s_cmp_ge_u32 {sr(sW)}, 2
            s_cbranch_scc1 {L}
            s_cmp_eq_u32 {sr(sW)}, 0
            s_cselect_b32 s56, s{pWG}, s{pWU}
            s_cselect_b32 s57, s{pWG + 1}, s{pWU + 1}
            s_mul_i32 s55, {sr(sWR)}, {8 * 3456}
            s_lshl_b32 s58, {sr(sNB)}, 7
            s_add_u32 s55, s55, s58
            s_add_u32 s55, s55, {320 * 3456}
            ''')
            self.touch(56, 640 * 1728 * 2, 's55', stride=3456, lanes=40)
            k(f'{L}:')
        mfma_part(True, True, True, False)
        self.stamp('c_mm')
        epilogue(sG, sC, True)
        self.g1_addr_early()
        k(f's_branch {Ld}')
        k(f'{Ly}:')
        if self.o.get('prio', True):
            k('s_setprio 2')
        k('s_barrier')
        self.stamp('xnl')
        first_loads()
        const_loads()
        mfma_part(False, True, False, True)
        self.stamp('y_m1')
        k(f"""
        s_mov_b32 {sr(sG2)}, {sr(sG)}
        s_mov_b32 {sr(sC2)}, {sr(sC)}
        s_lshl_b32 s55, {sr(sW)}, 2
        s_lshr_b32 {sr(sL)}, {hex(hi << 16)}, s55
        """)
        decode(sr(sL))
        first_loads()
        epilogue(sG2, sC2, True)
        self.stamp('y_e1')
        def pub(g, only=None):
            Ln = k.label('npub')
            k(f"""
            {f's_cmp_lg_u32 {sr(g)}, {only}' if only is not None else f's_cmp_ge_u32 {sr(g)}, {2 if self.o.get("s2c", 0) else 1}'}
            s_cbranch_scc1 {Ln}
            s_sub_u32 s55, {sr(sW)}, 4
            s_min_u32 s55, s55, 2
            s_lshl_b32 s55, s55, 3
            s_add_u32 s55, s55, {sr(sMB)}
            s_mul_i32 s56, {sr(g)}, {(SYNC2C - SYNC2A) // 128}
            s_add_u32 s55, s55, s56
            """)
            k.wait('x1st')
            self.arrive(SYNC2A, 24, 's55', 9)
            self.stamp('pub0')
            k(f'{Ln}:')
        Lp = k.label('kp')
        if self.o.get('prio1', 1) and self.o.get('s2c', 0):
            k(f's_cmp_eq_u32 {sr(sG)}, 1\ns_cbranch_scc1 {Lp}')
        k(f's_setprio 0\n{Lp}:')
        self.g1_addr_early()
        hook = None
        if self.o.get('s2c', 0) == 2:
            pub(sG2, only=0)

            def hook():
                pub(sG2, only=1)
                k(f's_mov_b32 {sr(sG2)}, 3')
        else:
            pub(sG2)
        self.stamp('y_p1')
        mfma_part(bool(self.o.get('wslow', 1)), False, True, False, hook)
        self.stamp('c_mm')
        epilogue(sG, sC, False)
        self.stamp('y_e2')
        k('s_setprio 0')
        if self.o.get('s2c', 0):
            pub(sG)
        k(f'{Ld}:')
        self.stamp('conv')

    def window2(self):
        k = self.k
        AC, TF, CB = 32, 16, 92
        Lr, Ld = k.label('tb'), k.label('tbd')
        chk = f'''
        v_min_u32 v16, v12, v13
        v_min3_u32 v16, v16, v14, v15
        v_cmp_eq_u32 vcc, 0, v16
        s_cbranch_vccz {Ld}
        '''
        k(chk)
        k(f'''
        {Lr}:
        global_load_dwordx2 v[12:13], v90, {P2(pWS)} sc1
        global_load_dwordx2 v[14:15], v90, {P2(pWS)} offset:2560 sc1
        ''')
        k(chk)
        k(f'''
        s_sleep {self.o.get('sleep', 2)}
        s_add_u32 {sr(sSPIN)}, {sr(sSPIN)}, 1
        s_cmp_lt_u32 {sr(sSPIN)}, {SPIN_MAX}
        s_cbranch_scc1 {Lr}
        {Ld}:
        v_and_b32 v14, 0xffff0000, v14
        v_and_b32 v15, 0xffff0000, v15
        v_add_f32 v14, 1.0, v14
        v_add_f32 v15, 1.0, v15
        s_mov_b32 s55, 0x07060302
        v_cvt_pk_bf16_f32 v14, v14, v15
        v_perm_b32 v12, v13, v12, s55
        v_lshlrev_b32 v20, 2, v89
        v_add_u32 v20, {TAB}, v20
        ''')
        k(f'ds_write_b32 v20, v14', tag='tabw')
        k(f'ds_write_b32 v20, v12 offset:1280', tag='tabw')
        self.g1_setup()
        L = self.only_wave(0)
        self.poll(7, 5, 27, nl=24)
        k(f'{L}:')
        k.wait('wst', 'tabw')
        k('s_barrier')
        self.stamp('barX')
        if self.o['stop'] != 'conv':
            for c in range(2):
                for i in range(2):
                    self.g1_dma(c, i)

        self.wstage_read(1, 10)
        if self.o.get('c2early', 1) and self.o['stop'] != 'conv':
            for i in range(2):
                self.g1_dma(2, i)
        Lj = k.label('csj')
        k(f'''
        s_cmp_ge_u32 {sr(sW)}, 4
        s_cbranch_scc1 {Lj}
        s_mul_i32 s55, {sr(sM1)}, 160
        v_add_u32 v8, s55, v8
        ''')
        for n in range(5):
            k(f'ds_read_b128 {vr(48 + 4 * n, 4)}, v8 offset:{32 * n}')
        Lv = [k.label('csv') for _ in range(8)]
        Le = k.label('cse')
        for m in range(1, 8):
            k(f's_cmp_eq_u32 {sr(sM1)}, {m}\ns_cbranch_scc1 {Lv[m]}')
        for m in range(8):
            k(f'{Lv[m]}:')
            for n in range(5):
                c = '0' if n == 0 else vr(AC, 16)
                k(f'v_mfma_f32_32x32x16_bf16 {vr(AC, 16)}, {vr(48 + 4 * n, 4)}, {vr(WF + 4 * (5 * m + n), 4)}, {c}')
            if m < 7:
                k(f's_branch {Le}')
        k(f'''
        {Le}:
        s_lshl_b32 s55, {sr(sNB)}, 3
        s_add_u32 s55, s55, {sr(sM1)}
        s_lshl_b32 s55, s55, 2
        s_add_u32 s55, s55, {sr(sW)}
        s_lshl_b32 s55, s55, 8
        s_add_u32 s55, s55, {CSP}
        v_lshlrev_b32 v9, 3, v0
        v_or_b32 {vr(AC)}, 1, {vr(AC)}
        v_or_b32 {vr(AC + 1)}, 1, {vr(AC + 1)}
        s_mov_b32 exec_hi, 0
        buffer_store_dwordx2 {vr(AC, 2)}, v9, {P4(rWS)}, s55 offen sc1
        s_mov_b32 exec_hi, -1
        {Lj}:
        ''')
        k.wait('x1st', 'wrd', 'ch0')
        k('s_barrier')
        self.stamp('barY')
        L = self.only_wave(4)
        k(f'''
        s_mul_i32 s55, {sr(sQ)}, 0x5556
        s_lshr_b32 s55, s55, 16
        s_mul_i32 s55, s55, 3
        s_sub_u32 s55, {sr(sQ)}, s55
        s_lshl_b32 s55, s55, 3
        s_add_u32 s55, s55, {sr(sMB)}
        ''')
        self.arrive(SYNC2B, 24, 's55', 12)
        k(f'{L}:')

    def cs_loads(self):
        k = self.k
        for j in range(4):
            k(f'global_load_dwordx2 {vr(80 + 2 * j if j < 3 else 88, 2)}, v79, {P2(pWS)} offset:{1024 * j} sc1')

    def cs_addr(self):
        self.k(f'''
        s_lshl_b32 s55, {sr(sNB)}, 13
        s_and_b32 s56, {sr(sW)}, 3
        s_lshl_b32 s56, s56, 8
        s_add_u32 s55, s55, s56
        s_add_u32 s55, s55, {CSP}
        v_lshrrev_b32 v79, 5, v0
        v_lshlrev_b32 v79, 12, v79
        v_and_b32 v78, 31, v0
        v_lshl_add_u32 v79, v78, 3, v79
        v_add_u32 v79, s55, v79
        ''')

    def cs_finish(self):
        k = self.k
        CB = 92
        Lr, Ld = k.label('cr'), k.label('cd')
        chk = f'''
        v_min3_u32 v90, v80, v81, v82
        v_min3_u32 v90, v90, v83, v84
        v_min3_u32 v90, v90, v85, v88
        v_min_u32 v90, v90, v89
        v_cmp_eq_u32 vcc, 0, v90
        s_cbranch_vccz {Ld}
        '''
        k(chk)
        k(f'{Lr}:\ns_sleep {self.o.get("sleep", 2)}')
        self.cs_loads()
        k(chk)
        k(f'''
        s_add_u32 {sr(sSPIN)}, {sr(sSPIN)}, 1
        s_cmp_lt_u32 {sr(sSPIN)}, {SPIN_MAX}
        s_cbranch_scc1 {Lr}
        {Ld}:
        v_add_f32 v80, v80, v82
        v_add_f32 v81, v81, v83
        v_add_f32 v84, v84, v88
        v_add_f32 v85, v85, v89
        v_add_f32 v80, v80, v84
        v_add_f32 v81, v81, v85
        v_mov_b32 v82, v80
        v_mov_b32 v83, v81
        v_cmp_gt_u32 vcc, 32, v0
        v_permlane32_swap_b32 v80, v82
        v_permlane32_swap_b32 v81, v83
        v_mov_b32 {vr(CB + 2)}, 0
        v_mov_b32 {vr(CB + 3)}, 0
        v_add_f32 v80, v80, v82
        v_add_f32 v81, v81, v83
        v_cvt_pk_bf16_f32 v82, v80, v81
        v_lshlrev_b32 v83, 16, v82
        v_and_b32 v84, 0xffff0000, v82
        v_sub_f32 v80, v80, v83
        v_sub_f32 v81, v81, v84
        v_cvt_pk_bf16_f32 v80, v83, v80
        v_cvt_pk_bf16_f32 v81, v84, v81
        v_cndmask_b32 {vr(CB)}, 0, v80, vcc
        v_cndmask_b32 {vr(CB + 1)}, 0, v81, vcc
        ''')

    def g1_addr_early(self):
        self.k(f'''
        v_lshrrev_b32 v18, 3, v0
        v_mul_u32_u24 v24, {X1R}, v18
        v_bfe_u32 v18, v0, 4, 1
        v_lshlrev_b32 v18, 2, v18
        v_and_b32 v19, 7, v0
        v_xor_b32 v18, v18, v19
        v_lshl_add_u32 v24, v18, 4, v24
        v_lshrrev_b32 v18, 5, v0
        v_bfe_u32 v19, v0, 2, 2
        v_lshl_add_u32 v18, v18, 3, v19
        v_lshlrev_b32 v25, 7, v18
        v_lshrrev_b32 v19, 1, v19
        s_lshr_b32 s55, {sr(sW)}, 2
        v_xor_b32 v19, s55, v19
        v_lshl_add_u32 v25, v19, 6, v25
        v_bfe_u32 v19, v0, 4, 1
        v_lshl_add_u32 v25, v19, 5, v25
        v_and_b32 v19, 3, v0
        v_lshl_add_u32 v25, v19, 3, v25
        v_add_u32 v25, {RING}, v25
        s_lshl_b32 s56, {sr(sM1)}, 6
        s_lshl_b32 s61, s55, 5
        s_add_u32 s56, s56, s61
        v_and_b32 v19, 31, v0
        v_add_u32 v19, s56, v19
        v_lshlrev_b32 v19, 2, v19
        v_add_u32 v28, {STATS}, v19
        s_lshl_b32 s56, {sr(sM1)}, 1
        s_add_u32 s56, s56, s55
        s_mul_i32 s56, s56, 108
        s_lshl_b32 s61, {sr(sNB)}, 2
        s_add_u32 s56, s56, s61
        s_and_b32 s61, {sr(sW)}, 3
        s_add_u32 s56, s56, s61
        s_lshl_b32 s56, s56, 10
        s_add_u32 s100, s56, {ACT}
        s_mul_i32 s101, {sr(sW)}, {16 * X1R}
        s_lshl_b32 s55, {sr(sM1)}, 7
        s_add_u32 s101, s101, s55
        s_add_u32 s101, s101, {X1S}
        v_and_b32 v29, 1, v0
        v_mul_u32_u24 v29, 1280, v29
        v_lshrrev_b32 v19, 5, v0
        v_lshl_add_u32 v29, v19, 4, v29
        v_add_u32 v29, {TAB}, v29
        ''')
        self.wread_addr(30)
        self.poll_addr(SYNC2A, 24, 21)

    def g1_setup(self):
        self.k(f'''
        v_mov_b32 v1, v24
        v_mov_b32 v2, v25
        v_add_u32 v3, {3 * 16384}, v25
        v_mov_b32 v6, v28
        v_mov_b32 v8, v29
        v_mov_b32 v10, v30
        v_mov_b32 v11, v31
        v_mov_b32 v7, v21
        s_mov_b32 s65, s100
        s_mov_b32 s66, s101
        s_lshl_b32 s67, {sr(sW)}, 11
        ''')

    def g1_dma(self, c, i):
        k = self.k
        slot = c % NS
        t, cc = divmod(c, 5)
        if self.o.get('x_nodma') and c >= 5:
            return
        k(f's_add_u32 m0, s67, {RING + slot * 16384 + i * 1024}')
        k(f's_add_u32 s3, s66, {t * 1024 + (cc * 128 + 8 * i) * X1R}')
        k(f'buffer_load_dwordx4 v1, {P4(rWS)}, s3 offen sc1 lds', tag=f'ch{c}')

    def g2_park(self, i, f):
        k = self.k
        m = f's_add_u32 m0, s{64 if i == 0 else 60}, {f * 1024}' if (i, f) != (6, 4) else 's_mov_b32 m0, s78'
        k(f'{m}\ns_add_u32 s3, s63, {self.G2ORD.index(i) * 40960 + f * 1024}')
        k(f'buffer_load_dwordx4 v4, {P4(rWS)}, s3 offen sc1 lds', tag=f'park{i}')

    def g2_wload(self, i, f, mains_only=False):
        k = self.k
        if i in self.o.get('y_now', ()):
            return
        n = self.G2ORD.index(i)
        k(f's_add_u32 s3, s63, {n * 40960 + f * 1024}' if n < 6 else f's_add_u32 s3, s76, {f * 1024}')
        k(f'buffer_load_dwordx4 {vr(W2[i] + 4 * f, 4)}, v4, {P4(rWS)}, s3 offen sc1')

    def g2_setup(self):
        k = self.k
        k(f'''
        s_lshr_b32 s55, s2, 3
        s_and_b32 s61, s55, 7
        s_lshr_b32 s55, s55, 3
        s_and_b32 s90, s55, 1
        s_lshr_b32 s55, s55, 1
        s_lshl_b32 s55, s55, 3
        s_add_u32 s62, s55, {sr(sMB)}
        s_mul_i32 s55, {sr(sW)}, 5120
        s_add_u32 s64, s55, {PARK0}
        s_add_u32 s60, s55, {PARK6A}
        s_sub_u32 s56, s55, {4 * 5120 - PARK6B}
        s_cmp_ge_u32 {sr(sW)}, 4
        s_cselect_b32 s60, s56, s60
        s_add_u32 s78, s60, 4096
        s_cmp_eq_u32 {sr(sW)}, 7
        s_cmov_b32 s60, {PARK7}
        s_cmov_b32 s78, 15360
        s_mul_i32 s63, s61, {54 * 5120}
        s_add_u32 s63, s63, {WD}
        s_add_u32 s63, s63, s55
        v_lshlrev_b32 v4, 4, v0
        ''')

    def g2_addr(self):
        k = self.k
        k(f'''
        v_lshrrev_b32 v76, 5, v0
        v_lshlrev_b32 v64, 10, v76
        v_bfe_u32 v76, v0, 4, 1
        v_lshl_add_u32 v64, v76, 9, v64
        v_and_b32 v77, 15, v0
        v_lshl_add_u32 v64, v77, 4, v64
        s_lshl_b32 s55, s62, 1
        s_add_u32 s55, s55, s90
        s_mul_i32 s55, s55, {108 * 1024}
        s_lshl_b32 s56, {sr(sW)}, 11
        s_add_u32 s55, s55, s56
        s_add_u32 s83, s55, {ACT}
        s_add_u32 s76, s63, {6 * 40960}
        s_add_u32 s77, s83, {6 * 16384}
        s_cmp_ge_u32 {sr(sW)}, 6
        s_cmov_b32 s76, 0x2000000
        s_cmov_b32 s77, 0x2000000
        s_lshl_b32 s55, s62, 7
        s_add_u32 s55, s55, {SYNC3}
        v_mov_b32 v65, s55
        s_lshl_b32 s55, {sr(sW)}, 10
        s_add_u32 s55, s55, {PART}
        v_add_u32 v66, s55, v4
        v_add_u32 v67, 65536, v66
        s_lshl_b32 s55, {sr(sW)}, 13
        s_add_u32 s55, s55, {PART}
        v_add_u32 v68, s55, v4
        s_lshr_b32 s57, {sr(sW)}, 2
        s_and_b32 s58, {sr(sW)}, 3
        s_lshl_b32 s55, s57, 13
        s_lshl_b32 s56, s58, 8
        s_add_u32 s55, s55, s56
        s_add_u32 s55, s55, {PART + 65536}
        v_lshl_add_u32 v69, v77, 4, s55
        s_cmp_ge_u32 {sr(sW)}, 5
        s_cselect_b32 s59, 1, 0
        s_mul_i32 s55, s59, 5
        s_sub_u32 s86, {sr(sW)}, s55
        s_add_u32 s57, s57, 3
        v_lshrrev_b32 v76, 2, v0
        v_lshlrev_b32 v70, 6, v76
        v_and_b32 v78, 3, v0
        v_lshl_add_u32 v70, v78, 3, v70
        v_and_b32 v71, 0xff, v70
        s_lshl_b32 s55, s86, 10
        s_lshl_b32 s56, s59, 5
        s_add_u32 s55, s55, s56
        s_add_u32 s55, s55, {RESID}
        v_add_u32 v70, s55, v70
        s_lshl_b32 s55, s57, 10
        s_lshl_b32 s56, s58, 8
        s_add_u32 s55, s55, s56
        s_add_u32 s55, s55, {RESID + 32}
        v_add_u32 v71, s55, v71
        s_mul_i32 s87, s61, 80
        s_lshl_b32 s55, s86, 4
        s_add_u32 s55, s55, s87
        v_lshrrev_b32 v76, 4, v0
        v_lshl_add_u32 v72, v76, 2, s55
        s_lshl_b32 s55, s57, 4
        s_lshl_b32 s56, s58, 2
        s_add_u32 s55, s55, s56
        s_add_u32 s55, s55, s87
        v_mov_b32 v73, s55
        s_lshl_b32 s55, s90, 5
        s_lshl_b32 s56, s59, 4
        s_add_u32 s56, s56, s55
        s_add_u32 s55, s55, 16
        s_lshr_b32 s88, s62, 3
        s_lshl_b32 s88, s88, 9
        s_lshl_b32 s89, {sr(sMB)}, 3
        s_add_u32 s88, s88, s89
        ''')
        for dst, ch, sp in ((74, 72, 's56'), (75, 73, 's55')):
            k(f'''
            v_add_u32 v76, {sp}, v77
            v_and_b32 v78, 7, v76
            v_lshrrev_b32 v76, 3, v76
            v_lshl_add_u32 v76, v78, 6, v76
            v_add_u32 v76, s88, v76
            v_mul_u32_u24 v76, 1280, v76
            v_lshl_add_u32 {vr(dst)}, {vr(ch)}, 1, v76
            v_lshlrev_b32 {vr(ch)}, 2, {vr(ch)}
            v_add_u32 {vr(ch)}, {MOD + 5 * 2560}, {vr(ch)}
            ''')

    def g1(self):
        k = self.k
        TF, CB = 16, 92
        ACC = [32, 48]
        vRA, vRB, vST, vSTA, vPA, vPD = 2, 3, 5, 6, 7, 8
        K1, K2, S2 = 9, 10, 11
        BF = 12
        ET = 80
        OUTR = 88
        k(f'v_mov_b32 {vr(BF + 2)}, 0\nv_mov_b32 {vr(BF + 3)}, 0')
        if self.o.get('s2c', 0):
            L = self.only_wave(0)
            self.poll_addr(SYNC2C, 24, vPA)
            self.poll_issue(vPA, vPD, 24)
            k(f'{L}:')

        def rd(sig):
            c, s8 = divmod(sig, 8)
            slot = c % NS
            base, off = (vRA, slot * 16384) if slot < 3 else (vRB, (slot - 3) * 16384)
            off += s8 * 2048
            r = TF + 4 * (sig % 4)
            if self.o.get('x_nord') and sig >= 4:
                return
            if self.o.get('x_b128'):
                k(f'ds_read_b128 {vr(r, 4)}, v4 offset:{off % 32768}')
                return
            k(f'ds_read_b64_tr_b16 {vr(r, 2)}, {vr(base)} offset:{off}')
            k(f'ds_read_b64_tr_b16 {vr(r + 2, 2)}, {vr(base)} offset:{off + 512}')

        C1 = -2 * LOG2E * math.sqrt(2 / math.pi) * 0.044715
        C2 = -2 * LOG2E * math.sqrt(2 / math.pi)

        def epi_ops(t):
            acc = ACC[t % 2]
            ops = []

            def head():
                if not self.o.get('x_nostat'):
                    self.poll(vSTA, vST, '0x10000', preissued=True, off=2048 * (t & 1))
                k(f'''
                s_mov_b32 s55, 0x01000100
                s_mov_b32 s56, 0x03020302
                v_perm_b32 {vr(BF)}, {vr(vST)}, {vr(vST)}, s55
                v_perm_b32 {vr(BF + 1)}, {vr(vST)}, {vr(vST)}, s56
                v_xor_b32 {vr(BF)}, 0x80008000, {vr(BF)}
                v_and_b32 {vr(S2)}, 0xffff0000, {vr(vST)}
                v_rcp_f32 {vr(K2)}, {vr(S2)}
                v_mfma_f32_32x32x16_bf16 {vr(acc, 16)}, {vr(CB, 4)}, {vr(BF, 4)}, {vr(acc, 16)}
                ''')
            ops.append(head)
            ops.append(lambda: k(f'''
                v_mul_f32 {vr(S2)}, {vr(S2)}, {vr(S2)}
                v_mul_f32 {vr(K1)}, {vr(K2)}, {vr(K2)}
                v_mul_f32 {vr(K2)}, {f32(C2)}, {vr(K2)}
                '''))
            ops.append(lambda: k(f'''
                v_mul_f32 {vr(K1)}, {f32(0.044715)}, {vr(K1)}
                v_mul_f32 {vr(K1)}, {vr(K1)}, {vr(K2)}
                '''))
            ops.append(lambda: None)
            flat = []
            for grp in range(2):
                E = range(4 * grp, 4 * grp + 4)
                for fmt in ('v_mul_f32 {t}, {g}, {g}', 'v_fma_f32 {t}, {t}, {k1}, {k2}', 'v_mul_f32 {t}, {t}, {g}', 'v_exp_f32 {t}, {t}',
                            'v_mul_f32 {u}, {u}, {g}', 'v_fma_f32 {t}, {t}, {s2}, {s2}', 'v_rcp_f32 {t}, {t}', 'v_mul_f32 {u}, {u}, {t}'):
                    for e in E:
                        flat.append(fmt.format(t=vr(ET + e % 4), g=vr(acc + e), u=vr(acc + 8 + e), k1=vr(K1), k2=vr(K2), s2=vr(S2)))
                for p in (2 * grp, 2 * grp + 1):
                    flat.append(f'v_cvt_pk_bf16_f32 {vr(OUTR + p)}, {vr(acc + 8 + 2 * p)}, {vr(acc + 9 + 2 * p)}')
            nst = self.o.get('epi_steps', [24, 16, 30, 16])
            nst = nst if isinstance(nst, int) else nst[t]
            cost = lambda x: 2 if ('exp' in x or 'rcp' in x) else 1
            tot = sum(map(cost, flat))
            cum, cur, n = 0, [], 1
            for x in flat:
                cur.append(x)
                cum += cost(x)
                if cum * nst >= n * tot:
                    ops.append(lambda cur=cur: k('\n'.join(cur)))
                    cur = []
                    n += 1
            assert not cur

            def fin():
                k(f's_add_u32 s3, s65, {t * 16 * 108 * 1024}')
                k(f'buffer_store_dwordx4 {vr(OUTR, 4)}, v4, {P4(rWS)}, s3 offen sc1', tag=f'act{t}')
            ops.append(fin)
            return ops

        def publish(t):
            L = self.only_wave(0)
            k(f'''
            s_add_u32 s55, {sr(sM1)}, {8 * t}
            s_lshl_b32 s55, s55, 7
            s_add_u32 s55, s55, {SYNC3}
            v_mov_b32 {vr(ET + 4)}, s55
            v_mov_b32 {vr(ET + 5)}, 1
            s_mov_b64 exec, 1
            global_atomic_add {vr(ET + 4)}, {vr(ET + 5)}, {P2(pWS)} sc1
            s_mov_b64 exec, -1
            {L}:
            ''')

        epi_start = self.o.get('epi_start', [50, 81, 122, 160])
        epi_rate = self.o.get('epi_rate', [1, 1, 1, 1])
        stat_ld = {max(0, s - self.o.get('stat_pre', 14)): t for t, s in enumerate(epi_start)}
        todo = {}
        for t in range(3):
            ops = epi_ops(t)
            sig = epi_start[t]
            while ops:
                for _ in range(epi_rate[t]):
                    if ops:
                        todo.setdefault(sig, []).append(ops.pop(0))
                sig += 1
            assert sig <= 160 and (t == 2 or sig <= epi_start[t + 1]), (t, sig)
            assert sig <= 40 * (t + 2)
            todo.setdefault('done', {})[t] = sig
        done_at = todo.pop('done')
        pub_at = {}
        for t in range(3):
            s = done_at[t] + self.o.get('pub_lag', 16)
            s = ((s - 3 + 7) // 8) * 8 + 3
            pub_at.setdefault(min(s, 163), []).append(t)
        s2c = self.o.get('s2c', 0)
        B2 = self.o.get('b2_chunk', 1 if s2c else 2)
        B3 = self.o.get('b3_chunk', 6)
        self.stamp('g1go')
        keep, self.k = self.k, Kern()
        self.cs_addr()
        self.g2_setup()
        self.g2_addr()
        late, self.k = self.k.ins, keep
        grp, cur = [], []
        for x in late:
            cur.append(x)
            if len(cur) >= 4 and (x.op in ('s_add_u32', 's_lshl_b32', 's_mul_i32', 's_and_b32', 's_lshr_b32') or x.op.startswith('v_')):
                grp.append(cur)
                cur = []
        grp.append(cur)
        assert len(grp) <= 31
        if self.o.get('x_latefirst'):
            for g_ in grp:
                k.ins += g_
            grp = []
            self.stamp('g1go2')
        if self.o.get('g1prio'):
            L = k.label('gp')
            k(f's_cmp_lt_u32 {sr(sW)}, 4\ns_cbranch_scc1 {L}\ns_setprio 1\n{L}:')
        for sig in range(4):
            rd(sig)
        issued = 5
        dq = [lambda c=c, i=i: self.g1_dma(c, i) for c in ((3, 4) if self.o.get('c2early', 1) else (2, 3, 4)) for i in range(2)]
        if self.o.get('c2early', 1) == 2:
            dq = [dq[0], lambda: None, dq[1], lambda: None, lambda: None, dq[2], lambda: None, dq[3]]
        p0 = self.o.get('park_at', 5)
        g2at = {p0 + n: [(0, n)] if n < 5 else [(6, n - 5)] for n in range(10)}
        if self.o.get('park2'):
            g2at = {p0 + n: [(0, n), (6, n)] for n in range(5)}
        pissue = {8 * B2 + 4: (SYNCW, 4, vPA), 36: (SYNC2B, 24, vPA), self.o.get('pa_issue', 140): (None, 1, 65)}
        pcheck = {B2: (27, 24, vPA), 4: (10, 4, vPA), B3: (9, 24, vPA), 19: (27, 1, 65)}
        if not s2c:
            B3 = B2
            pissue = {8 * B2 + 3 - self.o.get('b2_pre', 10): (SYNC2B, 24, vPA), 8 * B2 + 4: (SYNCW, 4, vPA), self.o.get('pa_issue', 140): (None, 1, 65)}
            pcheck = {B2: (9, 24, vPA), 4: (10, 4, vPA), 19: (27, 1, 65)}
        nd = self.o.get('w2_in_t3', 15)
        wl = {126 + (33 * n) // nd: (1 + n // 5, n % 5) for n in range(nd)}
        assert all(sg >= 120 + 5 * (i - 1) + f for sg, (i, f) in wl.items()) and len(wl) == nd
        for sig in range(160):
            t, s = divmod(sig, 40)
            c = sig // 8
            acc = ACC[t % 2]
            cop = '0' if s == 0 else vr(acc, 16)
            k(f'v_mfma_f32_32x32x16_bf16 {vr(acc, 16)}, {vr(WF + 4 * s, 4)}, {vr(TF + 4 * (sig % 4), 4)}, {cop}')
            if sig in pissue and not self.o.get('x_nopoll'):
                base, nl, va = pissue[sig]
                L = self.only_wave(0)
                if base is not None:
                    self.poll_addr(base, nl, va)
                self.poll_issue(va, vPD, nl)
                k(f'{L}:')
            if sig % 8 == 3:
                if c in pcheck and not self.o.get('x_nopoll'):
                    cnt, nl, va = pcheck[c]
                    L = self.only_wave(0)
                    self.poll(va, vPD, cnt, preissued=True, nl=nl)
                    k(f'{L}:')
                w = [f'ch{c + 1}'] if c + 1 < 20 else ['resid']
                w += [f'act{tt}' for tt in pub_at.get(sig, [])]
                if w and not self.o.get('x_nowait'):
                    k.wait(*w)
                if not self.o.get('x_nobar') or c in (B2, B2 + 2):
                    k('s_barrier')
                for tt in pub_at.get(sig, []):
                    publish(tt)
                if c >= B2:
                    while issued < (20 if c >= B3 else 10) and issued <= c - 1 + NS:
                        dq += [lambda c=issued, i=i: self.g1_dma(c, i) for i in range(2)]
                        issued += 1
                if c in g2at and not self.o.get('x_nog2d'):
                    dq += [lambda j=j, i=i: self.g2_park(j, i) for j, i in g2at[c]]
            elif dq:
                dq.pop(0)()
            if sig + 4 < 160:
                rd(sig + 4)
            if sig >= 4 and grp and sig % 8 != 3:
                k.ins += grp.pop(0)
            if sig == self.o.get('cs_ld', 30) and not self.o.get('x_nocs'):
                self.cs_loads()
            if sig == self.o.get('cs_fin', 46) and not self.o.get('x_nocs'):
                self.cs_finish()
            if sig in wl:
                self.g2_wload(*wl[sig])
            tw = self.o.get('twd', 0)
            if tw and sig in (tw, tw + 16):
                k(f'''
                s_mul_i32 s55, {sr(sQ)}, 640
                s_mul_i32 s56, {sr(sW)}, 80
                s_add_u32 s55, s55, s56
                s_add_u32 s55, s55, {0 if sig == tw else 40}
                s_lshl_b32 s55, s55, 7
                s_add_u32 s55, s55, {WD}
                v_lshlrev_b32 v78, 7, v0
                s_mov_b32 exec_hi, 0xff
                buffer_load_dword v79, v78, {P4(rWS)}, s55 offen sc1
                s_mov_b32 exec_hi, -1
                ''')
            if sig == 140:
                self.resid_dma(76)
            if sig in stat_ld:
                tt = stat_ld[sig]
                if tt == 2:
                    k(f'v_add_u32 {vr(vSTA)}, 4096, {vr(vSTA)}')
                if not self.o.get('x_nostat'):
                    k(f'global_load_dword {vr(vST)}, {vr(vSTA)}, {P2(pWS)} offset:{2048 * (tt & 1)} sc1')
            for op in todo.get(sig, []):
                if not self.o.get('x_noepi'):
                    op()
            if sig % 40 == 39:
                self.stamp(f't{t}')
            if sig % 8 == 7 and sig < 80:
                self.stamp(f'c{sig // 8}')
        assert not dq
        for n in range(2):
            self.g2_lda(0, n)
        k.wait('park0', 'park6')
        k(f'v_add_u32 v76, s64, v4\nv_add_u32 v77, s60, v4\nv_add_u32 v78, s78, v4')
        for f in range(5):
            k(f'ds_read_b128 {vr(W2[0] + 4 * f, 4)}, v76 offset:{1024 * f}')
        for f in range(5):
            k(f'ds_read_b128 {vr(W2[6] + 4 * f, 4)}, v77 offset:{1024 * f}' if f < 4 else f'ds_read_b128 {vr(W2[6] + 16, 4)}, v78', tag='parkrd')
        rest = [(1 + n // 5, n % 5) for n in range(nd, 25)]
        ops = epi_ops(3)
        if self.o.get('tprio', 1):
            k('s_setprio 2')
        for op in ops[:3]:
            op()
        acc = ACC[1]
        T = lambda e: 32 + e
        for fmt in ('v_mul_f32 {t}, {g}, {g}', 'v_fma_f32 {t}, {t}, {k1}, {k2}', 'v_mul_f32 {t}, {t}, {g}', 'v_exp_f32 {t}, {t}',
                    'v_mul_f32 {u}, {u}, {g}', 'v_fma_f32 {t}, {t}, {s2}, {s2}', 'v_rcp_f32 {t}, {t}', 'v_mul_f32 {u}, {u}, {t}'):
            for e in range(8):
                k(fmt.format(t=vr(T(e)), g=vr(acc + e), u=vr(acc + 8 + e), k1=vr(K1), k2=vr(K2), s2=vr(S2)))
            if len(rest) > 10 - self.o.get('w2_tail', 0):
                self.g2_wload(*rest.pop(0))
        for p in range(4):
            k(f'v_cvt_pk_bf16_f32 {vr(OUTR + p)}, {vr(acc + 8 + 2 * p)}, {vr(acc + 9 + 2 * p)}')
        ops[-1]()
        k('s_setprio 0')
        self.stamp('g1end')
        if not self.o.get('hold', 0):
            for n in range(2, 4):
                self.g2_lda(0, n)
        self.resid_read()
        self.g2_rest = rest
        self.late_pub = pub_at.get(163, []) + [3]
        self.publish = publish

    def resid_dma(self, va=1):
        k = self.k
        k(f'''
        v_lshrrev_b32 v{va}, 2, v0
        v_mul_u32_u24 v{va}, {X1R}, v{va}
        v_and_b32 v{va + 1}, 3, v0
        v_lshl_add_u32 v{va}, v{va + 1}, 4, v{va}
        s_lshl_b32 s55, s86, 4
        s_add_u32 s55, s55, s87
        s_mul_i32 s55, s55, {X1R}
        s_lshl_b32 s56, s62, 7
        s_lshl_b32 s57, s90, 6
        s_add_u32 s56, s56, s57
        s_add_u32 s56, s56, {X1T}
        s_cmp_ge_u32 {sr(sW)}, 5
        s_cselect_b32 s57, 2048, 0
        s_add_u32 s55, s55, s56
        s_add_u32 s55, s55, s57
        s_lshl_b32 s57, {sr(sW)}, 10
        s_add_u32 m0, s57, {RESID}
        ''')
        k(f'buffer_load_dwordx4 v{va}, {P4(rWS)}, s55 offen sc1 lds', tag='resid')
        k(f'''
        s_add_u32 s55, {sr(sW)}, 3
        s_lshl_b32 s55, s55, 4
        s_add_u32 s55, s55, s87
        s_mul_i32 s55, s55, {X1R}
        s_add_u32 s55, s55, s56
        s_add_u32 s55, s55, 2048
        s_add_u32 m0, s57, {RESID + 8192}
        s_cmp_lt_u32 {sr(sW)}, 2
        s_cselect_b64 exec, -1, 0
        ''')
        k(f'buffer_load_dwordx4 v{va}, {P4(rWS)}, s55 offen sc1 lds', tag='resid')
        k('s_mov_b64 exec, -1')

    RESR = {(0, 0): 92, (0, 1): 94, (1, 0): 90, (1, 1): 6}

    def resid_read(self):
        for (h, p), r in self.RESR.items():
            self.k(f'ds_read_b64_tr_b16 {vr(r, 2)}, v{70 + p} offset:{5120 * h}', tag='parkrd')

    G2ORD = [0, 6, 1, 2, 3, 4, 5]

    def g2_af(self, h, n, tt):
        r = (2 * (7 * h + n) + tt) % 8
        return 16 + 4 * r if r < 4 else 236 + 4 * (r - 4)

    def g2_lda(self, h, n, only=None):
        k = self.k
        if self.o.get('y_noact') == h + 1 and n > 0:
            return
        so = 's3'
        k(f's_add_u32 s3, s83, {h * 32 * 108 * 1024 + n * 16384}' if n < 6 else f's_add_u32 s3, s77, {h * 32 * 108 * 1024}')
        for tt in (range(2) if only is None else [only]):
            k(f'buffer_load_dwordx4 {vr(self.g2_af(h, n, tt), 4)}, v64, {P4(rWS)}, {so} offen offset:{256 * tt} {self.o.get("actpol", "sc1")}')

    def g2(self):
        k = self.k
        ACC, GB = 24, 8
        acc = lambda t: 32 + 4 * t if t < 8 else 76 + 4 * (t - 8)
        k('L_g2:')

        def steps(h):
            q = [lambda i=i, f=f: self.g2_wload(i, f) for i, f in (self.g2_rest if h == 0 else [])]
            qa = [lambda n=n, tt=tt: self.g2_lda(h, n, tt) for n in range(4, 7) for tt in range(2)]
            need = {}
            ps = self.o.get('pub_step', 0)
            for n in range(7):
                i = self.G2ORD[n]
                L = None
                for tt in range(2):
                    for j in range(5):
                        a = acc(5 * tt + j)
                        c = '0' if n == 0 else vr(a, 4)
                        k(f'v_mfma_f32_16x16x32_bf16 {vr(a, 4)}, {vr(W2[i] + 4 * j, 4)}, {vr(self.g2_af(h, n, tt), 4)}, {c}')
                        if self.o.get('hold', 0) and h == 0 and n <= ps:
                            continue
                        if not L and j == 4 and qa:
                            qa.pop(0)()
                        elif not L and j in (0, 1, 2) and q:
                            q.pop(0)()
                if L:
                    k(f'{L}:')
                    for _ in range(2):
                        if qa:
                            qa.pop(0)()
                po = self.o.get('pub_step_o', 3)
                if h == 0 and n in (ps, po):
                    Ls = None
                    if ps != po:
                        Ls = k.label('pbs')
                        k(f's_cmp_{"lt" if n == ps else "ge"}_u32 {sr(sW)}, 4\ns_cbranch_scc1 {Ls}')
                    k.wait('parkrd', *[f'act{t}' for t in self.late_pub])
                    k('s_barrier')
                    if n == po:
                        Lh = k.label('hp')
                        k(f's_cmp_lt_u32 s2, 40\ns_cbranch_scc1 {Lh}')
                        for t in self.late_pub:
                            self.publish(t)
                        k(f'{Lh}:')
                    self.stamp('pub3')
                    if Ls:
                        k(f'{Ls}:')
                if h == 0 and n == 5:
                    k(f'global_load_dwordx4 v[8:11], v72, {P2(pWS)} sc1\nglobal_load_dwordx4 v[12:15], v73, {P2(pWS)} sc1')
                if h == 0 and n == 6:
                    L = self.only_wave(0)
                    self.poll_issue(65, 3, 1, off=2048)
                    k(f'{L}:')
            assert not q and not qa
            if h == 0:
                self.stamp('h0')
            for t in range(10):
                k(f'ds_write_b128 v{66 + t // 8}, {vr(acc(t), 4)} offset:{8192 * (t % 8)}', tag='pw')
            if h == 0:
                L = self.only_wave(0)
                self.poll(65, 3, 27, preissued=True, nl=1, off=2048, sleep=self.o.get('sleep3', 4))
                k(f'{L}:')
                k('v_add_u32 v66, 81920, v66\nv_add_u32 v67, 81920, v67')

        def finalize(h):
            R = {0: 32, 1: 48}
            if self.o.get('fprio', 0):
                k('s_setprio 2')
            for half in range(2):
                for p in range(2):
                    for w in range(4):
                        dst = (R[p] if half == 0 else (76 if p == 0 else 252)) if w == 0 and half == 1 else R[p] + 4 * w
                        k(f'ds_read_b128 {vr(dst, 4)}, v{68 + p} offset:{1024 * (4 * half + w)}', tag='fin')
                if half == 0:
                    if h == 0:
                        self.g2_lda(1, 2)
                    for p in range(2):
                        for a, b in ((0, 1), (2, 3), (0, 2)):
                            for e in (0, 2):
                                k(f'v_pk_add_f32 {vr(R[p] + 4 * a + e, 2)}, {vr(R[p] + 4 * a + e, 2)}, {vr(R[p] + 4 * b + e, 2)}')
            if h == 0:
                self.g2_lda(1, 3)
            for p in range(2):
                x = 76 if p == 0 else 252
                for a, b in ((x, R[p] + 4), (R[p] + 8, R[p] + 12), (R[p], x), (R[p], R[p] + 8)):
                    for e in (0, 2):
                        k(f'v_pk_add_f32 {vr(a + e, 2)}, {vr(a + e, 2)}, {vr(b + e, 2)}')
                for e in range(4):
                    g, t = GB + 4 * p + e, R[p] + 4 + e
                    if h == 0:
                        k(f'v_and_b32 {vr(g)}, 0xffff0000, {vr(g)}')
                    k(f'v_lshlrev_b32 {vr(t)}, 16, {vr(self.RESR[h, p] + e // 2)}' if e % 2 == 0 else f'v_and_b32 {vr(t)}, 0xffff0000, {vr(self.RESR[h, p] + e // 2)}')
                    k(f'v_fmac_f32 {vr(t)}, {vr(R[p] + e)}, {vr(g)}')
                o = 84 if p == 0 else 88
                k(f'v_cvt_pk_bf16_f32 v{o}, {vr(R[p] + 4)}, {vr(R[p] + 5)}\nv_cvt_pk_bf16_f32 v{o + 1}, {vr(R[p] + 6)}, {vr(R[p] + 7)}')
                if p == 1:
                    k('s_mov_b64 exec, 0xffff')
                k(f'global_store_dwordx2 v{74 + p}, v[{o}:{o + 1}], {P2(pOUT)} {self.o.get("outpol", "")}')
                if p == 1:
                    k('s_mov_b64 exec, -1')
            k('s_setprio 0')
            if h == 0:
                k(f'v_add_u32 v74, {1024 * 1280}, v74\nv_add_u32 v75, {1024 * 1280}, v75\nv_add_u32 v68, 81920, v68\nv_add_u32 v69, 81920, v69')

        steps(0)
        k.wait('pw')
        k('s_barrier')
        self.stamp('s3')
        for n in range(2):
            self.g2_lda(1, n)
        finalize(0)
        if self.o.get('wb2'):
            L = self.only_wave(7)
            k(f's_lshr_b32 s55, s2, 3\ns_and_b32 s55, s55, {self.o["wb2"] - 1}\ns_cmp_lg_u32 s55, 0\ns_cbranch_scc1 {L}\nbuffer_wbl2 sc1')
            k(f'{L}:')
        self.stamp('f0')
        steps(1)
        self.stamp('g2m')
        k.wait('pw')
        k('s_barrier')
        finalize(1)
        self.stamp('end')

    def strip_reduce(self, nval, V, RED):
        k = self.k
        n = nval
        for i in range(n // 2):
            k(f'v_permlane32_swap_b32 {vr(V + i)}, {vr(V + n // 2 + i)}')
        for i in range(n // 2):
            k(f'v_add_f32 {vr(V + i)}, {vr(V + i)}, {vr(V + n // 2 + i)}')
        n //= 2
        for i in range(n // 2):
            k(f'v_permlane16_swap_b32 {vr(V + i)}, {vr(V + n // 2 + i)}')
        for i in range(n // 2):
            k(f'v_add_f32 {vr(V + i)}, {vr(V + i)}, {vr(V + n // 2 + i)}')
        n //= 2
        for i in range(n):
            k(f'v_add_f32_dpp {vr(V + i)}, {vr(V + i)}, {vr(V + i)} row_ror:8 row_mask:0xf bank_mask:0xf')
        q = nval // 4
        k(f'''
        v_lshrrev_b32 v8, 4, v0
        v_mul_u32_u24 v8, {q}, v8
        v_and_b32 v9, 7, v8
        v_lshrrev_b32 v8, 3, v8
        v_lshl_add_u32 v9, v8, 6, v9
        v_and_b32 v8, 7, v0
        v_lshl_add_u32 v9, v8, 3, v9
        s_mul_i32 s55, {sr(sW)}, {8 * nval}
        v_add_u32 v9, s55, v9
        v_lshlrev_b32 v9, 2, v9
        s_mov_b32 exec_lo, 0x00ff00ff
        s_mov_b32 exec_hi, 0x00ff00ff
        ''')
        if q == 2:
            k(f'ds_write_b64 v9, {vr(V, 2)} offset:{RED}', tag='redw')
        else:
            k(f'ds_write_b128 v9, {vr(V, 4)} offset:{RED}', tag='redw')
        k('s_mov_b64 exec, -1')
        k.wait('redw')
        k('s_barrier')

    def mod_and_wd(self):
        k = self.k
        k(f'''
        s_cmp_lt_u32 s2, 14
        s_cselect_b32 s76, 2, 1
        s_mov_b32 s75, s2
        s_mul_i32 s72, {sr(sW)}, 5120
        s_mul_i32 s71, s75, 40960
        s_add_u32 s71, s71, s72
        s_add_u32 s72, s72, 8192
        v_lshlrev_b32 v21, 4, v0
        ''')
        self.mod_partial()
        if self.o.get('wdlate'):
            L = self.only_wave(0)
            self.poll_sync1(215, 58)
            k(f'{L}:')
        k('s_barrier')
        for i in range(10):
            k(f'''
            s_cmp_ge_u32 s76, {1 + i // 5}
            s_cselect_b64 exec, -1, 0
            s_mov_b32 m0, s72
            s_add_u32 s72, s72, {1024 if i != 4 else 40960 - 4096}
            ''')
            k(f'buffer_load_dwordx4 v21, {P4(rB)}, s71 offen {self.o["nt"]} lds', tag='wdl')
            k(f's_mov_b64 exec, -1\ns_add_u32 s71, s71, {1024 if i != 4 else 40 * 40960 - 4096}')
        L = self.only_wave(0)
        self.poll_sync1(215, 58)
        Lr, Ld = k.label('fr'), k.label('fd')
        k(f'''
        s_cmp_ge_u32 s2, 30
        s_cbranch_scc1 {L}
        s_add_u32 s55, s2, 30
        s_lshl_b32 s56, s55, 11
        s_add_u32 s56, s56, {MODP}
        v_lshl_add_u32 v8, v0, 2, s56
        {Lr}:
        ''')
        for e in range(8):
            k(f'global_load_dword {vr(32 + e)}, v8, {P2(pWS)} offset:{256 * e} sc1')
        k(f'''
        v_min3_u32 v40, v32, v33, v34
        v_min3_u32 v40, v40, v35, v36
        v_min3_u32 v40, v40, v37, v38
        v_min_u32 v40, v40, v39
        v_cmp_eq_u32 vcc, 0, v40
        s_cbranch_vccz {Ld}
        s_sleep {self.o.get('sleep', 2)}
        s_add_u32 {sr(sSPIN)}, {sr(sSPIN)}, 1
        s_cmp_lt_u32 {sr(sSPIN)}, {SPIN_MAX}
        s_cbranch_scc1 {Lr}
        {Ld}:
        v_add_f32 v32, v32, v36
        v_add_f32 v33, v33, v37
        v_add_f32 v34, v34, v38
        v_add_f32 v35, v35, v39
        v_add_f32 v32, v32, v33
        v_add_f32 v34, v34, v35
        v_add_f32 v32, v32, v34
        v_cvt_pk_bf16_f32 v32, v32, v32
        v_and_b32 v32, 0xffff0000, v32
        v_or_b32 v32, 1, v32
        s_lshl_b32 s55, s55, 8
        s_add_u32 s55, s55, {MOD}
        v_lshlrev_b32 v8, 2, v0
        buffer_store_dword v32, v8, {P4(rWS)}, s55 offen sc1
        ''')
        self.stamp('h_mod')
        k(f'{L}:')
        Lw, Lwd = k.label('wdl'), k.label('wdd')
        k(f'''
        v_lshrrev_b32 v9, 5, v0
        v_lshlrev_b32 v9, 4, v9
        v_bfe_u32 v10, v0, 2, 3
        v_add_u32 v9, v9, v10
        v_mul_u32_u24 v9, 1280, v9
        v_and_b32 v10, 3, v0
        v_lshl_add_u32 v9, v10, 3, v9
        s_mul_i32 s56, {sr(sW)}, 160
        v_add_u32 v9, s56, v9
        s_mul_i32 s55, {sr(sW)}, {54 * 5120}
        s_mul_i32 s56, s75, 5120
        s_add_u32 s55, s55, s56
        s_add_u32 s55, s55, {WD}
        s_waitcnt vmcnt(0)
        s_barrier
        s_cmp_eq_u32 s76, 0
        s_cbranch_scc1 {Lwd}
        {Lw}:
        ''')
        for j in range(5):
            k(f'ds_read_b64_tr_b16 {vr(32 + 4 * j, 2)}, v9 offset:{8192 + 32 * j}')
            k(f'ds_read_b64_tr_b16 {vr(34 + 4 * j, 2)}, v9 offset:{8192 + 32 * j + 8 * 1280}')
        k('s_add_u32 s56, s55, 4096')
        for j in range(5):
            k(f'buffer_store_dwordx4 {vr(32 + 4 * j, 4)}, v21, {P4(rWS)}, s{55 + j // 4} offen offset:{1024 * (j % 4)} sc1')
        k(f'''
        s_add_u32 s55, s55, {40 * 5120}
        v_add_u32 v9, 40960, v9
        s_sub_u32 s76, s76, 1
        s_cmp_lg_u32 s76, 0
        s_cbranch_scc1 {Lw}
        {Lwd}:
        s_waitcnt vmcnt(0)
        s_barrier
        ''')

    def stats_job(self):
        k = self.k
        LD, V = 96, 32
        k(f'''
        v_lshrrev_b32 v8, 3, v0
        s_mul_i32 s55, {sr(sW)}, 80
        v_add_u32 v8, s55, v8
        v_mul_u32_u24 v8, {X1R}, v8
        v_and_b32 v10, 7, v0
        v_lshl_add_u32 v8, v10, 4, v8
        s_lshl_b32 s55, s2, 7
        s_add_u32 s55, s55, {X1T}
        ''')
        for i in range(10):
            k(f'buffer_load_dwordx4 {vr(LD + 4 * i, 4)}, v8, {P4(rWS)}, s55 offen sc1')
            if i < 9:
                k(f's_add_u32 s55, s55, {8 * X1R}')
        for i in range(10):
            for j in range(4):
                r = LD + 4 * i + j
                if i == 0:
                    k(f'''
                    v_lshlrev_b32 {vr(V + 2 * j)}, 16, {vr(r)}
                    v_and_b32 {vr(V + 2 * j + 1)}, 0xffff0000, {vr(r)}
                    v_mul_f32 {vr(V + 8 + 2 * j)}, {vr(V + 2 * j)}, {vr(V + 2 * j)}
                    v_mul_f32 {vr(V + 9 + 2 * j)}, {vr(V + 2 * j + 1)}, {vr(V + 2 * j + 1)}
                    ''')
                else:
                    k(f'''
                    v_lshlrev_b32 v11, 16, {vr(r)}
                    v_and_b32 v12, 0xffff0000, {vr(r)}
                    v_add_f32 {vr(V + 2 * j)}, {vr(V + 2 * j)}, v11
                    v_add_f32 {vr(V + 2 * j + 1)}, {vr(V + 2 * j + 1)}, v12
                    v_fmac_f32 {vr(V + 8 + 2 * j)}, v11, v11
                    v_fmac_f32 {vr(V + 9 + 2 * j)}, v12, v12
                    ''')
        self.strip_reduce(16, V, 0)
        L = self.only_wave(0)
        k('v_lshlrev_b32 v8, 2, v0')
        for w in range(8):
            k(f'ds_read2st64_b32 {vr(V + 2 * w, 2)}, v8 offset0:{2 * w} offset1:{2 * w + 1}')
        for w in range(1, 8):
            k(f'v_add_f32 {vr(V)}, {vr(V)}, {vr(V + 2 * w)}')
            k(f'v_add_f32 {vr(V + 1)}, {vr(V + 1)}, {vr(V + 2 * w + 1)}')
        k(f'''
        v_mul_f32 v10, {f32(1.0 / 640)}, {vr(V)}
        v_mul_f32 v11, {f32(1.0 / 640)}, {vr(V + 1)}
        v_fma_f32 v11, -v10, v10, v11
        v_max_f32 v11, 0, v11
        v_cvt_pk_bf16_f32 v11, v11, v11
        v_lshlrev_b32 v11, 16, v11
        v_add_f32 v11, {f32(1e-5)}, v11
        v_cvt_pk_bf16_f32 v11, v11, v11
        v_lshlrev_b32 v11, 16, v11
        v_sqrt_f32 v11, v11
        v_cvt_pk_bf16_f32 v10, v10, v11
        s_lshl_b32 s55, s2, 8
        s_add_u32 s55, s55, {STATS}
        buffer_store_dword v10, v8, {P4(rWS)}, s55 offen sc1
        {L}:
        s_barrier
        ''')

    def helper(self):
        k = self.k
        k('L_helper:')
        self.srd(rB, pWD, 1728 * 640 * 2)
        self.mod_and_wd()
        L = self.only_wave(0)
        k('s_and_b32 s55, s2, 3')
        self.arrive(SYNCW, 4, 's55', 16)
        k(f'{L}:')
        self.stamp('h_wd')
        if self.o['stop'] in ('A', 'kgen'):
            k('s_branch L_fin')
            return
        Lns = k.label('nostat')
        Lb, Lp = k.label('lateb'), k.label('polled')
        L = self.only_wave(0)
        k(f's_cmp_ge_u32 s2, {16 if self.o.get("s2c", 0) else 8}\ns_cbranch_scc1 {Lb}')
        self.poll_addr(SYNC2A, 24, 16)
        k(f's_lshr_b32 s55, s2, 3\ns_mul_i32 s55, s55, {SYNC2C - SYNC2A}\nv_add_u32 v16, s55, v16')
        self.poll(16, 17, 27, nl=24, sleep=self.o.get('hsleep', 4))
        k(f's_branch {Lp}\n{Lb}:')
        self.poll_addr(SYNC2B, 24, 16)
        self.poll(16, 17, 9, nl=24, sleep=self.o.get('hsleep', 4))
        k(f'{Lp}:\n{L}:')
        k('s_barrier')
        self.stamp('s2a')
        k(f's_cmp_ge_u32 s2, 32\ns_cbranch_scc1 {Lns}')
        self.stats_job()
        k(f'{Lns}:')
        self.stamp('h_stat')
        if self.o['stop'] in ('conv', 'g1'):
            k('s_branch L_fin')
            return
        L = self.only_wave(0)
        self.poll_addr(SYNC2B, 24, 16)
        self.poll(16, 17, 9, nl=24, sleep=self.o.get('hsleep', 4))
        self.poll_addr(SYNCW, 4, 16)
        self.poll(16, 17, 10, nl=4)
        k(f'{L}:')
        k('s_barrier')
        self.g2_setup()
        self.g2_addr()
        for i in range(7):
            for f in range(5):
                self.g2_wload(i, f)
        self.resid_dma()
        L = self.only_wave(0)
        self.poll(65, 3, 27, nl=1, sleep=self.o.get('hsleep3', 8))
        k(f'{L}:')
        k('s_waitcnt vmcnt(0)\ns_barrier')
        self.resid_read()
        if self.o.get('hpf', 0):
            k(f'''
            s_lshl_b32 s55, s61, 3
            s_add_u32 s55, s55, {sr(sW)}
            v_lshlrev_b32 v1, 7, v0
            s_min_u32 s56, s55, 29
            s_mul_i32 s57, s56, 0x199a
            s_lshr_b32 s57, s57, 16
            s_mul_i32 s58, s57, 10
            s_sub_u32 s56, s56, s58
            s_add_u32 s57, s57, 5
            s_mul_i32 s57, s57, {54 * 5120}
            s_lshl_b32 s56, s56, 13
            s_add_u32 s56, s56, s57
            s_add_u32 s56, s56, {WD + 5 * 40960}
            buffer_load_dword v79, v1, {P4(rWS)}, s56 offen sc1
            s_lshl_b32 s57, {sr(sMB)}, 1
            s_add_u32 s57, s57, 1
            s_mul_i32 s57, s57, {108 * 1024}
            s_add_u32 s57, s57, {ACT}
            s_min_u32 s56, s55, 13
            s_lshl_b32 s56, s56, 13
            s_add_u32 s56, s56, s57
            s_cmp_lt_u32 s55, 14
            s_cselect_b64 exec, -1, 0
            buffer_load_dword v79, v1, {P4(rWS)}, s56 offen sc1
            s_mov_b64 exec, -1
            ''')
            L = self.only_wave(0)
            self.poll(65, 3, 27, nl=1, sleep=8, off=1024)
            k(f'''
            {L}:
            s_barrier
            s_add_u32 s57, s57, {15 * 108 * 1024}
            s_min_u32 s56, s55, 26
            s_lshl_b32 s56, s56, 13
            s_add_u32 s56, s56, s57
            s_cmp_lt_u32 s55, 27
            s_cselect_b64 exec, -1, 0
            buffer_load_dword v79, v1, {P4(rWS)}, s56 offen sc1
            s_mov_b64 exec, -1
            s_waitcnt vmcnt(0)
            ''')
        for n in range(2):
            self.g2_lda(0, n)
        for _ in range(1 + self.o.get('w2_tail', 0)):
            k(f'global_load_dword v79, v72, {P2(pWS)} sc1')
        if not self.o.get('hold', 0):
            for n in range(2, 4):
                self.g2_lda(0, n)
        k('s_branch L_g2')

    def build(self):
        k = self.k
        stop = self.o['stop']
        self.prologue()
        self.early_addresses()
        self.ln1()
        k('s_cmp_lt_u32 s2, 40\ns_cbranch_scc1 L_helper')
        while True:
            if stop == 'A':
                break
            self.kgen()
            if self.o.get('mp_early', 2) == 2:
                self.mod_partial()
            self.stamp('kgen')
            self.kexpand1()
            self.conv(setup_only=True)
            self.stamp('kexp')
            if self.o.get('mp_early', 2) == 1:
                self.mod_partial()
            self.conv_loads()
            if not self.o.get('mp_early', 2):
                self.mod_partial()
            self.kexpand2()
            self.wstage_read(0, 213)
            if stop == 'kgen':
                self.dump_k()
                break
            self.conv()
            self.window2()
            if stop == 'conv':
                break
            self.g1()
            if stop == 'g1':
                break
            self.g2()
            break
        k('L_fin:')
        if self.o.get('diag_T'):
            k(f'''
            L_dt:
            s_memrealtime s[96:97]
            s_waitcnt lgkmcnt(0)
            s_sub_u32 s96, s96, s94
            s_cmp_lt_u32 s96, {self.o['diag_T']}
            s_cbranch_scc1 L_dt
            ''')
        k(f'''
        s_or_b32 s3, s2, {sr(sW)}
        s_cmp_lg_u32 s3, 0
        s_cbranch_scc1 L_nogen
        v_mov_b32 v8, {GEN}
        v_mov_b32 v9, {sr(sTAG)}
        s_mov_b64 exec, 1
        global_store_dword v8, v9, {P2(pWS)} sc1
        s_mov_b64 exec, -1
        L_nogen:
        ''')
        self.stamp_flush()
        k('s_endpgm')
        self.helper()
        k('L_end:\ns_endpgm')
        body = k.text()
        hdr = open('adaLN_cond__ssm_conv_s4d__geglu_ffn__prompt.s.ref').read().split('; Override')[0]
        return hdr + f'''; @launch kernel={NAME} grid=(256,1,1) block=(512,1,1) lds={LDS_BYTES}
.amdgcn_target "amdgcn-amd-amdhsa--gfx950"
.text
.globl {NAME}
.p2align 8
.type {NAME},@function
{NAME}:
{body}.section .rodata,"a"
.p2align 6
.amdhsa_kernel {NAME}
  .amdhsa_next_free_vgpr 256
  .amdhsa_next_free_sgpr 102
  .amdhsa_accum_offset 256
  .amdhsa_group_segment_fixed_size 0
  .amdhsa_kernarg_size 128
  .amdhsa_user_sgpr_count 2
  .amdhsa_user_sgpr_kernarg_segment_ptr 1
  .amdhsa_system_sgpr_workgroup_id_x 1
.end_amdhsa_kernel
'''

    def dump_k(self):
        k = self.k
        k.wait('saw')
        k('s_barrier')
        k(f's_lshl_b32 s55, {sr(sW)}, 6\nv_add_u32 v8, s55, v0\nv_lshlrev_b32 v9, 3, v8\nv_lshlrev_b32 v10, 4, v8')
        for ch in range(3):
            k(f'''
            ds_read_b64 v[12:13], v9 offset:{KA + ch * KAS + 32}
            ds_read_b128 v[16:19], v10 offset:{SA + ch * SAS}
            s_add_u32 s55, {sr(sD0)}, {ch}
            s_lshl_b32 s56, s55, 12
            s_add_u32 s56, s56, {X1T}
            s_lshl_b32 s57, s55, 13
            s_add_u32 s57, s57, {ACT}
            buffer_store_dwordx2 v[12:13], v9, {P4(rWS)}, s56 offen
            buffer_store_dwordx4 v[16:19], v10, {P4(rWS)}, s57 offen
            s_waitcnt vmcnt(0)
            ''')


LAST = None
def generate(**opt):
    global LAST
    LAST = Gen(opt)
    return LAST.build()


if __name__ == '__main__':
    opt = {}
    for a in sys.argv[2:]:
        kx, v = a.split('=')
        opt[kx] = eval(v)
    open(sys.argv[1], 'w').write(generate(**opt))
```

```python
import sys, math
from asmgen import Kern, vr, sr, f32

NAME = 'adaLN_cond__ssm_conv_s4d__geglu_ffn__prompt_kernel'

SYNC1 = 0x0
GEN = 0x22000
MS = 0x1E000
SYNC2A, SYNC2B, SYNCW, SYNC3, SYNC2C = 0x8000, 0xE000, 0x14000, 0x15000, 0x18000
MODP = 0xC0000
MOD, STATS = 0x24000, 0x16000
ZBEG, ZEND = 0x8000, 0x1E000
STAMP = 0x30000
CSP = 0x3C0000
XN, XT, X1T, X1S, WD, ACT = 0x100000, 0x400000, 0x700000, 0xA00000, 0xD00000, 0x1000000
XNS, X1R = 10240 + 128, 4096 + 128
KG, KGS = 0, 4608
XNL0, MSL = 1696, 13984
KA, KAS = 27648, 4128
SA, SAS = 40032, 8192
TR, TRR, TRM = 40032, 1344, 10752
WT = 81408
KC, KCS = 51200, 3840
GA = 204
TAB, EXC = 78336, 10240
STG = 81920
RING, NS = 16384, 5
PARK0, PARK6A, PARK6B, PARK7 = 122880, 98304, 0, 118784
RESID, PART = 16384, 0
W2 = {1: 96, 2: 116, 3: 136, 4: 156, 5: 176, 0: 196, 6: 216}
sOW = {0: 70, 6: 71, 1: 72, 2: 73, 3: 74, 4: 75, 5: 76}
sOA = {0: 94, 6: 95, 1: 96, 2: 97, 3: 98, 4: 99, 5: 77}
LDS_BYTES = 163840
pX, pLA, pAI, pCR, pCI, pDT, pDS, pWG, pWU, pWD, pC, pWM, pOUT, pDBG, pWS = 4, 6, 8, 10, 12, 14, 16, 20, 22, 24, 26, 28, 30, 32, 34
sW, sI, sPC = 36, 37, 38
rWS, rA, rB = 40, 44, 48
sD0, sMB, sNB = 52, 53, 54
sT = 55
sCH = 70
sSPIN = 79
sST = 80
sFLAG = 82
sWL, sWO, sWI, sWR = 86, 87, 88, 89
sQ, sM1, sTAG = 91, 92, 93
P2 = lambda r: sr(r, 2)
P4 = lambda r: sr(r, 4)
WF = 96
SPIN_MAX = 400000

LOG2E = 1.4426950408889634


class Gen:
    def __init__(self, opt):
        self.o = dict(stop=None, stamps=False, nt='nt')
        self.o.update(opt)
        self.k = Kern()
        self.nst = 0

    def stamp(self, name, vt=None):
        if not self.o['stamps']:
            return
        if isinstance(self.o['stamps'], (list, tuple)) and name not in self.o['stamps']:
            return
        names = self.o.setdefault('stamp_names', [])
        if name not in names:
            names.append(name)
        idx = names.index(name)
        assert idx < 32, names
        self.k(f'''
        s_memrealtime {sr(sST, 2)}
        s_memtime s[84:85]
        s_waitcnt lgkmcnt(0)
        v_writelane_b32 v87, {sr(sST)}, {idx}
        v_writelane_b32 v87, s84, {32 + idx}
        ''')

    def stamp_flush(self):
        if not self.o['stamps']:
            return
        self.k(f'''
        s_lshl_b32 s3, s2, 3
        s_add_u32 s3, s3, {sr(sW)}
        s_lshl_b32 s3, s3, 8
        s_add_u32 s3, s3, {STAMP}
        v_lshl_add_u32 v86, v0, 2, s3
        global_store_dword v86, v87, {P2(pWS)}
        ''')

    def arrive(self, base, nshard, shard_sreg, vt):
        k = self.k
        k(f'''
        s_lshl_b32 s3, {shard_sreg}, 7
        s_add_u32 s3, s3, {base}
        v_mul_u32_u24 {vr(vt)}, {128 * nshard}, v0
        v_add_u32 {vr(vt)}, s3, {vr(vt)}
        v_mov_b32 {vr(vt + 1)}, 1
        s_mov_b64 exec, 0xff
        global_atomic_add {vr(vt)}, {vr(vt + 1)}, {P2(pWS)} sc1
        s_mov_b64 exec, -1
        ''')

    def poll_addr(self, base, nshard, va):
        k = self.k
        k(f'''
        s_and_b32 s3, s2, 7
        s_mul_i32 s3, s3, {128 * nshard}
        s_add_u32 s3, s3, {base}
        v_min_u32 {vr(va)}, {nshard - 1}, v0
        v_lshlrev_b32 {vr(va)}, 7, {vr(va)}
        v_add_u32 {vr(va)}, s3, {vr(va)}
        ''')

    def poll_issue(self, va, vd, nl, off=0):
        k = self.k
        if nl and self.o.get('apoll', 1):
            k(f'''
            v_mov_b32 {vr(vd)}, 0
            s_mov_b64 exec, {hex((1 << nl) - 1)}
            global_atomic_add {vr(vd)}, {vr(va)}, {vr(vd)}, {P2(pWS)} offset:{off} sc0 sc1
            s_mov_b64 exec, -1
            ''')
        else:
            k(f'global_load_dword {vr(vd)}, {vr(va)}, {P2(pWS)} offset:{off} sc1')

    def poll(self, va, vd, count, preissued=False, off=0, nl=0, sleep=None):
        k = self.k
        L, D = k.label('poll'), k.label('polld')
        ap = nl and self.o.get('apoll', 1)

        def check():
            k(f'v_cmp_gt_u32 vcc, {count}, {vr(vd)}')
            if ap:
                k(f's_and_b32 vcc_lo, vcc_lo, {hex((1 << nl) - 1)}\ns_cbranch_scc0 {D}')
            else:
                k(f's_cbranch_vccz {D}')
        if not preissued:
            self.poll_issue(va, vd, nl, off)
        check()
        k(f'{L}:')
        k(f's_sleep {self.o.get("sleep", 2) if sleep is None else sleep}')
        self.poll_issue(va, vd, nl, off)
        check()
        k(f'''
        s_add_u32 {sr(sSPIN)}, {sr(sSPIN)}, 1
        s_cmp_lt_u32 {sr(sSPIN)}, {SPIN_MAX}
        s_cbranch_scc1 {L}
        {D}:
        ''')

    def srd(self, r, ptr, size):
        self.k(f'''
        s_mov_b32 {sr(r)}, {sr(ptr)}
        s_and_b32 {sr(r + 1)}, {sr(ptr + 1)}, 0xffff
        s_mov_b32 {sr(r + 2)}, {size}
        s_mov_b32 {sr(r + 3)}, 0x20000
        ''')

    def only_wave(self, w):
        L = self.k.label('ow')
        self.k(f's_cmp_lg_u32 {sr(sW)}, {w}\ns_cbranch_scc1 {L}')
        return L

    def prologue(self):
        k = self.k
        k(f'''
        s_cmp_ge_u32 s2, 256
        s_cbranch_scc1 L_end
        s_load_dwordx16 s[4:19], s[0:1], 0
        s_load_dwordx16 s[20:35], s[0:1], 64
        s_getpc_b64 {P2(sPC)}
        L_pc:
        v_lshrrev_b32 v1, 6, v0
        v_and_b32 v0, 63, v0
        v_readfirstlane_b32 {sr(sW)}, v1
        s_mov_b32 {sr(sSPIN)}, 0
        ''')
        if self.o.get('diag_T'):
            k('s_memrealtime s[94:95]')
        if self.o.get('diag_alu'):
            k(f's_mov_b32 s3, {self.o["diag_alu"]}\nL_da:')
            for _ in range(100):
                k('v_add_u32 v1, v1, v1')
            k('s_sub_u32 s3, s3, 1\ns_cmp_lg_u32 s3, 0\ns_cbranch_scc1 L_da')
        if self.o['stamps']:
            k('v_mov_b32 v87, 0')
        def code_pf():
            L = k.label('pf')
            mode = self.o.get('cpf', 0)
            if mode == 9:
                return
            if mode in (0, 1):
                k(f'''
                s_lshr_b32 s3, s2, 3
                s_and_b32 s3, s3, 7
                s_cmp_eq_u32 {sr(sW)}, 0
                s_cselect_b32 s56, 0, s3
                ''')
            else:
                k(f's_lshr_b32 s3, s2, 3\ns_and_b32 s56, s3, 7')
            k(f'''
            s_cmp_eq_u32 {sr(sW)}, s56
            s_cbranch_scc0 {L}
            s_lshl_b32 s3, {sr(sW)}, 13
            v_lshlrev_b32 v82, 7, v0
            v_add_u32 v82, s3, v82
            v_min_u32 v82, L_end-L_pc, v82
            global_load_dword v83, v82, {P2(sPC)}
            {L}:
            ''')
        if self.o.get('cpf', 0) in (0, 2):
            code_pf()
        k(f'''
        s_lshl_b32 s3, s2, 3
        s_add_u32 s3, s3, {sr(sW)}
        s_mul_i32 s3, s3, 1280
        v_lshl_add_u32 v2, v0, 4, s3
        v_lshl_add_u32 v3, v0, 2, s3
        s_sub_u32 {sr(sI)}, s2, 40
        s_and_b32 {sr(sMB)}, s2, 7
        s_lshr_b32 {sr(sQ)}, {sr(sI)}, 3
        s_mul_i32 s3, {sr(sMB)}, 27
        s_add_u32 s3, s3, {sr(sQ)}
        s_lshr_b32 {sr(sNB)}, s3, 3
        s_and_b32 {sr(sM1)}, s3, 7
        s_mul_i32 s3, s3, 3
        s_min_u32 {sr(sD0)}, s3, 637
        s_min_u32 s55, {sr(sW)}, 5
        s_lshl_b32 s56, {sr(sD0)}, 1
        s_add_u32 s56, s56, s55
        s_lshl_b32 s56, s56, 7
        v_lshl_add_u32 v18, v0, 1, s56
        s_lshr_b32 s55, s55, 1
        s_add_u32 s55, s55, {sr(sD0)}
        s_lshl_b32 s55, s55, 1
        v_mov_b32 v19, s55
        v_min_u32 v17, 2, v0
        v_add_u32 v17, {sr(sD0)}, v17
        v_lshlrev_b32 v17, 1, v17
        ''')
        if self.o.get('wsoff'):
            k(f's_add_u32 s{pWS}, s{pWS}, {self.o["wsoff"] << 20}\ns_addc_u32 s{pWS + 1}, s{pWS + 1}, 0')
        self.stamp('start')
        if self.o.get('chase'):
            ptr, stride = self.o.get('chase_ptr', 18), self.o.get('chase_stride', 256 * 512)
            k(f's_lshl_b32 s55, s2, 9\nv_mov_b32 v10, s55')
            for i in range(self.o['chase']):
                k(f'''
                global_load_dword v11, v10, {P2(ptr)}
                v_and_b32 v11, 0, v11
                v_add_u32 v10, {stride}, v10
                v_add_u32 v10, v11, v10
                ''')
            self.stamp('chase')
        k(f'''
        global_load_dwordx4 v[92:95], v2, {P2(pX)} {self.o['nt']}
        global_load_dword v91, v3, {P2(pX)} offset:1024 {self.o['nt']}
        s_load_dword {sr(sTAG)}, {P2(pWS)}, {GEN}
        ''')
        if self.o.get('cpf', 0) in (1, 3):
            code_pf()
        L, Lh = k.label('nokl'), k.label('hc')
        k(f'''
        s_lshl_b32 s68, s2, 1
        s_and_b32 s55, {sr(sW)}, 1
        s_add_u32 s68, s68, s55
        s_min_u32 s68, s68, 479
        s_and_b32 s55, s68, 7
        s_mul_i32 s55, s55, 80
        v_lshrrev_b32 v20, 3, v0
        v_mul_u32_u24 v20, 10, v20
        v_add_u32 v20, s55, v20
        s_cmp_lt_u32 {sr(sW)}, 6
        s_cbranch_scc1 {Lh}
        v_lshlrev_b32 v21, 1, v20
        global_load_dwordx4 v[160:163], v21, {P2(pC)}
        global_load_dword v164, v21, {P2(pC)} offset:16
        v_mul_u32_u24 v20, 7680, v20
        v_and_b32 v21, 7, v0
        v_lshl_add_u32 v20, v21, 4, v20
        s_lshr_b32 s55, s68, 3
        s_lshl_b32 s55, s55, 7
        v_add_u32 v20, s55, v20
        s_branch {L}
        {Lh}:
        s_cmp_lt_u32 s2, 40
        s_cbranch_scc1 {L}
        global_load_ushort v20, v18, {P2(pLA)} {self.o['nt']}
        global_load_ushort v24, v19, {P2(pDT)}
        global_load_ushort v21, v18, {P2(pAI)} {self.o['nt']}
        global_load_ushort v22, v18, {P2(pCR)} {self.o['nt']}
        global_load_ushort v23, v18, {P2(pCI)} {self.o['nt']}
        global_load_ushort v25, v17, {P2(pDS)}
        {L}:
        ''')
        self.srd(rWS, pWS, 0x2000000)
        self.srd(rA, pWG, 640 * 1728 * 2)
        self.srd(rB, pWU, 640 * 1728 * 2)

    def early_addresses(self, part=None):
        if part is not None:
            keep, self.k = self.k, Kern()
            self.early_addresses()
            ins, self.k = self.k.ins, keep
            cuts = [n for n, x in enumerate(ins) if x.text.startswith('.cut')]
            a, b = cuts
            self.k.ins += (ins[:a] + ins[b + 1:]) if part == 0 else ins[a + 1:b]
            return
        k = self.k
        k(f'''
        v_lshrrev_b32 v16, 3, v0
        v_mul_u32_u24 v17, 3456, v16
        v_bfe_u32 v16, v0, 4, 1
        v_bfe_u32 v26, v0, 1, 2
        v_xor_b32 v26, v26, v16
        v_and_b32 v16, 1, v0
        v_lshl_add_u32 v17, v16, 4, v17
        s_lshl_b32 s55, {sr(sNB)}, 7
        v_add_u32 v17, s55, v17
        v_lshl_add_u32 v26, v26, 5, v17
        v_xor_b32 v27, 64, v26
        s_mul_i32 {sr(sWR)}, {sr(sM1)}, 5
        s_mov_b32 {sr(sWO)}, 0
        ''')
        if self.o.get('esplit'):
            k('.cut')
        k(f's_lshl_b32 s55, {sr(sW)}, 6\nv_add_u32 v89, s55, v0')
        k(f'''
        s_lshl_b32 s55, {sr(sW)}, 1
        s_lshr_b32 s56, 0xffa4, s55
        s_and_b32 s56, s56, 3
        s_lshl_b32 s57, s56, 3
        v_lshlrev_b32 v10, 2, v89
        ''')
        for j in range(4):
            k(f'''
            v_add_u32 v11, {j}, v10
            v_cvt_f32_u32 v11, v11
            v_cvt_pk_bf16_f32 v11, v11, v11
            v_lshlrev_b32 v11, 16, v11
            v_cvt_u32_f32 v11, v11
            v_lshrrev_b32 v12, 7, v11
            v_and_b32 v13, 7, v11
            v_lshl_add_u32 v12, v12, 3, v13
            v_lshrrev_b32 v12, s56, v12
            v_add_u32 v12, s57, v12
            v_mul_u32_u24 v12, 20, v12
            v_bfe_u32 v11, v11, 3, 4
            v_add_lshl_u32 v11, v12, v11, 2
            v_add_u32 {vr(GA + j)}, {KC}, v11
            ''')
        k(f'''
        v_lshlrev_b32 v208, 1, v10
        v_lshlrev_b32 v209, 2, v10
        ''')
        for i in range(2):
            k(f'''
            v_add_u32 v11, {512 * i}, v89
            v_mul_u32_u24 v12, 0x5556, v11
            v_lshrrev_b32 v12, 16, v12
            v_mul_u32_u24 v13, 3, v12
            v_sub_u32 v11, v11, v13
            v_add_u32 v11, {sr(sD0)}, v11
            v_mul_u32_u24 v12, {XNS}, v12
            v_lshl_add_u32 {vr(210 + i)}, v11, 4, v12
            ''')
        k('v_lshlrev_b32 v212, 4, v89')
        self.wread_addr(213)
        k(f'''
        v_lshrrev_b32 v11, 2, v0
        v_min_u32 v11, 11, v11
        v_mul_u32_u24 v12, 0x5556, v11
        v_lshrrev_b32 v12, 16, v12
        v_mul_u32_u24 v13, 3, v12
        v_sub_u32 v11, v11, v13
        v_cmp_eq_u32 vcc, 3, v12
        v_addc_co_u32 v12, vcc, 0, v12, vcc
        v_mul_u32_u24 v12, 640, v12
        v_add3_u32 v11, v11, v12, {sr(sD0)}
        v_lshrrev_b32 v12, 6, v11
        v_and_b32 v11, 63, v11
        v_lshlrev_b32 v11, 2, v11
        v_lshl_add_u32 v11, v12, 11, v11
        v_and_b32 v12, 3, v0
        v_lshl_add_u32 v11, v12, 8, v11
        v_add_u32 v88, {MODP}, v11
        v_min_u32 v89, 319, v89
        v_lshlrev_b32 v90, 3, v89
        v_add_u32 v90, {MOD + 3 * 2560}, v90
        ''')
        k(f'''
        v_lshrrev_b32 v8, 4, v0
        v_bfe_u32 v9, v0, 2, 2
        v_and_b32 v10, 3, v0
        v_lshlrev_b32 v11, 1, v10
        v_lshl_add_u32 v11, v8, 2, v11
        v_lshrrev_b32 v12, 1, v9
        v_add_u32 v11, v11, v12
        v_mul_u32_u24 v11, 48, v11
        v_and_b32 v12, 1, v9
        v_lshl_add_u32 v11, v12, 3, v11
        v_add_u32 v1, {XNL0 - 14 * 48}, v11
        v_sub_u32 v11, v10, v9
        v_lshlrev_b32 v12, 3, v8
        v_sub_u32 v11, v11, v12
        v_lshlrev_b32 v11, 3, v11
        v_add_u32 v2, {KA + 32 + 2 * (112 - 16)}, v11
        v_lshlrev_b32 v11, 3, v9
        v_lshl_add_u32 v11, v8, 1, v11
        v_lshrrev_b32 v12, 1, v10
        v_add_u32 v11, v11, v12
        v_mul_u32_u24 v11, 48, v11
        v_and_b32 v12, 1, v10
        v_lshl_add_u32 v11, v12, 3, v11
        v_add_u32 v5, {XNL0}, v11
        ''')
        if self.o.get('esplit'):
            k('.cut')
            k('v_lshrrev_b32 v8, 4, v0\nv_bfe_u32 v9, v0, 2, 2\nv_and_b32 v10, 3, v0')
        k(f'''
        s_mul_i32 s56, {sr(sW)}, {TRR}
        s_add_u32 s56, s56, {TR}
        v_lshl_add_u32 v6, v0, 4, s56
        v_lshl_add_u32 v7, v0, 2, s56
        v_mul_u32_u24 v4, {TRR}, v9
        v_lshl_add_u32 v4, v8, 5, v4
        v_lshl_add_u32 v4, v10, 3, v4
        s_and_b32 s55, {sr(sW)}, 1
        s_mul_i32 s56, s55, 640
        s_add_u32 s56, s56, {TR}
        v_add_u32 v4, s56, v4
        s_mul_i32 s57, s2, {XNS}
        s_mul_i32 s56, s55, 5120
        s_add_u32 s57, s57, s56
        v_lshl_add_u32 v3, v0, 4, s57
        s_add_u32 {sr(sTAG)}, {sr(sTAG)}, 0x9e3779b9
        ''')
        k(f'''
        s_and_b32 s55, s2, 7
        s_lshl_b32 s55, s55, 12
        v_lshrrev_b32 v11, 1, v0
        v_lshlrev_b32 v11, 7, v11
        v_and_b32 v12, 1, v0
        v_lshl_add_u32 v11, v12, 5, v11
        v_add_u32 v215, s55, v11
        ''')

    def poll_sync1_issue(self, va, vd):
        self.k(f'''
        global_load_dwordx4 {vr(vd, 4)}, {vr(va)}, {P2(pWS)} offset:{SYNC1} sc1
        global_load_dwordx4 {vr(vd + 4, 4)}, {vr(va)}, {P2(pWS)} offset:{SYNC1 + 16} sc1
        ''')

    def poll_sync1(self, va, vd, preissued=False):
        k = self.k
        L, D = k.label('p1'), k.label('p1d')
        if preissued:
            self.sync1_check(vd, D)
        k(f'{L}:')
        self.poll_sync1_issue(va, vd)
        self.sync1_check(vd, D)
        k(f'''
        s_sleep {self.o.get('sleep', 2)}
        s_add_u32 {sr(sSPIN)}, {sr(sSPIN)}, 1
        s_cmp_lt_u32 {sr(sSPIN)}, {SPIN_MAX}
        s_cbranch_scc1 {L}
        {D}:
        ''')

    def sync1_check(self, vd, D):
        k = self.k
        k(f'''
        v_min3_u32 {vr(vd + 8)}, {vr(vd)}, {vr(vd + 1)}, {vr(vd + 2)}
        v_max3_u32 {vr(vd + 9)}, {vr(vd)}, {vr(vd + 1)}, {vr(vd + 2)}
        v_min3_u32 {vr(vd + 8)}, {vr(vd + 8)}, {vr(vd + 3)}, {vr(vd + 4)}
        v_max3_u32 {vr(vd + 9)}, {vr(vd + 9)}, {vr(vd + 3)}, {vr(vd + 4)}
        v_min3_u32 {vr(vd + 8)}, {vr(vd + 8)}, {vr(vd + 5)}, {vr(vd + 6)}
        v_max3_u32 {vr(vd + 9)}, {vr(vd + 9)}, {vr(vd + 5)}, {vr(vd + 6)}
        v_min_u32 {vr(vd + 8)}, {vr(vd + 8)}, {vr(vd + 7)}
        v_max_u32 {vr(vd + 9)}, {vr(vd + 9)}, {vr(vd + 7)}
        v_xor_b32 {vr(vd + 8)}, {sr(sTAG)}, {vr(vd + 8)}
        v_xor_b32 {vr(vd + 9)}, {sr(sTAG)}, {vr(vd + 9)}
        v_or_b32 {vr(vd + 8)}, {vr(vd + 8)}, {vr(vd + 9)}
        v_cmp_ne_u32 vcc, 0, {vr(vd + 8)}
        s_cbranch_vccz {D}
        ''')

    def touch(self, ptr, size, sbyte, stride=128, lanes=64):
        k = self.k
        k(f'''
        v_mul_u32_u24 v84, {stride}, v0
        v_add_u32 v84, {sbyte}, v84
        v_min_u32 v84, {size - 4}, v84
        ''')
        if lanes < 64:
            k(f's_mov_b32 exec_lo, {hex((1 << min(lanes, 32)) - 1)}\ns_mov_b32 exec_hi, {hex((1 << max(lanes - 32, 0)) - 1)}')
        k(f'global_load_dword v83, v84, {P2(ptr)} {self.o.get("wpol", "")}')
        if lanes < 64:
            k('s_mov_b64 exec, -1')

    def stage_a(self):
        k = self.k
        L, L5 = k.label('nsa'), k.label('sa5')
        k(f'''
        s_cmp_lt_u32 s2, 40
        s_cbranch_scc1 {L}
        s_cmp_ge_u32 {sr(sW)}, 6
        s_cbranch_scc1 {L}
        s_cmp_eq_u32 {sr(sW)}, 5
        s_cbranch_scc1 {L5}
        s_mov_b32 {sr(sWI)}, {sr(sW)}
        ''')
        self.wunits(1, 5, 1, pol=self.o.get('wpol', ''))
        k(f's_branch {L}\n{L5}:')
        if self.o.get('pf1', 2) == 2:
            k(f'''
            s_mul_i32 s55, {sr(sWR)}, {8 * 3456}
            s_lshl_b32 s58, {sr(sNB)}, 7
            s_add_u32 s55, s55, s58
            s_add_u32 s55, s55, {320 * 3456}
            ''')
            self.touch(pWG, 640 * 1728 * 2, 's55', stride=3456, lanes=40)
            self.touch(pWU, 640 * 1728 * 2, 's55', stride=3456, lanes=40)
        if self.o.get('tm', 0):
            k(f's_mul_i32 s55, {sr(sI)}, {178 * 128}')
            for i in range(3):
                self.touch(pWM, 640 * 3840 * 2, 's55')
                if i < 2:
                    k('s_add_u32 s55, s55, 8192')
        k(f'{L}:')

    def stage_b_touch(self):
        k = self.k
        if not self.o.get('tb', 0):
            return
        L = [k.label('tb') for _ in range(5)]
        k(f's_cmp_lt_u32 {sr(sW)}, 2\ns_cbranch_scc0 {L[0]}')
        k(f's_mul_i32 s55, {sr(sI)}, {80 * 128}\ns_mul_i32 s56, {sr(sW)}, {40 * 128}\ns_add_u32 s55, s55, s56')
        self.touch(pWD, 1728 * 640 * 2, 's55', lanes=40)
        k(f's_branch {L[2]}\n{L[0]}:')
        k(f'''
        s_mul_i32 s55, {sr(sWR)}, {8 * 3456}
        s_lshl_b32 s56, {sr(sNB)}, 7
        s_add_u32 s55, s55, s56
        s_add_u32 s55, s55, {320 * 3456}
        s_cmp_eq_u32 {sr(sW)}, 2
        s_cbranch_scc0 {L[1]}
        ''')
        self.touch(pWG, 640 * 1728 * 2, 's55', stride=3456, lanes=40)
        k(f's_branch {L[2]}\n{L[1]}:\ns_cmp_eq_u32 {sr(sW)}, 3\ns_cbranch_scc0 {L[2]}')
        self.touch(pWU, 640 * 1728 * 2, 's55', stride=3456, lanes=40)
        k(f'{L[2]}:')

    def ln1(self):
        k = self.k
        X = [92, 93, 94, 95, 91]
        k('v_mov_b32 v10, v91')
        self.stamp('xld')
        if self.o.get('sa_pos', 0) == 0:
            self.stage_a()
        k(f'''
        s_mov_b32 s55, 0x3f803f80
        v_mov_b32 v10, 0
        v_mov_b32 v11, 0
        ''')
        for j in range(5):
            k(f'v_dot2_f32_bf16 v10, v{X[j]}, s55, v10')
            k(f'v_dot2_f32_bf16 v11, v{X[j]}, v{X[j]}, v11')
        k(f'''
        v_permlane32_swap_b32 v10, v11
        v_add_f32 v10, v10, v11
        ''')
        for n in (8, 4, 2, 1):
            k(f'v_add_f32_dpp v10, v10, v10 row_ror:{n} row_mask:0xf bank_mask:0xf')
        k(f'''
        v_add_f32_dpp v10, v10, v10 row_bcast:15 row_mask:0xa bank_mask:0xf
        v_mov_b32 v13, {f32(1.0 / 640)}
        v_readlane_b32 s55, v10, 31
        v_readlane_b32 s56, v10, 63
        s_lshl_b32 s57, {sr(sW)}, 2
        v_mov_b32 v14, s57
        v_mul_f32 v10, s55, v13
        v_mul_f32 v11, s56, v13
        v_fma_f32 v11, -v10, v10, v11
        v_max_f32 v11, 0, v11
        v_cvt_pk_bf16_f32 v10, v10, v11
        v_and_b32 v11, 0xffff0000, v10
        v_lshlrev_b32 v10, 16, v10
        v_add_f32 v11, {f32(1e-5)}, v11
        v_cvt_pk_bf16_f32 v11, v11, v11
        v_lshlrev_b32 v11, 16, v11
        v_sqrt_f32 v11, v11
        v_lshlrev_b32 v15, 16, v92
        v_cvt_pk_bf16_f32 v13, v10, v11
        v_and_b32 v11, 0xffff0000, v13
        v_rcp_f32 v11, v11
        ''')
        k(f'ds_write_b32 v14, v13 offset:{TR + TRM}', tag='trw')
        k('v_mul_f32 v10, -v10, v11')
        for j in range(5):
            k(f'''
            v_lshlrev_b32 v13, 16, v{X[j]}
            v_and_b32 v14, 0xffff0000, v{X[j]}
            v_fma_f32 v13, v13, v11, v10
            v_fma_f32 v14, v14, v11, v10
            v_cvt_pk_bf16_f32 v{X[j]}, v13, v14
            ''')
            if j == 3:
                k('ds_write_b128 v6, v[92:95]', tag='trw')
        k('ds_write_b32 v7, v91 offset:1024', tag='trw')
        k.wait('trw')
        k('s_barrier')
        self.stamp('trb')
        if self.o.get('sa_pos', 0) == 1:
            self.stage_a()
        Ls = k.label('nost')
        k(f'''
        s_cmp_lt_u32 {sr(sW)}, 6
        s_cbranch_scc1 {Ls}
        ''')
        for i in range(5):
            k(f'ds_read_b64_tr_b16 v[{28 + 4 * i}:{29 + 4 * i}], v4 offset:{128 * i}')
            k(f'ds_read_b64_tr_b16 v[{30 + 4 * i}:{31 + 4 * i}], v4 offset:{128 * i + 4 * TRR}')
        k(f'''
        v_lshlrev_b32 v72, 4, v0
        ds_read_b128 v[68:71], v72 offset:{TR + TRM}
        s_mov_b32 s58, {XN}
        s_mov_b32 s59, {XN + 4096}
        ''')
        for i in range(5):
            k(f'buffer_store_dwordx4 v[{28 + 4 * i}:{31 + 4 * i}], v3, {P4(rWS)}, s{58 + i // 4} offen offset:{1024 * (i % 4)} sc1', tag='xnst')
        L6, L7, L8 = k.label('w6'), k.label('w7'), k.label('w8')
        k(f'''
        s_cmp_eq_u32 {sr(sW)}, 6
        s_cbranch_scc1 {L6}
        v_mov_b32 v68, 0
        v_mov_b32 v69, 0
        v_mov_b32 v70, 0
        v_mov_b32 v71, 0
        s_cmp_ge_u32 s2, 30
        s_cbranch_scc1 {L8}
        s_add_u32 s56, s2, 30
        s_lshl_b32 s56, s56, 8
        s_add_u32 s56, s56, {MOD}
        s_mov_b64 exec, 0xffff
        buffer_store_dwordx4 v[68:71], v72, {P4(rWS)}, s56 offen sc1
        {L8}:
        s_mul_i32 s56, s2, 352
        s_add_u32 s56, s56, {ZBEG}
        s_mov_b64 exec, 0x3fffff
        s_branch {L7}
        {L6}:
        s_lshl_b32 s56, s2, 5
        s_add_u32 s56, s56, {MS}
        s_mov_b64 exec, 3
        {L7}:
        ''')
        k(f'buffer_store_dwordx4 v[68:71], v72, {P4(rWS)}, s56 offen sc1', tag='xnst')
        k(f'''
        s_cmp_lt_u32 s2, 240
        s_cselect_b64 exec, 0xffff, 0
        v_mov_b32 v74, 0
        v_mov_b32 v75, 0
        v_mov_b32 v76, 0
        v_mov_b32 v77, 0
        s_lshl_b32 s56, s68, 8
        s_add_u32 s69, s56, {MODP}
        ''')
        k(f'buffer_store_dwordx4 v[74:77], v72, {P4(rWS)}, s69 offen sc1', tag='xnst')
        k(f'''
        s_mov_b64 exec, -1
        v_mov_b32 v74, 0
        v_mov_b32 v75, 0
        v_mov_b32 v76, 0
        v_mov_b32 v77, 0
        s_lshl_b32 s56, {sr(sNB)}, 3
        s_add_u32 s56, s56, {sr(sM1)}
        s_lshl_b32 s56, s56, 10
        s_and_b32 s57, {sr(sW)}, 1
        s_lshl_b32 s57, s57, 9
        s_add_u32 s56, s56, s57
        s_add_u32 s56, s56, {CSP}
        s_cmp_ge_u32 s2, 40
        s_cselect_b32 exec_lo, -1, 0
        s_mov_b32 exec_hi, 0
        ''')
        k(f'buffer_store_dwordx4 v[74:77], v72, {P4(rWS)}, s56 offen sc1', tag='xnst')
        k('s_mov_b64 exec, -1')

        def mod_loads():
            k('s_cmp_lt_u32 s2, 240\ns_cselect_b64 exec, -1, 0')
            for i in range(10):
                k(f'global_load_dwordx4 {vr(216 + 4 * i, 4)}, v20, {P2(pWM)} {self.o["nt"]}')
                if i < 9:
                    k('v_add_u32 v20, 7680, v20')
            k('s_mov_b64 exec, -1')
        if self.o.get('mod_pre', 1):
            mod_loads()
        self.silu10()
        if self.o.get('esplit'):
            self.early_addresses(1)
        k(f'''
        s_mov_b64 exec, -1
        s_lshr_b32 s56, s2, 3
        s_lshl_b32 s56, s56, 7
        s_and_b32 s57, s2, 7
        s_lshl_b32 s57, s57, 3
        s_add_u32 s56, s56, s57
        s_and_b32 s57, {sr(sW)}, 1
        s_lshl_b32 s57, s57, 2
        s_add_u32 s56, s56, s57
        v_lshl_add_u32 v16, v0, 12, s56
        v_mov_b32 v17, {sr(sTAG)}
        s_mov_b64 exec, 0xff
        ''')
        k.wait('xnst')
        k(f'''
        global_store_dword v16, v17, {P2(pWS)} offset:{SYNC1} sc1
        s_mov_b64 exec, -1
        ''')
        self.stamp('A')
        Lm = k.label('nwb')
        nb_ = self.o.get('wb', 0)

        if self.o.get('mod_first', 0) and not self.o.get('mod_pre', 1):
            mod_loads()
        if nb_:
            k(f'''
            s_cmp_lt_u32 s2, 40
            s_cbranch_scc1 {Lm}
            s_sub_u32 {sr(sWI)}, {sr(sW)}, 1
            ''')
            self.wunits(nb_, 5 + 2 * nb_, 2, check=False)
            k(f'{Lm}:')
        if not self.o.get('mod_first', 0) and not self.o.get('mod_pre', 1):
            mod_loads()
        k(f'{Ls}:')

    def silu10(self):
        k = self.k
        CV = 140
        for i in range(10):
            k(f'v_lshlrev_b32 {vr(CV + i)}, 16, {vr(160 + i // 2)}' if i % 2 == 0 else f'v_and_b32 {vr(CV + i)}, 0xffff0000, {vr(160 + i // 2)}')
            k(f'v_mul_f32 {vr(150 + i)}, {f32(-LOG2E)}, {vr(CV + i)}')
        for op in ('v_exp_f32 {t}, {t}', 'v_add_f32 {t}, 1.0, {t}', 'v_rcp_f32 {t}, {t}', 'v_mul_f32 {c}, {c}, {t}',
                   'v_cvt_pk_bf16_f32 {c}, {c}, {c}', 'v_lshlrev_b32 {c}, 16, {c}'):
            for i in range(10):
                k(op.format(t=vr(150 + i), c=vr(CV + i)))

    def mod_partial(self):
        k = self.k
        LD, CV, V = 216, 140, 68
        L = k.label('nomp')
        k(f's_cmp_lt_u32 {sr(sW)}, 6\ns_cbranch_scc1 {L}\ns_cmp_ge_u32 s2, 240\ns_cbranch_scc1 {L}')
        for i in range(10):
            for j in range(4):
                r = LD + 4 * i + j
                a, b = 76 + 2 * (j % 2), 77 + 2 * (j % 2)
                k(f'v_lshlrev_b32 v{a}, 16, {vr(r)}\nv_and_b32 v{b}, 0xffff0000, {vr(r)}')
                if i == 0:
                    k(f'v_mul_f32 {vr(V + 2 * j)}, v{a}, {vr(CV)}\nv_mul_f32 {vr(V + 2 * j + 1)}, v{b}, {vr(CV)}')
                else:
                    k(f'v_fmac_f32 {vr(V + 2 * j)}, v{a}, {vr(CV + i)}\nv_fmac_f32 {vr(V + 2 * j + 1)}, v{b}, {vr(CV + i)}')
        for i in range(4):
            k(f'v_permlane32_swap_b32 {vr(V + i)}, {vr(V + 4 + i)}')
        for i in range(4):
            k(f'v_add_f32 {vr(V + i)}, {vr(V + i)}, {vr(V + 4 + i)}')
        for i in range(2):
            k(f'v_permlane16_swap_b32 {vr(V + i)}, {vr(V + 2 + i)}')
        for i in range(2):
            k(f'v_add_f32 {vr(V + i)}, {vr(V + i)}, {vr(V + 2 + i)}')
        k(f'''
        v_lshrrev_b32 v76, 4, v0
        v_and_b32 v77, 7, v0
        v_lshlrev_b32 v76, 3, v76
        v_lshl_add_u32 v76, v77, 5, v76
        ''')
        for i in range(2):
            k(f'v_add_f32_dpp {vr(V + i)}, {vr(V + i)}, {vr(V + i)} row_ror:8 row_mask:0xf bank_mask:0xf')
        k(f'''
        v_or_b32 {vr(V)}, 1, {vr(V)}
        v_or_b32 {vr(V + 1)}, 1, {vr(V + 1)}
        s_mov_b32 exec_lo, 0x00ff00ff
        s_mov_b32 exec_hi, 0x00ff00ff
        buffer_store_dwordx2 {vr(V, 2)}, v76, {P4(rWS)}, s69 offen sc1
        s_mov_b64 exec, -1
        ''')
        self.stamp('modp')
        k(f'{L}:')

    def wunits(self, n, end, step, check=True, pol=''):
        k = self.k
        L = k.label('wsd')
        for i in range(n):
            if check:
                k(f's_cmp_ge_u32 {sr(sWI)}, {end}\ns_cbranch_scc1 {L}')
            k(f'''
            s_add_u32 s55, {sr(sWI)}, {sr(sWR)}
            s_sub_u32 s56, s55, 40
            s_cselect_b32 s55, s55, s56
            s_lshl_b32 s56, s55, 11
            s_add_u32 m0, s56, {STG}
            s_mul_i32 s55, s55, {8 * 3456}
            s_add_u32 s55, s55, {sr(sWO)}
            s_add_u32 {sr(sWI)}, {sr(sWI)}, {step}
            ''')
            k(f'buffer_load_dwordx4 v26, {P4(rA)}, s55 offen {pol} lds', tag='wst')
            k(f's_add_u32 m0, s56, {STG + 1024}')
            k(f'buffer_load_dwordx4 v27, {P4(rB)}, s55 offen {pol} lds', tag='wst')
        k(f'{L}:')

    def wread_addr(self, va):
        self.k(f'''
        v_bfe_u32 {vr(va + 1)}, v0, 3, 2
        s_and_b32 s55, {sr(sW)}, 3
        v_xor_b32 {vr(va + 1)}, s55, {vr(va + 1)}
        v_lshrrev_b32 {vr(va)}, 4, v0
        v_lshlrev_b32 {vr(va)}, 10, {vr(va)}
        v_lshl_add_u32 {vr(va)}, {vr(va + 1)}, 5, {vr(va)}
        v_bfe_u32 {vr(va + 1)}, v0, 2, 2
        v_lshl_add_u32 {vr(va)}, {vr(va + 1)}, 7, {vr(va)}
        v_and_b32 {vr(va + 1)}, 3, v0
        v_lshl_add_u32 {vr(va)}, {vr(va + 1)}, 3, {vr(va)}
        v_add_u32 {vr(va)}, {STG}, {vr(va)}
        v_add_u32 {vr(va + 1)}, {10 * 4096}, {vr(va)}
        ''')

    def wstage_read(self, rnd, va):
        k = self.k
        for s in range(20):
            r = WF + 4 * (20 * rnd + s)
            a = va if s < 10 else va + 1
            off = (s % 10) * 4096
            k(f'ds_read_b64_tr_b16 {vr(r, 2)}, {vr(a)} offset:{off}', tag='wrd')
            k(f'ds_read_b64_tr_b16 {vr(r + 2, 2)}, {vr(a)} offset:{off + 512}', tag='wrd')

    def cmul(self, d, a, b):
        self.k(f'v_pk_mul_f32 {vr(d, 2)}, {vr(a, 2)}, {vr(b, 2)} op_sel:[0,0] op_sel_hi:[0,1]')
        self.k(f'v_pk_fma_f32 {vr(d, 2)}, {vr(a, 2)}, {vr(b, 2)}, {vr(d, 2)} op_sel:[1,1,0] op_sel_hi:[1,0,1] neg_lo:[1,0,0]')

    def zpow(self, d, e, a2, fr, t):
        k = self.k
        k(f'''
        v_mul_f32 {vr(t)}, {f32(e)}, {vr(a2)}
        v_mul_f32 {vr(t + 1)}, {f32(e)}, {vr(fr)}
        v_exp_f32 {vr(t)}, {vr(t)}
        v_fract_f32 {vr(t + 1)}, {vr(t + 1)}
        v_cos_f32 {vr(d)}, {vr(t + 1)}
        v_sin_f32 {vr(d + 1)}, {vr(t + 1)}
        v_mul_f32 {vr(d)}, {vr(d)}, {vr(t)}
        v_mul_f32 {vr(d + 1)}, {vr(d + 1)}, {vr(t)}
        ''')

    def kgen(self):
        k = self.k
        Lskip = k.label('nokg')
        k(f's_cmp_ge_u32 {sr(sW)}, 6\ns_cbranch_scc1 {Lskip}')
        if self.o.get('esplit') == 1:
            self.early_addresses(1)
        A2, FR, T = 28, 29, 30
        Z = {e: 32 + 2 * e for e in range(1, 8)}
        Z8, Z128, QA, QB, PA, PB, PC = 48, 50, 52, 54, 56, 58, 60
        CV = 62
        QF, PF, AC = 64, 176, 192
        RA = 80
        k(f'''
        v_lshlrev_b32 v24, 16, v24
        v_lshlrev_b32 v20, 16, v20
        v_mul_f32 v24, {f32(LOG2E)}, v24
        v_mul_f32 v20, {f32(LOG2E)}, v20
        v_exp_f32 v24, v24
        v_exp_f32 v20, v20
        v_lshlrev_b32 v21, 16, v21
        v_cvt_pk_bf16_f32 v20, v20, v24
        v_and_b32 v24, 0xffff0000, v20
        v_lshlrev_b32 v20, 16, v20
        v_mul_f32 {vr(A2)}, v20, v24
        v_mul_f32 {vr(FR)}, v21, v24
        v_mul_f32 {vr(A2)}, {f32(-LOG2E)}, {vr(A2)}
        v_mul_f32 {vr(FR)}, 0.15915494, {vr(FR)}
        v_add_f32 v24, v24, v24
        v_lshlrev_b32 v22, 16, v22
        v_lshlrev_b32 v23, 16, v23
        v_mul_f32 {vr(QA)}, v22, v24
        v_mul_f32 {vr(QA + 1)}, v23, v24
        s_mul_i32 s60, {sr(sW)}, {KGS}
        s_mov_b32 m0, s60
        v_and_b32 {vr(RA)}, 15, v0
        v_mul_u32_u24 {vr(RA)}, 288, {vr(RA)}
        v_lshrrev_b32 {vr(RA + 1)}, 4, v0
        v_lshl_add_u32 {vr(RA)}, {vr(RA + 1)}, 4, {vr(RA)}
        v_add_u32 {vr(RA)}, s60, {vr(RA)}
        ''')
        self.zpow(Z8, 8.0, A2, FR, T)
        self.zpow(Z[1], 1.0, A2, FR, T)
        self.zpow(Z128, 128.0, A2, FR, T)
        flip = [0]

        def put(row, r, neg=False):
            c = CV + flip[0]
            flip[0] ^= 1
            k(f'v_cvt_pk_bf16_f32 {vr(c)}, {vr(r)}, {"-" if neg else ""}{vr(r + 1)}')
            k(f'ds_write_addtid_b32 {vr(c)} offset:{288 * row}')

        def frags(dst):
            for s in range(4):
                k(f'ds_read_b128 {vr(dst + 4 * s, 4)}, {vr(RA)} offset:{64 * s}')

        def mm(acc):
            for s in range(4):
                c = '0' if s == 0 else vr(acc, 4)
                k(f'v_mfma_f32_16x16x32_bf16 {vr(acc, 4)}, {vr(PF + 4 * s, 4)}, {vr(QF + 4 * s, 4)}, {c}')

        small = [(2, 1, 1), (3, 2, 1), (4, 2, 2), (5, 4, 1), (6, 4, 2), (7, 4, 3)]
        cur, nxt = QA, QB
        for b in range(16):
            if b < 15:
                self.cmul(nxt, cur, Z8)
            put(b, cur, neg=True)
            if b < len(small):
                e, x, y = small[b]
                self.cmul(Z[e], Z[x], Z[y])
            cur, nxt = nxt, cur
        frags(QF)
        self.stage_b_touch()
        k(f'v_mov_b32 {vr(CV)}, 0x3f80')
        k(f'ds_write_addtid_b32 {vr(CV)} offset:0')
        flip[0] = 1
        put(8, Z128)
        cur, nxt = PA, PB
        for e in range(1, 8):
            self.cmul(cur, Z[e], Z128)
            put(e, Z[e])
            put(8 + e, cur)
            cur, nxt = nxt, cur
        frags(PF)
        self.cmul(QA, Z128, Z128)
        self.cmul(QB, QA, Z128)
        mm(AC)
        put(0, QA)
        put(4, QB)
        for e in (1, 2, 3):
            self.cmul(PA, QA, Z[2 * e])
            self.cmul(PB, QB, Z[2 * e])
            put(e, PA)
            put(4 + e, PB)
        cur, nxt = QB, QA
        for a in range(4):
            self.cmul(nxt, cur, Z128)
            self.cmul(PA, nxt, Z[4])
            put(8 + 2 * a, nxt)
            put(9 + 2 * a, PA)
            cur, nxt = nxt, cur
        frags(PF)
        self.cmul(nxt, cur, Z128)
        cur, nxt = nxt, cur
        mm(AC + 4)
        for a in range(9):
            if a < 8:
                self.cmul(nxt, cur, Z128)
            put(a, cur)
            cur, nxt = nxt, cur
        frags(PF)
        k(f'''
        v_lshrrev_b32 {vr(RA + 1)}, 4, v0
        v_mul_u32_u24 {vr(RA + 1)}, 320, {vr(RA + 1)}
        v_and_b32 {vr(RA + 2)}, 15, v0
        v_lshl_add_u32 {vr(RA + 1)}, {vr(RA + 2)}, 2, {vr(RA + 1)}
        s_mul_i32 s55, {sr(sW)}, {KCS}
        s_add_u32 s55, s55, {KC}
        v_add_u32 {vr(RA + 1)}, s55, {vr(RA + 1)}
        ''')
        for Tt in range(2):
            for i in range(4):
                k(f'ds_write_b32 {vr(RA + 1)}, {vr(AC + 4 * Tt + i)} offset:{(16 * Tt + i) * 80}', tag='kcw')
        mm(AC + 8)
        for i in range(4):
            k(f'ds_write_b32 {vr(RA + 1)}, {vr(AC + 8 + i)} offset:{(32 + i) * 80}', tag='kcw')
        if self.o.get('esplit') == 2:
            self.early_addresses(1)
        wk = self.o.get('wk', 5)
        if wk:
            k(f's_cmp_ge_u32 {sr(sW)}, 4\ns_cbranch_scc1 {Lskip}')
            k(f's_add_u32 {sr(sWI)}, {sr(sW)}, {5 + 2 * self.o.get("wb", 0)}')
            self.wunits(wk, min(40, 5 + 2 * self.o.get('wb', 0) + 4 * wk), 4)
        k(f'{Lskip}:')

    def kexpand1(self):
        k = self.k
        V = lambda ch, j: 36 + 4 * ch + j
        PK, SC = 48, 54
        k(f'''
        v_lshlrev_b32 v25, 16, v25
        v_cmp_eq_u32 s[58:59], 0, v208
        v_readlane_b32 s62, v25, 0
        v_readlane_b32 s63, v25, 1
        v_readlane_b32 s64, v25, 2
        v_mov_b32 v64, 0
        v_mov_b32 v65, 0
        v_mov_b32 v66, 0
        v_mov_b32 v67, 0
        v_lshlrev_b32 v35, 4, v0
        ''')
        for ch in range(3):
            k(f'v_mov_b32 {vr(SC + ch)}, s{62 + ch}')
            k(f'v_cndmask_b32 {vr(SC + ch)}, 0, {vr(SC + ch)}, s[58:59]')
        k.wait('kcw')
        k('s_barrier')
        self.stamp('kcw')
        if self.o.get('pre1', 2) == 1:
            L = self.only_wave(0)
            self.poll_sync1_issue(215, 68)
            k(f'{L}:')
        for ch in range(3):
            for j in range(4):
                k(f'ds_read2st64_b32 {vr(176 + 8 * ch + 2 * j, 2)}, {vr(GA + j)} offset0:{30 * ch} offset1:{30 * ch + 15}')
        L = self.only_wave(7)
        k(f's_mov_b32 exec_lo, -1\ns_mov_b32 exec_hi, 0x3ff')
        k(f'ds_write_b128 v35, v[64:67] offset:{XNL0 - 672}', tag='kaw')
        k(f's_mov_b64 exec, 3')
        for ch in range(3):
            k(f'ds_write_b128 v35, v[64:67] offset:{KA + ch * KAS}', tag='kaw')
        k(f's_mov_b64 exec, -1')
        k(f'{L}:')
        done = min(40, 5 + 2 * self.o.get('wb', 0) + 4 * self.o.get('wk', 5))
        if done < 40:
            k(f's_add_u32 {sr(sWI)}, {sr(sW)}, {done}')
            self.wunits((40 - done + 7) // 8, 40, 8)
        for ch in range(3):
            for j in range(4):
                k(f'v_add_f32 {vr(V(ch, j))}, {vr(176 + 8 * ch + 2 * j)}, {vr(177 + 8 * ch + 2 * j)}')
            k(f'v_add_f32 {vr(V(ch, 0))}, {vr(V(ch, 0))}, {vr(SC + ch)}')
        for ch in range(3):
            k(f'v_cvt_pk_bf16_f32 {vr(PK + 2 * ch)}, {vr(V(ch, 0))}, {vr(V(ch, 1))}')
            k(f'v_cvt_pk_bf16_f32 {vr(PK + 2 * ch + 1)}, {vr(V(ch, 2))}, {vr(V(ch, 3))}')
            k(f'ds_write_b64 v208, {vr(PK + 2 * ch, 2)} offset:{KA + ch * KAS + 32}', tag='kaw')
        if self.o.get('pre1', 2) == 2:
            L = self.only_wave(0)
            self.poll_sync1_issue(215, 68)
            k(f'{L}:')
        for j in range(1, 4):
            for ch in range(3):
                k(f'v_add_f32 {vr(V(ch, j))}, {vr(V(ch, j))}, {vr(V(ch, j - 1))}')
        for n in (1, 2, 4, 8):
            for ch in range(3):
                src = V(ch, 3) if n == 1 else SC + ch
                k(f'v_add_f32_dpp {vr(SC + ch)}, {vr(src)}, {vr(src)} row_shr:{n} row_mask:0xf bank_mask:0xf bound_ctrl:0')
        for ch in range(3):
            k(f'v_add_f32_dpp {vr(SC + ch)}, {vr(SC + ch)}, {vr(SC + ch)} row_bcast:15 row_mask:0xa bank_mask:0xf')
        for ch in range(3):
            k(f'v_add_f32_dpp {vr(SC + ch)}, {vr(SC + ch)}, {vr(SC + ch)} row_bcast:31 row_mask:0xc bank_mask:0xf')
        k(f'''
        s_lshl_b32 s55, {sr(sW)}, 2
        s_add_u32 s55, s55, {WT}
        v_mov_b32 v33, s55
        s_mov_b32 exec_lo, 0
        s_brev_b32 exec_hi, 1
        ''')
        for ch in range(3):
            k(f'ds_write_b32 v33, {vr(SC + ch)} offset:{32 * ch}', tag='kaw')
        k('s_mov_b64 exec, -1')

    def kexpand2(self):
        k = self.k
        V = lambda ch, j: 36 + 4 * ch + j
        SC = 54
        k(f'''
        v_min_u32 v33, 23, v0
        v_lshlrev_b32 v33, 2, v33
        v_add_u32 v33, {WT}, v33
        ds_read_b32 v34, v33
        v_and_b32 v33, 7, v0
        v_cmp_gt_u32 vcc, {sr(sW)}, v33
        ''')
        for ch in range(3):
            k(f'v_sub_f32 {vr(SC + ch)}, {vr(SC + ch)}, {vr(V(ch, 3))}')
        k('v_cndmask_b32 v34, 0, v34, vcc')
        for n in (1, 2, 4):
            k(f'v_add_f32_dpp v34, v34, v34 row_shr:{n} row_mask:0xf bank_mask:0xf bound_ctrl:0')
        k(f'''
        v_readlane_b32 s62, v34, 7
        v_readlane_b32 s63, v34, 15
        v_readlane_b32 s64, v34, 23
        ''')
        for ch in range(3):
            k(f'v_add_f32 {vr(SC + ch)}, s{62 + ch}, {vr(SC + ch)}')
            for j in range(4):
                k(f'v_add_f32 {vr(V(ch, j))}, {vr(V(ch, j))}, {vr(SC + ch)}')
            k(f'ds_write_b128 v209, {vr(V(ch, 0), 4)} offset:{SA + ch * SAS}', tag='saw')

    def conv_loads(self):
        k = self.k
        k(f'''
        s_lshl_b32 s60, {sr(sW)}, 10
        s_mov_b32 s57, {XN}
        s_mov_b32 s58, {MS}
        ''')
        L = self.only_wave(0)
        self.poll_sync1(215, 68, preissued=self.o.get('pre1', 2))
        k(f'{L}:')
        self.stamp('polled')
        k.wait('kaw', 'wst')
        self.stamp('wland')
        k('s_barrier')
        self.stamp('sync1')
        k(f's_add_u32 m0, s60, {XNL0}')
        k(f'buffer_load_dwordx4 v210, {P4(rWS)}, s57 offen sc1 lds', tag='xnl')
        L = k.label('x2')
        k(f's_cmp_ge_u32 {sr(sW)}, 4\ns_cbranch_scc1 {L}\ns_add_u32 m0, s60, {XNL0 + 8192}')
        k(f'buffer_load_dwordx4 v211, {P4(rWS)}, s57 offen sc1 lds', tag='xnl')
        k(f'{L}:\ns_add_u32 m0, s60, {MSL}')
        k(f'buffer_load_dwordx4 v212, {P4(rWS)}, s58 offen sc1 lds', tag='xnl')
        if self.o.get('pf1', 2) == 1:
            L = k.label('npf')
            k(f'''
            s_cmp_ge_u32 {sr(sW)}, 2
            s_cbranch_scc1 {L}
            s_cmp_eq_u32 {sr(sW)}, 0
            s_cselect_b32 s56, s{pWG}, s{pWU}
            s_cselect_b32 s57, s{pWG + 1}, s{pWU + 1}
            s_mul_i32 s55, {sr(sWR)}, {8 * 3456}
            s_lshl_b32 s58, {sr(sNB)}, 7
            s_add_u32 s55, s55, s58
            s_add_u32 s55, s55, {320 * 3456}
            ''')
            self.touch(56, 640 * 1728 * 2, 's55', stride=3456, lanes=40)
            k(f'{L}:')

    def conv_consts(self):
        k = self.k
        Lr, Ld = k.label('mr'), k.label('md')
        chk = f'''
        v_min_u32 v16, v17, v23
        v_cmp_eq_u32 vcc, 0, v16
        s_cbranch_vccz {Ld}
        '''
        k(chk)
        k(f'''
        {Lr}:
        global_load_dword v17, v88, {P2(pWS)} sc1
        global_load_dword v23, v88, {P2(pWS)} offset:1024 sc1
        ''')
        k(chk)
        k(f'''
        s_sleep {self.o.get('sleep', 2)}
        s_add_u32 {sr(sSPIN)}, {sr(sSPIN)}, 1
        s_cmp_lt_u32 {sr(sSPIN)}, {SPIN_MAX}
        s_cbranch_scc1 {Lr}
        {Ld}:
        v_add_f32 v17, v17, v23
        v_add_f32_dpp v17, v17, v17 quad_perm:[1,0,3,2] row_mask:0xf bank_mask:0xf
        v_add_f32_dpp v17, v17, v17 quad_perm:[2,3,0,1] row_mask:0xf bank_mask:0xf
        v_cvt_pk_bf16_f32 v17, v17, v17
        v_lshlrev_b32 v17, 16, v17
        v_add_f32 v16, 1.0, v17
        v_cvt_pk_bf16_f32 v16, v16, v16
        v_lshlrev_b32 v16, 16, v16
        ''')
        for ch in range(3):
            k(f'v_readlane_b32 s55, v17, {4 * (6 + ch)}')
            k(f'v_readlane_b32 {sr(sCH + 3 * ch + 2)}, v16, {4 * (9 + ch)}')
            k(f'v_mul_f32 v18, s55, v16\nv_mul_f32 v19, s55, v17')
            k(f'v_readlane_b32 {sr(sCH + 3 * ch)}, v18, {4 * (3 + ch)}')
            k(f'v_readlane_b32 {sr(sCH + 3 * ch + 1)}, v19, {4 * ch}')

    def conv(self, setup_only=False):
        k = self.k
        H, KF, ACC, AX = 32, 64, 176, 208
        vHB, vKB, vH, vK, vXB, vSB, vO = 1, 2, 3, 4, 5, 6, 7
        XV, SV, TT, MV = 212, 216, 224, 244
        sL, sG, sC, sN = 65, 66, 67, 68
        sG2, sC2, sM, sO, sME, sOE = 94, 95, 96, 97, 98, 99
        U = lambda G, ch: 4 * ch + G
        lists = self.o.get('units') or [[U(3, 0)], [U(3, 1)], [U(3, 2)], [U(2, 0)], [U(0, 0), U(1, 0)], [U(0, 1), U(1, 1)],
                                        [U(0, 2), U(2, 2)], [U(1, 2), U(2, 1)]]
        lo = sum(lists[w][0] << (4 * w) for w in range(8))
        hi = sum(lists[w][1] << (4 * (w - 4)) for w in range(4, 8))
        hs = lambda m: H + 4 * (m % 8)
        ks = lambda q: KF + 4 * (q % 4)

        def ldh(slot_m, base, off):
            k(f'ds_read_b64_tr_b16 {vr(hs(slot_m), 2)}, {vr(base)} offset:{off}')
            k(f'ds_read_b64_tr_b16 {vr(hs(slot_m) + 2, 2)}, {vr(base)} offset:{off + 96}')

        def ldk(q, off):
            k(f'ds_read_b64_tr_b16 {vr(ks(q), 2)}, {vr(vK)} offset:{off + 32}')
            k(f'ds_read_b64_tr_b16 {vr(ks(q) + 2, 2)}, {vr(vK)} offset:{off}')

        def mf(acc, m, q, zero=False):
            c = '0' if zero else vr(acc, 4)
            k(f'v_mfma_f32_16x16x32_bf16 {vr(acc, 4)}, {vr(hs(m), 4)}, {vr(ks(q), 4)}, {c}')

        def decode(code):
            k(f"""
            s_and_b32 {sr(sG)}, {code}, 3
            s_bfe_u32 {sr(sC)}, {code}, 0x20002
            s_mul_i32 s55, {sr(sG)}, 3072
            s_lshl_b32 s56, {sr(sC)}, 4
            s_add_u32 s55, s55, s56
            v_add_u32 {vr(vH)}, s55, {vr(vHB)}
            v_add_u32 v8, s55, {vr(vXB)}
            s_mul_i32 s56, {sr(sC)}, {KAS}
            v_add_u32 {vr(vK)}, s56, {vr(vKB)}
            s_lshl_b32 s55, {sr(sC)}, 13
            s_lshl_b32 s56, {sr(sG)}, 11
            s_add_u32 s55, s55, s56
            s_add_u32 s55, s55, {SA}
            v_lshl_add_u32 {vr(vSB)}, v0, 2, s55
            s_add_u32 s56, s56, {MSL}
            v_lshl_add_u32 v22, v0, 2, s56
            """)

        def first_loads():
            ldk(0, 0)
            for i in (7, 6, 5, 4, 3, 2, 1, 0):
                ldh(i, vH, 384 * i)
            ldk(1, 256)
            k(f'v_subrev_u32 v11, 768, {vr(vH)}\nv_subrev_u32 {vr(vH)}, 3840, {vr(vH)}')

        def const_loads():
            k(f'global_load_dword v17, v88, {P2(pWS)} sc1\nglobal_load_dword v23, v88, {P2(pWS)} offset:1024 sc1')

        def tab_loads():
            k(f'global_load_dwordx2 v[12:13], v90, {P2(pWS)} sc1\nglobal_load_dwordx2 v[14:15], v90, {P2(pWS)} offset:2560 sc1')

        def wdma(part):
            if self.o.get('x_cnow'):
                return
            if part == 0:
                k(f's_mov_b32 m0, {sr(sM)}')
                k(f'buffer_load_dwordx4 v26, {P4(rA)}, {sr(sO)} offen lds', tag='wst')
            else:
                k(f's_add_u32 m0, {sr(sM)}, 1024\ns_add_u32 {sr(sM)}, {sr(sM)}, 2048')
                k(f'buffer_load_dwordx4 v27, {P4(rB)}, {sr(sO)} offen lds', tag='wst')
                k(f's_add_u32 {sr(sO)}, {sr(sO)}, {8 * 3456}\ns_min_u32 {sr(sM)}, {sr(sM)}, {sr(sME)}\ns_min_u32 {sr(sO)}, {sr(sO)}, {sr(sOE)}')

        def base_ops(i):
            xr, t, u = XV + i // 2, TT + 11 + i, TT + 1 + i
            return [f'v_lshlrev_b32 {vr(t)}, 16, {vr(xr)}' if i % 2 == 0 else f'v_and_b32 {vr(t)}, 0xffff0000, {vr(xr)}',
                    f'v_and_b32 {vr(u)}, 0xffff0000, {vr(MV + i)}',
                    f'v_lshlrev_b32 {vr(MV + i)}, 16, {vr(MV + i)}',
                    f'v_fmac_f32 {vr(MV + i)}, {vr(t)}, {vr(u)}']

        def mfma_part(dma, consts, tabs, maybe_short, hook=None):
            Lloop, Ltail = k.label('cl'), k.label('ct')
            for e in range(4):
                k(f'v_mov_b32 {vr(AX + e)}, 0')
            k(f's_mov_b32 {sr(sN)}, {sr(sG)}')
            if self.o.get('cspread', 1):
                def rk(q, off, half):
                    k(f'ds_read_b64_tr_b16 {vr(ks(q) + 2 * half, 2)}, {vr(vK)} offset:{off + (0 if half else 32)}')

                def rh(slot_m, base, off, half):
                    k(f'ds_read_b64_tr_b16 {vr(hs(slot_m) + 2 * half, 2)}, {vr(base)} offset:{off + 96 * half}')

                def full_step(u, base, o6, o7, zero, extra):
                    fill = {7: lambda: rk(u + 2, 256 * (u + 2), 0), 6: lambda: rk(u + 2, 256 * (u + 2), 1),
                            5: lambda: rh(7 - 2 * u, base, o7, 0), 4: lambda: rh(7 - 2 * u, base, o7, 1),
                            3: lambda: rh(6 - 2 * u, base, o6, 0), 2: lambda: rh(6 - 2 * u, base, o6, 1)}
                    for i in (7, 6, 5, 4, 3, 2, 1, 0):
                        mf(ACC + 4 * i, i - 2 * u, u, zero)
                        if i in fill:
                            fill[i]()
                        if extra and dma and i == 1:
                            wdma((u + 1) % 2)
                        if extra and i == 0 and u == 2 and consts:
                            const_loads()
                        if extra and u == 4 and i == 0:
                            k(f's_sub_u32 {sr(sN)}, {sr(sN)}, 1')
                            k(f'v_subrev_u32 {vr(vH)}, 3072, {vr(vH)}\nv_add_u32 {vr(vK)}, 1024, {vr(vK)}')
                    if extra:
                        mf(AX, 1 - 2 * u, u - 1)
                full_step(0, 11, 0, 384, True, False)
                if maybe_short:
                    k(f's_cmp_eq_u32 {sr(sN)}, 0\ns_cbranch_scc1 {Ltail}')
                k(f'{Lloop}:')
                for u in range(1, 5):
                    full_step(u, vH, 384 * (8 - 2 * u), 384 * (9 - 2 * u), False, True)
                if hook:
                    hook()
                k(f's_cmp_lg_u32 {sr(sN)}, 0\ns_cbranch_scc1 {Lloop}\n{Ltail}:')
                if tabs:
                    tab_loads()
                for i in (7, 6, 5, 4, 3, 2):
                    mf(ACC + 4 * i, i - 2, 1)
                    if i in (7, 6):
                        rk(3, 768, 7 - i)
                    if dma and i in (5, 3):
                        wdma(0 if i == 5 else 1)
            else:
                mf(ACC + 28, 7, 0, True)
                mf(ACC + 24, 6, 0, True)
                ldh(6, 11, 0)
                ldh(7, 11, 384)
                for i in (5, 4, 3, 2, 1, 0):
                    mf(ACC + 4 * i, i, 0, True)
                if maybe_short:
                    k(f's_cmp_eq_u32 {sr(sN)}, 0\ns_cbranch_scc1 {Ltail}')
                k(f'{Lloop}:')
                for u in range(1, 5):
                    mf(ACC + 28, 7 - 2 * u, u)
                    mf(ACC + 24, 6 - 2 * u, u)
                    ldh(6 - 2 * u, vH, 384 * (8 - 2 * u))
                    ldh(7 - 2 * u, vH, 384 * (9 - 2 * u))
                    ldk(u + 1, 256 * (u + 1))
                    for i in (5, 4, 3, 2, 1, 0):
                        mf(ACC + 4 * i, i - 2 * u, u)
                        if self.o.get('wslow', 1):
                            if dma and i == 3:
                                wdma((u + 1) % 2)
                        else:
                            if dma and i == 5:
                                wdma(0)
                            if dma and i == 2:
                                wdma(1)
                        if i == 4 and u == 2 and consts:
                            const_loads()
                        if i == 4 and u == 3 and tabs and not self.o.get('tab_tail', 1):
                            tab_loads()
                        if u == 4 and i == 1:
                            k(f's_sub_u32 {sr(sN)}, {sr(sN)}, 1')
                            k(f'v_subrev_u32 {vr(vH)}, 3072, {vr(vH)}\nv_add_u32 {vr(vK)}, 1024, {vr(vK)}')
                    mf(AX, 1 - 2 * u, u - 1)
                if hook:
                    hook()
                k(f's_cmp_lg_u32 {sr(sN)}, 0\ns_cbranch_scc1 {Lloop}\n{Ltail}:')
                if tabs and self.o.get('tab_tail', 1):
                    tab_loads()
                ldk(2, 512)
                for i in (7, 6, 5, 4, 3, 2):
                    mf(ACC + 4 * i, i - 2, 1)
                    if dma and self.o.get('wslow', 1) and i in (6, 3):
                        wdma(0 if i == 6 else 1)
                ldk(3, 768)
            k(f'ds_read_b64_tr_b16 {vr(XV, 2)}, v8')
            k(f'ds_read_b64_tr_b16 {vr(XV + 2, 2)}, v8 offset:1536')
            for i in range(4):
                k(f'ds_read2st64_b32 {vr(SV + 2 * i, 2)}, {vr(vSB)} offset0:{2 * i} offset1:{2 * i + 1}')
            for i in range(4):
                k(f'ds_read2st64_b32 {vr(MV + 2 * i, 2)}, v22 offset0:{2 * i} offset1:{2 * i + 1}')
            pre = []
            if self.o.get('cpre', 1):
                for i in range(8):
                    pre += base_ops(i)
            for i in (7, 6, 5, 4):
                mf(ACC + 4 * i, i - 4, 2)
            for i in (7, 6):
                mf(ACC + 4 * i, i - 6, 3)
                for x in pre[:16]:
                    k(x)
                pre = pre[16:]

        def epilogue(g, c, consts):
            SH = 'wave_shr:1 row_mask:0xf bank_mask:0xf'
            RO = 'wave_ror:1 row_mask:0xf bank_mask:0xf'
            a = lambda i, e: (AX if i < 0 else ACC + 4 * i) + e
            t2 = lambda i: TT + 1 + i
            t1 = lambda i: TT + 11 + i
            k(f"""
            s_add_u32 s58, {sr(sD0)}, {sr(c)}
            s_mul_i32 s58, s58, {X1R}
            s_lshl_b32 s59, {sr(g)}, 10
            s_add_u32 s58, s58, s59
            s_add_u32 s59, s58, {X1S}
            s_add_u32 s58, s58, {X1T}
            """)
            k(f'v_add_f32_dpp {vr(t2(-1))}, {vr(a(-1, 3))}, {vr(a(-1, 2))} {SH} bound_ctrl:0')
            for i in range(8):
                k(f'v_add_f32_dpp {vr(t2(i))}, {vr(a(i - 1, 3))}, {vr(a(i, 2))} {RO}')
            for i in range(8):
                k(f'v_add_f32_dpp {vr(t2(i))}, {vr(a(i, 3))}, {vr(a(i, 2))} {SH}')
            k(f'v_add_f32_dpp {vr(t1(-1))}, {vr(t2(-1))}, {vr(a(-1, 1))} {SH} bound_ctrl:0')
            for i in range(8):
                k(f'v_add_f32_dpp {vr(t1(i))}, {vr(t2(i - 1))}, {vr(a(i, 1))} {RO}')
            for i in range(8):
                k(f'v_add_f32_dpp {vr(t1(i))}, {vr(t2(i))}, {vr(a(i, 1))} {SH}')
            for i in range(8):
                k(f'v_add_f32_dpp {vr(a(i, 3))}, {vr(t1(i - 1))}, {vr(a(i, 0))} {RO}')
            for i in range(8):
                k(f'v_add_f32_dpp {vr(a(i, 3))}, {vr(t1(i))}, {vr(a(i, 0))} {SH}')
            if not self.o.get('cpre', 1):
                for i in range(8):
                    for x in base_ops(i):
                        k(x)
            if consts:
                self.conv_consts()
            k(f"""
            s_cmp_eq_u32 {sr(c)}, 1
            s_cselect_b32 s55, {sr(sCH + 3)}, {sr(sCH)}
            s_cselect_b32 s56, {sr(sCH + 4)}, {sr(sCH + 1)}
            s_cselect_b32 s57, {sr(sCH + 5)}, {sr(sCH + 2)}
            s_cmp_eq_u32 {sr(c)}, 2
            s_cselect_b32 s55, {sr(sCH + 6)}, s55
            s_cselect_b32 s56, {sr(sCH + 7)}, s56
            s_cselect_b32 s57, {sr(sCH + 8)}, s57
            """)
            for i in range(8):
                k(f'v_fmac_f32 {vr(MV + i)}, s56, {vr(SV + i)}')
            for i in range(8):
                k(f'v_fmac_f32 {vr(MV + i)}, s55, {vr(a(i, 3))}')
            for i in range(4):
                k(f'v_cvt_pk_bf16_f32 {vr(XV + i)}, {vr(MV + 2 * i)}, {vr(MV + 2 * i + 1)}')
            for i in range(8):
                k(f'v_mul_f32 {vr(MV + i)}, s57, {vr(MV + i)}')
            k(f'buffer_store_dwordx4 {vr(XV, 4)}, {vr(vO)}, {P4(rWS)}, s58 offen sc1', tag='x1st')
            for i in range(4):
                k(f'v_cvt_pk_bf16_f32 {vr(SV + i)}, {vr(MV + 2 * i)}, {vr(MV + 2 * i + 1)}')
            k(f'buffer_store_dwordx4 {vr(SV, 4)}, {vr(vO)}, {P4(rWS)}, s59 offen sc1', tag='x1st')

        if setup_only:
            if self.o.get('wslow', 1):
                cnt = [7, 7, 7, 5, 3, 3, 4, 4]
                st = [sum(cnt[:w]) for w in range(8)]
                pk = lambda v: (sum(x << (8 * i) for i, x in enumerate(v[:4])), sum(x << (8 * i) for i, x in enumerate(v[4:])))
                a, b = pk(st), pk([x + c - 1 for x, c in zip(st, cnt)])
                wrange = f'''s_cmp_lt_u32 {sr(sW)}, 4
            s_mov_b32 s55, {a[1]}
            s_cmov_b32 s55, {a[0]}
            s_mov_b32 s56, {b[1]}
            s_cmov_b32 s56, {b[0]}
            s_and_b32 s57, {sr(sW)}, 3
            s_lshl_b32 s57, s57, 3
            s_lshr_b32 s55, s55, s57
            s_lshr_b32 s56, s56, s57
            s_and_b32 s55, s55, 0xff
            s_and_b32 s56, s56, 0xff'''
            else:
                wrange = f's_mul_i32 s55, {sr(sW)}, 11\ns_add_u32 s56, s55, 10\ns_min_u32 s56, s56, 39'
            k(f"""
        s_lshl_b32 s55, {sr(sW)}, 2
        s_lshr_b32 {sr(sL)}, {hex(lo)}, s55
        v_lshlrev_b32 {vr(vO)}, 4, v0
        {wrange}
        s_lshl_b32 {sr(sM)}, s55, 11
        s_add_u32 {sr(sM)}, {sr(sM)}, {STG}
        s_lshl_b32 {sr(sME)}, s56, 11
        s_add_u32 {sr(sME)}, {sr(sME)}, {STG}
        s_add_u32 s55, s55, 40
        s_mul_i32 {sr(sO)}, s55, {8 * 3456}
        s_add_u32 s56, s56, 40
        s_mul_i32 {sr(sOE)}, s56, {8 * 3456}
        """)
            decode(sr(sL))
            return
        Ly, Ld = k.label('cy'), k.label('cdone')
        self.stamp('prexn')
        k.wait('xnl', 'saw', 'wrd')
        self.stamp('xnland')
        k(f's_cmp_ge_u32 {sr(sW)}, 4\ns_cbranch_scc1 {Ly}')
        k('s_barrier')
        self.stamp('xnl')
        first_loads()
        if self.o.get('pf1', 2) == 3:
            L = k.label('npf')
            k(f'''
            s_cmp_ge_u32 {sr(sW)}, 2
            s_cbranch_scc1 {L}
            s_cmp_eq_u32 {sr(sW)}, 0
            s_cselect_b32 s56, s{pWG}, s{pWU}
            s_cselect_b32 s57, s{pWG + 1}, s{pWU + 1}
            s_mul_i32 s55, {sr(sWR)}, {8 * 3456}
            s_lshl_b32 s58, {sr(sNB)}, 7
            s_add_u32 s55, s55, s58
            s_add_u32 s55, s55, {320 * 3456}
            ''')
            self.touch(56, 640 * 1728 * 2, 's55', stride=3456, lanes=40)
            k(f'{L}:')
        mfma_part(True, True, True, False)
        self.stamp('c_mm')
        epilogue(sG, sC, True)
        self.g1_addr_early()
        k(f's_branch {Ld}')
        k(f'{Ly}:')
        if self.o.get('prio', True):
            k('s_setprio 2')
        k('s_barrier')
        self.stamp('xnl')
        first_loads()
        const_loads()
        mfma_part(False, True, False, True)
        self.stamp('y_m1')
        k(f"""
        s_mov_b32 {sr(sG2)}, {sr(sG)}
        s_mov_b32 {sr(sC2)}, {sr(sC)}
        s_lshl_b32 s55, {sr(sW)}, 2
        s_lshr_b32 {sr(sL)}, {hex(hi << 16)}, s55
        """)
        decode(sr(sL))
        first_loads()
        epilogue(sG2, sC2, True)
        self.stamp('y_e1')
        def pub(g, only=None):
            Ln = k.label('npub')
            k(f"""
            {f's_cmp_lg_u32 {sr(g)}, {only}' if only is not None else f's_cmp_ge_u32 {sr(g)}, {2 if self.o.get("s2c", 0) else 1}'}
            s_cbranch_scc1 {Ln}
            s_sub_u32 s55, {sr(sW)}, 4
            s_min_u32 s55, s55, 2
            s_lshl_b32 s55, s55, 3
            s_add_u32 s55, s55, {sr(sMB)}
            s_mul_i32 s56, {sr(g)}, {(SYNC2C - SYNC2A) // 128}
            s_add_u32 s55, s55, s56
            """)
            k.wait('x1st')
            self.arrive(SYNC2A, 24, 's55', 9)
            self.stamp('pub0')
            k(f'{Ln}:')
        Lp = k.label('kp')
        if self.o.get('prio1', 1) and self.o.get('s2c', 0):
            k(f's_cmp_eq_u32 {sr(sG)}, 1\ns_cbranch_scc1 {Lp}')
        k(f's_setprio 0\n{Lp}:')
        self.g1_addr_early()
        hook = None
        if self.o.get('s2c', 0) == 2:
            pub(sG2, only=0)

            def hook():
                pub(sG2, only=1)
                k(f's_mov_b32 {sr(sG2)}, 3')
        else:
            pub(sG2)
        self.stamp('y_p1')
        mfma_part(bool(self.o.get('wslow', 1)), False, True, False, hook)
        self.stamp('c_mm')
        epilogue(sG, sC, False)
        self.stamp('y_e2')
        k('s_setprio 0')
        if self.o.get('s2c', 0):
            pub(sG)
        k(f'{Ld}:')
        self.stamp('conv')

    def window2(self):
        k = self.k
        AC, TF, CB = 32, 16, 92
        Lr, Ld = k.label('tb'), k.label('tbd')
        chk = f'''
        v_min_u32 v16, v12, v13
        v_min3_u32 v16, v16, v14, v15
        v_cmp_eq_u32 vcc, 0, v16
        s_cbranch_vccz {Ld}
        '''
        k(chk)
        k(f'''
        {Lr}:
        global_load_dwordx2 v[12:13], v90, {P2(pWS)} sc1
        global_load_dwordx2 v[14:15], v90, {P2(pWS)} offset:2560 sc1
        ''')
        k(chk)
        k(f'''
        s_sleep {self.o.get('sleep', 2)}
        s_add_u32 {sr(sSPIN)}, {sr(sSPIN)}, 1
        s_cmp_lt_u32 {sr(sSPIN)}, {SPIN_MAX}
        s_cbranch_scc1 {Lr}
        {Ld}:
        v_and_b32 v14, 0xffff0000, v14
        v_and_b32 v15, 0xffff0000, v15
        v_add_f32 v14, 1.0, v14
        v_add_f32 v15, 1.0, v15
        s_mov_b32 s55, 0x07060302
        v_cvt_pk_bf16_f32 v14, v14, v15
        v_perm_b32 v12, v13, v12, s55
        v_lshlrev_b32 v20, 2, v89
        v_add_u32 v20, {TAB}, v20
        ''')
        k(f'ds_write_b32 v20, v14', tag='tabw')
        k(f'ds_write_b32 v20, v12 offset:1280', tag='tabw')
        self.g1_setup()
        L = self.only_wave(0)
        self.poll(7, 5, 27, nl=24)
        k(f'{L}:')
        k.wait('wst', 'tabw')
        k('s_barrier')
        self.stamp('barX')
        if self.o['stop'] != 'conv':
            for c in range(2):
                for i in range(2):
                    self.g1_dma(c, i)

        self.wstage_read(1, 10)
        if self.o.get('c2early', 1) and self.o['stop'] != 'conv':
            for i in range(2):
                self.g1_dma(2, i)
        Lj = k.label('csj')
        k(f'''
        s_cmp_ge_u32 {sr(sW)}, 4
        s_cbranch_scc1 {Lj}
        s_mul_i32 s55, {sr(sM1)}, 160
        v_add_u32 v8, s55, v8
        ''')
        for n in range(5):
            k(f'ds_read_b128 {vr(48 + 4 * n, 4)}, v8 offset:{32 * n}')
        Lv = [k.label('csv') for _ in range(8)]
        Le = k.label('cse')
        for m in range(1, 8):
            k(f's_cmp_eq_u32 {sr(sM1)}, {m}\ns_cbranch_scc1 {Lv[m]}')
        for m in range(8):
            k(f'{Lv[m]}:')
            for n in range(5):
                c = '0' if n == 0 else vr(AC, 16)
                k(f'v_mfma_f32_32x32x16_bf16 {vr(AC, 16)}, {vr(48 + 4 * n, 4)}, {vr(WF + 4 * (5 * m + n), 4)}, {c}')
            if m < 7:
                k(f's_branch {Le}')
        k(f'''
        {Le}:
        s_lshl_b32 s55, {sr(sNB)}, 3
        s_add_u32 s55, s55, {sr(sM1)}
        s_lshl_b32 s55, s55, 2
        s_add_u32 s55, s55, {sr(sW)}
        s_lshl_b32 s55, s55, 8
        s_add_u32 s55, s55, {CSP}
        v_lshlrev_b32 v9, 3, v0
        v_or_b32 {vr(AC)}, 1, {vr(AC)}
        v_or_b32 {vr(AC + 1)}, 1, {vr(AC + 1)}
        s_mov_b32 exec_hi, 0
        buffer_store_dwordx2 {vr(AC, 2)}, v9, {P4(rWS)}, s55 offen sc1
        s_mov_b32 exec_hi, -1
        {Lj}:
        ''')
        k.wait('x1st', 'wrd', 'ch0')
        k('s_barrier')
        self.stamp('barY')
        L = self.only_wave(4)
        k(f'''
        s_mul_i32 s55, {sr(sQ)}, 0x5556
        s_lshr_b32 s55, s55, 16
        s_mul_i32 s55, s55, 3
        s_sub_u32 s55, {sr(sQ)}, s55
        s_lshl_b32 s55, s55, 3
        s_add_u32 s55, s55, {sr(sMB)}
        ''')
        self.arrive(SYNC2B, 24, 's55', 12)
        k(f'{L}:')

    def cs_loads(self):
        k = self.k
        for j in range(4):
            k(f'global_load_dwordx2 {vr(80 + 2 * j if j < 3 else 88, 2)}, v79, {P2(pWS)} offset:{1024 * j} sc1')

    def cs_addr(self):
        self.k(f'''
        s_lshl_b32 s55, {sr(sNB)}, 13
        s_and_b32 s56, {sr(sW)}, 3
        s_lshl_b32 s56, s56, 8
        s_add_u32 s55, s55, s56
        s_add_u32 s55, s55, {CSP}
        v_lshrrev_b32 v79, 5, v0
        v_lshlrev_b32 v79, 12, v79
        v_and_b32 v78, 31, v0
        v_lshl_add_u32 v79, v78, 3, v79
        v_add_u32 v79, s55, v79
        ''')

    def cs_finish(self):
        k = self.k
        CB = 92
        Lr, Ld = k.label('cr'), k.label('cd')
        chk = f'''
        v_min3_u32 v90, v80, v81, v82
        v_min3_u32 v90, v90, v83, v84
        v_min3_u32 v90, v90, v85, v88
        v_min_u32 v90, v90, v89
        v_cmp_eq_u32 vcc, 0, v90
        s_cbranch_vccz {Ld}
        '''
        k(chk)
        k(f'{Lr}:\ns_sleep {self.o.get("sleep", 2)}')
        self.cs_loads()
        k(chk)
        k(f'''
        s_add_u32 {sr(sSPIN)}, {sr(sSPIN)}, 1
        s_cmp_lt_u32 {sr(sSPIN)}, {SPIN_MAX}
        s_cbranch_scc1 {Lr}
        {Ld}:
        v_add_f32 v80, v80, v82
        v_add_f32 v81, v81, v83
        v_add_f32 v84, v84, v88
        v_add_f32 v85, v85, v89
        v_add_f32 v80, v80, v84
        v_add_f32 v81, v81, v85
        v_mov_b32 v82, v80
        v_mov_b32 v83, v81
        v_cmp_gt_u32 vcc, 32, v0
        v_permlane32_swap_b32 v80, v82
        v_permlane32_swap_b32 v81, v83
        v_mov_b32 {vr(CB + 2)}, 0
        v_mov_b32 {vr(CB + 3)}, 0
        v_add_f32 v80, v80, v82
        v_add_f32 v81, v81, v83
        v_cvt_pk_bf16_f32 v82, v80, v81
        v_lshlrev_b32 v83, 16, v82
        v_and_b32 v84, 0xffff0000, v82
        v_sub_f32 v80, v80, v83
        v_sub_f32 v81, v81, v84
        v_cvt_pk_bf16_f32 v80, v83, v80
        v_cvt_pk_bf16_f32 v81, v84, v81
        v_cndmask_b32 {vr(CB)}, 0, v80, vcc
        v_cndmask_b32 {vr(CB + 1)}, 0, v81, vcc
        ''')

    def g1_addr_early(self):
        self.k(f'''
        v_lshrrev_b32 v18, 3, v0
        v_mul_u32_u24 v24, {X1R}, v18
        v_bfe_u32 v18, v0, 4, 1
        v_lshlrev_b32 v18, 2, v18
        v_and_b32 v19, 7, v0
        v_xor_b32 v18, v18, v19
        v_lshl_add_u32 v24, v18, 4, v24
        v_lshrrev_b32 v18, 5, v0
        v_bfe_u32 v19, v0, 2, 2
        v_lshl_add_u32 v18, v18, 3, v19
        v_lshlrev_b32 v25, 7, v18
        v_lshrrev_b32 v19, 1, v19
        s_lshr_b32 s55, {sr(sW)}, 2
        v_xor_b32 v19, s55, v19
        v_lshl_add_u32 v25, v19, 6, v25
        v_bfe_u32 v19, v0, 4, 1
        v_lshl_add_u32 v25, v19, 5, v25
        v_and_b32 v19, 3, v0
        v_lshl_add_u32 v25, v19, 3, v25
        v_add_u32 v25, {RING}, v25
        s_lshl_b32 s56, {sr(sM1)}, 6
        s_lshl_b32 s61, s55, 5
        s_add_u32 s56, s56, s61
        v_and_b32 v19, 31, v0
        v_add_u32 v19, s56, v19
        v_lshlrev_b32 v19, 2, v19
        v_add_u32 v28, {STATS}, v19
        s_lshl_b32 s56, {sr(sM1)}, 1
        s_add_u32 s56, s56, s55
        s_mul_i32 s56, s56, 108
        s_lshl_b32 s61, {sr(sNB)}, 2
        s_add_u32 s56, s56, s61
        s_and_b32 s61, {sr(sW)}, 3
        s_add_u32 s56, s56, s61
        s_lshl_b32 s56, s56, 10
        s_add_u32 s100, s56, {ACT}
        s_mul_i32 s101, {sr(sW)}, {16 * X1R}
        s_lshl_b32 s55, {sr(sM1)}, 7
        s_add_u32 s101, s101, s55
        s_add_u32 s101, s101, {X1S}
        v_and_b32 v29, 1, v0
        v_mul_u32_u24 v29, 1280, v29
        v_lshrrev_b32 v19, 5, v0
        v_lshl_add_u32 v29, v19, 4, v29
        v_add_u32 v29, {TAB}, v29
        ''')
        self.wread_addr(30)
        self.poll_addr(SYNC2A, 24, 21)

    def g1_setup(self):
        self.k(f'''
        v_mov_b32 v1, v24
        v_mov_b32 v2, v25
        v_add_u32 v3, {3 * 16384}, v25
        v_mov_b32 v6, v28
        v_mov_b32 v8, v29
        v_mov_b32 v10, v30
        v_mov_b32 v11, v31
        v_mov_b32 v7, v21
        s_mov_b32 s65, s100
        s_mov_b32 s66, s101
        s_lshl_b32 s67, {sr(sW)}, 11
        ''')

    def g1_dma(self, c, i):
        k = self.k
        slot = c % NS
        t, cc = divmod(c, 5)
        if self.o.get('x_nodma') and c >= 5:
            return
        k(f's_add_u32 m0, s67, {RING + slot * 16384 + i * 1024}')
        k(f's_add_u32 s3, s66, {t * 1024 + (cc * 128 + 8 * i) * X1R}')
        k(f'buffer_load_dwordx4 v1, {P4(rWS)}, s3 offen sc1 lds', tag=f'ch{c}')

    def g2_park(self, i, f):
        k = self.k
        m = f's_add_u32 m0, s{64 if i == 0 else 60}, {f * 1024}' if (i, f) != (6, 4) else 's_mov_b32 m0, s78'
        k(f'{m}\ns_add_u32 s3, s63, {self.G2ORD.index(i) * 40960 + f * 1024}')
        k(f'buffer_load_dwordx4 v4, {P4(rWS)}, s3 offen sc1 lds', tag=f'park{i}')

    def g2_wload(self, i, f, mains_only=False):
        k = self.k
        if i in self.o.get('y_now', ()):
            return
        n = self.G2ORD.index(i)
        k(f's_add_u32 s3, s63, {n * 40960 + f * 1024}' if n < 6 else f's_add_u32 s3, s76, {f * 1024}')
        k(f'buffer_load_dwordx4 {vr(W2[i] + 4 * f, 4)}, v4, {P4(rWS)}, s3 offen sc1')

    def g2_setup(self):
        k = self.k
        k(f'''
        s_lshr_b32 s55, s2, 3
        s_and_b32 s61, s55, 7
        s_lshr_b32 s55, s55, 3
        s_and_b32 s90, s55, 1
        s_lshr_b32 s55, s55, 1
        s_lshl_b32 s55, s55, 3
        s_add_u32 s62, s55, {sr(sMB)}
        s_mul_i32 s55, {sr(sW)}, 5120
        s_add_u32 s64, s55, {PARK0}
        s_add_u32 s60, s55, {PARK6A}
        s_sub_u32 s56, s55, {4 * 5120 - PARK6B}
        s_cmp_ge_u32 {sr(sW)}, 4
        s_cselect_b32 s60, s56, s60
        s_add_u32 s78, s60, 4096
        s_cmp_eq_u32 {sr(sW)}, 7
        s_cmov_b32 s60, {PARK7}
        s_cmov_b32 s78, 15360
        s_mul_i32 s63, s61, {54 * 5120}
        s_add_u32 s63, s63, {WD}
        s_add_u32 s63, s63, s55
        v_lshlrev_b32 v4, 4, v0
        ''')

    def g2_addr(self):
        k = self.k
        k(f'''
        v_lshrrev_b32 v76, 5, v0
        v_lshlrev_b32 v64, 10, v76
        v_bfe_u32 v76, v0, 4, 1
        v_lshl_add_u32 v64, v76, 9, v64
        v_and_b32 v77, 15, v0
        v_lshl_add_u32 v64, v77, 4, v64
        s_lshl_b32 s55, s62, 1
        s_add_u32 s55, s55, s90
        s_mul_i32 s55, s55, {108 * 1024}
        s_lshl_b32 s56, {sr(sW)}, 11
        s_add_u32 s55, s55, s56
        s_add_u32 s83, s55, {ACT}
        s_add_u32 s76, s63, {6 * 40960}
        s_add_u32 s77, s83, {6 * 16384}
        s_cmp_ge_u32 {sr(sW)}, 6
        s_cmov_b32 s76, 0x2000000
        s_cmov_b32 s77, 0x2000000
        s_lshl_b32 s55, s62, 7
        s_add_u32 s55, s55, {SYNC3}
        v_mov_b32 v65, s55
        s_lshl_b32 s55, {sr(sW)}, 10
        s_add_u32 s55, s55, {PART}
        v_add_u32 v66, s55, v4
        v_add_u32 v67, 65536, v66
        s_lshl_b32 s55, {sr(sW)}, 13
        s_add_u32 s55, s55, {PART}
        v_add_u32 v68, s55, v4
        s_lshr_b32 s57, {sr(sW)}, 2
        s_and_b32 s58, {sr(sW)}, 3
        s_lshl_b32 s55, s57, 13
        s_lshl_b32 s56, s58, 8
        s_add_u32 s55, s55, s56
        s_add_u32 s55, s55, {PART + 65536}
        v_lshl_add_u32 v69, v77, 4, s55
        s_cmp_ge_u32 {sr(sW)}, 5
        s_cselect_b32 s59, 1, 0
        s_mul_i32 s55, s59, 5
        s_sub_u32 s86, {sr(sW)}, s55
        s_add_u32 s57, s57, 3
        v_lshrrev_b32 v76, 2, v0
        v_lshlrev_b32 v70, 6, v76
        v_and_b32 v78, 3, v0
        v_lshl_add_u32 v70, v78, 3, v70
        v_and_b32 v71, 0xff, v70
        s_lshl_b32 s55, s86, 10
        s_lshl_b32 s56, s59, 5
        s_add_u32 s55, s55, s56
        s_add_u32 s55, s55, {RESID}
        v_add_u32 v70, s55, v70
        s_lshl_b32 s55, s57, 10
        s_lshl_b32 s56, s58, 8
        s_add_u32 s55, s55, s56
        s_add_u32 s55, s55, {RESID + 32}
        v_add_u32 v71, s55, v71
        s_mul_i32 s87, s61, 80
        s_lshl_b32 s55, s86, 4
        s_add_u32 s55, s55, s87
        v_lshrrev_b32 v76, 4, v0
        v_lshl_add_u32 v72, v76, 2, s55
        s_lshl_b32 s55, s57, 4
        s_lshl_b32 s56, s58, 2
        s_add_u32 s55, s55, s56
        s_add_u32 s55, s55, s87
        v_mov_b32 v73, s55
        s_lshl_b32 s55, s90, 5
        s_lshl_b32 s56, s59, 4
        s_add_u32 s56, s56, s55
        s_add_u32 s55, s55, 16
        s_lshr_b32 s88, s62, 3
        s_lshl_b32 s88, s88, 9
        s_lshl_b32 s89, {sr(sMB)}, 3
        s_add_u32 s88, s88, s89
        ''')
        for dst, ch, sp in ((74, 72, 's56'), (75, 73, 's55')):
            k(f'''
            v_add_u32 v76, {sp}, v77
            v_and_b32 v78, 7, v76
            v_lshrrev_b32 v76, 3, v76
            v_lshl_add_u32 v76, v78, 6, v76
            v_add_u32 v76, s88, v76
            v_mul_u32_u24 v76, 1280, v76
            v_lshl_add_u32 {vr(dst)}, {vr(ch)}, 1, v76
            v_lshlrev_b32 {vr(ch)}, 2, {vr(ch)}
            v_add_u32 {vr(ch)}, {MOD + 5 * 2560}, {vr(ch)}
            ''')

    def g1(self):
        k = self.k
        TF, CB = 16, 92
        ACC = [32, 48]
        vRA, vRB, vST, vSTA, vPA, vPD = 2, 3, 5, 6, 7, 8
        K1, K2, S2 = 9, 10, 11
        BF = 12
        ET = 80
        OUTR = 88
        k(f'v_mov_b32 {vr(BF + 2)}, 0\nv_mov_b32 {vr(BF + 3)}, 0')
        if self.o.get('s2c', 0):
            L = self.only_wave(0)
            self.poll_addr(SYNC2C, 24, vPA)
            self.poll_issue(vPA, vPD, 24)
            k(f'{L}:')

        def rd(sig):
            c, s8 = divmod(sig, 8)
            slot = c % NS
            base, off = (vRA, slot * 16384) if slot < 3 else (vRB, (slot - 3) * 16384)
            off += s8 * 2048
            r = TF + 4 * (sig % 4)
            if self.o.get('x_nord') and sig >= 4:
                return
            if self.o.get('x_b128'):
                k(f'ds_read_b128 {vr(r, 4)}, v4 offset:{off % 32768}')
                return
            k(f'ds_read_b64_tr_b16 {vr(r, 2)}, {vr(base)} offset:{off}')
            k(f'ds_read_b64_tr_b16 {vr(r + 2, 2)}, {vr(base)} offset:{off + 512}')

        C1 = -2 * LOG2E * math.sqrt(2 / math.pi) * 0.044715
        C2 = -2 * LOG2E * math.sqrt(2 / math.pi)

        def epi_ops(t):
            acc = ACC[t % 2]
            ops = []

            def head():
                if not self.o.get('x_nostat'):
                    self.poll(vSTA, vST, '0x10000', preissued=True, off=2048 * (t & 1))
                k(f'''
                s_mov_b32 s55, 0x01000100
                s_mov_b32 s56, 0x03020302
                v_perm_b32 {vr(BF)}, {vr(vST)}, {vr(vST)}, s55
                v_perm_b32 {vr(BF + 1)}, {vr(vST)}, {vr(vST)}, s56
                v_xor_b32 {vr(BF)}, 0x80008000, {vr(BF)}
                v_and_b32 {vr(S2)}, 0xffff0000, {vr(vST)}
                v_rcp_f32 {vr(K2)}, {vr(S2)}
                v_mfma_f32_32x32x16_bf16 {vr(acc, 16)}, {vr(CB, 4)}, {vr(BF, 4)}, {vr(acc, 16)}
                ''')
            ops.append(head)
            ops.append(lambda: k(f'''
                v_mul_f32 {vr(S2)}, {vr(S2)}, {vr(S2)}
                v_mul_f32 {vr(K1)}, {vr(K2)}, {vr(K2)}
                v_mul_f32 {vr(K2)}, {f32(C2)}, {vr(K2)}
                '''))
            ops.append(lambda: k(f'''
                v_mul_f32 {vr(K1)}, {f32(0.044715)}, {vr(K1)}
                v_mul_f32 {vr(K1)}, {vr(K1)}, {vr(K2)}
                '''))
            ops.append(lambda: None)
            flat = []
            for grp in range(2):
                E = range(4 * grp, 4 * grp + 4)
                for fmt in ('v_mul_f32 {t}, {g}, {g}', 'v_fma_f32 {t}, {t}, {k1}, {k2}', 'v_mul_f32 {t}, {t}, {g}', 'v_exp_f32 {t}, {t}',
                            'v_mul_f32 {u}, {u}, {g}', 'v_fma_f32 {t}, {t}, {s2}, {s2}', 'v_rcp_f32 {t}, {t}', 'v_mul_f32 {u}, {u}, {t}'):
                    for e in E:
                        flat.append(fmt.format(t=vr(ET + e % 4), g=vr(acc + e), u=vr(acc + 8 + e), k1=vr(K1), k2=vr(K2), s2=vr(S2)))
                for p in (2 * grp, 2 * grp + 1):
                    flat.append(f'v_cvt_pk_bf16_f32 {vr(OUTR + p)}, {vr(acc + 8 + 2 * p)}, {vr(acc + 9 + 2 * p)}')
            nst = self.o.get('epi_steps', [24, 16, 30, 16])
            nst = nst if isinstance(nst, int) else nst[t]
            cost = lambda x: 2 if ('exp' in x or 'rcp' in x) else 1
            tot = sum(map(cost, flat))
            cum, cur, n = 0, [], 1
            for x in flat:
                cur.append(x)
                cum += cost(x)
                if cum * nst >= n * tot:
                    ops.append(lambda cur=cur: k('\n'.join(cur)))
                    cur = []
                    n += 1
            assert not cur

            def fin():
                k(f's_add_u32 s3, s65, {t * 16 * 108 * 1024}')
                k(f'buffer_store_dwordx4 {vr(OUTR, 4)}, v4, {P4(rWS)}, s3 offen sc1', tag=f'act{t}')
            ops.append(fin)
            return ops

        def publish(t):
            L = self.only_wave(0)
            k(f'''
            s_add_u32 s55, {sr(sM1)}, {8 * t}
            s_lshl_b32 s55, s55, 7
            s_add_u32 s55, s55, {SYNC3}
            v_mov_b32 {vr(ET + 4)}, s55
            v_mov_b32 {vr(ET + 5)}, 1
            s_mov_b64 exec, 1
            global_atomic_add {vr(ET + 4)}, {vr(ET + 5)}, {P2(pWS)} sc1
            s_mov_b64 exec, -1
            {L}:
            ''')

        epi_start = self.o.get('epi_start', [50, 81, 122, 160])
        epi_rate = self.o.get('epi_rate', [1, 1, 1, 1])
        stat_ld = {max(0, s - self.o.get('stat_pre', 14)): t for t, s in enumerate(epi_start)}
        todo = {}
        for t in range(3):
            ops = epi_ops(t)
            sig = epi_start[t]
            while ops:
                for _ in range(epi_rate[t]):
                    if ops:
                        todo.setdefault(sig, []).append(ops.pop(0))
                sig += 1
            assert sig <= 160 and (t == 2 or sig <= epi_start[t + 1]), (t, sig)
            assert sig <= 40 * (t + 2)
            todo.setdefault('done', {})[t] = sig
        done_at = todo.pop('done')
        pub_at = {}
        for t in range(3):
            s = done_at[t] + self.o.get('pub_lag', 16)
            s = ((s - 3 + 7) // 8) * 8 + 3
            pub_at.setdefault(min(s, 163), []).append(t)
        s2c = self.o.get('s2c', 0)
        B2 = self.o.get('b2_chunk', 1 if s2c else 2)
        B3 = self.o.get('b3_chunk', 6)
        self.stamp('g1go')
        keep, self.k = self.k, Kern()
        self.cs_addr()
        self.g2_setup()
        self.g2_addr()
        late, self.k = self.k.ins, keep
        grp, cur = [], []
        for x in late:
            cur.append(x)
            if len(cur) >= 4 and (x.op in ('s_add_u32', 's_lshl_b32', 's_mul_i32', 's_and_b32', 's_lshr_b32') or x.op.startswith('v_')):
                grp.append(cur)
                cur = []
        grp.append(cur)
        assert len(grp) <= 31
        if self.o.get('x_latefirst'):
            for g_ in grp:
                k.ins += g_
            grp = []
            self.stamp('g1go2')
        if self.o.get('g1prio'):
            L = k.label('gp')
            k(f's_cmp_lt_u32 {sr(sW)}, 4\ns_cbranch_scc1 {L}\ns_setprio 1\n{L}:')
        for sig in range(4):
            rd(sig)
        issued = 5
        dq = [lambda c=c, i=i: self.g1_dma(c, i) for c in ((3, 4) if self.o.get('c2early', 1) else (2, 3, 4)) for i in range(2)]
        if self.o.get('c2early', 1) == 2:
            dq = [dq[0], lambda: None, dq[1], lambda: None, lambda: None, dq[2], lambda: None, dq[3]]
        p0 = self.o.get('park_at', 5)
        g2at = {p0 + n: [(0, n)] if n < 5 else [(6, n - 5)] for n in range(10)}
        if self.o.get('park2'):
            g2at = {p0 + n: [(0, n), (6, n)] for n in range(5)}
        pissue = {8 * B2 + 4: (SYNCW, 4, vPA), 36: (SYNC2B, 24, vPA), self.o.get('pa_issue', 140): (None, 1, 65)}
        pcheck = {B2: (27, 24, vPA), 4: (10, 4, vPA), B3: (9, 24, vPA), 19: (27, 1, 65)}
        if not s2c:
            B3 = B2
            pissue = {8 * B2 + 3 - self.o.get('b2_pre', 10): (SYNC2B, 24, vPA), 8 * B2 + 4: (SYNCW, 4, vPA), self.o.get('pa_issue', 140): (None, 1, 65)}
            pcheck = {B2: (9, 24, vPA), 4: (10, 4, vPA), 19: (27, 1, 65)}
        nd = self.o.get('w2_in_t3', 15)
        wl = {126 + (33 * n) // nd: (1 + n // 5, n % 5) for n in range(nd)}
        assert all(sg >= 120 + 5 * (i - 1) + f for sg, (i, f) in wl.items()) and len(wl) == nd
        for sig in range(160):
            t, s = divmod(sig, 40)
            c = sig // 8
            acc = ACC[t % 2]
            cop = '0' if s == 0 else vr(acc, 16)
            if self.o.get('wait2') and sig % 2 == 0 and sig < 156:
                k('s_waitcnt lgkmcnt(4)')
            if self.o.get('x_m16'):
                for hh in range(2):
                    a4 = acc + 8 * (s % 2) + 4 * hh
                    wf = WF + 4 * ((s & ~1) + hh)
                    k(f'v_mfma_f32_16x16x32_bf16 {vr(a4, 4)}, {vr(wf, 4)}, {vr(TF + 4 * (sig % 4), 4)}, {"0" if s < 2 else vr(a4, 4)}')
            else:
                k(f'v_mfma_f32_32x32x16_bf16 {vr(acc, 16)}, {vr(WF + 4 * s, 4)}, {vr(TF + 4 * (sig % 4), 4)}, {cop}')
            if sig in pissue and not self.o.get('x_nopoll'):
                base, nl, va = pissue[sig]
                L = self.only_wave(0)
                if base is not None:
                    self.poll_addr(base, nl, va)
                self.poll_issue(va, vPD, nl)
                k(f'{L}:')
            if sig % 8 == 3:
                if c in pcheck and not self.o.get('x_nopoll'):
                    cnt, nl, va = pcheck[c]
                    L = self.only_wave(0)
                    self.poll(va, vPD, cnt, preissued=True, nl=nl)
                    k(f'{L}:')
                w = [f'ch{c + 1}'] if c + 1 < 20 else ['resid']
                w += [f'act{tt}' for tt in pub_at.get(sig, [])]
                if w and not self.o.get('x_nowait'):
                    k.wait(*w)
                if not self.o.get('x_nobar') or c in (B2, B2 + 2):
                    k('s_barrier')
                for tt in pub_at.get(sig, []):
                    publish(tt)
                if c >= B2:
                    while issued < (20 if c >= B3 else 10) and issued <= c - 1 + NS:
                        dq += [lambda c=issued, i=i: self.g1_dma(c, i) for i in range(2)]
                        issued += 1
                if c in g2at and not self.o.get('x_nog2d'):
                    dq += [lambda j=j, i=i: self.g2_park(j, i) for j, i in g2at[c]]
            elif dq:
                dq.pop(0)()
            if sig + 4 < 160:
                rd(sig + 4)
            if sig >= 4 and grp and sig % 8 != 3:
                k.ins += grp.pop(0)
            if sig == self.o.get('cs_ld', 30) and not self.o.get('x_nocs'):
                self.cs_loads()
            if sig == self.o.get('cs_fin', 46) and not self.o.get('x_nocs'):
                self.cs_finish()
            if sig in wl:
                self.g2_wload(*wl[sig])
            tw = self.o.get('twd', 0)
            if tw and sig in (tw, tw + 16):
                k(f'''
                s_mul_i32 s55, {sr(sQ)}, 640
                s_mul_i32 s56, {sr(sW)}, 80
                s_add_u32 s55, s55, s56
                s_add_u32 s55, s55, {0 if sig == tw else 40}
                s_lshl_b32 s55, s55, 7
                s_add_u32 s55, s55, {WD}
                v_lshlrev_b32 v78, 7, v0
                s_mov_b32 exec_hi, 0xff
                buffer_load_dword v79, v78, {P4(rWS)}, s55 offen sc1
                s_mov_b32 exec_hi, -1
                ''')
            if sig == 140:
                self.resid_dma(76)
            if sig in stat_ld:
                tt = stat_ld[sig]
                if tt == 2:
                    k(f'v_add_u32 {vr(vSTA)}, 4096, {vr(vSTA)}')
                if not self.o.get('x_nostat'):
                    k(f'global_load_dword {vr(vST)}, {vr(vSTA)}, {P2(pWS)} offset:{2048 * (tt & 1)} sc1')
            for op in todo.get(sig, []):
                if not self.o.get('x_noepi'):
                    op()
            if sig % 40 == 39:
                self.stamp(f't{t}')
            if sig % 8 == 7 and sig < 80:
                self.stamp(f'c{sig // 8}')
        assert not dq
        for n in range(2):
            self.g2_lda(0, n)
        k.wait('park0', 'park6')
        k(f'v_add_u32 v76, s64, v4\nv_add_u32 v77, s60, v4\nv_add_u32 v78, s78, v4')
        for f in range(5):
            k(f'ds_read_b128 {vr(W2[0] + 4 * f, 4)}, v76 offset:{1024 * f}')
        for f in range(5):
            k(f'ds_read_b128 {vr(W2[6] + 4 * f, 4)}, v77 offset:{1024 * f}' if f < 4 else f'ds_read_b128 {vr(W2[6] + 16, 4)}, v78', tag='parkrd')
        rest = [(1 + n // 5, n % 5) for n in range(nd, 25)]
        ops = epi_ops(3)
        if self.o.get('tprio', 1):
            k('s_setprio 2')
        for op in ops[:3]:
            op()
        acc = ACC[1]
        T = lambda e: 32 + e
        for fmt in ('v_mul_f32 {t}, {g}, {g}', 'v_fma_f32 {t}, {t}, {k1}, {k2}', 'v_mul_f32 {t}, {t}, {g}', 'v_exp_f32 {t}, {t}',
                    'v_mul_f32 {u}, {u}, {g}', 'v_fma_f32 {t}, {t}, {s2}, {s2}', 'v_rcp_f32 {t}, {t}', 'v_mul_f32 {u}, {u}, {t}'):
            for e in range(8):
                k(fmt.format(t=vr(T(e)), g=vr(acc + e), u=vr(acc + 8 + e), k1=vr(K1), k2=vr(K2), s2=vr(S2)))
            if len(rest) > 10 - self.o.get('w2_tail', 0):
                self.g2_wload(*rest.pop(0))
        for p in range(4):
            k(f'v_cvt_pk_bf16_f32 {vr(OUTR + p)}, {vr(acc + 8 + 2 * p)}, {vr(acc + 9 + 2 * p)}')
        ops[-1]()
        k('s_setprio 0')
        self.stamp('g1end')
        if not self.o.get('hold', 0):
            for n in range(2, 4):
                self.g2_lda(0, n)
        self.resid_read()
        self.g2_rest = rest
        self.late_pub = pub_at.get(163, []) + [3]
        self.publish = publish

    def resid_dma(self, va=1):
        k = self.k
        k(f'''
        v_lshrrev_b32 v{va}, 2, v0
        v_mul_u32_u24 v{va}, {X1R}, v{va}
        v_and_b32 v{va + 1}, 3, v0
        v_lshl_add_u32 v{va}, v{va + 1}, 4, v{va}
        s_lshl_b32 s55, s86, 4
        s_add_u32 s55, s55, s87
        s_mul_i32 s55, s55, {X1R}
        s_lshl_b32 s56, s62, 7
        s_lshl_b32 s57, s90, 6
        s_add_u32 s56, s56, s57
        s_add_u32 s56, s56, {X1T}
        s_cmp_ge_u32 {sr(sW)}, 5
        s_cselect_b32 s57, 2048, 0
        s_add_u32 s55, s55, s56
        s_add_u32 s55, s55, s57
        s_lshl_b32 s57, {sr(sW)}, 10
        s_add_u32 m0, s57, {RESID}
        ''')
        k(f'buffer_load_dwordx4 v{va}, {P4(rWS)}, s55 offen sc1 lds', tag='resid')
        k(f'''
        s_add_u32 s55, {sr(sW)}, 3
        s_lshl_b32 s55, s55, 4
        s_add_u32 s55, s55, s87
        s_mul_i32 s55, s55, {X1R}
        s_add_u32 s55, s55, s56
        s_add_u32 s55, s55, 2048
        s_add_u32 m0, s57, {RESID + 8192}
        s_cmp_lt_u32 {sr(sW)}, 2
        s_cselect_b64 exec, -1, 0
        ''')
        k(f'buffer_load_dwordx4 v{va}, {P4(rWS)}, s55 offen sc1 lds', tag='resid')
        k('s_mov_b64 exec, -1')

    RESR = {(0, 0): 92, (0, 1): 94, (1, 0): 90, (1, 1): 6}

    def resid_read(self):
        for (h, p), r in self.RESR.items():
            self.k(f'ds_read_b64_tr_b16 {vr(r, 2)}, v{70 + p} offset:{5120 * h}', tag='parkrd')

    G2ORD = [0, 6, 1, 2, 3, 4, 5]

    def g2_af(self, h, n, tt):
        r = (2 * (7 * h + n) + tt) % 8
        return 16 + 4 * r if r < 4 else 236 + 4 * (r - 4)

    def g2_lda(self, h, n, only=None):
        k = self.k
        if self.o.get('y_noact') == h + 1 and n > 0:
            return
        so = 's3'
        k(f's_add_u32 s3, s83, {h * 32 * 108 * 1024 + n * 16384}' if n < 6 else f's_add_u32 s3, s77, {h * 32 * 108 * 1024}')
        for tt in (range(2) if only is None else [only]):
            k(f'buffer_load_dwordx4 {vr(self.g2_af(h, n, tt), 4)}, v64, {P4(rWS)}, {so} offen offset:{256 * tt} {self.o.get("actpol", "sc1")}')

    def g2(self):
        k = self.k
        ACC, GB = 24, 8
        acc = lambda t: 32 + 4 * t if t < 8 else 76 + 4 * (t - 8)
        k('L_g2:')

        def steps(h):
            q = [lambda i=i, f=f: self.g2_wload(i, f) for i, f in (self.g2_rest if h == 0 else [])]
            qa = [lambda n=n, tt=tt: self.g2_lda(h, n, tt) for n in range(4, 7) for tt in range(2)]
            need = {}
            ps = self.o.get('pub_step', 0)
            for n in range(7):
                i = self.G2ORD[n]
                L = None
                for tt in range(2):
                    for j in range(5):
                        a = acc(5 * tt + j)
                        c = '0' if n == 0 else vr(a, 4)
                        k(f'v_mfma_f32_16x16x32_bf16 {vr(a, 4)}, {vr(W2[i] + 4 * j, 4)}, {vr(self.g2_af(h, n, tt), 4)}, {c}')
                        if self.o.get('hold', 0) and h == 0 and n <= ps:
                            continue
                        if not L and j == 4 and qa:
                            qa.pop(0)()
                        elif not L and j in (0, 1, 2) and q:
                            q.pop(0)()
                if L:
                    k(f'{L}:')
                    for _ in range(2):
                        if qa:
                            qa.pop(0)()
                po = self.o.get('pub_step_o', 3)
                if h == 0 and n in (ps, po):
                    Ls = None
                    if ps != po:
                        Ls = k.label('pbs')
                        k(f's_cmp_{"lt" if n == ps else "ge"}_u32 {sr(sW)}, 4\ns_cbranch_scc1 {Ls}')
                    k.wait('parkrd', *[f'act{t}' for t in self.late_pub])
                    k('s_barrier')
                    if n == po:
                        Lh = k.label('hp')
                        k(f's_cmp_lt_u32 s2, 40\ns_cbranch_scc1 {Lh}')
                        for t in self.late_pub:
                            self.publish(t)
                        k(f'{Lh}:')
                    self.stamp('pub3')
                    if Ls:
                        k(f'{Ls}:')
                if h == 0 and n == 5:
                    k(f'global_load_dwordx4 v[8:11], v72, {P2(pWS)} sc1\nglobal_load_dwordx4 v[12:15], v73, {P2(pWS)} sc1')
                if h == 0 and n == 6:
                    L = self.only_wave(0)
                    self.poll_issue(65, 3, 1, off=2048)
                    k(f'{L}:')
            assert not q and not qa
            if h == 0:
                self.stamp('h0')
            for t in range(10):
                k(f'ds_write_b128 v{66 + t // 8}, {vr(acc(t), 4)} offset:{8192 * (t % 8)}', tag='pw')
            if h == 0:
                L = self.only_wave(0)
                self.poll(65, 3, 27, preissued=True, nl=1, off=2048, sleep=self.o.get('sleep3', 4))
                k(f'{L}:')
                k('v_add_u32 v66, 81920, v66\nv_add_u32 v67, 81920, v67')

        def finalize(h):
            R = {0: 32, 1: 48}
            if self.o.get('fprio', 0):
                k('s_setprio 2')
            for half in range(2):
                for p in range(2):
                    for w in range(4):
                        dst = (R[p] if half == 0 else (76 if p == 0 else 252)) if w == 0 and half == 1 else R[p] + 4 * w
                        k(f'ds_read_b128 {vr(dst, 4)}, v{68 + p} offset:{1024 * (4 * half + w)}', tag='fin')
                if half == 0:
                    if h == 0:
                        self.g2_lda(1, 2)
                    for p in range(2):
                        for a, b in ((0, 1), (2, 3), (0, 2)):
                            for e in (0, 2):
                                k(f'v_pk_add_f32 {vr(R[p] + 4 * a + e, 2)}, {vr(R[p] + 4 * a + e, 2)}, {vr(R[p] + 4 * b + e, 2)}')
            if h == 0:
                self.g2_lda(1, 3)
            for p in range(2):
                x = 76 if p == 0 else 252
                for a, b in ((x, R[p] + 4), (R[p] + 8, R[p] + 12), (R[p], x), (R[p], R[p] + 8)):
                    for e in (0, 2):
                        k(f'v_pk_add_f32 {vr(a + e, 2)}, {vr(a + e, 2)}, {vr(b + e, 2)}')
                for e in range(4):
                    g, t = GB + 4 * p + e, R[p] + 4 + e
                    if h == 0:
                        k(f'v_and_b32 {vr(g)}, 0xffff0000, {vr(g)}')
                    k(f'v_lshlrev_b32 {vr(t)}, 16, {vr(self.RESR[h, p] + e // 2)}' if e % 2 == 0 else f'v_and_b32 {vr(t)}, 0xffff0000, {vr(self.RESR[h, p] + e // 2)}')
                    k(f'v_fmac_f32 {vr(t)}, {vr(R[p] + e)}, {vr(g)}')
                o = 84 if p == 0 else 88
                k(f'v_cvt_pk_bf16_f32 v{o}, {vr(R[p] + 4)}, {vr(R[p] + 5)}\nv_cvt_pk_bf16_f32 v{o + 1}, {vr(R[p] + 6)}, {vr(R[p] + 7)}')
                if p == 1:
                    k('s_mov_b64 exec, 0xffff')
                k(f'global_store_dwordx2 v{74 + p}, v[{o}:{o + 1}], {P2(pOUT)} {self.o.get("outpol", "")}')
                if p == 1:
                    k('s_mov_b64 exec, -1')
            k('s_setprio 0')
            if h == 0:
                k(f'v_add_u32 v74, {1024 * 1280}, v74\nv_add_u32 v75, {1024 * 1280}, v75\nv_add_u32 v68, 81920, v68\nv_add_u32 v69, 81920, v69')

        steps(0)
        k.wait('pw')
        k('s_barrier')
        self.stamp('s3')
        for n in range(2):
            self.g2_lda(1, n)
        finalize(0)
        if self.o.get('wb2'):
            L = self.only_wave(7)
            k(f's_lshr_b32 s55, s2, 3\ns_and_b32 s55, s55, {self.o["wb2"] - 1}\ns_cmp_lg_u32 s55, 0\ns_cbranch_scc1 {L}\nbuffer_wbl2 sc1')
            k(f'{L}:')
        self.stamp('f0')
        steps(1)
        self.stamp('g2m')
        k.wait('pw')
        k('s_barrier')
        finalize(1)
        self.stamp('end')

    def strip_reduce(self, nval, V, RED):
        k = self.k
        n = nval
        for i in range(n // 2):
            k(f'v_permlane32_swap_b32 {vr(V + i)}, {vr(V + n // 2 + i)}')
        for i in range(n // 2):
            k(f'v_add_f32 {vr(V + i)}, {vr(V + i)}, {vr(V + n // 2 + i)}')
        n //= 2
        for i in range(n // 2):
            k(f'v_permlane16_swap_b32 {vr(V + i)}, {vr(V + n // 2 + i)}')
        for i in range(n // 2):
            k(f'v_add_f32 {vr(V + i)}, {vr(V + i)}, {vr(V + n // 2 + i)}')
        n //= 2
        for i in range(n):
            k(f'v_add_f32_dpp {vr(V + i)}, {vr(V + i)}, {vr(V + i)} row_ror:8 row_mask:0xf bank_mask:0xf')
        q = nval // 4
        k(f'''
        v_lshrrev_b32 v8, 4, v0
        v_mul_u32_u24 v8, {q}, v8
        v_and_b32 v9, 7, v8
        v_lshrrev_b32 v8, 3, v8
        v_lshl_add_u32 v9, v8, 6, v9
        v_and_b32 v8, 7, v0
        v_lshl_add_u32 v9, v8, 3, v9
        s_mul_i32 s55, {sr(sW)}, {8 * nval}
        v_add_u32 v9, s55, v9
        v_lshlrev_b32 v9, 2, v9
        s_mov_b32 exec_lo, 0x00ff00ff
        s_mov_b32 exec_hi, 0x00ff00ff
        ''')
        if q == 2:
            k(f'ds_write_b64 v9, {vr(V, 2)} offset:{RED}', tag='redw')
        else:
            k(f'ds_write_b128 v9, {vr(V, 4)} offset:{RED}', tag='redw')
        k('s_mov_b64 exec, -1')
        k.wait('redw')
        k('s_barrier')

    def mod_and_wd(self):
        k = self.k
        k(f'''
        s_cmp_lt_u32 s2, 14
        s_cselect_b32 s76, 2, 1
        s_mov_b32 s75, s2
        s_mul_i32 s72, {sr(sW)}, 5120
        s_mul_i32 s71, s75, 40960
        s_add_u32 s71, s71, s72
        s_add_u32 s72, s72, 8192
        v_lshlrev_b32 v21, 4, v0
        ''')
        self.mod_partial()
        if self.o.get('wdlate'):
            L = self.only_wave(0)
            self.poll_sync1(215, 58)
            k(f'{L}:')
        k('s_barrier')
        for i in range(10):
            k(f'''
            s_cmp_ge_u32 s76, {1 + i // 5}
            s_cselect_b64 exec, -1, 0
            s_mov_b32 m0, s72
            s_add_u32 s72, s72, {1024 if i != 4 else 40960 - 4096}
            ''')
            k(f'buffer_load_dwordx4 v21, {P4(rB)}, s71 offen {self.o["nt"]} lds', tag='wdl')
            k(f's_mov_b64 exec, -1\ns_add_u32 s71, s71, {1024 if i != 4 else 40 * 40960 - 4096}')
        L = self.only_wave(0)
        self.poll_sync1(215, 58)
        Lr, Ld = k.label('fr'), k.label('fd')
        k(f'''
        s_cmp_ge_u32 s2, 30
        s_cbranch_scc1 {L}
        s_add_u32 s55, s2, 30
        s_lshl_b32 s56, s55, 11
        s_add_u32 s56, s56, {MODP}
        v_lshl_add_u32 v8, v0, 2, s56
        {Lr}:
        ''')
        for e in range(8):
            k(f'global_load_dword {vr(32 + e)}, v8, {P2(pWS)} offset:{256 * e} sc1')
        k(f'''
        v_min3_u32 v40, v32, v33, v34
        v_min3_u32 v40, v40, v35, v36
        v_min3_u32 v40, v40, v37, v38
        v_min_u32 v40, v40, v39
        v_cmp_eq_u32 vcc, 0, v40
        s_cbranch_vccz {Ld}
        s_sleep {self.o.get('sleep', 2)}
        s_add_u32 {sr(sSPIN)}, {sr(sSPIN)}, 1
        s_cmp_lt_u32 {sr(sSPIN)}, {SPIN_MAX}
        s_cbranch_scc1 {Lr}
        {Ld}:
        v_add_f32 v32, v32, v36
        v_add_f32 v33, v33, v37
        v_add_f32 v34, v34, v38
        v_add_f32 v35, v35, v39
        v_add_f32 v32, v32, v33
        v_add_f32 v34, v34, v35
        v_add_f32 v32, v32, v34
        v_cvt_pk_bf16_f32 v32, v32, v32
        v_and_b32 v32, 0xffff0000, v32
        v_or_b32 v32, 1, v32
        s_lshl_b32 s55, s55, 8
        s_add_u32 s55, s55, {MOD}
        v_lshlrev_b32 v8, 2, v0
        buffer_store_dword v32, v8, {P4(rWS)}, s55 offen sc1
        ''')
        self.stamp('h_mod')
        k(f'{L}:')
        Lw, Lwd = k.label('wdl'), k.label('wdd')
        k(f'''
        v_lshrrev_b32 v9, 5, v0
        v_lshlrev_b32 v9, 4, v9
        v_bfe_u32 v10, v0, 2, 3
        v_add_u32 v9, v9, v10
        v_mul_u32_u24 v9, 1280, v9
        v_and_b32 v10, 3, v0
        v_lshl_add_u32 v9, v10, 3, v9
        s_mul_i32 s56, {sr(sW)}, 160
        v_add_u32 v9, s56, v9
        s_mul_i32 s55, {sr(sW)}, {54 * 5120}
        s_mul_i32 s56, s75, 5120
        s_add_u32 s55, s55, s56
        s_add_u32 s55, s55, {WD}
        s_waitcnt vmcnt(0)
        s_barrier
        s_cmp_eq_u32 s76, 0
        s_cbranch_scc1 {Lwd}
        {Lw}:
        ''')
        for j in range(5):
            k(f'ds_read_b64_tr_b16 {vr(32 + 4 * j, 2)}, v9 offset:{8192 + 32 * j}')
            k(f'ds_read_b64_tr_b16 {vr(34 + 4 * j, 2)}, v9 offset:{8192 + 32 * j + 8 * 1280}')
        k('s_add_u32 s56, s55, 4096')
        for j in range(5):
            k(f'buffer_store_dwordx4 {vr(32 + 4 * j, 4)}, v21, {P4(rWS)}, s{55 + j // 4} offen offset:{1024 * (j % 4)} sc1')
        k(f'''
        s_add_u32 s55, s55, {40 * 5120}
        v_add_u32 v9, 40960, v9
        s_sub_u32 s76, s76, 1
        s_cmp_lg_u32 s76, 0
        s_cbranch_scc1 {Lw}
        {Lwd}:
        s_waitcnt vmcnt(0)
        s_barrier
        ''')

    def stats_job(self):
        k = self.k
        LD, V = 96, 32
        k(f'''
        v_lshrrev_b32 v8, 3, v0
        s_mul_i32 s55, {sr(sW)}, 80
        v_add_u32 v8, s55, v8
        v_mul_u32_u24 v8, {X1R}, v8
        v_and_b32 v10, 7, v0
        v_lshl_add_u32 v8, v10, 4, v8
        s_lshl_b32 s55, s2, 7
        s_add_u32 s55, s55, {X1T}
        ''')
        for i in range(10):
            k(f'buffer_load_dwordx4 {vr(LD + 4 * i, 4)}, v8, {P4(rWS)}, s55 offen sc1')
            if i < 9:
                k(f's_add_u32 s55, s55, {8 * X1R}')
        for i in range(10):
            for j in range(4):
                r = LD + 4 * i + j
                if i == 0:
                    k(f'''
                    v_lshlrev_b32 {vr(V + 2 * j)}, 16, {vr(r)}
                    v_and_b32 {vr(V + 2 * j + 1)}, 0xffff0000, {vr(r)}
                    v_mul_f32 {vr(V + 8 + 2 * j)}, {vr(V + 2 * j)}, {vr(V + 2 * j)}
                    v_mul_f32 {vr(V + 9 + 2 * j)}, {vr(V + 2 * j + 1)}, {vr(V + 2 * j + 1)}
                    ''')
                else:
                    k(f'''
                    v_lshlrev_b32 v11, 16, {vr(r)}
                    v_and_b32 v12, 0xffff0000, {vr(r)}
                    v_add_f32 {vr(V + 2 * j)}, {vr(V + 2 * j)}, v11
                    v_add_f32 {vr(V + 2 * j + 1)}, {vr(V + 2 * j + 1)}, v12
                    v_fmac_f32 {vr(V + 8 + 2 * j)}, v11, v11
                    v_fmac_f32 {vr(V + 9 + 2 * j)}, v12, v12
                    ''')
        self.strip_reduce(16, V, 0)
        L = self.only_wave(0)
        k('v_lshlrev_b32 v8, 2, v0')
        for w in range(8):
            k(f'ds_read2st64_b32 {vr(V + 2 * w, 2)}, v8 offset0:{2 * w} offset1:{2 * w + 1}')
        for w in range(1, 8):
            k(f'v_add_f32 {vr(V)}, {vr(V)}, {vr(V + 2 * w)}')
            k(f'v_add_f32 {vr(V + 1)}, {vr(V + 1)}, {vr(V + 2 * w + 1)}')
        k(f'''
        v_mul_f32 v10, {f32(1.0 / 640)}, {vr(V)}
        v_mul_f32 v11, {f32(1.0 / 640)}, {vr(V + 1)}
        v_fma_f32 v11, -v10, v10, v11
        v_max_f32 v11, 0, v11
        v_cvt_pk_bf16_f32 v11, v11, v11
        v_lshlrev_b32 v11, 16, v11
        v_add_f32 v11, {f32(1e-5)}, v11
        v_cvt_pk_bf16_f32 v11, v11, v11
        v_lshlrev_b32 v11, 16, v11
        v_sqrt_f32 v11, v11
        v_cvt_pk_bf16_f32 v10, v10, v11
        s_lshl_b32 s55, s2, 8
        s_add_u32 s55, s55, {STATS}
        buffer_store_dword v10, v8, {P4(rWS)}, s55 offen sc1
        {L}:
        s_barrier
        ''')

    def helper(self):
        k = self.k
        k('L_helper:')
        self.srd(rB, pWD, 1728 * 640 * 2)
        self.mod_and_wd()
        L = self.only_wave(0)
        k('s_and_b32 s55, s2, 3')
        self.arrive(SYNCW, 4, 's55', 16)
        k(f'{L}:')
        self.stamp('h_wd')
        if self.o['stop'] in ('A', 'kgen'):
            k('s_branch L_fin')
            return
        Lns = k.label('nostat')
        Lb, Lp = k.label('lateb'), k.label('polled')
        L = self.only_wave(0)
        k(f's_cmp_ge_u32 s2, {16 if self.o.get("s2c", 0) else 8}\ns_cbranch_scc1 {Lb}')
        self.poll_addr(SYNC2A, 24, 16)
        k(f's_lshr_b32 s55, s2, 3\ns_mul_i32 s55, s55, {SYNC2C - SYNC2A}\nv_add_u32 v16, s55, v16')
        self.poll(16, 17, 27, nl=24, sleep=self.o.get('hsleep', 4))
        k(f's_branch {Lp}\n{Lb}:')
        self.poll_addr(SYNC2B, 24, 16)
        self.poll(16, 17, 9, nl=24, sleep=self.o.get('hsleep', 4))
        k(f'{Lp}:\n{L}:')
        k('s_barrier')
        self.stamp('s2a')
        k(f's_cmp_ge_u32 s2, 32\ns_cbranch_scc1 {Lns}')
        self.stats_job()
        k(f'{Lns}:')
        self.stamp('h_stat')
        if self.o['stop'] in ('conv', 'g1'):
            k('s_branch L_fin')
            return
        L = self.only_wave(0)
        self.poll_addr(SYNC2B, 24, 16)
        self.poll(16, 17, 9, nl=24, sleep=self.o.get('hsleep', 4))
        self.poll_addr(SYNCW, 4, 16)
        self.poll(16, 17, 10, nl=4)
        k(f'{L}:')
        k('s_barrier')
        self.g2_setup()
        self.g2_addr()
        for i in range(7):
            for f in range(5):
                self.g2_wload(i, f)
        self.resid_dma()
        L = self.only_wave(0)
        self.poll(65, 3, 27, nl=1, sleep=self.o.get('hsleep3', 8))
        k(f'{L}:')
        k('s_waitcnt vmcnt(0)\ns_barrier')
        self.resid_read()
        if self.o.get('hpf', 0):
            k(f'''
            s_lshl_b32 s55, s61, 3
            s_add_u32 s55, s55, {sr(sW)}
            v_lshlrev_b32 v1, 7, v0
            s_min_u32 s56, s55, 29
            s_mul_i32 s57, s56, 0x199a
            s_lshr_b32 s57, s57, 16
            s_mul_i32 s58, s57, 10
            s_sub_u32 s56, s56, s58
            s_add_u32 s57, s57, 5
            s_mul_i32 s57, s57, {54 * 5120}
            s_lshl_b32 s56, s56, 13
            s_add_u32 s56, s56, s57
            s_add_u32 s56, s56, {WD + 5 * 40960}
            buffer_load_dword v79, v1, {P4(rWS)}, s56 offen sc1
            s_lshl_b32 s57, {sr(sMB)}, 1
            s_add_u32 s57, s57, 1
            s_mul_i32 s57, s57, {108 * 1024}
            s_add_u32 s57, s57, {ACT}
            s_min_u32 s56, s55, 13
            s_lshl_b32 s56, s56, 13
            s_add_u32 s56, s56, s57
            s_cmp_lt_u32 s55, 14
            s_cselect_b64 exec, -1, 0
            buffer_load_dword v79, v1, {P4(rWS)}, s56 offen sc1
            s_mov_b64 exec, -1
            ''')
            L = self.only_wave(0)
            self.poll(65, 3, 27, nl=1, sleep=8, off=1024)
            k(f'''
            {L}:
            s_barrier
            s_add_u32 s57, s57, {15 * 108 * 1024}
            s_min_u32 s56, s55, 26
            s_lshl_b32 s56, s56, 13
            s_add_u32 s56, s56, s57
            s_cmp_lt_u32 s55, 27
            s_cselect_b64 exec, -1, 0
            buffer_load_dword v79, v1, {P4(rWS)}, s56 offen sc1
            s_mov_b64 exec, -1
            s_waitcnt vmcnt(0)
            ''')
        for n in range(2):
            self.g2_lda(0, n)
        for _ in range(1 + self.o.get('w2_tail', 0)):
            k(f'global_load_dword v79, v72, {P2(pWS)} sc1')
        if not self.o.get('hold', 0):
            for n in range(2, 4):
                self.g2_lda(0, n)
        k('s_branch L_g2')

    def build(self):
        k = self.k
        stop = self.o['stop']
        self.prologue()
        self.early_addresses(0 if self.o.get('esplit') else None)
        self.ln1()
        k('s_cmp_lt_u32 s2, 40\ns_cbranch_scc1 L_helper')
        while True:
            if stop == 'A':
                break
            self.kgen()
            if self.o.get('mp_early', 2) == 2:
                self.mod_partial()
            self.stamp('kgen')
            self.kexpand1()
            self.conv(setup_only=True)
            self.stamp('kexp')
            if self.o.get('mp_early', 2) == 1:
                self.mod_partial()
            self.conv_loads()
            if not self.o.get('mp_early', 2):
                self.mod_partial()
            self.kexpand2()
            self.wstage_read(0, 213)
            if stop == 'kgen':
                self.dump_k()
                break
            self.conv()
            self.window2()
            if stop == 'conv':
                break
            self.g1()
            if stop == 'g1':
                break
            self.g2()
            break
        k('L_fin:')
        if self.o.get('diag_T'):
            k(f'''
            L_dt:
            s_memrealtime s[96:97]
            s_waitcnt lgkmcnt(0)
            s_sub_u32 s96, s96, s94
            s_cmp_lt_u32 s96, {self.o['diag_T']}
            s_cbranch_scc1 L_dt
            ''')
        k(f'''
        s_or_b32 s3, s2, {sr(sW)}
        s_cmp_lg_u32 s3, 0
        s_cbranch_scc1 L_nogen
        v_mov_b32 v8, {GEN}
        v_mov_b32 v9, {sr(sTAG)}
        s_mov_b64 exec, 1
        global_store_dword v8, v9, {P2(pWS)} sc1
        s_mov_b64 exec, -1
        L_nogen:
        ''')
        self.stamp_flush()
        k('s_endpgm')
        self.helper()
        k('L_end:\ns_endpgm')
        body = k.text()
        hdr = open('adaLN_cond__ssm_conv_s4d__geglu_ffn__prompt.s.ref').read().split('; Override')[0]
        form = f'kernel={NAME} ' if self.o.get('listform', 1) else ''
        return hdr + f'''; @launch {form}grid=(256,1,1) block=(512,1,1) lds={LDS_BYTES}
;
; One persistent launch, one workgroup (8 waves) per CU; generated by a script from hand-written templates.
;   phase A  every workgroup: LayerNorm-1 of 8 tokens, transposed into the workspace; partial sums of silu(c) @ w_mod
;   phase K  workgroups 40..255 (3 channels each): S4D kernel at the 641 distinct bf16 positions as a Vandermonde
;            product on MFMA, expanded to 2048 lags, plus its prefix sums
;   phase B  causal convolution as polyphase Toeplitz MFMA, modulation / skip / residual in the epilogue
;   phase G1 gate/up GEMM with the weight panel resident in registers, LayerNorm-2 folded in as one extra k-step, GEGLU
;   phase G2 down GEMM (K split over the waves), gate and residual
;   workgroups 0..39 finish the modulation vector, re-lay W_down and compute the LayerNorm-2 statistics
; Hand-offs between workgroups: write-through stores, drained, then a flag / counter; consumers read past L1.
; The first barrier uses flags tagged with a generation word, every later flag is cleared before that barrier.
.amdgcn_target "amdgcn-amd-amdhsa--gfx950"
.text
.globl {NAME}
.p2align 8
.type {NAME},@function
{NAME}:
{body}.section .rodata,"a"
.p2align 6
.amdhsa_kernel {NAME}
  .amdhsa_next_free_vgpr 256
  .amdhsa_next_free_sgpr 102
  .amdhsa_accum_offset 256
  .amdhsa_group_segment_fixed_size 0
  .amdhsa_kernarg_size 128
  .amdhsa_user_sgpr_count 2
  .amdhsa_user_sgpr_kernarg_segment_ptr 1
  .amdhsa_system_sgpr_workgroup_id_x 1
.end_amdhsa_kernel
'''

    def dump_k(self):
        k = self.k
        k.wait('saw')
        k('s_barrier')
        k(f's_lshl_b32 s55, {sr(sW)}, 6\nv_add_u32 v8, s55, v0\nv_lshlrev_b32 v9, 3, v8\nv_lshlrev_b32 v10, 4, v8')
        for ch in range(3):
            k(f'''
            ds_read_b64 v[12:13], v9 offset:{KA + ch * KAS + 32}
            ds_read_b128 v[16:19], v10 offset:{SA + ch * SAS}
            s_add_u32 s55, {sr(sD0)}, {ch}
            s_lshl_b32 s56, s55, 12
            s_add_u32 s56, s56, {X1T}
            s_lshl_b32 s57, s55, 13
            s_add_u32 s57, s57, {ACT}
            buffer_store_dwordx2 v[12:13], v9, {P4(rWS)}, s56 offen
            buffer_store_dwordx4 v[16:19], v10, {P4(rWS)}, s57 offen
            s_waitcnt vmcnt(0)
            ''')


LAST = None
def generate(**opt):
    global LAST
    LAST = Gen(opt)
    return LAST.build()


if __name__ == '__main__':
    opt = {}
    for a in sys.argv[2:]:
        kx, v = a.split('=')
        opt[kx] = eval(v)
    open(sys.argv[1], 'w').write(generate(**opt))
```

```python
import re

TRANS = ('v_exp_f32', 'v_log_f32', 'v_rcp_f32', 'v_rsq_f32', 'v_sqrt_f32', 'v_sin_f32', 'v_cos_f32', 'v_rcp_iflag_f32')
REG_RE = re.compile(r'(?<![\w.])([vs])(\d+)(?![\w\[])|(?<![\w.])([vs])\[(\d+):(\d+)\]|\b(vcc|exec|m0|scc)(?:_lo|_hi)?\b')


def regs_of(tok):
    out = []
    for m in REG_RE.finditer(tok):
        if m.group(1):
            out.append((m.group(1), int(m.group(2))))
        elif m.group(3):
            out += [(m.group(3), r) for r in range(int(m.group(4)), int(m.group(5)) + 1)]
        else:
            out.append(('x', m.group(6)))
    return out


def split_ops(s):
    ops, depth, cur = [], 0, ''
    for ch in s:
        if ch in '[(':
            depth += 1
        if ch in '])':
            depth -= 1
        if ch == ',' and depth == 0:
            ops.append(cur.strip())
            cur = ''
        else:
            cur += ch
    if cur.strip():
        ops.append(cur.strip())
    return ops


class Ins:
    __slots__ = ('text', 'op', 'ops', 'dst', 'src', 'kind', 'tag', 'waits', 'mf', 'label', 'target', 'states', 'srcC', 'srcAB', 'sdata')

    def __init__(self, text, tag=None):
        self.text = text
        self.tag = tag
        self.waits = []
        self.label = None
        self.target = None
        self.mf = 0
        self.states = 1
        self.srcC = set()
        self.srcAB = set()
        self.sdata = set()
        t = text.split(';')[0].strip()
        if t.endswith(':'):
            self.label = t[:-1]
            self.kind = 'label'
            self.op = ''
            self.ops = []
            self.dst = set()
            self.src = set()
            self.states = 0
            return
        if t.startswith('.') or t == '':
            self.kind = 'dir'
            self.op = ''
            self.ops = []
            self.dst = set()
            self.src = set()
            self.states = 0
            return
        parts = t.split(None, 1)
        op = self.op = parts[0]
        rest = parts[1] if len(parts) > 1 else ''
        ops = self.ops = split_ops(rest)
        R = [regs_of(o.split(' ')[0] if i == len(ops) - 1 and not o.startswith('hwreg') else o) for i, o in enumerate(ops)]
        allr = lambda lo: set(x for r in R[lo:] for x in r)
        dst, src = set(), set()
        if op == '__wait':
            self.kind = 'pseudo'
            self.states = 0
            self.waits = ops
        elif op.startswith('v_mfma'):
            self.kind = 'mfma'
            self.mf = 8 if '32x32' in op else 4
            dst = set(R[0])
            src = allr(1)
            self.srcC = set(R[3])
            self.srcAB = set(R[1]) | set(R[2])
        elif op.startswith('v_'):
            self.kind = 'valu'
            if op.startswith('v_permlane') or op.startswith('v_swap'):
                dst = set(R[0]) | set(R[1])
                src = set(dst)
            elif '_co_' in op or op.startswith('v_div_scale') or op.startswith('v_mad_u64'):
                dst = set(R[0]) | set(R[1])
                src = allr(2)
            elif op.startswith('v_cmpx'):
                dst = set(R[0]) | {('x', 'exec')}
                src = allr(1)
            else:
                dst = set(R[0])
                src = allr(1)
                if op.startswith('v_fmac') or op.startswith('v_dot2c') or op.startswith('v_writelane') or '_dpp' in op:
                    src |= dst
        elif op.startswith('ds_'):
            self.kind = 'ds'
            if op.startswith('ds_read') or op.startswith('ds_bpermute') or op.startswith('ds_permute') or op.startswith('ds_swizzle') or '_rtn' in op:
                dst = set(R[0])
                src = allr(1)
                if 'd16' in op:
                    src |= dst
            else:
                src = allr(0)
            if 'addtid' in op:
                src.add(('x', 'm0'))
        elif op.startswith('buffer_') or op.startswith('global_'):
            self.kind = 'vmem'
            toks = t.replace(',', ' ').split()
            lds = ('lds' in toks) or '_lds_' in op
            if op in ('buffer_wbl2', 'buffer_inv'):
                pass
            elif lds:
                src = allr(0) | {('x', 'm0')}
            elif '_load_' in op:
                dst = set(R[0])
                src = allr(1)
                if 'd16' in op:
                    src |= dst
            elif '_atomic_' in op:
                if 'sc0' in toks:
                    dst = set(R[0])
                    src = allr(1) if op.startswith('global_') else allr(0)
                else:
                    src = allr(0)
            else:
                src = allr(0)
                if op.endswith('x4') or op.endswith('x3'):
                    self.sdata = set(R[0]) if op.startswith('buffer_') else set(R[1])
        elif op.startswith('s_load') or op.startswith('s_buffer_load') or op in ('s_memtime', 's_memrealtime'):
            self.kind = 'smem'
            dst = set(R[0])
            src = allr(1)
        elif op.startswith('s_'):
            self.kind = 'salu'
            if op == 's_nop':
                self.states = int(ops[0], 0) + 1
            elif op in ('s_branch',) or op.startswith('s_cbranch'):
                self.kind = 'branch'
                self.target = ops[0]
                if 'vcc' in op:
                    src = {('x', 'vcc')}
            elif op == 's_endpgm':
                self.kind = 'end'
            elif op in ('s_waitcnt', 's_barrier', 's_setprio', 's_sleep', 's_sethalt'):
                pass
            elif op.startswith('s_cmp') or op.startswith('s_bitcmp'):
                src = allr(0)
            else:
                dst = set(R[0])
                src = allr(1)
                if 'saveexec' in op:
                    dst.add(('x', 'exec'))
                if op in ('s_addk_i32', 's_mulk_i32') or op.startswith('s_cmov') or op.startswith('s_bitset'):
                    src |= set(R[0])
        else:
            raise ValueError('unknown instruction: ' + text)
        self.dst, self.src = dst, src


VM_MAX, LG_MAX = 63, 15


class Kern:
    def __init__(self):
        self.ins = []
        self.nlab = 0

    def __call__(self, text, tag=None):
        for line in text.split('\n'):
            line = line.strip()
            if not line or line.startswith(';'):
                continue
            self.ins.append(Ins(line, tag))
        return self

    def wait(self, *tags):
        self.ins.append(Ins('__wait ' + ', '.join(tags)))

    def label(self, base):
        self.nlab += 1
        return f'L_{base}_{self.nlab}'

    def schedule(self, start):
        reg = self.ins[start:]
        assert all(x.kind in ('valu', 'mfma', 'ds', 'vmem', 'salu') for x in reg)
        assert not any(('x', 'exec') in x.dst for x in reg)

        def lat(x):
            if x.kind == 'mfma':
                return x.mf * 4 + 20
            if x.kind == 'ds':
                return 100
            if x.kind == 'vmem':
                return 400
            if x.kind == 'salu':
                return 4
            op = x.op.replace('_e32', '').replace('_e64', '')
            if op in TRANS:
                return 18
            if op.startswith('v_pk_') or 'cvt_pk' in op or '_dpp' in op or op.startswith('v_dot'):
                return 10
            return 6

        def cost(x):
            op = x.op.replace('_e32', '').replace('_e64', '')
            return 8 if (op in TRANS or x.kind == 'mfma') else 4
        n = len(reg)
        preds = [[] for _ in range(n)]
        lastw, readers = {}, {}
        lastk = {}
        for i, x in enumerate(reg):
            for r in x.src:
                if r in lastw:
                    p = reg[lastw[r]]
                    l = lat(p)
                    if p.kind == 'mfma' and x.kind == 'mfma' and r in x.srcC and p.dst == x.srcC:
                        l = p.mf * 4
                    preds[i].append((lastw[r], l))
            for r in x.dst:
                if r in lastw:
                    preds[i].append((lastw[r], 1 if reg[lastw[r]].kind != 'mfma' else lat(reg[lastw[r]])))
                for j in readers.get(r, []):
                    if j != i:
                        preds[i].append((j, 1))
            kind = x.kind if x.kind in ('ds', 'vmem', 'salu') else None
            if kind:
                if kind in lastk:
                    preds[i].append((lastk[kind], 1))
                lastk[kind] = i
            for r in x.src:
                readers.setdefault(r, []).append(i)
            for r in x.dst:
                lastw[r] = i
                readers[r] = []
        succs = [[] for _ in range(n)]
        for i in range(n):
            for j, l in preds[i]:
                succs[j].append((i, l))
        prio = [0] * n
        for i in range(n - 1, -1, -1):
            prio[i] = cost(reg[i]) + max([l + prio[j] for j, l in succs[i]], default=0)
        left = [len(p) for p in preds]
        ready_at = [0] * n
        avail = [i for i in range(n) if not left[i]]
        t, out = 0, []
        while avail:
            now = [i for i in avail if ready_at[i] <= t]
            if not now:
                t = min(ready_at[i] for i in avail)
                continue
            i = max(now, key=lambda q: (prio[q], -q))
            avail.remove(i)
            out.append(reg[i])
            for j, l in succs[i]:
                ready_at[j] = max(ready_at[j], t + l)
                left[j] -= 1
                if not left[j]:
                    avail.append(j)
            t += cost(reg[i])
        assert len(out) == n
        self.ins[start:] = out
        return t

    def blocks(self, ins):
        starts = {0}
        for i, x in enumerate(ins):
            if x.kind == 'label':
                starts.add(i)
            if x.kind in ('branch', 'end') and i + 1 < len(ins):
                starts.add(i + 1)
        st = sorted(starts)
        blks = [(a, b) for a, b in zip(st, st[1:] + [len(ins)])]
        lab = {ins[a].label: k for k, (a, b) in enumerate(blks) if ins[a].kind == 'label'}
        succ = []
        for k, (a, b) in enumerate(blks):
            last = None
            for j in range(b - 1, a - 1, -1):
                if ins[j].kind not in ('dir', 'pseudo'):
                    last = ins[j]
                    break
            s = []
            if last is not None and last.kind == 'end':
                pass
            elif last is not None and last.kind == 'branch':
                s.append(lab[last.target])
                if last.op != 's_branch' and k + 1 < len(blks):
                    s.append(k + 1)
            elif k + 1 < len(blks):
                s.append(k + 1)
            succ.append(s)
        pred = [[] for _ in blks]
        for k, s in enumerate(succ):
            for t in s:
                pred[t].append(k)
        return blks, succ, pred

    @staticmethod
    def _apply_wait(st, vm, lg):
        for key in list(st):
            cls, age = st[key]
            if cls == 'vm' and vm is not None and age >= vm:
                del st[key]
            elif cls == 'lg' and lg is not None and age >= lg:
                del st[key]
            elif cls == 'sm' and lg == 0:
                del st[key]

    def _run_block(self, ins, a, b, st, out):
        st = dict(st)
        for i in range(a, b):
            x = ins[i]
            if x.kind in ('label', 'dir'):
                if out is not None:
                    out.append(x)
                continue
            if x.op == 's_waitcnt':
                m = re.search(r'vmcnt\((\d+)\)', x.text)
                vm = int(m.group(1)) if m else None
                m = re.search(r'lgkmcnt\((\d+)\)', x.text)
                lg = int(m.group(1)) if m else None
                self._apply_wait(st, vm, lg)
                if out is not None:
                    out.append(x)
                continue
            need = [('t', t) for t in x.waits] if x.kind == 'pseudo' else list(x.src | x.dst)
            if x.tag == 'raw':
                for key in need:
                    st.pop(key, None)
                need = []
            vm = lg = None
            smem_pending = any(c == 'sm' for c, _ in st.values())
            for key in need:
                if key in st:
                    cls, age = st[key]
                    if key in x.dst and key not in x.src and ((cls == 'vm' and x.kind == 'vmem') or (cls == 'lg' and x.kind == 'ds' and not smem_pending)):
                        continue
                    if cls == 'vm':
                        vm = min(age, VM_MAX) if vm is None else min(vm, age)
                    elif cls == 'lg':
                        v = 0 if smem_pending else min(age, LG_MAX)
                        lg = v if lg is None else min(lg, v)
                    else:
                        lg = 0
            if vm is not None or lg is not None:
                self._apply_wait(st, vm, lg)
                if out is not None:
                    w = 's_waitcnt' + (f' vmcnt({vm})' if vm is not None else '') + (f' lgkmcnt({lg})' if lg is not None else '')
                    out.append(Ins(w))
            if x.kind == 'pseudo':
                continue
            cls = {'vmem': 'vm', 'ds': 'lg', 'smem': 'sm'}.get(x.kind)
            if cls:
                for key in list(st):
                    c, age = st[key]
                    if c == cls and cls != 'sm':
                        st[key] = (c, age + 1)
                for r in x.dst:
                    st[r] = (cls, 0)
                if x.tag:
                    for t in (x.tag if isinstance(x.tag, (list, tuple)) else [x.tag]):
                        st[('t', t)] = (cls, 0)
                if cls == 'sm' and not x.dst:
                    st[('t', '__smem')] = (cls, 0)
            if out is not None:
                out.append(x)
        return st

    def insert_waits(self):
        ins = self.ins
        blks, succ, pred = self.blocks(ins)
        inst = [None] * len(blks)
        work = []
        for k in range(len(blks)):
            if k == 0 or not pred[k]:
                inst[k] = {}
                work.append(k)
        it = 0
        while work:
            it += 1
            assert it < 200000
            k = work.pop(0)
            o = self._run_block(ins, blks[k][0], blks[k][1], inst[k], None)
            for t in succ[k]:
                if inst[t] is None:
                    inst[t] = dict(o)
                    work.append(t)
                else:
                    ch = False
                    for key, (c, age) in o.items():
                        if key not in inst[t]:
                            inst[t][key] = (c, age)
                            ch = True
                        else:
                            c2, a2 = inst[t][key]
                            if c2 != c:
                                raise ValueError(f'register {key} pending in two counter classes at block {ins[blks[t][0]].text}')
                            if age < a2:
                                inst[t][key] = (c, age)
                                ch = True
                    if ch and t not in work:
                        work.append(t)
        out = []
        for k, (a, b) in enumerate(blks):
            self._run_block(ins, a, b, inst[k] or {}, out)
        self.ins = out

    @staticmethod
    def _req(p, c):
        V = lambda s: set(r for r in s if r[0] == 'v')
        S = lambda s: set(r for r in s if r[0] == 's' or r == ('x', 'vcc'))
        n = 0
        if p.kind == 'valu':
            pv = V(p.dst)
            ps = S(p.dst)
            if c.kind == 'mfma' and pv & c.src:
                n = max(n, 2)
            if c.kind == 'valu':
                if pv & c.src:
                    if '_dpp' in c.op or c.op.startswith('v_permlane'):
                        n = max(n, 2)
                    if c.op.startswith('v_readlane') or c.op.startswith('v_readfirstlane'):
                        n = max(n, 1)
                    if p.op.replace('_e32', '').replace('_e64', '') in TRANS:
                        n = max(n, 1)
                    if 'sdwa' in p.op:
                        n = max(n, 1)
                if p.op.startswith('v_dot') and pv & (c.src | c.dst):
                    same = c.op == p.op
                    if same and len(c.ops) >= 3:
                        ab = set(regs_of(c.ops[1])) | set(regs_of(c.ops[2]))
                        if pv & ab:
                            n = max(n, 3)
                    else:
                        n = max(n, 3)
                if ps & c.src:
                    if c.op.startswith('v_readlane') or c.op.startswith('v_writelane'):
                        n = max(n, 4)
                    else:
                        n = max(n, 2)
            elif p.op.startswith('v_dot') and pv & (c.src | c.dst):
                n = max(n, 3)
            if c.kind == 'vmem' and ps & c.src:
                n = max(n, 5)
            if c.kind in ('salu', 'branch', 'smem') and ps & c.src:
                n = max(n, 1)
            if ('x', 'exec') in p.dst:
                n = max(n, 5)
        elif p.kind == 'mfma':
            d = p.dst
            if c.kind == 'mfma':
                if d & c.srcAB:
                    n = max(n, p.mf + 4)
                if d & c.srcC:
                    if not (d == c.srcC and p.mf == c.mf):
                        n = max(n, p.mf + 2)
                elif d & c.dst:
                    n = max(n, p.mf + 2)
            elif c.kind in ('valu', 'vmem', 'ds'):
                if d & (c.src | c.dst):
                    n = max(n, p.mf + 4)
                if c.kind == 'valu' and p.srcC & c.dst:
                    n = max(n, p.mf - 1)
        elif p.kind == 'salu':
            if ('x', 'm0') in p.dst and ('x', 'm0') in c.src and c.kind in ('vmem', 'ds'):
                n = max(n, 1)
        elif p.kind == 'vmem':
            if p.sdata and p.sdata & c.dst:
                n = max(n, 2)
        return n

    def insert_nops(self):
        ins = self.ins
        blks, succ, pred = self.blocks(ins)
        body = [list(ins[a:b]) for a, b in blks]
        WIN = 14

        def scan(k, upto, dist, c, seen):
            need = 0
            lst = body[k]
            for j in range(upto - 1, -1, -1):
                p = lst[j]
                if p.states == 0:
                    continue
                r = self._req(p, c)
                if r - dist > need:
                    need = r - dist
                dist += p.states
                if dist >= WIN:
                    return need
            for q in pred[k]:
                key = (q, dist)
                if key in seen:
                    continue
                seen.add(key)
                need = max(need, scan(q, len(body[q]), dist, c, seen))
            return need

        for k in range(len(body)):
            j = 0
            while j < len(body[k]):
                c = body[k][j]
                if c.states:
                    need = scan(k, j, 0, c, set())
                    if need > 0:
                        body[k].insert(j, Ins(f's_nop {need - 1}'))
                        j += 1
                j += 1
        self.ins = [x for b in body for x in b]

    def text(self):
        self.insert_waits()
        self.insert_nops()
        out = []
        for x in self.ins:
            if x.kind == 'pseudo':
                continue
            out.append(x.text if x.kind == 'label' else '  ' + x.text)
        return '\n'.join(out) + '\n'


def vr(a, n=1):
    return f'v{a}' if n == 1 else f'v[{a}:{a + n - 1}]'


def sr(a, n=1):
    return f's{a}' if n == 1 else f's[{a}:{a + n - 1}]'


def f32(x):
    import struct
    return '0x%08x' % struct.unpack('<I', struct.pack('<f', x))[0]
```

```python
import sys, math
from asmgen import Kern, vr, sr, f32

NAME = 'adaLN_cond__ssm_conv_s4d__geglu_ffn__prompt_kernel'

SYNC1 = 0x0
GEN = 0x22000
MS = 0x1E000
SYNC2A, SYNC2B, SYNCW, SYNC3, SYNC2C = 0x8000, 0xE000, 0x14000, 0x15000, 0x18000
MODP = 0xC0000
MOD, STATS = 0x24000, 0x16000
ZBEG, ZEND = 0x8000, 0x1E000
STAMP = 0x30000
CSP = 0x3C0000
XN, XT, X1T, X1S, WD, ACT = 0x100000, 0x400000, 0x700000, 0xA00000, 0xD00000, 0x1000000
XNS, X1R = 10240 + 128, 4096 + 128
KG, KGS = 0, 4608
XNL0, MSL = 1696, 13984
KA, KAS = 27648, 4128
SA, SAS = 40032, 8192
TR, TRR, TRM = 40032, 1344, 10752
WT = 81408
KC, KCS = 51200, 3840
GA = 204
TAB, EXC = 78336, 10240
STG = 81920
RING, NS = 16384, 5
PARK0, PARK6A, PARK6B, PARK7 = 122880, 98304, 0, 118784
RESID, PART = 16384, 0
W2 = {1: 96, 2: 116, 3: 136, 4: 156, 5: 176, 0: 196, 6: 216}
sOW = {0: 70, 6: 71, 1: 72, 2: 73, 3: 74, 4: 75, 5: 76}
sOA = {0: 94, 6: 95, 1: 96, 2: 97, 3: 98, 4: 99, 5: 77}
LDS_BYTES = 163840
pX, pLA, pAI, pCR, pCI, pDT, pDS, pWG, pWU, pWD, pC, pWM, pOUT, pDBG, pWS = 4, 6, 8, 10, 12, 14, 16, 20, 22, 24, 26, 28, 30, 32, 34
sW, sI, sPC = 36, 37, 38
rWS, rA, rB = 40, 44, 48
sD0, sMB, sNB = 52, 53, 54
sT = 55
sCH = 70
sSPIN = 79
sST = 80
sFLAG = 82
sWL, sWO, sWI, sWR = 86, 87, 88, 89
sQ, sM1, sTAG = 91, 92, 93
P2 = lambda r: sr(r, 2)
P4 = lambda r: sr(r, 4)
WF = 96
SPIN_MAX = 400000

LOG2E = 1.4426950408889634


class Gen:
    def __init__(self, opt):
        self.o = dict(stop=None, stamps=False, nt='nt')
        self.o.update(opt)
        self.k = Kern()
        self.nst = 0

    def stamp(self, name, vt=None):
        if not self.o['stamps']:
            return
        if isinstance(self.o['stamps'], (list, tuple)) and name not in self.o['stamps']:
            return
        names = self.o.setdefault('stamp_names', [])
        if name not in names:
            names.append(name)
        idx = names.index(name)
        assert idx < 32, names
        self.k(f'''
        s_memrealtime {sr(sST, 2)}
        s_memtime s[84:85]
        s_waitcnt lgkmcnt(0)
        v_writelane_b32 v87, {sr(sST)}, {idx}
        v_writelane_b32 v87, s84, {32 + idx}
        ''')

    def stamp_flush(self):
        if not self.o['stamps']:
            return
        self.k(f'''
        s_lshl_b32 s3, s2, 3
        s_add_u32 s3, s3, {sr(sW)}
        s_lshl_b32 s3, s3, 8
        s_add_u32 s3, s3, {STAMP}
        v_lshl_add_u32 v86, v0, 2, s3
        global_store_dword v86, v87, {P2(pWS)}
        ''')

    def arrive(self, base, nshard, shard_sreg, vt):
        k = self.k
        k(f'''
        s_lshl_b32 s3, {shard_sreg}, 7
        s_add_u32 s3, s3, {base}
        v_mul_u32_u24 {vr(vt)}, {128 * nshard}, v0
        v_add_u32 {vr(vt)}, s3, {vr(vt)}
        v_mov_b32 {vr(vt + 1)}, 1
        s_mov_b64 exec, 0xff
        global_atomic_add {vr(vt)}, {vr(vt + 1)}, {P2(pWS)} sc1
        s_mov_b64 exec, -1
        ''')

    def poll_addr(self, base, nshard, va):
        k = self.k
        k(f'''
        s_and_b32 s3, s2, 7
        s_mul_i32 s3, s3, {128 * nshard}
        s_add_u32 s3, s3, {base}
        v_min_u32 {vr(va)}, {nshard - 1}, v0
        v_lshlrev_b32 {vr(va)}, 7, {vr(va)}
        v_add_u32 {vr(va)}, s3, {vr(va)}
        ''')

    def poll_issue(self, va, vd, nl, off=0):
        k = self.k
        if nl and self.o.get('apoll', 1):
            k(f'''
            v_mov_b32 {vr(vd)}, 0
            s_mov_b64 exec, {hex((1 << nl) - 1)}
            global_atomic_add {vr(vd)}, {vr(va)}, {vr(vd)}, {P2(pWS)} offset:{off} sc0 sc1
            s_mov_b64 exec, -1
            ''')
        else:
            k(f'global_load_dword {vr(vd)}, {vr(va)}, {P2(pWS)} offset:{off} sc1')

    def poll(self, va, vd, count, preissued=False, off=0, nl=0, sleep=None):
        k = self.k
        L, D = k.label('poll'), k.label('polld')
        ap = nl and self.o.get('apoll', 1)

        def check():
            k(f'v_cmp_gt_u32 vcc, {count}, {vr(vd)}')
            if ap:
                k(f's_and_b32 vcc_lo, vcc_lo, {hex((1 << nl) - 1)}\ns_cbranch_scc0 {D}')
            else:
                k(f's_cbranch_vccz {D}')
        if not preissued:
            self.poll_issue(va, vd, nl, off)
        check()
        k(f'{L}:')
        k(f's_sleep {self.o.get("sleep", 2) if sleep is None else sleep}')
        self.poll_issue(va, vd, nl, off)
        check()
        k(f'''
        s_add_u32 {sr(sSPIN)}, {sr(sSPIN)}, 1
        s_cmp_lt_u32 {sr(sSPIN)}, {SPIN_MAX}
        s_cbranch_scc1 {L}
        {D}:
        ''')

    def srd(self, r, ptr, size):
        self.k(f'''
        s_mov_b32 {sr(r)}, {sr(ptr)}
        s_and_b32 {sr(r + 1)}, {sr(ptr + 1)}, 0xffff
        s_mov_b32 {sr(r + 2)}, {size}
        s_mov_b32 {sr(r + 3)}, 0x20000
        ''')

    def only_wave(self, w):
        L = self.k.label('ow')
        self.k(f's_cmp_lg_u32 {sr(sW)}, {w}\ns_cbranch_scc1 {L}')
        return L

    def prologue(self):
        k = self.k
        k(f'''
        s_cmp_ge_u32 s2, 256
        s_cbranch_scc1 L_end
        s_load_dwordx16 s[4:19], s[0:1], 0
        s_load_dwordx16 s[20:35], s[0:1], 64
        s_getpc_b64 {P2(sPC)}
        L_pc:
        v_lshrrev_b32 v1, 6, v0
        v_and_b32 v0, 63, v0
        v_readfirstlane_b32 {sr(sW)}, v1
        s_mov_b32 {sr(sSPIN)}, 0
        ''')
        if self.o.get('diag_T'):
            k('s_memrealtime s[94:95]')
        if self.o.get('diag_alu'):
            k(f's_mov_b32 s3, {self.o["diag_alu"]}\nL_da:')
            for _ in range(100):
                k('v_add_u32 v1, v1, v1')
            k('s_sub_u32 s3, s3, 1\ns_cmp_lg_u32 s3, 0\ns_cbranch_scc1 L_da')
        if self.o['stamps']:
            k('v_mov_b32 v87, 0')
        def code_pf():
            L = k.label('pf')
            mode = self.o.get('cpf', 0)
            if mode == 9:
                return
            if mode in (0, 1):
                k(f'''
                s_lshr_b32 s3, s2, 3
                s_and_b32 s3, s3, 7
                s_cmp_eq_u32 {sr(sW)}, 0
                s_cselect_b32 s56, 0, s3
                ''')
            else:
                k(f's_lshr_b32 s3, s2, 3\ns_and_b32 s56, s3, 7')
            k(f'''
            s_cmp_eq_u32 {sr(sW)}, s56
            s_cbranch_scc0 {L}
            s_lshl_b32 s3, {sr(sW)}, 13
            v_lshlrev_b32 v82, 7, v0
            v_add_u32 v82, s3, v82
            v_min_u32 v82, L_end-L_pc, v82
            global_load_dword v83, v82, {P2(sPC)}
            {L}:
            ''')
        if self.o.get('cpf', 0) in (0, 2):
            code_pf()
        k(f'''
        s_lshl_b32 s3, s2, 3
        s_add_u32 s3, s3, {sr(sW)}
        s_mul_i32 s3, s3, 1280
        v_lshl_add_u32 v2, v0, 4, s3
        v_lshl_add_u32 v3, v0, 2, s3
        s_sub_u32 {sr(sI)}, s2, 40
        s_and_b32 {sr(sMB)}, s2, 7
        s_lshr_b32 {sr(sQ)}, {sr(sI)}, 3
        s_mul_i32 s3, {sr(sMB)}, 27
        s_add_u32 s3, s3, {sr(sQ)}
        s_lshr_b32 {sr(sNB)}, s3, 3
        s_and_b32 {sr(sM1)}, s3, 7
        s_mul_i32 s3, s3, 3
        s_min_u32 {sr(sD0)}, s3, 637
        s_min_u32 s55, {sr(sW)}, 5
        s_lshl_b32 s56, {sr(sD0)}, 1
        s_add_u32 s56, s56, s55
        s_lshl_b32 s56, s56, 7
        v_lshl_add_u32 v18, v0, 1, s56
        s_lshr_b32 s55, s55, 1
        s_add_u32 s55, s55, {sr(sD0)}
        s_lshl_b32 s55, s55, 1
        v_mov_b32 v19, s55
        v_min_u32 v17, 2, v0
        v_add_u32 v17, {sr(sD0)}, v17
        v_lshlrev_b32 v17, 1, v17
        ''')
        if self.o.get('wsoff'):
            k(f's_add_u32 s{pWS}, s{pWS}, {self.o["wsoff"] << 20}\ns_addc_u32 s{pWS + 1}, s{pWS + 1}, 0')
        self.stamp('start')
        if self.o.get('chase'):
            ptr, stride = self.o.get('chase_ptr', 18), self.o.get('chase_stride', 256 * 512)
            k(f's_lshl_b32 s55, s2, 9\nv_mov_b32 v10, s55')
            for i in range(self.o['chase']):
                k(f'''
                global_load_dword v11, v10, {P2(ptr)}
                v_and_b32 v11, 0, v11
                v_add_u32 v10, {stride}, v10
                v_add_u32 v10, v11, v10
                ''')
            self.stamp('chase')
        k(f'''
        global_load_dwordx4 v[92:95], v2, {P2(pX)} {self.o['nt']}
        global_load_dword v91, v3, {P2(pX)} offset:1024 {self.o['nt']}
        s_load_dword {sr(sTAG)}, {P2(pWS)}, {GEN}
        ''')
        if self.o.get('cpf', 0) in (1, 3):
            code_pf()
        L, Lh = k.label('nokl'), k.label('hc')
        k(f'''
        s_lshl_b32 s68, s2, 1
        s_and_b32 s55, {sr(sW)}, 1
        s_add_u32 s68, s68, s55
        s_min_u32 s68, s68, 479
        s_and_b32 s55, s68, 7
        s_mul_i32 s55, s55, 80
        v_lshrrev_b32 v20, 3, v0
        v_mul_u32_u24 v20, 10, v20
        v_add_u32 v20, s55, v20
        s_cmp_lt_u32 {sr(sW)}, 6
        s_cbranch_scc1 {Lh}
        v_lshlrev_b32 v21, 1, v20
        global_load_dwordx4 v[160:163], v21, {P2(pC)}
        global_load_dword v164, v21, {P2(pC)} offset:16
        v_mul_u32_u24 v20, 7680, v20
        v_and_b32 v21, 7, v0
        v_lshl_add_u32 v20, v21, 4, v20
        s_lshr_b32 s55, s68, 3
        s_lshl_b32 s55, s55, 7
        v_add_u32 v20, s55, v20
        s_branch {L}
        {Lh}:
        s_cmp_lt_u32 s2, 40
        s_cbranch_scc1 {L}
        global_load_ushort v20, v18, {P2(pLA)} {self.o['nt']}
        global_load_ushort v24, v19, {P2(pDT)}
        global_load_ushort v21, v18, {P2(pAI)} {self.o['nt']}
        global_load_ushort v22, v18, {P2(pCR)} {self.o['nt']}
        global_load_ushort v23, v18, {P2(pCI)} {self.o['nt']}
        global_load_ushort v25, v17, {P2(pDS)}
        {L}:
        ''')
        self.srd(rWS, pWS, 0x2000000)
        self.srd(rA, pWG, 640 * 1728 * 2)
        self.srd(rB, pWU, 640 * 1728 * 2)

    def early_addresses(self, part=None):
        if part is not None:
            keep, self.k = self.k, Kern()
            self.early_addresses()
            ins, self.k = self.k.ins, keep
            cuts = [n for n, x in enumerate(ins) if x.text.startswith('.cut')]
            a, b = cuts
            self.k.ins += (ins[:a] + ins[b + 1:]) if part == 0 else ins[a + 1:b]
            return
        k = self.k
        k(f'''
        v_lshrrev_b32 v16, 3, v0
        v_mul_u32_u24 v17, 3456, v16
        v_bfe_u32 v16, v0, 4, 1
        v_bfe_u32 v26, v0, 1, 2
        v_xor_b32 v26, v26, v16
        v_and_b32 v16, 1, v0
        v_lshl_add_u32 v17, v16, 4, v17
        s_lshl_b32 s55, {sr(sNB)}, 7
        v_add_u32 v17, s55, v17
        v_lshl_add_u32 v26, v26, 5, v17
        v_xor_b32 v27, 64, v26
        s_mul_i32 {sr(sWR)}, {sr(sM1)}, 5
        s_mov_b32 {sr(sWO)}, 0
        ''')
        if self.o.get('esplit'):
            k('.cut')
        k(f's_lshl_b32 s55, {sr(sW)}, 6\nv_add_u32 v89, s55, v0')
        k(f'''
        s_lshl_b32 s55, {sr(sW)}, 1
        s_lshr_b32 s56, 0xffa4, s55
        s_and_b32 s56, s56, 3
        s_lshl_b32 s57, s56, 3
        v_lshlrev_b32 v10, 2, v89
        ''')
        for j in range(4):
            k(f'''
            v_add_u32 v11, {j}, v10
            v_cvt_f32_u32 v11, v11
            v_cvt_pk_bf16_f32 v11, v11, v11
            v_lshlrev_b32 v11, 16, v11
            v_cvt_u32_f32 v11, v11
            v_lshrrev_b32 v12, 7, v11
            v_and_b32 v13, 7, v11
            v_lshl_add_u32 v12, v12, 3, v13
            v_lshrrev_b32 v12, s56, v12
            v_add_u32 v12, s57, v12
            v_mul_u32_u24 v12, 20, v12
            v_bfe_u32 v11, v11, 3, 4
            v_add_lshl_u32 v11, v12, v11, 2
            v_add_u32 {vr(GA + j)}, {KC}, v11
            ''')
        k(f'''
        v_lshlrev_b32 v208, 1, v10
        v_lshlrev_b32 v209, 2, v10
        ''')
        for i in range(2):
            k(f'''
            v_add_u32 v11, {512 * i}, v89
            v_mul_u32_u24 v12, 0x5556, v11
            v_lshrrev_b32 v12, 16, v12
            v_mul_u32_u24 v13, 3, v12
            v_sub_u32 v11, v11, v13
            v_add_u32 v11, {sr(sD0)}, v11
            v_mul_u32_u24 v12, {XNS}, v12
            v_lshl_add_u32 {vr(210 + i)}, v11, 4, v12
            ''')
        k('v_lshlrev_b32 v212, 4, v89')
        self.wread_addr(213)
        k(f'''
        v_lshrrev_b32 v11, 2, v0
        v_min_u32 v11, 11, v11
        v_mul_u32_u24 v12, 0x5556, v11
        v_lshrrev_b32 v12, 16, v12
        v_mul_u32_u24 v13, 3, v12
        v_sub_u32 v11, v11, v13
        v_cmp_eq_u32 vcc, 3, v12
        v_addc_co_u32 v12, vcc, 0, v12, vcc
        v_mul_u32_u24 v12, 640, v12
        v_add3_u32 v11, v11, v12, {sr(sD0)}
        v_lshrrev_b32 v12, 6, v11
        v_and_b32 v11, 63, v11
        v_lshlrev_b32 v11, 2, v11
        v_lshl_add_u32 v11, v12, 11, v11
        v_and_b32 v12, 3, v0
        v_lshl_add_u32 v11, v12, 8, v11
        v_add_u32 v88, {MODP}, v11
        v_min_u32 v89, 319, v89
        v_lshlrev_b32 v90, 3, v89
        v_add_u32 v90, {MOD + 3 * 2560}, v90
        ''')
        k(f'''
        v_lshrrev_b32 v8, 4, v0
        v_bfe_u32 v9, v0, 2, 2
        v_and_b32 v10, 3, v0
        v_lshlrev_b32 v11, 1, v10
        v_lshl_add_u32 v11, v8, 2, v11
        v_lshrrev_b32 v12, 1, v9
        v_add_u32 v11, v11, v12
        v_mul_u32_u24 v11, 48, v11
        v_and_b32 v12, 1, v9
        v_lshl_add_u32 v11, v12, 3, v11
        v_add_u32 v1, {XNL0 - 14 * 48}, v11
        v_sub_u32 v11, v10, v9
        v_lshlrev_b32 v12, 3, v8
        v_sub_u32 v11, v11, v12
        v_lshlrev_b32 v11, 3, v11
        v_add_u32 v2, {KA + 32 + 2 * (112 - 16)}, v11
        v_lshlrev_b32 v11, 3, v9
        v_lshl_add_u32 v11, v8, 1, v11
        v_lshrrev_b32 v12, 1, v10
        v_add_u32 v11, v11, v12
        v_mul_u32_u24 v11, 48, v11
        v_and_b32 v12, 1, v10
        v_lshl_add_u32 v11, v12, 3, v11
        v_add_u32 v5, {XNL0}, v11
        ''')
        if self.o.get('esplit'):
            k('.cut')
            k('v_lshrrev_b32 v8, 4, v0\nv_bfe_u32 v9, v0, 2, 2\nv_and_b32 v10, 3, v0')
        k(f'''
        s_mul_i32 s56, {sr(sW)}, {TRR}
        s_add_u32 s56, s56, {TR}
        v_lshl_add_u32 v6, v0, 4, s56
        v_lshl_add_u32 v7, v0, 2, s56
        v_mul_u32_u24 v4, {TRR}, v9
        v_lshl_add_u32 v4, v8, 5, v4
        v_lshl_add_u32 v4, v10, 3, v4
        s_and_b32 s55, {sr(sW)}, 1
        s_mul_i32 s56, s55, 640
        s_add_u32 s56, s56, {TR}
        v_add_u32 v4, s56, v4
        s_mul_i32 s57, s2, {XNS}
        s_mul_i32 s56, s55, 5120
        s_add_u32 s57, s57, s56
        v_lshl_add_u32 v3, v0, 4, s57
        s_add_u32 {sr(sTAG)}, {sr(sTAG)}, 0x9e3779b9
        ''')
        k(f'''
        s_and_b32 s55, s2, 7
        s_lshl_b32 s55, s55, 12
        v_lshrrev_b32 v11, 1, v0
        v_lshlrev_b32 v11, 7, v11
        v_and_b32 v12, 1, v0
        v_lshl_add_u32 v11, v12, 5, v11
        v_add_u32 v215, s55, v11
        ''')

    def poll_sync1_issue(self, va, vd):
        self.k(f'''
        global_load_dwordx4 {vr(vd, 4)}, {vr(va)}, {P2(pWS)} offset:{SYNC1} sc1
        global_load_dwordx4 {vr(vd + 4, 4)}, {vr(va)}, {P2(pWS)} offset:{SYNC1 + 16} sc1
        ''')

    def poll_sync1(self, va, vd, preissued=False):
        k = self.k
        L, D = k.label('p1'), k.label('p1d')
        if preissued:
            self.sync1_check(vd, D)
        k(f'{L}:')
        self.poll_sync1_issue(va, vd)
        self.sync1_check(vd, D)
        k(f'''
        s_sleep {self.o.get('sleep', 2)}
        s_add_u32 {sr(sSPIN)}, {sr(sSPIN)}, 1
        s_cmp_lt_u32 {sr(sSPIN)}, {SPIN_MAX}
        s_cbranch_scc1 {L}
        {D}:
        ''')

    def sync1_check(self, vd, D):
        k = self.k
        k(f'''
        v_min3_u32 {vr(vd + 8)}, {vr(vd)}, {vr(vd + 1)}, {vr(vd + 2)}
        v_max3_u32 {vr(vd + 9)}, {vr(vd)}, {vr(vd + 1)}, {vr(vd + 2)}
        v_min3_u32 {vr(vd + 8)}, {vr(vd + 8)}, {vr(vd + 3)}, {vr(vd + 4)}
        v_max3_u32 {vr(vd + 9)}, {vr(vd + 9)}, {vr(vd + 3)}, {vr(vd + 4)}
        v_min3_u32 {vr(vd + 8)}, {vr(vd + 8)}, {vr(vd + 5)}, {vr(vd + 6)}
        v_max3_u32 {vr(vd + 9)}, {vr(vd + 9)}, {vr(vd + 5)}, {vr(vd + 6)}
        v_min_u32 {vr(vd + 8)}, {vr(vd + 8)}, {vr(vd + 7)}
        v_max_u32 {vr(vd + 9)}, {vr(vd + 9)}, {vr(vd + 7)}
        v_xor_b32 {vr(vd + 8)}, {sr(sTAG)}, {vr(vd + 8)}
        v_xor_b32 {vr(vd + 9)}, {sr(sTAG)}, {vr(vd + 9)}
        v_or_b32 {vr(vd + 8)}, {vr(vd + 8)}, {vr(vd + 9)}
        v_cmp_ne_u32 vcc, 0, {vr(vd + 8)}
        s_cbranch_vccz {D}
        ''')

    def touch(self, ptr, size, sbyte, stride=128, lanes=64):
        k = self.k
        k(f'''
        v_mul_u32_u24 v84, {stride}, v0
        v_add_u32 v84, {sbyte}, v84
        v_min_u32 v84, {size - 4}, v84
        ''')
        if lanes < 64:
            k(f's_mov_b32 exec_lo, {hex((1 << min(lanes, 32)) - 1)}\ns_mov_b32 exec_hi, {hex((1 << max(lanes - 32, 0)) - 1)}')
        k(f'global_load_dword v83, v84, {P2(ptr)} {self.o.get("wpol", "")}')
        if lanes < 64:
            k('s_mov_b64 exec, -1')

    def stage_a(self):
        k = self.k
        L, L5 = k.label('nsa'), k.label('sa5')
        k(f'''
        s_cmp_lt_u32 s2, 40
        s_cbranch_scc1 {L}
        s_cmp_ge_u32 {sr(sW)}, 6
        s_cbranch_scc1 {L}
        s_cmp_eq_u32 {sr(sW)}, 5
        s_cbranch_scc1 {L5}
        s_mov_b32 {sr(sWI)}, {sr(sW)}
        ''')
        self.wunits(1, 5, 1, pol=self.o.get('wpol', ''))
        k(f's_branch {L}\n{L5}:')
        if self.o.get('pf1', 2) == 2:
            k(f'''
            s_mul_i32 s55, {sr(sWR)}, {8 * 3456}
            s_lshl_b32 s58, {sr(sNB)}, 7
            s_add_u32 s55, s55, s58
            s_add_u32 s55, s55, {320 * 3456}
            ''')
            self.touch(pWG, 640 * 1728 * 2, 's55', stride=3456, lanes=40)
            self.touch(pWU, 640 * 1728 * 2, 's55', stride=3456, lanes=40)
        if self.o.get('tm', 0):
            k(f's_mul_i32 s55, {sr(sI)}, {178 * 128}')
            for i in range(3):
                self.touch(pWM, 640 * 3840 * 2, 's55')
                if i < 2:
                    k('s_add_u32 s55, s55, 8192')
        k(f'{L}:')

    def stage_b_touch(self):
        k = self.k
        if not self.o.get('tb', 0):
            return
        L = [k.label('tb') for _ in range(5)]
        k(f's_cmp_lt_u32 {sr(sW)}, 2\ns_cbranch_scc0 {L[0]}')
        k(f's_mul_i32 s55, {sr(sI)}, {80 * 128}\ns_mul_i32 s56, {sr(sW)}, {40 * 128}\ns_add_u32 s55, s55, s56')
        self.touch(pWD, 1728 * 640 * 2, 's55', lanes=40)
        k(f's_branch {L[2]}\n{L[0]}:')
        k(f'''
        s_mul_i32 s55, {sr(sWR)}, {8 * 3456}
        s_lshl_b32 s56, {sr(sNB)}, 7
        s_add_u32 s55, s55, s56
        s_add_u32 s55, s55, {320 * 3456}
        s_cmp_eq_u32 {sr(sW)}, 2
        s_cbranch_scc0 {L[1]}
        ''')
        self.touch(pWG, 640 * 1728 * 2, 's55', stride=3456, lanes=40)
        k(f's_branch {L[2]}\n{L[1]}:\ns_cmp_eq_u32 {sr(sW)}, 3\ns_cbranch_scc0 {L[2]}')
        self.touch(pWU, 640 * 1728 * 2, 's55', stride=3456, lanes=40)
        k(f'{L[2]}:')

    def ln1(self):
        k = self.k
        X = [92, 93, 94, 95, 91]
        k('v_mov_b32 v10, v91')
        self.stamp('xld')
        if self.o.get('sa_pos', 0) == 0:
            self.stage_a()
        k(f'''
        s_mov_b32 s55, 0x3f803f80
        v_mov_b32 v10, 0
        v_mov_b32 v11, 0
        ''')
        for j in range(5):
            k(f'v_dot2_f32_bf16 v10, v{X[j]}, s55, v10')
            k(f'v_dot2_f32_bf16 v11, v{X[j]}, v{X[j]}, v11')
        k(f'''
        v_permlane32_swap_b32 v10, v11
        v_add_f32 v10, v10, v11
        ''')
        for n in (8, 4, 2, 1):
            k(f'v_add_f32_dpp v10, v10, v10 row_ror:{n} row_mask:0xf bank_mask:0xf')
        k(f'''
        v_add_f32_dpp v10, v10, v10 row_bcast:15 row_mask:0xa bank_mask:0xf
        v_mov_b32 v13, {f32(1.0 / 640)}
        v_readlane_b32 s55, v10, 31
        v_readlane_b32 s56, v10, 63
        s_lshl_b32 s57, {sr(sW)}, 2
        v_mov_b32 v14, s57
        v_mul_f32 v10, s55, v13
        v_mul_f32 v11, s56, v13
        v_fma_f32 v11, -v10, v10, v11
        v_max_f32 v11, 0, v11
        v_cvt_pk_bf16_f32 v10, v10, v11
        v_and_b32 v11, 0xffff0000, v10
        v_lshlrev_b32 v10, 16, v10
        v_add_f32 v11, {f32(1e-5)}, v11
        v_cvt_pk_bf16_f32 v11, v11, v11
        v_lshlrev_b32 v11, 16, v11
        v_sqrt_f32 v11, v11
        v_lshlrev_b32 v15, 16, v92
        v_cvt_pk_bf16_f32 v13, v10, v11
        v_and_b32 v11, 0xffff0000, v13
        v_rcp_f32 v11, v11
        ''')
        k(f'ds_write_b32 v14, v13 offset:{TR + TRM}', tag='trw')
        k('v_mul_f32 v10, -v10, v11')
        for j in range(5):
            k(f'''
            v_lshlrev_b32 v13, 16, v{X[j]}
            v_and_b32 v14, 0xffff0000, v{X[j]}
            v_fma_f32 v13, v13, v11, v10
            v_fma_f32 v14, v14, v11, v10
            v_cvt_pk_bf16_f32 v{X[j]}, v13, v14
            ''')
            if j == 3:
                k('ds_write_b128 v6, v[92:95]', tag='trw')
        k('ds_write_b32 v7, v91 offset:1024', tag='trw')
        k.wait('trw')
        k('s_barrier')
        self.stamp('trb')
        if self.o.get('sa_pos', 0) == 1:
            self.stage_a()
        Ls = k.label('nost')
        k(f'''
        s_cmp_lt_u32 {sr(sW)}, 6
        s_cbranch_scc1 {Ls}
        ''')
        for i in range(5):
            k(f'ds_read_b64_tr_b16 v[{28 + 4 * i}:{29 + 4 * i}], v4 offset:{128 * i}')
            k(f'ds_read_b64_tr_b16 v[{30 + 4 * i}:{31 + 4 * i}], v4 offset:{128 * i + 4 * TRR}')
        k(f'''
        v_lshlrev_b32 v72, 4, v0
        ds_read_b128 v[68:71], v72 offset:{TR + TRM}
        s_mov_b32 s58, {XN}
        s_mov_b32 s59, {XN + 4096}
        ''')
        for i in range(5):
            k(f'buffer_store_dwordx4 v[{28 + 4 * i}:{31 + 4 * i}], v3, {P4(rWS)}, s{58 + i // 4} offen offset:{1024 * (i % 4)} sc1', tag='xnst')
        L6, L7, L8 = k.label('w6'), k.label('w7'), k.label('w8')
        k(f'''
        s_cmp_eq_u32 {sr(sW)}, 6
        s_cbranch_scc1 {L6}
        v_mov_b32 v68, 0
        v_mov_b32 v69, 0
        v_mov_b32 v70, 0
        v_mov_b32 v71, 0
        s_cmp_ge_u32 s2, 30
        s_cbranch_scc1 {L8}
        s_add_u32 s56, s2, 30
        s_lshl_b32 s56, s56, 8
        s_add_u32 s56, s56, {MOD}
        s_mov_b64 exec, 0xffff
        buffer_store_dwordx4 v[68:71], v72, {P4(rWS)}, s56 offen sc1
        {L8}:
        s_mul_i32 s56, s2, 352
        s_add_u32 s56, s56, {ZBEG}
        s_mov_b64 exec, 0x3fffff
        s_branch {L7}
        {L6}:
        s_lshl_b32 s56, s2, 5
        s_add_u32 s56, s56, {MS}
        s_mov_b64 exec, 3
        {L7}:
        ''')
        k(f'buffer_store_dwordx4 v[68:71], v72, {P4(rWS)}, s56 offen sc1', tag='xnst')
        k(f'''
        s_cmp_lt_u32 s2, 240
        s_cselect_b64 exec, 0xffff, 0
        v_mov_b32 v74, 0
        v_mov_b32 v75, 0
        v_mov_b32 v76, 0
        v_mov_b32 v77, 0
        s_lshl_b32 s56, s68, 8
        s_add_u32 s69, s56, {MODP}
        ''')
        k(f'buffer_store_dwordx4 v[74:77], v72, {P4(rWS)}, s69 offen sc1', tag='xnst')
        k(f'''
        s_mov_b64 exec, -1
        v_mov_b32 v74, 0
        v_mov_b32 v75, 0
        v_mov_b32 v76, 0
        v_mov_b32 v77, 0
        s_lshl_b32 s56, {sr(sNB)}, 3
        s_add_u32 s56, s56, {sr(sM1)}
        s_lshl_b32 s56, s56, 10
        s_and_b32 s57, {sr(sW)}, 1
        s_lshl_b32 s57, s57, 9
        s_add_u32 s56, s56, s57
        s_add_u32 s56, s56, {CSP}
        s_cmp_ge_u32 s2, 40
        s_cselect_b32 exec_lo, -1, 0
        s_mov_b32 exec_hi, 0
        ''')
        k(f'buffer_store_dwordx4 v[74:77], v72, {P4(rWS)}, s56 offen sc1', tag='xnst')
        k('s_mov_b64 exec, -1')

        def mod_loads():
            k('s_cmp_lt_u32 s2, 240\ns_cselect_b64 exec, -1, 0')
            for i in range(10):
                k(f'global_load_dwordx4 {vr(216 + 4 * i, 4)}, v20, {P2(pWM)} {self.o["nt"]}')
                if i < 9:
                    k('v_add_u32 v20, 7680, v20')
            k('s_mov_b64 exec, -1')
        if self.o.get('mod_pre', 1):
            mod_loads()
        self.silu10()
        if self.o.get('esplit'):
            self.early_addresses(1)
        k(f'''
        s_mov_b64 exec, -1
        s_lshr_b32 s56, s2, 3
        s_lshl_b32 s56, s56, 7
        s_and_b32 s57, s2, 7
        s_lshl_b32 s57, s57, 3
        s_add_u32 s56, s56, s57
        s_and_b32 s57, {sr(sW)}, 1
        s_lshl_b32 s57, s57, 2
        s_add_u32 s56, s56, s57
        v_lshl_add_u32 v16, v0, 12, s56
        v_mov_b32 v17, {sr(sTAG)}
        s_mov_b64 exec, 0xff
        ''')
        k.wait('xnst')
        k(f'''
        global_store_dword v16, v17, {P2(pWS)} offset:{SYNC1} sc1
        s_mov_b64 exec, -1
        ''')
        self.stamp('A')
        Lm = k.label('nwb')
        nb_ = self.o.get('wb', 0)

        if self.o.get('mod_first', 0) and not self.o.get('mod_pre', 1):
            mod_loads()
        if nb_:
            k(f'''
            s_cmp_lt_u32 s2, 40
            s_cbranch_scc1 {Lm}
            s_sub_u32 {sr(sWI)}, {sr(sW)}, 1
            ''')
            self.wunits(nb_, 5 + 2 * nb_, 2, check=False)
            k(f'{Lm}:')
        if not self.o.get('mod_first', 0) and not self.o.get('mod_pre', 1):
            mod_loads()
        k(f'{Ls}:')

    def silu10(self):
        k = self.k
        CV = 140
        for i in range(10):
            k(f'v_lshlrev_b32 {vr(CV + i)}, 16, {vr(160 + i // 2)}' if i % 2 == 0 else f'v_and_b32 {vr(CV + i)}, 0xffff0000, {vr(160 + i // 2)}')
            k(f'v_mul_f32 {vr(150 + i)}, {f32(-LOG2E)}, {vr(CV + i)}')
        for op in ('v_exp_f32 {t}, {t}', 'v_add_f32 {t}, 1.0, {t}', 'v_rcp_f32 {t}, {t}', 'v_mul_f32 {c}, {c}, {t}',
                   'v_cvt_pk_bf16_f32 {c}, {c}, {c}', 'v_lshlrev_b32 {c}, 16, {c}'):
            for i in range(10):
                k(op.format(t=vr(150 + i), c=vr(CV + i)))

    def mod_partial(self):
        k = self.k
        LD, CV, V = 216, 140, 68
        L = k.label('nomp')
        k(f's_cmp_lt_u32 {sr(sW)}, 6\ns_cbranch_scc1 {L}\ns_cmp_ge_u32 s2, 240\ns_cbranch_scc1 {L}')
        for i in range(10):
            for j in range(4):
                r = LD + 4 * i + j
                a, b = 76 + 2 * (j % 2), 77 + 2 * (j % 2)
                k(f'v_lshlrev_b32 v{a}, 16, {vr(r)}\nv_and_b32 v{b}, 0xffff0000, {vr(r)}')
                if i == 0:
                    k(f'v_mul_f32 {vr(V + 2 * j)}, v{a}, {vr(CV)}\nv_mul_f32 {vr(V + 2 * j + 1)}, v{b}, {vr(CV)}')
                else:
                    k(f'v_fmac_f32 {vr(V + 2 * j)}, v{a}, {vr(CV + i)}\nv_fmac_f32 {vr(V + 2 * j + 1)}, v{b}, {vr(CV + i)}')
        for i in range(4):
            k(f'v_permlane32_swap_b32 {vr(V + i)}, {vr(V + 4 + i)}')
        for i in range(4):
            k(f'v_add_f32 {vr(V + i)}, {vr(V + i)}, {vr(V + 4 + i)}')
        for i in range(2):
            k(f'v_permlane16_swap_b32 {vr(V + i)}, {vr(V + 2 + i)}')
        for i in range(2):
            k(f'v_add_f32 {vr(V + i)}, {vr(V + i)}, {vr(V + 2 + i)}')
        k(f'''
        v_lshrrev_b32 v76, 4, v0
        v_and_b32 v77, 7, v0
        v_lshlrev_b32 v76, 3, v76
        v_lshl_add_u32 v76, v77, 5, v76
        ''')
        for i in range(2):
            k(f'v_add_f32_dpp {vr(V + i)}, {vr(V + i)}, {vr(V + i)} row_ror:8 row_mask:0xf bank_mask:0xf')
        k(f'''
        v_or_b32 {vr(V)}, 1, {vr(V)}
        v_or_b32 {vr(V + 1)}, 1, {vr(V + 1)}
        s_mov_b32 exec_lo, 0x00ff00ff
        s_mov_b32 exec_hi, 0x00ff00ff
        buffer_store_dwordx2 {vr(V, 2)}, v76, {P4(rWS)}, s69 offen sc1
        s_mov_b64 exec, -1
        ''')
        self.stamp('modp')
        k(f'{L}:')

    def wunits(self, n, end, step, check=True, pol=''):
        k = self.k
        L = k.label('wsd')
        for i in range(n):
            if check:
                k(f's_cmp_ge_u32 {sr(sWI)}, {end}\ns_cbranch_scc1 {L}')
            k(f'''
            s_add_u32 s55, {sr(sWI)}, {sr(sWR)}
            s_sub_u32 s56, s55, 40
            s_cselect_b32 s55, s55, s56
            s_lshl_b32 s56, s55, 11
            s_add_u32 m0, s56, {STG}
            s_mul_i32 s55, s55, {8 * 3456}
            s_add_u32 s55, s55, {sr(sWO)}
            s_add_u32 {sr(sWI)}, {sr(sWI)}, {step}
            ''')
            k(f'buffer_load_dwordx4 v26, {P4(rA)}, s55 offen {pol} lds', tag='wst')
            k(f's_add_u32 m0, s56, {STG + 1024}')
            k(f'buffer_load_dwordx4 v27, {P4(rB)}, s55 offen {pol} lds', tag='wst')
        k(f'{L}:')

    def wread_addr(self, va):
        self.k(f'''
        v_bfe_u32 {vr(va + 1)}, v0, 3, 2
        s_and_b32 s55, {sr(sW)}, 3
        v_xor_b32 {vr(va + 1)}, s55, {vr(va + 1)}
        v_lshrrev_b32 {vr(va)}, 4, v0
        v_lshlrev_b32 {vr(va)}, 10, {vr(va)}
        v_lshl_add_u32 {vr(va)}, {vr(va + 1)}, 5, {vr(va)}
        v_bfe_u32 {vr(va + 1)}, v0, 2, 2
        v_lshl_add_u32 {vr(va)}, {vr(va + 1)}, 7, {vr(va)}
        v_and_b32 {vr(va + 1)}, 3, v0
        v_lshl_add_u32 {vr(va)}, {vr(va + 1)}, 3, {vr(va)}
        v_add_u32 {vr(va)}, {STG}, {vr(va)}
        v_add_u32 {vr(va + 1)}, {10 * 4096}, {vr(va)}
        ''')

    def wstage_read(self, rnd, va):
        k = self.k
        for s in range(20):
            r = WF + 4 * (20 * rnd + s)
            a = va if s < 10 else va + 1
            off = (s % 10) * 4096
            k(f'ds_read_b64_tr_b16 {vr(r, 2)}, {vr(a)} offset:{off}', tag='wrd')
            k(f'ds_read_b64_tr_b16 {vr(r + 2, 2)}, {vr(a)} offset:{off + 512}', tag='wrd')

    def cmul(self, d, a, b):
        self.k(f'v_pk_mul_f32 {vr(d, 2)}, {vr(a, 2)}, {vr(b, 2)} op_sel:[0,0] op_sel_hi:[0,1]')
        self.k(f'v_pk_fma_f32 {vr(d, 2)}, {vr(a, 2)}, {vr(b, 2)}, {vr(d, 2)} op_sel:[1,1,0] op_sel_hi:[1,0,1] neg_lo:[1,0,0]')

    def zpow(self, d, e, a2, fr, t):
        k = self.k
        k(f'''
        v_mul_f32 {vr(t)}, {f32(e)}, {vr(a2)}
        v_mul_f32 {vr(t + 1)}, {f32(e)}, {vr(fr)}
        v_exp_f32 {vr(t)}, {vr(t)}
        v_fract_f32 {vr(t + 1)}, {vr(t + 1)}
        v_cos_f32 {vr(d)}, {vr(t + 1)}
        v_sin_f32 {vr(d + 1)}, {vr(t + 1)}
        v_mul_f32 {vr(d)}, {vr(d)}, {vr(t)}
        v_mul_f32 {vr(d + 1)}, {vr(d + 1)}, {vr(t)}
        ''')

    def kgen(self):
        k = self.k
        Lskip = k.label('nokg')
        k(f's_cmp_ge_u32 {sr(sW)}, 6\ns_cbranch_scc1 {Lskip}')
        if self.o.get('esplit') == 1:
            self.early_addresses(1)
        A2, FR, T = 28, 29, 30
        Z = {e: 32 + 2 * e for e in range(1, 8)}
        Z8, Z128, QA, QB, PA, PB, PC = 48, 50, 52, 54, 56, 58, 60
        CV = 62
        QF, PF, AC = 64, 176, 192
        RA = 80
        k(f'''
        v_lshlrev_b32 v24, 16, v24
        v_lshlrev_b32 v20, 16, v20
        v_mul_f32 v24, {f32(LOG2E)}, v24
        v_mul_f32 v20, {f32(LOG2E)}, v20
        v_exp_f32 v24, v24
        v_exp_f32 v20, v20
        v_lshlrev_b32 v21, 16, v21
        v_cvt_pk_bf16_f32 v20, v20, v24
        v_and_b32 v24, 0xffff0000, v20
        v_lshlrev_b32 v20, 16, v20
        v_mul_f32 {vr(A2)}, v20, v24
        v_mul_f32 {vr(FR)}, v21, v24
        v_mul_f32 {vr(A2)}, {f32(-LOG2E)}, {vr(A2)}
        v_mul_f32 {vr(FR)}, 0.15915494, {vr(FR)}
        v_add_f32 v24, v24, v24
        v_lshlrev_b32 v22, 16, v22
        v_lshlrev_b32 v23, 16, v23
        v_mul_f32 {vr(QA)}, v22, v24
        v_mul_f32 {vr(QA + 1)}, v23, v24
        s_mul_i32 s60, {sr(sW)}, {KGS}
        s_mov_b32 m0, s60
        v_and_b32 {vr(RA)}, 15, v0
        v_mul_u32_u24 {vr(RA)}, 288, {vr(RA)}
        v_lshrrev_b32 {vr(RA + 1)}, 4, v0
        v_lshl_add_u32 {vr(RA)}, {vr(RA + 1)}, 4, {vr(RA)}
        v_add_u32 {vr(RA)}, s60, {vr(RA)}
        ''')
        self.zpow(Z8, 8.0, A2, FR, T)
        self.zpow(Z[1], 1.0, A2, FR, T)
        self.zpow(Z128, 128.0, A2, FR, T)
        flip = [0]

        def put(row, r, neg=False):
            c = CV + flip[0]
            flip[0] ^= 1
            k(f'v_cvt_pk_bf16_f32 {vr(c)}, {vr(r)}, {"-" if neg else ""}{vr(r + 1)}')
            k(f'ds_write_addtid_b32 {vr(c)} offset:{288 * row}')

        def frags(dst):
            for s in range(4):
                k(f'ds_read_b128 {vr(dst + 4 * s, 4)}, {vr(RA)} offset:{64 * s}')

        def mm(acc):
            for s in range(4):
                c = '0' if s == 0 else vr(acc, 4)
                k(f'v_mfma_f32_16x16x32_bf16 {vr(acc, 4)}, {vr(PF + 4 * s, 4)}, {vr(QF + 4 * s, 4)}, {c}')

        small = [(2, 1, 1), (3, 2, 1), (4, 2, 2), (5, 4, 1), (6, 4, 2), (7, 4, 3)]
        cur, nxt = QA, QB
        for b in range(16):
            if b < 15:
                self.cmul(nxt, cur, Z8)
            put(b, cur, neg=True)
            if b < len(small):
                e, x, y = small[b]
                self.cmul(Z[e], Z[x], Z[y])
            cur, nxt = nxt, cur
        frags(QF)
        self.stage_b_touch()
        k(f'v_mov_b32 {vr(CV)}, 0x3f80')
        k(f'ds_write_addtid_b32 {vr(CV)} offset:0')
        flip[0] = 1
        put(8, Z128)
        cur, nxt = PA, PB
        for e in range(1, 8):
            self.cmul(cur, Z[e], Z128)
            put(e, Z[e])
            put(8 + e, cur)
            cur, nxt = nxt, cur
        frags(PF)
        self.cmul(QA, Z128, Z128)
        self.cmul(QB, QA, Z128)
        mm(AC)
        put(0, QA)
        put(4, QB)
        for e in (1, 2, 3):
            self.cmul(PA, QA, Z[2 * e])
            self.cmul(PB, QB, Z[2 * e])
            put(e, PA)
            put(4 + e, PB)
        cur, nxt = QB, QA
        for a in range(4):
            self.cmul(nxt, cur, Z128)
            self.cmul(PA, nxt, Z[4])
            put(8 + 2 * a, nxt)
            put(9 + 2 * a, PA)
            cur, nxt = nxt, cur
        frags(PF)
        self.cmul(nxt, cur, Z128)
        cur, nxt = nxt, cur
        mm(AC + 4)
        for a in range(9):
            if a < 8:
                self.cmul(nxt, cur, Z128)
            put(a, cur)
            cur, nxt = nxt, cur
        frags(PF)
        k(f'''
        v_lshrrev_b32 {vr(RA + 1)}, 4, v0
        v_mul_u32_u24 {vr(RA + 1)}, 320, {vr(RA + 1)}
        v_and_b32 {vr(RA + 2)}, 15, v0
        v_lshl_add_u32 {vr(RA + 1)}, {vr(RA + 2)}, 2, {vr(RA + 1)}
        s_mul_i32 s55, {sr(sW)}, {KCS}
        s_add_u32 s55, s55, {KC}
        v_add_u32 {vr(RA + 1)}, s55, {vr(RA + 1)}
        ''')
        for Tt in range(2):
            for i in range(4):
                k(f'ds_write_b32 {vr(RA + 1)}, {vr(AC + 4 * Tt + i)} offset:{(16 * Tt + i) * 80}', tag='kcw')
        mm(AC + 8)
        for i in range(4):
            k(f'ds_write_b32 {vr(RA + 1)}, {vr(AC + 8 + i)} offset:{(32 + i) * 80}', tag='kcw')
        if self.o.get('esplit') == 2:
            self.early_addresses(1)
        wk = self.o.get('wk', 5)
        if wk:
            k(f's_cmp_ge_u32 {sr(sW)}, 4\ns_cbranch_scc1 {Lskip}')
            k(f's_add_u32 {sr(sWI)}, {sr(sW)}, {5 + 2 * self.o.get("wb", 0)}')
            self.wunits(wk, min(40, 5 + 2 * self.o.get('wb', 0) + 4 * wk), 4)
        k(f'{Lskip}:')

    def kexpand1(self):
        k = self.k
        V = lambda ch, j: 36 + 4 * ch + j
        PK, SC = 48, 54
        k(f'''
        v_lshlrev_b32 v25, 16, v25
        v_cmp_eq_u32 s[58:59], 0, v208
        v_readlane_b32 s62, v25, 0
        v_readlane_b32 s63, v25, 1
        v_readlane_b32 s64, v25, 2
        v_mov_b32 v64, 0
        v_mov_b32 v65, 0
        v_mov_b32 v66, 0
        v_mov_b32 v67, 0
        v_lshlrev_b32 v35, 4, v0
        ''')
        for ch in range(3):
            k(f'v_mov_b32 {vr(SC + ch)}, s{62 + ch}')
            k(f'v_cndmask_b32 {vr(SC + ch)}, 0, {vr(SC + ch)}, s[58:59]')
        k.wait('kcw')
        k('s_barrier')
        self.stamp('kcw')
        if self.o.get('pre1', 2) == 1:
            L = self.only_wave(0)
            self.poll_sync1_issue(215, 68)
            k(f'{L}:')
        for ch in range(3):
            for j in range(4):
                k(f'ds_read2st64_b32 {vr(176 + 8 * ch + 2 * j, 2)}, {vr(GA + j)} offset0:{30 * ch} offset1:{30 * ch + 15}')
        L = self.only_wave(7)
        k(f's_mov_b32 exec_lo, -1\ns_mov_b32 exec_hi, 0x3ff')
        k(f'ds_write_b128 v35, v[64:67] offset:{XNL0 - 672}', tag='kaw')
        k(f's_mov_b64 exec, 3')
        for ch in range(3):
            k(f'ds_write_b128 v35, v[64:67] offset:{KA + ch * KAS}', tag='kaw')
        k(f's_mov_b64 exec, -1')
        k(f'{L}:')
        done = min(40, 5 + 2 * self.o.get('wb', 0) + 4 * self.o.get('wk', 5))
        if done < 40:
            k(f's_add_u32 {sr(sWI)}, {sr(sW)}, {done}')
            self.wunits((40 - done + 7) // 8, 40, 8)
        for ch in range(3):
            for j in range(4):
                k(f'v_add_f32 {vr(V(ch, j))}, {vr(176 + 8 * ch + 2 * j)}, {vr(177 + 8 * ch + 2 * j)}')
            k(f'v_add_f32 {vr(V(ch, 0))}, {vr(V(ch, 0))}, {vr(SC + ch)}')
        for ch in range(3):
            k(f'v_cvt_pk_bf16_f32 {vr(PK + 2 * ch)}, {vr(V(ch, 0))}, {vr(V(ch, 1))}')
            k(f'v_cvt_pk_bf16_f32 {vr(PK + 2 * ch + 1)}, {vr(V(ch, 2))}, {vr(V(ch, 3))}')
            k(f'ds_write_b64 v208, {vr(PK + 2 * ch, 2)} offset:{KA + ch * KAS + 32}', tag='kaw')
        if self.o.get('pre1', 2) == 2:
            L = self.only_wave(0)
            self.poll_sync1_issue(215, 68)
            k(f'{L}:')
        for j in range(1, 4):
            for ch in range(3):
                k(f'v_add_f32 {vr(V(ch, j))}, {vr(V(ch, j))}, {vr(V(ch, j - 1))}')
        for n in (1, 2, 4, 8):
            for ch in range(3):
                src = V(ch, 3) if n == 1 else SC + ch
                k(f'v_add_f32_dpp {vr(SC + ch)}, {vr(src)}, {vr(src)} row_shr:{n} row_mask:0xf bank_mask:0xf bound_ctrl:0')
        for ch in range(3):
            k(f'v_add_f32_dpp {vr(SC + ch)}, {vr(SC + ch)}, {vr(SC + ch)} row_bcast:15 row_mask:0xa bank_mask:0xf')
        for ch in range(3):
            k(f'v_add_f32_dpp {vr(SC + ch)}, {vr(SC + ch)}, {vr(SC + ch)} row_bcast:31 row_mask:0xc bank_mask:0xf')
        k(f'''
        s_lshl_b32 s55, {sr(sW)}, 2
        s_add_u32 s55, s55, {WT}
        v_mov_b32 v33, s55
        s_mov_b32 exec_lo, 0
        s_brev_b32 exec_hi, 1
        ''')
        for ch in range(3):
            k(f'ds_write_b32 v33, {vr(SC + ch)} offset:{32 * ch}', tag='kaw')
        k('s_mov_b64 exec, -1')

    def kexpand2(self):
        k = self.k
        V = lambda ch, j: 36 + 4 * ch + j
        SC = 54
        k(f'''
        v_min_u32 v33, 23, v0
        v_lshlrev_b32 v33, 2, v33
        v_add_u32 v33, {WT}, v33
        ds_read_b32 v34, v33
        v_and_b32 v33, 7, v0
        v_cmp_gt_u32 vcc, {sr(sW)}, v33
        ''')
        for ch in range(3):
            k(f'v_sub_f32 {vr(SC + ch)}, {vr(SC + ch)}, {vr(V(ch, 3))}')
        k('v_cndmask_b32 v34, 0, v34, vcc')
        for n in (1, 2, 4):
            k(f'v_add_f32_dpp v34, v34, v34 row_shr:{n} row_mask:0xf bank_mask:0xf bound_ctrl:0')
        k(f'''
        v_readlane_b32 s62, v34, 7
        v_readlane_b32 s63, v34, 15
        v_readlane_b32 s64, v34, 23
        ''')
        for ch in range(3):
            k(f'v_add_f32 {vr(SC + ch)}, s{62 + ch}, {vr(SC + ch)}')
            for j in range(4):
                k(f'v_add_f32 {vr(V(ch, j))}, {vr(V(ch, j))}, {vr(SC + ch)}')
            k(f'ds_write_b128 v209, {vr(V(ch, 0), 4)} offset:{SA + ch * SAS}', tag='saw')

    def conv_loads(self):
        k = self.k
        k(f'''
        s_lshl_b32 s60, {sr(sW)}, 10
        s_mov_b32 s57, {XN}
        s_mov_b32 s58, {MS}
        ''')
        L = self.only_wave(0)
        self.poll_sync1(215, 68, preissued=self.o.get('pre1', 2))
        k(f'{L}:')
        self.stamp('polled')
        k.wait('kaw', 'wst')
        self.stamp('wland')
        k('s_barrier')
        self.stamp('sync1')
        k(f's_add_u32 m0, s60, {XNL0}')
        k(f'buffer_load_dwordx4 v210, {P4(rWS)}, s57 offen sc1 lds', tag='xnl')
        L = k.label('x2')
        k(f's_cmp_ge_u32 {sr(sW)}, 4\ns_cbranch_scc1 {L}\ns_add_u32 m0, s60, {XNL0 + 8192}')
        k(f'buffer_load_dwordx4 v211, {P4(rWS)}, s57 offen sc1 lds', tag='xnl')
        k(f'{L}:\ns_add_u32 m0, s60, {MSL}')
        k(f'buffer_load_dwordx4 v212, {P4(rWS)}, s58 offen sc1 lds', tag='xnl')
        if self.o.get('pf1', 2) == 1:
            L = k.label('npf')
            k(f'''
            s_cmp_ge_u32 {sr(sW)}, 2
            s_cbranch_scc1 {L}
            s_cmp_eq_u32 {sr(sW)}, 0
            s_cselect_b32 s56, s{pWG}, s{pWU}
            s_cselect_b32 s57, s{pWG + 1}, s{pWU + 1}
            s_mul_i32 s55, {sr(sWR)}, {8 * 3456}
            s_lshl_b32 s58, {sr(sNB)}, 7
            s_add_u32 s55, s55, s58
            s_add_u32 s55, s55, {320 * 3456}
            ''')
            self.touch(56, 640 * 1728 * 2, 's55', stride=3456, lanes=40)
            k(f'{L}:')

    def conv_consts(self):
        k = self.k
        Lr, Ld = k.label('mr'), k.label('md')
        chk = f'''
        v_min_u32 v16, v17, v23
        v_cmp_eq_u32 vcc, 0, v16
        s_cbranch_vccz {Ld}
        '''
        k(chk)
        k(f'''
        {Lr}:
        global_load_dword v17, v88, {P2(pWS)} sc1
        global_load_dword v23, v88, {P2(pWS)} offset:1024 sc1
        ''')
        k(chk)
        k(f'''
        s_sleep {self.o.get('sleep', 2)}
        s_add_u32 {sr(sSPIN)}, {sr(sSPIN)}, 1
        s_cmp_lt_u32 {sr(sSPIN)}, {SPIN_MAX}
        s_cbranch_scc1 {Lr}
        {Ld}:
        v_add_f32 v17, v17, v23
        v_add_f32_dpp v17, v17, v17 quad_perm:[1,0,3,2] row_mask:0xf bank_mask:0xf
        v_add_f32_dpp v17, v17, v17 quad_perm:[2,3,0,1] row_mask:0xf bank_mask:0xf
        v_cvt_pk_bf16_f32 v17, v17, v17
        v_lshlrev_b32 v17, 16, v17
        v_add_f32 v16, 1.0, v17
        v_cvt_pk_bf16_f32 v16, v16, v16
        v_lshlrev_b32 v16, 16, v16
        ''')
        for ch in range(3):
            k(f'v_readlane_b32 s55, v17, {4 * (6 + ch)}')
            k(f'v_readlane_b32 {sr(sCH + 3 * ch + 2)}, v16, {4 * (9 + ch)}')
            k(f'v_mul_f32 v18, s55, v16\nv_mul_f32 v19, s55, v17')
            k(f'v_readlane_b32 {sr(sCH + 3 * ch)}, v18, {4 * (3 + ch)}')
            k(f'v_readlane_b32 {sr(sCH + 3 * ch + 1)}, v19, {4 * ch}')

    def conv(self, setup_only=False):
        k = self.k
        H, KF, ACC, AX = 32, 64, 176, 208
        vHB, vKB, vH, vK, vXB, vSB, vO = 1, 2, 3, 4, 5, 6, 7
        XV, SV, TT, MV = 212, 216, 224, 244
        sL, sG, sC, sN = 65, 66, 67, 68
        sG2, sC2, sM, sO, sME, sOE = 94, 95, 96, 97, 98, 99
        U = lambda G, ch: 4 * ch + G
        lists = self.o.get('units') or [[U(3, 0)], [U(3, 1)], [U(3, 2)], [U(2, 0)], [U(0, 0), U(1, 0)], [U(0, 1), U(1, 1)],
                                        [U(0, 2), U(2, 2)], [U(1, 2), U(2, 1)]]
        lo = sum(lists[w][0] << (4 * w) for w in range(8))
        hi = sum(lists[w][1] << (4 * (w - 4)) for w in range(4, 8))
        hs = lambda m: H + 4 * (m % 8)
        ks = lambda q: KF + 4 * (q % 4)

        def ldh(slot_m, base, off):
            k(f'ds_read_b64_tr_b16 {vr(hs(slot_m), 2)}, {vr(base)} offset:{off}')
            k(f'ds_read_b64_tr_b16 {vr(hs(slot_m) + 2, 2)}, {vr(base)} offset:{off + 96}')

        def ldk(q, off):
            k(f'ds_read_b64_tr_b16 {vr(ks(q), 2)}, {vr(vK)} offset:{off + 32}')
            k(f'ds_read_b64_tr_b16 {vr(ks(q) + 2, 2)}, {vr(vK)} offset:{off}')

        def mf(acc, m, q, zero=False):
            c = '0' if zero else vr(acc, 4)
            k(f'v_mfma_f32_16x16x32_bf16 {vr(acc, 4)}, {vr(hs(m), 4)}, {vr(ks(q), 4)}, {c}')

        def decode(code):
            k(f"""
            s_and_b32 {sr(sG)}, {code}, 3
            s_bfe_u32 {sr(sC)}, {code}, 0x20002
            s_mul_i32 s55, {sr(sG)}, 3072
            s_lshl_b32 s56, {sr(sC)}, 4
            s_add_u32 s55, s55, s56
            v_add_u32 {vr(vH)}, s55, {vr(vHB)}
            v_add_u32 v8, s55, {vr(vXB)}
            s_mul_i32 s56, {sr(sC)}, {KAS}
            v_add_u32 {vr(vK)}, s56, {vr(vKB)}
            s_lshl_b32 s55, {sr(sC)}, 13
            s_lshl_b32 s56, {sr(sG)}, 11
            s_add_u32 s55, s55, s56
            s_add_u32 s55, s55, {SA}
            v_lshl_add_u32 {vr(vSB)}, v0, 2, s55
            s_add_u32 s56, s56, {MSL}
            v_lshl_add_u32 v22, v0, 2, s56
            """)

        def first_loads():
            ldk(0, 0)
            for i in (7, 6, 5, 4, 3, 2, 1, 0):
                ldh(i, vH, 384 * i)
            ldk(1, 256)
            k(f'v_subrev_u32 v11, 768, {vr(vH)}\nv_subrev_u32 {vr(vH)}, 3840, {vr(vH)}')

        def const_loads():
            k(f'global_load_dword v17, v88, {P2(pWS)} sc1\nglobal_load_dword v23, v88, {P2(pWS)} offset:1024 sc1')

        def tab_loads():
            k(f'global_load_dwordx2 v[12:13], v90, {P2(pWS)} sc1\nglobal_load_dwordx2 v[14:15], v90, {P2(pWS)} offset:2560 sc1')

        def wdma(part):
            if self.o.get('x_cnow'):
                return
            if part == 0:
                k(f's_mov_b32 m0, {sr(sM)}')
                k(f'buffer_load_dwordx4 v26, {P4(rA)}, {sr(sO)} offen lds', tag='wst')
            else:
                k(f's_add_u32 m0, {sr(sM)}, 1024\ns_add_u32 {sr(sM)}, {sr(sM)}, 2048')
                k(f'buffer_load_dwordx4 v27, {P4(rB)}, {sr(sO)} offen lds', tag='wst')
                k(f's_add_u32 {sr(sO)}, {sr(sO)}, {8 * 3456}\ns_min_u32 {sr(sM)}, {sr(sM)}, {sr(sME)}\ns_min_u32 {sr(sO)}, {sr(sO)}, {sr(sOE)}')

        def base_ops(i):
            xr, t, u = XV + i // 2, TT + 11 + i, TT + 1 + i
            return [f'v_lshlrev_b32 {vr(t)}, 16, {vr(xr)}' if i % 2 == 0 else f'v_and_b32 {vr(t)}, 0xffff0000, {vr(xr)}',
                    f'v_and_b32 {vr(u)}, 0xffff0000, {vr(MV + i)}',
                    f'v_lshlrev_b32 {vr(MV + i)}, 16, {vr(MV + i)}',
                    f'v_fmac_f32 {vr(MV + i)}, {vr(t)}, {vr(u)}']

        def mfma_part(dma, consts, tabs, maybe_short, hook=None):
            Lloop, Ltail = k.label('cl'), k.label('ct')
            for e in range(4):
                k(f'v_mov_b32 {vr(AX + e)}, 0')
            k(f's_mov_b32 {sr(sN)}, {sr(sG)}')
            if self.o.get('cspread', 1):
                def rk(q, off, half):
                    k(f'ds_read_b64_tr_b16 {vr(ks(q) + 2 * half, 2)}, {vr(vK)} offset:{off + (0 if half else 32)}')

                def rh(slot_m, base, off, half):
                    k(f'ds_read_b64_tr_b16 {vr(hs(slot_m) + 2 * half, 2)}, {vr(base)} offset:{off + 96 * half}')

                def full_step(u, base, o6, o7, zero, extra):
                    fill = {7: lambda: rk(u + 2, 256 * (u + 2), 0), 6: lambda: rk(u + 2, 256 * (u + 2), 1),
                            5: lambda: rh(7 - 2 * u, base, o7, 0), 4: lambda: rh(7 - 2 * u, base, o7, 1),
                            3: lambda: rh(6 - 2 * u, base, o6, 0), 2: lambda: rh(6 - 2 * u, base, o6, 1)}
                    for i in (7, 6, 5, 4, 3, 2, 1, 0):
                        mf(ACC + 4 * i, i - 2 * u, u, zero)
                        if i in fill:
                            fill[i]()
                        if extra and dma and i == 1:
                            wdma((u + 1) % 2)
                        if extra and i == 0 and u == 2 and consts:
                            const_loads()
                        if extra and u == 4 and i == 0:
                            k(f's_sub_u32 {sr(sN)}, {sr(sN)}, 1')
                            k(f'v_subrev_u32 {vr(vH)}, 3072, {vr(vH)}\nv_add_u32 {vr(vK)}, 1024, {vr(vK)}')
                    if extra:
                        mf(AX, 1 - 2 * u, u - 1)
                full_step(0, 11, 0, 384, True, False)
                if maybe_short:
                    k(f's_cmp_eq_u32 {sr(sN)}, 0\ns_cbranch_scc1 {Ltail}')
                k(f'{Lloop}:')
                for u in range(1, 5):
                    full_step(u, vH, 384 * (8 - 2 * u), 384 * (9 - 2 * u), False, True)
                if hook:
                    hook()
                k(f's_cmp_lg_u32 {sr(sN)}, 0\ns_cbranch_scc1 {Lloop}\n{Ltail}:')
                if tabs:
                    tab_loads()
                for i in (7, 6, 5, 4, 3, 2):
                    mf(ACC + 4 * i, i - 2, 1)
                    if i in (7, 6):
                        rk(3, 768, 7 - i)
                    if dma and i in (5, 3):
                        wdma(0 if i == 5 else 1)
            else:
                mf(ACC + 28, 7, 0, True)
                mf(ACC + 24, 6, 0, True)
                ldh(6, 11, 0)
                ldh(7, 11, 384)
                for i in (5, 4, 3, 2, 1, 0):
                    mf(ACC + 4 * i, i, 0, True)
                if maybe_short:
                    k(f's_cmp_eq_u32 {sr(sN)}, 0\ns_cbranch_scc1 {Ltail}')
                k(f'{Lloop}:')
                for u in range(1, 5):
                    mf(ACC + 28, 7 - 2 * u, u)
                    mf(ACC + 24, 6 - 2 * u, u)
                    ldh(6 - 2 * u, vH, 384 * (8 - 2 * u))
                    ldh(7 - 2 * u, vH, 384 * (9 - 2 * u))
                    ldk(u + 1, 256 * (u + 1))
                    for i in (5, 4, 3, 2, 1, 0):
                        mf(ACC + 4 * i, i - 2 * u, u)
                        if self.o.get('wslow', 1):
                            if dma and i == 3:
                                wdma((u + 1) % 2)
                        else:
                            if dma and i == 5:
                                wdma(0)
                            if dma and i == 2:
                                wdma(1)
                        if i == 4 and u == 2 and consts:
                            const_loads()
                        if i == 4 and u == 3 and tabs and not self.o.get('tab_tail', 1):
                            tab_loads()
                        if u == 4 and i == 1:
                            k(f's_sub_u32 {sr(sN)}, {sr(sN)}, 1')
                            k(f'v_subrev_u32 {vr(vH)}, 3072, {vr(vH)}\nv_add_u32 {vr(vK)}, 1024, {vr(vK)}')
                    mf(AX, 1 - 2 * u, u - 1)
                if hook:
                    hook()
                k(f's_cmp_lg_u32 {sr(sN)}, 0\ns_cbranch_scc1 {Lloop}\n{Ltail}:')
                if tabs and self.o.get('tab_tail', 1):
                    tab_loads()
                ldk(2, 512)
                for i in (7, 6, 5, 4, 3, 2):
                    mf(ACC + 4 * i, i - 2, 1)
                    if dma and self.o.get('wslow', 1) and i in (6, 3):
                        wdma(0 if i == 6 else 1)
                ldk(3, 768)
            k(f'ds_read_b64_tr_b16 {vr(XV, 2)}, v8')
            k(f'ds_read_b64_tr_b16 {vr(XV + 2, 2)}, v8 offset:1536')
            for i in range(4):
                k(f'ds_read2st64_b32 {vr(SV + 2 * i, 2)}, {vr(vSB)} offset0:{2 * i} offset1:{2 * i + 1}')
            for i in range(4):
                k(f'ds_read2st64_b32 {vr(MV + 2 * i, 2)}, v22 offset0:{2 * i} offset1:{2 * i + 1}')
            pre = []
            if self.o.get('cpre', 1):
                for i in range(8):
                    pre += base_ops(i)
            for i in (7, 6, 5, 4):
                mf(ACC + 4 * i, i - 4, 2)
            for i in (7, 6):
                mf(ACC + 4 * i, i - 6, 3)
                for x in pre[:16]:
                    k(x)
                pre = pre[16:]

        def epilogue(g, c, consts):
            SH = 'wave_shr:1 row_mask:0xf bank_mask:0xf'
            RO = 'wave_ror:1 row_mask:0xf bank_mask:0xf'
            a = lambda i, e: (AX if i < 0 else ACC + 4 * i) + e
            t2 = lambda i: TT + 1 + i
            t1 = lambda i: TT + 11 + i
            k(f"""
            s_add_u32 s58, {sr(sD0)}, {sr(c)}
            s_mul_i32 s58, s58, {X1R}
            s_lshl_b32 s59, {sr(g)}, 10
            s_add_u32 s58, s58, s59
            s_add_u32 s59, s58, {X1S}
            s_add_u32 s58, s58, {X1T}
            """)
            k(f'v_add_f32_dpp {vr(t2(-1))}, {vr(a(-1, 3))}, {vr(a(-1, 2))} {SH} bound_ctrl:0')
            for i in range(8):
                k(f'v_add_f32_dpp {vr(t2(i))}, {vr(a(i - 1, 3))}, {vr(a(i, 2))} {RO}')
            for i in range(8):
                k(f'v_add_f32_dpp {vr(t2(i))}, {vr(a(i, 3))}, {vr(a(i, 2))} {SH}')
            k(f'v_add_f32_dpp {vr(t1(-1))}, {vr(t2(-1))}, {vr(a(-1, 1))} {SH} bound_ctrl:0')
            for i in range(8):
                k(f'v_add_f32_dpp {vr(t1(i))}, {vr(t2(i - 1))}, {vr(a(i, 1))} {RO}')
            for i in range(8):
                k(f'v_add_f32_dpp {vr(t1(i))}, {vr(t2(i))}, {vr(a(i, 1))} {SH}')
            for i in range(8):
                k(f'v_add_f32_dpp {vr(a(i, 3))}, {vr(t1(i - 1))}, {vr(a(i, 0))} {RO}')
            for i in range(8):
                k(f'v_add_f32_dpp {vr(a(i, 3))}, {vr(t1(i))}, {vr(a(i, 0))} {SH}')
            if not self.o.get('cpre', 1):
                for i in range(8):
                    for x in base_ops(i):
                        k(x)
            if consts:
                self.conv_consts()
            k(f"""
            s_cmp_eq_u32 {sr(c)}, 1
            s_cselect_b32 s55, {sr(sCH + 3)}, {sr(sCH)}
            s_cselect_b32 s56, {sr(sCH + 4)}, {sr(sCH + 1)}
            s_cselect_b32 s57, {sr(sCH + 5)}, {sr(sCH + 2)}
            s_cmp_eq_u32 {sr(c)}, 2
            s_cselect_b32 s55, {sr(sCH + 6)}, s55
            s_cselect_b32 s56, {sr(sCH + 7)}, s56
            s_cselect_b32 s57, {sr(sCH + 8)}, s57
            """)
            for i in range(8):
                k(f'v_fmac_f32 {vr(MV + i)}, s56, {vr(SV + i)}')
            for i in range(8):
                k(f'v_fmac_f32 {vr(MV + i)}, s55, {vr(a(i, 3))}')
            for i in range(4):
                k(f'v_cvt_pk_bf16_f32 {vr(XV + i)}, {vr(MV + 2 * i)}, {vr(MV + 2 * i + 1)}')
            for i in range(8):
                k(f'v_mul_f32 {vr(MV + i)}, s57, {vr(MV + i)}')
            k(f'buffer_store_dwordx4 {vr(XV, 4)}, {vr(vO)}, {P4(rWS)}, s58 offen sc1', tag='x1st')
            for i in range(4):
                k(f'v_cvt_pk_bf16_f32 {vr(SV + i)}, {vr(MV + 2 * i)}, {vr(MV + 2 * i + 1)}')
            k(f'buffer_store_dwordx4 {vr(SV, 4)}, {vr(vO)}, {P4(rWS)}, s59 offen sc1', tag='x1st')

        if setup_only:
            if self.o.get('wslow', 1):
                cnt = [7, 7, 7, 5, 3, 3, 4, 4]
                st = [sum(cnt[:w]) for w in range(8)]
                pk = lambda v: (sum(x << (8 * i) for i, x in enumerate(v[:4])), sum(x << (8 * i) for i, x in enumerate(v[4:])))
                a, b = pk(st), pk([x + c - 1 for x, c in zip(st, cnt)])
                wrange = f'''s_cmp_lt_u32 {sr(sW)}, 4
            s_mov_b32 s55, {a[1]}
            s_cmov_b32 s55, {a[0]}
            s_mov_b32 s56, {b[1]}
            s_cmov_b32 s56, {b[0]}
            s_and_b32 s57, {sr(sW)}, 3
            s_lshl_b32 s57, s57, 3
            s_lshr_b32 s55, s55, s57
            s_lshr_b32 s56, s56, s57
            s_and_b32 s55, s55, 0xff
            s_and_b32 s56, s56, 0xff'''
            else:
                wrange = f's_mul_i32 s55, {sr(sW)}, 11\ns_add_u32 s56, s55, 10\ns_min_u32 s56, s56, 39'
            k(f"""
        s_lshl_b32 s55, {sr(sW)}, 2
        s_lshr_b32 {sr(sL)}, {hex(lo)}, s55
        v_lshlrev_b32 {vr(vO)}, 4, v0
        {wrange}
        s_lshl_b32 {sr(sM)}, s55, 11
        s_add_u32 {sr(sM)}, {sr(sM)}, {STG}
        s_lshl_b32 {sr(sME)}, s56, 11
        s_add_u32 {sr(sME)}, {sr(sME)}, {STG}
        s_add_u32 s55, s55, 40
        s_mul_i32 {sr(sO)}, s55, {8 * 3456}
        s_add_u32 s56, s56, 40
        s_mul_i32 {sr(sOE)}, s56, {8 * 3456}
        """)
            decode(sr(sL))
            return
        Ly, Ld = k.label('cy'), k.label('cdone')
        self.stamp('prexn')
        k.wait('xnl', 'saw', 'wrd')
        self.stamp('xnland')
        k(f's_cmp_ge_u32 {sr(sW)}, 4\ns_cbranch_scc1 {Ly}')
        k('s_barrier')
        self.stamp('xnl')
        first_loads()
        if self.o.get('pf1', 2) == 3:
            L = k.label('npf')
            k(f'''
            s_cmp_ge_u32 {sr(sW)}, 2
            s_cbranch_scc1 {L}
            s_cmp_eq_u32 {sr(sW)}, 0
            s_cselect_b32 s56, s{pWG}, s{pWU}
            s_cselect_b32 s57, s{pWG + 1}, s{pWU + 1}
            s_mul_i32 s55, {sr(sWR)}, {8 * 3456}
            s_lshl_b32 s58, {sr(sNB)}, 7
            s_add_u32 s55, s55, s58
            s_add_u32 s55, s55, {320 * 3456}
            ''')
            self.touch(56, 640 * 1728 * 2, 's55', stride=3456, lanes=40)
            k(f'{L}:')
        mfma_part(True, True, True, False)
        self.stamp('c_mm')
        epilogue(sG, sC, True)
        self.g1_addr_early()
        k(f's_branch {Ld}')
        k(f'{Ly}:')
        if self.o.get('prio', True):
            k('s_setprio 2')
        k('s_barrier')
        self.stamp('xnl')
        first_loads()
        const_loads()
        mfma_part(False, True, False, True)
        self.stamp('y_m1')
        k(f"""
        s_mov_b32 {sr(sG2)}, {sr(sG)}
        s_mov_b32 {sr(sC2)}, {sr(sC)}
        s_lshl_b32 s55, {sr(sW)}, 2
        s_lshr_b32 {sr(sL)}, {hex(hi << 16)}, s55
        """)
        decode(sr(sL))
        first_loads()
        epilogue(sG2, sC2, True)
        self.stamp('y_e1')
        def pub(g, only=None):
            Ln = k.label('npub')
            k(f"""
            {f's_cmp_lg_u32 {sr(g)}, {only}' if only is not None else f's_cmp_ge_u32 {sr(g)}, {2 if self.o.get("s2c", 0) else 1}'}
            s_cbranch_scc1 {Ln}
            s_sub_u32 s55, {sr(sW)}, 4
            s_min_u32 s55, s55, 2
            s_lshl_b32 s55, s55, 3
            s_add_u32 s55, s55, {sr(sMB)}
            s_mul_i32 s56, {sr(g)}, {(SYNC2C - SYNC2A) // 128}
            s_add_u32 s55, s55, s56
            """)
            k.wait('x1st')
            self.arrive(SYNC2A, 24, 's55', 9)
            self.stamp('pub0')
            k(f'{Ln}:')
        Lp = k.label('kp')
        if self.o.get('prio1', 1) and self.o.get('s2c', 0):
            k(f's_cmp_eq_u32 {sr(sG)}, 1\ns_cbranch_scc1 {Lp}')
        k(f's_setprio 0\n{Lp}:')
        self.g1_addr_early()
        hook = None
        if self.o.get('s2c', 0) == 2:
            pub(sG2, only=0)

            def hook():
                pub(sG2, only=1)
                k(f's_mov_b32 {sr(sG2)}, 3')
        else:
            pub(sG2)
        self.stamp('y_p1')
        mfma_part(bool(self.o.get('wslow', 1)), False, True, False, hook)
        self.stamp('c_mm')
        epilogue(sG, sC, False)
        self.stamp('y_e2')
        k('s_setprio 0')
        if self.o.get('s2c', 0):
            pub(sG)
        k(f'{Ld}:')
        self.stamp('conv')

    def window2(self):
        k = self.k
        AC, TF, CB = 32, 16, 92
        Lr, Ld = k.label('tb'), k.label('tbd')
        chk = f'''
        v_min_u32 v16, v12, v13
        v_min3_u32 v16, v16, v14, v15
        v_cmp_eq_u32 vcc, 0, v16
        s_cbranch_vccz {Ld}
        '''
        k(chk)
        k(f'''
        {Lr}:
        global_load_dwordx2 v[12:13], v90, {P2(pWS)} sc1
        global_load_dwordx2 v[14:15], v90, {P2(pWS)} offset:2560 sc1
        ''')
        k(chk)
        k(f'''
        s_sleep {self.o.get('sleep', 2)}
        s_add_u32 {sr(sSPIN)}, {sr(sSPIN)}, 1
        s_cmp_lt_u32 {sr(sSPIN)}, {SPIN_MAX}
        s_cbranch_scc1 {Lr}
        {Ld}:
        v_and_b32 v14, 0xffff0000, v14
        v_and_b32 v15, 0xffff0000, v15
        v_add_f32 v14, 1.0, v14
        v_add_f32 v15, 1.0, v15
        s_mov_b32 s55, 0x07060302
        v_cvt_pk_bf16_f32 v14, v14, v15
        v_perm_b32 v12, v13, v12, s55
        v_lshlrev_b32 v20, 2, v89
        v_add_u32 v20, {TAB}, v20
        ''')
        k(f'ds_write_b32 v20, v14', tag='tabw')
        k(f'ds_write_b32 v20, v12 offset:1280', tag='tabw')
        self.g1_setup()
        L = self.only_wave(0)
        self.poll(7, 5, 27, nl=24)
        k(f'{L}:')
        k.wait('wst', 'tabw')
        k('s_barrier')
        self.stamp('barX')
        if self.o['stop'] != 'conv':
            for c in range(2):
                for i in range(2):
                    self.g1_dma(c, i)

        self.wstage_read(1, 10)
        if self.o.get('c2early', 1) and self.o['stop'] != 'conv':
            for i in range(2):
                self.g1_dma(2, i)
        Lj = k.label('csj')
        k(f'''
        s_cmp_ge_u32 {sr(sW)}, 4
        s_cbranch_scc1 {Lj}
        s_mul_i32 s55, {sr(sM1)}, 160
        v_add_u32 v8, s55, v8
        ''')
        for n in range(5):
            k(f'ds_read_b128 {vr(48 + 4 * n, 4)}, v8 offset:{32 * n}')
        Lv = [k.label('csv') for _ in range(8)]
        Le = k.label('cse')
        for m in range(1, 8):
            k(f's_cmp_eq_u32 {sr(sM1)}, {m}\ns_cbranch_scc1 {Lv[m]}')
        for m in range(8):
            k(f'{Lv[m]}:')
            for n in range(5):
                c = '0' if n == 0 else vr(AC, 16)
                k(f'v_mfma_f32_32x32x16_bf16 {vr(AC, 16)}, {vr(48 + 4 * n, 4)}, {vr(WF + 4 * (5 * m + n), 4)}, {c}')
            if m < 7:
                k(f's_branch {Le}')
        k(f'''
        {Le}:
        s_lshl_b32 s55, {sr(sNB)}, 3
        s_add_u32 s55, s55, {sr(sM1)}
        s_lshl_b32 s55, s55, 2
        s_add_u32 s55, s55, {sr(sW)}
        s_lshl_b32 s55, s55, 8
        s_add_u32 s55, s55, {CSP}
        v_lshlrev_b32 v9, 3, v0
        v_or_b32 {vr(AC)}, 1, {vr(AC)}
        v_or_b32 {vr(AC + 1)}, 1, {vr(AC + 1)}
        s_mov_b32 exec_hi, 0
        buffer_store_dwordx2 {vr(AC, 2)}, v9, {P4(rWS)}, s55 offen sc1
        s_mov_b32 exec_hi, -1
        {Lj}:
        ''')
        k.wait('x1st', 'wrd', 'ch0')
        k('s_barrier')
        self.stamp('barY')
        L = self.only_wave(4)
        k(f'''
        s_mul_i32 s55, {sr(sQ)}, 0x5556
        s_lshr_b32 s55, s55, 16
        s_mul_i32 s55, s55, 3
        s_sub_u32 s55, {sr(sQ)}, s55
        s_lshl_b32 s55, s55, 3
        s_add_u32 s55, s55, {sr(sMB)}
        ''')
        self.arrive(SYNC2B, 24, 's55', 12)
        k(f'{L}:')

    def cs_loads(self):
        k = self.k
        for j in range(4):
            k(f'global_load_dwordx2 {vr(80 + 2 * j if j < 3 else 88, 2)}, v79, {P2(pWS)} offset:{1024 * j} sc1')

    def cs_addr(self):
        self.k(f'''
        s_lshl_b32 s55, {sr(sNB)}, 13
        s_and_b32 s56, {sr(sW)}, 3
        s_lshl_b32 s56, s56, 8
        s_add_u32 s55, s55, s56
        s_add_u32 s55, s55, {CSP}
        v_lshrrev_b32 v79, 5, v0
        v_lshlrev_b32 v79, 12, v79
        v_and_b32 v78, 31, v0
        v_lshl_add_u32 v79, v78, 3, v79
        v_add_u32 v79, s55, v79
        ''')

    def cs_finish(self):
        k = self.k
        CB = 92
        Lr, Ld = k.label('cr'), k.label('cd')
        chk = f'''
        v_min3_u32 v90, v80, v81, v82
        v_min3_u32 v90, v90, v83, v84
        v_min3_u32 v90, v90, v85, v88
        v_min_u32 v90, v90, v89
        v_cmp_eq_u32 vcc, 0, v90
        s_cbranch_vccz {Ld}
        '''
        k(chk)
        k(f'{Lr}:\ns_sleep {self.o.get("sleep", 2)}')
        self.cs_loads()
        k(chk)
        k(f'''
        s_add_u32 {sr(sSPIN)}, {sr(sSPIN)}, 1
        s_cmp_lt_u32 {sr(sSPIN)}, {SPIN_MAX}
        s_cbranch_scc1 {Lr}
        {Ld}:
        v_add_f32 v80, v80, v82
        v_add_f32 v81, v81, v83
        v_add_f32 v84, v84, v88
        v_add_f32 v85, v85, v89
        v_add_f32 v80, v80, v84
        v_add_f32 v81, v81, v85
        v_mov_b32 v82, v80
        v_mov_b32 v83, v81
        v_cmp_gt_u32 vcc, 32, v0
        v_permlane32_swap_b32 v80, v82
        v_permlane32_swap_b32 v81, v83
        v_mov_b32 {vr(CB + 2)}, 0
        v_mov_b32 {vr(CB + 3)}, 0
        v_add_f32 v80, v80, v82
        v_add_f32 v81, v81, v83
        v_cvt_pk_bf16_f32 v82, v80, v81
        v_lshlrev_b32 v83, 16, v82
        v_and_b32 v84, 0xffff0000, v82
        v_sub_f32 v80, v80, v83
        v_sub_f32 v81, v81, v84
        v_cvt_pk_bf16_f32 v80, v83, v80
        v_cvt_pk_bf16_f32 v81, v84, v81
        v_cndmask_b32 {vr(CB)}, 0, v80, vcc
        v_cndmask_b32 {vr(CB + 1)}, 0, v81, vcc
        ''')

    def g1_addr_early(self):
        self.k(f'''
        v_lshrrev_b32 v18, 3, v0
        v_mul_u32_u24 v24, {X1R}, v18
        v_bfe_u32 v18, v0, 4, 1
        v_lshlrev_b32 v18, 2, v18
        v_and_b32 v19, 7, v0
        v_xor_b32 v18, v18, v19
        v_lshl_add_u32 v24, v18, 4, v24
        v_lshrrev_b32 v18, 5, v0
        v_bfe_u32 v19, v0, 2, 2
        v_lshl_add_u32 v18, v18, 3, v19
        v_lshlrev_b32 v25, 7, v18
        v_lshrrev_b32 v19, 1, v19
        s_lshr_b32 s55, {sr(sW)}, 2
        v_xor_b32 v19, s55, v19
        v_lshl_add_u32 v25, v19, 6, v25
        v_bfe_u32 v19, v0, 4, 1
        v_lshl_add_u32 v25, v19, 5, v25
        v_and_b32 v19, 3, v0
        v_lshl_add_u32 v25, v19, 3, v25
        v_add_u32 v25, {RING}, v25
        s_lshl_b32 s56, {sr(sM1)}, 6
        s_lshl_b32 s61, s55, 5
        s_add_u32 s56, s56, s61
        v_and_b32 v19, 31, v0
        v_add_u32 v19, s56, v19
        v_lshlrev_b32 v19, 2, v19
        v_add_u32 v28, {STATS}, v19
        s_lshl_b32 s56, {sr(sM1)}, 1
        s_add_u32 s56, s56, s55
        s_mul_i32 s56, s56, 108
        s_lshl_b32 s61, {sr(sNB)}, 2
        s_add_u32 s56, s56, s61
        s_and_b32 s61, {sr(sW)}, 3
        s_add_u32 s56, s56, s61
        s_lshl_b32 s56, s56, 10
        s_add_u32 s100, s56, {ACT}
        s_mul_i32 s101, {sr(sW)}, {16 * X1R}
        s_lshl_b32 s55, {sr(sM1)}, 7
        s_add_u32 s101, s101, s55
        s_add_u32 s101, s101, {X1S}
        v_and_b32 v29, 1, v0
        v_mul_u32_u24 v29, 1280, v29
        v_lshrrev_b32 v19, 5, v0
        v_lshl_add_u32 v29, v19, 4, v29
        v_add_u32 v29, {TAB}, v29
        ''')
        self.wread_addr(30)
        self.poll_addr(SYNC2A, 24, 21)

    def g1_setup(self):
        self.k(f'''
        v_mov_b32 v1, v24
        v_mov_b32 v2, v25
        v_add_u32 v3, {3 * 16384}, v25
        v_mov_b32 v6, v28
        v_mov_b32 v8, v29
        v_mov_b32 v10, v30
        v_mov_b32 v11, v31
        v_mov_b32 v7, v21
        s_mov_b32 s65, s100
        s_mov_b32 s66, s101
        s_lshl_b32 s67, {sr(sW)}, 11
        ''')

    def g1_dma(self, c, i):
        k = self.k
        slot = c % NS
        t, cc = divmod(c, 5)
        if self.o.get('x_nodma') and c >= 5:
            return
        k(f's_add_u32 m0, s67, {RING + slot * 16384 + i * 1024}')
        k(f's_add_u32 s3, s66, {t * 1024 + (cc * 128 + 8 * i) * X1R}')
        k(f'buffer_load_dwordx4 v1, {P4(rWS)}, s3 offen sc1 lds', tag=f'ch{c}')

    def g2_park(self, i, f):
        k = self.k
        m = f's_add_u32 m0, s{64 if i == 0 else 60}, {f * 1024}' if (i, f) != (6, 4) else 's_mov_b32 m0, s78'
        k(f'{m}\ns_add_u32 s3, s63, {self.G2ORD.index(i) * 40960 + f * 1024}')
        k(f'buffer_load_dwordx4 v4, {P4(rWS)}, s3 offen sc1 lds', tag=f'park{i}')

    def g2_wload(self, i, f, mains_only=False):
        k = self.k
        if i in self.o.get('y_now', ()):
            return
        n = self.G2ORD.index(i)
        k(f's_add_u32 s3, s63, {n * 40960 + f * 1024}' if n < 6 else f's_add_u32 s3, s76, {f * 1024}')
        k(f'buffer_load_dwordx4 {vr(W2[i] + 4 * f, 4)}, v4, {P4(rWS)}, s3 offen sc1')

    def g2_setup(self):
        k = self.k
        k(f'''
        s_lshr_b32 s55, s2, 3
        s_and_b32 s61, s55, 7
        s_lshr_b32 s55, s55, 3
        s_and_b32 s90, s55, 1
        s_lshr_b32 s55, s55, 1
        s_lshl_b32 s55, s55, 3
        s_add_u32 s62, s55, {sr(sMB)}
        s_mul_i32 s55, {sr(sW)}, 5120
        s_add_u32 s64, s55, {PARK0}
        s_add_u32 s60, s55, {PARK6A}
        s_sub_u32 s56, s55, {4 * 5120 - PARK6B}
        s_cmp_ge_u32 {sr(sW)}, 4
        s_cselect_b32 s60, s56, s60
        s_add_u32 s78, s60, 4096
        s_cmp_eq_u32 {sr(sW)}, 7
        s_cmov_b32 s60, {PARK7}
        s_cmov_b32 s78, 15360
        s_mul_i32 s63, s61, {54 * 5120}
        s_add_u32 s63, s63, {WD}
        s_add_u32 s63, s63, s55
        v_lshlrev_b32 v4, 4, v0
        ''')

    def g2_addr(self):
        k = self.k
        k(f'''
        v_lshrrev_b32 v76, 5, v0
        v_lshlrev_b32 v64, 10, v76
        v_bfe_u32 v76, v0, 4, 1
        v_lshl_add_u32 v64, v76, 9, v64
        v_and_b32 v77, 15, v0
        v_lshl_add_u32 v64, v77, 4, v64
        s_lshl_b32 s55, s62, 1
        s_add_u32 s55, s55, s90
        s_mul_i32 s55, s55, {108 * 1024}
        s_lshl_b32 s56, {sr(sW)}, 11
        s_add_u32 s55, s55, s56
        s_add_u32 s83, s55, {ACT}
        s_add_u32 s76, s63, {6 * 40960}
        s_add_u32 s77, s83, {6 * 16384}
        s_cmp_ge_u32 {sr(sW)}, 6
        s_cmov_b32 s76, 0x2000000
        s_cmov_b32 s77, 0x2000000
        s_lshl_b32 s55, s62, 7
        s_add_u32 s55, s55, {SYNC3}
        v_mov_b32 v65, s55
        s_lshl_b32 s55, {sr(sW)}, 10
        s_add_u32 s55, s55, {PART}
        v_add_u32 v66, s55, v4
        v_add_u32 v67, 65536, v66
        s_lshl_b32 s55, {sr(sW)}, 13
        s_add_u32 s55, s55, {PART}
        v_add_u32 v68, s55, v4
        s_lshr_b32 s57, {sr(sW)}, 2
        s_and_b32 s58, {sr(sW)}, 3
        s_lshl_b32 s55, s57, 13
        s_lshl_b32 s56, s58, 8
        s_add_u32 s55, s55, s56
        s_add_u32 s55, s55, {PART + 65536}
        v_lshl_add_u32 v69, v77, 4, s55
        s_cmp_ge_u32 {sr(sW)}, 5
        s_cselect_b32 s59, 1, 0
        s_mul_i32 s55, s59, 5
        s_sub_u32 s86, {sr(sW)}, s55
        s_add_u32 s57, s57, 3
        v_lshrrev_b32 v76, 2, v0
        v_lshlrev_b32 v70, 6, v76
        v_and_b32 v78, 3, v0
        v_lshl_add_u32 v70, v78, 3, v70
        v_and_b32 v71, 0xff, v70
        s_lshl_b32 s55, s86, 10
        s_lshl_b32 s56, s59, 5
        s_add_u32 s55, s55, s56
        s_add_u32 s55, s55, {RESID}
        v_add_u32 v70, s55, v70
        s_lshl_b32 s55, s57, 10
        s_lshl_b32 s56, s58, 8
        s_add_u32 s55, s55, s56
        s_add_u32 s55, s55, {RESID + 32}
        v_add_u32 v71, s55, v71
        s_mul_i32 s87, s61, 80
        s_lshl_b32 s55, s86, 4
        s_add_u32 s55, s55, s87
        v_lshrrev_b32 v76, 4, v0
        v_lshl_add_u32 v72, v76, 2, s55
        s_lshl_b32 s55, s57, 4
        s_lshl_b32 s56, s58, 2
        s_add_u32 s55, s55, s56
        s_add_u32 s55, s55, s87
        v_mov_b32 v73, s55
        s_lshl_b32 s55, s90, 5
        s_lshl_b32 s56, s59, 4
        s_add_u32 s56, s56, s55
        s_add_u32 s55, s55, 16
        s_lshr_b32 s88, s62, 3
        s_lshl_b32 s88, s88, 9
        s_lshl_b32 s89, {sr(sMB)}, 3
        s_add_u32 s88, s88, s89
        ''')
        for dst, ch, sp in ((74, 72, 's56'), (75, 73, 's55')):
            k(f'''
            v_add_u32 v76, {sp}, v77
            v_and_b32 v78, 7, v76
            v_lshrrev_b32 v76, 3, v76
            v_lshl_add_u32 v76, v78, 6, v76
            v_add_u32 v76, s88, v76
            v_mul_u32_u24 v76, 1280, v76
            v_lshl_add_u32 {vr(dst)}, {vr(ch)}, 1, v76
            v_lshlrev_b32 {vr(ch)}, 2, {vr(ch)}
            v_add_u32 {vr(ch)}, {MOD + 5 * 2560}, {vr(ch)}
            ''')

    def g1(self):
        k = self.k
        TF, CB = 16, 92
        ACC = [32, 48]
        vRA, vRB, vST, vSTA, vPA, vPD = 2, 3, 5, 6, 7, 8
        K1, K2, S2 = 9, 10, 11
        BF = 12
        ET = 80
        OUTR = 88
        k(f'v_mov_b32 {vr(BF + 2)}, 0\nv_mov_b32 {vr(BF + 3)}, 0')
        if self.o.get('s2c', 0):
            L = self.only_wave(0)
            self.poll_addr(SYNC2C, 24, vPA)
            self.poll_issue(vPA, vPD, 24)
            k(f'{L}:')

        def rd(sig):
            c, s8 = divmod(sig, 8)
            slot = c % NS
            base, off = (vRA, slot * 16384) if slot < 3 else (vRB, (slot - 3) * 16384)
            off += s8 * 2048
            r = TF + 4 * (sig % 4)
            if self.o.get('x_nord') and sig >= 4:
                return
            if self.o.get('x_b128'):
                k(f'ds_read_b128 {vr(r, 4)}, v4 offset:{off % 32768}')
                return
            k(f'ds_read_b64_tr_b16 {vr(r, 2)}, {vr(base)} offset:{off}')
            k(f'ds_read_b64_tr_b16 {vr(r + 2, 2)}, {vr(base)} offset:{off + 512}')

        C1 = -2 * LOG2E * math.sqrt(2 / math.pi) * 0.044715
        C2 = -2 * LOG2E * math.sqrt(2 / math.pi)

        def epi_ops(t):
            acc = ACC[t % 2]
            ops = []

            def head():
                if not self.o.get('x_nostat'):
                    self.poll(vSTA, vST, '0x10000', preissued=True, off=2048 * (t & 1))
                k(f'''
                s_mov_b32 s55, 0x01000100
                s_mov_b32 s56, 0x03020302
                v_perm_b32 {vr(BF)}, {vr(vST)}, {vr(vST)}, s55
                v_perm_b32 {vr(BF + 1)}, {vr(vST)}, {vr(vST)}, s56
                v_xor_b32 {vr(BF)}, 0x80008000, {vr(BF)}
                v_and_b32 {vr(S2)}, 0xffff0000, {vr(vST)}
                v_rcp_f32 {vr(K2)}, {vr(S2)}
                v_mfma_f32_32x32x16_bf16 {vr(acc, 16)}, {vr(CB, 4)}, {vr(BF, 4)}, {vr(acc, 16)}
                ''')
            ops.append(head)
            ops.append(lambda: k(f'''
                v_mul_f32 {vr(S2)}, {vr(S2)}, {vr(S2)}
                v_mul_f32 {vr(K1)}, {vr(K2)}, {vr(K2)}
                v_mul_f32 {vr(K2)}, {f32(C2)}, {vr(K2)}
                '''))
            ops.append(lambda: k(f'''
                v_mul_f32 {vr(K1)}, {f32(0.044715)}, {vr(K1)}
                v_mul_f32 {vr(K1)}, {vr(K1)}, {vr(K2)}
                '''))
            ops.append(lambda: None)
            flat = []
            for grp in range(2):
                E = range(4 * grp, 4 * grp + 4)
                for fmt in ('v_mul_f32 {t}, {g}, {g}', 'v_fma_f32 {t}, {t}, {k1}, {k2}', 'v_mul_f32 {t}, {t}, {g}', 'v_exp_f32 {t}, {t}',
                            'v_mul_f32 {u}, {u}, {g}', 'v_fma_f32 {t}, {t}, {s2}, {s2}', 'v_rcp_f32 {t}, {t}', 'v_mul_f32 {u}, {u}, {t}'):
                    for e in E:
                        flat.append(fmt.format(t=vr(ET + e % 4), g=vr(acc + e), u=vr(acc + 8 + e), k1=vr(K1), k2=vr(K2), s2=vr(S2)))
                for p in (2 * grp, 2 * grp + 1):
                    flat.append(f'v_cvt_pk_bf16_f32 {vr(OUTR + p)}, {vr(acc + 8 + 2 * p)}, {vr(acc + 9 + 2 * p)}')
            nst = self.o.get('epi_steps', [24, 20, 33, 16])
            nst = nst if isinstance(nst, int) else nst[t]
            cost = lambda x: 2 if ('exp' in x or 'rcp' in x) else 1
            tot = sum(map(cost, flat))
            cum, cur, n = 0, [], 1
            for x in flat:
                cur.append(x)
                cum += cost(x)
                if cum * nst >= n * tot:
                    ops.append(lambda cur=cur: k('\n'.join(cur)))
                    cur = []
                    n += 1
            assert not cur

            def fin():
                k(f's_add_u32 s3, s65, {t * 16 * 108 * 1024}')
                k(f'buffer_store_dwordx4 {vr(OUTR, 4)}, v4, {P4(rWS)}, s3 offen sc1', tag=f'act{t}')
            ops.append(fin)
            return ops

        def publish(t):
            L = self.only_wave(0)
            k(f'''
            s_add_u32 s55, {sr(sM1)}, {8 * t}
            s_lshl_b32 s55, s55, 7
            s_add_u32 s55, s55, {SYNC3}
            v_mov_b32 {vr(ET + 4)}, s55
            v_mov_b32 {vr(ET + 5)}, 1
            s_mov_b64 exec, 1
            global_atomic_add {vr(ET + 4)}, {vr(ET + 5)}, {P2(pWS)} sc1
            s_mov_b64 exec, -1
            {L}:
            ''')

        epi_start = self.o.get('epi_start', [50, 81, 121, 160])
        epi_rate = self.o.get('epi_rate', [1, 1, 1, 1])
        stat_ld = {max(0, s - self.o.get('stat_pre', 14)): t for t, s in enumerate(epi_start)}
        todo = {}
        for t in range(3):
            ops = epi_ops(t)
            sig = epi_start[t]
            while ops:
                for _ in range(epi_rate[t]):
                    if ops:
                        todo.setdefault(sig, []).append(ops.pop(0))
                sig += 1
            assert sig <= 160 and (t == 2 or sig <= epi_start[t + 1]), (t, sig)
            assert sig <= 40 * (t + 2)
            todo.setdefault('done', {})[t] = sig
        done_at = todo.pop('done')
        pub_at = {}
        for t in range(3):
            s = done_at[t] + self.o.get('pub_lag', 12)
            s = ((s - 3 + 7) // 8) * 8 + 3
            pub_at.setdefault(min(s, 163), []).append(t)
        s2c = self.o.get('s2c', 0)
        B2 = self.o.get('b2_chunk', 1 if s2c else 2)
        B3 = self.o.get('b3_chunk', 6)
        self.stamp('g1go')
        keep, self.k = self.k, Kern()
        self.cs_addr()
        self.g2_setup()
        self.g2_addr()
        late, self.k = self.k.ins, keep
        grp, cur = [], []
        for x in late:
            cur.append(x)
            if len(cur) >= 4 and (x.op in ('s_add_u32', 's_lshl_b32', 's_mul_i32', 's_and_b32', 's_lshr_b32') or x.op.startswith('v_')):
                grp.append(cur)
                cur = []
        grp.append(cur)
        assert len(grp) <= 31
        if self.o.get('x_latefirst'):
            for g_ in grp:
                k.ins += g_
            grp = []
            self.stamp('g1go2')
        if self.o.get('g1prio'):
            L = k.label('gp')
            k(f's_cmp_lt_u32 {sr(sW)}, 4\ns_cbranch_scc1 {L}\ns_setprio 1\n{L}:')
        for sig in range(4):
            rd(sig)
        issued = 5
        dq = [lambda c=c, i=i: self.g1_dma(c, i) for c in ((3, 4) if self.o.get('c2early', 1) else (2, 3, 4)) for i in range(2)]
        if self.o.get('c2early', 1) == 2:
            dq = [dq[0], lambda: None, dq[1], lambda: None, lambda: None, dq[2], lambda: None, dq[3]]
        p0 = self.o.get('park_at', 5)
        g2at = {p0 + n: [(0, n)] if n < 5 else [(6, n - 5)] for n in range(10)}
        if self.o.get('park2'):
            g2at = {p0 + n: [(0, n), (6, n)] for n in range(5)}
        pissue = {8 * B2 + 4: (SYNCW, 4, vPA), 36: (SYNC2B, 24, vPA), self.o.get('pa_issue', 140): (None, 1, 65)}
        pcheck = {B2: (27, 24, vPA), 4: (10, 4, vPA), B3: (9, 24, vPA), 19: (27, 1, 65)}
        if not s2c:
            B3 = B2
            pissue = {8 * B2 + 3 - self.o.get('b2_pre', 10): (SYNC2B, 24, vPA), 8 * B2 + 4: (SYNCW, 4, vPA), self.o.get('pa_issue', 140): (None, 1, 65)}
            pcheck = {B2: (9, 24, vPA), 4: (10, 4, vPA), 19: (27, 1, 65)}
        nd = self.o.get('w2_in_t3', 15)
        wl = {126 + (33 * n) // nd: (1 + n // 5, n % 5) for n in range(nd)}
        assert all(sg >= 120 + 5 * (i - 1) + f for sg, (i, f) in wl.items()) and len(wl) == nd
        for sig in range(160):
            t, s = divmod(sig, 40)
            c = sig // 8
            acc = ACC[t % 2]
            cop = '0' if s == 0 else vr(acc, 16)
            if self.o.get('wait2') and sig % 2 == 0 and sig < 156:
                k('s_waitcnt lgkmcnt(4)')
            if self.o.get('x_m16'):
                for hh in range(2):
                    a4 = acc + 8 * (s % 2) + 4 * hh
                    wf = WF + 4 * ((s & ~1) + hh)
                    k(f'v_mfma_f32_16x16x32_bf16 {vr(a4, 4)}, {vr(wf, 4)}, {vr(TF + 4 * (sig % 4), 4)}, {"0" if s < 2 else vr(a4, 4)}')
            else:
                k(f'v_mfma_f32_32x32x16_bf16 {vr(acc, 16)}, {vr(WF + 4 * s, 4)}, {vr(TF + 4 * (sig % 4), 4)}, {cop}')
            if sig in pissue and not self.o.get('x_nopoll'):
                base, nl, va = pissue[sig]
                L = self.only_wave(0)
                if base is not None:
                    self.poll_addr(base, nl, va)
                self.poll_issue(va, vPD, nl)
                k(f'{L}:')
            if sig % 8 == 3:
                if c in pcheck and not self.o.get('x_nopoll'):
                    cnt, nl, va = pcheck[c]
                    L = self.only_wave(0)
                    self.poll(va, vPD, cnt, preissued=True, nl=nl)
                    k(f'{L}:')
                w = [f'ch{c + 1}'] if c + 1 < 20 else ['resid']
                w += [f'act{tt}' for tt in pub_at.get(sig, [])]
                if w and not self.o.get('x_nowait'):
                    k.wait(*w)
                if not self.o.get('x_nobar') or c in (B2, B2 + 2):
                    k('s_barrier')
                for tt in pub_at.get(sig, []):
                    publish(tt)
                if c >= B2:
                    while issued < (20 if c >= B3 else 10) and issued <= c - 1 + NS:
                        dq += [lambda c=issued, i=i: self.g1_dma(c, i) for i in range(2)]
                        issued += 1
                if c in g2at and not self.o.get('x_nog2d'):
                    dq += [lambda j=j, i=i: self.g2_park(j, i) for j, i in g2at[c]]
            elif dq:
                dq.pop(0)()
            if sig + 4 < 160:
                rd(sig + 4)
            if sig >= 4 and grp and sig % 8 != 3:
                k.ins += grp.pop(0)
            if sig == self.o.get('cs_ld', 30) and not self.o.get('x_nocs'):
                self.cs_loads()
            if sig == self.o.get('cs_fin', 46) and not self.o.get('x_nocs'):
                self.cs_finish()
            if sig in wl:
                self.g2_wload(*wl[sig])
            tw = self.o.get('twd', 0)
            if tw and sig in (tw, tw + 16):
                k(f'''
                s_mul_i32 s55, {sr(sQ)}, 640
                s_mul_i32 s56, {sr(sW)}, 80
                s_add_u32 s55, s55, s56
                s_add_u32 s55, s55, {0 if sig == tw else 40}
                s_lshl_b32 s55, s55, 7
                s_add_u32 s55, s55, {WD}
                v_lshlrev_b32 v78, 7, v0
                s_mov_b32 exec_hi, 0xff
                buffer_load_dword v79, v78, {P4(rWS)}, s55 offen sc1
                s_mov_b32 exec_hi, -1
                ''')
            if sig == 140:
                self.resid_dma(76)
            if sig in stat_ld:
                tt = stat_ld[sig]
                if tt == 2:
                    k(f'v_add_u32 {vr(vSTA)}, 4096, {vr(vSTA)}')
                if not self.o.get('x_nostat'):
                    k(f'global_load_dword {vr(vST)}, {vr(vSTA)}, {P2(pWS)} offset:{2048 * (tt & 1)} sc1')
            for op in todo.get(sig, []):
                if not self.o.get('x_noepi'):
                    op()
            if sig % 40 == 39:
                self.stamp(f't{t}')
            if sig % 8 == 7 and sig < 80:
                self.stamp(f'c{sig // 8}')
        assert not dq
        for n in range(2):
            self.g2_lda(0, n)
        k.wait('park0', 'park6')
        k(f'v_add_u32 v76, s64, v4\nv_add_u32 v77, s60, v4\nv_add_u32 v78, s78, v4')
        for f in range(5):
            k(f'ds_read_b128 {vr(W2[0] + 4 * f, 4)}, v76 offset:{1024 * f}')
        for f in range(5):
            k(f'ds_read_b128 {vr(W2[6] + 4 * f, 4)}, v77 offset:{1024 * f}' if f < 4 else f'ds_read_b128 {vr(W2[6] + 16, 4)}, v78', tag='parkrd')
        rest = [(1 + n // 5, n % 5) for n in range(nd, 25)]
        ops = epi_ops(3)
        if self.o.get('tprio', 1):
            k('s_setprio 2')
        for op in ops[:3]:
            op()
        acc = ACC[1]
        T = lambda e: 32 + e
        for fmt in ('v_mul_f32 {t}, {g}, {g}', 'v_fma_f32 {t}, {t}, {k1}, {k2}', 'v_mul_f32 {t}, {t}, {g}', 'v_exp_f32 {t}, {t}',
                    'v_mul_f32 {u}, {u}, {g}', 'v_fma_f32 {t}, {t}, {s2}, {s2}', 'v_rcp_f32 {t}, {t}', 'v_mul_f32 {u}, {u}, {t}'):
            for e in range(8):
                k(fmt.format(t=vr(T(e)), g=vr(acc + e), u=vr(acc + 8 + e), k1=vr(K1), k2=vr(K2), s2=vr(S2)))
            if len(rest) > 10 - self.o.get('w2_tail', 0):
                self.g2_wload(*rest.pop(0))
        for p in range(4):
            k(f'v_cvt_pk_bf16_f32 {vr(OUTR + p)}, {vr(acc + 8 + 2 * p)}, {vr(acc + 9 + 2 * p)}')
        ops[-1]()
        k('s_setprio 0')
        self.stamp('g1end')
        if not self.o.get('hold', 0):
            for n in range(2, 4):
                self.g2_lda(0, n)
        self.resid_read()
        self.g2_rest = rest
        self.late_pub = pub_at.get(163, []) + [3]
        self.publish = publish

    def resid_dma(self, va=1):
        k = self.k
        k(f'''
        v_lshrrev_b32 v{va}, 2, v0
        v_mul_u32_u24 v{va}, {X1R}, v{va}
        v_and_b32 v{va + 1}, 3, v0
        v_lshl_add_u32 v{va}, v{va + 1}, 4, v{va}
        s_lshl_b32 s55, s86, 4
        s_add_u32 s55, s55, s87
        s_mul_i32 s55, s55, {X1R}
        s_lshl_b32 s56, s62, 7
        s_lshl_b32 s57, s90, 6
        s_add_u32 s56, s56, s57
        s_add_u32 s56, s56, {X1T}
        s_cmp_ge_u32 {sr(sW)}, 5
        s_cselect_b32 s57, 2048, 0
        s_add_u32 s55, s55, s56
        s_add_u32 s55, s55, s57
        s_lshl_b32 s57, {sr(sW)}, 10
        s_add_u32 m0, s57, {RESID}
        ''')
        k(f'buffer_load_dwordx4 v{va}, {P4(rWS)}, s55 offen sc1 lds', tag='resid')
        k(f'''
        s_add_u32 s55, {sr(sW)}, 3
        s_lshl_b32 s55, s55, 4
        s_add_u32 s55, s55, s87
        s_mul_i32 s55, s55, {X1R}
        s_add_u32 s55, s55, s56
        s_add_u32 s55, s55, 2048
        s_add_u32 m0, s57, {RESID + 8192}
        s_cmp_lt_u32 {sr(sW)}, 2
        s_cselect_b64 exec, -1, 0
        ''')
        k(f'buffer_load_dwordx4 v{va}, {P4(rWS)}, s55 offen sc1 lds', tag='resid')
        k('s_mov_b64 exec, -1')

    RESR = {(0, 0): 92, (0, 1): 94, (1, 0): 90, (1, 1): 6}

    def resid_read(self):
        for (h, p), r in self.RESR.items():
            self.k(f'ds_read_b64_tr_b16 {vr(r, 2)}, v{70 + p} offset:{5120 * h}', tag='parkrd')

    G2ORD = [0, 6, 1, 2, 3, 4, 5]

    def g2_af(self, h, n, tt):
        r = (2 * (7 * h + n) + tt) % 8
        return 16 + 4 * r if r < 4 else 236 + 4 * (r - 4)

    def g2_lda(self, h, n, only=None):
        k = self.k
        if self.o.get('y_noact') == h + 1 and n > 0:
            return
        so = 's3'
        k(f's_add_u32 s3, s83, {h * 32 * 108 * 1024 + n * 16384}' if n < 6 else f's_add_u32 s3, s77, {h * 32 * 108 * 1024}')
        for tt in (range(2) if only is None else [only]):
            k(f'buffer_load_dwordx4 {vr(self.g2_af(h, n, tt), 4)}, v64, {P4(rWS)}, {so} offen offset:{256 * tt} {self.o.get("actpol", "sc1")}')

    def g2(self):
        k = self.k
        ACC, GB = 24, 8
        acc = lambda t: 32 + 4 * t if t < 8 else 76 + 4 * (t - 8)
        k('L_g2:')

        def steps(h):
            q = [lambda i=i, f=f: self.g2_wload(i, f) for i, f in (self.g2_rest if h == 0 else [])]
            qa = [lambda n=n, tt=tt: self.g2_lda(h, n, tt) for n in range(4, 7) for tt in range(2)]
            need = {}
            ps = self.o.get('pub_step', 0)
            for n in range(7):
                i = self.G2ORD[n]
                L = None
                for tt in range(2):
                    for j in range(5):
                        a = acc(5 * tt + j)
                        c = '0' if n == 0 else vr(a, 4)
                        k(f'v_mfma_f32_16x16x32_bf16 {vr(a, 4)}, {vr(W2[i] + 4 * j, 4)}, {vr(self.g2_af(h, n, tt), 4)}, {c}')
                        if self.o.get('hold', 0) and h == 0 and n <= ps:
                            continue
                        if not L and j == 4 and qa:
                            qa.pop(0)()
                        elif not L and j in (0, 1, 2) and q:
                            q.pop(0)()
                if L:
                    k(f'{L}:')
                    for _ in range(2):
                        if qa:
                            qa.pop(0)()
                po = self.o.get('pub_step_o', 3)
                if h == 0 and n in (ps, po):
                    Ls = None
                    if ps != po:
                        Ls = k.label('pbs')
                        k(f's_cmp_{"lt" if n == ps else "ge"}_u32 {sr(sW)}, 4\ns_cbranch_scc1 {Ls}')
                    k.wait('parkrd', *[f'act{t}' for t in self.late_pub])
                    k('s_barrier')
                    if n == po:
                        Lh = k.label('hp')
                        k(f's_cmp_lt_u32 s2, 40\ns_cbranch_scc1 {Lh}')
                        for t in self.late_pub:
                            self.publish(t)
                        k(f'{Lh}:')
                    self.stamp('pub3')
                    if Ls:
                        k(f'{Ls}:')
                if h == 0 and n == 5:
                    k(f'global_load_dwordx4 v[8:11], v72, {P2(pWS)} sc1\nglobal_load_dwordx4 v[12:15], v73, {P2(pWS)} sc1')
                if h == 0 and n == 6:
                    L = self.only_wave(0)
                    self.poll_issue(65, 3, 1, off=2048)
                    k(f'{L}:')
            assert not q and not qa
            if h == 0:
                self.stamp('h0')
            for t in range(10):
                k(f'ds_write_b128 v{66 + t // 8}, {vr(acc(t), 4)} offset:{8192 * (t % 8)}', tag='pw')
            if h == 0:
                L = self.only_wave(0)
                self.poll(65, 3, 27, preissued=True, nl=1, off=2048, sleep=self.o.get('sleep3', 4))
                k(f'{L}:')
                k('v_add_u32 v66, 81920, v66\nv_add_u32 v67, 81920, v67')

        def finalize(h):
            R = {0: 32, 1: 48}
            if self.o.get('fprio', 0):
                k('s_setprio 2')
            for half in range(2):
                for p in range(2):
                    for w in range(4):
                        dst = (R[p] if half == 0 else (76 if p == 0 else 252)) if w == 0 and half == 1 else R[p] + 4 * w
                        k(f'ds_read_b128 {vr(dst, 4)}, v{68 + p} offset:{1024 * (4 * half + w)}', tag='fin')
                if half == 0:
                    if h == 0:
                        self.g2_lda(1, 2)
                    for p in range(2):
                        for a, b in ((0, 1), (2, 3), (0, 2)):
                            for e in (0, 2):
                                k(f'v_pk_add_f32 {vr(R[p] + 4 * a + e, 2)}, {vr(R[p] + 4 * a + e, 2)}, {vr(R[p] + 4 * b + e, 2)}')
            if h == 0:
                self.g2_lda(1, 3)
            for p in range(2):
                x = 76 if p == 0 else 252
                for a, b in ((x, R[p] + 4), (R[p] + 8, R[p] + 12), (R[p], x), (R[p], R[p] + 8)):
                    for e in (0, 2):
                        k(f'v_pk_add_f32 {vr(a + e, 2)}, {vr(a + e, 2)}, {vr(b + e, 2)}')
                for e in range(4):
                    g, t = GB + 4 * p + e, R[p] + 4 + e
                    if h == 0:
                        k(f'v_and_b32 {vr(g)}, 0xffff0000, {vr(g)}')
                    k(f'v_lshlrev_b32 {vr(t)}, 16, {vr(self.RESR[h, p] + e // 2)}' if e % 2 == 0 else f'v_and_b32 {vr(t)}, 0xffff0000, {vr(self.RESR[h, p] + e // 2)}')
                    k(f'v_fmac_f32 {vr(t)}, {vr(R[p] + e)}, {vr(g)}')
                o = 84 if p == 0 else 88
                k(f'v_cvt_pk_bf16_f32 v{o}, {vr(R[p] + 4)}, {vr(R[p] + 5)}\nv_cvt_pk_bf16_f32 v{o + 1}, {vr(R[p] + 6)}, {vr(R[p] + 7)}')
                if p == 1:
                    k('s_mov_b64 exec, 0xffff')
                k(f'global_store_dwordx2 v{74 + p}, v[{o}:{o + 1}], {P2(pOUT)} {self.o.get("outpol", "")}')
                if p == 1:
                    k('s_mov_b64 exec, -1')
            k('s_setprio 0')
            if h == 0:
                k(f'v_add_u32 v74, {1024 * 1280}, v74\nv_add_u32 v75, {1024 * 1280}, v75\nv_add_u32 v68, 81920, v68\nv_add_u32 v69, 81920, v69')

        steps(0)
        k.wait('pw')
        k('s_barrier')
        self.stamp('s3')
        for n in range(2):
            self.g2_lda(1, n)
        finalize(0)
        if self.o.get('wb2'):
            L = self.only_wave(7)
            k(f's_lshr_b32 s55, s2, 3\ns_and_b32 s55, s55, {self.o["wb2"] - 1}\ns_cmp_lg_u32 s55, 0\ns_cbranch_scc1 {L}\nbuffer_wbl2 sc1')
            k(f'{L}:')
        self.stamp('f0')
        steps(1)
        self.stamp('g2m')
        k.wait('pw')
        k('s_barrier')
        finalize(1)
        self.stamp('end')

    def strip_reduce(self, nval, V, RED):
        k = self.k
        n = nval
        for i in range(n // 2):
            k(f'v_permlane32_swap_b32 {vr(V + i)}, {vr(V + n // 2 + i)}')
        for i in range(n // 2):
            k(f'v_add_f32 {vr(V + i)}, {vr(V + i)}, {vr(V + n // 2 + i)}')
        n //= 2
        for i in range(n // 2):
            k(f'v_permlane16_swap_b32 {vr(V + i)}, {vr(V + n // 2 + i)}')
        for i in range(n // 2):
            k(f'v_add_f32 {vr(V + i)}, {vr(V + i)}, {vr(V + n // 2 + i)}')
        n //= 2
        for i in range(n):
            k(f'v_add_f32_dpp {vr(V + i)}, {vr(V + i)}, {vr(V + i)} row_ror:8 row_mask:0xf bank_mask:0xf')
        q = nval // 4
        k(f'''
        v_lshrrev_b32 v8, 4, v0
        v_mul_u32_u24 v8, {q}, v8
        v_and_b32 v9, 7, v8
        v_lshrrev_b32 v8, 3, v8
        v_lshl_add_u32 v9, v8, 6, v9
        v_and_b32 v8, 7, v0
        v_lshl_add_u32 v9, v8, 3, v9
        s_mul_i32 s55, {sr(sW)}, {8 * nval}
        v_add_u32 v9, s55, v9
        v_lshlrev_b32 v9, 2, v9
        s_mov_b32 exec_lo, 0x00ff00ff
        s_mov_b32 exec_hi, 0x00ff00ff
        ''')
        if q == 2:
            k(f'ds_write_b64 v9, {vr(V, 2)} offset:{RED}', tag='redw')
        else:
            k(f'ds_write_b128 v9, {vr(V, 4)} offset:{RED}', tag='redw')
        k('s_mov_b64 exec, -1')
        k.wait('redw')
        k('s_barrier')

    def mod_and_wd(self):
        k = self.k
        k(f'''
        s_cmp_lt_u32 s2, 14
        s_cselect_b32 s76, 2, 1
        s_mov_b32 s75, s2
        s_mul_i32 s72, {sr(sW)}, 5120
        s_mul_i32 s71, s75, 40960
        s_add_u32 s71, s71, s72
        s_add_u32 s72, s72, 8192
        v_lshlrev_b32 v21, 4, v0
        ''')
        self.mod_partial()
        if self.o.get('wdlate'):
            L = self.only_wave(0)
            self.poll_sync1(215, 58)
            k(f'{L}:')
        k('s_barrier')
        for i in range(10):
            k(f'''
            s_cmp_ge_u32 s76, {1 + i // 5}
            s_cselect_b64 exec, -1, 0
            s_mov_b32 m0, s72
            s_add_u32 s72, s72, {1024 if i != 4 else 40960 - 4096}
            ''')
            k(f'buffer_load_dwordx4 v21, {P4(rB)}, s71 offen {self.o["nt"]} lds', tag='wdl')
            k(f's_mov_b64 exec, -1\ns_add_u32 s71, s71, {1024 if i != 4 else 40 * 40960 - 4096}')
        L = self.only_wave(0)
        self.poll_sync1(215, 58)
        Lr, Ld = k.label('fr'), k.label('fd')
        k(f'''
        s_cmp_ge_u32 s2, 30
        s_cbranch_scc1 {L}
        s_add_u32 s55, s2, 30
        s_lshl_b32 s56, s55, 11
        s_add_u32 s56, s56, {MODP}
        v_lshl_add_u32 v8, v0, 2, s56
        {Lr}:
        ''')
        for e in range(8):
            k(f'global_load_dword {vr(32 + e)}, v8, {P2(pWS)} offset:{256 * e} sc1')
        k(f'''
        v_min3_u32 v40, v32, v33, v34
        v_min3_u32 v40, v40, v35, v36
        v_min3_u32 v40, v40, v37, v38
        v_min_u32 v40, v40, v39
        v_cmp_eq_u32 vcc, 0, v40
        s_cbranch_vccz {Ld}
        s_sleep {self.o.get('sleep', 2)}
        s_add_u32 {sr(sSPIN)}, {sr(sSPIN)}, 1
        s_cmp_lt_u32 {sr(sSPIN)}, {SPIN_MAX}
        s_cbranch_scc1 {Lr}
        {Ld}:
        v_add_f32 v32, v32, v36
        v_add_f32 v33, v33, v37
        v_add_f32 v34, v34, v38
        v_add_f32 v35, v35, v39
        v_add_f32 v32, v32, v33
        v_add_f32 v34, v34, v35
        v_add_f32 v32, v32, v34
        v_cvt_pk_bf16_f32 v32, v32, v32
        v_and_b32 v32, 0xffff0000, v32
        v_or_b32 v32, 1, v32
        s_lshl_b32 s55, s55, 8
        s_add_u32 s55, s55, {MOD}
        v_lshlrev_b32 v8, 2, v0
        buffer_store_dword v32, v8, {P4(rWS)}, s55 offen sc1
        ''')
        self.stamp('h_mod')
        k(f'{L}:')
        Lw, Lwd = k.label('wdl'), k.label('wdd')
        k(f'''
        v_lshrrev_b32 v9, 5, v0
        v_lshlrev_b32 v9, 4, v9
        v_bfe_u32 v10, v0, 2, 3
        v_add_u32 v9, v9, v10
        v_mul_u32_u24 v9, 1280, v9
        v_and_b32 v10, 3, v0
        v_lshl_add_u32 v9, v10, 3, v9
        s_mul_i32 s56, {sr(sW)}, 160
        v_add_u32 v9, s56, v9
        s_mul_i32 s55, {sr(sW)}, {54 * 5120}
        s_mul_i32 s56, s75, 5120
        s_add_u32 s55, s55, s56
        s_add_u32 s55, s55, {WD}
        s_waitcnt vmcnt(0)
        s_barrier
        s_cmp_eq_u32 s76, 0
        s_cbranch_scc1 {Lwd}
        {Lw}:
        ''')
        for j in range(5):
            k(f'ds_read_b64_tr_b16 {vr(32 + 4 * j, 2)}, v9 offset:{8192 + 32 * j}')
            k(f'ds_read_b64_tr_b16 {vr(34 + 4 * j, 2)}, v9 offset:{8192 + 32 * j + 8 * 1280}')
        k('s_add_u32 s56, s55, 4096')
        for j in range(5):
            k(f'buffer_store_dwordx4 {vr(32 + 4 * j, 4)}, v21, {P4(rWS)}, s{55 + j // 4} offen offset:{1024 * (j % 4)} sc1')
        k(f'''
        s_add_u32 s55, s55, {40 * 5120}
        v_add_u32 v9, 40960, v9
        s_sub_u32 s76, s76, 1
        s_cmp_lg_u32 s76, 0
        s_cbranch_scc1 {Lw}
        {Lwd}:
        s_waitcnt vmcnt(0)
        s_barrier
        ''')

    def stats_job(self):
        k = self.k
        LD, V = 96, 32
        k(f'''
        v_lshrrev_b32 v8, 3, v0
        s_mul_i32 s55, {sr(sW)}, 80
        v_add_u32 v8, s55, v8
        v_mul_u32_u24 v8, {X1R}, v8
        v_and_b32 v10, 7, v0
        v_lshl_add_u32 v8, v10, 4, v8
        s_lshl_b32 s55, s2, 7
        s_add_u32 s55, s55, {X1T}
        ''')
        for i in range(10):
            k(f'buffer_load_dwordx4 {vr(LD + 4 * i, 4)}, v8, {P4(rWS)}, s55 offen sc1')
            if i < 9:
                k(f's_add_u32 s55, s55, {8 * X1R}')
        for i in range(10):
            for j in range(4):
                r = LD + 4 * i + j
                if i == 0:
                    k(f'''
                    v_lshlrev_b32 {vr(V + 2 * j)}, 16, {vr(r)}
                    v_and_b32 {vr(V + 2 * j + 1)}, 0xffff0000, {vr(r)}
                    v_mul_f32 {vr(V + 8 + 2 * j)}, {vr(V + 2 * j)}, {vr(V + 2 * j)}
                    v_mul_f32 {vr(V + 9 + 2 * j)}, {vr(V + 2 * j + 1)}, {vr(V + 2 * j + 1)}
                    ''')
                else:
                    k(f'''
                    v_lshlrev_b32 v11, 16, {vr(r)}
                    v_and_b32 v12, 0xffff0000, {vr(r)}
                    v_add_f32 {vr(V + 2 * j)}, {vr(V + 2 * j)}, v11
                    v_add_f32 {vr(V + 2 * j + 1)}, {vr(V + 2 * j + 1)}, v12
                    v_fmac_f32 {vr(V + 8 + 2 * j)}, v11, v11
                    v_fmac_f32 {vr(V + 9 + 2 * j)}, v12, v12
                    ''')
        self.strip_reduce(16, V, 0)
        L = self.only_wave(0)
        k('v_lshlrev_b32 v8, 2, v0')
        for w in range(8):
            k(f'ds_read2st64_b32 {vr(V + 2 * w, 2)}, v8 offset0:{2 * w} offset1:{2 * w + 1}')
        for w in range(1, 8):
            k(f'v_add_f32 {vr(V)}, {vr(V)}, {vr(V + 2 * w)}')
            k(f'v_add_f32 {vr(V + 1)}, {vr(V + 1)}, {vr(V + 2 * w + 1)}')
        k(f'''
        v_mul_f32 v10, {f32(1.0 / 640)}, {vr(V)}
        v_mul_f32 v11, {f32(1.0 / 640)}, {vr(V + 1)}
        v_fma_f32 v11, -v10, v10, v11
        v_max_f32 v11, 0, v11
        v_cvt_pk_bf16_f32 v11, v11, v11
        v_lshlrev_b32 v11, 16, v11
        v_add_f32 v11, {f32(1e-5)}, v11
        v_cvt_pk_bf16_f32 v11, v11, v11
        v_lshlrev_b32 v11, 16, v11
        v_sqrt_f32 v11, v11
        v_cvt_pk_bf16_f32 v10, v10, v11
        s_lshl_b32 s55, s2, 8
        s_add_u32 s55, s55, {STATS}
        buffer_store_dword v10, v8, {P4(rWS)}, s55 offen sc1
        {L}:
        s_barrier
        ''')

    def helper(self):
        k = self.k
        k('L_helper:')
        self.srd(rB, pWD, 1728 * 640 * 2)
        self.mod_and_wd()
        L = self.only_wave(0)
        k('s_and_b32 s55, s2, 3')
        self.arrive(SYNCW, 4, 's55', 16)
        k(f'{L}:')
        self.stamp('h_wd')
        if self.o['stop'] in ('A', 'kgen'):
            k('s_branch L_fin')
            return
        Lns = k.label('nostat')
        Lb, Lp = k.label('lateb'), k.label('polled')
        L = self.only_wave(0)
        k(f's_cmp_ge_u32 s2, {16 if self.o.get("s2c", 0) else 8}\ns_cbranch_scc1 {Lb}')
        self.poll_addr(SYNC2A, 24, 16)
        k(f's_lshr_b32 s55, s2, 3\ns_mul_i32 s55, s55, {SYNC2C - SYNC2A}\nv_add_u32 v16, s55, v16')
        self.poll(16, 17, 27, nl=24, sleep=self.o.get('hsleep', 4))
        k(f's_branch {Lp}\n{Lb}:')
        self.poll_addr(SYNC2B, 24, 16)
        self.poll(16, 17, 9, nl=24, sleep=self.o.get('hsleep', 4))
        k(f'{Lp}:\n{L}:')
        k('s_barrier')
        self.stamp('s2a')
        k(f's_cmp_ge_u32 s2, 32\ns_cbranch_scc1 {Lns}')
        self.stats_job()
        k(f'{Lns}:')
        self.stamp('h_stat')
        if self.o['stop'] in ('conv', 'g1'):
            k('s_branch L_fin')
            return
        L = self.only_wave(0)
        self.poll_addr(SYNC2B, 24, 16)
        self.poll(16, 17, 9, nl=24, sleep=self.o.get('hsleep', 4))
        self.poll_addr(SYNCW, 4, 16)
        self.poll(16, 17, 10, nl=4)
        k(f'{L}:')
        k('s_barrier')
        self.g2_setup()
        self.g2_addr()
        for i in range(7):
            for f in range(5):
                self.g2_wload(i, f)
        self.resid_dma()
        L = self.only_wave(0)
        self.poll(65, 3, 27, nl=1, sleep=self.o.get('hsleep3', 8))
        k(f'{L}:')
        k('s_waitcnt vmcnt(0)\ns_barrier')
        self.resid_read()
        if self.o.get('hpf', 0):
            k(f'''
            s_lshl_b32 s55, s61, 3
            s_add_u32 s55, s55, {sr(sW)}
            v_lshlrev_b32 v1, 7, v0
            s_min_u32 s56, s55, 29
            s_mul_i32 s57, s56, 0x199a
            s_lshr_b32 s57, s57, 16
            s_mul_i32 s58, s57, 10
            s_sub_u32 s56, s56, s58
            s_add_u32 s57, s57, 5
            s_mul_i32 s57, s57, {54 * 5120}
            s_lshl_b32 s56, s56, 13
            s_add_u32 s56, s56, s57
            s_add_u32 s56, s56, {WD + 5 * 40960}
            buffer_load_dword v79, v1, {P4(rWS)}, s56 offen sc1
            s_lshl_b32 s57, {sr(sMB)}, 1
            s_add_u32 s57, s57, 1
            s_mul_i32 s57, s57, {108 * 1024}
            s_add_u32 s57, s57, {ACT}
            s_min_u32 s56, s55, 13
            s_lshl_b32 s56, s56, 13
            s_add_u32 s56, s56, s57
            s_cmp_lt_u32 s55, 14
            s_cselect_b64 exec, -1, 0
            buffer_load_dword v79, v1, {P4(rWS)}, s56 offen sc1
            s_mov_b64 exec, -1
            ''')
            L = self.only_wave(0)
            self.poll(65, 3, 27, nl=1, sleep=8, off=1024)
            k(f'''
            {L}:
            s_barrier
            s_add_u32 s57, s57, {15 * 108 * 1024}
            s_min_u32 s56, s55, 26
            s_lshl_b32 s56, s56, 13
            s_add_u32 s56, s56, s57
            s_cmp_lt_u32 s55, 27
            s_cselect_b64 exec, -1, 0
            buffer_load_dword v79, v1, {P4(rWS)}, s56 offen sc1
            s_mov_b64 exec, -1
            s_waitcnt vmcnt(0)
            ''')
        for n in range(2):
            self.g2_lda(0, n)
        for _ in range(1 + self.o.get('w2_tail', 0)):
            k(f'global_load_dword v79, v72, {P2(pWS)} sc1')
        if not self.o.get('hold', 0):
            for n in range(2, 4):
                self.g2_lda(0, n)
        k('s_branch L_g2')

    def build(self):
        k = self.k
        stop = self.o['stop']
        self.prologue()
        self.early_addresses(0 if self.o.get('esplit') else None)
        self.ln1()
        k('s_cmp_lt_u32 s2, 40\ns_cbranch_scc1 L_helper')
        while True:
            if stop == 'A':
                break
            self.kgen()
            if self.o.get('mp_early', 2) == 2:
                self.mod_partial()
            self.stamp('kgen')
            self.kexpand1()
            self.conv(setup_only=True)
            self.stamp('kexp')
            if self.o.get('mp_early', 2) == 1:
                self.mod_partial()
            self.conv_loads()
            if not self.o.get('mp_early', 2):
                self.mod_partial()
            self.kexpand2()
            self.wstage_read(0, 213)
            if stop == 'kgen':
                self.dump_k()
                break
            self.conv()
            self.window2()
            if stop == 'conv':
                break
            self.g1()
            if stop == 'g1':
                break
            self.g2()
            break
        k('L_fin:')
        if self.o.get('diag_T'):
            k(f'''
            L_dt:
            s_memrealtime s[96:97]
            s_waitcnt lgkmcnt(0)
            s_sub_u32 s96, s96, s94
            s_cmp_lt_u32 s96, {self.o['diag_T']}
            s_cbranch_scc1 L_dt
            ''')
        k(f'''
        s_or_b32 s3, s2, {sr(sW)}
        s_cmp_lg_u32 s3, 0
        s_cbranch_scc1 L_nogen
        v_mov_b32 v8, {GEN}
        v_mov_b32 v9, {sr(sTAG)}
        s_mov_b64 exec, 1
        global_store_dword v8, v9, {P2(pWS)} sc1
        s_mov_b64 exec, -1
        L_nogen:
        ''')
        self.stamp_flush()
        k('s_endpgm')
        self.helper()
        k('L_end:\ns_endpgm')
        body = k.text()
        hdr = open('adaLN_cond__ssm_conv_s4d__geglu_ffn__prompt.s.ref').read().split('; Override')[0]
        form = f'kernel={NAME} ' if self.o.get('listform', 1) else ''
        return hdr + f'''; @launch {form}grid=(256,1,1) block=(512,1,1) lds={LDS_BYTES}
;
; One persistent launch, one workgroup (8 waves) per CU; generated by a script from hand-written templates.
;   phase A  every workgroup: LayerNorm-1 of 8 tokens, transposed into the workspace; partial sums of silu(c) @ w_mod
;   phase K  workgroups 40..255 (3 channels each): S4D kernel at the 641 distinct bf16 positions as a Vandermonde
;            product on MFMA, expanded to 2048 lags, plus its prefix sums
;   phase B  causal convolution as polyphase Toeplitz MFMA, modulation / skip / residual in the epilogue
;   phase G1 gate/up GEMM with the weight panel resident in registers, LayerNorm-2 folded in as one extra k-step, GEGLU
;   phase G2 down GEMM (K split over the waves), gate and residual
;   workgroups 0..39 finish the modulation vector, re-lay W_down and compute the LayerNorm-2 statistics
; Hand-offs between workgroups: write-through stores, drained, then a flag / counter; consumers read past L1.
; The first barrier uses flags tagged with a generation word, every later flag is cleared before that barrier.
.amdgcn_target "amdgcn-amd-amdhsa--gfx950"
.text
.globl {NAME}
.p2align 8
.type {NAME},@function
{NAME}:
{body}.section .rodata,"a"
.p2align 6
.amdhsa_kernel {NAME}
  .amdhsa_next_free_vgpr 256
  .amdhsa_next_free_sgpr 102
  .amdhsa_accum_offset 256
  .amdhsa_group_segment_fixed_size 0
  .amdhsa_kernarg_size 128
  .amdhsa_user_sgpr_count 2
  .amdhsa_user_sgpr_kernarg_segment_ptr 1
  .amdhsa_system_sgpr_workgroup_id_x 1
.end_amdhsa_kernel
'''

    def dump_k(self):
        k = self.k
        k.wait('saw')
        k('s_barrier')
        k(f's_lshl_b32 s55, {sr(sW)}, 6\nv_add_u32 v8, s55, v0\nv_lshlrev_b32 v9, 3, v8\nv_lshlrev_b32 v10, 4, v8')
        for ch in range(3):
            k(f'''
            ds_read_b64 v[12:13], v9 offset:{KA + ch * KAS + 32}
            ds_read_b128 v[16:19], v10 offset:{SA + ch * SAS}
            s_add_u32 s55, {sr(sD0)}, {ch}
            s_lshl_b32 s56, s55, 12
            s_add_u32 s56, s56, {X1T}
            s_lshl_b32 s57, s55, 13
            s_add_u32 s57, s57, {ACT}
            buffer_store_dwordx2 v[12:13], v9, {P4(rWS)}, s56 offen
            buffer_store_dwordx4 v[16:19], v10, {P4(rWS)}, s57 offen
            s_waitcnt vmcnt(0)
            ''')


LAST = None
def generate(**opt):
    global LAST
    LAST = Gen(opt)
    return LAST.build()


if __name__ == '__main__':
    opt = {}
    for a in sys.argv[2:]:
        kx, v = a.split('=')
        opt[kx] = eval(v)
    open(sys.argv[1], 'w').write(generate(**opt))
```

```python
import sys, math
from asmgen import Kern, vr, sr, f32

NAME = 'adaLN_cond__ssm_conv_s4d__geglu_ffn__prompt_kernel'

SYNC1 = 0x0
GEN = 0x22000
MS = 0x1E000
SYNC2A, SYNC2B, SYNCW, SYNC3, SYNC2C = 0x8000, 0xE000, 0x14000, 0x15000, 0x18000
MODP = 0xC0000
MOD, STATS = 0x24000, 0x16000
ZBEG, ZEND = 0x8000, 0x1E000
STAMP = 0x30000
CSP = 0x3C0000
XN, XT, X1T, X1S, WD, ACT = 0x100000, 0x400000, 0x700000, 0xA00000, 0xD00000, 0x1000000
XNS, X1R = 10240 + 128, 4096 + 128
KG, KGS = 0, 4608
XNL0, MSL = 1696, 13984
KA, KAS = 27648, 4128
SA, SAS = 40032, 8192
TR, TRR, TRM = 40032, 1344, 10752
WT = 81408
KC, KCS = 51200, 3840
GA = 204
TAB, EXC = 78336, 10240
STG = 81920
RING, NS = 16384, 5
PARK0, PARK6A, PARK6B, PARK7 = 122880, 98304, 0, 118784
RESID, PART = 16384, 0
W2 = {1: 96, 2: 116, 3: 136, 4: 156, 5: 176, 0: 196, 6: 216}
sOW = {0: 70, 6: 71, 1: 72, 2: 73, 3: 74, 4: 75, 5: 76}
sOA = {0: 94, 6: 95, 1: 96, 2: 97, 3: 98, 4: 99, 5: 77}
LDS_BYTES = 163840
pX, pLA, pAI, pCR, pCI, pDT, pDS, pWG, pWU, pWD, pC, pWM, pOUT, pDBG, pWS = 4, 6, 8, 10, 12, 14, 16, 20, 22, 24, 26, 28, 30, 32, 34
sW, sI, sPC = 36, 37, 38
rWS, rA, rB = 40, 44, 48
sD0, sMB, sNB = 52, 53, 54
sT = 55
sCH = 70
sSPIN = 79
sST = 80
sFLAG = 82
sWL, sWO, sWI, sWR = 86, 87, 88, 89
sQ, sM1, sTAG = 91, 92, 93
P2 = lambda r: sr(r, 2)
P4 = lambda r: sr(r, 4)
WF = 96
SPIN_MAX = 400000

LOG2E = 1.4426950408889634


class Gen:
    def __init__(self, opt):
        self.o = dict(stop=None, stamps=False, nt='nt')
        self.o.update(opt)
        self.k = Kern()
        self.nst = 0

    def stamp(self, name, vt=None):
        if self.o.get('jitter') and name != 'start':
            self.nst += 1
            L, k = self.k.label('jit'), self.k
            mul = (self.o['jitter'] * 2654435761 + self.nst * 40503 * 7919) % (1 << 31) | 1
            k(f'''
            s_getreg_b32 s85, hwreg(HW_REG_STATUS)
            s_lshl_b32 s84, s2, 3
            s_add_u32 s84, s84, {sr(sW)}
            s_add_u32 s84, s84, {self.nst * 37}
            s_mul_i32 s84, s84, {mul}
            s_lshr_b32 s84, s84, 13
            s_mul_i32 s84, s84, {mul}
            s_lshr_b32 s84, s84, 20
            s_and_b32 s80, s84, 7
            s_cmp_eq_u32 s80, 0
            s_cselect_b32 s80, {self.o.get('jmax', 63)}, 3
            s_lshr_b32 s84, s84, 3
            s_and_b32 s84, s84, s80
            {L}:
            s_sleep 1
            s_sub_u32 s84, s84, 1
            s_cmp_gt_i32 s84, 0
            s_cbranch_scc1 {L}
            s_bitcmp1_b32 s85, 0
            ''')
            return
        if not self.o['stamps']:
            return
        if isinstance(self.o['stamps'], (list, tuple)) and name not in self.o['stamps']:
            return
        names = self.o.setdefault('stamp_names', [])
        if name not in names:
            names.append(name)
        idx = names.index(name)
        assert idx < 32, names
        self.k(f'''
        s_memrealtime {sr(sST, 2)}
        s_memtime s[84:85]
        s_waitcnt lgkmcnt(0)
        v_writelane_b32 v87, {sr(sST)}, {idx}
        v_writelane_b32 v87, s84, {32 + idx}
        ''')

    def stamp_flush(self):
        if not self.o['stamps']:
            return
        self.k(f'''
        s_lshl_b32 s3, s2, 3
        s_add_u32 s3, s3, {sr(sW)}
        s_lshl_b32 s3, s3, 8
        s_add_u32 s3, s3, {STAMP}
        v_lshl_add_u32 v86, v0, 2, s3
        global_store_dword v86, v87, {P2(pWS)}
        ''')

    def arrive(self, base, nshard, shard_sreg, vt):
        k = self.k
        k(f'''
        s_lshl_b32 s3, {shard_sreg}, 7
        s_add_u32 s3, s3, {base}
        v_mul_u32_u24 {vr(vt)}, {128 * nshard}, v0
        v_add_u32 {vr(vt)}, s3, {vr(vt)}
        v_mov_b32 {vr(vt + 1)}, 1
        s_mov_b64 exec, 0xff
        global_atomic_add {vr(vt)}, {vr(vt + 1)}, {P2(pWS)} sc1
        s_mov_b64 exec, -1
        ''')

    def poll_addr(self, base, nshard, va):
        k = self.k
        k(f'''
        s_and_b32 s3, s2, 7
        s_mul_i32 s3, s3, {128 * nshard}
        s_add_u32 s3, s3, {base}
        v_min_u32 {vr(va)}, {nshard - 1}, v0
        v_lshlrev_b32 {vr(va)}, 7, {vr(va)}
        v_add_u32 {vr(va)}, s3, {vr(va)}
        ''')

    def poll_issue(self, va, vd, nl, off=0):
        k = self.k
        if nl and self.o.get('apoll', 1):
            k(f'''
            v_mov_b32 {vr(vd)}, 0
            s_mov_b64 exec, {hex((1 << nl) - 1)}
            global_atomic_add {vr(vd)}, {vr(va)}, {vr(vd)}, {P2(pWS)} offset:{off} sc0 sc1
            s_mov_b64 exec, -1
            ''')
        else:
            k(f'global_load_dword {vr(vd)}, {vr(va)}, {P2(pWS)} offset:{off} sc1')

    def poll(self, va, vd, count, preissued=False, off=0, nl=0, sleep=None):
        k = self.k
        L, D = k.label('poll'), k.label('polld')
        ap = nl and self.o.get('apoll', 1)

        def check():
            k(f'v_cmp_gt_u32 vcc, {count}, {vr(vd)}')
            if ap:
                k(f's_and_b32 vcc_lo, vcc_lo, {hex((1 << nl) - 1)}\ns_cbranch_scc0 {D}')
            else:
                k(f's_cbranch_vccz {D}')
        if not preissued:
            self.poll_issue(va, vd, nl, off)
        check()
        k(f'{L}:')
        k(f's_sleep {self.o.get("sleep", 2) if sleep is None else sleep}')
        self.poll_issue(va, vd, nl, off)
        check()
        k(f'''
        s_add_u32 {sr(sSPIN)}, {sr(sSPIN)}, 1
        s_cmp_lt_u32 {sr(sSPIN)}, {SPIN_MAX}
        s_cbranch_scc1 {L}
        {D}:
        ''')

    def srd(self, r, ptr, size):
        self.k(f'''
        s_mov_b32 {sr(r)}, {sr(ptr)}
        s_and_b32 {sr(r + 1)}, {sr(ptr + 1)}, 0xffff
        s_mov_b32 {sr(r + 2)}, {size}
        s_mov_b32 {sr(r + 3)}, 0x20000
        ''')

    def only_wave(self, w):
        L = self.k.label('ow')
        self.k(f's_cmp_lg_u32 {sr(sW)}, {w}\ns_cbranch_scc1 {L}')
        return L

    def prologue(self):
        k = self.k
        k(f'''
        s_cmp_ge_u32 s2, 256
        s_cbranch_scc1 L_end
        s_load_dwordx16 s[4:19], s[0:1], 0
        s_load_dwordx16 s[20:35], s[0:1], 64
        s_getpc_b64 {P2(sPC)}
        L_pc:
        v_lshrrev_b32 v1, 6, v0
        v_and_b32 v0, 63, v0
        v_readfirstlane_b32 {sr(sW)}, v1
        s_mov_b32 {sr(sSPIN)}, 0
        ''')
        if self.o.get('diag_T'):
            k('s_memrealtime s[94:95]')
        if self.o.get('diag_alu'):
            k(f's_mov_b32 s3, {self.o["diag_alu"]}\nL_da:')
            for _ in range(100):
                k('v_add_u32 v1, v1, v1')
            k('s_sub_u32 s3, s3, 1\ns_cmp_lg_u32 s3, 0\ns_cbranch_scc1 L_da')
        if self.o['stamps']:
            k('v_mov_b32 v87, 0')
        def code_pf():
            L = k.label('pf')
            mode = self.o.get('cpf', 0)
            if mode == 9:
                return
            if mode in (0, 1):
                k(f'''
                s_lshr_b32 s3, s2, 3
                s_and_b32 s3, s3, 7
                s_cmp_eq_u32 {sr(sW)}, 0
                s_cselect_b32 s56, 0, s3
                ''')
            else:
                k(f's_lshr_b32 s3, s2, 3\ns_and_b32 s56, s3, 7')
            k(f'''
            s_cmp_eq_u32 {sr(sW)}, s56
            s_cbranch_scc0 {L}
            s_lshl_b32 s3, {sr(sW)}, 13
            v_lshlrev_b32 v82, 7, v0
            v_add_u32 v82, s3, v82
            v_min_u32 v82, L_end-L_pc, v82
            global_load_dword v83, v82, {P2(sPC)}
            {L}:
            ''')
        if self.o.get('cpf', 0) in (0, 2):
            code_pf()
        k(f'''
        s_lshl_b32 s3, s2, 3
        s_add_u32 s3, s3, {sr(sW)}
        s_mul_i32 s3, s3, 1280
        v_lshl_add_u32 v2, v0, 4, s3
        v_lshl_add_u32 v3, v0, 2, s3
        s_sub_u32 {sr(sI)}, s2, 40
        s_and_b32 {sr(sMB)}, s2, 7
        s_lshr_b32 {sr(sQ)}, {sr(sI)}, 3
        s_mul_i32 s3, {sr(sMB)}, 27
        s_add_u32 s3, s3, {sr(sQ)}
        s_lshr_b32 {sr(sNB)}, s3, 3
        s_and_b32 {sr(sM1)}, s3, 7
        s_mul_i32 s3, s3, 3
        s_min_u32 {sr(sD0)}, s3, 637
        s_min_u32 s55, {sr(sW)}, 5
        s_lshl_b32 s56, {sr(sD0)}, 1
        s_add_u32 s56, s56, s55
        s_lshl_b32 s56, s56, 7
        v_lshl_add_u32 v18, v0, 1, s56
        s_lshr_b32 s55, s55, 1
        s_add_u32 s55, s55, {sr(sD0)}
        s_lshl_b32 s55, s55, 1
        v_mov_b32 v19, s55
        v_min_u32 v17, 2, v0
        v_add_u32 v17, {sr(sD0)}, v17
        v_lshlrev_b32 v17, 1, v17
        ''')
        if self.o.get('wsoff'):
            k(f's_add_u32 s{pWS}, s{pWS}, {self.o["wsoff"] << 20}\ns_addc_u32 s{pWS + 1}, s{pWS + 1}, 0')
        self.stamp('start')
        if self.o.get('chase'):
            ptr, stride = self.o.get('chase_ptr', 18), self.o.get('chase_stride', 256 * 512)
            k(f's_lshl_b32 s55, s2, 9\nv_mov_b32 v10, s55')
            for i in range(self.o['chase']):
                k(f'''
                global_load_dword v11, v10, {P2(ptr)}
                v_and_b32 v11, 0, v11
                v_add_u32 v10, {stride}, v10
                v_add_u32 v10, v11, v10
                ''')
            self.stamp('chase')
        k(f'''
        global_load_dwordx4 v[92:95], v2, {P2(pX)} {self.o['nt']}
        global_load_dword v91, v3, {P2(pX)} offset:1024 {self.o['nt']}
        s_load_dword {sr(sTAG)}, {P2(pWS)}, {GEN}
        ''')
        if self.o.get('cpf', 0) in (1, 3):
            code_pf()
        L, Lh = k.label('nokl'), k.label('hc')
        k(f'''
        s_lshl_b32 s68, s2, 1
        s_and_b32 s55, {sr(sW)}, 1
        s_add_u32 s68, s68, s55
        s_min_u32 s68, s68, 479
        s_and_b32 s55, s68, 7
        s_mul_i32 s55, s55, 80
        v_lshrrev_b32 v20, 3, v0
        v_mul_u32_u24 v20, 10, v20
        v_add_u32 v20, s55, v20
        s_cmp_lt_u32 {sr(sW)}, 6
        s_cbranch_scc1 {Lh}
        v_lshlrev_b32 v21, 1, v20
        global_load_dwordx4 v[160:163], v21, {P2(pC)}
        global_load_dword v164, v21, {P2(pC)} offset:16
        v_mul_u32_u24 v20, 7680, v20
        v_and_b32 v21, 7, v0
        v_lshl_add_u32 v20, v21, 4, v20
        s_lshr_b32 s55, s68, 3
        s_lshl_b32 s55, s55, 7
        v_add_u32 v20, s55, v20
        s_branch {L}
        {Lh}:
        s_cmp_lt_u32 s2, 40
        s_cbranch_scc1 {L}
        global_load_ushort v20, v18, {P2(pLA)} {self.o['nt']}
        global_load_ushort v24, v19, {P2(pDT)}
        global_load_ushort v21, v18, {P2(pAI)} {self.o['nt']}
        global_load_ushort v22, v18, {P2(pCR)} {self.o['nt']}
        global_load_ushort v23, v18, {P2(pCI)} {self.o['nt']}
        global_load_ushort v25, v17, {P2(pDS)}
        {L}:
        ''')
        self.srd(rWS, pWS, 0x2000000)
        self.srd(rA, pWG, 640 * 1728 * 2)
        self.srd(rB, pWU, 640 * 1728 * 2)

    def early_addresses(self, part=None):
        if part is not None:
            keep, self.k = self.k, Kern()
            self.early_addresses()
            ins, self.k = self.k.ins, keep
            cuts = [n for n, x in enumerate(ins) if x.text.startswith('.cut')]
            a, b = cuts
            self.k.ins += (ins[:a] + ins[b + 1:]) if part == 0 else ins[a + 1:b]
            return
        k = self.k
        k(f'''
        v_lshrrev_b32 v16, 3, v0
        v_mul_u32_u24 v17, 3456, v16
        v_bfe_u32 v16, v0, 4, 1
        v_bfe_u32 v26, v0, 1, 2
        v_xor_b32 v26, v26, v16
        v_and_b32 v16, 1, v0
        v_lshl_add_u32 v17, v16, 4, v17
        s_lshl_b32 s55, {sr(sNB)}, 7
        v_add_u32 v17, s55, v17
        v_lshl_add_u32 v26, v26, 5, v17
        v_xor_b32 v27, 64, v26
        s_mul_i32 {sr(sWR)}, {sr(sM1)}, 5
        s_mov_b32 {sr(sWO)}, 0
        ''')
        if self.o.get('esplit'):
            k('.cut')
        k(f's_lshl_b32 s55, {sr(sW)}, 6\nv_add_u32 v89, s55, v0')
        k(f'''
        s_lshl_b32 s55, {sr(sW)}, 1
        s_lshr_b32 s56, 0xffa4, s55
        s_and_b32 s56, s56, 3
        s_lshl_b32 s57, s56, 3
        v_lshlrev_b32 v10, 2, v89
        ''')
        for j in range(4):
            k(f'''
            v_add_u32 v11, {j}, v10
            v_cvt_f32_u32 v11, v11
            v_cvt_pk_bf16_f32 v11, v11, v11
            v_lshlrev_b32 v11, 16, v11
            v_cvt_u32_f32 v11, v11
            v_lshrrev_b32 v12, 7, v11
            v_and_b32 v13, 7, v11
            v_lshl_add_u32 v12, v12, 3, v13
            v_lshrrev_b32 v12, s56, v12
            v_add_u32 v12, s57, v12
            v_mul_u32_u24 v12, 20, v12
            v_bfe_u32 v11, v11, 3, 4
            v_add_lshl_u32 v11, v12, v11, 2
            v_add_u32 {vr(GA + j)}, {KC}, v11
            ''')
        k(f'''
        v_lshlrev_b32 v208, 1, v10
        v_lshlrev_b32 v209, 2, v10
        ''')
        for i in range(2):
            k(f'''
            v_add_u32 v11, {512 * i}, v89
            v_mul_u32_u24 v12, 0x5556, v11
            v_lshrrev_b32 v12, 16, v12
            v_mul_u32_u24 v13, 3, v12
            v_sub_u32 v11, v11, v13
            v_add_u32 v11, {sr(sD0)}, v11
            v_mul_u32_u24 v12, {XNS}, v12
            v_lshl_add_u32 {vr(210 + i)}, v11, 4, v12
            ''')
        k('v_lshlrev_b32 v212, 4, v89')
        self.wread_addr(213)
        k(f'''
        v_lshrrev_b32 v11, 2, v0
        v_min_u32 v11, 11, v11
        v_mul_u32_u24 v12, 0x5556, v11
        v_lshrrev_b32 v12, 16, v12
        v_mul_u32_u24 v13, 3, v12
        v_sub_u32 v11, v11, v13
        v_cmp_eq_u32 vcc, 3, v12
        v_addc_co_u32 v12, vcc, 0, v12, vcc
        v_mul_u32_u24 v12, 640, v12
        v_add3_u32 v11, v11, v12, {sr(sD0)}
        v_lshrrev_b32 v12, 6, v11
        v_and_b32 v11, 63, v11
        v_lshlrev_b32 v11, 2, v11
        v_lshl_add_u32 v11, v12, 11, v11
        v_and_b32 v12, 3, v0
        v_lshl_add_u32 v11, v12, 8, v11
        v_add_u32 v88, {MODP}, v11
        v_min_u32 v89, 319, v89
        v_lshlrev_b32 v90, 3, v89
        v_add_u32 v90, {MOD + 3 * 2560}, v90
        ''')
        k(f'''
        v_lshrrev_b32 v8, 4, v0
        v_bfe_u32 v9, v0, 2, 2
        v_and_b32 v10, 3, v0
        v_lshlrev_b32 v11, 1, v10
        v_lshl_add_u32 v11, v8, 2, v11
        v_lshrrev_b32 v12, 1, v9
        v_add_u32 v11, v11, v12
        v_mul_u32_u24 v11, 48, v11
        v_and_b32 v12, 1, v9
        v_lshl_add_u32 v11, v12, 3, v11
        v_add_u32 v1, {XNL0 - 14 * 48}, v11
        v_sub_u32 v11, v10, v9
        v_lshlrev_b32 v12, 3, v8
        v_sub_u32 v11, v11, v12
        v_lshlrev_b32 v11, 3, v11
        v_add_u32 v2, {KA + 32 + 2 * (112 - 16)}, v11
        v_lshlrev_b32 v11, 3, v9
        v_lshl_add_u32 v11, v8, 1, v11
        v_lshrrev_b32 v12, 1, v10
        v_add_u32 v11, v11, v12
        v_mul_u32_u24 v11, 48, v11
        v_and_b32 v12, 1, v10
        v_lshl_add_u32 v11, v12, 3, v11
        v_add_u32 v5, {XNL0}, v11
        ''')
        if self.o.get('esplit'):
            k('.cut')
            k('v_lshrrev_b32 v8, 4, v0\nv_bfe_u32 v9, v0, 2, 2\nv_and_b32 v10, 3, v0')
        k(f'''
        s_mul_i32 s56, {sr(sW)}, {TRR}
        s_add_u32 s56, s56, {TR}
        v_lshl_add_u32 v6, v0, 4, s56
        v_lshl_add_u32 v7, v0, 2, s56
        v_mul_u32_u24 v4, {TRR}, v9
        v_lshl_add_u32 v4, v8, 5, v4
        v_lshl_add_u32 v4, v10, 3, v4
        s_and_b32 s55, {sr(sW)}, 1
        s_mul_i32 s56, s55, 640
        s_add_u32 s56, s56, {TR}
        v_add_u32 v4, s56, v4
        s_mul_i32 s57, s2, {XNS}
        s_mul_i32 s56, s55, 5120
        s_add_u32 s57, s57, s56
        v_lshl_add_u32 v3, v0, 4, s57
        s_add_u32 {sr(sTAG)}, {sr(sTAG)}, 0x9e3779b9
        ''')
        k(f'''
        s_and_b32 s55, s2, 7
        s_lshl_b32 s55, s55, 12
        v_lshrrev_b32 v11, 1, v0
        v_lshlrev_b32 v11, 7, v11
        v_and_b32 v12, 1, v0
        v_lshl_add_u32 v11, v12, 5, v11
        v_add_u32 v215, s55, v11
        ''')

    def poll_sync1_issue(self, va, vd):
        self.k(f'''
        global_load_dwordx4 {vr(vd, 4)}, {vr(va)}, {P2(pWS)} offset:{SYNC1} sc1
        global_load_dwordx4 {vr(vd + 4, 4)}, {vr(va)}, {P2(pWS)} offset:{SYNC1 + 16} sc1
        ''')

    def poll_sync1(self, va, vd, preissued=False):
        k = self.k
        L, D = k.label('p1'), k.label('p1d')
        if preissued:
            self.sync1_check(vd, D)
        k(f'{L}:')
        self.poll_sync1_issue(va, vd)
        self.sync1_check(vd, D)
        k(f'''
        s_sleep {self.o.get('sleep', 2)}
        s_add_u32 {sr(sSPIN)}, {sr(sSPIN)}, 1
        s_cmp_lt_u32 {sr(sSPIN)}, {SPIN_MAX}
        s_cbranch_scc1 {L}
        {D}:
        ''')

    def sync1_check(self, vd, D):
        k = self.k
        k(f'''
        v_min3_u32 {vr(vd + 8)}, {vr(vd)}, {vr(vd + 1)}, {vr(vd + 2)}
        v_max3_u32 {vr(vd + 9)}, {vr(vd)}, {vr(vd + 1)}, {vr(vd + 2)}
        v_min3_u32 {vr(vd + 8)}, {vr(vd + 8)}, {vr(vd + 3)}, {vr(vd + 4)}
        v_max3_u32 {vr(vd + 9)}, {vr(vd + 9)}, {vr(vd + 3)}, {vr(vd + 4)}
        v_min3_u32 {vr(vd + 8)}, {vr(vd + 8)}, {vr(vd + 5)}, {vr(vd + 6)}
        v_max3_u32 {vr(vd + 9)}, {vr(vd + 9)}, {vr(vd + 5)}, {vr(vd + 6)}
        v_min_u32 {vr(vd + 8)}, {vr(vd + 8)}, {vr(vd + 7)}
        v_max_u32 {vr(vd + 9)}, {vr(vd + 9)}, {vr(vd + 7)}
        v_xor_b32 {vr(vd + 8)}, {sr(sTAG)}, {vr(vd + 8)}
        v_xor_b32 {vr(vd + 9)}, {sr(sTAG)}, {vr(vd + 9)}
        v_or_b32 {vr(vd + 8)}, {vr(vd + 8)}, {vr(vd + 9)}
        v_cmp_ne_u32 vcc, 0, {vr(vd + 8)}
        s_cbranch_vccz {D}
        ''')

    def touch(self, ptr, size, sbyte, stride=128, lanes=64):
        k = self.k
        k(f'''
        v_mul_u32_u24 v84, {stride}, v0
        v_add_u32 v84, {sbyte}, v84
        v_min_u32 v84, {size - 4}, v84
        ''')
        if lanes < 64:
            k(f's_mov_b32 exec_lo, {hex((1 << min(lanes, 32)) - 1)}\ns_mov_b32 exec_hi, {hex((1 << max(lanes - 32, 0)) - 1)}')
        k(f'global_load_dword v83, v84, {P2(ptr)} {self.o.get("wpol", "")}')
        if lanes < 64:
            k('s_mov_b64 exec, -1')

    def stage_a(self):
        k = self.k
        L, L5 = k.label('nsa'), k.label('sa5')
        k(f'''
        s_cmp_lt_u32 s2, 40
        s_cbranch_scc1 {L}
        s_cmp_ge_u32 {sr(sW)}, 6
        s_cbranch_scc1 {L}
        s_cmp_eq_u32 {sr(sW)}, 5
        s_cbranch_scc1 {L5}
        s_mov_b32 {sr(sWI)}, {sr(sW)}
        ''')
        self.wunits(1, 5, 1, pol=self.o.get('wpol', ''))
        k(f's_branch {L}\n{L5}:')
        if self.o.get('pf1', 2) == 2:
            k(f'''
            s_mul_i32 s55, {sr(sWR)}, {8 * 3456}
            s_lshl_b32 s58, {sr(sNB)}, 7
            s_add_u32 s55, s55, s58
            s_add_u32 s55, s55, {320 * 3456}
            ''')
            self.touch(pWG, 640 * 1728 * 2, 's55', stride=3456, lanes=40)
            self.touch(pWU, 640 * 1728 * 2, 's55', stride=3456, lanes=40)
        if self.o.get('tm', 0):
            k(f's_mul_i32 s55, {sr(sI)}, {178 * 128}')
            for i in range(3):
                self.touch(pWM, 640 * 3840 * 2, 's55')
                if i < 2:
                    k('s_add_u32 s55, s55, 8192')
        k(f'{L}:')

    def stage_b_touch(self):
        k = self.k
        if not self.o.get('tb', 0):
            return
        L = [k.label('tb') for _ in range(5)]
        k(f's_cmp_lt_u32 {sr(sW)}, 2\ns_cbranch_scc0 {L[0]}')
        k(f's_mul_i32 s55, {sr(sI)}, {80 * 128}\ns_mul_i32 s56, {sr(sW)}, {40 * 128}\ns_add_u32 s55, s55, s56')
        self.touch(pWD, 1728 * 640 * 2, 's55', lanes=40)
        k(f's_branch {L[2]}\n{L[0]}:')
        k(f'''
        s_mul_i32 s55, {sr(sWR)}, {8 * 3456}
        s_lshl_b32 s56, {sr(sNB)}, 7
        s_add_u32 s55, s55, s56
        s_add_u32 s55, s55, {320 * 3456}
        s_cmp_eq_u32 {sr(sW)}, 2
        s_cbranch_scc0 {L[1]}
        ''')
        self.touch(pWG, 640 * 1728 * 2, 's55', stride=3456, lanes=40)
        k(f's_branch {L[2]}\n{L[1]}:\ns_cmp_eq_u32 {sr(sW)}, 3\ns_cbranch_scc0 {L[2]}')
        self.touch(pWU, 640 * 1728 * 2, 's55', stride=3456, lanes=40)
        k(f'{L[2]}:')

    def ln1(self):
        k = self.k
        X = [92, 93, 94, 95, 91]
        k('v_mov_b32 v10, v91')
        self.stamp('xld')
        if self.o.get('sa_pos', 0) == 0:
            self.stage_a()
        k(f'''
        s_mov_b32 s55, 0x3f803f80
        v_mov_b32 v10, 0
        v_mov_b32 v11, 0
        ''')
        for j in range(5):
            k(f'v_dot2_f32_bf16 v10, v{X[j]}, s55, v10')
            k(f'v_dot2_f32_bf16 v11, v{X[j]}, v{X[j]}, v11')
        k(f'''
        v_permlane32_swap_b32 v10, v11
        v_add_f32 v10, v10, v11
        ''')
        for n in (8, 4, 2, 1):
            k(f'v_add_f32_dpp v10, v10, v10 row_ror:{n} row_mask:0xf bank_mask:0xf')
        k(f'''
        v_add_f32_dpp v10, v10, v10 row_bcast:15 row_mask:0xa bank_mask:0xf
        v_mov_b32 v13, {f32(1.0 / 640)}
        v_readlane_b32 s55, v10, 31
        v_readlane_b32 s56, v10, 63
        s_lshl_b32 s57, {sr(sW)}, 2
        v_mov_b32 v14, s57
        v_mul_f32 v10, s55, v13
        v_mul_f32 v11, s56, v13
        v_fma_f32 v11, -v10, v10, v11
        v_max_f32 v11, 0, v11
        v_cvt_pk_bf16_f32 v10, v10, v11
        v_and_b32 v11, 0xffff0000, v10
        v_lshlrev_b32 v10, 16, v10
        v_add_f32 v11, {f32(1e-5)}, v11
        v_cvt_pk_bf16_f32 v11, v11, v11
        v_lshlrev_b32 v11, 16, v11
        v_sqrt_f32 v11, v11
        v_lshlrev_b32 v15, 16, v92
        v_cvt_pk_bf16_f32 v13, v10, v11
        v_and_b32 v11, 0xffff0000, v13
        v_rcp_f32 v11, v11
        ''')
        k(f'ds_write_b32 v14, v13 offset:{TR + TRM}', tag='trw')
        k('v_mul_f32 v10, -v10, v11')
        for j in range(5):
            k(f'''
            v_lshlrev_b32 v13, 16, v{X[j]}
            v_and_b32 v14, 0xffff0000, v{X[j]}
            v_fma_f32 v13, v13, v11, v10
            v_fma_f32 v14, v14, v11, v10
            v_cvt_pk_bf16_f32 v{X[j]}, v13, v14
            ''')
            if j == 3:
                k('ds_write_b128 v6, v[92:95]', tag='trw')
        k('ds_write_b32 v7, v91 offset:1024', tag='trw')
        k.wait('trw')
        k('s_barrier')
        self.stamp('trb')
        if self.o.get('sa_pos', 0) == 1:
            self.stage_a()
        Ls = k.label('nost')
        k(f'''
        s_cmp_lt_u32 {sr(sW)}, 6
        s_cbranch_scc1 {Ls}
        ''')
        for i in range(5):
            k(f'ds_read_b64_tr_b16 v[{28 + 4 * i}:{29 + 4 * i}], v4 offset:{128 * i}')
            k(f'ds_read_b64_tr_b16 v[{30 + 4 * i}:{31 + 4 * i}], v4 offset:{128 * i + 4 * TRR}')
        k(f'''
        v_lshlrev_b32 v72, 4, v0
        ds_read_b128 v[68:71], v72 offset:{TR + TRM}
        s_mov_b32 s58, {XN}
        s_mov_b32 s59, {XN + 4096}
        ''')
        for i in range(5):
            k(f'buffer_store_dwordx4 v[{28 + 4 * i}:{31 + 4 * i}], v3, {P4(rWS)}, s{58 + i // 4} offen offset:{1024 * (i % 4)} sc1', tag='xnst')
        L6, L7, L8 = k.label('w6'), k.label('w7'), k.label('w8')
        k(f'''
        s_cmp_eq_u32 {sr(sW)}, 6
        s_cbranch_scc1 {L6}
        v_mov_b32 v68, 0
        v_mov_b32 v69, 0
        v_mov_b32 v70, 0
        v_mov_b32 v71, 0
        s_cmp_ge_u32 s2, 30
        s_cbranch_scc1 {L8}
        s_add_u32 s56, s2, 30
        s_lshl_b32 s56, s56, 8
        s_add_u32 s56, s56, {MOD}
        s_mov_b64 exec, 0xffff
        buffer_store_dwordx4 v[68:71], v72, {P4(rWS)}, s56 offen sc1
        {L8}:
        s_mul_i32 s56, s2, 352
        s_add_u32 s56, s56, {ZBEG}
        s_mov_b64 exec, 0x3fffff
        s_branch {L7}
        {L6}:
        ''')
        if self.o.get('msd', 0):
            k(f'''
            v_lshlrev_b32 v73, 2, v0
            ds_read_b32 v68, v73 offset:{TR + TRM}
            s_lshr_b32 s56, s2, 6
            s_lshl_b32 s56, s56, 9
            s_and_b32 s57, s2, 7
            s_lshl_b32 s57, s57, 6
            s_add_u32 s56, s56, s57
            s_bfe_u32 s57, s2, 0x30003
            s_add_u32 s56, s56, s57
            s_lshl_b32 s56, s56, 2
            s_add_u32 s56, s56, {MS}
            v_lshlrev_b32 v73, 5, v0
            s_mov_b64 exec, 0xff
            ''')
            k(f'buffer_store_dword v68, v73, {P4(rWS)}, s56 offen sc1', tag='xnst')
            k('s_mov_b64 exec, 0')
        else:
            k(f'''
            s_lshl_b32 s56, s2, 5
            s_add_u32 s56, s56, {MS}
            s_mov_b64 exec, 3
            ''')
        k(f'{L7}:')
        k(f'buffer_store_dwordx4 v[68:71], v72, {P4(rWS)}, s56 offen sc1', tag='xnst')
        k(f'''
        s_cmp_lt_u32 s2, 240
        s_cselect_b64 exec, 0xffff, 0
        v_mov_b32 v74, 0
        v_mov_b32 v75, 0
        v_mov_b32 v76, 0
        v_mov_b32 v77, 0
        s_lshl_b32 s56, s68, 8
        s_add_u32 s69, s56, {MODP}
        ''')
        k(f'buffer_store_dwordx4 v[74:77], v72, {P4(rWS)}, s69 offen sc1', tag='xnst')
        k(f'''
        s_mov_b64 exec, -1
        v_mov_b32 v74, 0
        v_mov_b32 v75, 0
        v_mov_b32 v76, 0
        v_mov_b32 v77, 0
        s_lshl_b32 s56, {sr(sNB)}, 3
        s_add_u32 s56, s56, {sr(sM1)}
        s_lshl_b32 s56, s56, 10
        s_and_b32 s57, {sr(sW)}, 1
        s_lshl_b32 s57, s57, 9
        s_add_u32 s56, s56, s57
        s_add_u32 s56, s56, {CSP}
        s_cmp_ge_u32 s2, 40
        s_cselect_b32 exec_lo, -1, 0
        s_mov_b32 exec_hi, 0
        ''')
        k(f'buffer_store_dwordx4 v[74:77], v72, {P4(rWS)}, s56 offen sc1', tag='xnst')
        k('s_mov_b64 exec, -1')

        def mod_loads():
            k('s_cmp_lt_u32 s2, 240\ns_cselect_b64 exec, -1, 0')
            for i in range(10):
                k(f'global_load_dwordx4 {vr(216 + 4 * i, 4)}, v20, {P2(pWM)} {self.o["nt"]}')
                if i < 9:
                    k('v_add_u32 v20, 7680, v20')
            k('s_mov_b64 exec, -1')
        if self.o.get('mod_pre', 1):
            mod_loads()
        self.silu10()
        if self.o.get('ga2', 0):
            self.g1_addr_early2()
        if self.o.get('esplit'):
            self.early_addresses(1)
        k(f'''
        s_mov_b64 exec, -1
        s_lshr_b32 s56, s2, 3
        s_lshl_b32 s56, s56, 7
        s_and_b32 s57, s2, 7
        s_lshl_b32 s57, s57, 3
        s_add_u32 s56, s56, s57
        s_and_b32 s57, {sr(sW)}, 1
        s_lshl_b32 s57, s57, 2
        s_add_u32 s56, s56, s57
        v_lshl_add_u32 v16, v0, 12, s56
        v_mov_b32 v17, {sr(sTAG)}
        s_mov_b64 exec, 0xff
        ''')
        k.wait('xnst')
        k(f'''
        global_store_dword v16, v17, {P2(pWS)} offset:{SYNC1} sc1
        s_mov_b64 exec, -1
        ''')
        self.stamp('A')
        Lm = k.label('nwb')
        nb_ = self.o.get('wb', 0)

        if self.o.get('mod_first', 0) and not self.o.get('mod_pre', 1):
            mod_loads()
        if nb_:
            k(f'''
            s_cmp_lt_u32 s2, 40
            s_cbranch_scc1 {Lm}
            s_sub_u32 {sr(sWI)}, {sr(sW)}, 1
            ''')
            self.wunits(nb_, 5 + 2 * nb_, 2, check=False)
            k(f'{Lm}:')
        if not self.o.get('mod_first', 0) and not self.o.get('mod_pre', 1):
            mod_loads()
        k(f'{Ls}:')

    def silu10(self):
        k = self.k
        CV = 140
        for i in range(10):
            k(f'v_lshlrev_b32 {vr(CV + i)}, 16, {vr(160 + i // 2)}' if i % 2 == 0 else f'v_and_b32 {vr(CV + i)}, 0xffff0000, {vr(160 + i // 2)}')
            k(f'v_mul_f32 {vr(150 + i)}, {f32(-LOG2E)}, {vr(CV + i)}')
        for op in ('v_exp_f32 {t}, {t}', 'v_add_f32 {t}, 1.0, {t}', 'v_rcp_f32 {t}, {t}', 'v_mul_f32 {c}, {c}, {t}',
                   'v_cvt_pk_bf16_f32 {c}, {c}, {c}', 'v_lshlrev_b32 {c}, 16, {c}'):
            for i in range(10):
                k(op.format(t=vr(150 + i), c=vr(CV + i)))

    def mod_partial(self):
        k = self.k
        LD, CV, V = 216, 140, 68
        L = k.label('nomp')
        k(f's_cmp_lt_u32 {sr(sW)}, 6\ns_cbranch_scc1 {L}\ns_cmp_ge_u32 s2, 240\ns_cbranch_scc1 {L}')
        for i in range(10):
            for j in range(4):
                r = LD + 4 * i + j
                a, b = 76 + 2 * (j % 2), 77 + 2 * (j % 2)
                k(f'v_lshlrev_b32 v{a}, 16, {vr(r)}\nv_and_b32 v{b}, 0xffff0000, {vr(r)}')
                if i == 0:
                    k(f'v_mul_f32 {vr(V + 2 * j)}, v{a}, {vr(CV)}\nv_mul_f32 {vr(V + 2 * j + 1)}, v{b}, {vr(CV)}')
                else:
                    k(f'v_fmac_f32 {vr(V + 2 * j)}, v{a}, {vr(CV + i)}\nv_fmac_f32 {vr(V + 2 * j + 1)}, v{b}, {vr(CV + i)}')
        for i in range(4):
            k(f'v_permlane32_swap_b32 {vr(V + i)}, {vr(V + 4 + i)}')
        for i in range(4):
            k(f'v_add_f32 {vr(V + i)}, {vr(V + i)}, {vr(V + 4 + i)}')
        for i in range(2):
            k(f'v_permlane16_swap_b32 {vr(V + i)}, {vr(V + 2 + i)}')
        for i in range(2):
            k(f'v_add_f32 {vr(V + i)}, {vr(V + i)}, {vr(V + 2 + i)}')
        k(f'''
        v_lshrrev_b32 v76, 4, v0
        v_and_b32 v77, 7, v0
        v_lshlrev_b32 v76, 3, v76
        v_lshl_add_u32 v76, v77, 5, v76
        ''')
        for i in range(2):
            k(f'v_add_f32_dpp {vr(V + i)}, {vr(V + i)}, {vr(V + i)} row_ror:8 row_mask:0xf bank_mask:0xf')
        k(f'''
        v_or_b32 {vr(V)}, 1, {vr(V)}
        v_or_b32 {vr(V + 1)}, 1, {vr(V + 1)}
        s_mov_b32 exec_lo, 0x00ff00ff
        s_mov_b32 exec_hi, 0x00ff00ff
        buffer_store_dwordx2 {vr(V, 2)}, v76, {P4(rWS)}, s69 offen sc1
        s_mov_b64 exec, -1
        ''')
        self.stamp('modp')
        k(f'{L}:')

    def wunits(self, n, end, step, check=True, pol=''):
        k = self.k
        L = k.label('wsd')
        for i in range(n):
            if check:
                k(f's_cmp_ge_u32 {sr(sWI)}, {end}\ns_cbranch_scc1 {L}')
            k(f'''
            s_add_u32 s55, {sr(sWI)}, {sr(sWR)}
            s_sub_u32 s56, s55, 40
            s_cselect_b32 s55, s55, s56
            s_lshl_b32 s56, s55, 11
            s_add_u32 m0, s56, {STG}
            s_mul_i32 s55, s55, {8 * 3456}
            s_add_u32 s55, s55, {sr(sWO)}
            s_add_u32 {sr(sWI)}, {sr(sWI)}, {step}
            ''')
            k(f'buffer_load_dwordx4 v26, {P4(rA)}, s55 offen {pol} lds', tag='wst')
            k(f's_add_u32 m0, s56, {STG + 1024}')
            k(f'buffer_load_dwordx4 v27, {P4(rB)}, s55 offen {pol} lds', tag='wst')
        k(f'{L}:')

    def wread_addr(self, va):
        self.k(f'''
        v_bfe_u32 {vr(va + 1)}, v0, 3, 2
        s_and_b32 s55, {sr(sW)}, 3
        v_xor_b32 {vr(va + 1)}, s55, {vr(va + 1)}
        v_lshrrev_b32 {vr(va)}, 4, v0
        v_lshlrev_b32 {vr(va)}, 10, {vr(va)}
        v_lshl_add_u32 {vr(va)}, {vr(va + 1)}, 5, {vr(va)}
        v_bfe_u32 {vr(va + 1)}, v0, 2, 2
        v_lshl_add_u32 {vr(va)}, {vr(va + 1)}, 7, {vr(va)}
        v_and_b32 {vr(va + 1)}, 3, v0
        v_lshl_add_u32 {vr(va)}, {vr(va + 1)}, 3, {vr(va)}
        v_add_u32 {vr(va)}, {STG}, {vr(va)}
        v_add_u32 {vr(va + 1)}, {10 * 4096}, {vr(va)}
        ''')

    def wstage_read(self, rnd, va):
        k = self.k
        for s in range(20):
            r = WF + 4 * (20 * rnd + s)
            a = va if s < 10 else va + 1
            off = (s % 10) * 4096
            k(f'ds_read_b64_tr_b16 {vr(r, 2)}, {vr(a)} offset:{off}', tag='wrd')
            k(f'ds_read_b64_tr_b16 {vr(r + 2, 2)}, {vr(a)} offset:{off + 512}', tag='wrd')

    def cmul(self, d, a, b):
        self.k(f'v_pk_mul_f32 {vr(d, 2)}, {vr(a, 2)}, {vr(b, 2)} op_sel:[0,0] op_sel_hi:[0,1]')
        self.k(f'v_pk_fma_f32 {vr(d, 2)}, {vr(a, 2)}, {vr(b, 2)}, {vr(d, 2)} op_sel:[1,1,0] op_sel_hi:[1,0,1] neg_lo:[1,0,0]')

    def zpow(self, d, e, a2, fr, t):
        k = self.k
        k(f'''
        v_mul_f32 {vr(t)}, {f32(e)}, {vr(a2)}
        v_mul_f32 {vr(t + 1)}, {f32(e)}, {vr(fr)}
        v_exp_f32 {vr(t)}, {vr(t)}
        v_fract_f32 {vr(t + 1)}, {vr(t + 1)}
        v_cos_f32 {vr(d)}, {vr(t + 1)}
        v_sin_f32 {vr(d + 1)}, {vr(t + 1)}
        v_mul_f32 {vr(d)}, {vr(d)}, {vr(t)}
        v_mul_f32 {vr(d + 1)}, {vr(d + 1)}, {vr(t)}
        ''')

    def kgen(self):
        k = self.k
        Lskip = k.label('nokg')
        k(f's_cmp_ge_u32 {sr(sW)}, 6\ns_cbranch_scc1 {Lskip}')
        if self.o.get('esplit') == 1:
            self.early_addresses(1)
        A2, FR, T = 28, 29, 30
        Z = {e: 32 + 2 * e for e in range(1, 8)}
        Z8, Z128, QA, QB, PA, PB, PC = 48, 50, 52, 54, 56, 58, 60
        CV = 62
        QF, PF, AC = 64, 176, 192
        RA = 80
        k(f'''
        v_lshlrev_b32 v24, 16, v24
        v_lshlrev_b32 v20, 16, v20
        v_mul_f32 v24, {f32(LOG2E)}, v24
        v_mul_f32 v20, {f32(LOG2E)}, v20
        v_exp_f32 v24, v24
        v_exp_f32 v20, v20
        v_lshlrev_b32 v21, 16, v21
        v_cvt_pk_bf16_f32 v20, v20, v24
        v_and_b32 v24, 0xffff0000, v20
        v_lshlrev_b32 v20, 16, v20
        v_mul_f32 {vr(A2)}, v20, v24
        v_mul_f32 {vr(FR)}, v21, v24
        v_mul_f32 {vr(A2)}, {f32(-LOG2E)}, {vr(A2)}
        v_mul_f32 {vr(FR)}, 0.15915494, {vr(FR)}
        v_add_f32 v24, v24, v24
        v_lshlrev_b32 v22, 16, v22
        v_lshlrev_b32 v23, 16, v23
        v_mul_f32 {vr(QA)}, v22, v24
        v_mul_f32 {vr(QA + 1)}, v23, v24
        s_mul_i32 s60, {sr(sW)}, {KGS}
        s_mov_b32 m0, s60
        v_and_b32 {vr(RA)}, 15, v0
        v_mul_u32_u24 {vr(RA)}, 288, {vr(RA)}
        v_lshrrev_b32 {vr(RA + 1)}, 4, v0
        v_lshl_add_u32 {vr(RA)}, {vr(RA + 1)}, 4, {vr(RA)}
        v_add_u32 {vr(RA)}, s60, {vr(RA)}
        ''')
        self.zpow(Z8, 8.0, A2, FR, T)
        self.zpow(Z[1], 1.0, A2, FR, T)
        self.zpow(Z128, 128.0, A2, FR, T)
        flip = [0]

        def put(row, r, neg=False):
            c = CV + flip[0]
            flip[0] ^= 1
            k(f'v_cvt_pk_bf16_f32 {vr(c)}, {vr(r)}, {"-" if neg else ""}{vr(r + 1)}')
            k(f'ds_write_addtid_b32 {vr(c)} offset:{288 * row}')

        def frags(dst):
            for s in range(4):
                k(f'ds_read_b128 {vr(dst + 4 * s, 4)}, {vr(RA)} offset:{64 * s}')

        def mm(acc):
            for s in range(4):
                c = '0' if s == 0 else vr(acc, 4)
                k(f'v_mfma_f32_16x16x32_bf16 {vr(acc, 4)}, {vr(PF + 4 * s, 4)}, {vr(QF + 4 * s, 4)}, {c}')

        small = [(2, 1, 1), (3, 2, 1), (4, 2, 2), (5, 4, 1), (6, 4, 2), (7, 4, 3)]
        cur, nxt = QA, QB
        for b in range(16):
            if b < 15:
                self.cmul(nxt, cur, Z8)
            put(b, cur, neg=True)
            if b < len(small):
                e, x, y = small[b]
                self.cmul(Z[e], Z[x], Z[y])
            cur, nxt = nxt, cur
        frags(QF)
        self.stage_b_touch()
        k(f'v_mov_b32 {vr(CV)}, 0x3f80')
        k(f'ds_write_addtid_b32 {vr(CV)} offset:0')
        flip[0] = 1
        put(8, Z128)
        cur, nxt = PA, PB
        for e in range(1, 8):
            self.cmul(cur, Z[e], Z128)
            put(e, Z[e])
            put(8 + e, cur)
            cur, nxt = nxt, cur
        frags(PF)
        self.cmul(QA, Z128, Z128)
        self.cmul(QB, QA, Z128)
        mm(AC)
        put(0, QA)
        put(4, QB)
        for e in (1, 2, 3):
            self.cmul(PA, QA, Z[2 * e])
            self.cmul(PB, QB, Z[2 * e])
            put(e, PA)
            put(4 + e, PB)
        cur, nxt = QB, QA
        for a in range(4):
            self.cmul(nxt, cur, Z128)
            self.cmul(PA, nxt, Z[4])
            put(8 + 2 * a, nxt)
            put(9 + 2 * a, PA)
            cur, nxt = nxt, cur
        frags(PF)
        self.cmul(nxt, cur, Z128)
        cur, nxt = nxt, cur
        mm(AC + 4)
        for a in range(9):
            if a < 8:
                self.cmul(nxt, cur, Z128)
            put(a, cur)
            cur, nxt = nxt, cur
        frags(PF)
        k(f'''
        v_lshrrev_b32 {vr(RA + 1)}, 4, v0
        v_mul_u32_u24 {vr(RA + 1)}, 320, {vr(RA + 1)}
        v_and_b32 {vr(RA + 2)}, 15, v0
        v_lshl_add_u32 {vr(RA + 1)}, {vr(RA + 2)}, 2, {vr(RA + 1)}
        s_mul_i32 s55, {sr(sW)}, {KCS}
        s_add_u32 s55, s55, {KC}
        v_add_u32 {vr(RA + 1)}, s55, {vr(RA + 1)}
        ''')
        for Tt in range(2):
            for i in range(4):
                k(f'ds_write_b32 {vr(RA + 1)}, {vr(AC + 4 * Tt + i)} offset:{(16 * Tt + i) * 80}', tag='kcw')
        mm(AC + 8)
        for i in range(4):
            k(f'ds_write_b32 {vr(RA + 1)}, {vr(AC + 8 + i)} offset:{(32 + i) * 80}', tag='kcw')
        if self.o.get('esplit') == 2:
            self.early_addresses(1)
        if self.o.get('ga2', 0):
            self.g1_addr_early2()
        wk = self.o.get('wk', 5)
        if wk:
            k(f's_cmp_ge_u32 {sr(sW)}, 4\ns_cbranch_scc1 {Lskip}')
            k(f's_add_u32 {sr(sWI)}, {sr(sW)}, {5 + 2 * self.o.get("wb", 0)}')
            self.wunits(wk, min(40, 5 + 2 * self.o.get('wb', 0) + 4 * wk), 4)
        k(f'{Lskip}:')

    def kexpand1(self):
        k = self.k
        V = lambda ch, j: 36 + 4 * ch + j
        PK, SC = 48, 54
        k(f'''
        v_lshlrev_b32 v25, 16, v25
        v_cmp_eq_u32 s[58:59], 0, v208
        v_readlane_b32 s62, v25, 0
        v_readlane_b32 s63, v25, 1
        v_readlane_b32 s64, v25, 2
        v_mov_b32 v64, 0
        v_mov_b32 v65, 0
        v_mov_b32 v66, 0
        v_mov_b32 v67, 0
        v_lshlrev_b32 v35, 4, v0
        ''')
        for ch in range(3):
            k(f'v_mov_b32 {vr(SC + ch)}, s{62 + ch}')
            k(f'v_cndmask_b32 {vr(SC + ch)}, 0, {vr(SC + ch)}, s[58:59]')
        k.wait('kcw')
        k('s_barrier')
        self.stamp('kcw')
        if self.o.get('pre1', 2) == 1:
            L = self.only_wave(0)
            self.poll_sync1_issue(215, 68)
            k(f'{L}:')
        for ch in range(3):
            for j in range(4):
                k(f'ds_read2st64_b32 {vr(176 + 8 * ch + 2 * j, 2)}, {vr(GA + j)} offset0:{30 * ch} offset1:{30 * ch + 15}')
        L = self.only_wave(7)
        k(f's_mov_b32 exec_lo, -1\ns_mov_b32 exec_hi, 0x3ff')
        k(f'ds_write_b128 v35, v[64:67] offset:{XNL0 - 672}', tag='kaw')
        k(f's_mov_b64 exec, 3')
        for ch in range(3):
            k(f'ds_write_b128 v35, v[64:67] offset:{KA + ch * KAS}', tag='kaw')
        k(f's_mov_b64 exec, -1')
        k(f'{L}:')
        done = min(40, 5 + 2 * self.o.get('wb', 0) + 4 * self.o.get('wk', 5))
        if done < 40:
            k(f's_add_u32 {sr(sWI)}, {sr(sW)}, {done}')
            self.wunits((40 - done + 7) // 8, 40, 8)
        for ch in range(3):
            for j in range(4):
                k(f'v_add_f32 {vr(V(ch, j))}, {vr(176 + 8 * ch + 2 * j)}, {vr(177 + 8 * ch + 2 * j)}')
            k(f'v_add_f32 {vr(V(ch, 0))}, {vr(V(ch, 0))}, {vr(SC + ch)}')
        for ch in range(3):
            k(f'v_cvt_pk_bf16_f32 {vr(PK + 2 * ch)}, {vr(V(ch, 0))}, {vr(V(ch, 1))}')
            k(f'v_cvt_pk_bf16_f32 {vr(PK + 2 * ch + 1)}, {vr(V(ch, 2))}, {vr(V(ch, 3))}')
            k(f'ds_write_b64 v208, {vr(PK + 2 * ch, 2)} offset:{KA + ch * KAS + 32}', tag='kaw')
        if self.o.get('pre1', 2) == 2:
            L = self.only_wave(0)
            self.poll_sync1_issue(215, 68)
            k(f'{L}:')
        for j in range(1, 4):
            for ch in range(3):
                k(f'v_add_f32 {vr(V(ch, j))}, {vr(V(ch, j))}, {vr(V(ch, j - 1))}')
        for n in (1, 2, 4, 8):
            for ch in range(3):
                src = V(ch, 3) if n == 1 else SC + ch
                k(f'v_add_f32_dpp {vr(SC + ch)}, {vr(src)}, {vr(src)} row_shr:{n} row_mask:0xf bank_mask:0xf bound_ctrl:0')
        for ch in range(3):
            k(f'v_add_f32_dpp {vr(SC + ch)}, {vr(SC + ch)}, {vr(SC + ch)} row_bcast:15 row_mask:0xa bank_mask:0xf')
        for ch in range(3):
            k(f'v_add_f32_dpp {vr(SC + ch)}, {vr(SC + ch)}, {vr(SC + ch)} row_bcast:31 row_mask:0xc bank_mask:0xf')
        k(f'''
        s_lshl_b32 s55, {sr(sW)}, 2
        s_add_u32 s55, s55, {WT}
        v_mov_b32 v33, s55
        s_mov_b32 exec_lo, 0
        s_brev_b32 exec_hi, 1
        ''')
        for ch in range(3):
            k(f'ds_write_b32 v33, {vr(SC + ch)} offset:{32 * ch}', tag='kaw')
        k('s_mov_b64 exec, -1')

    def kexpand2(self):
        k = self.k
        V = lambda ch, j: 36 + 4 * ch + j
        SC = 54
        k(f'''
        v_min_u32 v33, 23, v0
        v_lshlrev_b32 v33, 2, v33
        v_add_u32 v33, {WT}, v33
        ds_read_b32 v34, v33
        v_and_b32 v33, 7, v0
        v_cmp_gt_u32 vcc, {sr(sW)}, v33
        ''')
        for ch in range(3):
            k(f'v_sub_f32 {vr(SC + ch)}, {vr(SC + ch)}, {vr(V(ch, 3))}')
        k('v_cndmask_b32 v34, 0, v34, vcc')
        for n in (1, 2, 4):
            k(f'v_add_f32_dpp v34, v34, v34 row_shr:{n} row_mask:0xf bank_mask:0xf bound_ctrl:0')
        k(f'''
        v_readlane_b32 s62, v34, 7
        v_readlane_b32 s63, v34, 15
        v_readlane_b32 s64, v34, 23
        ''')
        for ch in range(3):
            k(f'v_add_f32 {vr(SC + ch)}, s{62 + ch}, {vr(SC + ch)}')
            for j in range(4):
                k(f'v_add_f32 {vr(V(ch, j))}, {vr(V(ch, j))}, {vr(SC + ch)}')
            k(f'ds_write_b128 v209, {vr(V(ch, 0), 4)} offset:{SA + ch * SAS}', tag='saw')

    def conv_loads(self):
        k = self.k
        k(f'''
        s_lshl_b32 s60, {sr(sW)}, 10
        s_mov_b32 s57, {XN}
        s_mov_b32 s58, {MS}
        ''')
        L = self.only_wave(0)
        self.poll_sync1(215, 68, preissued=self.o.get('pre1', 2))
        k(f'{L}:')
        self.stamp('polled')
        k.wait('kaw', 'wst')
        self.stamp('wland')
        k('s_barrier')
        self.stamp('sync1')
        k(f's_add_u32 m0, s60, {XNL0}')
        k(f'buffer_load_dwordx4 v210, {P4(rWS)}, s57 offen sc1 lds', tag='xnl')
        L = k.label('x2')
        k(f's_cmp_ge_u32 {sr(sW)}, 4\ns_cbranch_scc1 {L}\ns_add_u32 m0, s60, {XNL0 + 8192}')
        k(f'buffer_load_dwordx4 v211, {P4(rWS)}, s57 offen sc1 lds', tag='xnl')
        k(f'{L}:')
        if not self.o.get('msd', 0):
            k(f's_add_u32 m0, s60, {MSL}')
            k(f'buffer_load_dwordx4 v212, {P4(rWS)}, s58 offen sc1 lds', tag='xnl')
        if self.o.get('pf1', 2) == 1:
            L = k.label('npf')
            k(f'''
            s_cmp_ge_u32 {sr(sW)}, 2
            s_cbranch_scc1 {L}
            s_cmp_eq_u32 {sr(sW)}, 0
            s_cselect_b32 s56, s{pWG}, s{pWU}
            s_cselect_b32 s57, s{pWG + 1}, s{pWU + 1}
            s_mul_i32 s55, {sr(sWR)}, {8 * 3456}
            s_lshl_b32 s58, {sr(sNB)}, 7
            s_add_u32 s55, s55, s58
            s_add_u32 s55, s55, {320 * 3456}
            ''')
            self.touch(56, 640 * 1728 * 2, 's55', stride=3456, lanes=40)
            k(f'{L}:')

    def conv_consts(self):
        k = self.k
        Lr, Ld = k.label('mr'), k.label('md')
        chk = f'''
        v_min_u32 v16, v17, v23
        v_cmp_eq_u32 vcc, 0, v16
        s_cbranch_vccz {Ld}
        '''
        k(chk)
        k(f'''
        {Lr}:
        global_load_dword v17, v88, {P2(pWS)} sc1
        global_load_dword v23, v88, {P2(pWS)} offset:1024 sc1
        ''')
        k(chk)
        k(f'''
        s_sleep {self.o.get('sleep', 2)}
        s_add_u32 {sr(sSPIN)}, {sr(sSPIN)}, 1
        s_cmp_lt_u32 {sr(sSPIN)}, {SPIN_MAX}
        s_cbranch_scc1 {Lr}
        {Ld}:
        v_add_f32 v17, v17, v23
        v_add_f32_dpp v17, v17, v17 quad_perm:[1,0,3,2] row_mask:0xf bank_mask:0xf
        v_add_f32_dpp v17, v17, v17 quad_perm:[2,3,0,1] row_mask:0xf bank_mask:0xf
        v_cvt_pk_bf16_f32 v17, v17, v17
        v_lshlrev_b32 v17, 16, v17
        v_add_f32 v16, 1.0, v17
        v_cvt_pk_bf16_f32 v16, v16, v16
        v_lshlrev_b32 v16, 16, v16
        ''')
        for ch in range(3):
            k(f'v_readlane_b32 s55, v17, {4 * (6 + ch)}')
            k(f'v_readlane_b32 {sr(sCH + 3 * ch + 2)}, v16, {4 * (9 + ch)}')
            k(f'v_mul_f32 v18, s55, v16\nv_mul_f32 v19, s55, v17')
            k(f'v_readlane_b32 {sr(sCH + 3 * ch)}, v18, {4 * (3 + ch)}')
            k(f'v_readlane_b32 {sr(sCH + 3 * ch + 1)}, v19, {4 * ch}')

    def conv(self, setup_only=False):
        k = self.k
        H, KF, ACC, AX = 32, 64, 176, 208
        vHB, vKB, vH, vK, vXB, vSB, vO = 1, 2, 3, 4, 5, 6, 7
        XV, SV, TT, MV = 212, 216, 224, 244
        sL, sG, sC, sN = 65, 66, 67, 68
        sG2, sC2, sM, sO, sME, sOE = 94, 95, 96, 97, 98, 99
        U = lambda G, ch: 4 * ch + G
        lists = self.o.get('units') or [[U(3, 0)], [U(3, 1)], [U(3, 2)], [U(2, 0)], [U(0, 0), U(1, 0)], [U(0, 1), U(1, 1)],
                                        [U(0, 2), U(2, 2)], [U(1, 2), U(2, 1)]]
        lo = sum(lists[w][0] << (4 * w) for w in range(8))
        hi = sum(lists[w][1] << (4 * (w - 4)) for w in range(4, 8))
        hs = lambda m: H + 4 * (m % 8)
        ks = lambda q: KF + 4 * (q % 4)

        def ldh(slot_m, base, off):
            k(f'ds_read_b64_tr_b16 {vr(hs(slot_m), 2)}, {vr(base)} offset:{off}')
            k(f'ds_read_b64_tr_b16 {vr(hs(slot_m) + 2, 2)}, {vr(base)} offset:{off + 96}')

        def ldk(q, off):
            k(f'ds_read_b64_tr_b16 {vr(ks(q), 2)}, {vr(vK)} offset:{off + 32}')
            k(f'ds_read_b64_tr_b16 {vr(ks(q) + 2, 2)}, {vr(vK)} offset:{off}')

        def mf(acc, m, q, zero=False):
            c = '0' if zero else vr(acc, 4)
            k(f'v_mfma_f32_16x16x32_bf16 {vr(acc, 4)}, {vr(hs(m), 4)}, {vr(ks(q), 4)}, {c}')

        def decode(code):
            k(f"""
            s_and_b32 {sr(sG)}, {code}, 3
            s_bfe_u32 {sr(sC)}, {code}, 0x20002
            s_mul_i32 s55, {sr(sG)}, 3072
            s_lshl_b32 s56, {sr(sC)}, 4
            s_add_u32 s55, s55, s56
            v_add_u32 {vr(vH)}, s55, {vr(vHB)}
            v_add_u32 v8, s55, {vr(vXB)}
            s_mul_i32 s56, {sr(sC)}, {KAS}
            v_add_u32 {vr(vK)}, s56, {vr(vKB)}
            s_lshl_b32 s55, {sr(sC)}, 13
            s_lshl_b32 s56, {sr(sG)}, 11
            s_add_u32 s55, s55, s56
            s_add_u32 s55, s55, {SA}
            v_lshl_add_u32 {vr(vSB)}, v0, 2, s55
            s_add_u32 s56, s56, {MS if self.o.get('msd', 0) else MSL}
            v_lshl_add_u32 v22, v0, {5 if self.o.get('msd', 0) else 2}, s56
            """)

        def first_loads():
            ldk(0, 0)
            for i in (7, 6, 5, 4, 3, 2, 1, 0):
                ldh(i, vH, 384 * i)
            ldk(1, 256)
            k(f'v_subrev_u32 v11, 768, {vr(vH)}\nv_subrev_u32 {vr(vH)}, 3840, {vr(vH)}')

        def const_loads():
            k(f'global_load_dword v17, v88, {P2(pWS)} sc1\nglobal_load_dword v23, v88, {P2(pWS)} offset:1024 sc1')

        def tab_loads():
            k(f'global_load_dwordx2 v[12:13], v90, {P2(pWS)} sc1\nglobal_load_dwordx2 v[14:15], v90, {P2(pWS)} offset:2560 sc1')

        def wdma(part):
            if self.o.get('x_cnow'):
                return
            if part == 0:
                k(f's_mov_b32 m0, {sr(sM)}')
                k(f'buffer_load_dwordx4 v26, {P4(rA)}, {sr(sO)} offen lds', tag='wst')
            else:
                k(f's_add_u32 m0, {sr(sM)}, 1024\ns_add_u32 {sr(sM)}, {sr(sM)}, 2048')
                k(f'buffer_load_dwordx4 v27, {P4(rB)}, {sr(sO)} offen lds', tag='wst')
                k(f's_add_u32 {sr(sO)}, {sr(sO)}, {8 * 3456}\ns_min_u32 {sr(sM)}, {sr(sM)}, {sr(sME)}\ns_min_u32 {sr(sO)}, {sr(sO)}, {sr(sOE)}')

        def base_ops(i):
            xr, t, u = XV + i // 2, TT + 11 + i, TT + 1 + i
            return [f'v_lshlrev_b32 {vr(t)}, 16, {vr(xr)}' if i % 2 == 0 else f'v_and_b32 {vr(t)}, 0xffff0000, {vr(xr)}',
                    f'v_and_b32 {vr(u)}, 0xffff0000, {vr(MV + i)}',
                    f'v_lshlrev_b32 {vr(MV + i)}, 16, {vr(MV + i)}',
                    f'v_fmac_f32 {vr(MV + i)}, {vr(t)}, {vr(u)}']

        def mfma_part(dma, consts, tabs, maybe_short, hook=None):
            Lloop, Ltail = k.label('cl'), k.label('ct')
            for e in range(4):
                k(f'v_mov_b32 {vr(AX + e)}, 0')
            k(f's_mov_b32 {sr(sN)}, {sr(sG)}')
            if self.o.get('msd', 0):
                k(f'global_load_dwordx4 {vr(MV, 4)}, v22, {P2(pWS)} sc1\nglobal_load_dwordx4 {vr(MV + 4, 4)}, v22, {P2(pWS)} offset:16 sc1')
            if self.o.get('cspread', 1):
                def rk(q, off, half):
                    k(f'ds_read_b64_tr_b16 {vr(ks(q) + 2 * half, 2)}, {vr(vK)} offset:{off + (0 if half else 32)}')

                def rh(slot_m, base, off, half):
                    k(f'ds_read_b64_tr_b16 {vr(hs(slot_m) + 2 * half, 2)}, {vr(base)} offset:{off + 96 * half}')

                def full_step(u, base, o6, o7, zero, extra):
                    fill = {7: lambda: rk(u + 2, 256 * (u + 2), 0), 6: lambda: rk(u + 2, 256 * (u + 2), 1),
                            5: lambda: rh(7 - 2 * u, base, o7, 0), 4: lambda: rh(7 - 2 * u, base, o7, 1),
                            3: lambda: rh(6 - 2 * u, base, o6, 0), 2: lambda: rh(6 - 2 * u, base, o6, 1)}
                    for i in (7, 6, 5, 4, 3, 2, 1, 0):
                        mf(ACC + 4 * i, i - 2 * u, u, zero)
                        if i in fill:
                            fill[i]()
                        if extra and dma and i == 1:
                            wdma((u + 1) % 2)
                        if extra and i == 0 and u == 2 and consts:
                            const_loads()
                        if extra and u == 4 and i == 0:
                            k(f's_sub_u32 {sr(sN)}, {sr(sN)}, 1')
                            k(f'v_subrev_u32 {vr(vH)}, 3072, {vr(vH)}\nv_add_u32 {vr(vK)}, 1024, {vr(vK)}')
                    if extra:
                        mf(AX, 1 - 2 * u, u - 1)
                full_step(0, 11, 0, 384, True, False)
                if maybe_short:
                    k(f's_cmp_eq_u32 {sr(sN)}, 0\ns_cbranch_scc1 {Ltail}')
                k(f'{Lloop}:')
                for u in range(1, 5):
                    full_step(u, vH, 384 * (8 - 2 * u), 384 * (9 - 2 * u), False, True)
                if hook:
                    hook()
                k(f's_cmp_lg_u32 {sr(sN)}, 0\ns_cbranch_scc1 {Lloop}\n{Ltail}:')
                if tabs:
                    tab_loads()
                for i in (7, 6, 5, 4, 3, 2):
                    mf(ACC + 4 * i, i - 2, 1)
                    if i in (7, 6):
                        rk(3, 768, 7 - i)
                    if dma and i in (5, 3):
                        wdma(0 if i == 5 else 1)
            else:
                mf(ACC + 28, 7, 0, True)
                mf(ACC + 24, 6, 0, True)
                ldh(6, 11, 0)
                ldh(7, 11, 384)
                for i in (5, 4, 3, 2, 1, 0):
                    mf(ACC + 4 * i, i, 0, True)
                if maybe_short:
                    k(f's_cmp_eq_u32 {sr(sN)}, 0\ns_cbranch_scc1 {Ltail}')
                k(f'{Lloop}:')
                for u in range(1, 5):
                    mf(ACC + 28, 7 - 2 * u, u)
                    mf(ACC + 24, 6 - 2 * u, u)
                    ldh(6 - 2 * u, vH, 384 * (8 - 2 * u))
                    ldh(7 - 2 * u, vH, 384 * (9 - 2 * u))
                    ldk(u + 1, 256 * (u + 1))
                    for i in (5, 4, 3, 2, 1, 0):
                        mf(ACC + 4 * i, i - 2 * u, u)
                        if self.o.get('wslow', 1):
                            if dma and i == 3:
                                wdma((u + 1) % 2)
                        else:
                            if dma and i == 5:
                                wdma(0)
                            if dma and i == 2:
                                wdma(1)
                        if i == 4 and u == 2 and consts:
                            const_loads()
                        if i == 4 and u == 3 and tabs and not self.o.get('tab_tail', 1):
                            tab_loads()
                        if u == 4 and i == 1:
                            k(f's_sub_u32 {sr(sN)}, {sr(sN)}, 1')
                            k(f'v_subrev_u32 {vr(vH)}, 3072, {vr(vH)}\nv_add_u32 {vr(vK)}, 1024, {vr(vK)}')
                    mf(AX, 1 - 2 * u, u - 1)
                if hook:
                    hook()
                k(f's_cmp_lg_u32 {sr(sN)}, 0\ns_cbranch_scc1 {Lloop}\n{Ltail}:')
                if tabs and self.o.get('tab_tail', 1):
                    tab_loads()
                ldk(2, 512)
                for i in (7, 6, 5, 4, 3, 2):
                    mf(ACC + 4 * i, i - 2, 1)
                    if dma and self.o.get('wslow', 1) and i in (6, 3):
                        wdma(0 if i == 6 else 1)
                ldk(3, 768)
            k(f'ds_read_b64_tr_b16 {vr(XV, 2)}, v8')
            k(f'ds_read_b64_tr_b16 {vr(XV + 2, 2)}, v8 offset:1536')
            for i in range(4):
                k(f'ds_read2st64_b32 {vr(SV + 2 * i, 2)}, {vr(vSB)} offset0:{2 * i} offset1:{2 * i + 1}')
            if not self.o.get('msd', 0):
                for i in range(4):
                    k(f'ds_read2st64_b32 {vr(MV + 2 * i, 2)}, v22 offset0:{2 * i} offset1:{2 * i + 1}')
            pre = []
            if self.o.get('cpre', 1):
                for i in range(8):
                    pre += base_ops(i)
            for i in (7, 6, 5, 4):
                mf(ACC + 4 * i, i - 4, 2)
            for i in (7, 6):
                mf(ACC + 4 * i, i - 6, 3)
                for x in pre[:16]:
                    k(x)
                pre = pre[16:]

        def epilogue(g, c, consts):
            SH = 'wave_shr:1 row_mask:0xf bank_mask:0xf'
            RO = 'wave_ror:1 row_mask:0xf bank_mask:0xf'
            a = lambda i, e: (AX if i < 0 else ACC + 4 * i) + e
            t2 = lambda i: TT + 1 + i
            t1 = lambda i: TT + 11 + i
            k(f"""
            s_add_u32 s58, {sr(sD0)}, {sr(c)}
            s_mul_i32 s58, s58, {X1R}
            s_lshl_b32 s59, {sr(g)}, 10
            s_add_u32 s58, s58, s59
            s_add_u32 s59, s58, {X1S}
            s_add_u32 s58, s58, {X1T}
            """)
            k(f'v_add_f32_dpp {vr(t2(-1))}, {vr(a(-1, 3))}, {vr(a(-1, 2))} {SH} bound_ctrl:0')
            for i in range(8):
                k(f'v_add_f32_dpp {vr(t2(i))}, {vr(a(i - 1, 3))}, {vr(a(i, 2))} {RO}')
            for i in range(8):
                k(f'v_add_f32_dpp {vr(t2(i))}, {vr(a(i, 3))}, {vr(a(i, 2))} {SH}')
            k(f'v_add_f32_dpp {vr(t1(-1))}, {vr(t2(-1))}, {vr(a(-1, 1))} {SH} bound_ctrl:0')
            for i in range(8):
                k(f'v_add_f32_dpp {vr(t1(i))}, {vr(t2(i - 1))}, {vr(a(i, 1))} {RO}')
            for i in range(8):
                k(f'v_add_f32_dpp {vr(t1(i))}, {vr(t2(i))}, {vr(a(i, 1))} {SH}')
            for i in range(8):
                k(f'v_add_f32_dpp {vr(a(i, 3))}, {vr(t1(i - 1))}, {vr(a(i, 0))} {RO}')
            for i in range(8):
                k(f'v_add_f32_dpp {vr(a(i, 3))}, {vr(t1(i))}, {vr(a(i, 0))} {SH}')
            if not self.o.get('cpre', 1):
                for i in range(8):
                    for x in base_ops(i):
                        k(x)
            if consts:
                self.conv_consts()
            k(f"""
            s_cmp_eq_u32 {sr(c)}, 1
            s_cselect_b32 s55, {sr(sCH + 3)}, {sr(sCH)}
            s_cselect_b32 s56, {sr(sCH + 4)}, {sr(sCH + 1)}
            s_cselect_b32 s57, {sr(sCH + 5)}, {sr(sCH + 2)}
            s_cmp_eq_u32 {sr(c)}, 2
            s_cselect_b32 s55, {sr(sCH + 6)}, s55
            s_cselect_b32 s56, {sr(sCH + 7)}, s56
            s_cselect_b32 s57, {sr(sCH + 8)}, s57
            """)
            for i in range(8):
                k(f'v_fmac_f32 {vr(MV + i)}, s56, {vr(SV + i)}')
            for i in range(8):
                k(f'v_fmac_f32 {vr(MV + i)}, s55, {vr(a(i, 3))}')
            for i in range(4):
                k(f'v_cvt_pk_bf16_f32 {vr(XV + i)}, {vr(MV + 2 * i)}, {vr(MV + 2 * i + 1)}')
            for i in range(8):
                k(f'v_mul_f32 {vr(MV + i)}, s57, {vr(MV + i)}')
            k(f'buffer_store_dwordx4 {vr(XV, 4)}, {vr(vO)}, {P4(rWS)}, s58 offen sc1', tag='x1st')
            for i in range(4):
                k(f'v_cvt_pk_bf16_f32 {vr(SV + i)}, {vr(MV + 2 * i)}, {vr(MV + 2 * i + 1)}')
            k(f'buffer_store_dwordx4 {vr(SV, 4)}, {vr(vO)}, {P4(rWS)}, s59 offen sc1', tag='x1st')

        if setup_only:
            if self.o.get('wslow', 1):
                cnt = [7, 7, 7, 5, 3, 3, 4, 4]
                st = [sum(cnt[:w]) for w in range(8)]
                pk = lambda v: (sum(x << (8 * i) for i, x in enumerate(v[:4])), sum(x << (8 * i) for i, x in enumerate(v[4:])))
                a, b = pk(st), pk([x + c - 1 for x, c in zip(st, cnt)])
                wrange = f'''s_cmp_lt_u32 {sr(sW)}, 4
            s_mov_b32 s55, {a[1]}
            s_cmov_b32 s55, {a[0]}
            s_mov_b32 s56, {b[1]}
            s_cmov_b32 s56, {b[0]}
            s_and_b32 s57, {sr(sW)}, 3
            s_lshl_b32 s57, s57, 3
            s_lshr_b32 s55, s55, s57
            s_lshr_b32 s56, s56, s57
            s_and_b32 s55, s55, 0xff
            s_and_b32 s56, s56, 0xff'''
            else:
                wrange = f's_mul_i32 s55, {sr(sW)}, 11\ns_add_u32 s56, s55, 10\ns_min_u32 s56, s56, 39'
            k(f"""
        s_lshl_b32 s55, {sr(sW)}, 2
        s_lshr_b32 {sr(sL)}, {hex(lo)}, s55
        v_lshlrev_b32 {vr(vO)}, 4, v0
        {wrange}
        s_lshl_b32 {sr(sM)}, s55, 11
        s_add_u32 {sr(sM)}, {sr(sM)}, {STG}
        s_lshl_b32 {sr(sME)}, s56, 11
        s_add_u32 {sr(sME)}, {sr(sME)}, {STG}
        s_add_u32 s55, s55, 40
        s_mul_i32 {sr(sO)}, s55, {8 * 3456}
        s_add_u32 s56, s56, 40
        s_mul_i32 {sr(sOE)}, s56, {8 * 3456}
        """)
            decode(sr(sL))
            return
        Ly, Ld = k.label('cy'), k.label('cdone')
        self.stamp('prexn')
        k.wait('xnl', 'saw', 'wrd')
        self.stamp('xnland')
        k(f's_cmp_ge_u32 {sr(sW)}, 4\ns_cbranch_scc1 {Ly}')
        k('s_barrier')
        self.stamp('xnl')
        first_loads()
        if self.o.get('pf1', 2) == 3:
            L = k.label('npf')
            k(f'''
            s_cmp_ge_u32 {sr(sW)}, 2
            s_cbranch_scc1 {L}
            s_cmp_eq_u32 {sr(sW)}, 0
            s_cselect_b32 s56, s{pWG}, s{pWU}
            s_cselect_b32 s57, s{pWG + 1}, s{pWU + 1}
            s_mul_i32 s55, {sr(sWR)}, {8 * 3456}
            s_lshl_b32 s58, {sr(sNB)}, 7
            s_add_u32 s55, s55, s58
            s_add_u32 s55, s55, {320 * 3456}
            ''')
            self.touch(56, 640 * 1728 * 2, 's55', stride=3456, lanes=40)
            k(f'{L}:')
        mfma_part(True, True, True, False)
        self.stamp('c_mm')
        epilogue(sG, sC, True)
        if not self.o.get('ga2', 0):
            self.g1_addr_early()
        k(f's_branch {Ld}')
        k(f'{Ly}:')
        if self.o.get('prio', True):
            k('s_setprio 2')
        k('s_barrier')
        self.stamp('xnl')
        first_loads()
        const_loads()
        mfma_part(False, True, False, True)
        self.stamp('y_m1')
        k(f"""
        s_mov_b32 {sr(sG2)}, {sr(sG)}
        s_mov_b32 {sr(sC2)}, {sr(sC)}
        s_lshl_b32 s55, {sr(sW)}, 2
        s_lshr_b32 {sr(sL)}, {hex(hi << 16)}, s55
        """)
        decode(sr(sL))
        first_loads()
        epilogue(sG2, sC2, True)
        self.stamp('y_e1')
        def pub(g, only=None):
            Ln = k.label('npub')
            k(f"""
            {f's_cmp_lg_u32 {sr(g)}, {only}' if only is not None else f's_cmp_ge_u32 {sr(g)}, {2 if self.o.get("s2c", 0) else 1}'}
            s_cbranch_scc1 {Ln}
            s_sub_u32 s55, {sr(sW)}, 4
            s_min_u32 s55, s55, 2
            s_lshl_b32 s55, s55, 3
            s_add_u32 s55, s55, {sr(sMB)}
            s_mul_i32 s56, {sr(g)}, {(SYNC2C - SYNC2A) // 128}
            s_add_u32 s55, s55, s56
            """)
            k.wait('x1st')
            self.arrive(SYNC2A, 24, 's55', 9)
            self.stamp('pub0')
            k(f'{Ln}:')
        Lp = k.label('kp')
        if self.o.get('prio1', 1) and self.o.get('s2c', 0):
            k(f's_cmp_eq_u32 {sr(sG)}, 1\ns_cbranch_scc1 {Lp}')
        if not self.o.get('dpub', 0):
            k(f's_setprio 0')
        if self.o.get('dpub', 0) == 2:
            k(f's_setprio 0')
        k(f'{Lp}:')
        if not self.o.get('dpub', 0) and not self.o.get('ga2', 0):
            self.g1_addr_early()
        hook = None
        if self.o.get('s2c', 0) == 2:
            pub(sG2, only=0)

            def hook():
                pub(sG2, only=1)
                k(f's_mov_b32 {sr(sG2)}, 3')
        elif self.o.get('dpub', 0):
            def hook():
                pub(sG2, only=0)
                k(f's_mov_b32 {sr(sG2)}, 3\ns_setprio 0')
        else:
            pub(sG2)
        self.stamp('y_p1')
        mfma_part(bool(self.o.get('wslow', 1)), False, True, False, hook)
        self.stamp('c_mm')
        epilogue(sG, sC, False)
        if self.o.get('dpub', 0) and not self.o.get('ga2', 0):
            self.g1_addr_early()
        self.stamp('y_e2')
        k('s_setprio 0')
        if self.o.get('s2c', 0):
            pub(sG)
        k(f'{Ld}:')
        self.stamp('conv')

    def window2(self):
        k = self.k
        AC, TF, CB = 32, 16, 92
        Lr, Ld = k.label('tb'), k.label('tbd')
        chk = f'''
        v_min_u32 v16, v12, v13
        v_min3_u32 v16, v16, v14, v15
        v_cmp_eq_u32 vcc, 0, v16
        s_cbranch_vccz {Ld}
        '''
        k(chk)
        k(f'''
        {Lr}:
        global_load_dwordx2 v[12:13], v90, {P2(pWS)} sc1
        global_load_dwordx2 v[14:15], v90, {P2(pWS)} offset:2560 sc1
        ''')
        k(chk)
        k(f'''
        s_sleep {self.o.get('sleep', 2)}
        s_add_u32 {sr(sSPIN)}, {sr(sSPIN)}, 1
        s_cmp_lt_u32 {sr(sSPIN)}, {SPIN_MAX}
        s_cbranch_scc1 {Lr}
        {Ld}:
        v_and_b32 v14, 0xffff0000, v14
        v_and_b32 v15, 0xffff0000, v15
        v_add_f32 v14, 1.0, v14
        v_add_f32 v15, 1.0, v15
        s_mov_b32 s55, 0x07060302
        v_cvt_pk_bf16_f32 v14, v14, v15
        v_perm_b32 v12, v13, v12, s55
        v_lshlrev_b32 v20, 2, v89
        v_add_u32 v20, {TAB}, v20
        ''')
        k(f'ds_write_b32 v20, v14', tag='tabw')
        k(f'ds_write_b32 v20, v12 offset:1280', tag='tabw')
        (self.g1_setup2 if self.o.get('ga2', 0) else self.g1_setup)()
        L = self.only_wave(0)
        self.poll(7, 5, 27, nl=24)
        k(f'{L}:')
        k.wait('wst', 'tabw')
        k('s_barrier')
        self.stamp('barX')
        if self.o['stop'] != 'conv':
            for c in range(2):
                for i in range(2):
                    self.g1_dma(c, i)

        def arrive2b():
            L = self.only_wave(4)
            k(f'''
        s_mul_i32 s55, {sr(sQ)}, 0x5556
        s_lshr_b32 s55, s55, 16
        s_mul_i32 s55, s55, 3
        s_sub_u32 s55, {sr(sQ)}, s55
        s_lshl_b32 s55, s55, 3
        s_add_u32 s55, s55, {sr(sMB)}
        ''')
            self.arrive(SYNC2B, 24, 's55', 12)
            k(f'{L}:')

        self.wstage_read(1, 10)
        if self.o.get('midb', 0):
            k.wait('x1st')
            k('s_barrier')
            arrive2b()
        if self.o.get('c2early', 1) and self.o['stop'] != 'conv':
            for i in range(2):
                self.g1_dma(2, i)
        Lj = k.label('csj')
        k(f'''
        s_cmp_ge_u32 {sr(sW)}, 4
        s_cbranch_scc1 {Lj}
        s_mul_i32 s55, {sr(sM1)}, 160
        v_add_u32 v8, s55, v8
        ''')
        for n in range(5):
            k(f'ds_read_b128 {vr(48 + 4 * n, 4)}, v8 offset:{32 * n}')
        Lv = [k.label('csv') for _ in range(8)]
        Le = k.label('cse')
        for m in range(1, 8):
            k(f's_cmp_eq_u32 {sr(sM1)}, {m}\ns_cbranch_scc1 {Lv[m]}')
        for m in range(8):
            k(f'{Lv[m]}:')
            for n in range(5):
                c = '0' if n == 0 else vr(AC, 16)
                k(f'v_mfma_f32_32x32x16_bf16 {vr(AC, 16)}, {vr(48 + 4 * n, 4)}, {vr(WF + 4 * (5 * m + n), 4)}, {c}')
            if m < 7:
                k(f's_branch {Le}')
        k(f'''
        {Le}:
        s_lshl_b32 s55, {sr(sNB)}, 3
        s_add_u32 s55, s55, {sr(sM1)}
        s_lshl_b32 s55, s55, 2
        s_add_u32 s55, s55, {sr(sW)}
        s_lshl_b32 s55, s55, 8
        s_add_u32 s55, s55, {CSP}
        v_lshlrev_b32 v9, 3, v0
        v_or_b32 {vr(AC)}, 1, {vr(AC)}
        v_or_b32 {vr(AC + 1)}, 1, {vr(AC + 1)}
        s_mov_b32 exec_hi, 0
        buffer_store_dwordx2 {vr(AC, 2)}, v9, {P4(rWS)}, s55 offen sc1
        s_mov_b32 exec_hi, -1
        {Lj}:
        ''')
        k.wait('x1st', 'wrd', 'ch0')
        k('s_barrier')
        self.stamp('barY')
        if not self.o.get('midb', 0):
            arrive2b()

    def cs_loads(self):
        k = self.k
        for j in range(4):
            k(f'global_load_dwordx2 {vr(80 + 2 * j if j < 3 else 88, 2)}, v79, {P2(pWS)} offset:{1024 * j} sc1')

    def cs_addr(self):
        self.k(f'''
        s_lshl_b32 s55, {sr(sNB)}, 13
        s_and_b32 s56, {sr(sW)}, 3
        s_lshl_b32 s56, s56, 8
        s_add_u32 s55, s55, s56
        s_add_u32 s55, s55, {CSP}
        v_lshrrev_b32 v79, 5, v0
        v_lshlrev_b32 v79, 12, v79
        v_and_b32 v78, 31, v0
        v_lshl_add_u32 v79, v78, 3, v79
        v_add_u32 v79, s55, v79
        ''')

    def cs_finish(self):
        k = self.k
        CB = 92
        Lr, Ld = k.label('cr'), k.label('cd')
        chk = f'''
        v_min3_u32 v90, v80, v81, v82
        v_min3_u32 v90, v90, v83, v84
        v_min3_u32 v90, v90, v85, v88
        v_min_u32 v90, v90, v89
        v_cmp_eq_u32 vcc, 0, v90
        s_cbranch_vccz {Ld}
        '''
        k(chk)
        k(f'{Lr}:\ns_sleep {self.o.get("sleep", 2)}')
        self.cs_loads()
        k(chk)
        k(f'''
        s_add_u32 {sr(sSPIN)}, {sr(sSPIN)}, 1
        s_cmp_lt_u32 {sr(sSPIN)}, {SPIN_MAX}
        s_cbranch_scc1 {Lr}
        {Ld}:
        v_add_f32 v80, v80, v82
        v_add_f32 v81, v81, v83
        v_add_f32 v84, v84, v88
        v_add_f32 v85, v85, v89
        v_add_f32 v80, v80, v84
        v_add_f32 v81, v81, v85
        v_mov_b32 v82, v80
        v_mov_b32 v83, v81
        v_cmp_gt_u32 vcc, 32, v0
        v_permlane32_swap_b32 v80, v82
        v_permlane32_swap_b32 v81, v83
        v_mov_b32 {vr(CB + 2)}, 0
        v_mov_b32 {vr(CB + 3)}, 0
        v_add_f32 v80, v80, v82
        v_add_f32 v81, v81, v83
        v_cvt_pk_bf16_f32 v82, v80, v81
        v_lshlrev_b32 v83, 16, v82
        v_and_b32 v84, 0xffff0000, v82
        v_sub_f32 v80, v80, v83
        v_sub_f32 v81, v81, v84
        v_cvt_pk_bf16_f32 v80, v83, v80
        v_cvt_pk_bf16_f32 v81, v84, v81
        v_cndmask_b32 {vr(CB)}, 0, v80, vcc
        v_cndmask_b32 {vr(CB + 1)}, 0, v81, vcc
        ''')

    def g1_addr_early(self):
        self.k(f'''
        v_lshrrev_b32 v18, 3, v0
        v_mul_u32_u24 v24, {X1R}, v18
        v_bfe_u32 v18, v0, 4, 1
        v_lshlrev_b32 v18, 2, v18
        v_and_b32 v19, 7, v0
        v_xor_b32 v18, v18, v19
        v_lshl_add_u32 v24, v18, 4, v24
        v_lshrrev_b32 v18, 5, v0
        v_bfe_u32 v19, v0, 2, 2
        v_lshl_add_u32 v18, v18, 3, v19
        v_lshlrev_b32 v25, 7, v18
        v_lshrrev_b32 v19, 1, v19
        s_lshr_b32 s55, {sr(sW)}, 2
        v_xor_b32 v19, s55, v19
        v_lshl_add_u32 v25, v19, 6, v25
        v_bfe_u32 v19, v0, 4, 1
        v_lshl_add_u32 v25, v19, 5, v25
        v_and_b32 v19, 3, v0
        v_lshl_add_u32 v25, v19, 3, v25
        v_add_u32 v25, {RING}, v25
        s_lshl_b32 s56, {sr(sM1)}, 6
        s_lshl_b32 s61, s55, 5
        s_add_u32 s56, s56, s61
        v_and_b32 v19, 31, v0
        v_add_u32 v19, s56, v19
        v_lshlrev_b32 v19, 2, v19
        v_add_u32 v28, {STATS}, v19
        s_lshl_b32 s56, {sr(sM1)}, 1
        s_add_u32 s56, s56, s55
        s_mul_i32 s56, s56, 108
        s_lshl_b32 s61, {sr(sNB)}, 2
        s_add_u32 s56, s56, s61
        s_and_b32 s61, {sr(sW)}, 3
        s_add_u32 s56, s56, s61
        s_lshl_b32 s56, s56, 10
        s_add_u32 s100, s56, {ACT}
        s_mul_i32 s101, {sr(sW)}, {16 * X1R}
        s_lshl_b32 s55, {sr(sM1)}, 7
        s_add_u32 s101, s101, s55
        s_add_u32 s101, s101, {X1S}
        v_and_b32 v29, 1, v0
        v_mul_u32_u24 v29, 1280, v29
        v_lshrrev_b32 v19, 5, v0
        v_lshl_add_u32 v29, v19, 4, v29
        v_add_u32 v29, {TAB}, v29
        ''')
        self.wread_addr(30)
        self.poll_addr(SYNC2A, 24, 21)

    def g1_setup(self):
        self.k(f'''
        v_mov_b32 v1, v24
        v_mov_b32 v2, v25
        v_add_u32 v3, {3 * 16384}, v25
        v_mov_b32 v6, v28
        v_mov_b32 v8, v29
        v_mov_b32 v10, v30
        v_mov_b32 v11, v31
        v_mov_b32 v7, v21
        s_mov_b32 s65, s100
        s_mov_b32 s66, s101
        s_lshl_b32 s67, {sr(sW)}, 11
        ''')

    def g1_addr_early2(self):
        self.k(f'''
        v_lshrrev_b32 v14, 3, v0
        v_mul_u32_u24 v91, {X1R}, v14
        v_bfe_u32 v14, v0, 4, 1
        v_lshlrev_b32 v14, 2, v14
        v_and_b32 v15, 7, v0
        v_xor_b32 v14, v14, v15
        v_lshl_add_u32 v91, v14, 4, v91
        v_lshrrev_b32 v14, 5, v0
        v_bfe_u32 v15, v0, 2, 2
        v_lshl_add_u32 v14, v14, 3, v15
        v_lshlrev_b32 v94, 7, v14
        v_lshrrev_b32 v15, 1, v15
        s_lshr_b32 s55, {sr(sW)}, 2
        v_xor_b32 v15, s55, v15
        v_lshl_add_u32 v94, v15, 6, v94
        v_bfe_u32 v15, v0, 4, 1
        v_lshl_add_u32 v94, v15, 5, v94
        v_and_b32 v15, 3, v0
        v_lshl_add_u32 v94, v15, 3, v94
        v_add_u32 v94, {RING}, v94
        s_lshl_b32 s56, {sr(sM1)}, 6
        s_lshl_b32 s61, s55, 5
        s_add_u32 s56, s56, s61
        v_and_b32 v15, 31, v0
        v_add_u32 v15, s56, v15
        v_lshlrev_b32 v15, 2, v15
        v_add_u32 v95, {STATS}, v15
        s_lshl_b32 s56, {sr(sM1)}, 1
        s_add_u32 s56, s56, s55
        s_mul_i32 s56, s56, 108
        s_lshl_b32 s61, {sr(sNB)}, 2
        s_add_u32 s56, s56, s61
        s_and_b32 s61, {sr(sW)}, 3
        s_add_u32 s56, s56, s61
        s_lshl_b32 s56, s56, 10
        s_add_u32 s100, s56, {ACT}
        s_mul_i32 s101, {sr(sW)}, {16 * X1R}
        s_lshl_b32 s55, {sr(sM1)}, 7
        s_add_u32 s101, s101, s55
        s_add_u32 s101, s101, {X1S}
        v_and_b32 v84, 1, v0
        v_mul_u32_u24 v84, 1280, v84
        v_lshrrev_b32 v15, 5, v0
        v_lshl_add_u32 v84, v15, 4, v84
        v_add_u32 v84, {TAB}, v84
        ''')
        self.wread_addr(92)
        self.poll_addr(SYNC2A, 24, 85)

    def g1_setup2(self):
        self.k(f'''
        v_mov_b32 v1, v91
        v_mov_b32 v2, v94
        v_add_u32 v3, {3 * 16384}, v94
        v_mov_b32 v6, v95
        v_mov_b32 v8, v84
        v_mov_b32 v10, v92
        v_mov_b32 v11, v93
        v_mov_b32 v7, v85
        s_mov_b32 s65, s100
        s_mov_b32 s66, s101
        s_lshl_b32 s67, {sr(sW)}, 11
        ''')

    def g1_dma(self, c, i):
        k = self.k
        slot = c % NS
        t, cc = divmod(c, 5)
        if self.o.get('x_nodma') and c >= 5:
            return
        k(f's_add_u32 m0, s67, {RING + slot * 16384 + i * 1024}')
        k(f's_add_u32 s3, s66, {t * 1024 + (cc * 128 + 8 * i) * X1R}')
        k(f'buffer_load_dwordx4 v1, {P4(rWS)}, s3 offen sc1 lds', tag=f'ch{c}')

    def g2_park(self, i, f):
        k = self.k
        m = f's_add_u32 m0, s{64 if i == 0 else 60}, {f * 1024}' if (i, f) != (6, 4) else 's_mov_b32 m0, s78'
        k(f'{m}\ns_add_u32 s3, s63, {self.G2ORD.index(i) * 40960 + f * 1024}')
        k(f'buffer_load_dwordx4 v4, {P4(rWS)}, s3 offen sc1 lds', tag=f'park{i}')

    def g2_wload(self, i, f, mains_only=False):
        k = self.k
        if i in self.o.get('y_now', ()):
            return
        n = self.G2ORD.index(i)
        k(f's_add_u32 s3, s63, {n * 40960 + f * 1024}' if n < 6 else f's_add_u32 s3, s76, {f * 1024}')
        k(f'buffer_load_dwordx4 {vr(W2[i] + 4 * f, 4)}, v4, {P4(rWS)}, s3 offen sc1')

    def g2_setup(self):
        k = self.k
        k(f'''
        s_lshr_b32 s55, s2, 3
        s_and_b32 s61, s55, 7
        s_lshr_b32 s55, s55, 3
        s_and_b32 s90, s55, 1
        s_lshr_b32 s55, s55, 1
        s_lshl_b32 s55, s55, 3
        s_add_u32 s62, s55, {sr(sMB)}
        s_mul_i32 s55, {sr(sW)}, 5120
        s_add_u32 s64, s55, {PARK0}
        s_add_u32 s60, s55, {PARK6A}
        s_sub_u32 s56, s55, {4 * 5120 - PARK6B}
        s_cmp_ge_u32 {sr(sW)}, 4
        s_cselect_b32 s60, s56, s60
        s_add_u32 s78, s60, 4096
        s_cmp_eq_u32 {sr(sW)}, 7
        s_cmov_b32 s60, {PARK7}
        s_cmov_b32 s78, 15360
        s_mul_i32 s63, s61, {54 * 5120}
        s_add_u32 s63, s63, {WD}
        s_add_u32 s63, s63, s55
        v_lshlrev_b32 v4, 4, v0
        ''')

    def g2_addr(self):
        k = self.k
        k(f'''
        v_lshrrev_b32 v76, 5, v0
        v_lshlrev_b32 v64, 10, v76
        v_bfe_u32 v76, v0, 4, 1
        v_lshl_add_u32 v64, v76, 9, v64
        v_and_b32 v77, 15, v0
        v_lshl_add_u32 v64, v77, 4, v64
        s_lshl_b32 s55, s62, 1
        s_add_u32 s55, s55, s90
        s_mul_i32 s55, s55, {108 * 1024}
        s_lshl_b32 s56, {sr(sW)}, 11
        s_add_u32 s55, s55, s56
        s_add_u32 s83, s55, {ACT}
        s_add_u32 s76, s63, {6 * 40960}
        s_add_u32 s77, s83, {6 * 16384}
        s_cmp_ge_u32 {sr(sW)}, 6
        s_cmov_b32 s76, 0x2000000
        s_cmov_b32 s77, 0x2000000
        s_lshl_b32 s55, s62, 7
        s_add_u32 s55, s55, {SYNC3}
        v_mov_b32 v65, s55
        s_lshl_b32 s55, {sr(sW)}, 10
        s_add_u32 s55, s55, {PART}
        v_add_u32 v66, s55, v4
        v_add_u32 v67, 65536, v66
        s_lshl_b32 s55, {sr(sW)}, 13
        s_add_u32 s55, s55, {PART}
        v_add_u32 v68, s55, v4
        s_lshr_b32 s57, {sr(sW)}, 2
        s_and_b32 s58, {sr(sW)}, 3
        s_lshl_b32 s55, s57, 13
        s_lshl_b32 s56, s58, 8
        s_add_u32 s55, s55, s56
        s_add_u32 s55, s55, {PART + 65536}
        v_lshl_add_u32 v69, v77, 4, s55
        s_cmp_ge_u32 {sr(sW)}, 5
        s_cselect_b32 s59, 1, 0
        s_mul_i32 s55, s59, 5
        s_sub_u32 s86, {sr(sW)}, s55
        s_add_u32 s57, s57, 3
        v_lshrrev_b32 v76, 2, v0
        v_lshlrev_b32 v70, 6, v76
        v_and_b32 v78, 3, v0
        v_lshl_add_u32 v70, v78, 3, v70
        v_and_b32 v71, 0xff, v70
        s_lshl_b32 s55, s86, 10
        s_lshl_b32 s56, s59, 5
        s_add_u32 s55, s55, s56
        s_add_u32 s55, s55, {RESID}
        v_add_u32 v70, s55, v70
        s_lshl_b32 s55, s57, 10
        s_lshl_b32 s56, s58, 8
        s_add_u32 s55, s55, s56
        s_add_u32 s55, s55, {RESID + 32}
        v_add_u32 v71, s55, v71
        s_mul_i32 s87, s61, 80
        s_lshl_b32 s55, s86, 4
        s_add_u32 s55, s55, s87
        v_lshrrev_b32 v76, 4, v0
        v_lshl_add_u32 v72, v76, 2, s55
        s_lshl_b32 s55, s57, 4
        s_lshl_b32 s56, s58, 2
        s_add_u32 s55, s55, s56
        s_add_u32 s55, s55, s87
        v_mov_b32 v73, s55
        s_lshl_b32 s55, s90, 5
        s_lshl_b32 s56, s59, 4
        s_add_u32 s56, s56, s55
        s_add_u32 s55, s55, 16
        s_lshr_b32 s88, s62, 3
        s_lshl_b32 s88, s88, 9
        s_lshl_b32 s89, {sr(sMB)}, 3
        s_add_u32 s88, s88, s89
        ''')
        for dst, ch, sp in ((74, 72, 's56'), (75, 73, 's55')):
            k(f'''
            v_add_u32 v76, {sp}, v77
            v_and_b32 v78, 7, v76
            v_lshrrev_b32 v76, 3, v76
            v_lshl_add_u32 v76, v78, 6, v76
            v_add_u32 v76, s88, v76
            v_mul_u32_u24 v76, 1280, v76
            v_lshl_add_u32 {vr(dst)}, {vr(ch)}, 1, v76
            v_lshlrev_b32 {vr(ch)}, 2, {vr(ch)}
            v_add_u32 {vr(ch)}, {MOD + 5 * 2560}, {vr(ch)}
            ''')

    def g1(self):
        k = self.k
        TF, CB = 16, 92
        ACC = [32, 48]
        vRA, vRB, vST, vSTA, vPA, vPD = 2, 3, 5, 6, 7, 8
        K1, K2, S2 = 9, 10, 11
        BF = 12
        ET = 80
        OUTR = 88
        k(f'v_mov_b32 {vr(BF + 2)}, 0\nv_mov_b32 {vr(BF + 3)}, 0')
        if self.o.get('s2c', 0):
            L = self.only_wave(0)
            self.poll_addr(SYNC2C, 24, vPA)
            self.poll_issue(vPA, vPD, 24)
            k(f'{L}:')

        def rd(sig):
            c, s8 = divmod(sig, 8)
            slot = c % NS
            base, off = (vRA, slot * 16384) if slot < 3 else (vRB, (slot - 3) * 16384)
            off += s8 * 2048
            r = TF + 4 * (sig % 4)
            if self.o.get('x_nord') and sig >= 4:
                return
            if self.o.get('x_b128'):
                k(f'ds_read_b128 {vr(r, 4)}, v4 offset:{off % 32768}')
                return
            k(f'ds_read_b64_tr_b16 {vr(r, 2)}, {vr(base)} offset:{off}')
            k(f'ds_read_b64_tr_b16 {vr(r + 2, 2)}, {vr(base)} offset:{off + 512}')

        C1 = -2 * LOG2E * math.sqrt(2 / math.pi) * 0.044715
        C2 = -2 * LOG2E * math.sqrt(2 / math.pi)

        def epi_ops(t):
            acc = ACC[t % 2]
            ops = []

            def head():
                if not self.o.get('x_nostat'):
                    self.poll(vSTA, vST, '0x10000', preissued=True, off=2048 * (t & 1))
                k(f'''
                s_mov_b32 s55, 0x01000100
                s_mov_b32 s56, 0x03020302
                v_perm_b32 {vr(BF)}, {vr(vST)}, {vr(vST)}, s55
                v_perm_b32 {vr(BF + 1)}, {vr(vST)}, {vr(vST)}, s56
                v_xor_b32 {vr(BF)}, 0x80008000, {vr(BF)}
                v_and_b32 {vr(S2)}, 0xffff0000, {vr(vST)}
                v_rcp_f32 {vr(K2)}, {vr(S2)}
                v_mfma_f32_32x32x16_bf16 {vr(acc, 16)}, {vr(CB, 4)}, {vr(BF, 4)}, {vr(acc, 16)}
                ''')
            ops.append(head)
            ops.append(lambda: k(f'''
                v_mul_f32 {vr(S2)}, {vr(S2)}, {vr(S2)}
                v_mul_f32 {vr(K1)}, {vr(K2)}, {vr(K2)}
                v_mul_f32 {vr(K2)}, {f32(C2)}, {vr(K2)}
                '''))
            ops.append(lambda: k(f'''
                v_mul_f32 {vr(K1)}, {f32(0.044715)}, {vr(K1)}
                v_mul_f32 {vr(K1)}, {vr(K1)}, {vr(K2)}
                '''))
            ops.append(lambda: None)
            flat = []
            for grp in range(2):
                E = range(4 * grp, 4 * grp + 4)
                for fmt in ('v_mul_f32 {t}, {g}, {g}', 'v_fma_f32 {t}, {t}, {k1}, {k2}', 'v_mul_f32 {t}, {t}, {g}', 'v_exp_f32 {t}, {t}',
                            'v_mul_f32 {u}, {u}, {g}', 'v_fma_f32 {t}, {t}, {s2}, {s2}', 'v_rcp_f32 {t}, {t}', 'v_mul_f32 {u}, {u}, {t}'):
                    for e in E:
                        flat.append(fmt.format(t=vr(ET + e % 4), g=vr(acc + e), u=vr(acc + 8 + e), k1=vr(K1), k2=vr(K2), s2=vr(S2)))
                for p in (2 * grp, 2 * grp + 1):
                    flat.append(f'v_cvt_pk_bf16_f32 {vr(OUTR + p)}, {vr(acc + 8 + 2 * p)}, {vr(acc + 9 + 2 * p)}')
            nst = self.o.get('epi_steps', [24, 20, 33, 16])
            nst = nst if isinstance(nst, int) else nst[t]
            cost = lambda x: 2 if ('exp' in x or 'rcp' in x) else 1
            tot = sum(map(cost, flat))
            cum, cur, n = 0, [], 1
            for x in flat:
                cur.append(x)
                cum += cost(x)
                if cum * nst >= n * tot:
                    ops.append(lambda cur=cur: k('\n'.join(cur)))
                    cur = []
                    n += 1
            assert not cur

            def fin():
                k(f's_add_u32 s3, s65, {t * 16 * 108 * 1024}')
                k(f'buffer_store_dwordx4 {vr(OUTR, 4)}, v4, {P4(rWS)}, s3 offen sc1', tag=f'act{t}')
            ops.append(fin)
            return ops

        def publish(t):
            L = self.only_wave(0)
            k(f'''
            s_add_u32 s55, {sr(sM1)}, {8 * t}
            s_lshl_b32 s55, s55, 7
            s_add_u32 s55, s55, {SYNC3}
            v_mov_b32 {vr(ET + 4)}, s55
            v_mov_b32 {vr(ET + 5)}, 1
            s_mov_b64 exec, 1
            global_atomic_add {vr(ET + 4)}, {vr(ET + 5)}, {P2(pWS)} sc1
            s_mov_b64 exec, -1
            {L}:
            ''')

        epi_start = self.o.get('epi_start', [50, 81, 121, 160])
        epi_rate = self.o.get('epi_rate', [1, 1, 1, 1])
        stat_ld = {max(0, s - self.o.get('stat_pre', 14)): t for t, s in enumerate(epi_start)}
        todo = {}
        for t in range(3):
            ops = epi_ops(t)
            sig = epi_start[t]
            while ops:
                for _ in range(epi_rate[t]):
                    if ops:
                        todo.setdefault(sig, []).append(ops.pop(0))
                sig += 1
            assert sig <= 160 and (t == 2 or sig <= epi_start[t + 1]), (t, sig)
            assert sig <= 40 * (t + 2)
            todo.setdefault('done', {})[t] = sig
        done_at = todo.pop('done')
        pub_at = {}
        for t in range(3):
            s = done_at[t] + self.o.get('pub_lag', 12)
            s = ((s - 3 + 7) // 8) * 8 + 3
            pub_at.setdefault(min(s, 163), []).append(t)
        s2c = self.o.get('s2c', 0)
        B2 = self.o.get('b2_chunk', 1 if s2c else 2)
        B3 = self.o.get('b3_chunk', 6)
        self.stamp('g1go')
        keep, self.k = self.k, Kern()
        self.cs_addr()
        self.g2_setup()
        self.g2_addr()
        late, self.k = self.k.ins, keep
        grp, cur = [], []
        for x in late:
            cur.append(x)
            if len(cur) >= 4 and (x.op in ('s_add_u32', 's_lshl_b32', 's_mul_i32', 's_and_b32', 's_lshr_b32') or x.op.startswith('v_')):
                grp.append(cur)
                cur = []
        grp.append(cur)
        assert len(grp) <= 31
        if self.o.get('x_latefirst'):
            for g_ in grp:
                k.ins += g_
            grp = []
            self.stamp('g1go2')
        if self.o.get('g1prio'):
            L = k.label('gp')
            k(f's_cmp_lt_u32 {sr(sW)}, 4\ns_cbranch_scc1 {L}\ns_setprio 1\n{L}:')
        for sig in range(4):
            rd(sig)
        issued = 5
        dq = [lambda c=c, i=i: self.g1_dma(c, i) for c in ((3, 4) if self.o.get('c2early', 1) else (2, 3, 4)) for i in range(2)]
        if self.o.get('c2early', 1) == 2:
            dq = [dq[0], lambda: None, dq[1], lambda: None, lambda: None, dq[2], lambda: None, dq[3]]
        p0 = self.o.get('park_at', 5)
        g2at = {p0 + n: [(0, n)] if n < 5 else [(6, n - 5)] for n in range(10)}
        if self.o.get('park2'):
            g2at = {p0 + n: [(0, n), (6, n)] for n in range(5)}
        pissue = {8 * B2 + 4: (SYNCW, 4, vPA), 36: (SYNC2B, 24, vPA), self.o.get('pa_issue', 140): (None, 1, 65)}
        pcheck = {B2: (27, 24, vPA), 4: (10, 4, vPA), B3: (9, 24, vPA), 19: (27, 1, 65)}
        if not s2c:
            B3 = B2
            pissue = {8 * B2 + 3 - self.o.get('b2_pre', 10): (SYNC2B, 24, vPA), 8 * B2 + 4: (SYNCW, 4, vPA), self.o.get('pa_issue', 140): (None, 1, 65)}
            pcheck = {B2: (9, 24, vPA), 4: (10, 4, vPA), 19: (27, 1, 65)}
        nd = self.o.get('w2_in_t3', 15)
        wl = {126 + (self.o.get('wl_span', 33) * n) // nd: (1 + n // 5, n % 5) for n in range(nd)}
        assert all(sg >= 120 + 5 * (i - 1) + f for sg, (i, f) in wl.items()) and len(wl) == nd
        for sig in range(160):
            t, s = divmod(sig, 40)
            c = sig // 8
            acc = ACC[t % 2]
            cop = '0' if s == 0 else vr(acc, 16)
            if self.o.get('wait2') and sig % 2 == 0 and sig < 156:
                k('s_waitcnt lgkmcnt(4)')
            if self.o.get('x_m16'):
                for hh in range(2):
                    a4 = acc + 8 * (s % 2) + 4 * hh
                    wf = WF + 4 * ((s & ~1) + hh)
                    k(f'v_mfma_f32_16x16x32_bf16 {vr(a4, 4)}, {vr(wf, 4)}, {vr(TF + 4 * (sig % 4), 4)}, {"0" if s < 2 else vr(a4, 4)}')
            else:
                k(f'v_mfma_f32_32x32x16_bf16 {vr(acc, 16)}, {vr(WF + 4 * s, 4)}, {vr(TF + 4 * (sig % 4), 4)}, {cop}')
            if sig in pissue and not self.o.get('x_nopoll'):
                base, nl, va = pissue[sig]
                L = self.only_wave(0)
                if base is not None:
                    self.poll_addr(base, nl, va)
                self.poll_issue(va, vPD, nl)
                k(f'{L}:')
            if sig % 8 == 3:
                if c in pcheck and not self.o.get('x_nopoll'):
                    cnt, nl, va = pcheck[c]
                    L = self.only_wave(0)
                    self.poll(va, vPD, cnt, preissued=True, nl=nl)
                    k(f'{L}:')
                w = [f'ch{c + 1}'] if c + 1 < 20 else ['resid']
                w += [f'act{tt}' for tt in pub_at.get(sig, [])]
                if w and not self.o.get('x_nowait'):
                    k.wait(*w)
                if not self.o.get('x_nobar') or c in (B2, B2 + 2):
                    k('s_barrier')
                for tt in pub_at.get(sig, []):
                    publish(tt)
                if c >= B2:
                    while issued < (20 if c >= B3 else 10) and issued <= c - 1 + NS:
                        dq += [lambda c=issued, i=i: self.g1_dma(c, i) for i in range(2)]
                        issued += 1
                if c in g2at and not self.o.get('x_nog2d'):
                    dq += [lambda j=j, i=i: self.g2_park(j, i) for j, i in g2at[c]]
            elif dq:
                dq.pop(0)()
            if sig + 4 < 160:
                rd(sig + 4)
            if sig >= 4 and grp and sig % 8 != 3:
                k.ins += grp.pop(0)
            if sig == self.o.get('cs_ld', 30) and not self.o.get('x_nocs'):
                self.cs_loads()
            if sig == self.o.get('cs_fin', 46) and not self.o.get('x_nocs'):
                self.cs_finish()
            if sig in wl:
                self.g2_wload(*wl[sig])
            tw = self.o.get('twd', 0)
            if tw and sig in (tw, tw + 16):
                k(f'''
                s_mul_i32 s55, {sr(sQ)}, 640
                s_mul_i32 s56, {sr(sW)}, 80
                s_add_u32 s55, s55, s56
                s_add_u32 s55, s55, {0 if sig == tw else 40}
                s_lshl_b32 s55, s55, 7
                s_add_u32 s55, s55, {WD}
                v_lshlrev_b32 v78, 7, v0
                s_mov_b32 exec_hi, 0xff
                buffer_load_dword v79, v78, {P4(rWS)}, s55 offen sc1
                s_mov_b32 exec_hi, -1
                ''')
            if sig == 140:
                self.resid_dma(76)
            if sig in stat_ld:
                tt = stat_ld[sig]
                if tt == 2:
                    k(f'v_add_u32 {vr(vSTA)}, 4096, {vr(vSTA)}')
                if not self.o.get('x_nostat'):
                    k(f'global_load_dword {vr(vST)}, {vr(vSTA)}, {P2(pWS)} offset:{2048 * (tt & 1)} sc1')
            for op in todo.get(sig, []):
                if not self.o.get('x_noepi'):
                    op()
            if sig % 40 == 39:
                self.stamp(f't{t}')
            if sig % 8 == 7 and sig < 80:
                self.stamp(f'c{sig // 8}')
            if self.o.get('jitter') and sig % 8 in (1, 5) and not grp:
                self.stamp('j')
        assert not dq
        if not self.o.get('late01'):
            for n in range(2):
                self.g2_lda(0, n)
        k.wait('park0', 'park6')
        k(f'v_add_u32 v76, s64, v4\nv_add_u32 v77, s60, v4\nv_add_u32 v78, s78, v4')
        for f in range(5):
            k(f'ds_read_b128 {vr(W2[0] + 4 * f, 4)}, v76 offset:{1024 * f}')
        for f in range(5):
            k(f'ds_read_b128 {vr(W2[6] + 4 * f, 4)}, v77 offset:{1024 * f}' if f < 4 else f'ds_read_b128 {vr(W2[6] + 16, 4)}, v78', tag='parkrd')
        rest = [(1 + n // 5, n % 5) for n in range(nd, 25)]
        ops = epi_ops(3)
        if self.o.get('tprio', 1):
            k('s_setprio 2')
        for op in ops[:3]:
            op()
        acc = ACC[1]
        T = lambda e: 32 + e
        for fmt in ('v_mul_f32 {t}, {g}, {g}', 'v_fma_f32 {t}, {t}, {k1}, {k2}', 'v_mul_f32 {t}, {t}, {g}', 'v_exp_f32 {t}, {t}',
                    'v_mul_f32 {u}, {u}, {g}', 'v_fma_f32 {t}, {t}, {s2}, {s2}', 'v_rcp_f32 {t}, {t}', 'v_mul_f32 {u}, {u}, {t}'):
            for e in range(8):
                k(fmt.format(t=vr(T(e)), g=vr(acc + e), u=vr(acc + 8 + e), k1=vr(K1), k2=vr(K2), s2=vr(S2)))
            if len(rest) > 10 - self.o.get('w2_tail', 0):
                self.g2_wload(*rest.pop(0))
        for p in range(4):
            k(f'v_cvt_pk_bf16_f32 {vr(OUTR + p)}, {vr(acc + 8 + 2 * p)}, {vr(acc + 9 + 2 * p)}')
        ops[-1]()
        k('s_setprio 0')
        self.stamp('g1end')
        if self.o.get('late01'):
            for n in range(2):
                self.g2_lda(0, n)
        if not self.o.get('hold', 0):
            for n in range(2, 4):
                self.g2_lda(0, n)
        self.resid_read()
        self.g2_rest = rest
        self.late_pub = pub_at.get(163, []) + [3]
        self.publish = publish

    def resid_dma(self, va=1):
        k = self.k
        k(f'''
        v_lshrrev_b32 v{va}, 2, v0
        v_mul_u32_u24 v{va}, {X1R}, v{va}
        v_and_b32 v{va + 1}, 3, v0
        v_lshl_add_u32 v{va}, v{va + 1}, 4, v{va}
        s_lshl_b32 s55, s86, 4
        s_add_u32 s55, s55, s87
        s_mul_i32 s55, s55, {X1R}
        s_lshl_b32 s56, s62, 7
        s_lshl_b32 s57, s90, 6
        s_add_u32 s56, s56, s57
        s_add_u32 s56, s56, {X1T}
        s_cmp_ge_u32 {sr(sW)}, 5
        s_cselect_b32 s57, 2048, 0
        s_add_u32 s55, s55, s56
        s_add_u32 s55, s55, s57
        s_lshl_b32 s57, {sr(sW)}, 10
        s_add_u32 m0, s57, {RESID}
        ''')
        k(f'buffer_load_dwordx4 v{va}, {P4(rWS)}, s55 offen sc1 lds', tag='resid')
        k(f'''
        s_add_u32 s55, {sr(sW)}, 3
        s_lshl_b32 s55, s55, 4
        s_add_u32 s55, s55, s87
        s_mul_i32 s55, s55, {X1R}
        s_add_u32 s55, s55, s56
        s_add_u32 s55, s55, 2048
        s_add_u32 m0, s57, {RESID + 8192}
        s_cmp_lt_u32 {sr(sW)}, 2
        s_cselect_b64 exec, -1, 0
        ''')
        k(f'buffer_load_dwordx4 v{va}, {P4(rWS)}, s55 offen sc1 lds', tag='resid')
        k('s_mov_b64 exec, -1')

    RESR = {(0, 0): 92, (0, 1): 94, (1, 0): 90, (1, 1): 6}

    def resid_read(self):
        for (h, p), r in self.RESR.items():
            self.k(f'ds_read_b64_tr_b16 {vr(r, 2)}, v{70 + p} offset:{5120 * h}', tag='parkrd')

    G2ORD = [0, 6, 1, 2, 3, 4, 5]

    def g2_af(self, h, n, tt):
        r = (2 * (7 * h + n) + tt) % 8
        return 16 + 4 * r if r < 4 else 236 + 4 * (r - 4)

    def g2_lda(self, h, n, only=None):
        k = self.k
        if self.o.get('y_noact') == h + 1 and n > 0:
            return
        so = 's3'
        k(f's_add_u32 s3, s83, {h * 32 * 108 * 1024 + n * 16384}' if n < 6 else f's_add_u32 s3, s77, {h * 32 * 108 * 1024}')
        for tt in (range(2) if only is None else [only]):
            k(f'buffer_load_dwordx4 {vr(self.g2_af(h, n, tt), 4)}, v64, {P4(rWS)}, {so} offen offset:{256 * tt} {self.o.get("actpol", "sc1")}')

    def g2(self):
        k = self.k
        ACC, GB = 24, 8
        acc = lambda t: 32 + 4 * t if t < 8 else 76 + 4 * (t - 8)
        k('L_g2:')

        def steps(h):
            q = [lambda i=i, f=f: self.g2_wload(i, f) for i, f in (self.g2_rest if h == 0 else [])]
            qa = [lambda n=n, tt=tt: self.g2_lda(h, n, tt) for n in range(4, 7) for tt in range(2)]
            need = {}
            ps = self.o.get('pub_step', 0)
            po = self.o.get('pub_step_o', 3)

            def pubblock(n):
                if h == 0 and n in (ps, po):
                    Ls = None
                    if ps != po:
                        Ls = k.label('pbs')
                        k(f's_cmp_{"lt" if n == ps else "ge"}_u32 {sr(sW)}, 4\ns_cbranch_scc1 {Ls}')
                    k.wait('parkrd', *[f'act{t}' for t in self.late_pub])
                    k('s_barrier')
                    if n == po:
                        Lh = k.label('hp')
                        k(f's_cmp_lt_u32 s2, 40\ns_cbranch_scc1 {Lh}')
                        for t in self.late_pub:
                            self.publish(t)
                        k(f'{Lh}:')
                    self.stamp('pub3')
                    if Ls:
                        k(f'{Ls}:')

            pubblock(-1)
            for n in range(7):
                i = self.G2ORD[n]
                L = None
                for tt in range(2):
                    for j in range(5):
                        a = acc(5 * tt + j)
                        c = '0' if n == 0 else vr(a, 4)
                        k(f'v_mfma_f32_16x16x32_bf16 {vr(a, 4)}, {vr(W2[i] + 4 * j, 4)}, {vr(self.g2_af(h, n, tt), 4)}, {c}')
                        if self.o.get('hold', 0) and h == 0 and n <= ps:
                            continue
                        if not L and j == 4 and qa:
                            qa.pop(0)()
                        elif not L and j in (0, 1, 2) and q:
                            q.pop(0)()
                if L:
                    k(f'{L}:')
                    for _ in range(2):
                        if qa:
                            qa.pop(0)()
                if self.o.get('jitter'):
                    self.stamp('j')
                pubblock(n)
                if h == 0 and n == 5:
                    k(f'global_load_dwordx4 v[8:11], v72, {P2(pWS)} sc1\nglobal_load_dwordx4 v[12:15], v73, {P2(pWS)} sc1')
                if h == 0 and n == 6:
                    L = self.only_wave(0)
                    self.poll_issue(65, 3, 1, off=2048)
                    k(f'{L}:')
            assert not q and not qa
            if h == 0:
                self.stamp('h0')
            for t in range(10):
                k(f'ds_write_b128 v{66 + t // 8}, {vr(acc(t), 4)} offset:{8192 * (t % 8)}', tag='pw')
            if h == 0:
                L = self.only_wave(0)
                self.poll(65, 3, 27, preissued=True, nl=1, off=2048, sleep=self.o.get('sleep3', 4))
                k(f'{L}:')
                k('v_add_u32 v66, 81920, v66\nv_add_u32 v67, 81920, v67')

        def finalize(h):
            R = {0: 32, 1: 48}
            if self.o.get('fprio', 0):
                k('s_setprio 2')
            for half in range(2):
                for p in range(2):
                    for w in range(4):
                        dst = (R[p] if half == 0 else (76 if p == 0 else 252)) if w == 0 and half == 1 else R[p] + 4 * w
                        k(f'ds_read_b128 {vr(dst, 4)}, v{68 + p} offset:{1024 * (4 * half + w)}', tag='fin')
                if half == 0:
                    if h == 0:
                        self.g2_lda(1, 2)
                    for p in range(2):
                        for a, b in ((0, 1), (2, 3), (0, 2)):
                            for e in (0, 2):
                                k(f'v_pk_add_f32 {vr(R[p] + 4 * a + e, 2)}, {vr(R[p] + 4 * a + e, 2)}, {vr(R[p] + 4 * b + e, 2)}')
            if h == 0:
                self.g2_lda(1, 3)
            for p in range(2):
                x = 76 if p == 0 else 252
                for a, b in ((x, R[p] + 4), (R[p] + 8, R[p] + 12), (R[p], x), (R[p], R[p] + 8)):
                    for e in (0, 2):
                        k(f'v_pk_add_f32 {vr(a + e, 2)}, {vr(a + e, 2)}, {vr(b + e, 2)}')
                for e in range(4):
                    g, t = GB + 4 * p + e, R[p] + 4 + e
                    if h == 0:
                        k(f'v_and_b32 {vr(g)}, 0xffff0000, {vr(g)}')
                    k(f'v_lshlrev_b32 {vr(t)}, 16, {vr(self.RESR[h, p] + e // 2)}' if e % 2 == 0 else f'v_and_b32 {vr(t)}, 0xffff0000, {vr(self.RESR[h, p] + e // 2)}')
                    k(f'v_fmac_f32 {vr(t)}, {vr(R[p] + e)}, {vr(g)}')
                o = 84 if p == 0 else 88
                k(f'v_cvt_pk_bf16_f32 v{o}, {vr(R[p] + 4)}, {vr(R[p] + 5)}\nv_cvt_pk_bf16_f32 v{o + 1}, {vr(R[p] + 6)}, {vr(R[p] + 7)}')
                if p == 1:
                    k('s_mov_b64 exec, 0xffff')
                k(f'global_store_dwordx2 v{74 + p}, v[{o}:{o + 1}], {P2(pOUT)} {self.o.get("outpol", "")}')
                if p == 1:
                    k('s_mov_b64 exec, -1')
            k('s_setprio 0')
            if h == 0:
                k(f'v_add_u32 v74, {1024 * 1280}, v74\nv_add_u32 v75, {1024 * 1280}, v75\nv_add_u32 v68, 81920, v68\nv_add_u32 v69, 81920, v69')

        steps(0)
        k.wait('pw')
        k('s_barrier')
        self.stamp('s3')
        for n in range(2):
            self.g2_lda(1, n)
        finalize(0)
        if self.o.get('wb2'):
            L = self.only_wave(7)
            k(f's_lshr_b32 s55, s2, 3\ns_and_b32 s55, s55, {self.o["wb2"] - 1}\ns_cmp_lg_u32 s55, 0\ns_cbranch_scc1 {L}\nbuffer_wbl2 sc1')
            k(f'{L}:')
        self.stamp('f0')
        steps(1)
        self.stamp('g2m')
        k.wait('pw')
        k('s_barrier')
        finalize(1)
        self.stamp('end')

    def strip_reduce(self, nval, V, RED):
        k = self.k
        n = nval
        for i in range(n // 2):
            k(f'v_permlane32_swap_b32 {vr(V + i)}, {vr(V + n // 2 + i)}')
        for i in range(n // 2):
            k(f'v_add_f32 {vr(V + i)}, {vr(V + i)}, {vr(V + n // 2 + i)}')
        n //= 2
        for i in range(n // 2):
            k(f'v_permlane16_swap_b32 {vr(V + i)}, {vr(V + n // 2 + i)}')
        for i in range(n // 2):
            k(f'v_add_f32 {vr(V + i)}, {vr(V + i)}, {vr(V + n // 2 + i)}')
        n //= 2
        for i in range(n):
            k(f'v_add_f32_dpp {vr(V + i)}, {vr(V + i)}, {vr(V + i)} row_ror:8 row_mask:0xf bank_mask:0xf')
        q = nval // 4
        k(f'''
        v_lshrrev_b32 v8, 4, v0
        v_mul_u32_u24 v8, {q}, v8
        v_and_b32 v9, 7, v8
        v_lshrrev_b32 v8, 3, v8
        v_lshl_add_u32 v9, v8, 6, v9
        v_and_b32 v8, 7, v0
        v_lshl_add_u32 v9, v8, 3, v9
        s_mul_i32 s55, {sr(sW)}, {8 * nval}
        v_add_u32 v9, s55, v9
        v_lshlrev_b32 v9, 2, v9
        s_mov_b32 exec_lo, 0x00ff00ff
        s_mov_b32 exec_hi, 0x00ff00ff
        ''')
        if q == 2:
            k(f'ds_write_b64 v9, {vr(V, 2)} offset:{RED}', tag='redw')
        else:
            k(f'ds_write_b128 v9, {vr(V, 4)} offset:{RED}', tag='redw')
        k('s_mov_b64 exec, -1')
        k.wait('redw')
        k('s_barrier')

    def mod_and_wd(self):
        k = self.k
        k(f'''
        s_cmp_lt_u32 s2, 14
        s_cselect_b32 s76, 2, 1
        s_mov_b32 s75, s2
        s_mul_i32 s72, {sr(sW)}, 5120
        s_mul_i32 s71, s75, 40960
        s_add_u32 s71, s71, s72
        s_add_u32 s72, s72, 8192
        v_lshlrev_b32 v21, 4, v0
        ''')
        self.mod_partial()
        if self.o.get('wdlate'):
            L = self.only_wave(0)
            self.poll_sync1(215, 58)
            k(f'{L}:')
        k('s_barrier')
        for i in range(10):
            k(f'''
            s_cmp_ge_u32 s76, {1 + i // 5}
            s_cselect_b64 exec, -1, 0
            s_mov_b32 m0, s72
            s_add_u32 s72, s72, {1024 if i != 4 else 40960 - 4096}
            ''')
            k(f'buffer_load_dwordx4 v21, {P4(rB)}, s71 offen {self.o["nt"]} lds', tag='wdl')
            k(f's_mov_b64 exec, -1\ns_add_u32 s71, s71, {1024 if i != 4 else 40 * 40960 - 4096}')
        L = self.only_wave(0)
        self.poll_sync1(215, 58)
        Lr, Ld = k.label('fr'), k.label('fd')
        k(f'''
        s_cmp_ge_u32 s2, 30
        s_cbranch_scc1 {L}
        s_add_u32 s55, s2, 30
        s_lshl_b32 s56, s55, 11
        s_add_u32 s56, s56, {MODP}
        v_lshl_add_u32 v8, v0, 2, s56
        {Lr}:
        ''')
        for e in range(8):
            k(f'global_load_dword {vr(32 + e)}, v8, {P2(pWS)} offset:{256 * e} sc1')
        k(f'''
        v_min3_u32 v40, v32, v33, v34
        v_min3_u32 v40, v40, v35, v36
        v_min3_u32 v40, v40, v37, v38
        v_min_u32 v40, v40, v39
        v_cmp_eq_u32 vcc, 0, v40
        s_cbranch_vccz {Ld}
        s_sleep {self.o.get('sleep', 2)}
        s_add_u32 {sr(sSPIN)}, {sr(sSPIN)}, 1
        s_cmp_lt_u32 {sr(sSPIN)}, {SPIN_MAX}
        s_cbranch_scc1 {Lr}
        {Ld}:
        v_add_f32 v32, v32, v36
        v_add_f32 v33, v33, v37
        v_add_f32 v34, v34, v38
        v_add_f32 v35, v35, v39
        v_add_f32 v32, v32, v33
        v_add_f32 v34, v34, v35
        v_add_f32 v32, v32, v34
        v_cvt_pk_bf16_f32 v32, v32, v32
        v_and_b32 v32, 0xffff0000, v32
        v_or_b32 v32, 1, v32
        s_lshl_b32 s55, s55, 8
        s_add_u32 s55, s55, {MOD}
        v_lshlrev_b32 v8, 2, v0
        buffer_store_dword v32, v8, {P4(rWS)}, s55 offen sc1
        ''')
        self.stamp('h_mod')
        k(f'{L}:')
        Lw, Lwd = k.label('wdl'), k.label('wdd')
        k(f'''
        v_lshrrev_b32 v9, 5, v0
        v_lshlrev_b32 v9, 4, v9
        v_bfe_u32 v10, v0, 2, 3
        v_add_u32 v9, v9, v10
        v_mul_u32_u24 v9, 1280, v9
        v_and_b32 v10, 3, v0
        v_lshl_add_u32 v9, v10, 3, v9
        s_mul_i32 s56, {sr(sW)}, 160
        v_add_u32 v9, s56, v9
        s_mul_i32 s55, {sr(sW)}, {54 * 5120}
        s_mul_i32 s56, s75, 5120
        s_add_u32 s55, s55, s56
        s_add_u32 s55, s55, {WD}
        s_waitcnt vmcnt(0)
        s_barrier
        s_cmp_eq_u32 s76, 0
        s_cbranch_scc1 {Lwd}
        {Lw}:
        ''')
        for j in range(5):
            k(f'ds_read_b64_tr_b16 {vr(32 + 4 * j, 2)}, v9 offset:{8192 + 32 * j}')
            k(f'ds_read_b64_tr_b16 {vr(34 + 4 * j, 2)}, v9 offset:{8192 + 32 * j + 8 * 1280}')
        k('s_add_u32 s56, s55, 4096')
        for j in range(5):
            k(f'buffer_store_dwordx4 {vr(32 + 4 * j, 4)}, v21, {P4(rWS)}, s{55 + j // 4} offen offset:{1024 * (j % 4)} sc1')
        k(f'''
        s_add_u32 s55, s55, {40 * 5120}
        v_add_u32 v9, 40960, v9
        s_sub_u32 s76, s76, 1
        s_cmp_lg_u32 s76, 0
        s_cbranch_scc1 {Lw}
        {Lwd}:
        s_waitcnt vmcnt(0)
        s_barrier
        ''')

    def stats_job(self):
        k = self.k
        LD, V = 96, 32
        k(f'''
        v_lshrrev_b32 v8, 3, v0
        s_mul_i32 s55, {sr(sW)}, 80
        v_add_u32 v8, s55, v8
        v_mul_u32_u24 v8, {X1R}, v8
        v_and_b32 v10, 7, v0
        v_lshl_add_u32 v8, v10, 4, v8
        s_lshl_b32 s55, s2, 7
        s_add_u32 s55, s55, {X1T}
        ''')
        for i in range(10):
            k(f'buffer_load_dwordx4 {vr(LD + 4 * i, 4)}, v8, {P4(rWS)}, s55 offen sc1')
            if i < 9:
                k(f's_add_u32 s55, s55, {8 * X1R}')
        for i in range(10):
            for j in range(4):
                r = LD + 4 * i + j
                if i == 0:
                    k(f'''
                    v_lshlrev_b32 {vr(V + 2 * j)}, 16, {vr(r)}
                    v_and_b32 {vr(V + 2 * j + 1)}, 0xffff0000, {vr(r)}
                    v_mul_f32 {vr(V + 8 + 2 * j)}, {vr(V + 2 * j)}, {vr(V + 2 * j)}
                    v_mul_f32 {vr(V + 9 + 2 * j)}, {vr(V + 2 * j + 1)}, {vr(V + 2 * j + 1)}
                    ''')
                else:
                    k(f'''
                    v_lshlrev_b32 v11, 16, {vr(r)}
                    v_and_b32 v12, 0xffff0000, {vr(r)}
                    v_add_f32 {vr(V + 2 * j)}, {vr(V + 2 * j)}, v11
                    v_add_f32 {vr(V + 2 * j + 1)}, {vr(V + 2 * j + 1)}, v12
                    v_fmac_f32 {vr(V + 8 + 2 * j)}, v11, v11
                    v_fmac_f32 {vr(V + 9 + 2 * j)}, v12, v12
                    ''')
        self.strip_reduce(16, V, 0)
        L = self.only_wave(0)
        k('v_lshlrev_b32 v8, 2, v0')
        for w in range(8):
            k(f'ds_read2st64_b32 {vr(V + 2 * w, 2)}, v8 offset0:{2 * w} offset1:{2 * w + 1}')
        for w in range(1, 8):
            k(f'v_add_f32 {vr(V)}, {vr(V)}, {vr(V + 2 * w)}')
            k(f'v_add_f32 {vr(V + 1)}, {vr(V + 1)}, {vr(V + 2 * w + 1)}')
        k(f'''
        v_mul_f32 v10, {f32(1.0 / 640)}, {vr(V)}
        v_mul_f32 v11, {f32(1.0 / 640)}, {vr(V + 1)}
        v_fma_f32 v11, -v10, v10, v11
        v_max_f32 v11, 0, v11
        v_cvt_pk_bf16_f32 v11, v11, v11
        v_lshlrev_b32 v11, 16, v11
        v_add_f32 v11, {f32(1e-5)}, v11
        v_cvt_pk_bf16_f32 v11, v11, v11
        v_lshlrev_b32 v11, 16, v11
        v_sqrt_f32 v11, v11
        v_cvt_pk_bf16_f32 v10, v10, v11
        s_lshl_b32 s55, s2, 8
        s_add_u32 s55, s55, {STATS}
        buffer_store_dword v10, v8, {P4(rWS)}, s55 offen sc1
        {L}:
        s_barrier
        ''')

    def helper(self):
        k = self.k
        k('L_helper:')
        self.srd(rB, pWD, 1728 * 640 * 2)
        self.mod_and_wd()
        L = self.only_wave(0)
        k('s_and_b32 s55, s2, 3')
        self.arrive(SYNCW, 4, 's55', 16)
        k(f'{L}:')
        self.stamp('h_wd')
        if self.o['stop'] in ('A', 'kgen'):
            k('s_branch L_fin')
            return
        Lns = k.label('nostat')
        Lb, Lp = k.label('lateb'), k.label('polled')
        L = self.only_wave(0)
        k(f's_cmp_ge_u32 s2, {16 if self.o.get("s2c", 0) else 8}\ns_cbranch_scc1 {Lb}')
        self.poll_addr(SYNC2A, 24, 16)
        k(f's_lshr_b32 s55, s2, 3\ns_mul_i32 s55, s55, {SYNC2C - SYNC2A}\nv_add_u32 v16, s55, v16')
        self.poll(16, 17, 27, nl=24, sleep=self.o.get('hsleep', 4))
        k(f's_branch {Lp}\n{Lb}:')
        self.poll_addr(SYNC2B, 24, 16)
        self.poll(16, 17, 9, nl=24, sleep=self.o.get('hsleep', 4))
        k(f'{Lp}:\n{L}:')
        k('s_barrier')
        self.stamp('s2a')
        k(f's_cmp_ge_u32 s2, 32\ns_cbranch_scc1 {Lns}')
        self.stats_job()
        k(f'{Lns}:')
        self.stamp('h_stat')
        if self.o['stop'] in ('conv', 'g1'):
            k('s_branch L_fin')
            return
        L = self.only_wave(0)
        self.poll_addr(SYNC2B, 24, 16)
        self.poll(16, 17, 9, nl=24, sleep=self.o.get('hsleep', 4))
        self.poll_addr(SYNCW, 4, 16)
        self.poll(16, 17, 10, nl=4)
        k(f'{L}:')
        k('s_barrier')
        self.g2_setup()
        self.g2_addr()
        for i in range(7):
            for f in range(5):
                self.g2_wload(i, f)
        self.resid_dma()
        L = self.only_wave(0)
        self.poll(65, 3, 27, nl=1, sleep=self.o.get('hsleep3', 8))
        k(f'{L}:')
        k('s_waitcnt vmcnt(0)\ns_barrier')
        self.resid_read()
        if self.o.get('hpf', 0):
            k(f'''
            s_lshl_b32 s55, s61, 3
            s_add_u32 s55, s55, {sr(sW)}
            v_lshlrev_b32 v1, 7, v0
            s_min_u32 s56, s55, 29
            s_mul_i32 s57, s56, 0x199a
            s_lshr_b32 s57, s57, 16
            s_mul_i32 s58, s57, 10
            s_sub_u32 s56, s56, s58
            s_add_u32 s57, s57, 5
            s_mul_i32 s57, s57, {54 * 5120}
            s_lshl_b32 s56, s56, 13
            s_add_u32 s56, s56, s57
            s_add_u32 s56, s56, {WD + 5 * 40960}
            buffer_load_dword v79, v1, {P4(rWS)}, s56 offen sc1
            s_lshl_b32 s57, {sr(sMB)}, 1
            s_add_u32 s57, s57, 1
            s_mul_i32 s57, s57, {108 * 1024}
            s_add_u32 s57, s57, {ACT}
            s_min_u32 s56, s55, 13
            s_lshl_b32 s56, s56, 13
            s_add_u32 s56, s56, s57
            s_cmp_lt_u32 s55, 14
            s_cselect_b64 exec, -1, 0
            buffer_load_dword v79, v1, {P4(rWS)}, s56 offen sc1
            s_mov_b64 exec, -1
            ''')
            L = self.only_wave(0)
            self.poll(65, 3, 27, nl=1, sleep=8, off=1024)
            k(f'''
            {L}:
            s_barrier
            s_add_u32 s57, s57, {15 * 108 * 1024}
            s_min_u32 s56, s55, 26
            s_lshl_b32 s56, s56, 13
            s_add_u32 s56, s56, s57
            s_cmp_lt_u32 s55, 27
            s_cselect_b64 exec, -1, 0
            buffer_load_dword v79, v1, {P4(rWS)}, s56 offen sc1
            s_mov_b64 exec, -1
            s_waitcnt vmcnt(0)
            ''')
        for n in range(2):
            self.g2_lda(0, n)
        for _ in range(1 + self.o.get('w2_tail', 0)):
            k(f'global_load_dword v79, v72, {P2(pWS)} sc1')
        if not self.o.get('hold', 0):
            for n in range(2, 4):
                self.g2_lda(0, n)
        k('s_branch L_g2')

    def build(self):
        k = self.k
        stop = self.o['stop']
        self.prologue()
        self.early_addresses(0 if self.o.get('esplit') else None)
        self.ln1()
        k('s_cmp_lt_u32 s2, 40\ns_cbranch_scc1 L_helper')
        while True:
            if stop == 'A':
                break
            self.kgen()
            if self.o.get('mp_early', 2) == 2:
                self.mod_partial()
            self.stamp('kgen')
            self.kexpand1()
            self.conv(setup_only=True)
            self.stamp('kexp')
            if self.o.get('mp_early', 2) == 1:
                self.mod_partial()
            self.conv_loads()
            if not self.o.get('mp_early', 2):
                self.mod_partial()
            self.kexpand2()
            self.wstage_read(0, 213)
            if stop == 'kgen':
                self.dump_k()
                break
            self.conv()
            self.window2()
            if stop == 'conv':
                break
            self.g1()
            if stop == 'g1':
                break
            self.g2()
            break
        k('L_fin:')
        if self.o.get('diag_T'):
            k(f'''
            L_dt:
            s_memrealtime s[96:97]
            s_waitcnt lgkmcnt(0)
            s_sub_u32 s96, s96, s94
            s_cmp_lt_u32 s96, {self.o['diag_T']}
            s_cbranch_scc1 L_dt
            ''')
        k(f'''
        s_or_b32 s3, s2, {sr(sW)}
        s_cmp_lg_u32 s3, 0
        s_cbranch_scc1 L_nogen
        v_mov_b32 v8, {GEN}
        v_mov_b32 v9, {sr(sTAG)}
        s_mov_b64 exec, 1
        global_store_dword v8, v9, {P2(pWS)} sc1
        s_mov_b64 exec, -1
        L_nogen:
        ''')
        self.stamp_flush()
        k('s_endpgm')
        self.helper()
        k('L_end:\ns_endpgm')
        body = k.text()
        hdr = open('adaLN_cond__ssm_conv_s4d__geglu_ffn__prompt.s.ref').read().split('; Override')[0]
        form = f'kernel={NAME} ' if self.o.get('listform', 1) else ''
        return hdr + f'''; @launch {form}grid=(256,1,1) block=(512,1,1) lds={LDS_BYTES}
;
; One persistent launch, one workgroup (8 waves) per CU; generated by a script from hand-written templates.
;   phase A  every workgroup: LayerNorm-1 of 8 tokens, transposed into the workspace; partial sums of silu(c) @ w_mod
;   phase K  workgroups 40..255 (3 channels each): S4D kernel at the 641 distinct bf16 positions as a Vandermonde
;            product on MFMA, expanded to 2048 lags, plus its prefix sums
;   phase B  causal convolution as polyphase Toeplitz MFMA, modulation / skip / residual in the epilogue
;   phase G1 gate/up GEMM with the weight panel resident in registers, LayerNorm-2 folded in as one extra k-step, GEGLU
;   phase G2 down GEMM (K split over the waves), gate and residual
;   workgroups 0..39 finish the modulation vector, re-lay W_down and compute the LayerNorm-2 statistics
; Hand-offs between workgroups: write-through stores, drained, then a flag / counter; consumers read past L1.
; The first barrier uses flags tagged with a generation word, every later flag is cleared before that barrier.
.amdgcn_target "amdgcn-amd-amdhsa--gfx950"
.text
.globl {NAME}
.p2align 8
.type {NAME},@function
{NAME}:
{body}.section .rodata,"a"
.p2align 6
.amdhsa_kernel {NAME}
  .amdhsa_next_free_vgpr 256
  .amdhsa_next_free_sgpr 102
  .amdhsa_accum_offset 256
  .amdhsa_group_segment_fixed_size 0
  .amdhsa_kernarg_size 128
  .amdhsa_user_sgpr_count 2
  .amdhsa_user_sgpr_kernarg_segment_ptr 1
  .amdhsa_system_sgpr_workgroup_id_x 1
.end_amdhsa_kernel
'''

    def dump_k(self):
        k = self.k
        k.wait('saw')
        k('s_barrier')
        k(f's_lshl_b32 s55, {sr(sW)}, 6\nv_add_u32 v8, s55, v0\nv_lshlrev_b32 v9, 3, v8\nv_lshlrev_b32 v10, 4, v8')
        for ch in range(3):
            k(f'''
            ds_read_b64 v[12:13], v9 offset:{KA + ch * KAS + 32}
            ds_read_b128 v[16:19], v10 offset:{SA + ch * SAS}
            s_add_u32 s55, {sr(sD0)}, {ch}
            s_lshl_b32 s56, s55, 12
            s_add_u32 s56, s56, {X1T}
            s_lshl_b32 s57, s55, 13
            s_add_u32 s57, s57, {ACT}
            buffer_store_dwordx2 v[12:13], v9, {P4(rWS)}, s56 offen
            buffer_store_dwordx4 v[16:19], v10, {P4(rWS)}, s57 offen
            s_waitcnt vmcnt(0)
            ''')


LAST = None
def generate(**opt):
    global LAST
    LAST = Gen(opt)
    return LAST.build()


if __name__ == '__main__':
    opt = {}
    for a in sys.argv[2:]:
        kx, v = a.split('=')
        opt[kx] = eval(v)
    open(sys.argv[1], 'w').write(generate(**opt))
```
